```python
import torch

def _softmax(x, axis=-1):
    return torch.softmax(x, dim=axis)
def _gelu(x):
    return torch.nn.functional.gelu(x, approximate="tanh")
def _silu(x):
    return torch.nn.functional.silu(x)
def _sigmoid(x):
    return torch.sigmoid(x)
def _layernorm(x, axis=-1, eps=1e-5):
    m = x.mean(dim=axis, keepdim=True)
    v = x.var(dim=axis, keepdim=True, unbiased=False)
    return (x - m) / torch.sqrt(v + eps)
def _scatter_add(tgt, idx, src, axis=0):
    return tgt.clone().index_add_(axis, idx, src)
def _segment_sum(src, seg, n):
    out = torch.zeros((n,) + src.shape[1:], dtype=src.dtype)
    return out.index_add_(0, seg, src)
def _pad(x, pw):
    flat = tuple(v for pair in reversed(pw) for v in pair)
    return torch.nn.functional.pad(x, flat)

kernel_name = 'sequential_preLN__compressed_kv_cla__moe_arch_mod__prompt'

def setup_inputs():

    _w = (lambda a: (lambda t: t.to(torch.bfloat16) if t.is_floating_point() else t)(torch.as_tensor(a)))
    def _A_setup():
        B, H, Sq, Sk, D, M = 1, 32, 2048, 2048, 128, 640
        Dc = 4 * D
        return {
            "x": _w((lambda *s: torch.randn(*s, dtype=torch.bfloat16) * 0.05)(B, Sq, M)),
            "c_kv": _w((lambda *s: torch.randn(*s, dtype=torch.bfloat16) * 0.4)(B, Sk, Dc)),
            "w_q": _w((lambda *s: torch.randn(*s, dtype=torch.bfloat16) * 3.2)(M, H, D) * (M ** -0.5)),
            "w_uk": _w((lambda *s: torch.randn(*s, dtype=torch.bfloat16) * 3.2)(Dc, H, D) * (Dc ** -0.5)),
            "w_uv": _w((lambda *s: torch.randn(*s, dtype=torch.bfloat16) * 0.4)(Dc, H, D) * (Dc ** -0.5)),
            "w_o": _w((lambda *s: torch.randn(*s, dtype=torch.bfloat16) * 0.4)(H, D, M) * ((H * D) ** -0.5)),
        }
    _A_in = _A_setup()

    def _B_setup():
        B, S, D, F, C = 1, 2048, 640, 1728, 2
        return {
            "x": _w((lambda *s: torch.randn(*s, dtype=torch.bfloat16) * 0.05)(B, S, D)),
            "w_r": _w((lambda *s: torch.randn(*s, dtype=torch.bfloat16) * 0.05)(D)),
            "w_gate": _w((lambda *s: torch.randn(*s, dtype=torch.bfloat16) * 0.05)(D, F)),
            "w_up": _w((lambda *s: torch.randn(*s, dtype=torch.bfloat16) * 0.05)(D, F)),
            "w_down": _w((lambda *s: torch.randn(*s, dtype=torch.bfloat16) * 0.05)(F, D)),
        }
    _B_in = _B_setup()

    return {
        "A_x": _A_in["x"],
        "A_c_kv": _A_in["c_kv"],
        "A_w_q": _A_in["w_q"],
        "A_w_uk": _A_in["w_uk"],
        "A_w_uv": _A_in["w_uv"],
        "A_w_o": _A_in["w_o"],
        "B_x": _B_in["x"],
        "B_w_r": _B_in["w_r"],
        "B_w_gate": _B_in["w_gate"],
        "B_w_up": _B_in["w_up"],
        "B_w_down": _B_in["w_down"],
    }

def reference(A_x, A_c_kv, A_w_q, A_w_uk, A_w_uv, A_w_o, B_x, B_w_r, B_w_gate, B_w_up, B_w_down):
    def _A_ref(x, c_kv, w_q, w_uk, w_uv, w_o):
        B, Sq, M = x.shape[0], x.shape[1], x.shape[2]
        Sk = c_kv.shape[1]
        H, D = w_q.shape[1], w_q.shape[2]
        q = torch.einsum("bqm,mhd->bhqd", x, w_q)
        k = torch.einsum("bkc,chd->bhkd", c_kv, w_uk)
        v = torch.einsum("bkc,chd->bhkd", c_kv, w_uv)
        scores = torch.einsum("bhqd,bhkd->bhqk", q, k) * (D ** -0.5)
        off = Sk - Sq
        qi = torch.arange(Sq)[:, None]
        kj = torch.arange(Sk)[None, :]
        cmask = kj <= (qi + off)
        scores = torch.where(cmask[None, None], scores, -1e9)
        p = _softmax(scores, axis=-1)
        ctx = torch.einsum("bhqk,bhkd->bhqd", p, v)
        return torch.einsum("bhqd,hdm->bqm", ctx, w_o)

    def _B_ref(x, w_r, w_gate, w_up, w_down):
        B, S, D = x.shape
        C = 2
        r = x @ w_r
        idx = torch.argsort(-r, axis=-1)[:, :C]
        idx_e = (lambda x, n, axis: torch.repeat_interleave(x, n, dim=axis))(idx.reshape(B, C, 1), D, axis=2)
        x_sel = (lambda x, i, axis: torch.take_along_dim(x, i, dim=axis))(x, idx_e, axis=1)
        g = _silu(x_sel @ w_gate)
        u = x_sel @ w_up
        y = (g * u) @ w_down
        r_sel = _sigmoid((lambda x, i, axis: torch.take_along_dim(x, i, dim=axis))(r, idx, axis=1))
        y = y * r_sel.reshape(B, C, 1)
        b_off = (torch.arange(B) * S).reshape(B, 1)
        flat_idx = (idx + b_off).reshape(B * C)
        zero = (x * 0.0).reshape(B * S, D)
        upd = _scatter_add(zero, flat_idx, y.reshape(B * C, D), axis=0)
        return x + upd.reshape(B, S, D)

    x = A_x
    h = x + _A_ref(_layernorm(x, axis=-1), A_c_kv, A_w_q, A_w_uk, A_w_uv, A_w_o)
    h2 = h + _B_ref(_layernorm(h, axis=-1), B_w_r, B_w_gate, B_w_up, B_w_down)
    return h2
```

```python
import re

def vr(b, n=1): return f"v{b}" if n == 1 else f"v[{b}:{b+n-1}]"
def ar(b, n=1): return f"a{b}" if n == 1 else f"a[{b}:{b+n-1}]"
def sr(b, n=1): return f"s{b}" if n == 1 else f"s[{b}:{b+n-1}]"

_REG = re.compile(r"^(-?)(?:abs\()?\|?([vas])(?:(\d+)|\[(\d+):(\d+)\])\|?\)?$")

def parse_reg(tok):
    tok = tok.strip()
    if tok in ("vcc",): return [("s", "vcc")]
    if tok in ("exec",): return [("s", "exec")]
    if tok in ("m0",): return [("s", "m0")]
    if tok in ("scc",): return [("s", "scc")]
    m = _REG.match(tok)
    if not m: return []
    c = m.group(2)
    if m.group(3) is not None: return [(c, int(m.group(3)))]
    return [(c, i) for i in range(int(m.group(4)), int(m.group(5)) + 1)]

TRANS = ("v_exp_f32", "v_log_f32", "v_rcp_f32", "v_rsq_f32", "v_sqrt_f32", "v_sin_f32", "v_cos_f32", "v_rcp_iflag_f32")

class Ins:
    __slots__ = ("text", "mn", "ops", "mods", "dst", "src", "cls", "passes", "tag", "srcC")
    def __init__(self, text, tag=None):
        self.text = text; self.tag = tag
        t = text.split(";")[0].strip()
        parts = t.split(None, 1)
        self.mn = parts[0]
        rest = parts[1] if len(parts) > 1 else ""
        ops = []; depth = 0; cur = ""
        for ch in rest:
            if ch in "[(": depth += 1
            if ch in "])": depth -= 1
            if ch == "," and depth == 0: ops.append(cur.strip()); cur = ""
            else: cur += ch
        if cur.strip(): ops.append(cur.strip())
        mods = ""
        if ops:
            sp = ops[-1].split(None, 1)
            if len(sp) == 2: ops[-1] = sp[0]; mods = sp[1]
        self.ops = ops; self.mods = mods
        self.dst = []; self.src = []; self.cls = "other"; self.passes = 0; self.srcC = []
        self.classify()
    def classify(self):
        mn = self.mn; ops = self.ops; R = parse_reg
        if mn.startswith("v_mfma"):
            self.cls = "mfma"
            self.passes = 8 if "32x32x16" in mn else 4 if "16x16x32" in mn else None
            assert self.passes, mn
            self.dst = R(ops[0]); self.src = R(ops[1]) + R(ops[2]) + R(ops[3]); self.srcC = R(ops[3])
        elif mn.startswith("v_"):
            self.cls = "valu"
            base = mn.replace("_e32", "").replace("_e64", "").replace("_dpp", "").replace("_sdwa", "")
            if base in TRANS: self.cls = "trans"
            if base.startswith("v_cmp"):
                self.dst = R(ops[0]); self.src = sum((R(o) for o in ops[1:]), [])
                if base.startswith("v_cmpx"): self.dst += [("s", "exec")]
            elif base in ("v_readfirstlane_b32", "v_readlane_b32"):
                self.dst = R(ops[0]); self.src = sum((R(o) for o in ops[1:]), []); self.cls = "readlane"
            elif base in ("v_add_co_u32", "v_sub_co_u32", "v_subrev_co_u32"):
                self.dst = R(ops[0]) + R(ops[1]); self.src = sum((R(o) for o in ops[2:]), [])
            elif base in ("v_addc_co_u32", "v_subb_co_u32"):
                self.dst = R(ops[0]) + R(ops[1]); self.src = sum((R(o) for o in ops[2:]), [])
            elif base in ("v_permlane32_swap_b32", "v_permlane16_swap_b32"):
                self.dst = R(ops[0]) + R(ops[1]); self.src = list(self.dst); self.cls = "permlane"
            elif base in ("v_fmac_f32", "v_dot2c_f32_bf16", "v_pk_fmac_f16"):
                self.dst = R(ops[0]); self.src = sum((R(o) for o in ops), [])
            elif base == "v_cndmask_b32":
                self.dst = R(ops[0]); self.src = sum((R(o) for o in ops[1:]), [])
                if len(ops) == 3: self.src += [("s", "vcc")]
            elif base == "v_nop":
                pass
            else:
                self.dst = R(ops[0]); self.src = sum((R(o) for o in ops[1:]), [])
            if "row_" in self.mods or "quad_perm" in self.mods or "_dpp" in mn or "row_" in self.text.split(";")[0]:
                if self.cls == "valu": self.cls = "dpp"
                if "bound_ctrl" not in self.text or True:
                    self.src += self.dst
        elif mn.startswith("ds_"):
            self.cls = "ds"
            if mn.startswith("ds_read") or mn.startswith("ds_bpermute") or mn.startswith("ds_swizzle") or mn.startswith("ds_permute"):
                self.dst = R(ops[0]); self.src = sum((R(o) for o in ops[1:]), [])
            else:
                self.src = sum((R(o) for o in ops), [])
        elif mn.startswith("buffer_") or mn.startswith("global_"):
            self.cls = "vmem"
            full = self.ops + self.mods.split()
            lds = "lds" in full
            if mn in ("buffer_wbl2", "buffer_inv"):
                pass
            elif mn.startswith("buffer_load"):
                if lds: self.src = sum((R(o) for o in ops), []) + [("s", "m0")]
                else:
                    self.dst = R(ops[0]); self.src = sum((R(o) for o in ops[1:]), [])
            elif mn.startswith("buffer_store"):
                self.src = sum((R(o) for o in ops), [])
            elif mn.startswith("buffer_atomic"):
                self.src = sum((R(o) for o in ops), [])
                if "sc0" in full: self.dst = R(ops[0])
            elif mn.startswith("global_load"):
                self.dst = R(ops[0]); self.src = sum((R(o) for o in ops[1:]), [])
            elif mn.startswith("global_store"):
                self.src = sum((R(o) for o in ops), [])
            elif mn.startswith("global_atomic"):
                if "sc0" in full: self.dst = R(ops[0]); self.src = sum((R(o) for o in ops[1:]), [])
                else: self.src = sum((R(o) for o in ops), [])
            else: raise ValueError(mn)
        elif mn.startswith("s_"):
            self.cls = "salu"
            if mn.startswith("s_load") or mn.startswith("s_buffer_load"):
                self.cls = "smem"; self.dst = R(ops[0]); self.src = sum((R(o) for o in ops[1:]), [])
            elif mn in ("s_memtime", "s_memrealtime", "s_getpc_b64") and mn != "s_getpc_b64":
                self.cls = "smem"; self.dst = R(ops[0])
            elif mn.startswith("s_cmp") or mn.startswith("s_cbranch") or mn in ("s_branch", "s_nop", "s_waitcnt", "s_barrier", "s_endpgm", "s_setprio", "s_sleep", "s_bitcmp1_b32", "s_bitcmp0_b32"):
                self.src = sum((R(o) for o in ops), [])
            elif "saveexec" in mn:
                self.dst = R(ops[0]) + [("s", "exec")]; self.src = R(ops[1])
            else:
                self.dst = R(ops[0]) if ops else []; self.src = sum((R(o) for o in ops[1:]), [])
        else:
            raise ValueError("unknown instruction: " + self.text)
    def nstates(self):
        if self.mn == "s_nop": return int(self.ops[0], 0) + 1
        return 1
    def is_store_wide(self):
        return self.cls == "vmem" and ("store_dwordx4" in self.mn or "store_dwordx3" in self.mn)

def need_states(p, c):
    need = 0
    pd = set(p.dst); cs = set(c.src); cd = set(c.dst)
    vec = lambda s: {r for r in s if r[0] in "va"}
    sca = lambda s: {r for r in s if r[0] == "s"}
    pvalu = p.cls in ("valu", "trans", "dpp", "permlane", "readlane")
    cvalu = c.cls in ("valu", "trans", "dpp", "permlane", "readlane")
    if p.cls == "mfma":
        D = vec(pd)
        if c.cls == "mfma":
            cC = set(c.srcC)
            if D & cC:
                if cC == D and c.passes == p.passes: pass
                else: need = max(need, {4: 6, 8: 10}[p.passes])
            cAB = set(parse_reg(c.ops[1]) + parse_reg(c.ops[2]))
            if D & cAB: need = max(need, {4: 8, 8: 12}[p.passes])
            if (D & cd) and not (cC == D): need = max(need, {4: 6, 8: 10}[p.passes])
        else:
            if D & (vec(cs) | vec(cd)): need = max(need, {4: 8, 8: 12}[p.passes])
        if cvalu and (set(p.srcC) & vec(cd)): need = max(need, {4: 3, 8: 7}[p.passes])
    if pvalu:
        if c.cls == "mfma" and (vec(pd) & cs): need = max(need, 2)
        if c.cls == "dpp" and (vec(pd) & cs): need = max(need, 2)
        if c.cls == "permlane" and (vec(pd) & cs): need = max(need, 2)
        if c.cls == "readlane" and (vec(pd) & cs): need = max(need, 1)
        if p.cls == "trans" and cvalu and c.cls != "trans" and (vec(pd) & cs): need = max(need, 1)
        if p.cls == "trans" and c.cls in ("mfma",) and (vec(pd) & cs): need = max(need, 2)
        sp = sca(pd)
        if sp:
            ex = ("s", "exec") in sp
            if cvalu and ((sp - {("s", "exec")}) & cs):
                need = max(need, 4 if (c.cls == "readlane" and False) else 2)
            if c.cls == "vmem" and (sp & cs): need = max(need, 5)
            if c.cls in ("salu", "smem") and (sp & cs): need = max(need, 4)
            if ex and c.cls == "mfma": need = max(need, 4)
            if ex and c.cls == "dpp": need = max(need, 5)
            if ex and c.cls in ("readlane", "permlane"): need = max(need, 4)
    if p.cls == "salu" and ("s", "m0") in pd and c.cls == "vmem" and ("s", "m0") in cs: need = max(need, 1)
    if p.cls == "salu" and ("s", "exec") in pd and c.cls == "mfma": need = max(need, 4)
    if p.is_store_wide() and (cvalu or c.cls in ("mfma",)):
        data = set(parse_reg(p.ops[0])) if p.mn.startswith("buffer") else set(parse_reg(p.ops[1]))
        if data & vec(cd): need = max(need, 2)
    return need

class Kern:
    def __init__(self, name):
        self.name = name; self.items = []
        self.vm = []
        self.lg = []
    def I(self, text, tag=None):
        for line in text.split("\n"):
            line = line.strip()
            if not line: continue
            if line.endswith(":") or line.startswith(".") or line.startswith(";"):
                self.items.append(line); continue
            ins = Ins(line, tag); self.items.append(ins)
            if ins.cls == "vmem": self.vm.append(tag)
            if ins.cls == "ds": self.lg.append(tag)
        return self
    def L(self, label): self.items.append(label + ":")
    def C(self, c): self.items.append("; " + c)
    def wait_vm(self, tag, extra="", expect=None):
        if expect is not None: assert self.vm.count(tag) == expect, (tag, self.vm.count(tag))
        idx = max(i for i, t in enumerate(self.vm) if t == tag)
        n = len(self.vm) - 1 - idx
        n = min(n, 63)
        self.I(f"s_waitcnt vmcnt({n}) {extra}".strip())
    def wait_lg(self, tag):
        idx = max(i for i, t in enumerate(self.lg) if t == tag)
        n = len(self.lg) - 1 - idx
        n = min(n, 15)
        self.I(f"s_waitcnt lgkmcnt({n})")
    def fix_hazards(self, window=24, verbose=False):
        out = []; hist = []
        nins = 0
        for it in self.items:
            if not isinstance(it, Ins):
                out.append(it); continue
            need = 0; dist = 0
            for p in reversed(hist):
                req = need_states(p, it)
                if req > dist: need = max(need, req - dist)
                dist += p.nstates()
                if dist >= window: break
            if need > 0:
                nins += 1
                if verbose: print(f"  nop {need} before: {it.text}")
                while need > 0:
                    k = min(need, 16); nop = Ins(f"s_nop {k-1}"); out.append(nop); hist.append(nop); need -= k
            out.append(it); hist.append(it)
            if len(hist) > 64: hist = hist[-64:]
        self.items = out
        return nins
    def text(self):
        return "\n".join((("    " + it.text) if isinstance(it, Ins) else it) for it in self.items) + "\n"

def check_seq(items, what=""):
    probs = []; hist = []
    for it in items:
        if not isinstance(it, Ins): continue
        dist = 0
        for p in reversed(hist):
            req = need_states(p, it)
            if req > dist: probs.append(f"{what}: need {req} have {dist}: [{p.text}] -> [{it.text}]")
            dist += p.nstates()
            if dist >= 24: break
        hist.append(it)
        if len(hist) > 64: hist = hist[-64:]
    return probs

def check_waits(items, what=""):
    probs = []; vm = []; lg = []
    for it in items:
        if not isinstance(it, Ins): continue
        if it.mn == "s_waitcnt":
            t = it.text
            m = re.search(r"vmcnt\((\d+)\)", t)
            if m:
                n = int(m.group(1)); vm = vm[len(vm) - n:] if n < len(vm) else vm
                if n == 0: vm = []
            m = re.search(r"lgkmcnt\((\d+)\)", t)
            if m:
                n = int(m.group(1))
                if any(x[1] == "smem" for x in lg):
                    if n == 0: lg = []
                else:
                    lg = lg[len(lg) - n:] if n < len(lg) else lg
                    if n == 0: lg = []
            continue
        touched = set(it.src) | set(it.dst)
        for q, nm in ((vm, "vm"), (lg, "lg")):
            for (d, c, txt) in q:
                if d & touched: probs.append(f"{what}: {nm} pending [{txt}] touched by [{it.text}]")
        if it.cls == "vmem": vm.append((set(it.dst), "vmem", it.text))
        elif it.cls == "ds": lg.append((set(it.dst), "ds", it.text))
        elif it.cls == "smem" and it.mn not in ("s_memtime", "s_memrealtime"): lg.append((set(it.dst), "smem", it.text)); lg.append((set(), "smem", it.text))
    return probs

def kernel_text(k, vgpr, agpr, sgpr=102):
    acc = (vgpr + 3) // 4 * 4
    body = f".globl {k.name}\n.p2align 8\n.type {k.name},@function\n{k.name}:\n" + k.text()
    desc = (f".amdhsa_kernel {k.name}\n  .amdhsa_next_free_vgpr {acc + agpr if agpr else vgpr}\n  .amdhsa_next_free_sgpr {sgpr}\n"
            f"  .amdhsa_accum_offset {acc}\n  .amdhsa_group_segment_fixed_size 0\n  .amdhsa_kernarg_size 112\n"
            f"  .amdhsa_user_sgpr_count 2\n  .amdhsa_user_sgpr_kernarg_segment_ptr 1\n  .amdhsa_system_sgpr_workgroup_id_x 1\n"
            f"  .amdhsa_float_denorm_mode_32 3\n"
            f".end_amdhsa_kernel\n")
    return body, desc
```

```python
from asmlib import *

KA = dict(x=0, ckv=8, wq=16, wuk=24, wuv=32, wo=40, bx=48, wr=56, wg=64, wu=72, wd=80, out=88, dbg=96, ws=104)
MB = 1 << 20
XN_OFF = 0;            XN_SIZE = 2048 * 640 * 2
KV_OFF = 4 * MB;       KV_SIZE = 32 * MB
CTX_OFF = 40 * MB;     CTX_SIZE = 16 * MB
H_OFF = 60 * MB;       H_SIZE = 2048 * 640 * 2
ST_OFF = 64 * MB;      ST_SIZE = 8 * 2048 * 16
ACC_OFF = 65 * MB;     ACC_SIZE = 3 * 2048 * 4
SEL_OFF = 65 * MB + 65536; SEL_SIZE = 4096
YP_OFF = 66 * MB;      YP_SIZE = 108 * 2 * 640 * 4
STAMP_OFF = 100 * MB
QSCALE = (128 ** -0.5) * 1.4426950408889634

def f32bits(x):
    import struct
    return "0x%08x" % struct.unpack("<I", struct.pack("<f", x))[0]

def srd(k, d, base_lo, base_hi, size, off=0):
    if off:
        k.I(f"s_add_u32 s{d}, s{base_lo}, {off}")
        k.I(f"s_addc_u32 s{d+1}, s{base_hi}, 0")
    else:
        k.I(f"s_mov_b32 s{d}, s{base_lo}")
        k.I(f"s_mov_b32 s{d+1}, s{base_hi}")
    k.I(f"s_mov_b32 s{d+2}, {size}")
    k.I(f"s_mov_b32 s{d+3}, 0x20000")

def stamp_begin(k, diag, s=98):
    if diag: k.I(f"s_memrealtime s[{s}:{s+1}]")

def stamp_end(k, diag, kidx, ws_lo, ws_hi, s=98, vtmp=0):
    if not diag: return
    lab = f"Lstamp_{k.name}"
    k.I("s_waitcnt vmcnt(0) lgkmcnt(0)")
    k.I(f"s_memrealtime s[{s+2}:{s+3}]")
    k.I("s_waitcnt lgkmcnt(0)")
    k.I(f"s_lshl_b32 s96, s2, 3")
    k.I(f"s_add_u32 s96, s96, {STAMP_OFF + kidx*4096}")
    k.I(f"v_mov_b32 v{vtmp+2}, s{s}")
    k.I(f"v_mov_b32 v{vtmp+3}, s{s+2}")
    k.I(f"v_mov_b32 v{vtmp+1}, s96")
    k.I(f"v_mbcnt_lo_u32_b32 v{vtmp}, -1, 0")
    k.I(f"v_mbcnt_hi_u32_b32 v{vtmp}, -1, v{vtmp}")
    k.I(f"v_cmp_eq_u32 vcc, 0, v{vtmp}")
    k.I(f"s_and_saveexec_b64 s[94:95], vcc")
    k.I(f"s_cbranch_execz {lab}")
    k.I(f"global_store_dwordx2 v{vtmp+1}, v[{vtmp+2}:{vtmp+3}], s[{ws_lo}:{ws_hi}]")
    k.L(lab)

MARKS = {}
def mark(k, diag, idx):
    if diag:
        import os
        k.I(f"{'s_memtime' if os.environ.get('CYC') else 's_memrealtime'} s[{60+2*idx}:{61+2*idx}]")
        MARKS[k.name] = max(MARKS.get(k.name, 0), idx + 1)

def dump_marks(k, diag, kidx, ws_lo, ws_hi, vtmp):
    if not diag or k.name not in MARKS: return
    n = MARKS[k.name]
    lab = f"Lmark_{k.name}"
    k.I("s_waitcnt vmcnt(0) lgkmcnt(0)")
    k.I("s_lshl_b32 s96, s2, 2")
    k.I("s_add_u32 s96, s96, s40")
    k.I("s_lshl_b32 s96, s96, 6")
    k.I(f"s_add_u32 s96, s96, {STAMP_OFF + MB + kidx*262144}")
    k.I(f"v_mov_b32 v{vtmp+1}, s96")
    k.I(f"v_mbcnt_lo_u32_b32 v{vtmp}, -1, 0")
    k.I(f"v_mbcnt_hi_u32_b32 v{vtmp}, -1, v{vtmp}")
    k.I(f"v_cmp_eq_u32 vcc, 0, v{vtmp}")
    k.I(f"s_and_saveexec_b64 s[94:95], vcc")
    k.I(f"s_cbranch_execz {lab}")
    for i in range(n):
        k.I(f"v_mov_b32 v{vtmp+2}, s{60+2*i}")
        k.I(f"global_store_dword v{vtmp+1}, v{vtmp+2}, s[{ws_lo}:{ws_hi}] offset:{4*i}")
    k.L(lab)
    k.I("s_mov_b64 exec, s[94:95]")

def dpp_row_allreduce(k, op, v, tmp=None):
    for r in (8, 4, 2, 1):
        k.I(f"{op} v{v}, v{v}, v{v} row_ror:{r}")

def ln_rows(k, xin, nchunk, vt, out_pk, eps_s, tag=""):
    n = 8 * nchunk
    X = vt; T = vt + n
    for i in range(4 * nchunk):
        k.I(f"v_lshlrev_b32 v{X+2*i}, 16, v{xin+i}")
        k.I(f"v_and_b32 v{X+2*i+1}, 0xffff0000, v{xin+i}")
    for c in range(4):
        k.I(f"v_add_f32 v{T+c}, v{X+c}, v{X+c+4}")
    for i in range(8, n):
        k.I(f"v_add_f32 v{T+(i&3)}, v{T+(i&3)}, v{X+i}")
    k.I(f"v_add_f32 v{T}, v{T}, v{T+1}")
    k.I(f"v_add_f32 v{T+2}, v{T+2}, v{T+3}")
    k.I(f"v_add_f32 v{T}, v{T}, v{T+2}")
    dpp_row_allreduce(k, "v_add_f32", T)
    k.I(f"v_mul_f32 v{T+4}, {f32bits(1.0/640)}, v{T}")
    for c in range(4):
        k.I(f"v_sub_f32 v{T+5}, v{X+c}, v{T+4}")
        k.I(f"v_mul_f32 v{T+c}, v{T+5}, v{T+5}")
    for i in range(4, n):
        k.I(f"v_sub_f32 v{T+5+(i&1)}, v{X+i}, v{T+4}")
        k.I(f"v_fmac_f32 v{T+(i&3)}, v{T+5+(i&1)}, v{T+5+(i&1)}")
    k.I(f"v_add_f32 v{T}, v{T}, v{T+1}")
    k.I(f"v_add_f32 v{T+2}, v{T+2}, v{T+3}")
    k.I(f"v_add_f32 v{T}, v{T}, v{T+2}")
    dpp_row_allreduce(k, "v_add_f32", T)
    k.I(f"v_mul_f32 v{T}, {f32bits(1.0/640)}, v{T}")
    ln_finish(k, X, n, T + 4, T, T + 5, out_pk, eps_s)

def bf16_round(k, v):
    k.I(f"v_cvt_pk_bf16_f32 v{v}, v{v}, v{v}")
    k.I(f"v_and_b32 v{v}, 0xffff0000, v{v}")

def ln_finish(k, X, n, vmean, vvar, vtmp, out_pk, eps_s):
    bf16_round(k, vmean)
    bf16_round(k, vvar)
    k.I(f"v_add_f32 v{vvar}, s{eps_s}, v{vvar}")
    bf16_round(k, vvar)
    k.I(f"v_sqrt_f32 v{vvar}, v{vvar}")
    bf16_round(k, vvar)
    k.I(f"v_rcp_f32 v{vvar}, v{vvar}")
    for i in range(0, n, 2):
        k.I(f"v_sub_f32 v{X+i}, v{X+i}, v{vmean}")
        k.I(f"v_sub_f32 v{X+i+1}, v{X+i+1}, v{vmean}")
        k.I(f"v_cvt_pk_bf16_f32 v{vtmp}, v{X+i}, v{X+i+1}")
        k.I(f"v_lshlrev_b32 v{X+i}, 16, v{vtmp}")
        k.I(f"v_and_b32 v{X+i+1}, 0xffff0000, v{vtmp}")
        k.I(f"v_mul_f32 v{X+i}, v{X+i}, v{vvar}")
        k.I(f"v_mul_f32 v{X+i+1}, v{X+i+1}, v{vvar}")
        k.I(f"v_cvt_pk_bf16_f32 v{out_pk+i//2}, v{X+i}, v{X+i+1}")
```

```python
from common import *

def gen_k1(diag=False, store_flags="sc1"):
    k = Kern("k1_kernel")
    I = k.I
    NS = 4; XBASE = NS*16384; NXB = 3
    I("s_cmp_ge_u32 s2, 256")
    I("s_cbranch_scc1 Lk1_end")
    stamp_begin(k, diag)
    I(f"s_load_dwordx4 s[4:7], s[0:1], {KA['x']}")
    I(f"s_load_dwordx4 s[8:11], s[0:1], {KA['wuk']}")
    I(f"s_load_dwordx2 s[14:15], s[0:1], {KA['ws']}")
    I("v_lshrrev_b32 v1, 6, v0")
    I("v_and_b32 v2, 63, v0")
    I("v_readfirstlane_b32 s40, v1")
    I("s_and_b32 s43, s2, 7")
    I("s_lshr_b32 s44, s2, 3")
    I("s_and_b32 s41, s44, 3")
    I("s_lshl_b32 s43, s43, 2")
    I("s_add_u32 s41, s41, s43")
    I("s_lshr_b32 s42, s44, 2")
    I("s_waitcnt lgkmcnt(0)")
    mark(k, diag, 12)
    SX, SC, SWK, SWV, SKV, SXN = 16, 20, 24, 28, 32, 36
    srd(k, SX, 4, 5, 2048*640*2)
    srd(k, SC, 6, 7, 2048*512*2)
    srd(k, SWK, 8, 9, 512*4096*2)
    srd(k, SWV, 10, 11, 512*4096*2)
    srd(k, SKV, 14, 15, KV_SIZE, KV_OFF)
    srd(k, SXN, 14, 15, XN_SIZE, XN_OFF)
    LANE = 2
    vXA, vW, vT0, vT1, vT0h, vT1h, vST, vLX, vLO = 3, 4, 5, 6, 7, 8, 9, 10, 11
    t0, t1 = 12, 13
    vXB = 14
    vXR = 16

    I(f"v_bfe_u32 v{t0}, v{LANE}, 4, 1")
    I("s_lshl_b32 s45, s2, 3")
    I("s_lshl_b32 s46, s40, 1")
    I("s_add_u32 s45, s45, s46")
    I(f"v_add_u32 v{t0}, s45, v{t0}")
    I(f"v_and_b32 v{t1}, 15, v{LANE}")
    I(f"v_mul_u32_u24 v{vLX}, 1280, v{t0}")
    I(f"v_lshl_add_u32 v{vLX}, v{t1}, 4, v{vLX}")
    LNX = 128
    for u in range(5):
        I(f"buffer_load_dwordx4 v[{LNX+4*u}:{LNX+4*u+3}], v{vLX}, s[{SX}:{SX+3}], 0 offen offset:{256*u}", tag="lnx")
    mark(k, diag, 13)
    I(f"v_lshrrev_b32 v{vLO}, 5, v{t0}")
    I(f"v_mul_u32_u24 v{vLO}, 40960, v{vLO}")
    I(f"v_and_b32 v{t0}, 31, v{t0}")
    I(f"v_lshl_add_u32 v{vLO}, v{t0}, 4, v{vLO}")
    I(f"v_lshrrev_b32 v{t0}, 1, v{t1}")
    I(f"v_lshl_add_u32 v{vLO}, v{t0}, 10, v{vLO}")
    I(f"v_and_b32 v{t0}, 1, v{t1}")
    I(f"v_lshl_add_u32 v{vLO}, v{t0}, 9, v{vLO}")
    srd(k, 92, 14, 15, ACC_SIZE, ACC_OFF)
    I(f"s_mul_i32 s45, s2, 96")
    I(f"v_lshlrev_b32 v{t0}, 2, v0")
    I(f"v_mov_b32 v{t1}, 0x100000")
    I(f"v_cmp_gt_u32 vcc, 24, v0")
    I(f"v_cndmask_b32 v{t0}, v{t1}, v{t0}, vcc")
    I(f"v_mov_b32 v{t1}, 0")
    I(f"buffer_store_dword v{t1}, v{t0}, s[92:95], s45 offen")
    I(f"v_lshrrev_b32 v{t0}, 3, v{LANE}")
    I(f"v_lshlrev_b32 v{vXA}, 10, v{t0}")
    I(f"v_lshrrev_b32 v{t0}, 4, v{LANE}")
    I(f"v_and_b32 v{t1}, 7, v{LANE}")
    I(f"v_xor_b32 v{t0}, v{t0}, v{t1}")
    I(f"v_lshl_add_u32 v{vXA}, v{t0}, 4, v{vXA}")
    I(f"v_xor_b32 v{vXB}, 64, v{vXA}")
    I(f"v_lshrrev_b32 v{t1}, 5, v{LANE}")
    I(f"v_bfe_u32 v{t0}, v{LANE}, 1, 3")
    I(f"v_xor_b32 v{t0}, v{t0}, v{t1}")
    I(f"v_lshlrev_b32 v{t0}, 4, v{t0}")
    I(f"v_and_b32 v{vXR}, 31, v{LANE}")
    I(f"v_lshl_add_u32 v{vXR}, v{vXR}, 7, v{t0}")
    I(f"s_mul_i32 s45, s40, {NXB*8192}")
    I(f"s_add_u32 s45, s45, {XBASE}")
    for j in range(1, 4):
        I(f"v_xor_b32 v{vXR+j}, {32*j}, v{vXR}")
        I(f"v_add_u32 v{vXR+j}, s45, v{vXR+j}")
    I(f"v_add_u32 v{vXR}, s45, v{vXR}")
    I(f"v_lshrrev_b32 v{t0}, 3, v{LANE}")
    I(f"v_lshlrev_b32 v{vW}, 13, v{t0}")
    I(f"v_bfe_u32 v{t0}, v{LANE}, 4, 1")
    I(f"v_lshlrev_b32 v{t0}, 2, v{t0}")
    I(f"v_and_b32 v{vT0}, 7, v{LANE}")
    I(f"v_xor_b32 v{t0}, v{t0}, v{vT0}")
    I(f"v_lshl_add_u32 v{vW}, v{t0}, 4, v{vW}")
    I(f"v_bfe_u32 v{t0}, v{LANE}, 2, 2")
    I(f"v_lshl_add_u32 v{t0}, v{t1}, 3, v{t0}")
    I(f"v_lshlrev_b32 v{vT0}, 7, v{t0}")
    I(f"v_bfe_u32 v{t0}, v{LANE}, 3, 1")
    I(f"v_lshl_add_u32 v{vT0}, v{t0}, 6, v{vT0}")
    I(f"v_bfe_u32 v{t0}, v{LANE}, 4, 1")
    I(f"v_lshl_add_u32 v{vT0}, v{t0}, 5, v{vT0}")
    I(f"v_and_b32 v{t0}, 3, v{LANE}")
    I(f"v_lshl_add_u32 v{vT0}, v{t0}, 3, v{vT0}")
    I(f"v_xor_b32 v{vT1}, 64, v{vT0}")
    I(f"v_add_u32 v{vT0h}, 0x10000, v{vT0}")
    I(f"v_add_u32 v{vT1h}, 0x10000, v{vT1}")
    I(f"v_lshlrev_b32 v{vST}, 4, v{LANE}")
    sX0, sX1, sWb, sM, sKVb, sT, sEPS = 48, 49, 50, 51, 52, 53, 54
    I(f"s_lshl_b32 s{sX0}, s42, 8")
    I(f"s_lshl_b32 s{sT}, s40, 6")
    I(f"s_add_u32 s{sX0}, s{sX0}, s{sT}")
    I(f"s_lshl_b32 s{sX0}, s{sX0}, 10")
    I(f"s_mul_i32 s{sX1}, s40, {NXB*8192}")
    I(f"s_add_u32 s{sX1}, s{sX1}, {XBASE}")
    I(f"s_lshl_b32 s{sWb}, s40, 18")
    I(f"s_lshl_b32 s{sT}, s41, 8")
    I(f"s_add_u32 s{sWb}, s{sWb}, s{sT}")
    I(f"s_lshl_b32 s{sM}, s40, 12")
    I(f"s_lshl_b32 s{sKVb}, s41, 6")
    I(f"s_lshl_b32 s{sT}, s42, 3")
    I(f"s_add_u32 s{sKVb}, s{sKVb}, s{sT}")
    I(f"s_lshl_b32 s{sT}, s40, 1")
    I(f"s_add_u32 s{sKVb}, s{sKVb}, s{sT}")
    I(f"s_lshl_b32 s{sKVb}, s{sKVb}, 14")
    I(f"s_mov_b32 s{sEPS}, {f32bits(1e-5)}")

    def dma_one(g, u):
        p = g >> 2; S = SWK if p < 2 else SWV
        so = (128*(g & 3) + 8*u) * 8192 + 128*(p & 1)
        I(f"s_add_u32 m0, s{sM}, {(g % NS)*16384 + u*1024}")
        I(f"s_add_u32 s{sT}, s{sWb}, {so}")
        I(f"buffer_load_dwordx4 v{vW}, s[{S}:{S+3}], s{sT} offen lds", tag=f"w{g}")
    def dma_piece(g):
        for u in range(4): dma_one(g, u)
    def xdma_one(cx, u):
        I(f"s_add_u32 m0, s{sX1}, {(cx % NXB)*8192 + u*1024}")
        I(f"s_add_u32 s{sT}, s{sX0}, {u*8192 + cx*128}")
        I(f"buffer_load_dwordx4 v{vXA if u % 2 == 0 else vXB}, s[{SC}:{SC+3}], s{sT} offen lds", tag=f"xc{cx}")
    def xdma(cx):
        for u in range(8): xdma_one(cx, u)
    def xread(cx):
        for sp in range(4):
            for b in range(2):
                a = (b*32 + 4*cx + sp)*4
                I(f"ds_read_b128 a[{a}:{a+3}], v{vXR+sp} offset:{(cx % NXB)*8192 + b*4096}", tag=f"xr{cx}")
    mark(k, diag, 14)
    xdma(0)
    dma_piece(0)
    mark(k, diag, 15)
    xdma(1)
    dma_piece(1)
    xdma(2)
    mark(k, diag, 0)
    k.wait_vm("lnx")
    mark(k, diag, 1)
    LNO = 100
    ln_rows(k, LNX, 5, 148, LNO, sEPS)
    I(f"s_mov_b64 s[56:57], exec")
    I(f"s_mov_b32 exec_hi, 0")
    for u in range(5):
        I(f"s_mov_b32 s{sT}, {u*8192}")
        I(f"buffer_store_dwordx4 v[{LNO+4*u}:{LNO+4*u+3}], v{vLO}, s[{SXN}:{SXN+3}], s{sT} offen {store_flags}", tag="lnst")
    I(f"s_mov_b64 exec, s[56:57]")
    dma_piece(2)
    gapq = []
    WF = 64
    ACC = [128, 192]
    STG = [96, 100+0]
    STG = [96, 120]
    LA = 2
    def wread(n):
        g = n >> 3; s = n & 7
        slot = g % NS
        b0, b1 = (vT0, vT1) if slot < 4 else (vT0h, vT1h)
        off = (slot & 3)*16384 + s*2048
        r = WF + (n & 3)*8
        I(f"ds_read_b64_tr_b16 v[{r}:{r+1}], v{b0} offset:{off}", tag=f"r{n}")
        I(f"ds_read_b64_tr_b16 v[{r+2}:{r+3}], v{b0} offset:{off+512}", tag=f"r{n}")
        I(f"ds_read_b64_tr_b16 v[{r+4}:{r+5}], v{b1} offset:{off}", tag=f"r{n}")
        I(f"ds_read_b64_tr_b16 v[{r+6}:{r+7}], v{b1} offset:{off+512}", tag=f"r{n}")
    def epi_items(p):
        items = []
        acc = ACC[p & 1]
        for cb in range(2):
            for b in range(2):
                tile = acc + (cb*2 + b)*16
                for half in range(2):
                    if p < 2: within = (2*(2*p + cb) + half)*1024
                    else: within = 8192 + ((2*(p-2) + cb)*2 + half)*1024
                    def f(tile=tile, half=half, within=within, b=b, idx=len(items)):
                        st = STG[idx & 1]
                        for j in range(4):
                            I(f"v_cvt_pk_bf16_f32 v{st+j}, v{tile+8*half+2*j}, v{tile+8*half+2*j+1}")
                        I(f"s_add_u32 s{sT}, s{sKVb}, {b*16384 + within}")
                        I(f"buffer_store_dwordx4 v[{st}:{st+3}], v{vST}, s[{SKV}:{SKV+3}], s{sT} offen {store_flags}", tag=f"st{p}")
                    items.append(f)
        return items
    mark(k, diag, 2)
    k.wait_vm("w1")
    I("s_barrier")
    mark(k, diag, 3)
    k.wait_vm("xc0")
    xread(0)
    for n in range(LA): wread(n)
    pend = []
    for n in range(128):
        g = n >> 3; s = n & 7; p = g >> 2
        ks = n & 31
        if s == 0 and g > 0:
            if g + 1 < 16: k.wait_vm(f"w{g+1}", expect=4)
            I("s_barrier")
            if g + NS - 1 < 16:
                for u in range(4): gapq.append(lambda g=g, u=u: dma_one(g + NS - 1, u))
        if n == 0:
            for u in range(4): gapq.append(lambda u=u: dma_one(3, u))
        if n + LA < 128: wread(n + LA)
        if p == 0 and ks % 4 == 1 and ks // 4 + 1 < 8:
            k.wait_vm(f"xc{ks//4+1}", expect=8)
            xread(ks//4 + 1)
        if p == 0 and ks % 4 == 0:
            k.wait_lg(f"xr{ks//4}")
            if ks//4 + NXB < 8:
                for u in range(8): gapq.append(lambda cx=ks//4 + NXB, u=u: xdma_one(cx, u))
        k.wait_lg(f"r{n}")
        r = WF + (n & 3)*8
        acc = ACC[p & 1]
        for cb in range(2):
            for b in range(2):
                d = acc + (cb*2 + b)*16
                a = (b*32 + ks)*4
                c = "0" if ks == 0 else f"v[{d}:{d+15}]"
                if p < 2: I(f"v_mfma_f32_32x32x16_bf16 v[{d}:{d+15}], v[{r+4*cb}:{r+4*cb+3}], a[{a}:{a+3}], {c}")
                else:     I(f"v_mfma_f32_32x32x16_bf16 v[{d}:{d+15}], a[{a}:{a+3}], v[{r+4*cb}:{r+4*cb+3}], {c}")
                if gapq and (p == 0 or b == 0): gapq.pop(0)()
                elif pend and ks >= 3 and (ks % 3 == 0) and cb == 1 and b == 1: pend.pop(0)()
        if ks == 31: mark(k, diag, 4 + p)
        if ks == 7 and p == 0: mark(k, diag, 9)
        if ks == 15 and p == 0: mark(k, diag, 10)
        if ks == 23 and p == 0: mark(k, diag, 11)
        if ks == 31:
            assert not pend
            pend = epi_items(p)
    assert not gapq
    assert len(pend) == 8
    for f in pend: f()
    mark(k, diag, 8)
    dump_marks(k, diag, 0, 14, 15, 12)
    stamp_end(k, diag, 0, 14, 15, vtmp=12)
    k.L("Lk1_end")
    I("s_endpgm")
    n = k.fix_hazards()
    probs = check_waits(k.items, "k1")
    for p_ in probs[:10]: print(p_)
    return k, 256, 256, XBASE + 4*NXB*8192
```

```python
from common import *

OA, OB, QA, QB, F0, F1 = 0, 64, 128, 160, 192, 224
S0, S1, P0, P1, NMA, NMB = 64, 80, 96, 104, 112, 128
LANE, vL16, vWQ, vNINF = 2, 3, 4, 5
vQ = 6
vA0, vA1, vA2 = 10, 11, 12
vTH0, vTH1 = 13, 14
LA0, LA1, LB0, LB1, LC0, LC1 = 16, 17, 18, 19, 20, 21
vT = 24
SXN, SWQ, SKV, SCTX = 16, 20, 24, 28
sW, sH, sI = 40, 41, 42
sT, sT2, sB0, sDoff, sDslot, sDlim, sOOB, sCnt, sWL, sQA, sQB, sFlag, sTHR = 43, 44, 45, 46, 47, 48, 49, 50, 51, 52, 53, 54, 55
MSK = 90
KVR = [8*(r >> 2) + (r & 3) for r in range(16)]
COST = {"exp": 8}

class Sched:
    def __init__(self, k): self.k = k
    def phase(self, mfmas, fillers, budget=24, start=0, fixed=None):
        k = self.k; q = list(fillers); fixed = fixed or {}
        n = len(mfmas)
        total = sum(f[1] for f in q) + sum(4*len(v) for v in fixed.values())
        per = max(budget, -(-total // max(n - start, 1)))
        for g, m in enumerate(mfmas):
            k.I(m)
            used = 0
            for t in fixed.get(g, []):
                if callable(t): t()
                else: k.I(t)
                used += 4
            while q and g >= start and (used + q[0][1] <= per or g == n - 1):
                f = q[0]
                if len(f) > 2 and f[2] > g: break
                q.pop(0); k.I(f[0]); used += f[1]
        assert not q, q

def exp_group(S, regs, L, masked=False, th=None):
    out = []
    for i in range(0, len(regs), 2):
        pair = regs[i:i+2]
        for r in pair: out.append((f"v_exp_f32 v{S+r}, v{S+r}", 8))
        for j, r in enumerate(pair): out.append((f"v_add_f32 v{L[j]}, v{L[j]}, v{S+r}", 4))
    return out

def mask_group(S, th):
    out = []
    for i in range(0, 16, 4):
        for j in range(4):
            out.append((f"v_cmp_le_i32 s[{MSK+2*j}:{MSK+2*j+1}], {KVR[i+j]}, v{th}", 4))
        for j in range(4):
            out.append((f"v_cndmask_b32 v{S+i+j}, v{vNINF}, v{S+i+j}, s[{MSK+2*j}:{MSK+2*j+1}]", 4))
    return out

def cvt_group(S, P, lo, hi):
    return [(f"v_cvt_pk_bf16_f32 v{P+j}, v{S+2*j}, v{S+2*j+1}", 4) for j in range(lo, hi)]

def qk(S, F, Q, NM):
    out = []
    for c in range(8):
        C = f"v[{NM}:{NM+15}]" if c == 0 else f"v[{S}:{S+15}]"
        out.append(f"v_mfma_f32_32x32x16_bf16 v[{S}:{S+15}], a[{F+4*c}:{F+4*c+3}], a[{Q+4*c}:{Q+4*c+3}], {C}")
    return out

def pv(O, F, P):
    out = []
    for j in range(8):
        ks, db = j >> 2, j & 3
        out.append(f"v_mfma_f32_32x32x16_bf16 a[{O+16*db}:{O+16*db+15}], a[{F+4*j}:{F+4*j+3}], v[{P+4*ks}:{P+4*ks+3}], a[{O+16*db}:{O+16*db+15}]")
    return out

def rdK(F, c, vb, off=0): return f"ds_read_b128 a[{F+4*c}:{F+4*c+3}], v{vb} offset:{off + c*1024}"
def rdV(F, j, vb, off=0):
    ks, db = j >> 2, j & 3
    return f"ds_read_b128 a[{F+4*j}:{F+4*j+3}], v{vb} offset:{off + 8192 + (db*2 + ks)*1024}"

def dma_setup(k):
    k.I(f"s_cmp_lt_u32 s{sDoff}, s{sDlim}")
    k.I(f"s_cselect_b32 s{sT2}, s{sDoff}, s{sOOB}")
    k.I(f"s_add_u32 m0, s{sDslot}, s{sWL}")
    k.I(f"s_add_u32 s{sDoff}, s{sDoff}, 16384")
    k.I(f"s_add_u32 s{sDslot}, s{sDslot}, 16384")
    k.I(f"s_and_b32 s{sDslot}, s{sDslot}, 0x1ffff")
def dma_ld(u): return f"buffer_load_dwordx4 v{vL16}, s[{SKV}:{SKV+3}], s{sT2} offen offset:{u*1024} lds"

def set_base(k, v, delta):
    if delta == 0:
        k.I(f"v_add_u32 v{v}, s{sB0}, v{vL16}")
    else:
        k.I(f"s_add_u32 s{sT}, s{sB0}, {delta*16384}")
        k.I(f"s_and_b32 s{sT}, s{sT}, 0x1ffff")
        k.I(f"v_add_u32 v{v}, s{sT}, v{vL16}")

def body(k, kind, masked):
    sc = Sched(k)
    dual_pv = kind in ("DD", "DS")
    dual_qk = kind == "DD"
    Q0, NM0 = (QA, NMA) if dual_qk else (QB, NMB)
    L0n = (LA0, LA1) if dual_qk else (LC0, LC1)
    L1 = (LB0, LB1)
    O0 = OA if dual_pv else OB
    k.C(f"---- body {kind} masked={masked}")
    if kind == "DD":
        set_base(k, vA0, 0)
        set_base(k, vA1, 2)
    elif kind == "DS":
        set_base(k, vA0, 0)
        set_base(k, vA1, 2)
        set_base(k, vA2, 3)
    else:
        set_base(k, vA0, 0)
        set_base(k, vA1, 2)
        set_base(k, vA2, 4)
    e1b = cvt_group(S1, P1, 0, 4) + exp_group(S1, list(range(8, 16)), L1) + cvt_group(S1, P1, 4, 8)
    if kind == "SE":
        k.I("s_waitcnt lgkmcnt(0)")
        for j in range(8): k.I(rdV(F0, j, vA0))
        for j in range(8): k.I(rdV(F1, j, vA0, 16384))
        for f in e1b: k.I(f[0])
        k.I("s_waitcnt lgkmcnt(8)")
        for m in pv(OB, F0, P0): k.I(m)
        k.I("s_waitcnt lgkmcnt(0)")
        for m in pv(OB, F1, P1): k.I(m)
        return
    fixed = {}
    if kind == "DD":
        for j in range(4): fixed[j] = [rdV(F1, j, vA0)]
    elif kind == "DS":
        for j in range(4): fixed[j] = [rdK(F1, 2*j, vA1), rdK(F1, 2*j+1, vA1)]
    else:
        for j in range(4): fixed[j] = [rdK(F1, 2*j, vA1, 16384), rdK(F1, 2*j+1, vA1, 16384)]
    k.I("s_waitcnt lgkmcnt(4)") if kind != "DD" else k.I("s_waitcnt lgkmcnt(0)")
    m1 = qk(S0, F0, Q0, NM0)
    if kind != "DD":
        pre = {4: "s_waitcnt lgkmcnt(11)", 5: "s_waitcnt lgkmcnt(10)", 6: "s_waitcnt lgkmcnt(9)", 7: "s_waitcnt lgkmcnt(8)"}
        m1 = [(pre.get(c, "") + "\n" + m) for c, m in enumerate(m1)]
    sc.phase(m1, e1b, fixed=fixed)
    fixed = {}
    if kind == "DD":
        for j in range(4): fixed[j] = [rdV(F1, 4 + j, vA0)]
        m2 = qk(S1, F0, QB, NMB)
    else:
        for j in range(4): fixed[j] = [rdV(F0, 2*j, vA0), rdV(F0, 2*j+1, vA0)]
        k.I("s_waitcnt lgkmcnt(0)")
        m2 = qk(S1, F1, QB, NMB)
    regs0a = list(range(0, 6)); regs0b = list(range(6, 16))
    f2 = []
    if masked: f2 += [(t, c, 2) for (t, c) in mask_group(S0, vTH0)]
    f2 += [(t, c, 2) for (t, c) in exp_group(S0, regs0a, L0n)]
    sc.phase(m2, f2, fixed=fixed, start=2)
    fixed = {}
    f3 = exp_group(S0, regs0b, L0n)
    if kind == "DD":
        k.I("s_waitcnt vmcnt(16) lgkmcnt(0)")
        k.I("s_barrier")
        dma_setup(k)
        for j in range(8): fixed[j] = [rdK(F0, j, vA1)]
        for j in range(4): fixed[2*j+1].append(dma_ld(j))
        m3 = pv(O0, F1, P0)
    elif kind == "DS":
        k.I("s_waitcnt lgkmcnt(0)")
        m3 = pv(O0, F0, P0)
    else:
        for j in range(4): fixed[j] = [rdV(F1, 2*j, vA0, 16384), rdV(F1, 2*j+1, vA0, 16384)]
        k.I("s_waitcnt lgkmcnt(0)")
        m3 = pv(O0, F0, P0)
    sc.phase(m3, f3, fixed=fixed)
    fixed = {}
    f4 = cvt_group(S0, P0, 0, 8)
    if masked and kind != "DD": f4 += mask_group(S1, vTH1)
    f4 += exp_group(S1, list(range(0, 8)), L1)
    if kind == "DD":
        m4 = pv(OB, F1, P1)
    elif kind == "DS":
        k.I("s_waitcnt vmcnt(12)")
        k.I("s_barrier")
        dma_setup(k)
        for j in range(8): fixed[j] = [rdK(F0, j, vA2)]
        for j in range(4): fixed[2*j+1].append(dma_ld(j))
        m4 = pv(OB, F0, P1)
    else:
        k.I("s_waitcnt vmcnt(8) lgkmcnt(0)")
        k.I("s_barrier")
        dma_setup(k)
        for j in range(8): fixed[j] = [rdK(F0, j, vA2)]
        for j in range(4): fixed[j].append(dma_ld(j))
        fixed[4].append(lambda: dma_setup(k))
        for j in range(4): fixed[4 + j].append(dma_ld(j))
        m4 = pv(OB, F1, P1)
    sc.phase(m4, f4, fixed=fixed)
    adv = 1 if kind in ("DD", "DS") else 2
    k.I(f"s_add_u32 s{sB0}, s{sB0}, {adv*16384}")
    k.I(f"s_and_b32 s{sB0}, s{sB0}, 0x1ffff")
    if kind == "DD":
        k.I(f"v_subrev_u32 v{vTH0}, 32, v{vTH0}")
    else:
        k.I(f"v_subrev_u32 v{vTH0}, 64, v{vTH0}")
        k.I(f"v_subrev_u32 v{vTH1}, 64, v{vTH1}")

def loop(k, name, kind, masked):
    k.I(f"s_cmp_eq_u32 s{sCnt}, 0")
    k.I(f"s_cbranch_scc1 {name}_end")
    k.L(name)
    i0 = len(k.items)
    body(k, kind, masked)
    k.I(f"s_sub_u32 s{sCnt}, s{sCnt}, 1")
    k.I(f"s_cmp_lg_u32 s{sCnt}, 0")
    k.I(f"s_cbranch_scc1 {name}")
    k.L(name + "_end")
    return (i0, len(k.items))

def epilogue(k, O, Lregs, sQ, flagbit, store_flags):
    I = k.I
    t = vT
    I(f"v_add_f32 v{t}, v{Lregs[0]}, v{Lregs[1]}")
    for r in Lregs[2:]: I(f"v_add_f32 v{t}, v{t}, v{r}")
    I(f"v_mov_b32 v{t+1}, v{t}")
    I(f"v_permlane32_swap_b32 v{t}, v{t+1}")
    I(f"v_add_f32 v{t}, v{t}, v{t+1}")
    I(f"v_rcp_f32 v{t+1}, v{t}")
    I(f"v_mov_b32 v{t+2}, 0")
    I(f"v_mov_b32 v{t+3}, 0")
    for c in range(8):
        db, ip = c >> 1, c & 1
        b = t + 8 + (c & 1)*12
        for j in range(8): I(f"v_accvgpr_read_b32 v{b+j}, a{O+16*db+8*ip+j}")
        for j in range(8): I(f"v_mul_f32 v{b+j}, v{b+j}, v{t+1}")
        for j in range(8): I(f"v_fmac_f32 v{t+2}, v{b+j}, v{t+3}")
        for j in range(4): I(f"v_cvt_pk_bf16_f32 v{b+8+j}, v{b+2*j}, v{b+2*j+1}")
        I(f"s_add_u32 s{sT}, s{sQ}, {c*1024}")
        I(f"buffer_store_dwordx4 v[{b+8}:{b+11}], v{vL16}, s[{SCTX}:{SCTX+3}], s{sT} offen {store_flags}")
    I(f"s_mov_b32 s{sT}, 0x5d800000")
    I(f"v_cmp_nle_f32 vcc, v{t}, s{sT}") if False else None
    I(f"v_mov_b32 v{t+4}, s{sT}")
    I(f"v_cmp_nle_f32 s[{MSK}:{MSK+1}], v{t}, v{t+4}")
    I(f"v_mov_b32 v{t+4}, 0x35800000")
    I(f"v_cmp_nge_f32 s[{MSK+2}:{MSK+3}], v{t}, v{t+4}")
    I(f"v_cmp_neq_f32 s[{MSK+4}:{MSK+5}], 0, v{t+2}")
    I(f"s_or_b64 s[{MSK}:{MSK+1}], s[{MSK}:{MSK+1}], s[{MSK+2}:{MSK+3}]")
    I(f"s_or_b64 s[{MSK}:{MSK+1}], s[{MSK}:{MSK+1}], s[{MSK+4}:{MSK+5}]")
    I(f"s_cmp_lg_u64 s[{MSK}:{MSK+1}], 0")
    I(f"s_cselect_b32 s{sT}, {flagbit}, 0")
    I(f"s_or_b32 s{sFlag}, s{sFlag}, s{sT}")

def slow_path(k, name, O, Q, sQ, sQblk_expr, store_flags, force=False):
    I = k.I
    m, l, mn, al, t = vT, vT+1, vT+2, vT+3, vT+4
    sQblk_expr()
    I(f"s_lshl_b32 s{sDoff}, s{sH}, 20")
    I(f"v_mov_b32 v{m}, 0xff7fffff")
    I(f"v_mov_b32 v{l}, 0")
    for r in range(64): I(f"v_accvgpr_write_b32 a{O+r}, 0")
    I(f"v_and_b32 v{vTH0}, 31, v{LANE}")
    I(f"v_lshrrev_b32 v{t}, 5, v{LANE}")
    I(f"v_lshlrev_b32 v{t}, 2, v{t}")
    I(f"v_sub_u32 v{vTH0}, v{vTH0}, v{t}")
    I(f"s_lshl_b32 s{sT}, s{sCnt}, 5")
    I(f"v_add_u32 v{vTH0}, s{sT}, v{vTH0}")
    I(f"s_add_u32 s{sCnt}, s{sCnt}, 1")
    k.L(name)
    for c in range(8):
        I(f"s_add_u32 s{sT}, s{sDoff}, {c*1024}")
        I(f"buffer_load_dwordx4 a[{F0+4*c}:{F0+4*c+3}], v{vL16}, s[{SKV}:{SKV+3}], s{sT} offen")
    for j in range(8):
        ks, db = j >> 2, j & 3
        I(f"s_add_u32 s{sT}, s{sDoff}, {8192 + (db*2+ks)*1024}")
        I(f"buffer_load_dwordx4 a[{F1+4*j}:{F1+4*j+3}], v{vL16}, s[{SKV}:{SKV+3}], s{sT} offen")
    I("s_waitcnt vmcnt(8)")
    for c in range(8):
        C = "0" if c == 0 else f"v[{S0}:{S0+15}]"
        I(f"v_mfma_f32_32x32x16_bf16 v[{S0}:{S0+15}], a[{F0+4*c}:{F0+4*c+3}], a[{Q+4*c}:{Q+4*c+3}], {C}")
    for f in mask_group(S0, vTH0): I(f[0])
    I(f"v_max3_f32 v{mn}, v{S0}, v{S0+1}, v{m}")
    for r in range(2, 16, 2): I(f"v_max3_f32 v{mn}, v{S0+r}, v{S0+r+1}, v{mn}")
    I(f"v_mov_b32 v{t}, v{mn}")
    I(f"v_permlane32_swap_b32 v{mn}, v{t}")
    I(f"v_max_f32 v{mn}, v{mn}, v{t}")
    I(f"v_sub_f32 v{al}, v{m}, v{mn}")
    I(f"v_exp_f32 v{al}, v{al}")
    I(f"v_mov_b32 v{m}, v{mn}")
    I(f"v_mul_f32 v{l}, v{l}, v{al}")
    for r in range(16):
        I(f"v_sub_f32 v{S0+r}, v{S0+r}, v{mn}")
        I(f"v_exp_f32 v{S0+r}, v{S0+r}")
    for r in range(16): I(f"v_add_f32 v{l}, v{l}, v{S0+r}")
    for j in range(8): I(f"v_cvt_pk_bf16_f32 v{P0+j}, v{S0+2*j}, v{S0+2*j+1}")
    for r in range(64):
        I(f"v_accvgpr_read_b32 v{t}, a{O+r}")
        I(f"v_mul_f32 v{t}, v{t}, v{al}")
        I(f"v_accvgpr_write_b32 a{O+r}, v{t}")
    I("s_waitcnt vmcnt(0)")
    for mm in pv(O, F1, P0): I(mm)
    I(f"s_add_u32 s{sDoff}, s{sDoff}, 16384")
    I(f"v_subrev_u32 v{vTH0}, 32, v{vTH0}")
    I(f"s_sub_u32 s{sCnt}, s{sCnt}, 1")
    I(f"s_cmp_lg_u32 s{sCnt}, 0")
    I("s_nop 15")
    I(f"s_cbranch_scc1 {name}")
    I(f"v_mov_b32 v{LA0}, v{l}")
    I(f"v_mov_b32 v{LA1}, 0")
    epilogue(k, O, (LA0, LA1), sQ, 0, store_flags)

def gen_k2(diag=False, store_flags="sc1", force_slow=0):
    k = Kern("k2_kernel")
    I = k.I
    I("s_cmp_ge_u32 s2, 256")
    I("s_cbranch_scc1 Lk2_end")
    stamp_begin(k, diag)
    I(f"s_load_dwordx2 s[4:5], s[0:1], {KA['wq']}")
    I(f"s_load_dwordx2 s[14:15], s[0:1], {KA['ws']}")
    I("v_lshrrev_b32 v1, 6, v0")
    I(f"v_and_b32 v{LANE}, 63, v0")
    I(f"v_readfirstlane_b32 s{sW}, v1")
    I(f"s_and_b32 s{sT}, s2, 7")
    I(f"s_lshr_b32 s{sT2}, s2, 3")
    I(f"s_and_b32 s{sH}, s{sT2}, 3")
    I(f"s_lshl_b32 s{sT}, s{sT}, 2")
    I(f"s_add_u32 s{sH}, s{sH}, s{sT}")
    I(f"s_lshr_b32 s{sI}, s2, 5")
    I("s_waitcnt lgkmcnt(0)")
    srd(k, SXN, 14, 15, XN_SIZE, XN_OFF)
    srd(k, SWQ, 4, 5, 640*4096*2)
    srd(k, SKV, 14, 15, KV_SIZE, KV_OFF)
    srd(k, SCTX, 14, 15, CTX_SIZE, CTX_OFF)
    t0, t1 = vT, vT + 1
    I(f"v_lshlrev_b32 v{vL16}, 4, v{LANE}")
    I(f"v_lshrrev_b32 v{t0}, 4, v{LANE}")
    I(f"v_lshlrev_b32 v{vWQ}, 13, v{t0}")
    I(f"v_lshlrev_b32 v{t0}, 2, v{t0}")
    I(f"v_and_b32 v{t1}, 15, v{LANE}")
    I(f"v_xor_b32 v{t0}, v{t0}, v{t1}")
    I(f"v_lshl_add_u32 v{vWQ}, v{t0}, 4, v{vWQ}")
    I(f"v_lshrrev_b32 v{t1}, 5, v{LANE}")
    I(f"v_bfe_u32 v{t0}, v{LANE}, 2, 2")
    I(f"v_lshl_add_u32 v{t1}, v{t1}, 3, v{t0}")
    I(f"v_lshlrev_b32 v{t1}, 8, v{t1}")
    I(f"v_bfe_u32 v{t0+2}, v{LANE}, 4, 1")
    I(f"v_lshl_add_u32 v{t1}, v{t0+2}, 5, v{t1}")
    I(f"v_and_b32 v{t0+2}, 3, v{LANE}")
    I(f"v_lshl_add_u32 v{t1}, v{t0+2}, 3, v{t1}")
    for db in range(4):
        I(f"v_xor_b32 v{t0+2}, {db}, v{t0}")
        I(f"v_lshl_add_u32 v{vQ+db}, v{t0+2}, 6, v{t1}")
    I(f"v_mov_b32 v{vNINF}, 0xff800000")
    I(f"s_lshl_b32 s{sWL}, s{sW}, 12")
    sQblkA, sQblkB = 56, 57
    I(f"s_lshl_b32 s{sT}, s{sI}, 2")
    I(f"s_add_u32 s{sQblkA}, s{sT}, s{sW}")
    I(f"s_sub_u32 s{sQblkB}, 60, s{sT}")
    I(f"s_add_u32 s{sQblkB}, s{sQblkB}, s{sW}")
    sXA, sXB, sWq = 58, 59, 60+32
    sXA, sXB, sWq = 58, 59, 88
    I(f"s_mul_i32 s{sXA}, s{sQblkA}, 40960")
    I(f"s_mul_i32 s{sXB}, s{sQblkB}, 40960")
    for sq, sb in ((sQA, sQblkA), (sQB, sQblkB)):
        I(f"s_lshl_b32 s{sq}, s{sb}, 5")
        I(f"s_add_u32 s{sq}, s{sq}, s{sH}")
        I(f"s_lshl_b32 s{sq}, s{sq}, 13")
    I(f"s_lshl_b32 s{sWq}, s{sW}, 17")
    I(f"s_lshl_b32 s{sT}, s{sH}, 8")
    I(f"s_add_u32 s{sWq}, s{sWq}, s{sT}")
    I(f"s_lshl_b32 s{sDoff}, s{sH}, 20")
    I(f"s_add_u32 s{sDoff}, s{sDoff}, s{sWL}")
    I(f"s_lshl_b32 s{sT}, s{sI}, 16")
    I(f"s_sub_u32 s{sDlim}, {64*16384}, s{sT}")
    I(f"s_add_u32 s{sDlim}, s{sDlim}, s{sDoff}")
    I(f"s_mov_b32 s{sOOB}, {KV_SIZE}")
    I(f"s_mov_b32 s{sDslot}, {(10 % 8)*16384}")
    I(f"s_mov_b32 s{sFlag}, {force_slow}")
    XR = 0
    QACC = 128
    def xload(s):
        for T, sx in ((0, sXA), (1, sXB)):
            a = XR + ((2*s + T) % 32)*4
            I(f"s_add_u32 s{sT}, s{sx}, {s*1024}")
            I(f"buffer_load_dwordx4 a[{a}:{a+3}], v{vL16}, s[{SXN}:{SXN+3}], s{sT} offen", tag=f"x{s}")
    def wdma_one(g, u):
        I(f"s_add_u32 m0, s{sWL}, {(g % 8)*16384 + u*1024}")
        I(f"s_add_u32 s{sT}, s{sWq}, {(64*g + 4*u)*8192}")
        I(f"buffer_load_dwordx4 v{vWQ}, s[{SWQ}:{SWQ+3}], s{sT} offen lds", tag=f"w{g}")
    def kvdma_closures(tag):
        cl = [lambda: (dma_setup(k), I(dma_ld(0), tag=tag))]
        for u in range(1, 4): cl.append(lambda u=u: I(dma_ld(u), tag=tag))
        return cl
    def wread(n):
        g, s = n >> 2, n & 3
        F = F0 if n % 2 == 0 else F1
        F = F0 + (n % 2)*16
        off = (g % 8)*16384 + s*4096
        hi = off >= 65536
        for db in range(4):
            vb = vQ + db
            o = off
            if hi: vb = vT + 8 + db; o = off - 65536
            I(f"ds_read_b64_tr_b16 a[{F+4*db}:{F+4*db+1}], v{vb} offset:{o}", tag=f"r{n}")
            I(f"ds_read_b64_tr_b16 a[{F+4*db+2}:{F+4*db+3}], v{vb} offset:{o+1024}", tag=f"r{n}")
    for db in range(4): I(f"v_add_u32 v{vT+8+db}, 0x10000, v{vQ+db}")
    mark(k, diag, 0)
    for u in range(4): wdma_one(0, u)
    for s in range(0, 4): xload(s)
    for u in range(4): wdma_one(1, u)
    for s in range(4, 8): xload(s)
    for g in (2, 3):
        for u in range(4): wdma_one(g, u)
    gapq = []
    for s in range(8, 16): gapq.append(lambda s=s: xload(s))
    for g in range(4, 8):
        for u in range(4): gapq.append(lambda g=g, u=u: wdma_one(g, u))
    k.wait_vm("w0", expect=4)
    I("s_barrier")
    mark(k, diag, 1)
    wread(0)
    for n in range(40):
        g, s = n >> 2, n & 3
        if s == 2:
            if g + 1 < 10: k.wait_vm(f"w{g+1}", expect=4)
            I("s_barrier")
            if g >= 1:
                q = g - 1 + 8
                if q < 10:
                    for u in range(4): gapq.append(lambda q=q, u=u: wdma_one(q, u))
                else:
                    gapq += kvdma_closures(f"kv{q-10}")
        if n + 1 < 40: wread(n + 1)
        k.wait_vm(f"x{n}", expect=2)
        k.wait_lg(f"r{n}")
        F = F0 + (n % 2)*16
        for db in range(4):
            for T in range(2):
                d = QACC + (T*4 + db)*16
                a = XR + ((2*n + T) % 32)*4
                c = "0" if n == 0 else f"v[{d}:{d+15}]"
                I(f"v_mfma_f32_32x32x16_bf16 v[{d}:{d+15}], a[{F+4*db}:{F+4*db+3}], a[{a}:{a+3}], {c}")
                if gapq: gapq.pop(0)()
        if n + 16 < 40: gapq.append(lambda s=n+16: xload(s))
    while gapq: gapq.pop(0)()
    mark(k, diag, 2)
    I("s_barrier")
    for f in kvdma_closures("kv7"): f()
    I(f"s_mov_b32 s{sT}, {f32bits(QSCALE)}")
    for T, Q in ((0, QA), (1, QB)):
        for c in range(8):
            src = QACC + (T*4 + (c >> 1))*16 + 8*(c & 1)
            for j in range(8): I(f"v_mul_f32 v{src+j}, s{sT}, v{src+j}")
            for j in range(4): I(f"v_cvt_pk_bf16_f32 v{vT+j}, v{src+2*j}, v{src+2*j+1}")
            for j in range(4): I(f"v_accvgpr_write_b32 a{Q+4*c+j}, v{vT+j}")
    for r in range(128): I(f"v_accvgpr_write_b32 a{r}, 0")
    for r in (LA0, LA1, LB0, LB1, LC0, LC1): I(f"v_mov_b32 v{r}, 0")
    I(f"v_and_b32 v{t0}, 31, v{LANE}")
    I(f"v_lshrrev_b32 v{t1}, 5, v{LANE}")
    I(f"v_lshlrev_b32 v{t1}, 2, v{t1}")
    I(f"v_sub_u32 v{t0}, v{t0}, v{t1}")
    I(f"s_lshl_b32 s{sT}, s{sQblkA}, 5")
    I(f"v_add_u32 v{vTH0}, s{sT}, v{t0}")
    I(f"s_lshl_b32 s{sT}, s{sQblkB}, 5")
    I(f"v_add_u32 v{vTH1}, s{sT}, v{t0}")
    mark(k, diag, 3)
    k.wait_vm("kv2", expect=4)
    I("s_barrier")
    I(f"s_mov_b32 s{sB0}, {(10 % 8)*16384}")
    set_base(k, vA0, 0)
    set_base(k, vA1, 1)
    for c in range(8): I(rdK(F0, c, vA0))
    I("s_waitcnt lgkmcnt(0)")
    for S, Q in ((S0, QA), (S1, QB)):
        for c in range(8):
            C = "0" if c == 0 else f"v[{S}:{S+15}]"
            I(f"v_mfma_f32_32x32x16_bf16 v[{S}:{S+15}], a[{F0+4*c}:{F0+4*c+3}], a[{Q+4*c}:{Q+4*c+3}], {C}")
    for c in range(8): I(rdK(F0, c, vA1))
    for S, TH, NM in ((S0, vTH0, NMA), (S1, vTH1, NMB)):
        for f in mask_group(S, TH): I(f[0])
        I(f"v_max3_f32 v{t0}, v{S}, v{S+1}, v{S+2}")
        for r in range(3, 15, 2): I(f"v_max3_f32 v{t0}, v{S+r}, v{S+r+1}, v{t0}")
        I(f"v_max_f32 v{t0}, v{t0}, v{S+15}")
        I(f"v_mov_b32 v{t1}, v{t0}")
        I(f"v_permlane32_swap_b32 v{t0}, v{t1}")
        I(f"v_max_f32 v{t0}, v{t0}, v{t1}")
        for r in range(16): I(f"v_sub_f32 v{S+r}, v{S+r}, v{t0}")
        for r in range(16): I(f"v_sub_f32 v{NM+r}, 0, v{t0}")
    for f in exp_group(S0, list(range(16)), (LA0, LA1)): I(f[0])
    for f in cvt_group(S0, P0, 0, 8): I(f[0])
    for f in exp_group(S1, list(range(8)), (LB0, LB1)): I(f[0])
    I(f"v_subrev_u32 v{vTH0}, 32, v{vTH0}")
    mark(k, diag, 4)
    loops = []
    I(f"s_lshl_b32 s{sCnt}, s{sI}, 2")
    I(f"s_sub_u32 s{sCnt}, s{sCnt}, 1")
    I(f"s_max_i32 s{sCnt}, s{sCnt}, 0")
    loops.append(loop(k, "Lk2_dd", "DD", False))
    mark(k, diag, 5)
    I(f"s_cmp_eq_u32 s{sI}, 0")
    I(f"s_cselect_b32 s{sCnt}, 3, 4")
    loops.append(loop(k, "Lk2_ddm", "DD", True))
    mark(k, diag, 6)
    I(f"s_lshl_b32 s{sT}, s{sI}, 7")
    I(f"s_add_u32 s{sT}, s{sT}, 128")
    I(f"v_subrev_u32 v{vTH0}, s{sT}, v{vTH1}")
    I(f"v_subrev_u32 v{vTH1}, 32, v{vTH0}")
    i0 = len(k.items)
    body(k, "DS", True)
    ds_rng = (i0, len(k.items))
    mark(k, diag, 7)
    I(f"s_lshl_b32 s{sT}, s{sI}, 2")
    I(f"s_sub_u32 s{sCnt}, 27, s{sT}")
    I(f"s_max_i32 s{sCnt}, s{sCnt}, 0")
    loops.append(loop(k, "Lk2_ss", "SS", False))
    mark(k, diag, 8)
    I(f"s_cmp_eq_u32 s{sI}, 7")
    I(f"s_cselect_b32 s{sCnt}, 1, 2")
    loops.append(loop(k, "Lk2_ssm", "SS", True))
    mark(k, diag, 9)
    body(k, "SE", False)
    mark(k, diag, 10)
    epilogue(k, OA, (LA0, LA1), sQA, 1, store_flags)
    epilogue(k, OB, (LB0, LB1, LC0, LC1), sQB, 2, store_flags)
    mark(k, diag, 11)
    I(f"s_bitcmp1_b32 s{sFlag}, 0")
    I("s_cbranch_scc0 Lk2_noslowA")
    I("s_waitcnt vmcnt(0)")
    slow_path(k, "Lk2_slowA", OA, QA, sQA, lambda: I(f"s_mov_b32 s{sCnt}, s{sQblkA}"), store_flags)
    k.L("Lk2_noslowA")
    I(f"s_bitcmp1_b32 s{sFlag}, 1")
    I("s_cbranch_scc0 Lk2_noslowB")
    I("s_waitcnt vmcnt(0)")
    slow_path(k, "Lk2_slowB", OB, QB, sQB, lambda: I(f"s_mov_b32 s{sCnt}, s{sQblkB}"), store_flags)
    k.L("Lk2_noslowB")
    dump_marks(k, diag, 1, 14, 15, 24)
    stamp_end(k, diag, 1, 14, 15, vtmp=24)
    k.L("Lk2_end")
    I("s_endpgm")
    k.fix_hazards()
    trace = []
    items = k.items
    lab = {it[:-1]: idx for idx, it in enumerate(items) if isinstance(it, str) and it.endswith(":")}
    idx = 0
    names = ["Lk2_dd", "Lk2_ddm", "Lk2_ss", "Lk2_ssm"]
    segs = []
    pos = 0
    for nm in names:
        a, b = lab[nm], lab[nm + "_end"]
        segs.append(items[pos:a]); segs.append(items[a:b]); segs.append(items[a:b]); pos = b
    segs.append(items[pos:lab["Lk2_noslowA"]])
    for s_ in segs: trace += s_
    pr = check_seq(trace, "k2") + check_waits(trace, "k2")
    trace2 = items[:lab["Lk2_dd"]] + items[lab["Lk2_dd_end"]:lab["Lk2_ss"]] + items[lab["Lk2_ss_end"]:lab["Lk2_noslowA"]]
    pr += check_seq(trace2, "k2z") + check_waits(trace2, "k2z")
    for p_ in pr[:20]: print(p_)
    print("k2 problems:", len(pr))
    return k, 256, 256, 131072
```

```python
from common import *

def gen_k3(diag=False, store_flags="", D=6, dbg=""):
    k = Kern("k3_kernel")
    I = k.I
    I("s_cmp_ge_u32 s2, 256")
    I("s_cbranch_scc1 Lk3_end")
    stamp_begin(k, diag)
    I(f"s_load_dwordx2 s[4:5], s[0:1], {KA['x']}")
    I(f"s_load_dwordx2 s[6:7], s[0:1], {KA['wo']}")
    I(f"s_load_dwordx2 s[8:9], s[0:1], {KA['wr']}")
    I(f"s_load_dwordx2 s[14:15], s[0:1], {KA['ws']}")
    LANE = 2
    I("v_lshrrev_b32 v1, 6, v0")
    I(f"v_and_b32 v{LANE}, 63, v0")
    sW, sRT, sCT, sT, sT2, sCb, sWb, sL = 40, 41, 42, 43, 44, 45, 46, 47
    I(f"v_readfirstlane_b32 s{sW}, v1")
    I(f"s_and_b32 s{sT}, s2, 7")
    I(f"s_lshr_b32 s{sT2}, s2, 3")
    I(f"s_lshr_b32 s{sRT}, s{sT}, 1")
    I(f"s_lshl_b32 s{sRT}, s{sRT}, 3")
    I(f"s_lshr_b32 s{sCT}, s{sT2}, 2")
    I(f"s_add_u32 s{sRT}, s{sRT}, s{sCT}")
    I(f"s_and_b32 s{sCT}, s{sT}, 1")
    I(f"s_lshl_b32 s{sCT}, s{sCT}, 2")
    I(f"s_and_b32 s{sT2}, s{sT2}, 3")
    I(f"s_add_u32 s{sCT}, s{sCT}, s{sT2}")
    I("s_waitcnt lgkmcnt(0)")
    SX, SWO, SWR, SCTX, SH, SACC = 16, 20, 24, 28, 32, 36
    srd(k, SX, 4, 5, 2048*640*2)
    srd(k, SWO, 6, 7, 4096*640*2)
    srd(k, SWR, 8, 9, 640*2)
    srd(k, SCTX, 14, 15, CTX_SIZE, CTX_OFF)
    srd(k, SH, 14, 15, H_SIZE, H_OFF)
    srd(k, SACC, 14, 15, ACC_SIZE, ACC_OFF)
    vC, vWD, vTR, t0, t1, t2 = 3, 4, 9, 10, 11, 12
    I(f"v_lshrrev_b32 v{t0}, 5, v{LANE}")
    I(f"v_lshlrev_b32 v{vC}, 10, v{t0}")
    I(f"v_bfe_u32 v{t0}, v{LANE}, 4, 1")
    I(f"v_lshl_add_u32 v{vC}, v{t0}, 9, v{vC}")
    I(f"v_and_b32 v{t0}, 15, v{LANE}")
    I(f"v_lshl_add_u32 v{vC}, v{t0}, 4, v{vC}")
    I(f"s_mov_b32 s{sT}, 6554")
    for u in range(5):
        I(f"v_add_u32 v{t0}, {64*u}, v{LANE}")
        I(f"v_mul_lo_u32 v{t1}, v{t0}, s{sT}")
        I(f"v_lshrrev_b32 v{t1}, 16, v{t1}")
        I(f"v_mul_u32_u24 v{t2}, 10, v{t1}")
        I(f"v_sub_u32 v{t2}, v{t0}, v{t2}")
        I(f"v_mul_u32_u24 v{t1}, 1280, v{t1}")
        I(f"v_lshl_add_u32 v{vWD+u}, v{t2}, 4, v{t1}")
    I(f"v_lshrrev_b32 v{t0}, 5, v{LANE}")
    I(f"v_lshlrev_b32 v{t0}, 4, v{t0}")
    I(f"v_bfe_u32 v{t1}, v{LANE}, 4, 1")
    I(f"v_lshl_add_u32 v{t0}, v{t1}, 2, v{t0}")
    I(f"v_bfe_u32 v{t1}, v{LANE}, 2, 2")
    I(f"v_add_u32 v{t0}, v{t0}, v{t1}")
    I(f"v_mul_u32_u24 v{vTR}, 160, v{t0}")
    I(f"v_and_b32 v{t1}, 3, v{LANE}")
    I(f"v_lshl_add_u32 v{vTR}, v{t1}, 3, v{vTR}")
    I(f"s_mul_i32 s{sL}, s{sW}, 40960")
    I(f"v_add_u32 v{vTR}, s{sL}, v{vTR}")
    I(f"s_lshl_b32 s{sCb}, s{sRT}, 6")
    I(f"s_lshl_b32 s{sT}, s{sW}, 3")
    I(f"s_add_u32 s{sCb}, s{sCb}, s{sT}")
    I(f"s_lshl_b32 s{sCb}, s{sCb}, 13")
    I(f"s_mul_i32 s{sWb}, s{sW}, {1024*1280}")
    I(f"s_mul_i32 s{sT}, s{sCT}, 160")
    I(f"s_add_u32 s{sWb}, s{sWb}, s{sT}")
    ACC, WF = 32, 112
    vLin = 17
    I(f"v_lshlrev_b32 v{vLin}, 4, v{LANE}")
    NS = 8
    def issue(t):
        cl = []
        for u in range(5):
            def f(u=u):
                I(f"s_add_u32 m0, s{sL}, {(t % NS)*5120 + u*1024}")
                I(f"s_add_u32 s{sT}, s{sWb}, {t*32*1280}")
                if "nowdma" in dbg: I("s_nop 0"); k.vm.append(f"s{t}")
                elif "wlin" in dbg: I(f"buffer_load_dwordx4 v{vLin}, s[{SWO}:{SWO+3}], s{sT} offen offset:{0} lds", tag=f"s{t}")
                else: I(f"buffer_load_dwordx4 v{vWD+u}, s[{SWO}:{SWO+3}], s{sT} offen lds", tag=f"s{t}")
            cl.append(f)
        for rs in range(4):
            def f(rs=rs):
                a = (t % NS)*16 + rs*4
                so = (t >> 2)*8192 + (t & 3)*2048 + (rs >> 1)*262144
                I(f"s_add_u32 s{sT2}, s{sCb}, {so}")
                if "noctx" in dbg: I("s_nop 0"); k.vm.append(f"s{t}")
                elif "clin" in dbg: I(f"buffer_load_dwordx4 a[{a}:{a+3}], v{vLin}, s[{SCTX}:{SCTX+3}], s{sT2} offen offset:{(rs & 1)*1024}", tag=f"s{t}")
                else: I(f"buffer_load_dwordx4 a[{a}:{a+3}], v{vC}, s[{SCTX}:{SCTX+3}], s{sT2} offen offset:{(rs & 1)*256}", tag=f"s{t}")
            cl.append(f)
        return cl
    def wread(t):
        r = WF + (t & 1)*20
        for nt in range(5):
            off = (t % NS)*5120 + nt*32
            I(f"ds_read_b64_tr_b16 v[{r+4*nt}:{r+4*nt+1}], v{vTR} offset:{off}", tag=f"r{t}")
            I(f"ds_read_b64_tr_b16 v[{r+4*nt+2}:{r+4*nt+3}], v{vTR} offset:{off + 8*160}", tag=f"r{t}")
    vXo, XV, WRV = 13, 152, 162
    I(f"v_and_b32 v{t0}, 15, v{LANE}")
    I(f"s_lshl_b32 s{sT}, s{sRT}, 6")
    I(f"s_lshl_b32 s{sT2}, s{sW}, 4")
    I(f"s_add_u32 s{sT}, s{sT}, s{sT2}")
    I(f"v_add_u32 v{t0}, s{sT}, v{t0}")
    vRow = 14
    I(f"v_mov_b32 v{vRow}, v{t0}")
    I(f"v_mul_u32_u24 v{vXo}, 1280, v{t0}")
    I(f"v_lshrrev_b32 v{t1}, 4, v{LANE}")
    I(f"v_lshlrev_b32 v{t1}, 3, v{t1}")
    I(f"s_mul_i32 s{sT}, s{sCT}, 160")
    I(f"v_add_u32 v{t1}, s{sT}, v{t1}")
    I(f"v_add_u32 v{vXo}, v{vXo}, v{t1}")
    vWo = 15
    I(f"v_mov_b32 v{vWo}, v{t1}")
    for t in range(D):
        for f in issue(t): f()
    for nt in range(5):
        I(f"buffer_load_dwordx2 v[{XV+2*nt}:{XV+2*nt+1}], v{vXo}, s[{SX}:{SX+3}], 0 offen offset:{32*nt}", tag="xw")
        I(f"buffer_load_dwordx2 v[{WRV+2*nt}:{WRV+2*nt+1}], v{vWo}, s[{SWR}:{SWR+3}], 0 offen offset:{32*nt}", tag="xw")
    mark(k, diag, 0)
    k.wait_vm("s0", expect=9)
    wread(0)
    for t in range(32):
        q = issue(t + D) if t + D < 32 else []
        if t + 1 < 32:
            k.wait_vm(f"s{t+1}", expect=9)
            wread(t + 1)
        k.wait_lg(f"r{t}")
        r = WF + (t & 1)*20
        n = 0
        for rs in range(4):
            for nt in range(5):
                d = ACC + (rs*5 + nt)*4
                a = (t % NS)*16 + rs*4
                c = "0" if t == 0 else f"v[{d}:{d+3}]"
                I(f"v_mfma_f32_16x16x32_bf16 v[{d}:{d+3}], v[{r+4*nt}:{r+4*nt+3}], a[{a}:{a+3}], {c}")
                n += 1
                if q and n % 2 == 0: q.pop(0)()
        assert not q
        if t in (7, 15, 23): mark(k, diag, 1 + t//8)
    mark(k, diag, 4)
    I("s_waitcnt vmcnt(0) lgkmcnt(0)")
    I("s_barrier")
    vL = 16
    I(f"v_lshlrev_b32 v{vL}, 4, v{LANE}")
    I(f"s_mul_i32 s{sT}, s{sW}, 20480")
    I(f"v_add_u32 v{t0}, s{sT}, v{vL}")
    for rs in range(4):
        for nt in range(5):
            d = ACC + (rs*5 + nt)*4
            I(f"ds_write_b128 v{t0}, v[{d}:{d+3}] offset:{(rs*5+nt)*1024}")
    I("s_waitcnt lgkmcnt(0)")
    I("s_barrier")
    I(f"s_mul_i32 s{sT}, s{sW}, 5120")
    I(f"v_add_u32 v{t0}, s{sT}, v{vL}")
    I(f"v_add_u32 v{t1}, 40960, v{t0}")
    R = 32
    for src in range(4):
        for nt in range(5):
            vb = t0 if src < 2 else t1
            I(f"ds_read_b128 v[{R+(src*5+nt)*4}:{R+(src*5+nt)*4+3}], v{vb} offset:{(src % 2)*20480 + nt*1024}")
    I("s_waitcnt lgkmcnt(0)")
    for i in range(20):
        I(f"v_add_f32 v{R+i}, v{R+i}, v{R+20+i}")
        I(f"v_add_f32 v{R+40+i}, v{R+40+i}, v{R+60+i}")
    for i in range(20): I(f"v_add_f32 v{R+i}, v{R+i}, v{R+40+i}")
    k.wait_vm("xw")
    HP = 112
    HF = 52
    WRF = 72
    for i in range(10):
        I(f"v_cvt_pk_bf16_f32 v{HP+i}, v{R+2*i}, v{R+2*i+1}")
        I(f"v_lshlrev_b32 v{R+2*i}, 16, v{HP+i}")
        I(f"v_and_b32 v{R+2*i+1}, 0xffff0000, v{HP+i}")
        I(f"v_lshlrev_b32 v{HF+2*i}, 16, v{XV+i}")
        I(f"v_and_b32 v{HF+2*i+1}, 0xffff0000, v{XV+i}")
        I(f"v_add_f32 v{R+2*i}, v{R+2*i}, v{HF+2*i}")
        I(f"v_add_f32 v{R+2*i+1}, v{R+2*i+1}, v{HF+2*i+1}")
        I(f"v_cvt_pk_bf16_f32 v{HP+i}, v{R+2*i}, v{R+2*i+1}")
        I(f"v_lshlrev_b32 v{HF+2*i}, 16, v{HP+i}")
        I(f"v_and_b32 v{HF+2*i+1}, 0xffff0000, v{HP+i}")
        I(f"v_lshlrev_b32 v{WRF+2*i}, 16, v{WRV+i}")
        I(f"v_and_b32 v{WRF+2*i+1}, 0xffff0000, v{WRV+i}")
    for nt in range(5):
        I(f"buffer_store_dwordx2 v[{HP+2*nt}:{HP+2*nt+1}], v{vXo}, s[{SH}:{SH+3}], 0 offen offset:{32*nt} {store_flags}")
    A1, A2, A3 = 96, 97, 98
    I(f"v_mov_b32 v{A1}, v{HF}")
    I(f"v_mul_f32 v{A2}, v{HF}, v{HF}")
    I(f"v_mul_f32 v{A3}, v{HF}, v{WRF}")
    for i in range(1, 20):
        I(f"v_add_f32 v{A1}, v{A1}, v{HF+i}")
        I(f"v_fmac_f32 v{A2}, v{HF+i}, v{HF+i}")
        I(f"v_fmac_f32 v{A3}, v{HF+i}, v{WRF+i}")
    for a in (A1, A2, A3):
        I(f"v_mov_b32 v{a+4}, v{a}")
        I(f"v_permlane16_swap_b32 v{a}, v{a+4}")
        I(f"v_add_f32 v{a}, v{a}, v{a+4}")
        I(f"v_mov_b32 v{a+4}, v{a}")
        I(f"v_permlane32_swap_b32 v{a}, v{a+4}")
        I(f"v_add_f32 v{a}, v{a}, v{a+4}")
    I(f"v_lshlrev_b32 v{t0}, 2, v{vRow}")
    I(f"s_mov_b32 exec_lo, 0xffff")
    I(f"s_mov_b32 exec_hi, 0")
    for i, a in enumerate((A1, A2, A3)):
        I(f"s_mov_b32 s{sT}, {i*8192}")
        I(f"buffer_atomic_add_f32 v{a}, v{t0}, s[{SACC}:{SACC+3}], s{sT} offen")
    I("s_mov_b64 exec, -1")
    dump_marks(k, diag, 2, 14, 15, 20)
    stamp_end(k, diag, 2, 14, 15, vtmp=20)
    k.L("Lk3_end")
    I("s_endpgm")
    k.fix_hazards()
    pr = check_waits(k.items, "k3")
    for p_ in pr[:10]: print(p_)
    return k, 176, 128, 163840
```

```python
from common import *

NLN = 128
NFF = 108

def wave_allreduce(k, op, v, tmp):
    I = k.I
    for r in (8, 4, 2, 1):
        I(f"{op} v{v}, v{v}, v{v} row_ror:{r}")
    I(f"v_mov_b32 v{tmp}, v{v}")
    I(f"v_permlane16_swap_b32 v{v}, v{tmp}")
    I(f"{op} v{v}, v{v}, v{tmp}")
    I(f"v_mov_b32 v{tmp}, v{v}")
    I(f"v_permlane32_swap_b32 v{v}, v{tmp}")
    I(f"{op} v{v}, v{v}, v{tmp}")

def gen_k5(diag=False):
    k = Kern("k5_kernel")
    I = k.I
    I(f"s_cmp_ge_u32 s2, {NLN+NFF}")
    I("s_cbranch_scc1 Lk5_end")
    stamp_begin(k, diag)
    I(f"s_load_dwordx2 s[4:5], s[0:1], {KA['wr']}")
    I(f"s_load_dwordx4 s[8:11], s[0:1], {KA['wg']}")
    I(f"s_load_dwordx4 s[44:47], s[0:1], {KA['wd']}")
    I(f"s_load_dwordx2 s[14:15], s[0:1], {KA['ws']}")
    LANE = 2
    sW, sT, sT2, sEPS, sF = 40, 41, 42, 43, 48
    I("v_lshrrev_b32 v1, 6, v0")
    I(f"v_and_b32 v{LANE}, 63, v0")
    I(f"v_readfirstlane_b32 s{sW}, v1")
    I(f"s_mov_b32 s{sEPS}, {f32bits(1e-5)}")
    I("s_waitcnt lgkmcnt(0)")
    SH, SOUT, SACC, SWR, SWG, SWU, SWD, SYP, SSEL = 16, 20, 24, 28, 32, 36, 52, 56, 60
    srd(k, SH, 14, 15, H_SIZE, H_OFF)
    I(f"s_cmp_ge_u32 s2, {NLN}")
    I("s_cbranch_scc1 Lk5_ffn")
    srd(k, SOUT, 46, 47, 2048*640*2)
    t0, t1, vO = 3, 4, 5
    I(f"v_lshrrev_b32 v{t0}, 4, v{LANE}")
    I(f"s_lshl_b32 s{sT}, s2, 4")
    I(f"s_lshl_b32 s{sT2}, s{sW}, 2")
    I(f"s_add_u32 s{sT}, s{sT}, s{sT2}")
    I(f"v_add_u32 v{t0}, s{sT}, v{t0}")
    I(f"v_mul_u32_u24 v{vO}, 1280, v{t0}")
    I(f"v_and_b32 v{t1}, 15, v{LANE}")
    I(f"v_lshl_add_u32 v{vO}, v{t1}, 4, v{vO}")
    HX, HN = 8, 28
    for u in range(5):
        I(f"buffer_load_dwordx4 v[{HX+4*u}:{HX+4*u+3}], v{vO}, s[{SH}:{SH+3}], 0 offen offset:{256*u}")
    I("s_waitcnt vmcnt(0)")
    ln_rows(k, HX, 5, 64, HN, sEPS)
    for i in range(20):
        I(f"v_lshlrev_b32 v50, 16, v{HX+i}")
        I(f"v_and_b32 v51, 0xffff0000, v{HX+i}")
        I(f"v_lshlrev_b32 v52, 16, v{HN+i}")
        I(f"v_and_b32 v53, 0xffff0000, v{HN+i}")
        I(f"v_add_f32 v50, v50, v52")
        I(f"v_add_f32 v51, v51, v53")
        I(f"v_cvt_pk_bf16_f32 v{HN+i}, v50, v51")
    for u in range(5):
        I(f"buffer_store_dwordx4 v[{HN+4*u}:{HN+4*u+3}], v{vO}, s[{SOUT}:{SOUT+3}], 0 offen offset:{256*u}")
    I("s_branch Lk5_fin")
    k.L("Lk5_ffn")
    I(f"s_sub_u32 s{sF}, s2, {NLN}")
    srd(k, SACC, 14, 15, ACC_SIZE, ACC_OFF)
    srd(k, SWR, 4, 5, 1280)
    srd(k, SWG, 8, 9, 640*1728*2)
    srd(k, SWU, 10, 11, 640*1728*2)
    srd(k, SWD, 44, 45, 1728*640*2)
    srd(k, SYP, 14, 15, YP_SIZE, YP_OFF)
    srd(k, SSEL, 14, 15, SEL_SIZE, SEL_OFF)
    LG, LU, LHN, LKEY, LPART, LA_ = 0, 20480, 40960, 43520, 43584, 44608
    t0, t1, t2, t3 = 3, 4, 5, 6
    vWD = 7
    I(f"v_lshrrev_b32 v{t0}, 1, v{LANE}")
    I(f"v_mul_u32_u24 v{vWD}, 3456, v{t0}")
    I(f"v_and_b32 v{t0}, 1, v{LANE}")
    I(f"v_lshl_add_u32 v{vWD}, v{t0}, 4, v{vWD}")
    I(f"s_mul_i32 s{sT}, s{sW}, {160*3456}")
    I(f"s_lshl_b32 s{sT2}, s{sF}, 5")
    I(f"s_add_u32 s49, s{sT}, s{sT2}")
    I(f"s_mul_i32 s50, s{sW}, {160*32}")
    ST = 64
    I(f"v_lshlrev_b32 v{t0}, 2, v0")
    for e in range(8):
        for j in range(3):
            I(f"s_mov_b32 s{sT}, {j*8192 + e*1024}")
            I(f"buffer_load_dword v{ST+3*e+j}, v{t0}, s[{SACC}:{SACC+3}], s{sT} offen", tag="st")
    WRX = 90
    I(f"v_mul_u32_u24 v{t1}, 20, v{LANE}")
    for j in range(5):
        I(f"buffer_load_dword v{WRX+j}, v{t1}, s[{SWR}:{SWR+3}], 0 offen offset:{4*j}", tag="wr")
    for (S, LB) in ((SWG, LG), (SWU, LU)):
        for u in range(5):
            I(f"s_add_u32 m0, s50, {LB + u*1024}")
            I(f"s_add_u32 s{sT}, s49, {u*32*3456}")
            I(f"buffer_load_dwordx4 v{vWD}, s[{S}:{S+3}], s{sT} offen lds", tag="wgu")
    WDN = 100
    I(f"v_lshlrev_b32 v{t2}, 3, v0")
    I(f"s_mul_i32 s51, s{sF}, {16*1280}")
    I(f"v_cmp_gt_u32 vcc, 160, v0")
    I(f"s_and_saveexec_b64 s[64:65], vcc")
    I("s_cbranch_execz Lk5_nowd")
    for j in range(16):
        I(f"s_add_u32 s{sT}, s51, {j*1280}")
        I(f"buffer_load_dwordx2 v[{WDN+2*j}:{WDN+2*j+1}], v{t2}, s[{SWD}:{SWD+3}], s{sT} offen")
    k.L("Lk5_nowd")
    I("s_mov_b64 exec, s[64:65]")
    I("s_waitcnt vmcnt(10)")
    WS = 95
    I(f"v_mov_b32 v{WS}, 0")
    for j in range(5):
        I(f"v_lshlrev_b32 v{t1}, 16, v{WRX+j}")
        I(f"v_and_b32 v{t3}, 0xffff0000, v{WRX+j}")
        I(f"v_add_f32 v{WS}, v{WS}, v{t1}")
        I(f"v_add_f32 v{WS}, v{WS}, v{t3}")
    wave_allreduce(k, "v_add_f32", WS, t1)
    K1, K2, MEAN, VAR, RR = 96, 97, 98, 99, 8
    I(f"v_mov_b32 v{K1}, 0")
    I(f"v_mov_b32 v{K2}, 0")
    for e in range(8):
        s1, s2, s3 = ST+3*e, ST+3*e+1, ST+3*e+2
        I(f"v_mul_f32 v{MEAN}, {f32bits(1.0/640)}, v{s1}")
        I(f"v_mul_f32 v{VAR}, {f32bits(1.0/640)}, v{s2}")
        I(f"v_fma_f32 v{VAR}, -v{MEAN}, v{MEAN}, v{VAR}")
        I(f"v_max_f32 v{VAR}, 0, v{VAR}")
        bf16_round(k, MEAN); bf16_round(k, VAR)
        I(f"v_add_f32 v{VAR}, s{sEPS}, v{VAR}")
        bf16_round(k, VAR)
        I(f"v_sqrt_f32 v{VAR}, v{VAR}")
        bf16_round(k, VAR)
        I(f"v_rcp_f32 v{VAR}, v{VAR}")
        I(f"v_fma_f32 v{RR}, -v{MEAN}, v{WS}, v{s3}")
        I(f"v_mul_f32 v{RR}, v{RR}, v{VAR}")
        I(f"v_ashrrev_i32 v{t1}, 31, v{RR}")
        I(f"v_or_b32 v{t1}, 0x80000000, v{t1}")
        I(f"v_xor_b32 v{RR}, v{RR}, v{t1}")
        I(f"v_and_b32 v{RR}, 0xfffff800, v{RR}")
        I(f"v_sub_u32 v{t1}, {2047 - 256*e}, v0")
        I(f"v_or_b32 v{RR}, v{RR}, v{t1}")
        I(f"v_med3_u32 v{K2}, v{K1}, v{K2}, v{RR}")
        I(f"v_max_u32 v{K1}, v{K1}, v{RR}")
    T1, T2 = 10, 11
    I(f"v_mov_b32 v{T1}, v{K1}")
    wave_allreduce(k, "v_max_u32", T1, t1)
    I(f"v_cmp_eq_u32 vcc, v{T1}, v{K1}")
    I(f"v_cndmask_b32 v{T2}, v{K1}, v{K2}, vcc")
    wave_allreduce(k, "v_max_u32", T2, t1)
    I(f"s_lshl_b32 s{sT}, s{sW}, 3")
    I(f"v_mov_b32 v{t1}, s{sT}")
    I(f"ds_write_b64 v{t1}, v[{T1}:{T1+1}] offset:{LKEY}")
    I("s_waitcnt lgkmcnt(0)")
    I("s_barrier")
    KK = 12
    I(f"v_mov_b32 v{t1}, 0")
    I(f"ds_read_b128 v[{KK}:{KK+3}], v{t1} offset:{LKEY}")
    I(f"ds_read_b128 v[{KK+4}:{KK+7}], v{t1} offset:{LKEY+16}")
    I("s_waitcnt lgkmcnt(0)")
    I(f"v_mov_b32 v{K1}, 0")
    I(f"v_mov_b32 v{K2}, 0")
    for j in range(8):
        I(f"v_med3_u32 v{K2}, v{K1}, v{K2}, v{KK+j}")
        I(f"v_max_u32 v{K1}, v{K1}, v{KK+j}")
    for kx in (K1, K2):
        I(f"v_and_b32 v{kx}, 0x7ff, v{kx}")
        I(f"v_sub_u32 v{kx}, 2047, v{kx}")
    I(f"v_bfe_u32 v{t1}, v{LANE}, 4, 1")
    I(f"v_cmp_eq_u32 vcc, 0, v{t1}")
    I(f"v_cndmask_b32 v{t3}, v{K2}, v{K1}, vcc")
    vRowSel = 11
    I(f"v_mov_b32 v{vRowSel}, v{t3}")
    I(f"v_mul_u32_u24 v{t3}, 1280, v{t3}")
    I(f"v_and_b32 v{t0}, 15, v{LANE}")
    I(f"v_lshl_add_u32 v{t3}, v{t0}, 4, v{t3}")
    HX, HN = 12, 32
    for u in range(5):
        I(f"buffer_load_dwordx4 v[{HX+4*u}:{HX+4*u+3}], v{t3}, s[{SH}:{SH+3}], 0 offen offset:{256*u}", tag="hx")
    WC = 140
    I(f"v_lshlrev_b32 v{t2}, 4, v{t0}")
    for u in range(5):
        I(f"buffer_load_dwordx4 v[{WC+4*u}:{WC+4*u+3}], v{t2}, s[{SWR}:{SWR+3}], 0 offen offset:{256*u}", tag="hx")
    I("s_waitcnt vmcnt(0)")
    ln_rows(k, HX, 5, 164, HN, sEPS)
    RX = 52
    I(f"v_mov_b32 v{RX}, 0")
    for i in range(20):
        I(f"v_lshlrev_b32 v53, 16, v{HN+i}")
        I(f"v_and_b32 v54, 0xffff0000, v{HN+i}")
        I(f"v_lshlrev_b32 v55, 16, v{WC+i}")
        I(f"v_and_b32 v56, 0xffff0000, v{WC+i}")
        I(f"v_fmac_f32 v{RX}, v53, v55")
        I(f"v_fmac_f32 v{RX}, v54, v56")
    dpp_row_allreduce(k, "v_add_f32", RX)
    bf16_round(k, RX)
    I(f"v_mul_f32 v53, {f32bits(-1.4426950408889634)}, v{RX}")
    I(f"v_exp_f32 v53, v53")
    I(f"v_add_f32 v53, 1.0, v53")
    I(f"v_rcp_f32 v53, v53")
    bf16_round(k, 53)
    I(f"v_bfe_u32 v{t1}, v{LANE}, 4, 1")
    I(f"v_mul_u32_u24 v{t1}, 1280, v{t1}")
    I(f"v_lshl_add_u32 v{t1}, v{t0}, 4, v{t1}")
    I(f"s_cmp_lg_u32 s{sW}, 0")
    I("s_cbranch_scc1 Lk5_w0done")
    for u in range(5):
        I(f"ds_write_b128 v{t1}, v[{HN+4*u}:{HN+4*u+3}] offset:{LHN + 256*u}")
    I(f"s_cmp_lg_u32 s{sF}, 0")
    I("s_cbranch_scc1 Lk5_w0done")
    I("s_mov_b32 exec_hi, 0")
    for u in range(5):
        I(f"buffer_store_dwordx4 v[{HN+4*u}:{HN+4*u+3}], v{t1}, s[{SSEL}:{SSEL+3}], 0 offen offset:{64 + 256*u}")
    I(f"v_bfe_u32 v{t2}, v{LANE}, 4, 1")
    I(f"v_lshlrev_b32 v{t2}, 3, v{t2}")
    I(f"v_mov_b32 v54, v{vRowSel}")
    I(f"v_mov_b32 v55, v53")
    I(f"buffer_store_dwordx2 v[54:55], v{t2}, s[{SSEL}:{SSEL+3}], 0 offen")
    I("s_mov_b64 exec, -1")
    k.L("Lk5_w0done")
    I("s_waitcnt vmcnt(0) lgkmcnt(0)")
    I("s_barrier")
    I(f"v_and_b32 v{t0}, 1, v{LANE}")
    I(f"v_mul_u32_u24 v{t0}, 1280, v{t0}")
    I(f"v_lshrrev_b32 v{t1}, 4, v{LANE}")
    I(f"v_lshl_add_u32 v{t0}, v{t1}, 4, v{t0}")
    I(f"s_mul_i32 s{sT}, s{sW}, 320")
    I(f"v_add_u32 v{t0}, s{sT}, v{t0}")
    I(f"v_bfe_u32 v{t2}, v{LANE}, 2, 2")
    I(f"v_lshl_add_u32 v{t2}, v{t1}, 3, v{t2}")
    I(f"v_lshlrev_b32 v{t2}, 5, v{t2}")
    I(f"v_and_b32 v{t3}, 3, v{LANE}")
    I(f"v_lshl_add_u32 v{t2}, v{t3}, 3, v{t2}")
    I(f"v_add_u32 v{t2}, s50, v{t2}")
    AF, GF, UF = 12, 32, 52
    for s in range(5):
        I(f"ds_read_b128 v[{AF+4*s}:{AF+4*s+3}], v{t0} offset:{LHN + 64*s}")
        for (F, LB) in ((GF, LG), (UF, LU)):
            I(f"ds_read_b64_tr_b16 v[{F+4*s}:{F+4*s+1}], v{t2} offset:{LB + s*1024}")
            I(f"ds_read_b64_tr_b16 v[{F+4*s+2}:{F+4*s+3}], v{t2} offset:{LB + s*1024 + 128}")
    I("s_waitcnt lgkmcnt(0)")
    DG, DU = 72, 76
    for s in range(5):
        I(f"v_mfma_f32_16x16x32_bf16 v[{DG}:{DG+3}], v[{AF+4*s}:{AF+4*s+3}], v[{GF+4*s}:{GF+4*s+3}], " + ("0" if s == 0 else f"v[{DG}:{DG+3}]"))
        I(f"v_mfma_f32_16x16x32_bf16 v[{DU}:{DU+3}], v[{AF+4*s}:{AF+4*s+3}], v[{UF+4*s}:{UF+4*s+3}], " + ("0" if s == 0 else f"v[{DU}:{DU+3}]"))
    I(f"v_and_b32 v{t0}, 15, v{LANE}")
    I(f"v_lshlrev_b32 v{t0}, 2, v{t0}")
    I(f"s_lshl_b32 s{sT}, s{sW}, 8")
    I(f"v_add_u32 v{t0}, s{sT}, v{t0}")
    I("s_mov_b32 exec_lo, 0xffff")
    I("s_mov_b32 exec_hi, 0")
    I(f"ds_write_b32 v{t0}, v{DG} offset:{LPART}")
    I(f"ds_write_b32 v{t0}, v{DG+1} offset:{LPART+64}")
    I(f"ds_write_b32 v{t0}, v{DU} offset:{LPART+128}")
    I(f"ds_write_b32 v{t0}, v{DU+1} offset:{LPART+192}")
    I("s_mov_b64 exec, -1")
    I("s_waitcnt lgkmcnt(0)")
    I("s_barrier")
    I(f"v_and_b32 v{t0}, 31, v{LANE}")
    I(f"v_lshlrev_b32 v{t0}, 2, v{t0}")
    for w in range(4):
        I(f"ds_read_b32 v{12+w}, v{t0} offset:{LPART + w*256}")
        I(f"ds_read_b32 v{16+w}, v{t0} offset:{LPART + w*256 + 128}")
    I("s_waitcnt lgkmcnt(0)")
    for b in (12, 16):
        I(f"v_add_f32 v{b}, v{b}, v{b+1}")
        I(f"v_add_f32 v{b+2}, v{b+2}, v{b+3}")
        I(f"v_add_f32 v{b}, v{b}, v{b+2}")
        bf16_round(k, b)
    I(f"v_mul_f32 v13, {f32bits(-1.4426950408889634)}, v12")
    I(f"v_exp_f32 v13, v13")
    I(f"v_add_f32 v13, 1.0, v13")
    I(f"v_rcp_f32 v13, v13")
    I(f"v_mul_f32 v12, v12, v13")
    bf16_round(k, 12)
    I(f"v_mul_f32 v12, v12, v16")
    bf16_round(k, 12)
    I(f"ds_write_b32 v{t0}, v12 offset:{LA_}")
    I("s_waitcnt lgkmcnt(0)")
    I("s_barrier")
    I(f"v_mov_b32 v{t1}, 0")
    AV = 12
    for j in range(8):
        I(f"ds_read_b128 v[{AV+4*j}:{AV+4*j+3}], v{t1} offset:{LA_ + 16*j}")
    I("s_waitcnt lgkmcnt(0)")
    Y = 44
    for j in range(16):
        for c in range(2):
            I(f"v_lshlrev_b32 v52, 16, v{WDN+2*j+c}")
            I(f"v_and_b32 v53, 0xffff0000, v{WDN+2*j+c}")
            for tok in range(2):
                for hf, src in ((0, 52), (1, 53)):
                    y = Y + tok*4 + 2*c + hf
                    if j == 0: I(f"v_mul_f32 v{y}, v{AV+16*tok+j}, v{src}")
                    else: I(f"v_fmac_f32 v{y}, v{AV+16*tok+j}, v{src}")
    I(f"v_lshlrev_b32 v{t2}, 4, v0")
    I(f"s_mul_i32 s{sT}, s{sF}, 5120")
    I(f"v_cmp_gt_u32 vcc, 160, v0")
    I(f"s_and_saveexec_b64 s[64:65], vcc")
    I("s_cbranch_execz Lk5_nost")
    I(f"buffer_store_dwordx4 v[{Y}:{Y+3}], v{t2}, s[{SYP}:{SYP+3}], s{sT} offen")
    I(f"buffer_store_dwordx4 v[{Y+4}:{Y+7}], v{t2}, s[{SYP}:{SYP+3}], s{sT} offen offset:2560")
    k.L("Lk5_nost")
    I("s_mov_b64 exec, s[64:65]")
    k.L("Lk5_fin")
    stamp_end(k, diag, 3, 14, 15, vtmp=4)
    k.L("Lk5_end")
    I("s_endpgm")
    k.fix_hazards()
    return k, 216, 0, 45056, NLN + NFF

def gen_k6(diag=False):
    k = Kern("k6_kernel")
    I = k.I
    I("s_cmp_ge_u32 s2, 20")
    I("s_cbranch_scc1 Lk6_end")
    stamp_begin(k, diag)
    I(f"s_load_dwordx2 s[4:5], s[0:1], {KA['out']}")
    I(f"s_load_dwordx2 s[14:15], s[0:1], {KA['ws']}")
    LANE = 2
    sW, sT, sTok, sC = 40, 41, 42, 43
    I("v_lshrrev_b32 v1, 6, v0")
    I(f"v_and_b32 v{LANE}, 63, v0")
    I(f"v_readfirstlane_b32 s{sW}, v1")
    I(f"s_cmp_ge_u32 s2, 10")
    I(f"s_cselect_b32 s{sTok}, 1, 0")
    I(f"s_mul_i32 s{sT}, s{sTok}, 10")
    I(f"s_sub_u32 s{sC}, s2, s{sT}")
    I("s_waitcnt lgkmcnt(0)")
    SOUT, SYP, SSEL, SH = 16, 20, 24, 28
    srd(k, SOUT, 4, 5, 2048*640*2)
    srd(k, SYP, 14, 15, YP_SIZE, YP_OFF)
    srd(k, SSEL, 14, 15, SEL_SIZE, SEL_OFF)
    srd(k, SH, 14, 15, H_SIZE, H_OFF)
    I(f"s_lshl_b32 s{sT}, s{sC}, 6")
    I(f"v_add_u32 v3, s{sT}, v{LANE}")
    I(f"v_lshlrev_b32 v4, 2, v3")
    I(f"s_mul_i32 s44, s{sW}, {27*5120}")
    I(f"s_mul_i32 s{sT}, s{sTok}, 2560")
    I(f"s_add_u32 s44, s44, s{sT}")
    for j in range(27):
        I(f"s_add_u32 s{sT}, s44, {j*5120}")
        I(f"buffer_load_dword v{16+j}, v4, s[{SYP}:{SYP+3}], s{sT} offen")
    I(f"s_lshl_b32 s{sT}, s{sTok}, 3")
    I(f"v_mov_b32 v5, s{sT}")
    I(f"buffer_load_dwordx2 v[6:7], v5, s[{SSEL}:{SSEL+3}], 0 offen")
    I(f"s_mul_i32 s{sT}, s{sTok}, 1280")
    I(f"v_lshlrev_b32 v8, 1, v3")
    I(f"buffer_load_ushort v9, v8, s[{SSEL}:{SSEL+3}], s{sT} offen offset:64")
    I("s_waitcnt vmcnt(0)")
    I(f"v_mul_u32_u24 v10, 1280, v6")
    I(f"v_add_u32 v10, v10, v8")
    I(f"buffer_load_ushort v11, v10, s[{SH}:{SH+3}], 0 offen")
    for j in range(1, 27): pass
    for j in range(1, 27): I(f"v_add_f32 v16, v16, v{16+j}")
    I(f"v_lshlrev_b32 v12, 2, v0")
    I(f"ds_write_b32 v12, v16")
    I("s_waitcnt lgkmcnt(0)")
    I("s_barrier")
    I(f"s_cmp_lg_u32 s{sW}, 0")
    I("s_cbranch_scc1 Lk6_fin")
    I(f"v_lshlrev_b32 v12, 2, v{LANE}")
    I("ds_read_b32 v16, v12")
    I("ds_read_b32 v17, v12 offset:256")
    I("ds_read_b32 v18, v12 offset:512")
    I("ds_read_b32 v19, v12 offset:768")
    I("s_waitcnt lgkmcnt(0) vmcnt(0)")
    I("v_add_f32 v16, v16, v17")
    I("v_add_f32 v18, v18, v19")
    I("v_add_f32 v16, v16, v18")
    bf16_round(k, 16)
    I("v_mul_f32 v16, v16, v7")
    bf16_round(k, 16)
    I("v_lshlrev_b32 v9, 16, v9")
    I("v_add_f32 v16, v16, v9")
    bf16_round(k, 16)
    I("v_lshlrev_b32 v11, 16, v11")
    I("v_add_f32 v16, v16, v11")
    I("v_cvt_pk_bf16_f32 v16, v16, v16")
    I(f"buffer_store_short v16, v10, s[{SOUT}:{SOUT+3}], 0 offen")
    k.L("Lk6_fin")
    stamp_end(k, diag, 4, 14, 15, vtmp=20)
    k.L("Lk6_end")
    I("s_endpgm")
    k.fix_hazards()
    return k, 48, 0, 1024, 20
```

```python
import sys, os
sys.path.insert(0, os.path.dirname(__file__))
from common import *
NAME = "sequential_preLN__compressed_kv_cla__moe_arch_mod__prompt"
HEADER = """; Kernarg layout (112 bytes, ptrs only): x, c_kv, w_q, w_uk, w_uv, w_o, B_x, w_r, w_gate, w_up, w_down, out, debug, ws
"""
def build(kernels, path):
    out = [HEADER]
    for (k, v, a, lds, grid, block) in kernels:
        out.append(f"; @launch kernel={k.name} grid=({grid},1,1) block=({block},1,1) lds={lds}\n")
    out.append('.amdgcn_target "amdgcn-amd-amdhsa--gfx950"\n.text\n')
    descs = []
    for (k, v, a, lds, grid, block) in kernels:
        body, desc = kernel_text(k, v, a)
        out.append(body); descs.append(desc)
    out.append('.section .rodata,"a"\n')
    for d in descs: out.append(".p2align 6\n" + d)
    open(path, "w").write("".join(out))

def all_kernels(diag=False, upto=99, opts={}):
    ks = []
    from k1 import gen_k1
    k, v, a, lds = gen_k1(diag, **opts.get("k1", {})); ks.append((k, v, a, lds, 256, 256))
    if upto >= 2:
        from k2 import gen_k2
        k, v, a, lds = gen_k2(diag, **opts.get("k2", {})); ks.append((k, v, a, lds, 256, 256))
    if upto >= 3:
        from k3 import gen_k3
        k, v, a, lds = gen_k3(diag, **opts.get("k3", {})); ks.append((k, v, a, lds, 256, 256))
    if upto >= 4:
        from k5 import gen_k5, gen_k6
        k, v, a, lds, grid = gen_k5(diag, **opts.get("k5", {})); ks.append((k, v, a, lds, grid, 256))
        k, v, a, lds, grid = gen_k6(diag, **opts.get("k6", {})); ks.append((k, v, a, lds, grid, 256))
    return ks

if __name__ == "__main__":
    upto = int(sys.argv[1]) if len(sys.argv) > 1 else 99
    diag = len(sys.argv) > 2 and sys.argv[2] == "diag"
    path = sys.argv[3] if len(sys.argv) > 3 else f"cdna_kernels/{NAME}.s"
    import json
    opts = json.loads(os.environ.get("OPTS", "{}"))
    build(all_kernels(diag, upto, opts), path)
    print("wrote", path, os.path.getsize(path))
```

```python
from asmlib import *

KA = dict(x=0, ckv=8, wq=16, wuk=24, wuv=32, wo=40, bx=48, wr=56, wg=64, wu=72, wd=80, out=88, dbg=96, ws=104)
MB = 1 << 20
XN_OFF = 0;            XN_SIZE = 2048 * 640 * 2
KV_OFF = 4 * MB;       KV_SIZE = 32 * MB
CTX_OFF = 40 * MB;     CTX_SIZE = 16 * MB
H_OFF = 60 * MB;       H_SIZE = 2048 * 640 * 2
ST_OFF = 64 * MB;      ST_SIZE = 8 * 2048 * 16
ACC_OFF = 65 * MB;     ACC_SIZE = 3 * 2048 * 4
SEL_OFF = 65 * MB + 65536; SEL_SIZE = 4096
YP_OFF = 66 * MB;      YP_SIZE = 54 * 2 * 640 * 4
WOT_OFF = 68 * MB;     WOT_SIZE = 4096 * 640 * 2
STAMP_OFF = 100 * MB
QSCALE = (128 ** -0.5) * 1.4426950408889634

def f32bits(x):
    import struct
    return "0x%08x" % struct.unpack("<I", struct.pack("<f", x))[0]

def srd(k, d, base_lo, base_hi, size, off=0):
    if off:
        k.I(f"s_add_u32 s{d}, s{base_lo}, {off}")
        k.I(f"s_addc_u32 s{d+1}, s{base_hi}, 0")
    else:
        k.I(f"s_mov_b32 s{d}, s{base_lo}")
        k.I(f"s_mov_b32 s{d+1}, s{base_hi}")
    k.I(f"s_mov_b32 s{d+2}, {size}")
    k.I(f"s_mov_b32 s{d+3}, 0x20000")

def stamp_begin(k, diag, s=98):
    if diag: k.I(f"s_memrealtime s[{s}:{s+1}]")

def stamp_end(k, diag, kidx, ws_lo, ws_hi, s=98, vtmp=0):
    if not diag: return
    lab = f"Lstamp_{k.name}"
    k.I("s_waitcnt vmcnt(0) lgkmcnt(0)")
    k.I(f"s_memrealtime s[{s+2}:{s+3}]")
    k.I("s_waitcnt lgkmcnt(0)")
    k.I(f"s_lshl_b32 s96, s2, 3")
    k.I(f"s_add_u32 s96, s96, {STAMP_OFF + kidx*4096}")
    k.I(f"v_mov_b32 v{vtmp+2}, s{s}")
    k.I(f"v_mov_b32 v{vtmp+3}, s{s+2}")
    k.I(f"v_mov_b32 v{vtmp+1}, s96")
    k.I(f"v_mbcnt_lo_u32_b32 v{vtmp}, -1, 0")
    k.I(f"v_mbcnt_hi_u32_b32 v{vtmp}, -1, v{vtmp}")
    k.I(f"v_cmp_eq_u32 vcc, 0, v{vtmp}")
    k.I(f"s_and_saveexec_b64 s[94:95], vcc")
    k.I(f"s_cbranch_execz {lab}")
    k.I(f"global_store_dwordx2 v{vtmp+1}, v[{vtmp+2}:{vtmp+3}], s[{ws_lo}:{ws_hi}]")
    k.L(lab)

MARKS = {}
def mark(k, diag, idx):
    if diag:
        import os
        k.I(f"{'s_memtime' if os.environ.get('CYC') else 's_memrealtime'} s[{60+2*idx}:{61+2*idx}]")
        MARKS[k.name] = max(MARKS.get(k.name, 0), idx + 1)

def dump_marks(k, diag, kidx, ws_lo, ws_hi, vtmp):
    if not diag or k.name not in MARKS: return
    n = MARKS[k.name]
    lab = f"Lmark_{k.name}"
    k.I("s_waitcnt vmcnt(0) lgkmcnt(0)")
    k.I("s_lshl_b32 s96, s2, 2")
    k.I("s_add_u32 s96, s96, s40")
    k.I("s_lshl_b32 s96, s96, 6")
    k.I(f"s_add_u32 s96, s96, {STAMP_OFF + MB + kidx*262144}")
    k.I(f"v_mov_b32 v{vtmp+1}, s96")
    k.I(f"v_mbcnt_lo_u32_b32 v{vtmp}, -1, 0")
    k.I(f"v_mbcnt_hi_u32_b32 v{vtmp}, -1, v{vtmp}")
    k.I(f"v_cmp_eq_u32 vcc, 0, v{vtmp}")
    k.I(f"s_and_saveexec_b64 s[94:95], vcc")
    k.I(f"s_cbranch_execz {lab}")
    for i in range(n):
        k.I(f"v_mov_b32 v{vtmp+2}, s{60+2*i}")
        k.I(f"global_store_dword v{vtmp+1}, v{vtmp+2}, s[{ws_lo}:{ws_hi}] offset:{4*i}")
    k.L(lab)
    k.I("s_mov_b64 exec, s[94:95]")

def dpp_row_allreduce(k, op, v, tmp=None):
    for r in (8, 4, 2, 1):
        k.I(f"{op} v{v}, v{v}, v{v} row_ror:{r}")

class Rec:
    def __init__(self): self.l = []
    def I(self, t, tag=None):
        for x in t.split("\n"):
            if x.strip(): self.l.append(x.strip())

def ln_rows(k, xin, nchunk, vt, out_pk, eps_s, tag="", T=None):
    n = 8 * nchunk
    X = vt
    if T is None: T = vt + n
    for i in range(4 * nchunk):
        k.I(f"v_lshlrev_b32 v{X+2*i}, 16, v{xin+i}")
        k.I(f"v_and_b32 v{X+2*i+1}, 0xffff0000, v{xin+i}")
    for c in range(4):
        k.I(f"v_add_f32 v{T+c}, v{X+c}, v{X+c+4}")
    for i in range(8, n):
        k.I(f"v_add_f32 v{T+(i&3)}, v{T+(i&3)}, v{X+i}")
    k.I(f"v_add_f32 v{T}, v{T}, v{T+1}")
    k.I(f"v_add_f32 v{T+2}, v{T+2}, v{T+3}")
    k.I(f"v_add_f32 v{T}, v{T}, v{T+2}")
    dpp_row_allreduce(k, "v_add_f32", T)
    k.I(f"v_mul_f32 v{T+4}, {f32bits(1.0/640)}, v{T}")
    for c in range(4):
        k.I(f"v_sub_f32 v{T+5}, v{X+c}, v{T+4}")
        k.I(f"v_mul_f32 v{T+c}, v{T+5}, v{T+5}")
    for i in range(4, n):
        k.I(f"v_sub_f32 v{T+5+(i&1)}, v{X+i}, v{T+4}")
        k.I(f"v_fmac_f32 v{T+(i&3)}, v{T+5+(i&1)}, v{T+5+(i&1)}")
    k.I(f"v_add_f32 v{T}, v{T}, v{T+1}")
    k.I(f"v_add_f32 v{T+2}, v{T+2}, v{T+3}")
    k.I(f"v_add_f32 v{T}, v{T}, v{T+2}")
    dpp_row_allreduce(k, "v_add_f32", T)
    k.I(f"v_mul_f32 v{T}, {f32bits(1.0/640)}, v{T}")
    ln_finish(k, X, n, T + 4, T, T + 5, out_pk, eps_s)

def bf16_round(k, v):
    k.I(f"v_cvt_pk_bf16_f32 v{v}, v{v}, v{v}")
    k.I(f"v_and_b32 v{v}, 0xffff0000, v{v}")

def ln_finish(k, X, n, vmean, vvar, vtmp, out_pk, eps_s):
    bf16_round(k, vmean)
    bf16_round(k, vvar)
    k.I(f"v_add_f32 v{vvar}, s{eps_s}, v{vvar}")
    bf16_round(k, vvar)
    k.I(f"v_sqrt_f32 v{vvar}, v{vvar}")
    bf16_round(k, vvar)
    k.I(f"v_rcp_f32 v{vvar}, v{vvar}")
    for i in range(0, n, 2):
        k.I(f"v_sub_f32 v{X+i}, v{X+i}, v{vmean}")
        k.I(f"v_sub_f32 v{X+i+1}, v{X+i+1}, v{vmean}")
        k.I(f"v_cvt_pk_bf16_f32 v{vtmp}, v{X+i}, v{X+i+1}")
        k.I(f"v_lshlrev_b32 v{X+i}, 16, v{vtmp}")
        k.I(f"v_and_b32 v{X+i+1}, 0xffff0000, v{vtmp}")
        k.I(f"v_mul_f32 v{X+i}, v{X+i}, v{vvar}")
        k.I(f"v_mul_f32 v{X+i+1}, v{X+i+1}, v{vvar}")
        k.I(f"v_cvt_pk_bf16_f32 v{out_pk+i//2}, v{X+i}, v{X+i+1}")
```

```python
from common import *

def gen_k1(diag=False, store_flags="", prefetch=True, shares=False, wnt="nt", touch=False, tnt=""):
    k = Kern("k1_kernel")
    I = k.I
    NXB = 3
    XBASE = 4*16384
    I("s_cmp_ge_u32 s2, 256")
    I("s_cbranch_scc1 Lk1_end")
    stamp_begin(k, diag)
    I(f"s_load_dwordx4 s[4:7], s[0:1], {KA['x']}")
    I(f"s_load_dwordx4 s[8:11], s[0:1], {KA['wuk']}")
    I(f"s_load_dwordx2 s[14:15], s[0:1], {KA['ws']}")
    I(f"s_load_dwordx2 s[56:57], s[0:1], {KA['wq']}")
    I("v_lshrrev_b32 v1, 6, v0")
    I("v_and_b32 v2, 63, v0")
    I("v_readfirstlane_b32 s40, v1")
    I("s_and_b32 s43, s2, 7")
    I("s_lshr_b32 s44, s2, 3")
    I("s_and_b32 s41, s44, 3")
    I("s_mov_b32 s47, s41")
    I("s_lshl_b32 s43, s43, 2")
    I("s_add_u32 s41, s41, s43")
    I("s_lshr_b32 s42, s44, 2")
    I("s_waitcnt lgkmcnt(0)")
    mark(k, diag, 0)
    SX, SC, SWK, SWV, SKV, SXN = 16, 20, 24, 28, 32, 36
    SWO, SWOT, SPF = 16, 20, 92
    srd(k, SC, 6, 7, 2048*512*2)
    srd(k, SX, 4, 5, 2048*640*2)
    srd(k, SWK, 8, 9, 512*4096*2)
    srd(k, SWV, 10, 11, 512*4096*2)
    srd(k, SKV, 14, 15, KV_SIZE, KV_OFF)
    srd(k, SXN, 14, 15, XN_SIZE, XN_OFF)
    LANE = 2
    vXA, vW, vT0, vT1, vT0h, vT1h, vST, vLX, vLO = 3, 4, 5, 6, 7, 8, 9, 10, 11
    t0, t1 = 12, 13
    vXB = 14; vXR = 16
    vT0g, vT1g = 20, 21
    vPF = 22; vDUM = 24
    sX0, sX1, sWb, sM, sKVb, sT, sEPS = 48, 49, 50, 51, 52, 53, 54
    I(f"v_lshrrev_b32 v{t0}, 3, v{LANE}")
    I(f"v_lshlrev_b32 v{vXA}, 10, v{t0}")
    I(f"v_lshrrev_b32 v{t0}, 4, v{LANE}")
    I(f"v_and_b32 v{t1}, 7, v{LANE}")
    I(f"v_xor_b32 v{t0}, v{t0}, v{t1}")
    I(f"v_lshl_add_u32 v{vXA}, v{t0}, 4, v{vXA}")
    I(f"v_xor_b32 v{vXB}, 64, v{vXA}")
    I(f"s_lshl_b32 s{sX0}, s42, 8")
    I(f"s_lshl_b32 s{sT}, s40, 6")
    I(f"s_add_u32 s{sX0}, s{sX0}, s{sT}")
    I(f"s_lshl_b32 s{sX0}, s{sX0}, 10")
    I(f"s_mul_i32 s{sX1}, s40, {NXB*8192}")
    I(f"s_add_u32 s{sX1}, s{sX1}, {XBASE}")
    I(f"v_lshrrev_b32 v{t0}, 3, v{LANE}")
    I(f"v_lshlrev_b32 v{vW}, 13, v{t0}")
    I(f"v_bfe_u32 v{t0}, v{LANE}, 4, 1")
    I(f"v_lshlrev_b32 v{t0}, 2, v{t0}")
    I(f"v_and_b32 v{t1}, 7, v{LANE}")
    I(f"v_xor_b32 v{t0}, v{t0}, v{t1}")
    I(f"v_lshl_add_u32 v{vW}, v{t0}, 4, v{vW}")
    I(f"s_lshl_b32 s{sWb}, s40, 18")
    I(f"s_lshl_b32 s{sT}, s41, 8")
    I(f"s_add_u32 s{sWb}, s{sWb}, s{sT}")
    I(f"s_lshl_b32 s{sM}, s40, 12")
    SLOT = {0:0, 1:1, 2:2, 3:3, 4:0, 5:1, 6:2, 7:4, 8:5, 9:6, 10:7, 11:8, 12:9, 13:3, 14:0, 15:1}
    def dma_one(g, u):
        p = g >> 2; S = SWK if p < 2 else SWV
        so = (128*(g & 3) + 8*u) * 8192 + 128*(p & 1)
        I(f"s_add_u32 m0, s{sM}, {SLOT[g]*16384 + u*1024}")
        I(f"s_add_u32 s{sT}, s{sWb}, {so}")
        I(f"buffer_load_dwordx4 v{vW}, s[{S}:{S+3}], s{sT} offen {wnt} lds", tag=f"w{g}")
    def xdma_one(cx, u):
        I(f"s_add_u32 m0, s{sX1}, {(cx % NXB)*8192 + u*1024}")
        I(f"s_add_u32 s{sT}, s{sX0}, {u*8192 + cx*128}")
        I(f"buffer_load_dwordx4 v{vXA if u % 2 == 0 else vXB}, s[{SC}:{SC+3}], s{sT} offen lds", tag=f"xc{cx}")
    I(f"v_lshrrev_b32 v{t0}, 3, v{LANE}")
    I(f"v_lshlrev_b32 v{vPF}, 10, v{t0}")
    I(f"v_and_b32 v{t0}, 7, v{LANE}")
    I(f"v_lshl_add_u32 v{vPF}, v{t0}, 4, v{vPF}")
    I(f"s_lshl_b32 s45, s42, 8")
    I(f"s_lshl_b32 s46, s47, 6")
    I(f"s_add_u32 s45, s45, s46")
    I(f"s_lshl_b32 s46, s40, 4")
    I(f"s_add_u32 s45, s45, s46")
    I(f"s_lshl_b32 s58, s45, 10")
    I(f"v_lshrrev_b32 v{t0}, 4, v{LANE}")
    I(f"v_lshlrev_b32 v{vPF+1}, 13, v{t0}")
    I(f"v_and_b32 v{t0}, 15, v{LANE}")
    I(f"v_lshl_add_u32 v{vPF+1}, v{t0}, 4, v{vPF+1}")
    I(f"s_lshl_b32 s55, s42, 4")
    I(f"s_lshl_b32 s44, s40, 2")
    I(f"s_add_u32 s55, s55, s44")
    I(f"s_lshl_b32 s55, s55, 13")
    I(f"s_lshl_b32 s44, s41, 8")
    I(f"s_add_u32 s55, s55, s44")
    def wshare(S, g):
        if not shares: return
        I(f"s_add_u32 s{sT}, s55, {g*128*8192}")
        I(f"buffer_load_dwordx4 v[{vDUM}:{vDUM+3}], v{vPF+1}, s[{S}:{S+3}], s{sT} offen", tag="pf")
    def xshare(c):
        if not shares: return
        for j in range(2):
            I(f"s_add_u32 s{sT}, s58, {j*8192 + c*128}")
            I(f"buffer_load_dwordx4 v[{vDUM}:{vDUM+3}], v{vPF}, s[{SC}:{SC+3}], s{sT} offen", tag="pf")
    wshare(SWK, 0); xshare(0); xshare(1); wshare(SWK, 1); xshare(2); xshare(3)
    if touch:
        I(f"v_lshrrev_b32 v{t0}, 3, v{LANE}")
        I(f"v_lshlrev_b32 v{vPF}, 10, v{t0}")
        I(f"v_and_b32 v{t0}, 7, v{LANE}")
        I(f"v_lshl_add_u32 v{vPF}, v{t0}, 7, v{vPF}")
        for j in range(2):
            I(f"s_add_u32 s{sT}, s58, {j*8192}")
            I(f"buffer_load_dword v{vDUM}, v{vPF}, s[{SC}:{SC+3}], s{sT} offen {tnt}", tag="pf")
        I(f"v_lshrrev_b32 v{t0}, 1, v{LANE}")
        I(f"v_lshlrev_b32 v{vPF+1}, 13, v{t0}")
        I(f"v_and_b32 v{t0}, 1, v{LANE}")
        I(f"v_lshl_add_u32 v{vPF+1}, v{t0}, 7, v{vPF+1}")
        I(f"s_lshl_b32 s55, s42, 6")
        I(f"s_and_b32 s44, s40, 1")
        I(f"s_lshl_b32 s44, s44, 5")
        I(f"s_add_u32 s55, s55, s44")
        I(f"s_lshl_b32 s55, s55, 13")
        I(f"s_lshl_b32 s44, s41, 8")
        I(f"s_add_u32 s55, s55, s44")
        I(f"s_cmp_ge_u32 s40, 2")
        I(f"s_cselect_b32 s92, s{SWV}, s{SWK}")
        I(f"s_cselect_b32 s93, s{SWV+1}, s{SWK+1}")
        I(f"s_mov_b32 s94, {512*4096*2}")
        I(f"s_mov_b32 s95, 0x20000")
        I(f"buffer_load_dword v{vDUM+1}, v{vPF+1}, s[92:95], s55 offen {tnt}", tag="pf")
    for u in range(8): xdma_one(0, u)
    for u in range(4): dma_one(0, u)
    mark(k, diag, 1)
    wshare(SWK, 2); xshare(4); xshare(5)
    for u in range(8): xdma_one(1, u)
    for u in range(4): dma_one(1, u)
    wshare(SWK, 3); xshare(6); xshare(7)
    for u in range(8): xdma_one(2, u)
    I(f"v_bfe_u32 v{t0}, v{LANE}, 4, 1")
    I("s_lshl_b32 s45, s2, 3")
    I("s_lshl_b32 s46, s40, 1")
    I("s_add_u32 s45, s45, s46")
    I(f"v_add_u32 v{t0}, s45, v{t0}")
    I(f"v_and_b32 v{t1}, 15, v{LANE}")
    I(f"v_mul_u32_u24 v{vLX}, 1280, v{t0}")
    I(f"v_lshl_add_u32 v{vLX}, v{t1}, 4, v{vLX}")
    LNX = 192
    mark(k, diag, 2)
    I(f"v_bfe_u32 v{t0}, v{LANE}, 4, 1")
    I("s_lshl_b32 s45, s2, 3")
    I("s_lshl_b32 s46, s40, 1")
    I("s_add_u32 s45, s45, s46")
    I(f"v_add_u32 v{t0}, s45, v{t0}")
    I(f"v_and_b32 v{t1}, 15, v{LANE}")
    I(f"v_lshrrev_b32 v{vLO}, 5, v{t0}")
    I(f"v_mul_u32_u24 v{vLO}, 40960, v{vLO}")
    I(f"v_and_b32 v{t0}, 31, v{t0}")
    I(f"v_lshl_add_u32 v{vLO}, v{t0}, 4, v{vLO}")
    I(f"v_lshrrev_b32 v{t0}, 1, v{t1}")
    I(f"v_lshl_add_u32 v{vLO}, v{t0}, 10, v{vLO}")
    I(f"v_and_b32 v{t0}, 1, v{t1}")
    I(f"v_lshl_add_u32 v{vLO}, v{t0}, 9, v{vLO}")
    I(f"v_mov_b32 v{t0}, 0x1000000")
    I(f"v_cmp_gt_u32 vcc, 32, v{LANE}")
    I(f"v_cndmask_b32 v{vLO}, v{t0}, v{vLO}, vcc")
    srd(k, 92, 14, 15, ACC_SIZE, ACC_OFF)
    I(f"s_mul_i32 s45, s2, 96")
    I(f"v_lshlrev_b32 v{t0}, 2, v0")
    I(f"v_mov_b32 v{t1}, 0x100000")
    I(f"v_cmp_gt_u32 vcc, 24, v0")
    I(f"v_cndmask_b32 v{t0}, v{t1}, v{t0}, vcc")
    I(f"v_mov_b32 v{t1}, 0")
    I(f"buffer_store_dword v{t1}, v{t0}, s[92:95], s45 offen")
    I(f"v_lshrrev_b32 v{t1}, 5, v{LANE}")
    I(f"v_bfe_u32 v{t0}, v{LANE}, 1, 3")
    I(f"v_xor_b32 v{t0}, v{t0}, v{t1}")
    I(f"v_lshlrev_b32 v{t0}, 4, v{t0}")
    I(f"v_and_b32 v{vXR}, 31, v{LANE}")
    I(f"v_lshl_add_u32 v{vXR}, v{vXR}, 7, v{t0}")
    for j in range(1, 4):
        I(f"v_xor_b32 v{vXR+j}, {32*j}, v{vXR}")
        I(f"v_add_u32 v{vXR+j}, s{sX1}, v{vXR+j}")
    I(f"v_add_u32 v{vXR}, s{sX1}, v{vXR}")
    I(f"v_bfe_u32 v{t0}, v{LANE}, 2, 2")
    I(f"v_lshl_add_u32 v{t0}, v{t1}, 3, v{t0}")
    I(f"v_lshlrev_b32 v{vT0}, 7, v{t0}")
    I(f"v_bfe_u32 v{t0}, v{LANE}, 3, 1")
    I(f"v_lshl_add_u32 v{vT0}, v{t0}, 6, v{vT0}")
    I(f"v_bfe_u32 v{t0}, v{LANE}, 4, 1")
    I(f"v_lshl_add_u32 v{vT0}, v{t0}, 5, v{vT0}")
    I(f"v_and_b32 v{t0}, 3, v{LANE}")
    I(f"v_lshl_add_u32 v{vT0}, v{t0}, 3, v{vT0}")
    I(f"v_xor_b32 v{vT1}, 64, v{vT0}")
    I(f"v_add_u32 v{vT0h}, 0x10000, v{vT0}")
    I(f"v_add_u32 v{vT1h}, 0x10000, v{vT1}")
    I(f"v_add_u32 v{vT0g}, 0x20000, v{vT0}")
    I(f"v_add_u32 v{vT1g}, 0x20000, v{vT1}")
    I(f"v_lshlrev_b32 v{vST}, 4, v{LANE}")
    I(f"s_lshl_b32 s{sKVb}, s41, 6")
    I(f"s_lshl_b32 s{sT}, s42, 3")
    I(f"s_add_u32 s{sKVb}, s{sKVb}, s{sT}")
    I(f"s_lshl_b32 s{sT}, s40, 1")
    I(f"s_add_u32 s{sKVb}, s{sKVb}, s{sT}")
    I(f"s_lshl_b32 s{sKVb}, s{sKVb}, 14")
    I(f"s_mov_b32 s{sEPS}, {f32bits(1e-5)}")

    def xread(cx):
        for sp in range(4):
            for b in range(2):
                a = (b*32 + 4*cx + sp)*4
                I(f"ds_read_b128 a[{a}:{a+3}], v{vXR+sp} offset:{(cx % NXB)*8192 + b*4096}", tag=f"xr{cx}")
    WF = 64
    ACC = [128, 192]
    STG = [96, 120]
    LA = 2
    def wread(n):
        g = n >> 3; s = n & 7
        slot = SLOT[g]
        b0, b1 = (vT0, vT1) if slot < 4 else (vT0h, vT1h) if slot < 8 else (vT0g, vT1g)
        off = (slot & 3)*16384 + s*2048
        r = WF + (n & 3)*8
        I(f"ds_read_b64_tr_b16 v[{r}:{r+1}], v{b0} offset:{off}", tag=f"r{n}")
        I(f"ds_read_b64_tr_b16 v[{r+2}:{r+3}], v{b0} offset:{off+512}", tag=f"r{n}")
        I(f"ds_read_b64_tr_b16 v[{r+4}:{r+5}], v{b1} offset:{off}", tag=f"r{n}")
        I(f"ds_read_b64_tr_b16 v[{r+6}:{r+7}], v{b1} offset:{off+512}", tag=f"r{n}")
    def epi_items(p):
        items = []
        acc = ACC[p & 1]
        for cb in range(2):
            for b in range(2):
                tile = acc + (cb*2 + b)*16
                for half in range(2):
                    if p < 2: within = (2*(2*p + cb) + half)*1024
                    else: within = 8192 + ((2*(p-2) + cb)*2 + half)*1024
                    def f(tile=tile, half=half, within=within, b=b, idx=len(items)):
                        st = STG[idx & 1]
                        for j in range(4):
                            I(f"v_cvt_pk_bf16_f32 v{st+j}, v{tile+8*half+2*j}, v{tile+8*half+2*j+1}")
                        I(f"s_add_u32 s{sT}, s{sKVb}, {b*16384 + within}")
                        I(f"buffer_store_dwordx4 v[{st}:{st+3}], v{vST}, s[{SKV}:{SKV+3}], s{sT} offen {store_flags}", tag=f"st{p}")
                    items.append(f)
        return items
    LNO = 100
    rec = Rec()
    ln_rows(rec, LNX, 5, 212, LNO, sEPS, T=28)
    lnq = list(rec.l)
    def ln_stores():
        for u in range(5):
            I(f"s_mov_b32 s{sT}, {u*8192}")
            I(f"buffer_store_dwordx4 v[{LNO+4*u}:{LNO+4*u+3}], v{vLO}, s[{SXN}:{SXN+3}], s{sT} offen {store_flags}", tag="lnst")
    def pf_items():
        items = []
        def mk(lo, hi, size, per_wg, nper):
            def setup():
                srd(k, SPF, lo, hi, size)
                I(f"s_mul_i32 s43, s2, {per_wg}")
                I(f"s_mul_i32 s55, s40, {nper*1024}")
                I(f"s_add_u32 s43, s43, s55")
            items.append(setup)
            for j in range(nper):
                def f(j=j):
                    I(f"s_add_u32 s{sT}, s43, {j*1024}")
                    I(f"buffer_load_dwordx4 v[{vDUM}:{vDUM+3}], v{vST}, s[{SPF}:{SPF+3}], s{sT} offen", tag="pf2")
                items.append(f)
        mk(56, 57, 640*4096*2, 20480, 5)
        return items
    mark(k, diag, 3)
    k.wait_vm("w0", expect=4)
    I("s_barrier")
    k.wait_vm("xc0", expect=8)
    xread(0)
    for n in range(LA): wread(n)
    mark(k, diag, 4)
    memq = []
    for u in range(4): memq.append(lambda u=u: dma_one(2, u))
    for u in range(4): memq.append(lambda u=u: dma_one(3, u))
    def lnload(u): I(f"buffer_load_dwordx4 v[{LNX+4*u}:{LNX+4*u+3}], v{vLX}, s[{SX}:{SX+3}], 0 offen offset:{256*u}", tag="lnx")
    for u in range(5): memq.append(lambda u=u: lnload(u))
    for g in range(4): memq.append(lambda g=g: wshare(SWV, g))
    pend = []
    misc = []
    paceq = []
    slowq = []
    BAR = {5: ([1], []), 13: ([2], [4]), 21: ([3], [5]), 29: ([4], [6, 7, 8, 9, 10, 11, 12]), 37: ([5], [13]), 45: ([6], [14]),
           53: ([7], [15]), 61: ([8, 9, 10, 11], []), 93: ([12, 13, 14, 15], [])}
    lnstarted = False
    for n in range(128):
        g = n >> 3; s = n & 7; p = g >> 2
        ks = n & 31
        if n in BAR:
            rdy, iss = BAR[n]
            if n in (37, 45, 53): mark(k, diag, 10 + 2*((n - 37)//8))
            k.wait_vm(f"w{rdy[-1]}", expect=4)
            if n == 93: pass
            I("s_barrier")
            if n in (37, 45, 53): mark(k, diag, 11 + 2*((n - 37)//8))
            for q in iss:
                for u in range(4): (memq if n < 29 else paceq).append(lambda q=q, u=u: dma_one(q, u))
            if n == 61:
                pass

        if n == 72 and prefetch: slowq.extend(pf_items())
        if n + LA < 128: wread(n + LA)
        if p == 0 and ks % 4 == 1 and ks // 4 + 1 < 8:
            k.wait_vm(f"xc{ks//4+1}", expect=8)
            xread(ks//4 + 1)
        if p == 0 and ks % 4 == 0:
            k.wait_lg(f"xr{ks//4}")
            if ks//4 + NXB < 8:
                for u in range(8): memq.append(lambda cx=ks//4 + NXB, u=u: xdma_one(cx, u))
        k.wait_lg(f"r{n}")
        r = WF + (n & 3)*8
        acc = ACC[p & 1]
        gi = 0
        for cb in range(2):
            for b in range(2):
                d = acc + (cb*2 + b)*16
                a = (b*32 + ks)*4
                c = "0" if ks == 0 else f"v[{d}:{d+15}]"
                if p < 2: I(f"v_mfma_f32_32x32x16_bf16 v[{d}:{d+15}], v[{r+4*cb}:{r+4*cb+3}], a[{a}:{a+3}], {c}")
                else:     I(f"v_mfma_f32_32x32x16_bf16 v[{d}:{d+15}], a[{a}:{a+3}], v[{r+4*cb}:{r+4*cb+3}], {c}")
                if memq: memq.pop(0)()
                elif paceq and gi == 0: paceq.pop(0)()
                elif pend and ks >= 3 and (ks % 3 == 0) and gi == 3: pend.pop(0)()
                elif misc: misc.pop(0)()
                elif slowq and gi == 1 and n % 4 == 0: slowq.pop(0)()
                if p == 0 and n >= 10 and lnq:
                    if not lnstarted:
                        k.wait_vm("lnx"); lnstarted = True
                    for _ in range(4):
                        if lnq: I(lnq.pop(0))
                    if not lnq: memq.append(ln_stores)
                gi += 1
        if pend and ks >= 3 and (ks % 3 == 0) and False: pend.pop(0)()
        if ks == 31: mark(k, diag, 5 + p)
        if ks == 31:
            while pend: pend.pop(0)()
            pend = epi_items(p)
    assert not lnq
    assert not paceq
    while memq: memq.pop(0)()
    while slowq: slowq.pop(0)()
    while misc: misc.pop(0)()
    for f in pend: f()
    mark(k, diag, 9)
    dump_marks(k, diag, 0, 14, 15, 12)
    stamp_end(k, diag, 0, 14, 15, vtmp=12)
    k.L("Lk1_end")
    I("s_endpgm")
    n = k.fix_hazards()
    probs = check_waits(k.items, "k1")
    probs = [p_ for p_ in probs if f"v[{vDUM}:{vDUM+3}]" not in p_]
    for p_ in probs[:10]: print(p_)
    return k, 256, 256, 163840
```

```python
from common import *

OA, OB, QA, QB, F0, F1 = 0, 64, 128, 160, 192, 224
S0, S1, P0, P1, NMA, NMB = 64, 80, 96, 104, 112, 128
LANE, vL16, vWQ, vNINF = 2, 3, 4, 5
vQ = 6
vA0, vA1, vA2 = 10, 11, 12
vTH0, vTH1 = 13, 14
vTHA, vTHB = 22, 23
LA0, LA1, LB0, LB1, LC0, LC1 = 16, 17, 18, 19, 20, 21
vT = 24
SXN, SWQ, SKV, SCTX = 16, 20, 24, 28
sW, sH, sI = 40, 41, 42
sT, sT2, sB0, sDoff, sDslot, sDlim, sOOB, sCnt, sWL, sQA, sQB, sFlag, sTHR = 43, 44, 45, 46, 47, 48, 49, 50, 51, 52, 53, 54, 55
MSK = 90
KVR = [8*(r >> 2) + (r & 3) for r in range(16)]
COST = {"exp": 8}

from sched import Item, schedule, insert_lgkm_waits

def exp_group(S, regs, L, masked=False, th=None):
    out = []
    for i in range(0, len(regs), 2):
        pair = regs[i:i+2]
        for r in pair: out.append((f"v_exp_f32 v{S+r}, v{S+r}", 8))
        for j, r in enumerate(pair): out.append((f"v_add_f32 v{L[j]}, v{L[j]}, v{S+r}", 4))
    return out

def mask_group(S, th):
    out = []
    for i in range(0, 16, 4):
        for j in range(4):
            out.append((f"v_cmp_le_i32 s[{MSK+2*j}:{MSK+2*j+1}], {KVR[i+j]}, v{th}", 4))
        for j in range(4):
            out.append((f"v_cndmask_b32 v{S+i+j}, v{vNINF}, v{S+i+j}, s[{MSK+2*j}:{MSK+2*j+1}]", 4))
    return out

def cvt_group(S, P, lo, hi):
    return [(f"v_cvt_pk_bf16_f32 v{P+j}, v{S+2*j}, v{S+2*j+1}", 4) for j in range(lo, hi)]

def qk(S, F, Q, NM):
    out = []
    for c in range(8):
        C = f"v[{NM}:{NM+15}]" if c == 0 else f"v[{S}:{S+15}]"
        out.append(f"v_mfma_f32_32x32x16_bf16 v[{S}:{S+15}], a[{F+4*c}:{F+4*c+3}], a[{Q+4*c}:{Q+4*c+3}], {C}")
    return out

def pv(O, F, P):
    out = []
    for j in range(8):
        ks, db = j >> 2, j & 3
        out.append(f"v_mfma_f32_32x32x16_bf16 a[{O+16*db}:{O+16*db+15}], a[{F+4*j}:{F+4*j+3}], v[{P+4*ks}:{P+4*ks+3}], a[{O+16*db}:{O+16*db+15}]")
    return out

def rdK(F, c, vb, off=0): return f"ds_read_b128 a[{F+4*c}:{F+4*c+3}], v{vb} offset:{off + c*1024}"
def rdV(F, j, vb, off=0):
    ks, db = j >> 2, j & 3
    return f"ds_read_b128 a[{F+4*j}:{F+4*j+3}], v{vb} offset:{off + 8192 + (db*2 + ks)*1024}"

DBG = ""
PREF = True
SPF, sPFo, vDUM = 16, 89, 60
def dma_ld(u): return f"buffer_load_dwordx4 v{vL16}, s[{SKV}:{SKV+3}], s{sDoff} offen offset:{u*1024} lds"
def dma_adv():
    return ["s_add_u32 m0, m0, 16384", "s_and_b32 m0, m0, 0x1ffff", f"s_add_u32 s{sDoff}, s{sDoff}, 16384"]

def softmax_items(S, L, regs, lo, hi, masks=None):
    E = {}; items = []
    hi0 = hi
    last_add = [None, None]
    for n, r in enumerate(regs):
        hi_r = lo + (hi0 - lo) * (n + 1) // len(regs)
        hi = max(hi_r, lo)
        e = Item(f"v_exp_f32 v{S+r}, v{S+r}", 2, lo, hi, deps=[masks.get(r) if masks else None])
        E[r] = e; items.append(e)
        a = Item(f"v_add_f32 v{L[n & 1]}, v{L[n & 1]}, v{S+r}", 1, lo, hi + 2, deps=[e], after=[last_add[n & 1]])
        last_add[n & 1] = a; items.append(a)
    return E, items

def mask_items(S, th, lo, hi):
    M = {}; items = []
    prev = [None]*4
    for i in range(16):
        j = i & 3
        c = Item(f"v_cmp_le_i32 s[{MSK+2*j}:{MSK+2*j+1}], {KVR[i]}, v{th}", 1, lo, hi, deps=[prev[j]])
        m = Item(f"v_cndmask_b32 v{S+i}, v{vNINF}, v{S+i}, s[{MSK+2*j}:{MSK+2*j+1}]", 1, lo, hi, deps=[c])
        prev[j] = m; M[i] = m; items += [c, m]
    return M, items

def cvt_items(S, P, js, E, lo, hi):
    return [Item(f"v_cvt_pk_bf16_f32 v{P+j}, v{S+2*j}, v{S+2*j+1}", 1, lo, hi, deps=[E.get(2*j), E.get(2*j+1)]) for j in js]

KREADS = [set(("a", F0 + 4*c + q) for q in range(4)) for c in range(8)]
VREADS = [set(("a", F1 + 4*c + q) for q in range(4)) for c in range(8)]
NE1A = 4

def body(k, kind, masked):
    dual_pv = kind in ("DD", "DS")
    dual_qk = kind == "DD"
    L0n = (LA0, LA1) if dual_qk else (LC0, LC1)
    L1 = (LB0, LB1)
    k.C(f"---- body {kind} masked={masked}")
    if kind == "SE":
        for j in range(8): k.I(rdV(F0, j, vA0, 16384))
        for f in exp_group(S1, list(range(NE1A, 16)), L1): k.I(f[0])
        for f in cvt_group(S1, P1, 0, 8): k.I(f[0])
        k.I("s_waitcnt lgkmcnt(8)")
        for m in pv(OB, F1, P0): k.I(m)
        k.I("s_waitcnt lgkmcnt(0)")
        for m in pv(OB, F0, P1): k.I(m)
        return
    items = []; pre = {}
    if kind == "DD":   mf = qk(S0, F0, QA, NMA) + pv(OA, F1, P0) + qk(S1, F0, QB, NMB) + pv(OB, F1, P1)
    elif kind == "DS": mf = qk(S0, F0, QB, NMB) + pv(OA, F1, P0) + qk(S1, F0, QB, NMB) + pv(OB, F1, P1)
    else:              mf = qk(S0, F0, QB, NMB) + pv(OB, F1, P0) + qk(S1, F0, QB, NMB) + pv(OB, F1, P1)
    E1b, it = softmax_items(S1, L1, list(range(NE1A, 16)), 0, 12); items += it
    items += cvt_items(S1, P1, range(0, 8), E1b, 0, 15)
    M0 = M1 = None
    if masked:
        M0, it = mask_items(S0, vTH0, 10, 22); items += it
        if kind != "DD":
            M1, it = mask_items(S1, vTH1, 26, 31); items += it
    E0, it = softmax_items(S0, L0n, list(range(16)), 10, 28, M0); items += it
    items += cvt_items(S0, P0, range(0, 4), E0, 12, 31)
    items += cvt_items(S0, P0, range(4, 8), E0, 16, 31)
    E1a, it = softmax_items(S1, L1, list(range(0, NE1A)), 26, 30, M1); items += it
    BAR = 19
    def chain(lst, after0=None):
        prev = after0
        for x in lst:
            if prev is not None: x.after.append(prev)
            items.append(x); prev = x
        return prev
    mid = []
    if kind == "DD":
        vm = 16
    elif kind == "DS":
        mid = [Item(rdK(F0, j, vA1), 1, j, j + 4, prio=3) for j in range(8)]
        vm = 12
    else:
        mid = [Item(rdK(F0, j, vA1, 16384), 1, j, j + 4, prio=3) for j in range(8)]
        mid += [Item(rdV(F1, j, vA0, 16384), 1, 8 + j, min(8 + j + 1, 16), prio=3) for j in range(8)]
        vm = 8
    chain(mid)
    pre[BAR] = [f"s_waitcnt vmcnt({vm}) lgkmcnt(0)", "s_barrier"]
    if kind == "DD":   kb, ko, vb, vo = vA1, 0, vA2, 0
    elif kind == "DS": kb, ko, vb, vo = vA2, 0, vA0, 0
    else:              kb, ko, vb, vo = vA2, 0, vA1, 0
    tailK = [Item(rdK(F0, j, kb, ko), 1, max(BAR, 16 + j), max(BAR, 16 + j) + 2, prio=3) for j in range(8)]
    tailV = [Item(rdV(F1, j, vb, vo), 1, 24 + j, 24 + j if j > 3 else 27, prio=3) for j in range(8)]
    addr_pre = []
    if kind == "DS":
        a0 = Item(f"v_add_u32 v{vA0}, 0x4000, v{vA0}", 1, 0, 15); a1 = Item(f"v_and_b32 v{vA0}, 0x1ffff, v{vA0}", 1, 0, 17, deps=[a0])
        c1 = Item(f"v_add_u32 v{vA2}, 0x4000, v{vA1}", 1, 0, 15); c2 = Item(f"v_and_b32 v{vA2}, 0x1ffff, v{vA2}", 1, 0, 17, deps=[c1])
        items += [a0, a1, c1, c2]
        for x in tailK: x.deps.append(c2)
        for x in tailV: x.deps.append(a1)
    last = chain(tailK + tailV)
    nblk = 2 if kind == "SS" else 1
    dl = []
    g0 = BAR
    for blk in range(nblk):
        for u in range(4): dl.append(Item(dma_ld(u), 1, min(g0 + blk*6 + u, 31), min(g0 + blk*6 + u + 1, 31)))
        for t in dma_adv(): dl.append(Item(t, 1, BAR, min(g0 + blk*6 + 5, 31)))
    chain(dl)
    if kind == "DD" and not masked and PREF:
        p1 = Item(f"buffer_load_dwordx4 v[{vDUM}:{vDUM+3}], v{vL16}, s[{SPF}:{SPF+3}], s{sPFo} offen", 1, 2, 12); items.append(p1)
        items.append(Item(f"s_add_u32 s{sPFo}, s{sPFo}, 1024", 1, 3, 15, after=[p1]))
    if kind == "DD":
        post = [f"v_mov_b32 v{vA0}, v{vA2}", f"v_mov_b32 v{vA2}, v{vA1}", f"v_add_u32 v{vA1}, 0x4000, v{vA1}", f"v_and_b32 v{vA1}, 0x1ffff, v{vA1}"]
    elif kind == "DS":
        post = [f"v_mov_b32 v{vA1}, v{vA2}", f"v_add_u32 v{vA2}, 0x8000, v{vA2}", f"v_and_b32 v{vA2}, 0x1ffff, v{vA2}"]
    else:
        post = [f"v_mov_b32 v{vA0}, v{vA1}", f"v_mov_b32 v{vA1}, v{vA2}", f"v_add_u32 v{vA2}, 0x8000, v{vA2}", f"v_and_b32 v{vA2}, 0x1ffff, v{vA2}"]
    if masked:
        if kind == "DD": items.append(Item(f"v_subrev_u32 v{vTH0}, 32, v{vTH0}", 1, 23, 31))
        else:
            items.append(Item(f"v_subrev_u32 v{vTH0}, 64, v{vTH0}", 1, 23, 31))
            post.append(f"v_subrev_u32 v{vTH1}, 64, v{vTH1}")
    seq, load = schedule(mf, items, cap=CAP, pre=pre)
    seq += post
    seq, outst = insert_lgkm_waits(seq, KREADS + VREADS, age=AGE, init_age=[-12 + j*5//8 for j in range(8)] + [-7 + j for j in range(8)])
    assert outst == KREADS + VREADS, [sorted(o)[0] for o in outst]
    if VERBOSE: print(kind, masked, "gap loads", load, "sum", sum(load) + len(post), "instrs", len(seq))
    for t in seq: k.I(t)

AGE = 4
CAP = 6
VERBOSE = True
def loop(k, name, kind, masked):
    k.I(f"s_sub_u32 s{sCnt}, s{sCnt}, 1")
    k.I(f"s_cbranch_scc1 {name}_end")
    k.L(name)
    body(k, kind, masked)
    k.I(f"s_sub_u32 s{sCnt}, s{sCnt}, 1")
    k.I(f"s_cbranch_scc0 {name}")
    k.L(name + "_end")

def epilogue(k, O, Lregs, sQ, flagbit, store_flags):
    I = k.I
    t = vT
    I(f"v_add_f32 v{t}, v{Lregs[0]}, v{Lregs[1]}")
    for r in Lregs[2:]: I(f"v_add_f32 v{t}, v{t}, v{r}")
    I(f"v_mov_b32 v{t+1}, v{t}")
    I(f"v_permlane32_swap_b32 v{t}, v{t+1}")
    I(f"v_add_f32 v{t}, v{t}, v{t+1}")
    I(f"v_rcp_f32 v{t+1}, v{t}")
    I(f"v_mov_b32 v{t+2}, 0")
    I(f"v_mov_b32 v{t+3}, 0")
    for c in range(8):
        db, ip = c >> 1, c & 1
        b = t + 8 + (c & 1)*12
        for j in range(8): I(f"v_accvgpr_read_b32 v{b+j}, a{O+16*db+8*ip+j}")
        for j in range(8): I(f"v_mul_f32 v{b+j}, v{b+j}, v{t+1}")
        for j in range(8): I(f"v_fmac_f32 v{t+2}, v{b+j}, v{t+3}")
        for j in range(4): I(f"v_cvt_pk_bf16_f32 v{b+8+j}, v{b+2*j}, v{b+2*j+1}")
        I(f"s_add_u32 s{sT}, s{sQ}, {c*1024}")
        I(f"buffer_store_dwordx4 v[{b+8}:{b+11}], v{vL16}, s[{SCTX}:{SCTX+3}], s{sT} offen {store_flags}")
    I(f"s_mov_b32 s{sT}, 0x5d800000")
    I(f"v_cmp_nle_f32 vcc, v{t}, s{sT}") if False else None
    I(f"v_mov_b32 v{t+4}, s{sT}")
    I(f"v_cmp_nle_f32 s[{MSK}:{MSK+1}], v{t}, v{t+4}")
    I(f"v_mov_b32 v{t+4}, 0x35800000")
    I(f"v_cmp_nge_f32 s[{MSK+2}:{MSK+3}], v{t}, v{t+4}")
    I(f"v_cmp_neq_f32 s[{MSK+4}:{MSK+5}], 0, v{t+2}")
    I(f"s_or_b64 s[{MSK}:{MSK+1}], s[{MSK}:{MSK+1}], s[{MSK+2}:{MSK+3}]")
    I(f"s_or_b64 s[{MSK}:{MSK+1}], s[{MSK}:{MSK+1}], s[{MSK+4}:{MSK+5}]")
    I(f"s_cmp_lg_u64 s[{MSK}:{MSK+1}], 0")
    I(f"s_cselect_b32 s{sT}, {flagbit}, 0")
    I(f"s_or_b32 s{sFlag}, s{sFlag}, s{sT}")

def slow_path(k, name, O, Q, sQ, sQblk_expr, store_flags, force=False):
    I = k.I
    m, l, mn, al, t = vT, vT+1, vT+2, vT+3, vT+4
    sQblk_expr()
    I(f"s_mov_b32 s{sDoff}, 0")
    I(f"v_mov_b32 v{m}, 0xff7fffff")
    I(f"v_mov_b32 v{l}, 0")
    for r in range(64): I(f"v_accvgpr_write_b32 a{O+r}, 0")
    I(f"v_and_b32 v{vTH0}, 31, v{LANE}")
    I(f"v_lshrrev_b32 v{t}, 5, v{LANE}")
    I(f"v_lshlrev_b32 v{t}, 2, v{t}")
    I(f"v_sub_u32 v{vTH0}, v{vTH0}, v{t}")
    I(f"s_lshl_b32 s{sT}, s{sCnt}, 5")
    I(f"v_add_u32 v{vTH0}, s{sT}, v{vTH0}")
    I(f"s_add_u32 s{sCnt}, s{sCnt}, 1")
    k.L(name)
    for c in range(8):
        I(f"s_add_u32 s{sT}, s{sDoff}, {c*1024}")
        I(f"buffer_load_dwordx4 a[{F0+4*c}:{F0+4*c+3}], v{vL16}, s[{SKV}:{SKV+3}], s{sT} offen")
    for j in range(8):
        ks, db = j >> 2, j & 3
        I(f"s_add_u32 s{sT}, s{sDoff}, {8192 + (db*2+ks)*1024}")
        I(f"buffer_load_dwordx4 a[{F1+4*j}:{F1+4*j+3}], v{vL16}, s[{SKV}:{SKV+3}], s{sT} offen")
    I("s_waitcnt vmcnt(8)")
    for c in range(8):
        C = "0" if c == 0 else f"v[{S0}:{S0+15}]"
        I(f"v_mfma_f32_32x32x16_bf16 v[{S0}:{S0+15}], a[{F0+4*c}:{F0+4*c+3}], a[{Q+4*c}:{Q+4*c+3}], {C}")
    for f in mask_group(S0, vTH0): I(f[0])
    I(f"v_max3_f32 v{mn}, v{S0}, v{S0+1}, v{m}")
    for r in range(2, 16, 2): I(f"v_max3_f32 v{mn}, v{S0+r}, v{S0+r+1}, v{mn}")
    I(f"v_mov_b32 v{t}, v{mn}")
    I(f"v_permlane32_swap_b32 v{mn}, v{t}")
    I(f"v_max_f32 v{mn}, v{mn}, v{t}")
    I(f"v_sub_f32 v{al}, v{m}, v{mn}")
    I(f"v_exp_f32 v{al}, v{al}")
    I(f"v_mov_b32 v{m}, v{mn}")
    I(f"v_mul_f32 v{l}, v{l}, v{al}")
    for r in range(16):
        I(f"v_sub_f32 v{S0+r}, v{S0+r}, v{mn}")
        I(f"v_exp_f32 v{S0+r}, v{S0+r}")
    for r in range(16): I(f"v_add_f32 v{l}, v{l}, v{S0+r}")
    for j in range(8): I(f"v_cvt_pk_bf16_f32 v{P0+j}, v{S0+2*j}, v{S0+2*j+1}")
    for r in range(64):
        I(f"v_accvgpr_read_b32 v{t}, a{O+r}")
        I(f"v_mul_f32 v{t}, v{t}, v{al}")
        I(f"v_accvgpr_write_b32 a{O+r}, v{t}")
    I("s_waitcnt vmcnt(0)")
    for mm in pv(O, F1, P0): I(mm)
    I(f"s_add_u32 s{sDoff}, s{sDoff}, 16384")
    I(f"v_subrev_u32 v{vTH0}, 32, v{vTH0}")
    I(f"s_sub_u32 s{sCnt}, s{sCnt}, 1")
    I(f"s_cmp_lg_u32 s{sCnt}, 0")
    I("s_nop 15")
    I(f"s_cbranch_scc1 {name}")
    I(f"v_mov_b32 v{LA0}, v{l}")
    I(f"v_mov_b32 v{LA1}, 0")
    epilogue(k, O, (LA0, LA1), sQ, 0, store_flags)

def gen_k2(diag=False, store_flags="sc1", force_slow=0, dbg=""):
    global DBG
    DBG = dbg
    k = Kern("k2_kernel")
    I = k.I
    I("s_cmp_ge_u32 s2, 256")
    I("s_cbranch_scc1 Lk2_end")
    stamp_begin(k, diag)
    I(f"s_load_dwordx2 s[4:5], s[0:1], {KA['wq']}")
    I(f"s_load_dwordx2 s[14:15], s[0:1], {KA['ws']}")
    I(f"s_load_dwordx2 s[6:7], s[0:1], {KA['wo']}")
    I(f"s_load_dwordx4 s[8:11], s[0:1], {KA['wg']}")
    I(f"s_load_dwordx2 s[12:13], s[0:1], {KA['wd']}")
    I("v_lshrrev_b32 v1, 6, v0")
    I(f"v_and_b32 v{LANE}, 63, v0")
    I(f"v_readfirstlane_b32 s{sW}, v1")
    I(f"s_and_b32 s{sT}, s2, 7")
    I(f"s_lshr_b32 s{sT2}, s2, 3")
    I(f"s_and_b32 s{sH}, s{sT2}, 3")
    I(f"s_lshl_b32 s{sT}, s{sT}, 2")
    I(f"s_add_u32 s{sH}, s{sH}, s{sT}")
    I(f"s_lshr_b32 s{sI}, s2, 5")
    I("s_waitcnt lgkmcnt(0)")
    srd(k, SXN, 14, 15, XN_SIZE, XN_OFF)
    srd(k, SWQ, 4, 5, 640*4096*2)
    I(f"s_lshl_b32 s{sT}, s{sH}, 20")
    I(f"s_add_u32 s{sT}, s{sT}, {KV_OFF}")
    I(f"s_add_u32 s{SKV}, s14, s{sT}")
    I(f"s_addc_u32 s{SKV+1}, s15, 0")
    I(f"s_lshl_b32 s{sT}, s{sI}, 16")
    I(f"s_sub_u32 s{SKV+2}, {64*16384}, s{sT}")
    I(f"s_mov_b32 s{SKV+3}, 0x20000")
    srd(k, SCTX, 14, 15, CTX_SIZE, CTX_OFF)
    t0, t1 = vT, vT + 1
    I(f"v_lshlrev_b32 v{vL16}, 4, v{LANE}")
    I(f"v_lshrrev_b32 v{t0}, 4, v{LANE}")
    I(f"v_lshlrev_b32 v{vWQ}, 13, v{t0}")
    I(f"v_lshlrev_b32 v{t0}, 2, v{t0}")
    I(f"v_and_b32 v{t1}, 15, v{LANE}")
    I(f"v_xor_b32 v{t0}, v{t0}, v{t1}")
    I(f"v_lshl_add_u32 v{vWQ}, v{t0}, 4, v{vWQ}")
    I(f"v_lshrrev_b32 v{t1}, 5, v{LANE}")
    I(f"v_bfe_u32 v{t0}, v{LANE}, 2, 2")
    I(f"v_lshl_add_u32 v{t1}, v{t1}, 3, v{t0}")
    I(f"v_lshlrev_b32 v{t1}, 8, v{t1}")
    I(f"v_bfe_u32 v{t0+2}, v{LANE}, 4, 1")
    I(f"v_lshl_add_u32 v{t1}, v{t0+2}, 5, v{t1}")
    I(f"v_and_b32 v{t0+2}, 3, v{LANE}")
    I(f"v_lshl_add_u32 v{t1}, v{t0+2}, 3, v{t1}")
    for db in range(4):
        I(f"v_xor_b32 v{t0+2}, {db}, v{t0}")
        I(f"v_lshl_add_u32 v{vQ+db}, v{t0+2}, 6, v{t1}")
    I(f"v_mov_b32 v{vNINF}, 0xff800000")
    I(f"s_lshl_b32 s{sWL}, s{sW}, 12")
    sQblkA, sQblkB = 56, 57
    I(f"s_lshl_b32 s{sT}, s{sI}, 2")
    I(f"s_add_u32 s{sQblkA}, s{sT}, s{sW}")
    I(f"s_sub_u32 s{sQblkB}, 60, s{sT}")
    I(f"s_add_u32 s{sQblkB}, s{sQblkB}, s{sW}")
    sXA, sXB, sWq = 58, 59, 60+32
    sXA, sXB, sWq = 58, 59, 88
    I(f"s_mul_i32 s{sXA}, s{sQblkA}, 40960")
    I(f"s_mul_i32 s{sXB}, s{sQblkB}, 40960")
    for sq, sb in ((sQA, sQblkA), (sQB, sQblkB)):
        I(f"s_lshl_b32 s{sq}, s{sb}, 5")
        I(f"s_add_u32 s{sq}, s{sq}, s{sH}")
        I(f"s_lshl_b32 s{sq}, s{sq}, 13")
    I(f"s_lshl_b32 s{sWq}, s{sW}, 17")
    I(f"s_lshl_b32 s{sT}, s{sH}, 8")
    I(f"s_add_u32 s{sWq}, s{sWq}, s{sT}")
    I(f"s_mov_b32 s{sFlag}, {force_slow}")
    XR = 0
    QACC = 128
    def xload(s):
        for T, sx in ((0, sXA), (1, sXB)):
            a = XR + ((2*s + T) % 32)*4
            I(f"s_add_u32 s{sT}, s{sx}, {s*1024}")
            I(f"buffer_load_dwordx4 a[{a}:{a+3}], v{vL16}, s[{SXN}:{SXN+3}], s{sT} offen", tag=f"x{s}")
    def wdma_one(g, u):
        I(f"s_add_u32 m0, s{sWL}, {(g % 8)*16384 + u*1024}")
        I(f"s_add_u32 s{sT}, s{sWq}, {(64*g + 4*u)*8192}")
        I(f"buffer_load_dwordx4 v{vWQ}, s[{SWQ}:{SWQ+3}], s{sT} offen lds", tag=f"w{g}")
    def kv_one(blk, u):
        I(f"s_add_u32 m0, s{sWL}, {((blk + 10) % 8)*16384}")
        I(f"s_add_u32 s{sT}, s{sWL}, {blk*16384}")
        I(f"buffer_load_dwordx4 v{vL16}, s[{SKV}:{SKV+3}], s{sT} offen offset:{u*1024} lds", tag=f"kv{blk}")
    def kv_closures(blk): return [lambda u=u: kv_one(blk, u) for u in range(4)]
    def wread(n):
        g, s = n >> 2, n & 3
        F = F0 if n % 2 == 0 else F1
        F = F0 + (n % 2)*16
        off = (g % 8)*16384 + s*4096
        hi = off >= 65536
        for db in range(4):
            vb = vQ + db
            o = off
            if hi: vb = vT + 8 + db; o = off - 65536
            I(f"ds_read_b64_tr_b16 a[{F+4*db}:{F+4*db+1}], v{vb} offset:{o}", tag=f"r{n}")
            I(f"ds_read_b64_tr_b16 a[{F+4*db+2}:{F+4*db+3}], v{vb} offset:{o+1024}", tag=f"r{n}")
    for db in range(4): I(f"v_add_u32 v{vT+8+db}, 0x10000, v{vQ+db}")
    mark(k, diag, 0)
    for u in range(4): wdma_one(0, u)
    for s in range(0, 4): xload(s)
    for u in range(4): wdma_one(1, u)
    for s in range(4, 8): xload(s)
    for g in (2, 3):
        for u in range(4): wdma_one(g, u)
    gapq = []
    for s in range(8, 16): gapq.append(lambda s=s: xload(s))
    for g in range(4, 8):
        for u in range(4): gapq.append(lambda g=g, u=u: wdma_one(g, u))
    k.wait_vm("w0", expect=4)
    I("s_barrier")
    mark(k, diag, 1)
    wread(0)
    for n in range(40):
        g, s = n >> 2, n & 3
        if s == 2:
            if g + 1 < 10: k.wait_vm(f"w{g+1}", expect=4)
            I("s_barrier")
            if g >= 1:
                q = g - 1 + 8
                if q < 10:
                    for u in range(4): gapq.append(lambda q=q, u=u: wdma_one(q, u))
                elif g >= 7:
                    gapq += kv_closures(g - 7)
        if n + 1 < 40: wread(n + 1)
        k.wait_vm(f"x{n}", expect=2)
        k.wait_lg(f"r{n}")
        F = F0 + (n % 2)*16
        for db in range(4):
            for T in range(2):
                d = QACC + (T*4 + db)*16
                a = XR + ((2*n + T) % 32)*4
                c = "0" if n == 0 else f"v[{d}:{d+15}]"
                I(f"v_mfma_f32_32x32x16_bf16 v[{d}:{d+15}], a[{F+4*db}:{F+4*db+3}], a[{a}:{a+3}], {c}")
                if gapq: gapq.pop(0)()
        if n + 16 < 40: gapq.append(lambda s=n+16: xload(s))
    while gapq: gapq.pop(0)()
    mark(k, diag, 2)
    I("s_barrier")
    lateq = []
    for blk in range(3, 8): lateq += kv_closures(blk)
    I(f"s_mov_b32 s{sT}, {f32bits(QSCALE)}")
    for T, Q in ((0, QA), (1, QB)):
        for c in range(8):
            src = QACC + (T*4 + (c >> 1))*16 + 8*(c & 1)
            for j in range(8): I(f"v_mul_f32 v{src+j}, s{sT}, v{src+j}")
            for j in range(4): I(f"v_cvt_pk_bf16_f32 v{vT+j}, v{src+2*j}, v{src+2*j+1}")
            for j in range(4): I(f"v_accvgpr_write_b32 a{Q+4*c+j}, v{vT+j}")
            I(f"s_mov_b32 s{sT2}, s{sT}")
            if lateq: lateq.pop(0)(); I(f"s_mov_b32 s{sT}, s{sT2}")
    for r in range(128):
        I(f"v_accvgpr_write_b32 a{r}, 0")
        if r % 16 == 15 and lateq: lateq.pop(0)()
    while lateq: lateq.pop(0)()
    I(f"s_add_u32 m0, s{sWL}, {((8 + 10) % 8)*16384}")
    I(f"s_add_u32 s{sDoff}, s{sWL}, {8*16384}")
    for r in (LA0, LA1, LB0, LB1, LC0, LC1): I(f"v_mov_b32 v{r}, 0")
    I(f"v_and_b32 v{t0}, 31, v{LANE}")
    I(f"v_lshrrev_b32 v{t1}, 5, v{LANE}")
    I(f"v_lshlrev_b32 v{t1}, 2, v{t1}")
    I(f"v_sub_u32 v{t0}, v{t0}, v{t1}")
    I(f"s_lshl_b32 s{sT}, s{sQblkA}, 5")
    I(f"v_add_u32 v{vTH0}, s{sT}, v{t0}")
    I(f"v_mov_b32 v{vTHA}, v{vTH0}")
    I(f"s_lshl_b32 s{sT}, s{sQblkB}, 5")
    I(f"v_add_u32 v{vTH1}, s{sT}, v{t0}")
    I(f"v_mov_b32 v{vTHB}, v{vTH1}")
    mark(k, diag, 3)
    k.wait_vm("kv2", expect=4)
    I("s_barrier")
    I(f"v_add_u32 v{vA0}, {(10 % 8)*16384}, v{vL16}")
    I(f"v_add_u32 v{vA2}, {(11 % 8)*16384}, v{vL16}")
    I(f"v_add_u32 v{vA1}, {(12 % 8)*16384}, v{vL16}")
    for c in range(8): I(rdK(F0, c, vA0))
    I("s_waitcnt lgkmcnt(0)")
    for S, Q in ((S0, QA), (S1, QB)):
        for c in range(8):
            C = "0" if c == 0 else f"v[{S}:{S+15}]"
            I(f"v_mfma_f32_32x32x16_bf16 v[{S}:{S+15}], a[{F0+4*c}:{F0+4*c+3}], a[{Q+4*c}:{Q+4*c+3}], {C}")
    for c in range(8): I(rdK(F0, c, vA2))
    for j in range(8): I(rdV(F1, j, vA0))
    for S, TH, NM in ((S0, vTH0, NMA), (S1, vTH1, NMB)):
        for f in mask_group(S, TH): I(f[0])
        I(f"v_max3_f32 v{t0}, v{S}, v{S+1}, v{S+2}")
        for r in range(3, 15, 2): I(f"v_max3_f32 v{t0}, v{S+r}, v{S+r+1}, v{t0}")
        I(f"v_max_f32 v{t0}, v{t0}, v{S+15}")
        I(f"v_mov_b32 v{t1}, v{t0}")
        I(f"v_permlane32_swap_b32 v{t0}, v{t1}")
        I(f"v_max_f32 v{t0}, v{t0}, v{t1}")
        for r in range(16): I(f"v_sub_f32 v{S+r}, v{S+r}, v{t0}")
        for r in range(16): I(f"v_sub_f32 v{NM+r}, 0, v{t0}")
    for f in exp_group(S0, list(range(16)), (LA0, LA1)): I(f[0])
    for f in cvt_group(S0, P0, 0, 8): I(f[0])
    for f in exp_group(S1, list(range(NE1A)), (LB0, LB1)): I(f[0])
    mark(k, diag, 4)
    PFT = {7: (6, 4096*640*2, 0, 27), 4: (6, 4096*640*2, 3456, 15), 5: (8, 640*1728*2, 0, 19), 6: (10, 640*1728*2, 0, 23),
           3: (12, 640*1728*2, 0, 11), 2: (12, 640*1728*2, 1408, 7)}
    I(f"s_mov_b32 s{SPF}, s6")
    I(f"s_mov_b32 s{SPF+1}, s7")
    I(f"s_mov_b32 s{SPF+2}, 0")
    I(f"s_mov_b32 s{SPF+3}, 0x20000")
    I(f"s_mov_b32 s{sPFo}, 0")
    I(f"s_lshl_b32 s{sT2}, s{sH}, 2")
    I(f"s_add_u32 s{sT2}, s{sT2}, s{sW}")
    for ii, (lo, size, start, iters) in PFT.items():
        I(f"s_cmp_eq_u32 s{sI}, {ii}")
        I(f"s_cselect_b32 s{SPF}, s{lo}, s{SPF}")
        I(f"s_cselect_b32 s{SPF+1}, s{lo+1}, s{SPF+1}")
        I(f"s_cselect_b32 s{SPF+2}, {size}, s{SPF+2}")
        I(f"s_mul_i32 s{sT}, s{sT2}, {iters*1024}")
        I(f"s_add_u32 s{sT}, s{sT}, {start*1024}")
        I(f"s_cmp_eq_u32 s{sI}, {ii}")
        I(f"s_cselect_b32 s{sPFo}, s{sT}, s{sPFo}")
    loops = []
    I(f"s_lshl_b32 s{sCnt}, s{sI}, 2")
    I(f"s_sub_u32 s{sCnt}, s{sCnt}, 1")
    I(f"s_max_i32 s{sCnt}, s{sCnt}, 0")
    loop(k, "Lk2_dd", "DD", False)
    mark(k, diag, 5)
    I(f"s_cmp_eq_u32 s{sI}, 0")
    I(f"s_cselect_b32 s{sCnt}, 3, 4")
    I(f"s_lshl_b32 s{sT}, s{sI}, 2")
    I(f"s_max_u32 s{sT}, s{sT}, 1")
    I(f"s_lshl_b32 s{sT}, s{sT}, 5")
    I(f"v_subrev_u32 v{vTH0}, s{sT}, v{vTHA}")
    loop(k, "Lk2_ddm", "DD", True)
    mark(k, diag, 6)
    I(f"s_lshl_b32 s{sT}, s{sI}, 7")
    I(f"s_add_u32 s{sT}, s{sT}, 128")
    I(f"v_subrev_u32 v{vTH0}, s{sT}, v{vTHB}")
    I(f"v_subrev_u32 v{vTH1}, 32, v{vTH0}")
    i0 = len(k.items)
    body(k, "DS", True)
    ds_rng = (i0, len(k.items))
    mark(k, diag, 7)
    I(f"s_lshl_b32 s{sT}, s{sI}, 2")
    I(f"s_sub_u32 s{sCnt}, 27, s{sT}")
    I(f"s_max_i32 s{sCnt}, s{sCnt}, 0")
    loop(k, "Lk2_ss", "SS", False)
    mark(k, diag, 8)
    I(f"s_cmp_eq_u32 s{sI}, 7")
    I(f"s_cselect_b32 s{sCnt}, 1, 2")
    I(f"s_lshl_b32 s{sT}, s{sI}, 2")
    I(f"s_sub_u32 s{sT2}, 60, s{sT}")
    I(f"s_add_u32 s{sT}, s{sT}, 6")
    I(f"s_max_u32 s{sT}, s{sT}, s{sT2}")
    I(f"s_lshl_b32 s{sT}, s{sT}, 5")
    I(f"v_subrev_u32 v{vTH0}, s{sT}, v{vTHB}")
    I(f"v_subrev_u32 v{vTH1}, 32, v{vTH0}")
    loop(k, "Lk2_ssm", "SS", True)
    mark(k, diag, 9)
    body(k, "SE", False)
    mark(k, diag, 10)
    SWO, SWOT = 16, 20
    vWO, vWOr, WOF = S0, S0 + 5, S1
    I("s_barrier")
    srd(k, SWO, 6, 7, 4096*640*2)
    srd(k, SWOT, 14, 15, WOT_SIZE, WOT_OFF)
    I(f"s_mov_b32 s{sCnt}, 1639")
    I(f"s_mul_i32 s{sT2}, s{sW}, 320")
    for u in range(5):
        I(f"v_add_u32 v{t0}, s{sT2}, v{LANE}")
        I(f"v_add_u32 v{t0}, {64*u}, v{t0}")
        I(f"v_mul_lo_u32 v{t1}, v{t0}, s{sCnt}")
        I(f"v_lshrrev_b32 v{t1}, 16, v{t1}")
        I(f"v_mul_u32_u24 v{vWO+u}, 40, v{t1}")
        I(f"v_sub_u32 v{t0}, v{t0}, v{vWO+u}")
        I(f"v_mul_u32_u24 v{t1}, 1280, v{t1}")
        I(f"v_lshl_add_u32 v{vWO+u}, v{t0}, 4, v{t1}")
    I(f"s_lshr_b32 s{sT}, s2, 1")
    I(f"s_mul_i32 s{sDoff}, s{sT}, {32*1280}")
    I(f"s_and_b32 s{sT}, s2, 1")
    I(f"s_mul_i32 s{sT}, s{sT}, 640")
    I(f"s_add_u32 s{sDoff}, s{sDoff}, s{sT}")
    I(f"s_mul_i32 s{sT2}, s{sW}, 5120")
    for u in range(5):
        I(f"s_add_u32 m0, s{sT2}, {u*1024}")
        I(f"buffer_load_dwordx4 v{vWO+u}, s[{SWO}:{SWO+3}], s{sDoff} offen lds", tag="wo")
    I(f"v_lshrrev_b32 v{t0}, 5, v{LANE}")
    I(f"v_lshlrev_b32 v{t0}, 4, v{t0}")
    I(f"v_bfe_u32 v{t1}, v{LANE}, 4, 1")
    I(f"v_lshl_add_u32 v{t0}, v{t1}, 2, v{t0}")
    I(f"v_bfe_u32 v{t1}, v{LANE}, 2, 2")
    I(f"v_add_u32 v{t0}, v{t0}, v{t1}")
    I(f"v_mul_u32_u24 v{vWOr}, 640, v{t0}")
    I(f"v_and_b32 v{t1}, 3, v{LANE}")
    I(f"v_lshl_add_u32 v{vWOr}, v{t1}, 3, v{vWOr}")
    I(f"s_mul_i32 s{sT}, s{sW}, 160")
    I(f"v_add_u32 v{vWOr}, s{sT}, v{vWOr}")
    epilogue(k, OA, (LA0, LA1), sQA, 1, store_flags)
    epilogue(k, OB, (LB0, LB1, LC0, LC1), sQB, 2, store_flags)
    k.wait_vm("wo", expect=5)
    I("s_barrier")
    for nt in range(5):
        I(f"ds_read_b64_tr_b16 v[{WOF+4*nt}:{WOF+4*nt+1}], v{vWOr} offset:{nt*32}")
        I(f"ds_read_b64_tr_b16 v[{WOF+4*nt+2}:{WOF+4*nt+3}], v{vWOr} offset:{nt*32 + 8*640}")
    I(f"s_and_b32 s{sDoff}, s2, 1")
    I(f"s_lshl_b32 s{sDoff}, s{sDoff}, 2")
    I(f"s_add_u32 s{sDoff}, s{sDoff}, s{sW}")
    I(f"s_lshl_b32 s{sDoff}, s{sDoff}, 7")
    I(f"s_lshr_b32 s{sT}, s2, 1")
    I(f"s_add_u32 s{sDoff}, s{sDoff}, s{sT}")
    I(f"s_mul_i32 s{sDoff}, s{sDoff}, 5120")
    I("s_waitcnt lgkmcnt(0)")
    for nt in range(5):
        I(f"s_add_u32 s{sT}, s{sDoff}, {nt*1024}")
        I(f"buffer_store_dwordx4 v[{WOF+4*nt}:{WOF+4*nt+3}], v{vL16}, s[{SWOT}:{SWOT+3}], s{sT} offen {store_flags}")
    mark(k, diag, 11)
    I(f"s_bitcmp1_b32 s{sFlag}, 0")
    I("s_cbranch_scc0 Lk2_noslowA")
    I("s_waitcnt vmcnt(0)")
    slow_path(k, "Lk2_slowA", OA, QA, sQA, lambda: I(f"s_mov_b32 s{sCnt}, s{sQblkA}"), store_flags)
    k.L("Lk2_noslowA")
    I(f"s_bitcmp1_b32 s{sFlag}, 1")
    I("s_cbranch_scc0 Lk2_noslowB")
    I("s_waitcnt vmcnt(0)")
    slow_path(k, "Lk2_slowB", OB, QB, sQB, lambda: I(f"s_mov_b32 s{sCnt}, s{sQblkB}"), store_flags)
    k.L("Lk2_noslowB")
    dump_marks(k, diag, 1, 14, 15, 24)
    stamp_end(k, diag, 1, 14, 15, vtmp=24)
    k.L("Lk2_end")
    I("s_endpgm")
    k.fix_hazards()
    trace = []
    items = k.items
    lab = {it[:-1]: idx for idx, it in enumerate(items) if isinstance(it, str) and it.endswith(":")}
    idx = 0
    names = ["Lk2_dd", "Lk2_ddm", "Lk2_ss", "Lk2_ssm"]
    segs = []
    pos = 0
    for nm in names:
        a, b = lab[nm], lab[nm + "_end"]
        segs.append(items[pos:a]); segs.append(items[a:b]); segs.append(items[a:b]); pos = b
    segs.append(items[pos:lab["Lk2_noslowA"]])
    for s_ in segs: trace += s_
    pr = check_seq(trace, "k2") + check_waits(trace, "k2")
    trace2 = items[:lab["Lk2_dd"]] + items[lab["Lk2_dd_end"]:lab["Lk2_ss"]] + items[lab["Lk2_ss_end"]:lab["Lk2_noslowA"]]
    pr += check_seq(trace2, "k2z") + check_waits(trace2, "k2z")
    for p_ in pr[:20]: print(p_)
    print("k2 problems:", len(pr))
    return k, 256, 256, 131072
```

```python
from common import *

def gen_k3(diag=False, store_flags="", D=6, dbg="", kidx=2):
    k = Kern("k3_kernel")
    I = k.I
    I("s_cmp_ge_u32 s2, 256")
    I("s_cbranch_scc1 Lk3_end")
    stamp_begin(k, diag)
    I(f"s_load_dwordx2 s[4:5], s[0:1], {KA['x']}")
    I(f"s_load_dwordx2 s[6:7], s[0:1], {KA['wo']}")
    I(f"s_load_dwordx2 s[8:9], s[0:1], {KA['wr']}")
    I(f"s_load_dwordx2 s[14:15], s[0:1], {KA['ws']}")
    LANE = 2
    I("v_lshrrev_b32 v1, 6, v0")
    I(f"v_and_b32 v{LANE}, 63, v0")
    sW, sRT, sCT, sT, sT2, sCb, sWb, sL = 40, 41, 42, 43, 44, 45, 46, 47
    I(f"v_readfirstlane_b32 s{sW}, v1")
    I(f"s_and_b32 s{sT}, s2, 7")
    I(f"s_lshr_b32 s{sT2}, s2, 3")
    I(f"s_lshr_b32 s{sRT}, s{sT}, 1")
    I(f"s_lshl_b32 s{sRT}, s{sRT}, 3")
    I(f"s_lshr_b32 s{sCT}, s{sT2}, 2")
    I(f"s_add_u32 s{sRT}, s{sRT}, s{sCT}")
    I(f"s_and_b32 s{sCT}, s{sT}, 1")
    I(f"s_lshl_b32 s{sCT}, s{sCT}, 2")
    I(f"s_and_b32 s{sT2}, s{sT2}, 3")
    I(f"s_add_u32 s{sCT}, s{sCT}, s{sT2}")
    I("s_waitcnt lgkmcnt(0)")
    SX, SWO, SWR, SCTX, SH, SACC = 16, 20, 24, 28, 32, 36
    srd(k, SX, 4, 5, 2048*640*2)
    srd(k, SWO, 14, 15, WOT_SIZE, WOT_OFF)
    srd(k, SWR, 8, 9, 640*2)
    srd(k, SCTX, 14, 15, CTX_SIZE, CTX_OFF)
    srd(k, SH, 14, 15, H_SIZE, H_OFF)
    srd(k, SACC, 14, 15, ACC_SIZE, ACC_OFF)
    vC, vWD, vTR, t0, t1, t2 = 3, 4, 9, 10, 11, 12
    I(f"v_lshrrev_b32 v{t0}, 5, v{LANE}")
    I(f"v_lshlrev_b32 v{vC}, 10, v{t0}")
    I(f"v_bfe_u32 v{t0}, v{LANE}, 4, 1")
    I(f"v_lshl_add_u32 v{vC}, v{t0}, 9, v{vC}")
    I(f"v_and_b32 v{t0}, 15, v{LANE}")
    I(f"v_lshl_add_u32 v{vC}, v{t0}, 4, v{vC}")
    I(f"s_lshl_b32 s{sCb}, s{sRT}, 6")
    I(f"s_lshl_b32 s{sT}, s{sW}, 3")
    I(f"s_add_u32 s{sCb}, s{sCb}, s{sT}")
    I(f"s_lshl_b32 s{sCb}, s{sCb}, 13")
    I(f"s_lshl_b32 s{sWb}, s{sCT}, 7")
    I(f"s_lshl_b32 s{sT}, s{sW}, 5")
    I(f"s_add_u32 s{sWb}, s{sWb}, s{sT}")
    I(f"s_mul_i32 s{sWb}, s{sWb}, 5120")
    ACC, WF = 32, 112
    vLin = 17
    I(f"v_lshlrev_b32 v{vLin}, 4, v{LANE}")
    NS = D + 1
    def issue(t):
        cl = []
        for nt in range(5):
            def f(nt=nt):
                c, r = WREG[(t % NS, nt)]
                I(f"s_add_u32 s{sT}, s{sWb}, {t*5120 + (nt & ~3)*1024}") if nt in (0, 4) else None
                I(f"buffer_load_dwordx4 {c}[{r}:{r+3}], v{vLin}, s[{SWO}:{SWO+3}], s{sT} offen offset:{(nt & 3)*1024}", tag=f"s{t}")
            cl.append(f)
        for rs in range(4):
            def f(rs=rs):
                a = (t % NS)*16 + rs*4
                so = (t >> 2)*8192 + (t & 3)*2048 + (rs >> 1)*262144
                if rs % 2 == 0: I(f"s_add_u32 s{sT2}, s{sCb}, {so}")
                I(f"buffer_load_dwordx4 a[{a}:{a+3}], v{vC}, s[{SCTX}:{SCTX+3}], s{sT2} offen offset:{(rs & 1)*256}", tag=f"s{t}")
            cl.append(f)
        return cl
    WREG = {}
    nxt_a = NS*16; nxt_v = 176
    for sl in range(NS):
        for nt in range(5):
            if nxt_a + 4 <= 256: WREG[(sl, nt)] = ("a", nxt_a); nxt_a += 4
            else: WREG[(sl, nt)] = ("v", nxt_v); nxt_v += 4
    assert nxt_v <= 256
    vXo, XV, WRV = 13, 152, 162
    I(f"v_and_b32 v{t0}, 15, v{LANE}")
    I(f"s_lshl_b32 s{sT}, s{sRT}, 6")
    I(f"s_lshl_b32 s{sT2}, s{sW}, 4")
    I(f"s_add_u32 s{sT}, s{sT}, s{sT2}")
    I(f"v_add_u32 v{t0}, s{sT}, v{t0}")
    vRow = 14
    I(f"v_mov_b32 v{vRow}, v{t0}")
    I(f"v_mul_u32_u24 v{vXo}, 1280, v{t0}")
    I(f"v_lshrrev_b32 v{t1}, 4, v{LANE}")
    I(f"v_lshlrev_b32 v{t1}, 3, v{t1}")
    I(f"s_mul_i32 s{sT}, s{sCT}, 160")
    I(f"v_add_u32 v{t1}, s{sT}, v{t1}")
    I(f"v_add_u32 v{vXo}, v{vXo}, v{t1}")
    vWo = 15
    I(f"v_mov_b32 v{vWo}, v{t1}")
    for t in range(D):
        for f in issue(t): f()
    for nt in range(5):
        I(f"buffer_load_dwordx2 v[{XV+2*nt}:{XV+2*nt+1}], v{vXo}, s[{SX}:{SX+3}], 0 offen offset:{32*nt}", tag="xw")
        I(f"buffer_load_dwordx2 v[{WRV+2*nt}:{WRV+2*nt+1}], v{vWo}, s[{SWR}:{SWR+3}], 0 offen offset:{32*nt}", tag="xw")
    mark(k, diag, 0)
    for t in range(32):
        q = issue(t + D) if t + D < 32 else []
        k.wait_vm(f"s{t}", expect=9)
        n = 0
        for rs in range(4):
            for nt in range(5):
                d = ACC + (rs*5 + nt)*4
                a = (t % NS)*16 + rs*4
                c = "0" if t == 0 else f"v[{d}:{d+3}]"
                wc, wr_ = WREG[(t % NS, nt)]
                I(f"v_mfma_f32_16x16x32_bf16 v[{d}:{d+3}], {wc}[{wr_}:{wr_+3}], a[{a}:{a+3}], {c}")
                n += 1
                if q and n % 2 == 0: q.pop(0)()
        assert not q
        if t in (7, 15, 23): mark(k, diag, 1 + t//8)
    mark(k, diag, 4)
    vL = 16
    I(f"v_lshlrev_b32 v{vL}, 4, v{LANE}")
    I(f"s_mul_i32 s{sT}, s{sW}, 20480")
    I(f"v_add_u32 v{t0}, s{sT}, v{vL}")
    for rs in range(4):
        for nt in range(5):
            d = ACC + (rs*5 + nt)*4
            I(f"ds_write_b128 v{t0}, v[{d}:{d+3}] offset:{(rs*5+nt)*1024}")
    I("s_waitcnt lgkmcnt(0)")
    I("s_barrier")
    I(f"s_mul_i32 s{sT}, s{sW}, 5120")
    I(f"v_add_u32 v{t0}, s{sT}, v{vL}")
    I(f"v_add_u32 v{t1}, 40960, v{t0}")
    R = 32
    for src in range(4):
        for nt in range(5):
            vb = t0 if src < 2 else t1
            I(f"ds_read_b128 v[{R+(src*5+nt)*4}:{R+(src*5+nt)*4+3}], v{vb} offset:{(src % 2)*20480 + nt*1024}")
    I("s_waitcnt lgkmcnt(0)")
    for i in range(20):
        I(f"v_add_f32 v{R+i}, v{R+i}, v{R+20+i}")
        I(f"v_add_f32 v{R+40+i}, v{R+40+i}, v{R+60+i}")
    for i in range(20): I(f"v_add_f32 v{R+i}, v{R+i}, v{R+40+i}")
    k.wait_vm("xw")
    HP = 112
    HF = 52
    WRF = 72
    for i in range(10):
        I(f"v_cvt_pk_bf16_f32 v{HP+i}, v{R+2*i}, v{R+2*i+1}")
        I(f"v_lshlrev_b32 v{R+2*i}, 16, v{HP+i}")
        I(f"v_and_b32 v{R+2*i+1}, 0xffff0000, v{HP+i}")
        I(f"v_lshlrev_b32 v{HF+2*i}, 16, v{XV+i}")
        I(f"v_and_b32 v{HF+2*i+1}, 0xffff0000, v{XV+i}")
        I(f"v_add_f32 v{R+2*i}, v{R+2*i}, v{HF+2*i}")
        I(f"v_add_f32 v{R+2*i+1}, v{R+2*i+1}, v{HF+2*i+1}")
        I(f"v_cvt_pk_bf16_f32 v{HP+i}, v{R+2*i}, v{R+2*i+1}")
        I(f"v_lshlrev_b32 v{HF+2*i}, 16, v{HP+i}")
        I(f"v_and_b32 v{HF+2*i+1}, 0xffff0000, v{HP+i}")
        I(f"v_lshlrev_b32 v{WRF+2*i}, 16, v{WRV+i}")
        I(f"v_and_b32 v{WRF+2*i+1}, 0xffff0000, v{WRV+i}")
    for nt in range(5):
        I(f"buffer_store_dwordx2 v[{HP+2*nt}:{HP+2*nt+1}], v{vXo}, s[{SH}:{SH+3}], 0 offen offset:{32*nt} {store_flags}")
    A1, A2, A3 = 96, 97, 98
    I(f"v_mov_b32 v{A1}, v{HF}")
    I(f"v_mul_f32 v{A2}, v{HF}, v{HF}")
    I(f"v_mul_f32 v{A3}, v{HF}, v{WRF}")
    for i in range(1, 20):
        I(f"v_add_f32 v{A1}, v{A1}, v{HF+i}")
        I(f"v_fmac_f32 v{A2}, v{HF+i}, v{HF+i}")
        I(f"v_fmac_f32 v{A3}, v{HF+i}, v{WRF+i}")
    for a in (A1, A2, A3):
        I(f"v_mov_b32 v{a+4}, v{a}")
        I(f"v_permlane16_swap_b32 v{a}, v{a+4}")
        I(f"v_add_f32 v{a}, v{a}, v{a+4}")
        I(f"v_mov_b32 v{a+4}, v{a}")
        I(f"v_permlane32_swap_b32 v{a}, v{a+4}")
        I(f"v_add_f32 v{a}, v{a}, v{a+4}")
    I(f"v_lshlrev_b32 v{t0}, 2, v{vRow}")
    I(f"s_mov_b32 exec_lo, 0xffff")
    I(f"s_mov_b32 exec_hi, 0")
    for i, a in enumerate((A1, A2, A3)):
        I(f"s_mov_b32 s{sT}, {i*8192}")
        I(f"buffer_atomic_add_f32 v{a}, v{t0}, s[{SACC}:{SACC+3}], s{sT} offen")
    I("s_mov_b64 exec, -1")
    dump_marks(k, diag, kidx, 14, 15, 20)
    stamp_end(k, diag, kidx, 14, 15, vtmp=20)
    k.L("Lk3_end")
    I("s_endpgm")
    k.fix_hazards()
    pr = check_waits(k.items, "k3")
    for p_ in pr[:10]: print(p_)
    return k, 256, 256, 81920
```

```python
from common import *

NLN = 128
NFF = 54

def wave_allreduce(k, op, v, tmp):
    I = k.I
    for r in (8, 4, 2, 1):
        I(f"{op} v{v}, v{v}, v{v} row_ror:{r}")
    I(f"v_mov_b32 v{tmp}, v{v}")
    I(f"v_permlane16_swap_b32 v{v}, v{tmp}")
    I(f"{op} v{v}, v{v}, v{tmp}")
    I(f"v_mov_b32 v{tmp}, v{v}")
    I(f"v_permlane32_swap_b32 v{v}, v{tmp}")
    I(f"{op} v{v}, v{v}, v{tmp}")

def gen_k5(diag=False):
    k = Kern("k5_kernel")
    I = k.I
    I(f"s_cmp_ge_u32 s2, {NLN+NFF}")
    I("s_cbranch_scc1 Lk5_end")
    stamp_begin(k, diag)
    I(f"s_load_dwordx2 s[4:5], s[0:1], {KA['wr']}")
    I(f"s_load_dwordx4 s[8:11], s[0:1], {KA['wg']}")
    I(f"s_load_dwordx4 s[44:47], s[0:1], {KA['wd']}")
    I(f"s_load_dwordx2 s[14:15], s[0:1], {KA['ws']}")
    LANE = 2
    sW, sT, sT2, sEPS, sF = 40, 41, 42, 43, 48
    I("v_lshrrev_b32 v1, 6, v0")
    I(f"v_and_b32 v{LANE}, 63, v0")
    I(f"v_readfirstlane_b32 s{sW}, v1")
    I(f"s_mov_b32 s{sEPS}, {f32bits(1e-5)}")
    I("s_waitcnt lgkmcnt(0)")
    SH, SOUT, SACC, SWR, SWG, SWU, SWD, SYP, SSEL = 16, 20, 24, 28, 32, 36, 52, 56, 84
    srd(k, SH, 14, 15, H_SIZE, H_OFF)
    I(f"s_cmp_ge_u32 s2, {NLN}")
    I("s_cbranch_scc1 Lk5_ffn")
    srd(k, SOUT, 46, 47, 2048*640*2)
    t0, t1, vO = 3, 4, 5
    I(f"v_lshrrev_b32 v{t0}, 4, v{LANE}")
    I(f"s_lshl_b32 s{sT}, s2, 4")
    I(f"s_lshl_b32 s{sT2}, s{sW}, 2")
    I(f"s_add_u32 s{sT}, s{sT}, s{sT2}")
    I(f"v_add_u32 v{t0}, s{sT}, v{t0}")
    I(f"v_mul_u32_u24 v{vO}, 1280, v{t0}")
    I(f"v_and_b32 v{t1}, 15, v{LANE}")
    I(f"v_lshl_add_u32 v{vO}, v{t1}, 4, v{vO}")
    HX, HN = 8, 28
    for u in range(5):
        I(f"buffer_load_dwordx4 v[{HX+4*u}:{HX+4*u+3}], v{vO}, s[{SH}:{SH+3}], 0 offen offset:{256*u}")
    I("s_waitcnt vmcnt(0)")
    ln_rows(k, HX, 5, 64, HN, sEPS)
    for i in range(20):
        I(f"v_lshlrev_b32 v50, 16, v{HX+i}")
        I(f"v_and_b32 v51, 0xffff0000, v{HX+i}")
        I(f"v_lshlrev_b32 v52, 16, v{HN+i}")
        I(f"v_and_b32 v53, 0xffff0000, v{HN+i}")
        I(f"v_add_f32 v50, v50, v52")
        I(f"v_add_f32 v51, v51, v53")
        I(f"v_cvt_pk_bf16_f32 v{HN+i}, v50, v51")
    for u in range(5):
        I(f"buffer_store_dwordx4 v[{HN+4*u}:{HN+4*u+3}], v{vO}, s[{SOUT}:{SOUT+3}], 0 offen offset:{256*u}")
    I("s_branch Lk5_fin")
    k.L("Lk5_ffn")
    I(f"s_sub_u32 s{sF}, s2, {NLN}")
    srd(k, SACC, 14, 15, ACC_SIZE, ACC_OFF)
    srd(k, SWR, 4, 5, 1280)
    t0, t1, t2, t3 = 3, 4, 5, 6
    ST = 64
    I(f"v_lshlrev_b32 v{t0}, 2, v0")
    for e in range(8):
        for j in range(3):
            I(f"s_mov_b32 s{sT}, {j*8192 + e*1024}")
            I(f"buffer_load_dword v{ST+3*e+j}, v{t0}, s[{SACC}:{SACC+3}], s{sT} offen", tag="st")
    WRX = 90
    I(f"v_mul_u32_u24 v{t1}, 20, v{LANE}")
    for j in range(5):
        I(f"buffer_load_dword v{WRX+j}, v{t1}, s[{SWR}:{SWR+3}], 0 offen offset:{4*j}", tag="wr")
    srd(k, SWG, 8, 9, 640*1728*2)
    srd(k, SWU, 10, 11, 640*1728*2)
    srd(k, SWD, 44, 45, 1728*640*2)
    srd(k, SYP, 14, 15, YP_SIZE, YP_OFF)
    srd(k, SSEL, 14, 15, SEL_SIZE, SEL_OFF)
    LG, LU, LD, LT, LHN, LKEY, LPART, LA_ = 0, 40960, 81920, 122880, 155648, 158208, 158272, 160320
    vWD, vL16 = 7, 8
    I(f"v_lshrrev_b32 v{t2}, 2, v{LANE}")
    I(f"v_mul_u32_u24 v{vWD}, 3456, v{t2}")
    I(f"v_and_b32 v{t2}, 3, v{LANE}")
    I(f"v_lshl_add_u32 v{vWD}, v{t2}, 4, v{vWD}")
    I(f"v_lshlrev_b32 v{vL16}, 4, v{LANE}")
    I(f"s_mul_i32 s{sT}, s{sW}, {160*3456}")
    I(f"s_lshl_b32 s{sT2}, s{sF}, 6")
    I(f"s_add_u32 s49, s{sT}, s{sT2}")
    I(f"s_mul_i32 s50, s{sW}, {160*64}")
    I(f"s_mul_i32 s51, s{sF}, {32*1280}")
    I(f"s_mul_i32 s{sT}, s{sW}, 10240")
    I(f"s_add_u32 s51, s51, s{sT}")
    I(f"s_mov_b32 s80, s{sT}")
    dq = []
    for (S, LB) in ((SWG, LG), (SWU, LU)):
        for u in range(10):
            dq.append([f"s_add_u32 m0, s50, {LB + u*1024}", f"s_add_u32 s81, s49, {u*16*3456}",
                       f"buffer_load_dwordx4 v{vWD}, s[{S}:{S+3}], s81 offen lds"])
    for u in range(10):
        dq.append([f"s_add_u32 m0, s80, {LD + u*1024}", f"s_add_u32 s81, s51, {u*1024}",
                   f"buffer_load_dwordx4 v{vL16}, s[{SWD}:{SWD+3}], s81 offen lds"])
    def pop_dma(n=1):
        for _ in range(n):
            if dq:
                for t_ in dq.pop(0): I(t_)
    mark(k, diag, 0)
    k.wait_vm("wr")
    mark(k, diag, 1)
    WS = 95
    I(f"v_mov_b32 v{WS}, 0")
    for j in range(5):
        I(f"v_lshlrev_b32 v{t1}, 16, v{WRX+j}")
        I(f"v_and_b32 v{t3}, 0xffff0000, v{WRX+j}")
        I(f"v_add_f32 v{WS}, v{WS}, v{t1}")
        I(f"v_add_f32 v{WS}, v{WS}, v{t3}")
    pop_dma(2)
    wave_allreduce(k, "v_add_f32", WS, t1)
    K1, K2, RR = 96, 97, 100
    MEAN, VAR, RB = 101, 102, 103
    I(f"v_mov_b32 v{K1}, 0")
    I(f"v_mov_b32 v{K2}, 0")
    I(f"v_lshlrev_b32 v{t2}, 4, v0")
    I(f"v_add_u32 v{t2}, {LT}, v{t2}")
    for e in range(8):
        s1, s2, s3 = ST+3*e, ST+3*e+1, ST+3*e+2
        I(f"v_mul_f32 v{MEAN}, {f32bits(1.0/640)}, v{s1}")
        I(f"v_mul_f32 v{VAR}, {f32bits(1.0/640)}, v{s2}")
        I(f"v_fma_f32 v{VAR}, -v{MEAN}, v{MEAN}, v{VAR}")
        I(f"v_max_f32 v{VAR}, 0, v{VAR}")
        bf16_round(k, MEAN); bf16_round(k, VAR)
        I(f"v_add_f32 v{VAR}, s{sEPS}, v{VAR}")
        pop_dma(1)
        bf16_round(k, VAR)
        I(f"v_sqrt_f32 v{VAR}, v{VAR}")
        bf16_round(k, VAR)
        I(f"v_rcp_f32 v{VAR}, v{VAR}")
        I(f"v_fma_f32 v{RB}, -v{MEAN}, v{WS}, v{s3}")
        I(f"v_mul_f32 v{RB}, v{RB}, v{VAR}")
        pop_dma(1)
        I(f"v_ashrrev_i32 v{t1}, 31, v{RB}")
        I(f"v_or_b32 v{t1}, 0x80000000, v{t1}")
        I(f"v_xor_b32 v{RR}, v{RB}, v{t1}")
        I(f"v_and_b32 v{RR}, 0xfffff800, v{RR}")
        I(f"v_sub_u32 v{t1}, {2047 - 256*e}, v0")
        I(f"v_or_b32 v{RR}, v{RR}, v{t1}")
        I(f"ds_write_b128 v{t2}, v[{RR}:{RR+3}] offset:{e*4096}")
        I(f"v_med3_u32 v{K2}, v{K1}, v{K2}, v{RR}")
        I(f"v_max_u32 v{K1}, v{K1}, v{RR}")
        pop_dma(1)
    mark(k, diag, 2)
    T1, T2 = 10, 11
    I(f"v_mov_b32 v{T1}, v{K1}")
    wave_allreduce(k, "v_max_u32", T1, t1)
    pop_dma(2)
    I(f"v_cmp_eq_u32 vcc, v{T1}, v{K1}")
    I(f"v_cndmask_b32 v{T2}, v{K1}, v{K2}, vcc")
    wave_allreduce(k, "v_max_u32", T2, t1)
    pop_dma(2)
    I(f"s_lshl_b32 s{sT}, s{sW}, 3")
    I(f"v_mov_b32 v{t1}, s{sT}")
    I(f"v_add_u32 v{t1}, {LKEY}, v{t1}")
    I(f"ds_write_b64 v{t1}, v[{T1}:{T1+1}]")
    I("s_waitcnt lgkmcnt(0)")
    I("s_barrier")
    KK = 12
    I(f"v_mov_b32 v{t1}, {LKEY}")
    I(f"ds_read_b128 v[{KK}:{KK+3}], v{t1}")
    I(f"ds_read_b128 v[{KK+4}:{KK+7}], v{t1} offset:16")
    I("s_waitcnt lgkmcnt(0)")
    I(f"v_mov_b32 v{K1}, 0")
    I(f"v_mov_b32 v{K2}, 0")
    for j in range(8):
        I(f"v_med3_u32 v{K2}, v{K1}, v{K2}, v{KK+j}")
        I(f"v_max_u32 v{K1}, v{K1}, v{KK+j}")
    for kx in (K1, K2):
        I(f"v_and_b32 v{kx}, 0x7ff, v{kx}")
        I(f"v_sub_u32 v{kx}, 2047, v{kx}")
    mark(k, diag, 3)
    I(f"v_bfe_u32 v{t1}, v{LANE}, 4, 1")
    I(f"v_cmp_eq_u32 vcc, 0, v{t1}")
    I(f"v_cndmask_b32 v{t3}, v{K2}, v{K1}, vcc")
    vRowSel = 11
    I(f"v_mov_b32 v{vRowSel}, v{t3}")
    I(f"v_lshlrev_b32 v{t2}, 4, v{t3}")
    I(f"v_add_u32 v{t2}, {LT}, v{t2}")
    REC = 56
    I(f"ds_read_b128 v[{REC}:{REC+3}], v{t2}")
    I(f"v_mul_u32_u24 v{t3}, 1280, v{t3}")
    I(f"v_and_b32 v{t0}, 15, v{LANE}")
    I(f"v_lshl_add_u32 v{t3}, v{t0}, 4, v{t3}")
    HX, HN = 12, 32
    for u in range(5):
        I(f"buffer_load_dwordx4 v[{HX+4*u}:{HX+4*u+3}], v{t3}, s[{SH}:{SH+3}], 0 offen offset:{256*u}", tag="hx")
    pop_dma(99)
    k.wait_vm("hx")
    I("s_waitcnt lgkmcnt(0)")
    mark(k, diag, 4)
    X = 164
    for i in range(20):
        I(f"v_lshlrev_b32 v{X}, 16, v{HX+i}")
        I(f"v_and_b32 v{X+1}, 0xffff0000, v{HX+i}")
        I(f"v_sub_f32 v{X}, v{X}, v{REC+1}")
        I(f"v_sub_f32 v{X+1}, v{X+1}, v{REC+1}")
        I(f"v_cvt_pk_bf16_f32 v{X+2}, v{X}, v{X+1}")
        I(f"v_lshlrev_b32 v{X}, 16, v{X+2}")
        I(f"v_and_b32 v{X+1}, 0xffff0000, v{X+2}")
        I(f"v_mul_f32 v{X}, v{X}, v{REC+2}")
        I(f"v_mul_f32 v{X+1}, v{X+1}, v{REC+2}")
        I(f"v_cvt_pk_bf16_f32 v{HN+i}, v{X}, v{X+1}")
    bf16_round(k, REC+3)
    I(f"v_mul_f32 v53, {f32bits(-1.4426950408889634)}, v{REC+3}")
    I(f"v_exp_f32 v53, v53")
    I(f"v_add_f32 v53, 1.0, v53")
    I(f"v_rcp_f32 v53, v53")
    bf16_round(k, 53)
    mark(k, diag, 5)
    I(f"v_bfe_u32 v{t1}, v{LANE}, 4, 1")
    I(f"v_mul_u32_u24 v{t1}, 1280, v{t1}")
    I(f"v_lshl_add_u32 v{t1}, v{t0}, 4, v{t1}")
    I(f"v_add_u32 v{t2}, {LHN}, v{t1}")
    I(f"s_cmp_lg_u32 s{sW}, 0")
    I("s_cbranch_scc1 Lk5_w0done")
    for u in range(5):
        I(f"ds_write_b128 v{t2}, v[{HN+4*u}:{HN+4*u+3}] offset:{256*u}")
    I(f"s_cmp_lg_u32 s{sF}, 0")
    I("s_cbranch_scc1 Lk5_w0done")
    I("s_mov_b32 exec_hi, 0")
    for u in range(5):
        I(f"buffer_store_dwordx4 v[{HN+4*u}:{HN+4*u+3}], v{t1}, s[{SSEL}:{SSEL+3}], 0 offen offset:{64 + 256*u}")
    I(f"v_bfe_u32 v{t2}, v{LANE}, 4, 1")
    I(f"v_lshlrev_b32 v{t2}, 3, v{t2}")
    I(f"v_mov_b32 v54, v{vRowSel}")
    I(f"v_mov_b32 v55, v53")
    I(f"buffer_store_dwordx2 v[54:55], v{t2}, s[{SSEL}:{SSEL+3}], 0 offen")
    I("s_mov_b64 exec, -1")
    k.L("Lk5_w0done")
    I("s_waitcnt vmcnt(0) lgkmcnt(0)")
    I("s_barrier")
    mark(k, diag, 6)
    I(f"v_and_b32 v{t0}, 1, v{LANE}")
    I(f"v_mul_u32_u24 v{t0}, 1280, v{t0}")
    I(f"v_lshrrev_b32 v{t1}, 4, v{LANE}")
    I(f"v_lshl_add_u32 v{t0}, v{t1}, 4, v{t0}")
    I(f"s_mul_i32 s{sT}, s{sW}, 320")
    I(f"s_add_u32 s{sT}, s{sT}, {LHN}")
    I(f"v_add_u32 v{t0}, s{sT}, v{t0}")
    I(f"v_bfe_u32 v{t2}, v{LANE}, 2, 2")
    I(f"v_lshl_add_u32 v{t2}, v{t1}, 3, v{t2}")
    I(f"v_lshlrev_b32 v{t2}, 6, v{t2}")
    I(f"v_and_b32 v{t3}, 3, v{LANE}")
    I(f"v_lshl_add_u32 v{t2}, v{t3}, 3, v{t2}")
    I(f"v_add_u32 v{t2}, s50, v{t2}")
    AF, BF = 12, 100
    for s_ in range(5):
        I(f"ds_read_b128 v[{AF+4*s_}:{AF+4*s_+3}], v{t0} offset:{64*s_}")
    for mi, LB in enumerate((LG, LU)):
        for ft in range(2):
            for s_ in range(5):
                r = BF + ((mi*2 + ft)*5 + s_)*4
                I(f"ds_read_b64_tr_b16 v[{r}:{r+1}], v{t2} offset:{LB + s_*2048 + ft*32}")
                I(f"ds_read_b64_tr_b16 v[{r+2}:{r+3}], v{t2} offset:{LB + s_*2048 + ft*32 + 256}")
    I("s_waitcnt lgkmcnt(0)")
    D = 72
    for s_ in range(5):
        for q in range(4):
            r = BF + (q*5 + s_)*4
            I(f"v_mfma_f32_16x16x32_bf16 v[{D+4*q}:{D+4*q+3}], v[{AF+4*s_}:{AF+4*s_+3}], v[{r}:{r+3}], " + ("0" if s_ == 0 else f"v[{D+4*q}:{D+4*q+3}]"))
    I(f"v_and_b32 v{t0}, 15, v{LANE}")
    I(f"v_lshlrev_b32 v{t0}, 2, v{t0}")
    I(f"s_lshl_b32 s{sT}, s{sW}, 9")
    I(f"s_add_u32 s{sT}, s{sT}, {LPART}")
    I(f"v_add_u32 v{t0}, s{sT}, v{t0}")
    I("s_mov_b32 exec_lo, 0xffff")
    I("s_mov_b32 exec_hi, 0")
    for mi in range(2):
        for ft in range(2):
            for tok in range(2):
                I(f"ds_write_b32 v{t0}, v{D+4*(mi*2+ft)+tok} offset:{(mi*2+tok)*128 + ft*64}")
    I("s_mov_b64 exec, -1")
    I("s_waitcnt lgkmcnt(0)")
    I("s_barrier")
    I(f"v_lshlrev_b32 v{t0}, 2, v{LANE}")
    I(f"v_add_u32 v{t0}, {LPART}, v{t0}")
    for w in range(4):
        I(f"ds_read_b32 v{12+w}, v{t0} offset:{w*512}")
        I(f"ds_read_b32 v{16+w}, v{t0} offset:{w*512 + 256}")
    I("s_waitcnt lgkmcnt(0)")
    for b in (12, 16):
        I(f"v_add_f32 v{b}, v{b}, v{b+1}")
        I(f"v_add_f32 v{b+2}, v{b+2}, v{b+3}")
        I(f"v_add_f32 v{b}, v{b}, v{b+2}")
        bf16_round(k, b)
    I(f"v_mul_f32 v13, {f32bits(-1.4426950408889634)}, v12")
    I(f"v_exp_f32 v13, v13")
    I(f"v_add_f32 v13, 1.0, v13")
    I(f"v_rcp_f32 v13, v13")
    I(f"v_mul_f32 v12, v12, v13")
    bf16_round(k, 12)
    I(f"v_mul_f32 v12, v12, v16")
    I(f"v_cvt_pk_bf16_f32 v12, v12, v12")
    I(f"v_lshlrev_b32 v{t1}, 1, v{LANE}")
    I(f"v_add_u32 v{t1}, {LA_}, v{t1}")
    I(f"ds_write_b16 v{t1}, v12")
    I("s_waitcnt lgkmcnt(0)")
    mark(k, diag, 7)
    I(f"v_and_b32 v{t0}, 1, v{LANE}")
    I(f"v_lshlrev_b32 v{t0}, 6, v{t0}")
    I(f"v_lshrrev_b32 v{t1}, 4, v{LANE}")
    I(f"v_lshl_add_u32 v{t0}, v{t1}, 4, v{t0}")
    I(f"v_add_u32 v{t0}, {LA_}, v{t0}")
    I(f"ds_read_b128 v[12:15], v{t0}")
    I(f"v_bfe_u32 v{t2}, v{LANE}, 2, 2")
    I(f"v_lshl_add_u32 v{t2}, v{t1}, 3, v{t2}")
    I(f"v_mul_u32_u24 v{t2}, 1280, v{t2}")
    I(f"v_and_b32 v{t3}, 3, v{LANE}")
    I(f"v_lshl_add_u32 v{t2}, v{t3}, 3, v{t2}")
    I(f"s_mul_i32 s{sT}, s{sW}, 320")
    I(f"s_add_u32 s{sT}, s{sT}, {LD}")
    I(f"v_add_u32 v{t2}, s{sT}, v{t2}")
    for nt in range(10):
        r = 100 + 4*nt
        I(f"ds_read_b64_tr_b16 v[{r}:{r+1}], v{t2} offset:{nt*32}")
        I(f"ds_read_b64_tr_b16 v[{r+2}:{r+3}], v{t2} offset:{nt*32 + 4*1280}")
    I("s_waitcnt lgkmcnt(0)")
    for nt in range(10):
        I(f"v_mfma_f32_16x16x32_bf16 v[{140+4*nt}:{143+4*nt}], v[12:15], v[{100+4*nt}:{103+4*nt}], 0")
    I(f"v_and_b32 v{t0}, 15, v{LANE}")
    I(f"v_lshlrev_b32 v{t0}, 2, v{t0}")
    I(f"s_mul_i32 s{sT}, s{sF}, 5120")
    I(f"s_mul_i32 s{sT2}, s{sW}, 640")
    I(f"s_add_u32 s{sT}, s{sT}, s{sT2}")
    I("s_mov_b32 exec_lo, 0xffff")
    I("s_mov_b32 exec_hi, 0")
    for nt in range(10):
        I(f"buffer_store_dword v{140+4*nt}, v{t0}, s[{SYP}:{SYP+3}], s{sT} offen offset:{nt*64}")
        I(f"buffer_store_dword v{141+4*nt}, v{t0}, s[{SYP}:{SYP+3}], s{sT} offen offset:{2560 + nt*64}")
    I("s_mov_b64 exec, -1")
    mark(k, diag, 8)
    dump_marks(k, diag, 3, 14, 15, 4)
    k.L("Lk5_fin")
    stamp_end(k, diag, 3, 14, 15, vtmp=4)
    k.L("Lk5_end")
    I("s_endpgm")
    k.fix_hazards()
    return k, 216, 0, 160448, NLN + NFF

def gen_k6(diag=False):
    k = Kern("k6_kernel")
    I = k.I
    I("s_cmp_ge_u32 s2, 20")
    I("s_cbranch_scc1 Lk6_end")
    stamp_begin(k, diag)
    I(f"s_load_dwordx2 s[4:5], s[0:1], {KA['out']}")
    I(f"s_load_dwordx2 s[14:15], s[0:1], {KA['ws']}")
    LANE = 2
    sW, sT, sTok, sC = 40, 41, 42, 43
    I("v_lshrrev_b32 v1, 6, v0")
    I(f"v_and_b32 v{LANE}, 63, v0")
    I(f"v_readfirstlane_b32 s{sW}, v1")
    I(f"s_cmp_ge_u32 s2, 10")
    I(f"s_cselect_b32 s{sTok}, 1, 0")
    I(f"s_mul_i32 s{sT}, s{sTok}, 10")
    I(f"s_sub_u32 s{sC}, s2, s{sT}")
    I("s_waitcnt lgkmcnt(0)")
    SOUT, SYP, SSEL, SH = 16, 20, 24, 28
    srd(k, SOUT, 4, 5, 2048*640*2)
    srd(k, SYP, 14, 15, YP_SIZE, YP_OFF)
    srd(k, SSEL, 14, 15, SEL_SIZE, SEL_OFF)
    srd(k, SH, 14, 15, H_SIZE, H_OFF)
    I(f"s_lshl_b32 s{sT}, s{sC}, 6")
    I(f"v_add_u32 v3, s{sT}, v{LANE}")
    I(f"v_lshlrev_b32 v4, 2, v3")
    I(f"s_mul_i32 s44, s{sW}, {14*5120}")
    I(f"s_mul_i32 s{sT}, s{sTok}, 2560")
    I(f"s_add_u32 s44, s44, s{sT}")
    for j in range(14):
        I(f"s_add_u32 s{sT}, s44, {j*5120}")
        I(f"buffer_load_dword v{16+j}, v4, s[{SYP}:{SYP+3}], s{sT} offen")
    I(f"s_lshl_b32 s{sT}, s{sTok}, 3")
    I(f"v_mov_b32 v5, s{sT}")
    I(f"buffer_load_dwordx2 v[6:7], v5, s[{SSEL}:{SSEL+3}], 0 offen")
    I(f"s_mul_i32 s{sT}, s{sTok}, 1280")
    I(f"v_lshlrev_b32 v8, 1, v3")
    I(f"buffer_load_ushort v9, v8, s[{SSEL}:{SSEL+3}], s{sT} offen offset:64")
    I("s_waitcnt vmcnt(0)")
    I(f"v_mul_u32_u24 v10, 1280, v6")
    I(f"v_add_u32 v10, v10, v8")
    I(f"buffer_load_ushort v11, v10, s[{SH}:{SH+3}], 0 offen")
    for j in range(1, 14): I(f"v_add_f32 v16, v16, v{16+j}")
    I(f"v_lshlrev_b32 v12, 2, v0")
    I(f"ds_write_b32 v12, v16")
    I("s_waitcnt lgkmcnt(0)")
    I("s_barrier")
    I(f"s_cmp_lg_u32 s{sW}, 0")
    I("s_cbranch_scc1 Lk6_fin")
    I(f"v_lshlrev_b32 v12, 2, v{LANE}")
    I("ds_read_b32 v16, v12")
    I("ds_read_b32 v17, v12 offset:256")
    I("ds_read_b32 v18, v12 offset:512")
    I("ds_read_b32 v19, v12 offset:768")
    I("s_waitcnt lgkmcnt(0) vmcnt(0)")
    I("v_add_f32 v16, v16, v17")
    I("v_add_f32 v18, v18, v19")
    I("v_add_f32 v16, v16, v18")
    bf16_round(k, 16)
    I("v_mul_f32 v16, v16, v7")
    bf16_round(k, 16)
    I("v_lshlrev_b32 v9, 16, v9")
    I("v_add_f32 v16, v16, v9")
    bf16_round(k, 16)
    I("v_lshlrev_b32 v11, 16, v11")
    I("v_add_f32 v16, v16, v11")
    I("v_cvt_pk_bf16_f32 v16, v16, v16")
    I(f"buffer_store_short v16, v10, s[{SOUT}:{SOUT+3}], 0 offen")
    k.L("Lk6_fin")
    stamp_end(k, diag, 4, 14, 15, vtmp=20)
    k.L("Lk6_end")
    I("s_endpgm")
    k.fix_hazards()
    return k, 48, 0, 1024, 20
```

```python
import re
from asmlib import Ins, parse_reg

class Item:
    __slots__ = ("text", "cost", "lo", "hi", "deps", "gap", "pos", "name", "prio", "after")
    def __init__(self, text, cost=1, lo=0, hi=99, deps=(), name=None, prio=0, after=()):
        self.text = text; self.cost = cost; self.lo = lo; self.hi = hi
        self.after = [d for d in after if d is not None]
        self.deps = [d for d in deps if d is not None]; self.gap = None; self.pos = None; self.name = name; self.prio = prio

def schedule(mfmas, items, cap=6, pre=None):
    n = len(mfmas); pre = pre or {}
    load = [0]*n
    for g, t in pre.items():
        if g > 0: load[g-1] += len(t)
    gaps = [[] for _ in range(n)]
    remaining = list(items)
    total = sum(i.cost for i in items) + sum(load)
    for g in range(n):
        while True:
            cands = []
            for it in remaining:
                if it.lo > g: continue
                ok = True
                for d in it.deps:
                    if d.gap is None: ok = False; break
                    if d.gap == g and g != n - 1:
                        if len(gaps[g]) - 1 - d.pos < 2: ok = False; break
                for d in it.after:
                    if d.gap is None: ok = False; break
                if ok and g != n - 1:
                    kind = it.text.split("_")[0]
                    cnt = sum(1 for x in gaps[g] if x.text.split("_")[0] == kind)
                    if kind == "buffer" and cnt >= 1: ok = False
                    if kind == "ds" and cnt >= 2: ok = False
                    if it.text.startswith("v_exp") and sum(1 for x in gaps[g] if x.text.startswith("v_exp")) >= 2: ok = False
                if ok: cands.append(it)
            if not cands: break
            cands.sort(key=lambda i: (i.hi, -i.prio, items.index(i)))
            it = cands[0]
            forced = it.hi <= g or g == n - 1
            if load[g] + it.cost > cap and not forced:
                fit = [c for c in cands if load[g] + c.cost <= cap]
                if not fit: break
                it = fit[0]
            done = sum(load[:g+1])
            avg = total * (g + 1) / n
            if not forced and done + it.cost > avg + 2 and it.hi > g + 3:
                urgent = [c for c in cands if c.hi <= g + 3 and load[g] + c.cost <= cap]
                if not urgent: break
                it = urgent[0]
            it.gap = g; it.pos = len(gaps[g]); gaps[g].append(it); load[g] += it.cost; remaining.remove(it)
    assert not remaining, [(i.text, i.lo, i.hi) for i in remaining]
    out = []
    for g in range(n):
        for t in pre.get(g, []): out.append(t)
        out.append(mfmas[g])
        for it in gaps[g]: out.append(it.text)
    return out, load

def insert_lgkm_waits(seq, initial, age=3, init_age=None):
    out = []; pend = [(set(d), (init_age[i] if init_age else -99)) for i, d in enumerate(initial)]
    mf = 0
    ins = [Ins(t) for t in seq]
    for idx, it in enumerate(ins):
        if it.mn == "s_waitcnt":
            m = re.search(r"lgkmcnt\((\d+)\)", it.text)
            if m:
                nn = int(m.group(1)); pend = pend[len(pend)-nn:] if nn < len(pend) and nn > 0 else ([] if nn == 0 else pend)
        if it.cls == "mfma":
            src = set(it.src)
            need = -1
            for i, (d, _) in enumerate(pend):
                if d & src: need = i
            if need >= 0:
                j = need
                while j + 1 < len(pend) and mf - pend[j+1][1] >= age + 1: j += 1
                nn = len(pend) - 1 - j
                assert nn <= 15
                out.append(f"s_waitcnt lgkmcnt({nn})")
                pend = pend[j+1:]
            mf += 1
        elif it.cls != "ds":
            touched = set(it.src) | set(it.dst)
            for d, _ in pend:
                assert not (d & touched), ("pending LDS result touched", it.text)
        if it.cls == "ds": pend.append((set(it.dst), mf))
        out.append(it.text)
    return out, [d for d, _ in pend]
```

```python
from asmlib import *

KA = dict(x=0, ckv=8, wq=16, wuk=24, wuv=32, wo=40, bx=48, wr=56, wg=64, wu=72, wd=80, out=88, dbg=96, ws=104)
MB = 1 << 20
import os as _os
WSBASE = int(_os.environ.get('WSBASE', '0')) * MB
XN_OFF = WSBASE + 0;            XN_SIZE = 2048 * 640 * 2
KV_OFF = WSBASE + 4 * MB;       KV_SIZE = 32 * MB
CTX_OFF = WSBASE + 40 * MB;     CTX_SIZE = 16 * MB
H_OFF = WSBASE + 60 * MB;       H_SIZE = 2048 * 640 * 2
ST_OFF = WSBASE + 64 * MB;      ST_SIZE = 8 * 2048 * 16
ACC_OFF = WSBASE + 65 * MB;     ACC_SIZE = 3 * 2048 * 4
SEL_OFF = WSBASE + 65 * MB + 65536; SEL_SIZE = 4096
YP_OFF = WSBASE + 66 * MB;      YP_SIZE = 54 * 2 * 640 * 4
WOT_OFF = WSBASE + 68 * MB;     WOT_SIZE = 4096 * 640 * 2
FLG_OFF = WSBASE + 65 * MB + 131072; FLG_SIZE = 160 * 128
PART_OFF = WSBASE + 76 * MB;   PART_SIZE = 64 * 16 * 10240
RT_OFF = WSBASE + 65 * MB + 196608; RT_SIZE = 2048 * 16
STAMP_OFF = 100 * MB
QSCALE = (128 ** -0.5) * 1.4426950408889634

def f32bits(x):
    import struct
    return "0x%08x" % struct.unpack("<I", struct.pack("<f", x))[0]

def srd(k, d, base_lo, base_hi, size, off=0):
    if off:
        k.I(f"s_add_u32 s{d}, s{base_lo}, {off}")
        k.I(f"s_addc_u32 s{d+1}, s{base_hi}, 0")
    else:
        k.I(f"s_mov_b32 s{d}, s{base_lo}")
        k.I(f"s_mov_b32 s{d+1}, s{base_hi}")
    k.I(f"s_mov_b32 s{d+2}, {size}")
    k.I(f"s_mov_b32 s{d+3}, 0x20000")

def stamp_begin(k, diag, s=98):
    if diag: k.I(f"s_memrealtime s[{s}:{s+1}]")

def stamp_end(k, diag, kidx, ws_lo, ws_hi, s=98, vtmp=0):
    if not diag: return
    lab = f"Lstamp_{k.name}"
    k.I("s_waitcnt vmcnt(0) lgkmcnt(0)")
    k.I(f"s_memrealtime s[{s+2}:{s+3}]")
    k.I("s_waitcnt lgkmcnt(0)")
    k.I(f"s_lshl_b32 s96, s2, 3")
    k.I(f"s_add_u32 s96, s96, {STAMP_OFF + kidx*4096}")
    k.I(f"v_mov_b32 v{vtmp+2}, s{s}")
    k.I(f"v_mov_b32 v{vtmp+3}, s{s+2}")
    k.I(f"v_mov_b32 v{vtmp+1}, s96")
    k.I(f"v_mbcnt_lo_u32_b32 v{vtmp}, -1, 0")
    k.I(f"v_mbcnt_hi_u32_b32 v{vtmp}, -1, v{vtmp}")
    k.I(f"v_cmp_eq_u32 vcc, 0, v{vtmp}")
    k.I(f"s_and_saveexec_b64 s[94:95], vcc")
    k.I(f"s_cbranch_execz {lab}")
    k.I(f"global_store_dwordx2 v{vtmp+1}, v[{vtmp+2}:{vtmp+3}], s[{ws_lo}:{ws_hi}]")
    k.L(lab)

MARKS = {}
def mark(k, diag, idx):
    if diag:
        import os
        k.I(f"{'s_memtime' if os.environ.get('CYC') else 's_memrealtime'} s[{60+2*idx}:{61+2*idx}]")
        MARKS[k.name] = max(MARKS.get(k.name, 0), idx + 1)

def dump_marks(k, diag, kidx, ws_lo, ws_hi, vtmp):
    if not diag or k.name not in MARKS: return
    n = MARKS[k.name]
    lab = f"Lmark_{k.name}"
    k.I("s_waitcnt vmcnt(0) lgkmcnt(0)")
    k.I("s_lshl_b32 s96, s2, 2")
    k.I("s_add_u32 s96, s96, s40")
    k.I("s_lshl_b32 s96, s96, 6")
    k.I(f"s_add_u32 s96, s96, {STAMP_OFF + MB + kidx*262144}")
    k.I(f"v_mov_b32 v{vtmp+1}, s96")
    k.I(f"v_mbcnt_lo_u32_b32 v{vtmp}, -1, 0")
    k.I(f"v_mbcnt_hi_u32_b32 v{vtmp}, -1, v{vtmp}")
    k.I(f"v_cmp_eq_u32 vcc, 0, v{vtmp}")
    k.I(f"s_and_saveexec_b64 s[94:95], vcc")
    k.I(f"s_cbranch_execz {lab}")
    for i in range(n):
        k.I(f"v_mov_b32 v{vtmp+2}, s{60+2*i}")
        k.I(f"global_store_dword v{vtmp+1}, v{vtmp+2}, s[{ws_lo}:{ws_hi}] offset:{4*i}")
    k.L(lab)
    k.I("s_mov_b64 exec, s[94:95]")

def dpp_row_allreduce(k, op, v, tmp=None):
    for r in (8, 4, 2, 1):
        k.I(f"{op} v{v}, v{v}, v{v} row_ror:{r}")

class Rec:
    def __init__(self): self.l = []
    def I(self, t, tag=None):
        for x in t.split("\n"):
            if x.strip(): self.l.append(x.strip())

def ln_rows(k, xin, nchunk, vt, out_pk, eps_s, tag="", T=None):
    n = 8 * nchunk
    X = vt
    if T is None: T = vt + n
    for i in range(4 * nchunk):
        k.I(f"v_lshlrev_b32 v{X+2*i}, 16, v{xin+i}")
        k.I(f"v_and_b32 v{X+2*i+1}, 0xffff0000, v{xin+i}")
    for c in range(4):
        k.I(f"v_add_f32 v{T+c}, v{X+c}, v{X+c+4}")
    for i in range(8, n):
        k.I(f"v_add_f32 v{T+(i&3)}, v{T+(i&3)}, v{X+i}")
    k.I(f"v_add_f32 v{T}, v{T}, v{T+1}")
    k.I(f"v_add_f32 v{T+2}, v{T+2}, v{T+3}")
    k.I(f"v_add_f32 v{T}, v{T}, v{T+2}")
    dpp_row_allreduce(k, "v_add_f32", T)
    k.I(f"v_mul_f32 v{T+4}, {f32bits(1.0/640)}, v{T}")
    for c in range(4):
        k.I(f"v_sub_f32 v{T+5}, v{X+c}, v{T+4}")
        k.I(f"v_mul_f32 v{T+c}, v{T+5}, v{T+5}")
    for i in range(4, n):
        k.I(f"v_sub_f32 v{T+5+(i&1)}, v{X+i}, v{T+4}")
        k.I(f"v_fmac_f32 v{T+(i&3)}, v{T+5+(i&1)}, v{T+5+(i&1)}")
    k.I(f"v_add_f32 v{T}, v{T}, v{T+1}")
    k.I(f"v_add_f32 v{T+2}, v{T+2}, v{T+3}")
    k.I(f"v_add_f32 v{T}, v{T}, v{T+2}")
    dpp_row_allreduce(k, "v_add_f32", T)
    k.I(f"v_mul_f32 v{T}, {f32bits(1.0/640)}, v{T}")
    ln_finish(k, X, n, T + 4, T, T + 5, out_pk, eps_s)

def bf16_round(k, v):
    k.I(f"v_cvt_pk_bf16_f32 v{v}, v{v}, v{v}")
    k.I(f"v_and_b32 v{v}, 0xffff0000, v{v}")

def ln_finish(k, X, n, vmean, vvar, vtmp, out_pk, eps_s):
    bf16_round(k, vmean)
    bf16_round(k, vvar)
    k.I(f"v_add_f32 v{vvar}, s{eps_s}, v{vvar}")
    bf16_round(k, vvar)
    k.I(f"v_sqrt_f32 v{vvar}, v{vvar}")
    bf16_round(k, vvar)
    k.I(f"v_rcp_f32 v{vvar}, v{vvar}")
    for i in range(0, n, 2):
        k.I(f"v_sub_f32 v{X+i}, v{X+i}, v{vmean}")
        k.I(f"v_sub_f32 v{X+i+1}, v{X+i+1}, v{vmean}")
        k.I(f"v_cvt_pk_bf16_f32 v{vtmp}, v{X+i}, v{X+i+1}")
        k.I(f"v_lshlrev_b32 v{X+i}, 16, v{vtmp}")
        k.I(f"v_and_b32 v{X+i+1}, 0xffff0000, v{vtmp}")
        k.I(f"v_mul_f32 v{X+i}, v{X+i}, v{vvar}")
        k.I(f"v_mul_f32 v{X+i+1}, v{X+i+1}, v{vvar}")
        k.I(f"v_cvt_pk_bf16_f32 v{out_pk+i//2}, v{X+i}, v{X+i+1}")
```

```python
from common import *
import k2
from k2 import (LANE, vL16, vWQ, vNINF, vQ, vT, SXN, SWQ, SKV, SCTX, sW, sH, sI, sWL, sQA, sQB, sFlag, QACC, att_part, finish_k2)

SPIN_MAX = 1 << 22

def gen_k12(diag=False, store_flags="sc1", wnt="nt", force_slow=0, touch_at=30, wnt2=""):
    k = Kern("k12_kernel")
    I = k.I
    NXB = 3
    XBASE = 4*16384
    I("s_cmp_ge_u32 s2, 256")
    I("s_cbranch_scc1 Lk12_end")
    stamp_begin(k, diag)
    I(f"s_load_dwordx4 s[4:7], s[0:1], {KA['x']}")
    I(f"s_load_dwordx4 s[8:11], s[0:1], {KA['wuk']}")
    I(f"s_load_dwordx2 s[14:15], s[0:1], {KA['ws']}")
    I(f"s_load_dwordx2 s[56:57], s[0:1], {KA['wq']}")
    I(f"s_load_dwordx2 s[12:13], s[0:1], {KA['dbg']}")
    I("v_lshrrev_b32 v1, 6, v0")
    I(f"v_and_b32 v{LANE}, 63, v0")
    I("v_readfirstlane_b32 s40, v1")
    I("s_and_b32 s43, s2, 7")
    I("s_lshr_b32 s44, s2, 3")
    I("s_and_b32 s41, s44, 3")
    I("s_lshl_b32 s43, s43, 2")
    I("s_add_u32 s41, s41, s43")
    I("s_lshr_b32 s42, s44, 2")
    I("s_waitcnt lgkmcnt(0)")
    mark(k, diag, 0)
    SX, SC, SWK, SWV, SKVO, SXNO, SDBG = 16, 20, 24, 28, 32, 36, 84
    srd(k, SC, 6, 7, 2048*512*2)
    srd(k, SWK, 8, 9, 512*4096*2)
    vXA, vXB, vW, vT0, vT1, vT0h, vT1h, vT0g, vT1g, vLX, vLO = 36, 37, 38, 39, 40, 41, 42, 43, 44, 45, 46
    vXR = 48; t0, t1 = 52, 53
    vST = vL16
    vPoll, vZero, vAOff, vOne = 54, 55, 56, 57
    sX0, sX1, sWb, sM, sKVb, sT, sEPS = 48, 49, 50, sWL, 52, 53, 54
    I(f"v_lshrrev_b32 v{t0}, 3, v{LANE}")
    I(f"v_lshlrev_b32 v{vXA}, 10, v{t0}")
    I(f"v_lshrrev_b32 v{t0}, 4, v{LANE}")
    I(f"v_and_b32 v{t1}, 7, v{LANE}")
    I(f"v_xor_b32 v{t0}, v{t0}, v{t1}")
    I(f"v_lshl_add_u32 v{vXA}, v{t0}, 4, v{vXA}")
    I(f"v_xor_b32 v{vXB}, 64, v{vXA}")
    I(f"s_lshl_b32 s{sX0}, s42, 8")
    I(f"s_lshl_b32 s{sT}, s40, 6")
    I(f"s_add_u32 s{sX0}, s{sX0}, s{sT}")
    I(f"s_lshl_b32 s{sX0}, s{sX0}, 10")
    I(f"s_mul_i32 s{sX1}, s40, {NXB*8192}")
    I(f"s_add_u32 s{sX1}, s{sX1}, {XBASE}")
    I(f"v_lshrrev_b32 v{t0}, 3, v{LANE}")
    I(f"v_lshlrev_b32 v{vW}, 13, v{t0}")
    I(f"v_bfe_u32 v{t0}, v{LANE}, 4, 1")
    I(f"v_lshlrev_b32 v{t0}, 2, v{t0}")
    I(f"v_and_b32 v{t1}, 7, v{LANE}")
    I(f"v_xor_b32 v{t0}, v{t0}, v{t1}")
    I(f"v_lshl_add_u32 v{vW}, v{t0}, 4, v{vW}")
    I(f"s_lshl_b32 s{sWb}, s40, 18")
    I(f"s_lshl_b32 s{sT}, s41, 8")
    I(f"s_add_u32 s{sWb}, s{sWb}, s{sT}")
    I(f"s_lshl_b32 s{sM}, s40, 12")
    SLOT = {0:0, 1:1, 2:2, 3:3, 4:0, 5:1, 6:2, 7:4, 8:5, 9:6, 10:7, 11:8, 12:9, 13:3, 14:0, 15:1}
    QSLOT = {0:2, 1:4, 2:5, 3:6, 4:7, 5:8, 6:9, 7:3, 8:0, 9:1}
    C0 = 4
    def dma_one(g, u):
        p = g >> 2; S = SWK if p < 2 else SWV
        so = (128*(g & 3) + 8*u) * 8192 + 128*(p & 1)
        I(f"s_add_u32 m0, s{sM}, {SLOT[g]*16384 + u*1024}")
        I(f"s_add_u32 s{sT}, s{sWb}, {so}")
        I(f"buffer_load_dwordx4 v{vW}, s[{S}:{S+3}], s{sT} offen {wnt if (g < 8 or touch_at is None) else wnt2} lds", tag=f"w{g}")
    def xdma_one(cx, u):
        I(f"s_add_u32 m0, s{sX1}, {(cx % NXB)*8192 + u*1024}")
        I(f"s_add_u32 s{sT}, s{sX0}, {u*8192 + cx*128}")
        I(f"buffer_load_dwordx4 v{vXA if u % 2 == 0 else vXB}, s[{SC}:{SC+3}], s{sT} offen lds", tag=f"xc{cx}")
    for u in range(8): xdma_one(0, u)
    for u in range(4): dma_one(0, u)
    for u in range(8): xdma_one(1, u)
    for u in range(4): dma_one(1, u)
    for u in range(8): xdma_one(2, u)
    mark(k, diag, 1)
    srd(k, SX, 4, 5, 2048*640*2)
    srd(k, SWV, 10, 11, 512*4096*2)
    srd(k, SKVO, 14, 15, KV_SIZE, KV_OFF)
    srd(k, SXNO, 14, 15, XN_SIZE, XN_OFF)
    srd(k, SDBG, 12, 13, 256)
    I(f"v_bfe_u32 v{t0}, v{LANE}, 4, 1")
    I("s_lshl_b32 s45, s2, 3")
    I("s_lshl_b32 s46, s40, 1")
    I("s_add_u32 s45, s45, s46")
    I(f"v_add_u32 v{t0}, s45, v{t0}")
    I(f"v_and_b32 v{t1}, 15, v{LANE}")
    I(f"v_mul_u32_u24 v{vLX}, 1280, v{t0}")
    I(f"v_lshl_add_u32 v{vLX}, v{t1}, 4, v{vLX}")
    LNX = 192
    I(f"v_lshrrev_b32 v{vLO}, 5, v{t0}")
    I(f"v_mul_u32_u24 v{vLO}, 40960, v{vLO}")
    I(f"v_and_b32 v{t0}, 31, v{t0}")
    I(f"v_lshl_add_u32 v{vLO}, v{t0}, 4, v{vLO}")
    I(f"v_lshrrev_b32 v{t0}, 1, v{t1}")
    I(f"v_lshl_add_u32 v{vLO}, v{t0}, 10, v{vLO}")
    I(f"v_and_b32 v{t0}, 1, v{t1}")
    I(f"v_lshl_add_u32 v{vLO}, v{t0}, 9, v{vLO}")
    I(f"v_mov_b32 v{t0}, 0x1000000")
    I(f"v_cmp_gt_u32 vcc, 32, v{LANE}")
    I(f"v_cndmask_b32 v{vLO}, v{t0}, v{vLO}, vcc")
    srd(k, 92, 14, 15, ACC_SIZE, ACC_OFF)
    I(f"s_mul_i32 s45, s2, 96")
    I(f"v_lshlrev_b32 v{t0}, 2, v0")
    I(f"v_mov_b32 v{t1}, 0x100000")
    I(f"v_cmp_gt_u32 vcc, 24, v0")
    I(f"v_cndmask_b32 v{t0}, v{t1}, v{t0}, vcc")
    I(f"v_mov_b32 v{t1}, 0")
    I(f"buffer_store_dword v{t1}, v{t0}, s[92:95], s45 offen")
    I(f"v_mov_b32 v{vZero}, 0")
    I(f"v_mov_b32 v{vOne}, 1")
    I(f"v_mov_b32 v{t1}, 0x100000")
    I(f"v_cmp_eq_u32 vcc, 0, v0")
    I(f"v_cndmask_b32 v{vAOff}, v{t1}, v{vZero}, vcc")
    I(f"v_lshrrev_b32 v{t1}, 5, v{LANE}")
    I(f"v_bfe_u32 v{t0}, v{LANE}, 1, 3")
    I(f"v_xor_b32 v{t0}, v{t0}, v{t1}")
    I(f"v_lshlrev_b32 v{t0}, 4, v{t0}")
    I(f"v_and_b32 v{vXR}, 31, v{LANE}")
    I(f"v_lshl_add_u32 v{vXR}, v{vXR}, 7, v{t0}")
    for j in range(1, 4):
        I(f"v_xor_b32 v{vXR+j}, {32*j}, v{vXR}")
        I(f"v_add_u32 v{vXR+j}, s{sX1}, v{vXR+j}")
    I(f"v_add_u32 v{vXR}, s{sX1}, v{vXR}")
    I(f"v_bfe_u32 v{t0}, v{LANE}, 2, 2")
    I(f"v_lshl_add_u32 v{t0}, v{t1}, 3, v{t0}")
    I(f"v_lshlrev_b32 v{vT0}, 7, v{t0}")
    I(f"v_bfe_u32 v{t0}, v{LANE}, 3, 1")
    I(f"v_lshl_add_u32 v{vT0}, v{t0}, 6, v{vT0}")
    I(f"v_bfe_u32 v{t0}, v{LANE}, 4, 1")
    I(f"v_lshl_add_u32 v{vT0}, v{t0}, 5, v{vT0}")
    I(f"v_and_b32 v{t0}, 3, v{LANE}")
    I(f"v_lshl_add_u32 v{vT0}, v{t0}, 3, v{vT0}")
    I(f"v_xor_b32 v{vT1}, 64, v{vT0}")
    I(f"v_add_u32 v{vT0h}, 0x10000, v{vT0}")
    I(f"v_add_u32 v{vT1h}, 0x10000, v{vT1}")
    I(f"v_add_u32 v{vT0g}, 0x20000, v{vT0}")
    I(f"v_add_u32 v{vT1g}, 0x20000, v{vT1}")
    I(f"v_lshlrev_b32 v{vST}, 4, v{LANE}")
    I(f"s_lshl_b32 s{sKVb}, s41, 6")
    I(f"s_lshl_b32 s{sT}, s42, 3")
    I(f"s_add_u32 s{sKVb}, s{sKVb}, s{sT}")
    I(f"s_lshl_b32 s{sT}, s40, 1")
    I(f"s_add_u32 s{sKVb}, s{sKVb}, s{sT}")
    I(f"s_lshl_b32 s{sKVb}, s{sKVb}, 14")
    I(f"s_mov_b32 s{sEPS}, {f32bits(1e-5)}")

    def xread(cx):
        for sp in range(4):
            for b in range(2):
                a = (b*32 + 4*cx + sp)*4
                I(f"ds_read_b128 a[{a}:{a+3}], v{vXR+sp} offset:{(cx % NXB)*8192 + b*4096}", tag=f"xr{cx}")
    WF = 64
    ACC = [128, 192]
    STG = [96, 120]
    LA = 2
    def wread(n):
        g = n >> 3; s = n & 7
        slot = SLOT[g]
        b0, b1 = (vT0, vT1) if slot < 4 else (vT0h, vT1h) if slot < 8 else (vT0g, vT1g)
        off = (slot & 3)*16384 + s*2048
        r = WF + (n & 3)*8
        I(f"ds_read_b64_tr_b16 v[{r}:{r+1}], v{b0} offset:{off}", tag=f"r{n}")
        I(f"ds_read_b64_tr_b16 v[{r+2}:{r+3}], v{b0} offset:{off+512}", tag=f"r{n}")
        I(f"ds_read_b64_tr_b16 v[{r+4}:{r+5}], v{b1} offset:{off}", tag=f"r{n}")
        I(f"ds_read_b64_tr_b16 v[{r+6}:{r+7}], v{b1} offset:{off+512}", tag=f"r{n}")
    def epi_items(p):
        items = []
        acc = ACC[p & 1]
        for cb in range(2):
            for b in range(2):
                tile = acc + (cb*2 + b)*16
                for half in range(2):
                    if p < 2: within = (2*(2*p + cb) + half)*1024
                    else: within = 8192 + ((2*(p-2) + cb)*2 + half)*1024
                    def f(tile=tile, half=half, within=within, b=b, idx=len(items)):
                        st = STG[idx & 1]
                        for j in range(4):
                            I(f"v_cvt_pk_bf16_f32 v{st+j}, v{tile+8*half+2*j}, v{tile+8*half+2*j+1}")
                        I(f"s_add_u32 s{sT}, s{sKVb}, {b*16384 + within}")
                        I(f"buffer_store_dwordx4 v[{st}:{st+3}], v{vST}, s[{SKVO}:{SKVO+3}], s{sT} offen {store_flags}", tag=f"st{p}")
                    items.append(f)
        return items
    LNO = 100
    rec = Rec()
    ln_rows(rec, LNX, 5, 212, LNO, sEPS, T=24)
    lnq = list(rec.l)
    def ln_stores():
        for u in range(5):
            I(f"s_mov_b32 s{sT}, {u*8192}")
            I(f"buffer_store_dwordx4 v[{LNO+4*u}:{LNO+4*u+3}], v{vLO}, s[{SXNO}:{SXNO+3}], s{sT} offen sc1", tag="lnst")
    sQblkA, sQblkB, sXA, sXB, sWq = 56, 57, 58, 59, 88
    sT3, sPol = 43, 44
    vQh, vQg = 32, 58
    def q_setup():
        r = Rec(); J = r.I
        a, b = 52, 53
        J(f"s_mov_b32 s{SWQ}, s56"); J(f"s_mov_b32 s{SWQ+1}, s57"); J(f"s_mov_b32 s{SWQ+2}, {640*4096*2}"); J(f"s_mov_b32 s{SWQ+3}, 0x20000")
        J(f"s_add_u32 s{SXN}, s14, {XN_OFF}"); J(f"s_addc_u32 s{SXN+1}, s15, 0"); J(f"s_mov_b32 s{SXN+2}, {XN_SIZE}"); J(f"s_mov_b32 s{SXN+3}, 0x20000")
        J(f"v_lshrrev_b32 v{a}, 4, v{LANE}")
        J(f"v_lshlrev_b32 v{vWQ}, 13, v{a}")
        J(f"v_lshlrev_b32 v{a}, 2, v{a}")
        J(f"v_and_b32 v{b}, 15, v{LANE}")
        J(f"v_xor_b32 v{a}, v{a}, v{b}")
        J(f"v_lshl_add_u32 v{vWQ}, v{a}, 4, v{vWQ}")
        J(f"v_lshrrev_b32 v{b}, 5, v{LANE}")
        J(f"v_bfe_u32 v{a}, v{LANE}, 2, 2")
        J(f"v_lshl_add_u32 v{b}, v{b}, 3, v{a}")
        J(f"v_lshlrev_b32 v{b}, 8, v{b}")
        J(f"v_bfe_u32 v{vPoll}, v{LANE}, 4, 1")
        J(f"v_lshl_add_u32 v{b}, v{vPoll}, 5, v{b}")
        J(f"v_and_b32 v{vPoll}, 3, v{LANE}")
        J(f"v_lshl_add_u32 v{b}, v{vPoll}, 3, v{b}")
        for db in range(4):
            J(f"v_xor_b32 v{vPoll}, {db}, v{a}")
            J(f"v_lshl_add_u32 v{vQ+db}, v{vPoll}, 6, v{b}")
            J(f"v_add_u32 v{vQh+db}, 0x10000, v{vQ+db}")
            J(f"v_add_u32 v{vQg+db}, 0x20000, v{vQ+db}")
        J(f"v_mov_b32 v{vNINF}, 0xff800000")
        J(f"s_lshl_b32 s{sT3}, s{sI}, 2")
        J(f"s_add_u32 s{sQblkA}, s{sT3}, s{sW}")
        J(f"s_sub_u32 s{sQblkB}, 60, s{sT3}")
        J(f"s_add_u32 s{sQblkB}, s{sQblkB}, s{sW}")
        J(f"s_mul_i32 s{sXA}, s{sQblkA}, 40960")
        J(f"s_mul_i32 s{sXB}, s{sQblkB}, 40960")
        J(f"s_lshl_b32 s{sWq}, s{sW}, 17")
        J(f"s_lshl_b32 s{sT3}, s{sH}, 8")
        J(f"s_add_u32 s{sWq}, s{sWq}, s{sT3}")
        return r.l
    def xq_load(s, T):
        a = (T*32 + (s % 32))*4
        I(f"s_add_u32 s{sT3}, s{sXA if T == 0 else sXB}, {s*1024}")
        I(f"buffer_load_dwordx4 a[{a}:{a+3}], v{vL16}, s[{SXN}:{SXN+3}], s{sT3} offen", tag=f"x{s}")
    def wq_one(g, u):
        I(f"s_add_u32 m0, s{sWL}, {QSLOT[g]*16384 + u*1024}")
        I(f"s_add_u32 s{sT3}, s{sWq}, {(64*g + 4*u)*8192}")
        I(f"buffer_load_dwordx4 v{vWQ}, s[{SWQ}:{SWQ+3}], s{sT3} offen {wnt if touch_at is None else wnt2} lds", tag=f"q{g}")
    def signal(dw):
        I(f"s_mov_b32 s{sT3}, {dw}") if isinstance(dw, int) else None
    def add_counter(soff_expr):
        soff_expr()
        I(f"buffer_atomic_add v{vOne}, v{vAOff}, s[{SDBG}:{SDBG+3}], s{sT3} offen sc1", tag="sig")
    def poll_issue(soff_expr, tag):
        soff_expr()
        I(f"s_mov_b32 s{sPol}, s{sT3}")
        I(f"buffer_load_dword v{vPoll}, v{vZero}, s[{SDBG}:{SDBG+3}], s{sPol} offen sc1", tag=tag)
    def poll_check(tag, target, name):
        k.wait_vm(tag)
        I(f"v_readfirstlane_b32 s{sT3}, v{vPoll}")
        I(f"s_cmp_ge_u32 s{sT3}, {target}")
        I(f"s_cbranch_scc1 {name}_ok")
        I(f"s_mov_b32 s45, {SPIN_MAX}")
        k.L(name + "_spin")
        I("s_sleep 4")
        I(f"buffer_load_dword v{vPoll}, v{vZero}, s[{SDBG}:{SDBG+3}], s{sPol} offen sc1")
        k.vm.pop()
        I("s_waitcnt vmcnt(0)")
        I(f"v_readfirstlane_b32 s{sT3}, v{vPoll}")
        I(f"s_sub_u32 s45, s45, 1")
        I(f"s_cbranch_scc1 {name}_ok")
        I(f"s_cmp_lt_u32 s{sT3}, {target}")
        I(f"s_cbranch_scc1 {name}_spin")
        k.L(name + "_ok")
    ln_cnt = lambda: I(f"s_mov_b32 s{sT3}, 0")
    def head_cnt():
        I(f"s_lshl_b32 s{sT3}, s{sH}, 2")
        I(f"s_add_u32 s{sT3}, s{sT3}, 4")

    vTo, vDm = 62, 63
    def touch_all():
        OOB = 0x2000000
        a, b = 52, 53
        I(f"s_lshl_b32 s45, s42, 6"); I(f"s_lshl_b32 s46, s40, 4"); I(f"s_add_u32 s45, s45, s46")
        I(f"s_lshl_b32 s45, s45, 13"); I(f"s_lshl_b32 s46, s41, 8"); I(f"s_add_u32 s45, s45, s46")
        I(f"v_mov_b32 v{b}, {OOB}")
        I(f"v_lshrrev_b32 v{a}, 1, v{LANE}"); I(f"v_lshlrev_b32 v{vTo}, 13, v{a}"); I(f"v_and_b32 v{a}, 1, v{LANE}")
        I(f"v_lshl_add_u32 v{vTo}, v{a}, 7, v{vTo}"); I(f"v_mov_b32 v{a}, v{vTo}")
        I(f"v_cmp_gt_u32 vcc, 32, v{LANE}"); I(f"v_cndmask_b32 v{vTo}, v{b}, v{vTo}, vcc")
        I(f"buffer_load_dword v{vDm}, v{vTo}, s[{SWV}:{SWV+3}], s45 offen", tag="touch")
        I(f"s_mov_b32 s92, s56"); I(f"s_mov_b32 s93, s57"); I(f"s_mov_b32 s94, {640*4096*2}"); I(f"s_mov_b32 s95, 0x20000")
        I(f"s_mul_i32 s45, s42, 80"); I(f"s_mul_i32 s46, s40, 20"); I(f"s_add_u32 s45, s45, s46")
        I(f"s_lshl_b32 s45, s45, 13"); I(f"s_lshl_b32 s46, s41, 8"); I(f"s_add_u32 s45, s45, s46")
        I(f"v_cmp_gt_u32 vcc, 40, v{LANE}"); I(f"v_cndmask_b32 v{vTo}, v{b}, v{a}, vcc")
        I(f"buffer_load_dword v{vDm}, v{vTo}, s[92:95], s45 offen", tag="touch")
    mark(k, diag, 2)
    k.wait_vm("w0", expect=4)
    I("s_barrier")
    k.wait_vm("xc0", expect=8)
    xread(0)
    for n in range(LA): wread(n)
    mark(k, diag, 3)
    memq = []; pend = []; misc = []; paceq = []
    for u in range(4): memq.append(lambda u=u: dma_one(2, u))
    for u in range(4): memq.append(lambda u=u: dma_one(3, u))
    def lnload(u): I(f"buffer_load_dwordx4 v[{LNX+4*u}:{LNX+4*u+3}], v{vLX}, s[{SX}:{SX+3}], 0 offen offset:{256*u}", tag="lnx")
    for u in range(5): memq.append(lambda u=u: lnload(u))
    BAR = {5: ([1], [], []), 13: ([2], [4], []), 21: ([3], [5], []), 29: ([4], [6, 7, 8, 9, 10, 11, 12], []), 37: ([5], [13], []),
           45: ([6], [14], []), 53: ([7], [15], []), 61: ([8, 9, 10, 11], [], [0]), 77: ([], [], [1, 2]), 93: ([12, 13, 14, 15], [], [3, 4]),
           101: ([], [], [5]), 117: ([], [], [6, 7])}
    lnstarted = False
    setupq = []
    for n in range(128):
        g = n >> 3; s = n & 7; p = g >> 2
        ks = n & 31
        if n == 56: setupq = q_setup()
        if touch_at is not None and n == touch_at: memq.append(touch_all)
        if n in BAR:
            rdy, iss, qiss = BAR[n]
            if rdy: k.wait_vm(f"w{rdy[-1]}", expect=4)
            if n == 53: k.wait_vm("lnst", expect=5)
            if n == 61:
                while setupq: I(setupq.pop(0))
            I("s_barrier")
            if n == 53: add_counter(ln_cnt)
            for q in iss:
                for u in range(4): (memq if n < 29 else paceq).append(lambda q=q, u=u: dma_one(q, u))
            for q in qiss:
                for u in range(4): paceq.append(lambda q=q, u=u: wq_one(q, u))
        if n == 84: poll_issue(ln_cnt, "poll1")
        if n == 92:
            poll_check("poll1", 256, "Lk12_ln")
        if n + LA < 128: wread(n + LA)
        if p == 0 and ks % 4 == 1 and ks // 4 + 1 < 8:
            k.wait_vm(f"xc{ks//4+1}", expect=8)
            xread(ks//4 + 1)
        if p == 0 and ks % 4 == 0:
            k.wait_lg(f"xr{ks//4}")
            if ks//4 + NXB < 8:
                for u in range(8): memq.append(lambda cx=ks//4 + NXB, u=u: xdma_one(cx, u))
        k.wait_lg(f"r{n}")
        r = WF + (n & 3)*8
        acc = ACC[p & 1]
        gi = 0
        for cb in range(2):
            for b in range(2):
                d = acc + (cb*2 + b)*16
                a = (b*32 + ks)*4
                c = "0" if ks == 0 else f"v[{d}:{d+15}]"
                if p < 2: I(f"v_mfma_f32_32x32x16_bf16 v[{d}:{d+15}], v[{r+4*cb}:{r+4*cb+3}], a[{a}:{a+3}], {c}")
                else:     I(f"v_mfma_f32_32x32x16_bf16 v[{d}:{d+15}], a[{a}:{a+3}], v[{r+4*cb}:{r+4*cb+3}], {c}")
                if memq: memq.pop(0)()
                elif paceq and gi == 0: paceq.pop(0)()
                elif pend and gi == 3 and ((p == 1 and ks >= 23) or (p == 2 and ks >= 21) or (p == 3 and ks >= 6 and ks % 3 == 0)): pend.pop(0)()
                elif setupq and gi in (1, 2):
                    for _ in range(4):
                        if setupq: I(setupq.pop(0))
                if p == 0 and n >= 10 and lnq:
                    if not lnstarted:
                        k.wait_vm("lnx"); lnstarted = True
                    for _ in range(4):
                        if lnq: I(lnq.pop(0))
                    if not lnq: memq.append(ln_stores)
                gi += 1
        if p == 3:
            j = ks
            xq_load(j >> 1, j & 1)
        if ks == 31:
            mark(k, diag, 4 + p)
            while pend: pend.pop(0)()
            pend = epi_items(p)
    assert not lnq and not memq
    for f in pend: f()
    while paceq: paceq.pop(0)()
    mark(k, diag, 8)
    I("s_barrier")
    gapq = []
    for g in (8, 9):
        for u in range(4): gapq.append(lambda g=g, u=u: wq_one(g, u))
    def qwread(n):
        g, s = n >> 2, n & 3
        F = WF + (n % 2)*16
        slot = QSLOT[g]
        base = vQ if slot < 4 else vQh if slot < 8 else vQg
        o = (slot & 3)*16384 + s*4096
        for db in range(4):
            I(f"ds_read_b64_tr_b16 v[{F+4*db}:{F+4*db+1}], v{base+db} offset:{o}", tag=f"qr{n}")
            I(f"ds_read_b64_tr_b16 v[{F+4*db+2}:{F+4*db+3}], v{base+db} offset:{o+1024}", tag=f"qr{n}")
    def kv_one(blk, u):
        I(f"s_add_u32 m0, s{sWL}, {((blk + C0) % 8)*16384}")
        I(f"s_add_u32 s{sT3}, s{sWL}, {blk*16384}")
        I(f"buffer_load_dwordx4 v{vL16}, s[{SKV}:{SKV+3}], s{sT3} offen offset:{u*1024} lds", tag=f"kv{blk}")
    def kv_closures(blk): return [lambda u=u: kv_one(blk, u) for u in range(4)]
    I(f"s_lshl_b32 s{sT3}, s{sH}, 20")
    I(f"s_add_u32 s{sT3}, s{sT3}, {KV_OFF}")
    I(f"s_add_u32 s{SKV}, s14, s{sT3}")
    I(f"s_addc_u32 s{SKV+1}, s15, 0")
    I(f"s_lshl_b32 s{sT3}, s{sI}, 16")
    I(f"s_sub_u32 s{SKV+2}, {64*16384}, s{sT3}")
    I(f"s_mov_b32 s{SKV+3}, 0x20000")
    srd(k, SCTX, 14, 15, CTX_SIZE, CTX_OFF)
    k.wait_vm("q0", expect=4)
    I("s_barrier")
    qwread(0)
    for n in range(40):
        g, s = n >> 2, n & 3
        if s == 2:
            if g + 1 < 10: k.wait_vm(f"q{g+1}", expect=4)
            if n == 18: k.wait_vm("st3", expect=8)
            I("s_barrier")
            if n == 18: add_counter(head_cnt)
            if g == 9: pass
        if n == 30: poll_issue(head_cnt, "poll2")
        if n == 34:
            poll_check("poll2", 8, "Lk12_kv")
            for blk in range(3): gapq += kv_closures(blk)
        if n + 1 < 40: qwread(n + 1)
        k.wait_vm(f"x{n}", expect=2)
        k.wait_lg(f"qr{n}")
        F = WF + (n % 2)*16
        for db in range(4):
            for T in range(2):
                d = QACC + (T*4 + db)*16
                a = (T*32 + (n % 32))*4
                c = "0" if n == 0 else f"v[{d}:{d+15}]"
                I(f"v_mfma_f32_32x32x16_bf16 v[{d}:{d+15}], v[{F+4*db}:{F+4*db+3}], a[{a}:{a+3}], {c}")
                if gapq: gapq.pop(0)()
        if n + 16 < 40:
            for T in range(2): gapq.append(lambda s_=n+16, T=T: xq_load(s_, T))
    while gapq: gapq.pop(0)()
    mark(k, diag, 9)
    I("s_barrier")
    lateq = []
    for blk in range(3, 8): lateq += kv_closures(blk)
    I(f"s_load_dwordx2 s[6:7], s[0:1], {KA['wo']}")
    I(f"s_load_dwordx4 s[8:11], s[0:1], {KA['wg']}")
    I(f"s_load_dwordx2 s[12:13], s[0:1], {KA['wd']}")
    for sq, sb in ((sQA, sQblkA), (sQB, sQblkB)):
        I(f"s_lshl_b32 s{sq}, s{sb}, 5")
        I(f"s_add_u32 s{sq}, s{sq}, s{sH}")
        I(f"s_lshl_b32 s{sq}, s{sq}, 13")
    I(f"s_mov_b32 s{sFlag}, {force_slow}")
    I("s_waitcnt lgkmcnt(0)")
    k2.MARK0 = 6
    att_part(k, diag, store_flags, C0, lateq, sQblkA, sQblkB, 0, "Lk12_end")
    finish_k2(k)
    return k, 256, 256, 163840
```

```python
from common import *

OA, OB, QA, QB, F0, F1 = 0, 64, 128, 160, 192, 224
S0, S1, P0, P1, NMA, NMB = 64, 80, 96, 104, 112, 128
LANE, vL16, vWQ, vNINF = 2, 3, 4, 5
vQ = 6
vA0, vA1, vA2 = 10, 11, 12
vTH0, vTH1 = 13, 14
vTHA, vTHB = 22, 23
LA0, LA1, LB0, LB1, LC0, LC1 = 16, 17, 18, 19, 20, 21
vT = 24
SXN, SWQ, SKV, SCTX = 16, 20, 24, 28
sW, sH, sI = 40, 41, 42
sT, sT2, sB0, sDoff, sDslot, sDlim, sOOB, sCnt, sWL, sQA, sQB, sFlag, sTHR = 43, 44, 45, 46, 47, 48, 49, 50, 51, 52, 53, 54, 55
MSK = 90
KVR = [8*(r >> 2) + (r & 3) for r in range(16)]
COST = {"exp": 8}

from sched import Item, schedule, insert_lgkm_waits

def exp_group(S, regs, L, masked=False, th=None):
    out = []
    for i in range(0, len(regs), 2):
        pair = regs[i:i+2]
        for r in pair: out.append((f"v_exp_f32 v{S+r}, v{S+r}", 8))
        for j, r in enumerate(pair): out.append((f"v_add_f32 v{L[j]}, v{L[j]}, v{S+r}", 4))
    return out

def mask_group(S, th):
    out = []
    for i in range(0, 16, 4):
        for j in range(4):
            out.append((f"v_cmp_le_i32 s[{MSK+2*j}:{MSK+2*j+1}], {KVR[i+j]}, v{th}", 4))
        for j in range(4):
            out.append((f"v_cndmask_b32 v{S+i+j}, v{vNINF}, v{S+i+j}, s[{MSK+2*j}:{MSK+2*j+1}]", 4))
    return out

def cvt_group(S, P, lo, hi):
    return [(f"v_cvt_pk_bf16_f32 v{P+j}, v{S+2*j}, v{S+2*j+1}", 4) for j in range(lo, hi)]

def qk(S, F, Q, NM):
    out = []
    for c in range(8):
        C = f"v[{NM}:{NM+15}]" if c == 0 else f"v[{S}:{S+15}]"
        out.append(f"v_mfma_f32_32x32x16_bf16 v[{S}:{S+15}], a[{F+4*c}:{F+4*c+3}], a[{Q+4*c}:{Q+4*c+3}], {C}")
    return out

def pv(O, F, P):
    out = []
    for j in range(8):
        ks, db = j >> 2, j & 3
        out.append(f"v_mfma_f32_32x32x16_bf16 a[{O+16*db}:{O+16*db+15}], a[{F+4*j}:{F+4*j+3}], v[{P+4*ks}:{P+4*ks+3}], a[{O+16*db}:{O+16*db+15}]")
    return out

def rdK(F, c, vb, off=0): return f"ds_read_b128 a[{F+4*c}:{F+4*c+3}], v{vb} offset:{off + c*1024}"
def rdV(F, j, vb, off=0):
    ks, db = j >> 2, j & 3
    return f"ds_read_b128 a[{F+4*j}:{F+4*j+3}], v{vb} offset:{off + 8192 + (db*2 + ks)*1024}"

DBG = ""
QACC = 128
PREF = True
SPF, sPFo, vDUM = 16, 89, 60
def dma_ld(u): return f"buffer_load_dwordx4 v{vL16}, s[{SKV}:{SKV+3}], s{sDoff} offen offset:{u*1024} lds"
def dma_adv():
    return ["s_add_u32 m0, m0, 16384", "s_and_b32 m0, m0, 0x1ffff", f"s_add_u32 s{sDoff}, s{sDoff}, 16384"]

def softmax_items(S, L, regs, lo, hi, masks=None):
    E = {}; items = []
    hi0 = hi
    last_add = [None, None]
    for n, r in enumerate(regs):
        hi_r = lo + (hi0 - lo) * (n + 1) // len(regs)
        hi = max(hi_r, lo)
        e = Item(f"v_exp_f32 v{S+r}, v{S+r}", 2, lo, hi, deps=[masks.get(r) if masks else None])
        E[r] = e; items.append(e)
        a = Item(f"v_add_f32 v{L[n & 1]}, v{L[n & 1]}, v{S+r}", 1, lo, hi + 2, deps=[e], after=[last_add[n & 1]])
        last_add[n & 1] = a; items.append(a)
    return E, items

def mask_items(S, th, lo, hi):
    M = {}; items = []
    prev = [None]*4
    for i in range(16):
        j = i & 3
        c = Item(f"v_cmp_le_i32 s[{MSK+2*j}:{MSK+2*j+1}], {KVR[i]}, v{th}", 1, lo, hi, deps=[prev[j]])
        m = Item(f"v_cndmask_b32 v{S+i}, v{vNINF}, v{S+i}, s[{MSK+2*j}:{MSK+2*j+1}]", 1, lo, hi, deps=[c])
        prev[j] = m; M[i] = m; items += [c, m]
    return M, items

def cvt_items(S, P, js, E, lo, hi):
    return [Item(f"v_cvt_pk_bf16_f32 v{P+j}, v{S+2*j}, v{S+2*j+1}", 1, lo, hi, deps=[E.get(2*j), E.get(2*j+1)]) for j in js]

KREADS = [set(("a", F0 + 4*c + q) for q in range(4)) for c in range(8)]
VREADS = [set(("a", F1 + 4*c + q) for q in range(4)) for c in range(8)]
NE1A = 4

def body(k, kind, masked):
    dual_pv = kind in ("DD", "DS")
    dual_qk = kind == "DD"
    L0n = (LA0, LA1) if dual_qk else (LC0, LC1)
    L1 = (LB0, LB1)
    k.C(f"---- body {kind} masked={masked}")
    if kind == "SE":
        for j in range(8): k.I(rdV(F0, j, vA0, 16384))
        for f in exp_group(S1, list(range(NE1A, 16)), L1): k.I(f[0])
        for f in cvt_group(S1, P1, 0, 8): k.I(f[0])
        k.I("s_waitcnt lgkmcnt(8)")
        for m in pv(OB, F1, P0): k.I(m)
        k.I("s_waitcnt lgkmcnt(0)")
        for m in pv(OB, F0, P1): k.I(m)
        return
    items = []; pre = {}
    if kind == "DD":   mf = qk(S0, F0, QA, NMA) + pv(OA, F1, P0) + qk(S1, F0, QB, NMB) + pv(OB, F1, P1)
    elif kind == "DS": mf = qk(S0, F0, QB, NMB) + pv(OA, F1, P0) + qk(S1, F0, QB, NMB) + pv(OB, F1, P1)
    else:              mf = qk(S0, F0, QB, NMB) + pv(OB, F1, P0) + qk(S1, F0, QB, NMB) + pv(OB, F1, P1)
    E1b, it = softmax_items(S1, L1, list(range(NE1A, 16)), 0, 12); items += it
    items += cvt_items(S1, P1, range(0, 8), E1b, 0, 15)
    M0 = M1 = None
    if masked:
        M0, it = mask_items(S0, vTH0, 10, 22); items += it
        if kind != "DD":
            M1, it = mask_items(S1, vTH1, 26, 31); items += it
    E0, it = softmax_items(S0, L0n, list(range(16)), 10, 28, M0); items += it
    items += cvt_items(S0, P0, range(0, 4), E0, 12, 31)
    items += cvt_items(S0, P0, range(4, 8), E0, 16, 31)
    E1a, it = softmax_items(S1, L1, list(range(0, NE1A)), 26, 30, M1); items += it
    BAR = 19
    def chain(lst, after0=None):
        prev = after0
        for x in lst:
            if prev is not None: x.after.append(prev)
            items.append(x); prev = x
        return prev
    mid = []
    if kind == "DD":
        vm = 16
    elif kind == "DS":
        mid = [Item(rdK(F0, j, vA1), 1, j, j + 4, prio=3) for j in range(8)]
        vm = 12
    else:
        mid = [Item(rdK(F0, j, vA1, 16384), 1, j, j + 4, prio=3) for j in range(8)]
        mid += [Item(rdV(F1, j, vA0, 16384), 1, 8 + j, min(8 + j + 1, 16), prio=3) for j in range(8)]
        vm = 8
    chain(mid)
    pre[BAR] = [f"s_waitcnt vmcnt({vm}) lgkmcnt(0)", "s_barrier"]
    if kind == "DD":   kb, ko, vb, vo = vA1, 0, vA2, 0
    elif kind == "DS": kb, ko, vb, vo = vA2, 0, vA0, 0
    else:              kb, ko, vb, vo = vA2, 0, vA1, 0
    tailK = [Item(rdK(F0, j, kb, ko), 1, max(BAR, 16 + j), max(BAR, 16 + j) + 2, prio=3) for j in range(8)]
    tailV = [Item(rdV(F1, j, vb, vo), 1, 24 + j, 24 + j if j > 3 else 27, prio=3) for j in range(8)]
    addr_pre = []
    if kind == "DS":
        a0 = Item(f"v_add_u32 v{vA0}, 0x4000, v{vA0}", 1, 0, 15); a1 = Item(f"v_and_b32 v{vA0}, 0x1ffff, v{vA0}", 1, 0, 17, deps=[a0])
        c1 = Item(f"v_add_u32 v{vA2}, 0x4000, v{vA1}", 1, 0, 15); c2 = Item(f"v_and_b32 v{vA2}, 0x1ffff, v{vA2}", 1, 0, 17, deps=[c1])
        items += [a0, a1, c1, c2]
        for x in tailK: x.deps.append(c2)
        for x in tailV: x.deps.append(a1)
    last = chain(tailK + tailV)
    nblk = 2 if kind == "SS" else 1
    dl = []
    g0 = BAR
    for blk in range(nblk):
        for u in range(4): dl.append(Item(dma_ld(u), 1, min(g0 + blk*6 + u, 31), min(g0 + blk*6 + u + 1, 31)))
        for t in dma_adv(): dl.append(Item(t, 1, BAR, min(g0 + blk*6 + 5, 31)))
    chain(dl)
    if kind == "DD" and not masked and PREF:
        p1 = Item(f"buffer_load_dwordx4 v[{vDUM}:{vDUM+3}], v{vL16}, s[{SPF}:{SPF+3}], s{sPFo} offen", 1, 2, 12); items.append(p1)
        items.append(Item(f"s_add_u32 s{sPFo}, s{sPFo}, 1024", 1, 3, 15, after=[p1]))
    if kind == "DD":
        post = [f"v_mov_b32 v{vA0}, v{vA2}", f"v_mov_b32 v{vA2}, v{vA1}", f"v_add_u32 v{vA1}, 0x4000, v{vA1}", f"v_and_b32 v{vA1}, 0x1ffff, v{vA1}"]
    elif kind == "DS":
        post = [f"v_mov_b32 v{vA1}, v{vA2}", f"v_add_u32 v{vA2}, 0x8000, v{vA2}", f"v_and_b32 v{vA2}, 0x1ffff, v{vA2}"]
    else:
        post = [f"v_mov_b32 v{vA0}, v{vA1}", f"v_mov_b32 v{vA1}, v{vA2}", f"v_add_u32 v{vA2}, 0x8000, v{vA2}", f"v_and_b32 v{vA2}, 0x1ffff, v{vA2}"]
    if masked:
        if kind == "DD": items.append(Item(f"v_subrev_u32 v{vTH0}, 32, v{vTH0}", 1, 23, 31))
        else:
            items.append(Item(f"v_subrev_u32 v{vTH0}, 64, v{vTH0}", 1, 23, 31))
            post.append(f"v_subrev_u32 v{vTH1}, 64, v{vTH1}")
    seq, load = schedule(mf, items, cap=CAP, pre=pre)
    seq += post
    seq, outst = insert_lgkm_waits(seq, KREADS + VREADS, age=AGE, init_age=[-12 + j*5//8 for j in range(8)] + [-7 + j for j in range(8)])
    assert outst == KREADS + VREADS, [sorted(o)[0] for o in outst]
    if VERBOSE: print(kind, masked, "gap loads", load, "sum", sum(load) + len(post), "instrs", len(seq))
    for t in seq: k.I(t)

AGE = 4
CAP = 6
VERBOSE = True
def loop(k, name, kind, masked):
    k.I(f"s_sub_u32 s{sCnt}, s{sCnt}, 1")
    k.I(f"s_cbranch_scc1 {name}_end")
    k.L(name)
    body(k, kind, masked)
    k.I(f"s_sub_u32 s{sCnt}, s{sCnt}, 1")
    k.I(f"s_cbranch_scc0 {name}")
    k.L(name + "_end")

def epilogue(k, O, Lregs, sQ, flagbit, store_flags):
    I = k.I
    t = vT
    I(f"v_add_f32 v{t}, v{Lregs[0]}, v{Lregs[1]}")
    for r in Lregs[2:]: I(f"v_add_f32 v{t}, v{t}, v{r}")
    I(f"v_mov_b32 v{t+1}, v{t}")
    I(f"v_permlane32_swap_b32 v{t}, v{t+1}")
    I(f"v_add_f32 v{t}, v{t}, v{t+1}")
    I(f"v_rcp_f32 v{t+1}, v{t}")
    I(f"v_mov_b32 v{t+2}, 0")
    I(f"v_mov_b32 v{t+3}, 0")
    for c in range(8):
        db, ip = c >> 1, c & 1
        b = t + 8 + (c & 1)*12
        for j in range(8): I(f"v_accvgpr_read_b32 v{b+j}, a{O+16*db+8*ip+j}")
        for j in range(8): I(f"v_mul_f32 v{b+j}, v{b+j}, v{t+1}")
        for j in range(8): I(f"v_fmac_f32 v{t+2}, v{b+j}, v{t+3}")
        for j in range(4): I(f"v_cvt_pk_bf16_f32 v{b+8+j}, v{b+2*j}, v{b+2*j+1}")
        I(f"s_add_u32 s{sT}, s{sQ}, {c*1024}")
        I(f"buffer_store_dwordx4 v[{b+8}:{b+11}], v{vL16}, s[{SCTX}:{SCTX+3}], s{sT} offen {store_flags}")
    I(f"s_mov_b32 s{sT}, 0x5d800000")
    I(f"v_cmp_nle_f32 vcc, v{t}, s{sT}") if False else None
    I(f"v_mov_b32 v{t+4}, s{sT}")
    I(f"v_cmp_nle_f32 s[{MSK}:{MSK+1}], v{t}, v{t+4}")
    I(f"v_mov_b32 v{t+4}, 0x35800000")
    I(f"v_cmp_nge_f32 s[{MSK+2}:{MSK+3}], v{t}, v{t+4}")
    I(f"v_cmp_neq_f32 s[{MSK+4}:{MSK+5}], 0, v{t+2}")
    I(f"s_or_b64 s[{MSK}:{MSK+1}], s[{MSK}:{MSK+1}], s[{MSK+2}:{MSK+3}]")
    I(f"s_or_b64 s[{MSK}:{MSK+1}], s[{MSK}:{MSK+1}], s[{MSK+4}:{MSK+5}]")
    I(f"s_cmp_lg_u64 s[{MSK}:{MSK+1}], 0")
    I(f"s_cselect_b32 s{sT}, {flagbit}, 0")
    I(f"s_or_b32 s{sFlag}, s{sFlag}, s{sT}")

def slow_path(k, name, O, Q, sQ, sQblk_expr, store_flags, force=False):
    I = k.I
    m, l, mn, al, t = vT, vT+1, vT+2, vT+3, vT+4
    sQblk_expr()
    I(f"s_mov_b32 s{sDoff}, 0")
    I(f"v_mov_b32 v{m}, 0xff7fffff")
    I(f"v_mov_b32 v{l}, 0")
    for r in range(64): I(f"v_accvgpr_write_b32 a{O+r}, 0")
    I(f"v_and_b32 v{vTH0}, 31, v{LANE}")
    I(f"v_lshrrev_b32 v{t}, 5, v{LANE}")
    I(f"v_lshlrev_b32 v{t}, 2, v{t}")
    I(f"v_sub_u32 v{vTH0}, v{vTH0}, v{t}")
    I(f"s_lshl_b32 s{sT}, s{sCnt}, 5")
    I(f"v_add_u32 v{vTH0}, s{sT}, v{vTH0}")
    I(f"s_add_u32 s{sCnt}, s{sCnt}, 1")
    k.L(name)
    for c in range(8):
        I(f"s_add_u32 s{sT}, s{sDoff}, {c*1024}")
        I(f"buffer_load_dwordx4 a[{F0+4*c}:{F0+4*c+3}], v{vL16}, s[{SKV}:{SKV+3}], s{sT} offen")
    for j in range(8):
        ks, db = j >> 2, j & 3
        I(f"s_add_u32 s{sT}, s{sDoff}, {8192 + (db*2+ks)*1024}")
        I(f"buffer_load_dwordx4 a[{F1+4*j}:{F1+4*j+3}], v{vL16}, s[{SKV}:{SKV+3}], s{sT} offen")
    I("s_waitcnt vmcnt(8)")
    for c in range(8):
        C = "0" if c == 0 else f"v[{S0}:{S0+15}]"
        I(f"v_mfma_f32_32x32x16_bf16 v[{S0}:{S0+15}], a[{F0+4*c}:{F0+4*c+3}], a[{Q+4*c}:{Q+4*c+3}], {C}")
    for f in mask_group(S0, vTH0): I(f[0])
    I(f"v_max3_f32 v{mn}, v{S0}, v{S0+1}, v{m}")
    for r in range(2, 16, 2): I(f"v_max3_f32 v{mn}, v{S0+r}, v{S0+r+1}, v{mn}")
    I(f"v_mov_b32 v{t}, v{mn}")
    I(f"v_permlane32_swap_b32 v{mn}, v{t}")
    I(f"v_max_f32 v{mn}, v{mn}, v{t}")
    I(f"v_sub_f32 v{al}, v{m}, v{mn}")
    I(f"v_exp_f32 v{al}, v{al}")
    I(f"v_mov_b32 v{m}, v{mn}")
    I(f"v_mul_f32 v{l}, v{l}, v{al}")
    for r in range(16):
        I(f"v_sub_f32 v{S0+r}, v{S0+r}, v{mn}")
        I(f"v_exp_f32 v{S0+r}, v{S0+r}")
    for r in range(16): I(f"v_add_f32 v{l}, v{l}, v{S0+r}")
    for j in range(8): I(f"v_cvt_pk_bf16_f32 v{P0+j}, v{S0+2*j}, v{S0+2*j+1}")
    for r in range(64):
        I(f"v_accvgpr_read_b32 v{t}, a{O+r}")
        I(f"v_mul_f32 v{t}, v{t}, v{al}")
        I(f"v_accvgpr_write_b32 a{O+r}, v{t}")
    I("s_waitcnt vmcnt(0)")
    for mm in pv(O, F1, P0): I(mm)
    I(f"s_add_u32 s{sDoff}, s{sDoff}, 16384")
    I(f"v_subrev_u32 v{vTH0}, 32, v{vTH0}")
    I(f"s_sub_u32 s{sCnt}, s{sCnt}, 1")
    I(f"s_cmp_lg_u32 s{sCnt}, 0")
    I("s_nop 15")
    I(f"s_cbranch_scc1 {name}")
    I(f"v_mov_b32 v{LA0}, v{l}")
    I(f"v_mov_b32 v{LA1}, 0")
    epilogue(k, O, (LA0, LA1), sQ, 0, store_flags)

MARK0 = 0
MARKMAP = {3:10, 4:11, 5:12, 6:12, 7:12, 8:13, 9:13, 10:14, 11:15}
def amark(k, diag, i):
    mark(k, diag, MARKMAP[i] if MARK0 else i)

def att_part(k, diag, store_flags, C0, lateq, sQblkA, sQblkB, kidx, endlabel, reload_ptrs=False):
    I = k.I
    t0, t1 = vT, vT + 1
    I(f"s_mov_b32 s{sT}, {f32bits(QSCALE)}")
    for T, Q in ((0, QA), (1, QB)):
        for c in range(8):
            src = QACC + (T*4 + (c >> 1))*16 + 8*(c & 1)
            for j in range(8): I(f"v_mul_f32 v{src+j}, s{sT}, v{src+j}")
            for j in range(4): I(f"v_cvt_pk_bf16_f32 v{vT+j}, v{src+2*j}, v{src+2*j+1}")
            for j in range(4): I(f"v_accvgpr_write_b32 a{Q+4*c+j}, v{vT+j}")
            I(f"s_mov_b32 s{sT2}, s{sT}")
            if lateq: lateq.pop(0)(); I(f"s_mov_b32 s{sT}, s{sT2}")
    for r in range(128):
        I(f"v_accvgpr_write_b32 a{r}, 0")
        if r % 16 == 15 and lateq: lateq.pop(0)()
    while lateq: lateq.pop(0)()
    I(f"s_add_u32 m0, s{sWL}, {((8 + C0) % 8)*16384}")
    I(f"s_add_u32 s{sDoff}, s{sWL}, {8*16384}")
    for r in (LA0, LA1, LB0, LB1, LC0, LC1): I(f"v_mov_b32 v{r}, 0")
    I(f"v_and_b32 v{t0}, 31, v{LANE}")
    I(f"v_lshrrev_b32 v{t1}, 5, v{LANE}")
    I(f"v_lshlrev_b32 v{t1}, 2, v{t1}")
    I(f"v_sub_u32 v{t0}, v{t0}, v{t1}")
    I(f"s_lshl_b32 s{sT}, s{sQblkA}, 5")
    I(f"v_add_u32 v{vTH0}, s{sT}, v{t0}")
    I(f"v_mov_b32 v{vTHA}, v{vTH0}")
    I(f"s_lshl_b32 s{sT}, s{sQblkB}, 5")
    I(f"v_add_u32 v{vTH1}, s{sT}, v{t0}")
    I(f"v_mov_b32 v{vTHB}, v{vTH1}")
    amark(k, diag, 3)
    k.wait_vm("kv2", expect=4)
    I("s_barrier")
    I(f"v_add_u32 v{vA0}, {(C0 % 8)*16384}, v{vL16}")
    I(f"v_add_u32 v{vA2}, {((C0 + 1) % 8)*16384}, v{vL16}")
    I(f"v_add_u32 v{vA1}, {((C0 + 2) % 8)*16384}, v{vL16}")
    for c in range(8): I(rdK(F0, c, vA0))
    I("s_waitcnt lgkmcnt(0)")
    for S, Q in ((S0, QA), (S1, QB)):
        for c in range(8):
            C = "0" if c == 0 else f"v[{S}:{S+15}]"
            I(f"v_mfma_f32_32x32x16_bf16 v[{S}:{S+15}], a[{F0+4*c}:{F0+4*c+3}], a[{Q+4*c}:{Q+4*c+3}], {C}")
    for c in range(8): I(rdK(F0, c, vA2))
    for j in range(8): I(rdV(F1, j, vA0))
    for S, TH, NM in ((S0, vTH0, NMA), (S1, vTH1, NMB)):
        for f in mask_group(S, TH): I(f[0])
        I(f"v_max3_f32 v{t0}, v{S}, v{S+1}, v{S+2}")
        for r in range(3, 15, 2): I(f"v_max3_f32 v{t0}, v{S+r}, v{S+r+1}, v{t0}")
        I(f"v_max_f32 v{t0}, v{t0}, v{S+15}")
        I(f"v_mov_b32 v{t1}, v{t0}")
        I(f"v_permlane32_swap_b32 v{t0}, v{t1}")
        I(f"v_max_f32 v{t0}, v{t0}, v{t1}")
        for r in range(16): I(f"v_sub_f32 v{S+r}, v{S+r}, v{t0}")
        for r in range(16): I(f"v_sub_f32 v{NM+r}, 0, v{t0}")
    for f in exp_group(S0, list(range(16)), (LA0, LA1)): I(f[0])
    for f in cvt_group(S0, P0, 0, 8): I(f[0])
    for f in exp_group(S1, list(range(NE1A)), (LB0, LB1)): I(f[0])
    amark(k, diag, 4)
    PFT = {7: (6, 4096*640*2, 0, 27), 4: (6, 4096*640*2, 3456, 15), 5: (8, 640*1728*2, 0, 19), 6: (10, 640*1728*2, 0, 23),
           3: (12, 640*1728*2, 0, 11), 2: (12, 640*1728*2, 1408, 7)}
    I(f"s_mov_b32 s{SPF}, s6")
    I(f"s_mov_b32 s{SPF+1}, s7")
    I(f"s_mov_b32 s{SPF+2}, 0")
    I(f"s_mov_b32 s{SPF+3}, 0x20000")
    I(f"s_mov_b32 s{sPFo}, 0")
    I(f"s_lshl_b32 s{sT2}, s{sH}, 2")
    I(f"s_add_u32 s{sT2}, s{sT2}, s{sW}")
    for ii, (lo, size, start, iters) in PFT.items():
        I(f"s_cmp_eq_u32 s{sI}, {ii}")
        I(f"s_cselect_b32 s{SPF}, s{lo}, s{SPF}")
        I(f"s_cselect_b32 s{SPF+1}, s{lo+1}, s{SPF+1}")
        I(f"s_cselect_b32 s{SPF+2}, {size}, s{SPF+2}")
        I(f"s_mul_i32 s{sT}, s{sT2}, {iters*1024}")
        I(f"s_add_u32 s{sT}, s{sT}, {start*1024}")
        I(f"s_cmp_eq_u32 s{sI}, {ii}")
        I(f"s_cselect_b32 s{sPFo}, s{sT}, s{sPFo}")
    loops = []
    I(f"s_lshl_b32 s{sCnt}, s{sI}, 2")
    I(f"s_sub_u32 s{sCnt}, s{sCnt}, 1")
    I(f"s_max_i32 s{sCnt}, s{sCnt}, 0")
    loop(k, "Lk2_dd", "DD", False)
    amark(k, diag, 5)
    I(f"s_cmp_eq_u32 s{sI}, 0")
    I(f"s_cselect_b32 s{sCnt}, 3, 4")
    I(f"s_lshl_b32 s{sT}, s{sI}, 2")
    I(f"s_max_u32 s{sT}, s{sT}, 1")
    I(f"s_lshl_b32 s{sT}, s{sT}, 5")
    I(f"v_subrev_u32 v{vTH0}, s{sT}, v{vTHA}")
    loop(k, "Lk2_ddm", "DD", True)
    amark(k, diag, 6)
    I(f"s_lshl_b32 s{sT}, s{sI}, 7")
    I(f"s_add_u32 s{sT}, s{sT}, 128")
    I(f"v_subrev_u32 v{vTH0}, s{sT}, v{vTHB}")
    I(f"v_subrev_u32 v{vTH1}, 32, v{vTH0}")
    i0 = len(k.items)
    body(k, "DS", True)
    ds_rng = (i0, len(k.items))
    amark(k, diag, 7)
    I(f"s_lshl_b32 s{sT}, s{sI}, 2")
    I(f"s_sub_u32 s{sCnt}, 27, s{sT}")
    I(f"s_max_i32 s{sCnt}, s{sCnt}, 0")
    loop(k, "Lk2_ss", "SS", False)
    amark(k, diag, 8)
    I(f"s_cmp_eq_u32 s{sI}, 7")
    I(f"s_cselect_b32 s{sCnt}, 1, 2")
    I(f"s_lshl_b32 s{sT}, s{sI}, 2")
    I(f"s_sub_u32 s{sT2}, 60, s{sT}")
    I(f"s_add_u32 s{sT}, s{sT}, 6")
    I(f"s_max_u32 s{sT}, s{sT}, s{sT2}")
    I(f"s_lshl_b32 s{sT}, s{sT}, 5")
    I(f"v_subrev_u32 v{vTH0}, s{sT}, v{vTHB}")
    I(f"v_subrev_u32 v{vTH1}, 32, v{vTH0}")
    loop(k, "Lk2_ssm", "SS", True)
    amark(k, diag, 9)
    body(k, "SE", False)
    amark(k, diag, 10)
    SWO, SWOT = 16, 20
    vWO, vWOr, WOF = S0, S0 + 5, S1
    I("s_barrier")
    srd(k, SWO, 6, 7, 4096*640*2)
    srd(k, SWOT, 14, 15, WOT_SIZE, WOT_OFF)
    I(f"s_mov_b32 s{sCnt}, 1639")
    I(f"s_mul_i32 s{sT2}, s{sW}, 320")
    for u in range(5):
        I(f"v_add_u32 v{t0}, s{sT2}, v{LANE}")
        I(f"v_add_u32 v{t0}, {64*u}, v{t0}")
        I(f"v_mul_lo_u32 v{t1}, v{t0}, s{sCnt}")
        I(f"v_lshrrev_b32 v{t1}, 16, v{t1}")
        I(f"v_mul_u32_u24 v{vWO+u}, 40, v{t1}")
        I(f"v_sub_u32 v{t0}, v{t0}, v{vWO+u}")
        I(f"v_mul_u32_u24 v{t1}, 1280, v{t1}")
        I(f"v_lshl_add_u32 v{vWO+u}, v{t0}, 4, v{t1}")
    I(f"s_lshr_b32 s{sT}, s2, 1")
    I(f"s_mul_i32 s{sDoff}, s{sT}, {32*1280}")
    I(f"s_and_b32 s{sT}, s2, 1")
    I(f"s_mul_i32 s{sT}, s{sT}, 640")
    I(f"s_add_u32 s{sDoff}, s{sDoff}, s{sT}")
    I(f"s_mul_i32 s{sT2}, s{sW}, 5120")
    for u in range(5):
        I(f"s_add_u32 m0, s{sT2}, {u*1024}")
        I(f"buffer_load_dwordx4 v{vWO+u}, s[{SWO}:{SWO+3}], s{sDoff} offen lds", tag="wo")
    I(f"v_lshrrev_b32 v{t0}, 5, v{LANE}")
    I(f"v_lshlrev_b32 v{t0}, 4, v{t0}")
    I(f"v_bfe_u32 v{t1}, v{LANE}, 4, 1")
    I(f"v_lshl_add_u32 v{t0}, v{t1}, 2, v{t0}")
    I(f"v_bfe_u32 v{t1}, v{LANE}, 2, 2")
    I(f"v_add_u32 v{t0}, v{t0}, v{t1}")
    I(f"v_mul_u32_u24 v{vWOr}, 640, v{t0}")
    I(f"v_and_b32 v{t1}, 3, v{LANE}")
    I(f"v_lshl_add_u32 v{vWOr}, v{t1}, 3, v{vWOr}")
    I(f"s_mul_i32 s{sT}, s{sW}, 160")
    I(f"v_add_u32 v{vWOr}, s{sT}, v{vWOr}")
    epilogue(k, OA, (LA0, LA1), sQA, 1, store_flags)
    epilogue(k, OB, (LB0, LB1, LC0, LC1), sQB, 2, store_flags)
    k.wait_vm("wo", expect=5)
    I("s_barrier")
    for nt in range(5):
        I(f"ds_read_b64_tr_b16 v[{WOF+4*nt}:{WOF+4*nt+1}], v{vWOr} offset:{nt*32}")
        I(f"ds_read_b64_tr_b16 v[{WOF+4*nt+2}:{WOF+4*nt+3}], v{vWOr} offset:{nt*32 + 8*640}")
    I(f"s_and_b32 s{sDoff}, s2, 1")
    I(f"s_lshl_b32 s{sDoff}, s{sDoff}, 2")
    I(f"s_add_u32 s{sDoff}, s{sDoff}, s{sW}")
    I(f"s_lshl_b32 s{sDoff}, s{sDoff}, 7")
    I(f"s_lshr_b32 s{sT}, s2, 1")
    I(f"s_add_u32 s{sDoff}, s{sDoff}, s{sT}")
    I(f"s_mul_i32 s{sDoff}, s{sDoff}, 5120")
    I("s_waitcnt lgkmcnt(0)")
    for nt in range(5):
        I(f"s_add_u32 s{sT}, s{sDoff}, {nt*1024}")
        I(f"buffer_store_dwordx4 v[{WOF+4*nt}:{WOF+4*nt+3}], v{vL16}, s[{SWOT}:{SWOT+3}], s{sT} offen {store_flags}")
    amark(k, diag, 11)
    I(f"s_bitcmp1_b32 s{sFlag}, 0")
    I("s_cbranch_scc0 Lk2_noslowA")
    I("s_waitcnt vmcnt(0)")
    slow_path(k, "Lk2_slowA", OA, QA, sQA, lambda: I(f"s_mov_b32 s{sCnt}, s{sQblkA}"), store_flags)
    k.L("Lk2_noslowA")
    I(f"s_bitcmp1_b32 s{sFlag}, 1")
    I("s_cbranch_scc0 Lk2_noslowB")
    I("s_waitcnt vmcnt(0)")
    slow_path(k, "Lk2_slowB", OB, QB, sQB, lambda: I(f"s_mov_b32 s{sCnt}, s{sQblkB}"), store_flags)
    k.L("Lk2_noslowB")
    dump_marks(k, diag, kidx, 14, 15, 24)
    stamp_end(k, diag, kidx, 14, 15, vtmp=24)
    k.L(endlabel)
    I("s_endpgm")

def finish_k2(k):
    k.fix_hazards()
    trace = []
    items = k.items
    lab = {it[:-1]: idx for idx, it in enumerate(items) if isinstance(it, str) and it.endswith(":")}
    idx = 0
    names = ["Lk2_dd", "Lk2_ddm", "Lk2_ss", "Lk2_ssm"]
    segs = []
    pos = 0
    for nm in names:
        a, b = lab[nm], lab[nm + "_end"]
        segs.append(items[pos:a]); segs.append(items[a:b]); segs.append(items[a:b]); pos = b
    segs.append(items[pos:lab["Lk2_noslowA"]])
    for s_ in segs: trace += s_
    pr = check_seq(trace, "k2") + check_waits(trace, "k2")
    trace2 = items[:lab["Lk2_dd"]] + items[lab["Lk2_dd_end"]:lab["Lk2_ss"]] + items[lab["Lk2_ss_end"]:lab["Lk2_noslowA"]]
    pr += check_seq(trace2, "k2z") + check_waits(trace2, "k2z")
    for p_ in pr[:20]: print(p_)
    print("k2 problems:", len(pr))

def gen_k2(diag=False, store_flags="sc1", force_slow=0, dbg=""):
    global DBG
    DBG = dbg
    k = Kern("k2_kernel")
    I = k.I
    I("s_cmp_ge_u32 s2, 256")
    I("s_cbranch_scc1 Lk2_end")
    stamp_begin(k, diag)
    I(f"s_load_dwordx2 s[4:5], s[0:1], {KA['wq']}")
    I(f"s_load_dwordx2 s[14:15], s[0:1], {KA['ws']}")
    I(f"s_load_dwordx2 s[6:7], s[0:1], {KA['wo']}")
    I(f"s_load_dwordx4 s[8:11], s[0:1], {KA['wg']}")
    I(f"s_load_dwordx2 s[12:13], s[0:1], {KA['wd']}")
    I("v_lshrrev_b32 v1, 6, v0")
    I(f"v_and_b32 v{LANE}, 63, v0")
    I(f"v_readfirstlane_b32 s{sW}, v1")
    I(f"s_and_b32 s{sT}, s2, 7")
    I(f"s_lshr_b32 s{sT2}, s2, 3")
    I(f"s_and_b32 s{sH}, s{sT2}, 3")
    I(f"s_lshl_b32 s{sT}, s{sT}, 2")
    I(f"s_add_u32 s{sH}, s{sH}, s{sT}")
    I(f"s_lshr_b32 s{sI}, s2, 5")
    I("s_waitcnt lgkmcnt(0)")
    srd(k, SXN, 14, 15, XN_SIZE, XN_OFF)
    srd(k, SWQ, 4, 5, 640*4096*2)
    I(f"s_lshl_b32 s{sT}, s{sH}, 20")
    I(f"s_add_u32 s{sT}, s{sT}, {KV_OFF}")
    I(f"s_add_u32 s{SKV}, s14, s{sT}")
    I(f"s_addc_u32 s{SKV+1}, s15, 0")
    I(f"s_lshl_b32 s{sT}, s{sI}, 16")
    I(f"s_sub_u32 s{SKV+2}, {64*16384}, s{sT}")
    I(f"s_mov_b32 s{SKV+3}, 0x20000")
    srd(k, SCTX, 14, 15, CTX_SIZE, CTX_OFF)
    t0, t1 = vT, vT + 1
    I(f"v_lshlrev_b32 v{vL16}, 4, v{LANE}")
    I(f"v_lshrrev_b32 v{t0}, 4, v{LANE}")
    I(f"v_lshlrev_b32 v{vWQ}, 13, v{t0}")
    I(f"v_lshlrev_b32 v{t0}, 2, v{t0}")
    I(f"v_and_b32 v{t1}, 15, v{LANE}")
    I(f"v_xor_b32 v{t0}, v{t0}, v{t1}")
    I(f"v_lshl_add_u32 v{vWQ}, v{t0}, 4, v{vWQ}")
    I(f"v_lshrrev_b32 v{t1}, 5, v{LANE}")
    I(f"v_bfe_u32 v{t0}, v{LANE}, 2, 2")
    I(f"v_lshl_add_u32 v{t1}, v{t1}, 3, v{t0}")
    I(f"v_lshlrev_b32 v{t1}, 8, v{t1}")
    I(f"v_bfe_u32 v{t0+2}, v{LANE}, 4, 1")
    I(f"v_lshl_add_u32 v{t1}, v{t0+2}, 5, v{t1}")
    I(f"v_and_b32 v{t0+2}, 3, v{LANE}")
    I(f"v_lshl_add_u32 v{t1}, v{t0+2}, 3, v{t1}")
    for db in range(4):
        I(f"v_xor_b32 v{t0+2}, {db}, v{t0}")
        I(f"v_lshl_add_u32 v{vQ+db}, v{t0+2}, 6, v{t1}")
    I(f"v_mov_b32 v{vNINF}, 0xff800000")
    I(f"s_lshl_b32 s{sWL}, s{sW}, 12")
    sQblkA, sQblkB = 56, 57
    I(f"s_lshl_b32 s{sT}, s{sI}, 2")
    I(f"s_add_u32 s{sQblkA}, s{sT}, s{sW}")
    I(f"s_sub_u32 s{sQblkB}, 60, s{sT}")
    I(f"s_add_u32 s{sQblkB}, s{sQblkB}, s{sW}")
    sXA, sXB, sWq = 58, 59, 60+32
    sXA, sXB, sWq = 58, 59, 88
    I(f"s_mul_i32 s{sXA}, s{sQblkA}, 40960")
    I(f"s_mul_i32 s{sXB}, s{sQblkB}, 40960")
    for sq, sb in ((sQA, sQblkA), (sQB, sQblkB)):
        I(f"s_lshl_b32 s{sq}, s{sb}, 5")
        I(f"s_add_u32 s{sq}, s{sq}, s{sH}")
        I(f"s_lshl_b32 s{sq}, s{sq}, 13")
    I(f"s_lshl_b32 s{sWq}, s{sW}, 17")
    I(f"s_lshl_b32 s{sT}, s{sH}, 8")
    I(f"s_add_u32 s{sWq}, s{sWq}, s{sT}")
    I(f"s_mov_b32 s{sFlag}, {force_slow}")
    XR = 0
    QACC = 128
    def xload(s):
        for T, sx in ((0, sXA), (1, sXB)):
            a = XR + ((2*s + T) % 32)*4
            I(f"s_add_u32 s{sT}, s{sx}, {s*1024}")
            I(f"buffer_load_dwordx4 a[{a}:{a+3}], v{vL16}, s[{SXN}:{SXN+3}], s{sT} offen", tag=f"x{s}")
    def wdma_one(g, u):
        I(f"s_add_u32 m0, s{sWL}, {(g % 8)*16384 + u*1024}")
        I(f"s_add_u32 s{sT}, s{sWq}, {(64*g + 4*u)*8192}")
        I(f"buffer_load_dwordx4 v{vWQ}, s[{SWQ}:{SWQ+3}], s{sT} offen lds", tag=f"w{g}")
    def kv_one(blk, u):
        I(f"s_add_u32 m0, s{sWL}, {((blk + 10) % 8)*16384}")
        I(f"s_add_u32 s{sT}, s{sWL}, {blk*16384}")
        I(f"buffer_load_dwordx4 v{vL16}, s[{SKV}:{SKV+3}], s{sT} offen offset:{u*1024} lds", tag=f"kv{blk}")
    def kv_closures(blk): return [lambda u=u: kv_one(blk, u) for u in range(4)]
    def wread(n):
        g, s = n >> 2, n & 3
        F = F0 if n % 2 == 0 else F1
        F = F0 + (n % 2)*16
        off = (g % 8)*16384 + s*4096
        hi = off >= 65536
        for db in range(4):
            vb = vQ + db
            o = off
            if hi: vb = vT + 8 + db; o = off - 65536
            I(f"ds_read_b64_tr_b16 a[{F+4*db}:{F+4*db+1}], v{vb} offset:{o}", tag=f"r{n}")
            I(f"ds_read_b64_tr_b16 a[{F+4*db+2}:{F+4*db+3}], v{vb} offset:{o+1024}", tag=f"r{n}")
    for db in range(4): I(f"v_add_u32 v{vT+8+db}, 0x10000, v{vQ+db}")
    mark(k, diag, 0)
    for u in range(4): wdma_one(0, u)
    for s in range(0, 4): xload(s)
    for u in range(4): wdma_one(1, u)
    for s in range(4, 8): xload(s)
    for g in (2, 3):
        for u in range(4): wdma_one(g, u)
    gapq = []
    for s in range(8, 16): gapq.append(lambda s=s: xload(s))
    for g in range(4, 8):
        for u in range(4): gapq.append(lambda g=g, u=u: wdma_one(g, u))
    k.wait_vm("w0", expect=4)
    I("s_barrier")
    mark(k, diag, 1)
    wread(0)
    for n in range(40):
        g, s = n >> 2, n & 3
        if s == 2:
            if g + 1 < 10: k.wait_vm(f"w{g+1}", expect=4)
            I("s_barrier")
            if g >= 1:
                q = g - 1 + 8
                if q < 10:
                    for u in range(4): gapq.append(lambda q=q, u=u: wdma_one(q, u))
                elif g >= 7:
                    gapq += kv_closures(g - 7)
        if n + 1 < 40: wread(n + 1)
        k.wait_vm(f"x{n}", expect=2)
        k.wait_lg(f"r{n}")
        F = F0 + (n % 2)*16
        for db in range(4):
            for T in range(2):
                d = QACC + (T*4 + db)*16
                a = XR + ((2*n + T) % 32)*4
                c = "0" if n == 0 else f"v[{d}:{d+15}]"
                I(f"v_mfma_f32_32x32x16_bf16 v[{d}:{d+15}], a[{F+4*db}:{F+4*db+3}], a[{a}:{a+3}], {c}")
                if gapq: gapq.pop(0)()
        if n + 16 < 40: gapq.append(lambda s=n+16: xload(s))
    while gapq: gapq.pop(0)()
    mark(k, diag, 2)
    I("s_barrier")
    lateq = []
    for blk in range(3, 8): lateq += kv_closures(blk)
    att_part(k, diag, store_flags, 10, lateq, sQblkA, sQblkB, 1, "Lk2_end")
    finish_k2(k)
    return k, 256, 256, 131072
```

```python
from common import *

NLN = 128
NFF = 54

def wave_allreduce(k, op, v, tmp):
    I = k.I
    for r in (8, 4, 2, 1):
        I(f"{op} v{v}, v{v}, v{v} row_ror:{r}")
    I(f"v_mov_b32 v{tmp}, v{v}")
    I(f"v_permlane16_swap_b32 v{v}, v{tmp}")
    I(f"{op} v{v}, v{v}, v{tmp}")
    I(f"v_mov_b32 v{tmp}, v{v}")
    I(f"v_permlane32_swap_b32 v{v}, v{tmp}")
    I(f"{op} v{v}, v{v}, v{tmp}")

def gen_k5(diag=False, kidx=3):
    k = Kern("k5_kernel")
    I = k.I
    I(f"s_cmp_ge_u32 s2, {NLN+NFF}")
    I("s_cbranch_scc1 Lk5_end")
    stamp_begin(k, diag)
    I(f"s_load_dwordx2 s[4:5], s[0:1], {KA['wr']}")
    I(f"s_load_dwordx4 s[8:11], s[0:1], {KA['wg']}")
    I(f"s_load_dwordx4 s[44:47], s[0:1], {KA['wd']}")
    I(f"s_load_dwordx2 s[14:15], s[0:1], {KA['ws']}")
    LANE = 2
    sW, sT, sT2, sEPS, sF = 40, 41, 42, 43, 48
    I("v_lshrrev_b32 v1, 6, v0")
    I(f"v_and_b32 v{LANE}, 63, v0")
    I(f"v_readfirstlane_b32 s{sW}, v1")
    I(f"s_mov_b32 s{sEPS}, {f32bits(1e-5)}")
    I("s_waitcnt lgkmcnt(0)")
    SH, SOUT, SACC, SWR, SWG, SWU, SWD, SYP, SSEL = 16, 20, 24, 28, 32, 36, 52, 56, 84
    srd(k, SH, 14, 15, H_SIZE, H_OFF)
    I(f"s_cmp_ge_u32 s2, {NLN}")
    I("s_cbranch_scc1 Lk5_ffn")
    srd(k, SOUT, 46, 47, 2048*640*2)
    t0, t1, vO = 3, 4, 5
    I(f"v_lshrrev_b32 v{t0}, 4, v{LANE}")
    I(f"s_lshl_b32 s{sT}, s2, 4")
    I(f"s_lshl_b32 s{sT2}, s{sW}, 2")
    I(f"s_add_u32 s{sT}, s{sT}, s{sT2}")
    I(f"v_add_u32 v{t0}, s{sT}, v{t0}")
    I(f"v_mul_u32_u24 v{vO}, 1280, v{t0}")
    I(f"v_and_b32 v{t1}, 15, v{LANE}")
    I(f"v_lshl_add_u32 v{vO}, v{t1}, 4, v{vO}")
    HX, HN = 8, 28
    for u in range(5):
        I(f"buffer_load_dwordx4 v[{HX+4*u}:{HX+4*u+3}], v{vO}, s[{SH}:{SH+3}], 0 offen offset:{256*u}")
    I("s_waitcnt vmcnt(0)")
    ln_rows(k, HX, 5, 64, HN, sEPS)
    for i in range(20):
        I(f"v_lshlrev_b32 v50, 16, v{HX+i}")
        I(f"v_and_b32 v51, 0xffff0000, v{HX+i}")
        I(f"v_lshlrev_b32 v52, 16, v{HN+i}")
        I(f"v_and_b32 v53, 0xffff0000, v{HN+i}")
        I(f"v_add_f32 v50, v50, v52")
        I(f"v_add_f32 v51, v51, v53")
        I(f"v_cvt_pk_bf16_f32 v{HN+i}, v50, v51")
    for u in range(5):
        I(f"buffer_store_dwordx4 v[{HN+4*u}:{HN+4*u+3}], v{vO}, s[{SOUT}:{SOUT+3}], 0 offen offset:{256*u}")
    I("s_branch Lk5_fin")
    k.L("Lk5_ffn")
    I(f"s_sub_u32 s{sF}, s2, {NLN}")
    srd(k, SACC, 14, 15, ACC_SIZE, ACC_OFF)
    srd(k, SWR, 4, 5, 1280)
    t0, t1, t2, t3 = 3, 4, 5, 6
    ST = 64
    I(f"v_lshlrev_b32 v{t0}, 2, v0")
    for e in range(8):
        for j in range(3):
            I(f"s_mov_b32 s{sT}, {j*8192 + e*1024}")
            I(f"buffer_load_dword v{ST+3*e+j}, v{t0}, s[{SACC}:{SACC+3}], s{sT} offen", tag="st")
    WRX = 90
    I(f"v_mul_u32_u24 v{t1}, 20, v{LANE}")
    for j in range(5):
        I(f"buffer_load_dword v{WRX+j}, v{t1}, s[{SWR}:{SWR+3}], 0 offen offset:{4*j}", tag="wr")
    srd(k, SWG, 8, 9, 640*1728*2)
    srd(k, SWU, 10, 11, 640*1728*2)
    srd(k, SWD, 44, 45, 1728*640*2)
    srd(k, SYP, 14, 15, YP_SIZE, YP_OFF)
    srd(k, SSEL, 14, 15, SEL_SIZE, SEL_OFF)
    LG, LU, LD, LT, LHN, LKEY, LPART, LA_ = 0, 40960, 81920, 122880, 155648, 158208, 158272, 160320
    vWD, vL16 = 7, 8
    I(f"v_lshrrev_b32 v{t2}, 2, v{LANE}")
    I(f"v_mul_u32_u24 v{vWD}, 3456, v{t2}")
    I(f"v_and_b32 v{t2}, 3, v{LANE}")
    I(f"v_lshl_add_u32 v{vWD}, v{t2}, 4, v{vWD}")
    I(f"v_lshlrev_b32 v{vL16}, 4, v{LANE}")
    I(f"s_mul_i32 s{sT}, s{sW}, {160*3456}")
    I(f"s_lshl_b32 s{sT2}, s{sF}, 6")
    I(f"s_add_u32 s49, s{sT}, s{sT2}")
    I(f"s_mul_i32 s50, s{sW}, {160*64}")
    I(f"s_mul_i32 s51, s{sF}, {32*1280}")
    I(f"s_mul_i32 s{sT}, s{sW}, 10240")
    I(f"s_add_u32 s51, s51, s{sT}")
    I(f"s_mov_b32 s80, s{sT}")
    dq = []
    for (S, LB) in ((SWG, LG), (SWU, LU)):
        for u in range(10):
            dq.append([f"s_add_u32 m0, s50, {LB + u*1024}", f"s_add_u32 s81, s49, {u*16*3456}",
                       f"buffer_load_dwordx4 v{vWD}, s[{S}:{S+3}], s81 offen lds"])
    for u in range(10):
        dq.append([f"s_add_u32 m0, s80, {LD + u*1024}", f"s_add_u32 s81, s51, {u*1024}",
                   f"buffer_load_dwordx4 v{vL16}, s[{SWD}:{SWD+3}], s81 offen lds"])
    def pop_dma(n=1):
        for _ in range(n):
            if dq:
                for t_ in dq.pop(0): I(t_)
    mark(k, diag, 0)
    k.wait_vm("wr")
    mark(k, diag, 1)
    WS = 95
    I(f"v_mov_b32 v{WS}, 0")
    for j in range(5):
        I(f"v_lshlrev_b32 v{t1}, 16, v{WRX+j}")
        I(f"v_and_b32 v{t3}, 0xffff0000, v{WRX+j}")
        I(f"v_add_f32 v{WS}, v{WS}, v{t1}")
        I(f"v_add_f32 v{WS}, v{WS}, v{t3}")
    pop_dma(2)
    wave_allreduce(k, "v_add_f32", WS, t1)
    K1, K2, RR = 96, 97, 100
    MEAN, VAR, RB = 101, 102, 103
    I(f"v_mov_b32 v{K1}, 0")
    I(f"v_mov_b32 v{K2}, 0")
    I(f"v_lshlrev_b32 v{t2}, 4, v0")
    I(f"v_add_u32 v{t2}, {LT}, v{t2}")
    for e in range(8):
        s1, s2, s3 = ST+3*e, ST+3*e+1, ST+3*e+2
        I(f"v_mul_f32 v{MEAN}, {f32bits(1.0/640)}, v{s1}")
        I(f"v_mul_f32 v{VAR}, {f32bits(1.0/640)}, v{s2}")
        I(f"v_fma_f32 v{VAR}, -v{MEAN}, v{MEAN}, v{VAR}")
        I(f"v_max_f32 v{VAR}, 0, v{VAR}")
        bf16_round(k, MEAN); bf16_round(k, VAR)
        I(f"v_add_f32 v{VAR}, s{sEPS}, v{VAR}")
        pop_dma(1)
        bf16_round(k, VAR)
        I(f"v_sqrt_f32 v{VAR}, v{VAR}")
        bf16_round(k, VAR)
        I(f"v_rcp_f32 v{VAR}, v{VAR}")
        I(f"v_fma_f32 v{RB}, -v{MEAN}, v{WS}, v{s3}")
        I(f"v_mul_f32 v{RB}, v{RB}, v{VAR}")
        pop_dma(1)
        I(f"v_ashrrev_i32 v{t1}, 31, v{RB}")
        I(f"v_or_b32 v{t1}, 0x80000000, v{t1}")
        I(f"v_xor_b32 v{RR}, v{RB}, v{t1}")
        I(f"v_and_b32 v{RR}, 0xfffff800, v{RR}")
        I(f"v_sub_u32 v{t1}, {2047 - 256*e}, v0")
        I(f"v_or_b32 v{RR}, v{RR}, v{t1}")
        I(f"ds_write_b128 v{t2}, v[{RR}:{RR+3}] offset:{e*4096}")
        I(f"v_med3_u32 v{K2}, v{K1}, v{K2}, v{RR}")
        I(f"v_max_u32 v{K1}, v{K1}, v{RR}")
        pop_dma(1)
    mark(k, diag, 2)
    T1, T2 = 10, 11
    I(f"v_mov_b32 v{T1}, v{K1}")
    wave_allreduce(k, "v_max_u32", T1, t1)
    pop_dma(2)
    I(f"v_cmp_eq_u32 vcc, v{T1}, v{K1}")
    I(f"v_cndmask_b32 v{T2}, v{K1}, v{K2}, vcc")
    wave_allreduce(k, "v_max_u32", T2, t1)
    pop_dma(2)
    I(f"s_lshl_b32 s{sT}, s{sW}, 3")
    I(f"v_mov_b32 v{t1}, s{sT}")
    I(f"v_add_u32 v{t1}, {LKEY}, v{t1}")
    I(f"ds_write_b64 v{t1}, v[{T1}:{T1+1}]")
    I("s_waitcnt lgkmcnt(0)")
    I("s_barrier")
    KK = 12
    I(f"v_mov_b32 v{t1}, {LKEY}")
    I(f"ds_read_b128 v[{KK}:{KK+3}], v{t1}")
    I(f"ds_read_b128 v[{KK+4}:{KK+7}], v{t1} offset:16")
    I("s_waitcnt lgkmcnt(0)")
    I(f"v_mov_b32 v{K1}, 0")
    I(f"v_mov_b32 v{K2}, 0")
    for j in range(8):
        I(f"v_med3_u32 v{K2}, v{K1}, v{K2}, v{KK+j}")
        I(f"v_max_u32 v{K1}, v{K1}, v{KK+j}")
    for kx in (K1, K2):
        I(f"v_and_b32 v{kx}, 0x7ff, v{kx}")
        I(f"v_sub_u32 v{kx}, 2047, v{kx}")
    mark(k, diag, 3)
    I(f"v_bfe_u32 v{t1}, v{LANE}, 4, 1")
    I(f"v_cmp_eq_u32 vcc, 0, v{t1}")
    I(f"v_cndmask_b32 v{t3}, v{K2}, v{K1}, vcc")
    vRowSel = 11
    I(f"v_mov_b32 v{vRowSel}, v{t3}")
    I(f"v_lshlrev_b32 v{t2}, 4, v{t3}")
    I(f"v_add_u32 v{t2}, {LT}, v{t2}")
    REC = 56
    I(f"ds_read_b128 v[{REC}:{REC+3}], v{t2}")
    I(f"v_mul_u32_u24 v{t3}, 1280, v{t3}")
    I(f"v_and_b32 v{t0}, 15, v{LANE}")
    I(f"v_lshl_add_u32 v{t3}, v{t0}, 4, v{t3}")
    HX, HN = 12, 32
    for u in range(5):
        I(f"buffer_load_dwordx4 v[{HX+4*u}:{HX+4*u+3}], v{t3}, s[{SH}:{SH+3}], 0 offen offset:{256*u}", tag="hx")
    pop_dma(99)
    k.wait_vm("hx")
    I("s_waitcnt lgkmcnt(0)")
    mark(k, diag, 4)
    X = 164
    for i in range(20):
        I(f"v_lshlrev_b32 v{X}, 16, v{HX+i}")
        I(f"v_and_b32 v{X+1}, 0xffff0000, v{HX+i}")
        I(f"v_sub_f32 v{X}, v{X}, v{REC+1}")
        I(f"v_sub_f32 v{X+1}, v{X+1}, v{REC+1}")
        I(f"v_cvt_pk_bf16_f32 v{X+2}, v{X}, v{X+1}")
        I(f"v_lshlrev_b32 v{X}, 16, v{X+2}")
        I(f"v_and_b32 v{X+1}, 0xffff0000, v{X+2}")
        I(f"v_mul_f32 v{X}, v{X}, v{REC+2}")
        I(f"v_mul_f32 v{X+1}, v{X+1}, v{REC+2}")
        I(f"v_cvt_pk_bf16_f32 v{HN+i}, v{X}, v{X+1}")
    bf16_round(k, REC+3)
    I(f"v_mul_f32 v53, {f32bits(-1.4426950408889634)}, v{REC+3}")
    I(f"v_exp_f32 v53, v53")
    I(f"v_add_f32 v53, 1.0, v53")
    I(f"v_rcp_f32 v53, v53")
    bf16_round(k, 53)
    mark(k, diag, 5)
    I(f"v_bfe_u32 v{t1}, v{LANE}, 4, 1")
    I(f"v_mul_u32_u24 v{t1}, 1280, v{t1}")
    I(f"v_lshl_add_u32 v{t1}, v{t0}, 4, v{t1}")
    I(f"v_add_u32 v{t2}, {LHN}, v{t1}")
    I(f"s_cmp_lg_u32 s{sW}, 0")
    I("s_cbranch_scc1 Lk5_w0done")
    for u in range(5):
        I(f"ds_write_b128 v{t2}, v[{HN+4*u}:{HN+4*u+3}] offset:{256*u}")
    I(f"s_cmp_lg_u32 s{sF}, 0")
    I("s_cbranch_scc1 Lk5_w0done")
    I("s_mov_b32 exec_hi, 0")
    for u in range(5):
        I(f"buffer_store_dwordx4 v[{HN+4*u}:{HN+4*u+3}], v{t1}, s[{SSEL}:{SSEL+3}], 0 offen offset:{64 + 256*u}")
    I(f"v_bfe_u32 v{t2}, v{LANE}, 4, 1")
    I(f"v_lshlrev_b32 v{t2}, 3, v{t2}")
    I(f"v_mov_b32 v54, v{vRowSel}")
    I(f"v_mov_b32 v55, v53")
    I(f"buffer_store_dwordx2 v[54:55], v{t2}, s[{SSEL}:{SSEL+3}], 0 offen")
    I("s_mov_b64 exec, -1")
    k.L("Lk5_w0done")
    I("s_waitcnt vmcnt(0) lgkmcnt(0)")
    I("s_barrier")
    mark(k, diag, 6)
    I(f"v_and_b32 v{t0}, 1, v{LANE}")
    I(f"v_mul_u32_u24 v{t0}, 1280, v{t0}")
    I(f"v_lshrrev_b32 v{t1}, 4, v{LANE}")
    I(f"v_lshl_add_u32 v{t0}, v{t1}, 4, v{t0}")
    I(f"s_mul_i32 s{sT}, s{sW}, 320")
    I(f"s_add_u32 s{sT}, s{sT}, {LHN}")
    I(f"v_add_u32 v{t0}, s{sT}, v{t0}")
    I(f"v_bfe_u32 v{t2}, v{LANE}, 2, 2")
    I(f"v_lshl_add_u32 v{t2}, v{t1}, 3, v{t2}")
    I(f"v_lshlrev_b32 v{t2}, 6, v{t2}")
    I(f"v_and_b32 v{t3}, 3, v{LANE}")
    I(f"v_lshl_add_u32 v{t2}, v{t3}, 3, v{t2}")
    I(f"v_add_u32 v{t2}, s50, v{t2}")
    AF, BF = 12, 100
    for s_ in range(5):
        I(f"ds_read_b128 v[{AF+4*s_}:{AF+4*s_+3}], v{t0} offset:{64*s_}")
    for mi, LB in enumerate((LG, LU)):
        for ft in range(2):
            for s_ in range(5):
                r = BF + ((mi*2 + ft)*5 + s_)*4
                I(f"ds_read_b64_tr_b16 v[{r}:{r+1}], v{t2} offset:{LB + s_*2048 + ft*32}")
                I(f"ds_read_b64_tr_b16 v[{r+2}:{r+3}], v{t2} offset:{LB + s_*2048 + ft*32 + 256}")
    I("s_waitcnt lgkmcnt(0)")
    D = 72
    for s_ in range(5):
        for q in range(4):
            r = BF + (q*5 + s_)*4
            I(f"v_mfma_f32_16x16x32_bf16 v[{D+4*q}:{D+4*q+3}], v[{AF+4*s_}:{AF+4*s_+3}], v[{r}:{r+3}], " + ("0" if s_ == 0 else f"v[{D+4*q}:{D+4*q+3}]"))
    I(f"v_and_b32 v{t0}, 15, v{LANE}")
    I(f"v_lshlrev_b32 v{t0}, 2, v{t0}")
    I(f"s_lshl_b32 s{sT}, s{sW}, 9")
    I(f"s_add_u32 s{sT}, s{sT}, {LPART}")
    I(f"v_add_u32 v{t0}, s{sT}, v{t0}")
    I("s_mov_b32 exec_lo, 0xffff")
    I("s_mov_b32 exec_hi, 0")
    for mi in range(2):
        for ft in range(2):
            for tok in range(2):
                I(f"ds_write_b32 v{t0}, v{D+4*(mi*2+ft)+tok} offset:{(mi*2+tok)*128 + ft*64}")
    I("s_mov_b64 exec, -1")
    I("s_waitcnt lgkmcnt(0)")
    I("s_barrier")
    I(f"v_lshlrev_b32 v{t0}, 2, v{LANE}")
    I(f"v_add_u32 v{t0}, {LPART}, v{t0}")
    for w in range(4):
        I(f"ds_read_b32 v{12+w}, v{t0} offset:{w*512}")
        I(f"ds_read_b32 v{16+w}, v{t0} offset:{w*512 + 256}")
    I("s_waitcnt lgkmcnt(0)")
    for b in (12, 16):
        I(f"v_add_f32 v{b}, v{b}, v{b+1}")
        I(f"v_add_f32 v{b+2}, v{b+2}, v{b+3}")
        I(f"v_add_f32 v{b}, v{b}, v{b+2}")
        bf16_round(k, b)
    I(f"v_mul_f32 v13, {f32bits(-1.4426950408889634)}, v12")
    I(f"v_exp_f32 v13, v13")
    I(f"v_add_f32 v13, 1.0, v13")
    I(f"v_rcp_f32 v13, v13")
    I(f"v_mul_f32 v12, v12, v13")
    bf16_round(k, 12)
    I(f"v_mul_f32 v12, v12, v16")
    I(f"v_cvt_pk_bf16_f32 v12, v12, v12")
    I(f"v_lshlrev_b32 v{t1}, 1, v{LANE}")
    I(f"v_add_u32 v{t1}, {LA_}, v{t1}")
    I(f"ds_write_b16 v{t1}, v12")
    I("s_waitcnt lgkmcnt(0)")
    mark(k, diag, 7)
    I(f"v_and_b32 v{t0}, 1, v{LANE}")
    I(f"v_lshlrev_b32 v{t0}, 6, v{t0}")
    I(f"v_lshrrev_b32 v{t1}, 4, v{LANE}")
    I(f"v_lshl_add_u32 v{t0}, v{t1}, 4, v{t0}")
    I(f"v_add_u32 v{t0}, {LA_}, v{t0}")
    I(f"ds_read_b128 v[12:15], v{t0}")
    I(f"v_bfe_u32 v{t2}, v{LANE}, 2, 2")
    I(f"v_lshl_add_u32 v{t2}, v{t1}, 3, v{t2}")
    I(f"v_mul_u32_u24 v{t2}, 1280, v{t2}")
    I(f"v_and_b32 v{t3}, 3, v{LANE}")
    I(f"v_lshl_add_u32 v{t2}, v{t3}, 3, v{t2}")
    I(f"s_mul_i32 s{sT}, s{sW}, 320")
    I(f"s_add_u32 s{sT}, s{sT}, {LD}")
    I(f"v_add_u32 v{t2}, s{sT}, v{t2}")
    for nt in range(10):
        r = 100 + 4*nt
        I(f"ds_read_b64_tr_b16 v[{r}:{r+1}], v{t2} offset:{nt*32}")
        I(f"ds_read_b64_tr_b16 v[{r+2}:{r+3}], v{t2} offset:{nt*32 + 4*1280}")
    I("s_waitcnt lgkmcnt(0)")
    for nt in range(10):
        I(f"v_mfma_f32_16x16x32_bf16 v[{140+4*nt}:{143+4*nt}], v[12:15], v[{100+4*nt}:{103+4*nt}], 0")
    I(f"v_and_b32 v{t0}, 15, v{LANE}")
    I(f"v_lshlrev_b32 v{t0}, 2, v{t0}")
    I(f"s_mul_i32 s{sT}, s{sF}, 5120")
    I(f"s_mul_i32 s{sT2}, s{sW}, 640")
    I(f"s_add_u32 s{sT}, s{sT}, s{sT2}")
    I("s_mov_b32 exec_lo, 0xffff")
    I("s_mov_b32 exec_hi, 0")
    for nt in range(10):
        I(f"buffer_store_dword v{140+4*nt}, v{t0}, s[{SYP}:{SYP+3}], s{sT} offen offset:{nt*64}")
        I(f"buffer_store_dword v{141+4*nt}, v{t0}, s[{SYP}:{SYP+3}], s{sT} offen offset:{2560 + nt*64}")
    I("s_mov_b64 exec, -1")
    mark(k, diag, 8)
    dump_marks(k, diag, kidx, 14, 15, 4)
    k.L("Lk5_fin")
    stamp_end(k, diag, kidx, 14, 15, vtmp=4)
    k.L("Lk5_end")
    I("s_endpgm")
    k.fix_hazards()
    return k, 216, 0, 160448, NLN + NFF

def gen_k6(diag=False, kidx=4):
    k = Kern("k6_kernel")
    I = k.I
    I("s_cmp_ge_u32 s2, 20")
    I("s_cbranch_scc1 Lk6_end")
    stamp_begin(k, diag)
    I(f"s_load_dwordx2 s[4:5], s[0:1], {KA['out']}")
    I(f"s_load_dwordx2 s[14:15], s[0:1], {KA['ws']}")
    LANE = 2
    sW, sT, sTok, sC = 40, 41, 42, 43
    I("v_lshrrev_b32 v1, 6, v0")
    I(f"v_and_b32 v{LANE}, 63, v0")
    I(f"v_readfirstlane_b32 s{sW}, v1")
    I(f"s_cmp_ge_u32 s2, 10")
    I(f"s_cselect_b32 s{sTok}, 1, 0")
    I(f"s_mul_i32 s{sT}, s{sTok}, 10")
    I(f"s_sub_u32 s{sC}, s2, s{sT}")
    I("s_waitcnt lgkmcnt(0)")
    SOUT, SYP, SSEL, SH = 16, 20, 24, 28
    srd(k, SOUT, 4, 5, 2048*640*2)
    srd(k, SYP, 14, 15, YP_SIZE, YP_OFF)
    srd(k, SSEL, 14, 15, SEL_SIZE, SEL_OFF)
    srd(k, SH, 14, 15, H_SIZE, H_OFF)
    I(f"s_lshl_b32 s{sT}, s{sC}, 6")
    I(f"v_add_u32 v3, s{sT}, v{LANE}")
    I(f"v_lshlrev_b32 v4, 2, v3")
    I(f"s_mul_i32 s44, s{sW}, {14*5120}")
    I(f"s_mul_i32 s{sT}, s{sTok}, 2560")
    I(f"s_add_u32 s44, s44, s{sT}")
    for j in range(14):
        I(f"s_add_u32 s{sT}, s44, {j*5120}")
        I(f"buffer_load_dword v{16+j}, v4, s[{SYP}:{SYP+3}], s{sT} offen")
    I(f"s_lshl_b32 s{sT}, s{sTok}, 3")
    I(f"v_mov_b32 v5, s{sT}")
    I(f"buffer_load_dwordx2 v[6:7], v5, s[{SSEL}:{SSEL+3}], 0 offen")
    I(f"s_mul_i32 s{sT}, s{sTok}, 1280")
    I(f"v_lshlrev_b32 v8, 1, v3")
    I(f"buffer_load_ushort v9, v8, s[{SSEL}:{SSEL+3}], s{sT} offen offset:64")
    I("s_waitcnt vmcnt(0)")
    I(f"v_mul_u32_u24 v10, 1280, v6")
    I(f"v_add_u32 v10, v10, v8")
    I(f"buffer_load_ushort v11, v10, s[{SH}:{SH+3}], 0 offen")
    for j in range(1, 14): I(f"v_add_f32 v16, v16, v{16+j}")
    I(f"v_lshlrev_b32 v12, 2, v0")
    I(f"ds_write_b32 v12, v16")
    I("s_waitcnt lgkmcnt(0)")
    I("s_barrier")
    I(f"s_cmp_lg_u32 s{sW}, 0")
    I("s_cbranch_scc1 Lk6_fin")
    I(f"v_lshlrev_b32 v12, 2, v{LANE}")
    I("ds_read_b32 v16, v12")
    I("ds_read_b32 v17, v12 offset:256")
    I("ds_read_b32 v18, v12 offset:512")
    I("ds_read_b32 v19, v12 offset:768")
    I("s_waitcnt lgkmcnt(0) vmcnt(0)")
    I("v_add_f32 v16, v16, v17")
    I("v_add_f32 v18, v18, v19")
    I("v_add_f32 v16, v16, v18")
    bf16_round(k, 16)
    I("v_mul_f32 v16, v16, v7")
    bf16_round(k, 16)
    I("v_lshlrev_b32 v9, 16, v9")
    I("v_add_f32 v16, v16, v9")
    bf16_round(k, 16)
    I("v_lshlrev_b32 v11, 16, v11")
    I("v_add_f32 v16, v16, v11")
    I("v_cvt_pk_bf16_f32 v16, v16, v16")
    I(f"buffer_store_short v16, v10, s[{SOUT}:{SOUT+3}], 0 offen")
    k.L("Lk6_fin")
    stamp_end(k, diag, kidx, 14, 15, vtmp=20)
    k.L("Lk6_end")
    I("s_endpgm")
    k.fix_hazards()
    return k, 48, 0, 1024, 20
```

```python
import sys, os
sys.path.insert(0, os.path.dirname(__file__))
from common import *
NAME = "sequential_preLN__compressed_kv_cla__moe_arch_mod__prompt"
HEADER = """; Kernarg layout (112 bytes, ptrs only): x, c_kv, w_q, w_uk, w_uv, w_o, B_x, w_r, w_gate, w_up, w_down, out, debug, ws
"""
def build(kernels, path):
    out = [HEADER]
    for (k, v, a, lds, grid, block) in kernels:
        out.append(f"; @launch kernel={k.name} grid=({grid},1,1) block=({block},1,1) lds={lds}\n")
    out.append('.amdgcn_target "amdgcn-amd-amdhsa--gfx950"\n.text\n')
    descs = []
    for (k, v, a, lds, grid, block) in kernels:
        body, desc = kernel_text(k, v, a)
        out.append(body); descs.append(desc)
    out.append('.section .rodata,"a"\n')
    for d in descs: out.append(".p2align 6\n" + d)
    open(path, "w").write("".join(out))

def all_kernels(diag=False, upto=99, opts={}):
    ks = []
    if opts.get("fused", True):
        from k12 import gen_k12
        k, v, a, lds = gen_k12(diag, **opts.get("k12", {})); ks.append((k, v, a, lds, 256, 256))
        if upto >= 3:
            from k3 import gen_k3
            k, v, a, lds = gen_k3(diag, kidx=1, **opts.get("k3", {})); ks.append((k, v, a, lds, 256, 256))
        if upto >= 4:
            from k5 import gen_k5, gen_k6
            k, v, a, lds, grid = gen_k5(diag, kidx=2, **opts.get("k5", {})); ks.append((k, v, a, lds, grid, 256))
            k, v, a, lds, grid = gen_k6(diag, kidx=3, **opts.get("k6", {})); ks.append((k, v, a, lds, grid, 256))
        return ks
    from k1 import gen_k1
    k, v, a, lds = gen_k1(diag, **opts.get("k1", {})); ks.append((k, v, a, lds, 256, 256))
    if upto >= 2:
        from k2 import gen_k2
        k, v, a, lds = gen_k2(diag, **opts.get("k2", {})); ks.append((k, v, a, lds, 256, 256))
    if upto >= 3:
        from k3 import gen_k3
        k, v, a, lds = gen_k3(diag, **opts.get("k3", {})); ks.append((k, v, a, lds, 256, 256))
    if upto >= 4:
        from k5 import gen_k5, gen_k6
        k, v, a, lds, grid = gen_k5(diag, **opts.get("k5", {})); ks.append((k, v, a, lds, grid, 256))
        k, v, a, lds, grid = gen_k6(diag, **opts.get("k6", {})); ks.append((k, v, a, lds, grid, 256))
    return ks

if __name__ == "__main__":
    upto = int(sys.argv[1]) if len(sys.argv) > 1 else 99
    diag = len(sys.argv) > 2 and sys.argv[2] == "diag"
    path = sys.argv[3] if len(sys.argv) > 3 else f"cdna_kernels/{NAME}.s"
    import json
    opts = json.loads(os.environ.get("OPTS", "{}"))
    build(all_kernels(diag, upto, opts), path)
    print("wrote", path, os.path.getsize(path))
```

```python
import re
from common import *
import k2
from k2 import (LANE, vL16, vWQ, vNINF, vQ, vT, SXN, SWQ, SKV, SCTX, sW, sH, sI, sWL, sQA, sQB, sFlag, QACC, att_part, finish_k2)

SPIN_MAX = 1 << 22
import os
FINE = bool(os.environ.get('FINE'))

class Flat:
    def __init__(self, k): self.k = k; self.pend = []; self.mf = 0
    def emit(self, text, tag=None, age=3):
        k = self.k
        for line in text.split("\n"):
            line = line.strip()
            if not line: continue
            if line.endswith(":") or line.startswith(";"):
                k.I(line); continue
            it = Ins(line)
            if it.mn == "s_waitcnt":
                m = re.search(r"lgkmcnt\((\d+)\)", line)
                if m:
                    nn = int(m.group(1)); self.pend = self.pend[len(self.pend)-nn:] if 0 < nn < len(self.pend) else ([] if nn == 0 else self.pend)
            touched = set(it.src) | set(it.dst)
            if it.cls != "ds":
                need = -1
                for i, (d, _) in enumerate(self.pend):
                    if d & touched: need = i
                if need >= 0:
                    j = need
                    while j + 1 < len(self.pend) and self.mf - self.pend[j+1][1] >= age + 1: j += 1
                    nn = min(len(self.pend) - 1 - j, 15)
                    k.I(f"s_waitcnt lgkmcnt({nn})")
                    self.pend = self.pend[len(self.pend)-nn:] if nn > 0 else []
            if it.cls == "mfma": self.mf += 1
            if it.cls == "ds": self.pend.append((set(it.dst), self.mf))
            k.I(line, tag)

def gen_k12(diag=False, store_flags="sc1", wnt="nt", force_slow=0, STORE_EVERY=8, touch_at=12, qnt="", xtouch=False, FLAG_AT=None, kvflags=None, XLA=14):
    if kvflags is None: kvflags = store_flags
    k = Kern("k12_kernel")
    fl = Flat(k)
    I = fl.emit
    I("s_cmp_ge_u32 s2, 256")
    I("s_cbranch_scc1 Lk12_end")
    stamp_begin(k, diag)
    I(f"s_load_dwordx4 s[4:7], s[0:1], {KA['x']}")
    I(f"s_load_dwordx4 s[8:11], s[0:1], {KA['wuk']}")
    I(f"s_load_dwordx2 s[14:15], s[0:1], {KA['ws']}")
    I(f"s_load_dwordx2 s[56:57], s[0:1], {KA['wq']}")
    I(f"s_load_dwordx2 s[12:13], s[0:1], {KA['dbg']}")
    I("v_lshrrev_b32 v1, 6, v0")
    I(f"v_and_b32 v{LANE}, 63, v0")
    I("v_readfirstlane_b32 s40, v1")
    I("s_and_b32 s43, s2, 7")
    I("s_lshr_b32 s44, s2, 3")
    I("s_and_b32 s41, s44, 3")
    I("s_lshl_b32 s43, s43, 2")
    I("s_add_u32 s41, s41, s43")
    I("s_lshr_b32 s42, s44, 2")
    I("s_waitcnt lgkmcnt(0)")
    fl.pend = []
    mark(k, diag, 0)
    SX, SC, SWK, SWV, SKVO, SXNO, SDBG = 16, 20, 24, 28, 32, 36, 84
    srd(k, SC, 6, 7, 2048*512*2)
    srd(k, SWK, 8, 9, 512*4096*2)
    srd(k, SWV, 10, 11, 512*4096*2)
    vXA, vXB, vLX, vLO = 36, 37, 45, 46
    vXR, vXRh = 48, 40
    vQh, vQg = 32, 58
    t0, t1 = 52, 53
    vPoll, vZero, vAOff, vOne = 54, 55, 56, 57
    vPA, vPD = 47, 8+4
    sX0, sX1, sKVb, sT, sEPS = 48, 49, 52, 53, 54
    sQblkA, sQblkB, sXA, sXB, sWq = 56, 57, 58, 59, 88
    sT3, sPol = 43, 44
    sNonce0 = 47
    I(f"v_lshrrev_b32 v{t0}, 3, v{LANE}")
    I(f"v_lshlrev_b32 v{vXA}, 10, v{t0}")
    I(f"v_lshrrev_b32 v{t0}, 4, v{LANE}")
    I(f"v_and_b32 v{t1}, 7, v{LANE}")
    I(f"v_xor_b32 v{t0}, v{t0}, v{t1}")
    I(f"v_lshl_add_u32 v{vXA}, v{t0}, 4, v{vXA}")
    I(f"v_xor_b32 v{vXB}, 64, v{vXA}")
    I(f"s_lshl_b32 s{sX0}, s42, 8")
    I(f"s_lshl_b32 s{sT}, s40, 6")
    I(f"s_add_u32 s{sX0}, s{sX0}, s{sT}")
    I(f"s_lshl_b32 s{sX0}, s{sX0}, 10")
    I(f"s_lshl_b32 s{sX1}, s40, 13")
    I(f"v_lshrrev_b32 v{t0}, 4, v{LANE}")
    I(f"v_lshlrev_b32 v{vWQ}, 13, v{t0}")
    I(f"v_lshlrev_b32 v{t0}, 2, v{t0}")
    I(f"v_and_b32 v{t1}, 15, v{LANE}")
    I(f"v_xor_b32 v{t0}, v{t0}, v{t1}")
    I(f"v_lshl_add_u32 v{vWQ}, v{t0}, 4, v{vWQ}")
    I(f"s_lshl_b32 s{sWq}, s{sW}, 17")
    I(f"s_lshl_b32 s{sT}, s{sH}, 8")
    I(f"s_add_u32 s{sWq}, s{sWq}, s{sT}")
    I(f"s_lshl_b32 s{sWL}, s{sW}, 12")
    XB = lambda s: (s % 3)*32768
    WB = lambda s: 98304 + (s & 1)*32768
    def xdma_one(s, u):
        k.I(f"s_add_u32 m0, s{sX1}, {XB(s) + u*1024}")
        k.I(f"s_add_u32 s{sT}, s{sX0}, {u*8192 + s*128}")
        k.I(f"buffer_load_dwordx4 v{vXA if u % 2 == 0 else vXB}, s[{SC}:{SC+3}], s{sT} offen lds", tag=f"X{s}")
    def wdma_one(s, m, u):
        S = SWK if m == 0 else SWV
        k.I(f"s_add_u32 m0, s{sWL}, {WB(s) + m*16384 + u*1024}")
        k.I(f"s_add_u32 s{sT}, s{sWq}, {(64*s + 4*u)*8192}")
        k.I(f"buffer_load_dwordx4 v{vWQ}, s[{S}:{S+3}], s{sT} offen {wnt} lds", tag=f"W{s}")
    def xd(s): return [lambda u=u: xdma_one(s, u) for u in range(8)]
    def wd(s): return [lambda m=m, u=u: wdma_one(s, m, u) for m in range(2) for u in range(4)]
    for f in xd(0)[:4] + wd(0)[:4] + xd(0)[4:] + wd(0)[4:]: f()
    for f in xd(1) + wd(1): f()
    mark(k, diag, 1)
    srd(k, SX, 4, 5, 2048*640*2)
    srd(k, SKVO, 14, 15, KV_SIZE, KV_OFF)
    srd(k, SXNO, 14, 15, XN_SIZE, XN_OFF)
    srd(k, SDBG, 12, 13, 256)
    I(f"v_bfe_u32 v{t0}, v{LANE}, 4, 1")
    I("s_lshl_b32 s45, s2, 3")
    I("s_lshl_b32 s46, s40, 1")
    I("s_add_u32 s45, s45, s46")
    I(f"v_add_u32 v{t0}, s45, v{t0}")
    I(f"v_and_b32 v{t1}, 15, v{LANE}")
    I(f"v_mul_u32_u24 v{vLX}, 1280, v{t0}")
    I(f"v_lshl_add_u32 v{vLX}, v{t1}, 4, v{vLX}")
    LNX, LNO = 192, 144
    I(f"v_lshrrev_b32 v{vLO}, 5, v{t0}")
    I(f"v_mul_u32_u24 v{vLO}, 40960, v{vLO}")
    I(f"v_and_b32 v{t0}, 31, v{t0}")
    I(f"v_lshl_add_u32 v{vLO}, v{t0}, 4, v{vLO}")
    I(f"v_lshrrev_b32 v{t0}, 1, v{t1}")
    I(f"v_lshl_add_u32 v{vLO}, v{t0}, 10, v{vLO}")
    I(f"v_and_b32 v{t0}, 1, v{t1}")
    I(f"v_lshl_add_u32 v{vLO}, v{t0}, 9, v{vLO}")
    I(f"v_mov_b32 v{t0}, 0x1000000")
    I(f"v_cmp_gt_u32 vcc, 32, v{LANE}")
    I(f"v_cndmask_b32 v{vLO}, v{t0}, v{vLO}, vcc")
    srd(k, 92, 14, 15, ACC_SIZE, ACC_OFF)
    I(f"s_mul_i32 s45, s2, 96")
    I(f"v_lshlrev_b32 v{t0}, 2, v0")
    I(f"v_mov_b32 v{t1}, 0x100000")
    I(f"v_cmp_gt_u32 vcc, 24, v0")
    I(f"v_cndmask_b32 v{t0}, v{t1}, v{t0}, vcc")
    I(f"v_mov_b32 v{t1}, 0")
    I(f"buffer_store_dword v{t1}, v{t0}, s[92:95], s45 offen")
    I(f"v_mov_b32 v{vZero}, 0")
    I(f"v_mov_b32 v{vOne}, 1")
    I(f"v_mov_b32 v{t1}, 0x100000")
    I(f"v_cmp_eq_u32 vcc, 0, v0")
    I(f"v_cndmask_b32 v{vAOff}, v{t1}, v{vZero}, vcc")
    k.I("s_memrealtime s[46:47]")
    k.I("s_waitcnt lgkmcnt(0)")
    k.I(f"s_or_b32 s{sNonce0}, s46, 1")
    k.I(f"v_mov_b32 v{vPoll}, s{sNonce0}")
    k.I(f"buffer_atomic_cmpswap v[{vPoll}:{vPoll+1}], v{vAOff}, s[{SDBG}:{SDBG+3}], 0 offen sc0 sc1", tag="nonce")
    I(f"v_lshrrev_b32 v{t1}, 5, v{LANE}")
    I(f"v_bfe_u32 v{t0}, v{LANE}, 1, 3")
    I(f"v_xor_b32 v{t0}, v{t0}, v{t1}")
    I(f"v_lshlrev_b32 v{t0}, 4, v{t0}")
    I(f"v_and_b32 v{vXR}, 31, v{LANE}")
    I(f"v_lshl_add_u32 v{vXR}, v{vXR}, 7, v{t0}")
    for j in range(1, 4):
        I(f"v_xor_b32 v{vXR+j}, {32*j}, v{vXR}")
        I(f"v_add_u32 v{vXR+j}, s{sX1}, v{vXR+j}")
    I(f"v_add_u32 v{vXR}, s{sX1}, v{vXR}")
    for j in range(4): I(f"v_add_u32 v{vXRh+j}, 0x10000, v{vXR+j}")
    a, b = t0, t1
    I(f"v_lshrrev_b32 v{b}, 5, v{LANE}")
    I(f"v_bfe_u32 v{a}, v{LANE}, 2, 2")
    I(f"v_lshl_add_u32 v{b}, v{b}, 3, v{a}")
    I(f"v_lshlrev_b32 v{b}, 8, v{b}")
    I(f"v_bfe_u32 v62, v{LANE}, 4, 1")
    I(f"v_lshl_add_u32 v{b}, v62, 5, v{b}")
    I(f"v_and_b32 v62, 3, v{LANE}")
    I(f"v_lshl_add_u32 v{b}, v62, 3, v{b}")
    for db in range(4):
        I(f"v_xor_b32 v62, {db}, v{a}")
        I(f"v_lshl_add_u32 v{vQ+db}, v62, 6, v{b}")
        I(f"v_add_u32 v{vQh+db}, 0x10000, v{vQ+db}")
        I(f"v_add_u32 v{vQg+db}, 0x20000, v{vQ+db}")
    I(f"v_lshlrev_b32 v{vL16}, 4, v{LANE}")
    I(f"v_mov_b32 v{vNINF}, 0xff800000")
    I(f"s_lshl_b32 s{sKVb}, s41, 6")
    I(f"s_lshl_b32 s{sT}, s42, 3")
    I(f"s_add_u32 s{sKVb}, s{sKVb}, s{sT}")
    I(f"s_lshl_b32 s{sT}, s40, 1")
    I(f"s_add_u32 s{sKVb}, s{sKVb}, s{sT}")
    I(f"s_lshl_b32 s{sKVb}, s{sKVb}, 14")
    I(f"s_mov_b32 s{sEPS}, {f32bits(1e-5)}")
    def tr_base(ldsoff):
        if ldsoff < 65536: return vQ, ldsoff
        if ldsoff < 131072: return vQh, ldsoff - 65536
        return vQg, ldsoff - 131072
    WR, XF = 64, 128
    def kv_reads(n):
        s, sp = n >> 2, n & 3
        out = []
        xo = XB(s)
        xr, xo = (vXR, xo) if xo < 65536 - 8192 else (vXRh, xo - 65536)
        for bb in range(2):
            r = XF + (n & 1)*8 + bb*4
            out.append(f"ds_read_b128 v[{r}:{r+3}], v{xr+sp} offset:{xo + bb*4096}")
        for db in range(4):
            for m in range(2):
                r = WR + (n & 1)*32 + m*16 + db*4
                base, o = tr_base(WB(s) + m*16384 + sp*4096)
                out.append(f"ds_read_b64_tr_b16 v[{r}:{r+1}], v{base+db} offset:{o}")
                out.append(f"ds_read_b64_tr_b16 v[{r+2}:{r+3}], v{base+db} offset:{o+1024}")
        return out
    def kv_mfmas(n):
        out = []
        for db in range(4):
            for m in range(2):
                w = WR + (n & 1)*32 + m*16 + db*4
                for bb in range(2):
                    x = XF + (n & 1)*8 + bb*4
                    d = m*128 + (db*2 + bb)*16
                    c = "0" if n == 0 else f"a[{d}:{d+15}]"
                    if m == 0: out.append(f"v_mfma_f32_32x32x16_bf16 a[{d}:{d+15}], v[{w}:{w+3}], v[{x}:{x+3}], {c}")
                    else:      out.append(f"v_mfma_f32_32x32x16_bf16 a[{d}:{d+15}], v[{x}:{x+3}], v[{w}:{w+3}], {c}")
        return out
    rec = Rec()
    ln_rows(rec, LNX, 5, 212, LNO, sEPS, T=24)
    lnq = list(rec.l)
    def ln_stores():
        for u in range(5):
            k.I(f"s_mov_b32 s{sT}, {u*8192}")
            k.I(f"buffer_store_dwordx4 v[{LNO+4*u}:{LNO+4*u+3}], v{vLO}, s[{SXNO}:{SXNO+3}], s{sT} offen sc1", tag="lnst")
    def lnload(u): k.I(f"buffer_load_dwordx4 v[{LNX+4*u}:{LNX+4*u+3}], v{vLX}, s[{SX}:{SX+3}], 0 offen offset:{256*u}", tag="lnx")
    QSLOT = {0: 4, 1: 5, 2: 0, 3: 1, 4: 6, 5: 7, 6: 2, 7: 3, 8: 8, 9: 9}
    C0 = 4
    XQV = [12, 16, 20, 24, 28, 36]
    def xq_reg(s, T):
        if s < 3: return "v", XQV[2*s + T]
        return "a", (8*((s - 3) % 32) + 4*T)
    def q_setup():
        r = Rec(); J = r.I
        J(f"s_mov_b32 s{SWQ}, s56"); J(f"s_mov_b32 s{SWQ+1}, s57"); J(f"s_mov_b32 s{SWQ+2}, {640*4096*2}"); J(f"s_mov_b32 s{SWQ+3}, 0x20000")
        J(f"s_add_u32 s{SXN}, s14, {XN_OFF}"); J(f"s_addc_u32 s{SXN+1}, s15, 0"); J(f"s_mov_b32 s{SXN+2}, {XN_SIZE}"); J(f"s_mov_b32 s{SXN+3}, 0x20000")
        J(f"s_lshl_b32 s{sT3}, s{sI}, 2")
        J(f"s_add_u32 s{sQblkA}, s{sT3}, s{sW}")
        J(f"s_sub_u32 s{sQblkB}, 60, s{sT3}")
        J(f"s_add_u32 s{sQblkB}, s{sQblkB}, s{sW}")
        J(f"s_mul_i32 s{sXA}, s{sQblkA}, 40960")
        J(f"s_mul_i32 s{sXB}, s{sQblkB}, 40960")
        return r.l
    def xq_load(s, T):
        c, r = xq_reg(s, T)
        k.I(f"s_add_u32 s{sT3}, s{sXA if T == 0 else sXB}, {s*1024}")
        k.I(f"buffer_load_dwordx4 {c}[{r}:{r+3}], v{vL16}, s[{SXN}:{SXN+3}], s{sT3} offen", tag=f"x{s}")
    def wq_one(g, u):
        k.I(f"s_add_u32 m0, s{sWL}, {QSLOT[g]*16384 + u*1024}")
        k.I(f"s_add_u32 s{sT3}, s{sWq}, {(64*g + 4*u)*8192}")
        k.I(f"buffer_load_dwordx4 v{vWQ}, s[{SWQ}:{SWQ+3}], s{sT3} offen {qnt} lds", tag=f"q{g}")
    def wq(g): return [lambda u=u: wq_one(g, u) for u in range(4)]
    SFL = 92
    sNonce = 47
    def flag_srd():
        k.I(f"s_add_u32 s{SFL}, s14, {FLG_OFF}"); k.I(f"s_addc_u32 s{SFL+1}, s15, 0")
        k.I(f"s_mov_b32 s{SFL+2}, {FLG_SIZE}"); k.I(f"s_mov_b32 s{SFL+3}, 0x20000")
    def get_nonce():
        k.wait_vm("nonce")
        k.I(f"v_readfirstlane_b32 s{sT3}, v{vPoll}")
        k.I(f"s_cmp_eq_u32 s{sT3}, 0")
        k.I(f"s_cselect_b32 s{sNonce}, s{sNonce}, s{sT3}")
        k.I(f"v_mov_b32 v{vOne}, s{sNonce}")
    def set_flag(soff_expr):
        flag_srd(); soff_expr()
        k.I(f"buffer_store_dword v{vOne}, v{vAOff}, s[{SFL}:{SFL+3}], s{sT3} offen sc1", tag="sig")
    def poll_issue(kind, tag):
        flag_srd()
        J = k.I
        if kind == "ln":
            J(f"s_lshl_b32 s{sT3}, s{sI}, 2")
            J(f"v_add_u32 v62, s{sT3}, v{LANE}")
            J(f"s_sub_u32 s{sT3}, 56, s{sT3}")
            J(f"v_add_u32 v63, s{sT3}, v{LANE}")
            J(f"v_cmp_gt_u32 vcc, 4, v{LANE}")
            J(f"v_cndmask_b32 v62, v63, v62, vcc")
            J(f"v_add_u32 v62, 32, v62")
            J(f"v_lshlrev_b32 v62, 7, v62")
        else:
            J(f"s_lshl_b32 s{sT3}, s{sH}, 7")
            J(f"v_lshlrev_b32 v62, 2, v{LANE}")
            J(f"v_add_u32 v62, s{sT3}, v62")
        J(f"v_mov_b32 v63, 0x100000")
        J(f"v_cmp_gt_u32 vcc, 8, v0")
        J(f"v_cndmask_b32 v{vPA}, v63, v62, vcc")
        ld = "buffer_load_dwordx4 v[%d:%d]" % (vPD, vPD+3) if kind == "ln" else "buffer_load_dword v%d" % vPD
        J(f"{ld}, v{vPA}, s[{SFL}:{SFL+3}], 0 offen sc1", tag=tag)
    def poll_check(kind, tag, name):
        k.wait_vm(tag)
        J = k.I
        nreg = 4 if kind == "ln" else 1
        ld = "buffer_load_dwordx4 v[%d:%d]" % (vPD, vPD+3) if kind == "ln" else "buffer_load_dword v%d" % vPD
        def test():
            J(f"v_cmp_eq_u32 vcc, v{vOne}, v{vPD}")
            for q in range(1, nreg):
                J(f"v_cmp_eq_u32 s[90:91], v{vOne}, v{vPD+q}")
                J(f"s_and_b64 vcc, vcc, s[90:91]")
            J(f"s_and_b32 s{sT3}, vcc_lo, 0xff")
            J(f"s_cmp_eq_u32 s{sT3}, 0xff")
        J(f"s_cmp_lg_u32 s{sW}, 0")
        J(f"s_cbranch_scc1 {name}_ok")
        test()
        J(f"s_cbranch_scc1 {name}_ok")
        J(f"s_mov_b32 s45, {SPIN_MAX}")
        k.L(name + "_spin")
        J("s_sleep 2")
        flag_srd()
        J(f"{ld}, v{vPA}, s[{SFL}:{SFL+3}], 0 offen sc1")
        k.vm.pop()
        J("s_waitcnt vmcnt(0)")
        J(f"s_sub_u32 s45, s45, 1")
        J(f"s_cbranch_scc1 {name}_ok")
        test()
        J(f"s_cbranch_scc0 {name}_spin")
        k.L(name + "_ok")
    def ln_flag():
        k.I(f"s_lshr_b32 s{sT3}, s2, 2"); k.I(f"s_add_u32 s{sT3}, s{sT3}, 32"); k.I(f"s_lshl_b32 s{sT3}, s{sT3}, 7")
        k.I(f"s_and_b32 s46, s2, 3"); k.I(f"s_lshl_b32 s46, s46, 2"); k.I(f"s_add_u32 s{sT3}, s{sT3}, s46")
    def kv_flag():
        k.I(f"s_lshl_b32 s{sT3}, s{sH}, 7"); k.I(f"s_lshl_b32 s46, s{sI}, 2"); k.I(f"s_add_u32 s{sT3}, s{sT3}, s46")
    def touch_wq():
        J = k.I
        J(f"s_mov_b32 s92, s56"); J(f"s_mov_b32 s93, s57"); J(f"s_mov_b32 s94, {640*4096*2}"); J(f"s_mov_b32 s95, 0x20000")
        J(f"s_mul_i32 s45, s42, 80"); J(f"s_mul_i32 s46, s40, 20"); J(f"s_add_u32 s45, s45, s46")
        J(f"s_lshl_b32 s45, s45, 13"); J(f"s_lshl_b32 s46, s41, 8"); J(f"s_add_u32 s45, s45, s46")
        J(f"v_lshrrev_b32 v62, 1, v{LANE}"); J(f"v_lshlrev_b32 v62, 13, v62"); J(f"v_and_b32 v63, 1, v{LANE}")
        J(f"v_lshl_add_u32 v62, v63, 7, v62"); J(f"v_mov_b32 v63, 0x2000000")
        J(f"v_cmp_gt_u32 vcc, 40, v{LANE}"); J(f"v_cndmask_b32 v62, v63, v62, vcc")
        J(f"buffer_load_dword v11, v62, s[92:95], s45 offen", tag="touch")
    def touch_xn():
        J = k.I
        J(f"s_and_b32 s45, s{sH}, 3"); J(f"s_mul_i32 s45, s45, 160")
        for j in range(3):
            J(f"v_add_u32 v62, s45, v{LANE}")
            if j: J(f"v_add_u32 v62, {64*j}, v62")
            J(f"v_subrev_u32 v63, 320, v62")
            J(f"v_cmp_gt_u32 vcc, 320, v62")
            J(f"v_cndmask_b32 v63, v63, v62, vcc")
            J(f"v_lshlrev_b32 v63, 7, v63")
            J(f"v_mov_b32 v62, s{sXB}")
            J(f"v_mov_b32 v53, s{sXA}")
            J(f"v_cndmask_b32 v62, v62, v53, vcc")
            J(f"v_add_u32 v63, v63, v62")
            if j == 2:
                J(f"v_mov_b32 v62, 0x2000000"); J(f"v_cmp_gt_u32 vcc, 32, v{LANE}"); J(f"v_cndmask_b32 v63, v62, v63, vcc")
            J(f"buffer_load_dword v11, v63, s[{SXN}:{SXN+3}], 0 offen", tag="touch")
    mark(k, diag, 2)
    memq = xd(2) + [lambda u=u: lnload(u) for u in range(5)]
    k.wait_vm("W0", expect=8)
    I("s_barrier")
    for t in kv_reads(0): I(t)
    mark(k, diag, 3)
    lnstarted = False; setupq = []
    for n in range(32):
        s, sp = n >> 2, n & 3
        if sp == 3 and s < 7:
            I("s_waitcnt lgkmcnt(0)")
            if FINE and s == 0: mark(k, diag, 14)
            k.wait_vm(f"W{s+1}", expect=8)
            if FINE and s == 0: mark(k, diag, 15)
            if s + 1 == 4: k.wait_vm("lnst", expect=5)
            if s + 1 == 7: poll_check("ln", "poll1", "Lk12_ln")
            I("s_barrier")
            if s + 1 == 7:
                if xtouch: memq.append(touch_xn)
                for s_ in range(3):
                    for T in range(2): memq.append(lambda s_=s_, T=T: xq_load(s_, T))
            if s + 1 == 4: get_nonce(); set_flag(ln_flag)
            if s + 2 < 8: memq += wd(s + 2)
            if s + 3 < 8: memq += xd(s + 3)
            if s + 1 == 6: memq += [lambda l=q_setup(): [k.I(x) for x in l]] + wq(0) + wq(1)
            if s + 1 == 7: memq += wq(2) + wq(3) + wq(4) + wq(5)
        if touch_at is not None and n == touch_at: memq.append(touch_wq)
        if n == 24: poll_issue("ln", "poll1")
        reads = kv_reads(n + 1) if n + 1 < 32 else []
        for gi, m in enumerate(kv_mfmas(n)):
            I(m)
            for _ in range(2):
                if reads and gi < 12: I(reads.pop(0))
            if memq and (gi % 2 == 0 or n < 8): memq.pop(0)()
            if n >= 5 and lnq:
                if not lnstarted:
                    k.wait_vm("lnx"); lnstarted = True
                for _ in range(3 if gi < 10 else 4):
                    if lnq: I(lnq.pop(0))
                if not lnq: memq.append(ln_stores)
        assert not reads
        if FINE:
            if n in (0, 1, 2, 3, 4, 7): mark(k, diag, {0: 4, 1: 5, 2: 6, 3: 7, 4: 12, 7: 13}[n])
        elif n in (3, 11, 19, 31): mark(k, diag, {3: 4, 11: 5, 19: 6, 31: 7}[n])
    while memq: memq.pop(0)()
    assert not lnq
    I("s_barrier")
    gapq = wq(6) + wq(7) + wq(8) + wq(9)
    def qreads(n):
        g, s = n >> 2, n & 3
        F = WR + (n % 2)*16
        base, o = tr_base(QSLOT[g]*16384 + s*4096)
        out = []
        for db in range(4):
            out.append(f"ds_read_b64_tr_b16 v[{F+4*db}:{F+4*db+1}], v{base+db} offset:{o}")
            out.append(f"ds_read_b64_tr_b16 v[{F+4*db+2}:{F+4*db+3}], v{base+db} offset:{o+1024}")
        return out
    def kv_one(blk, u):
        k.I(f"s_add_u32 m0, s{sWL}, {((blk + C0) % 8)*16384}")
        k.I(f"s_add_u32 s{sT3}, s{sWL}, {blk*16384}")
        k.I(f"buffer_load_dwordx4 v{vL16}, s[{SKV}:{SKV+3}], s{sT3} offen offset:{u*1024} lds", tag=f"kv{blk}")
    def kv_closures(blk): return [lambda u=u: kv_one(blk, u) for u in range(4)]
    conv = []
    for j in range(32):
        st = 96 + (j % 8)*4
        for q in range(4):
            t_ = (52, 62)[q & 1]
            conv.append((j, f"v_accvgpr_read_b32 v{t_}, a{8*j+2*q}"))
            conv.append((j, f"v_accvgpr_read_b32 v{t_+1}, a{8*j+2*q+1}"))
            conv.append((j, f"v_cvt_pk_bf16_f32 v{st+q}, v{t_}, v{t_+1}"))
    freed = -1
    stored = -1
    xq_next = 3
    def pop_conv(cnt):
        nonlocal freed
        for _ in range(cnt):
            if not conv: return
            j, t_ = conv[0]
            if j - 8 > stored: return
            conv.pop(0); I(t_)
            if not conv or conv[0][0] != j: freed = j
    def pop_store():
        nonlocal stored
        j = stored + 1
        if j >= 32 or j > freed: return False
        t, half = j >> 1, j & 1
        m, db, bb = t >> 3, (t >> 1) & 3, t & 1
        within = (2*db + half)*1024 if m == 0 else 8192 + (db*2 + half)*1024
        st = 96 + (j % 8)*4
        k.I(f"s_add_u32 s{sT}, s{sKVb}, {bb*16384 + within}")
        k.I(f"buffer_store_dwordx4 v[{st}:{st+3}], v{vL16}, s[{SKVO}:{SKVO+3}], s{sT} offen {kvflags}", tag="kvst")
        stored = j
        return True
    I(f"s_lshl_b32 s{sT3}, s{sH}, 20")
    I(f"s_add_u32 s{sT3}, s{sT3}, {KV_OFF}")
    I(f"s_add_u32 s{SKV}, s14, s{sT3}")
    I(f"s_addc_u32 s{SKV+1}, s15, 0")
    I(f"s_lshl_b32 s{sT3}, s{sI}, 16")
    I(f"s_sub_u32 s{SKV+2}, {64*16384}, s{sT3}")
    I(f"s_mov_b32 s{SKV+3}, 0x20000")
    srd(k, SCTX, 14, 15, CTX_SIZE, CTX_OFF)
    k.wait_vm("q0", expect=4)
    I("s_barrier")
    for t in qreads(0): I(t)
    mark(k, diag, 8)
    next_store = 2
    for n in range(40):
        g, s = n >> 2, n & 3
        if s == 2:
            if g + 1 < 10: k.wait_vm(f"q{g+1}", expect=4)
            if n == FLAG_AT:
                assert stored == 31, stored
                k.wait_vm("kvst", expect=32)
            if FLAG_AT is not None and n == FLAG_AT + 4: poll_check("kv", "poll2", "Lk12_kv")
            I("s_barrier")
            if n == FLAG_AT:
                set_flag(kv_flag); poll_issue("kv", "poll2")
            if FLAG_AT is not None and n == FLAG_AT + 4:
                for blk in range(3): gapq += kv_closures(blk)
        reads = qreads(n + 1) if n + 1 < 40 else []
        k.wait_vm(f"x{n}", expect=2)
        F = WR + (n % 2)*16
        gi = 0
        for db in range(4):
            for T in range(2):
                d = QACC + (T*4 + db)*16
                c_, r_ = xq_reg(n, T)
                c = "0" if n == 0 else f"v[{d}:{d+15}]"
                I(f"v_mfma_f32_32x32x16_bf16 v[{d}:{d+15}], v[{F+4*db}:{F+4*db+3}], {c_}[{r_}:{r_+3}], {c}")
                if reads: I(reads.pop(0))
                did = False
                if xq_next < 40 and xq_next <= n + XLA:
                    need = (xq_next - 3) % 32
                    ok = (freed >= need) if xq_next - 3 < 32 else (n > xq_next - 32)
                    if ok:
                        xq_load(xq_next, gi & 1 if False else 0); xq_load(xq_next, 1); xq_next += 1; did = True
                if not did and (8*n + gi) >= next_store and pop_store(): did = True; next_store = 8*n + gi + STORE_EVERY
                if not did and gapq: gapq.pop(0)()
                pop_conv(3)
                gi += 1
    while gapq: gapq.pop(0)()
    while stored < 31:
        pop_conv(99); pop_store()
    mark(k, diag, 9)
    if FLAG_AT is None:
        k.wait_vm("kvst", expect=32)
        I("s_barrier")
        set_flag(kv_flag)
        poll_issue("kv", "poll2")
        def kv_start():
            poll_check("kv", "poll2", "Lk12_kv")
            k.I("s_barrier")
            for blk in range(8):
                for f in kv_closures(blk): f()
        lateq = [kv_start]
    else:
        I("s_barrier")
        lateq = []
        for blk in range(3, 8): lateq += kv_closures(blk)
    I(f"s_load_dwordx2 s[6:7], s[0:1], {KA['wo']}")
    I(f"s_load_dwordx4 s[8:11], s[0:1], {KA['wg']}")
    I(f"s_load_dwordx2 s[12:13], s[0:1], {KA['wd']}")
    for sq, sb in ((sQA, sQblkA), (sQB, sQblkB)):
        I(f"s_lshl_b32 s{sq}, s{sb}, 5")
        I(f"s_add_u32 s{sq}, s{sq}, s{sH}")
        I(f"s_lshl_b32 s{sq}, s{sq}, 13")
    I(f"s_mov_b32 s{sFlag}, {force_slow}")
    I("s_waitcnt lgkmcnt(0)")
    k2.MARK0 = 6
    att_part(k, diag, store_flags, C0, lateq, sQblkA, sQblkB, 0, "Lk12_end")
    finish_k2(k)
    return k, 256, 256, 163840
```

```python
from common import *

OA, OB, QA, QB, F0, F1 = 0, 64, 128, 160, 192, 224
S0, S1, P0, P1, NMA, NMB = 64, 80, 96, 104, 112, 128
LANE, vL16, vWQ, vNINF = 2, 3, 4, 5
vQ = 6
vA0, vA1, vA2 = 10, 11, 12
vTH0, vTH1 = 13, 14
vTHA, vTHB = 22, 23
LA0, LA1, LB0, LB1, LC0, LC1 = 16, 17, 18, 19, 20, 21
vT = 24
SXN, SWQ, SKV, SCTX = 16, 20, 24, 28
sW, sH, sI = 40, 41, 42
sT, sT2, sB0, sDoff, sDslot, sDlim, sOOB, sCnt, sWL, sQA, sQB, sFlag, sTHR = 43, 44, 45, 46, 47, 48, 49, 50, 51, 52, 53, 54, 55
MSK = 90
KVR = [8*(r >> 2) + (r & 3) for r in range(16)]
COST = {"exp": 8}

from sched import Item, schedule, insert_lgkm_waits

def exp_group(S, regs, L, masked=False, th=None):
    out = []
    for i in range(0, len(regs), 2):
        pair = regs[i:i+2]
        for r in pair: out.append((f"v_exp_f32 v{S+r}, v{S+r}", 8))
        for j, r in enumerate(pair): out.append((f"v_add_f32 v{L[j]}, v{L[j]}, v{S+r}", 4))
    return out

def mask_group(S, th):
    out = []
    for i in range(0, 16, 4):
        for j in range(4):
            out.append((f"v_cmp_le_i32 s[{MSK+2*j}:{MSK+2*j+1}], {KVR[i+j]}, v{th}", 4))
        for j in range(4):
            out.append((f"v_cndmask_b32 v{S+i+j}, v{vNINF}, v{S+i+j}, s[{MSK+2*j}:{MSK+2*j+1}]", 4))
    return out

def cvt_group(S, P, lo, hi):
    return [(f"v_cvt_pk_bf16_f32 v{P+j}, v{S+2*j}, v{S+2*j+1}", 4) for j in range(lo, hi)]

def qk(S, F, Q, NM):
    out = []
    for c in range(8):
        C = f"v[{NM}:{NM+15}]" if c == 0 else f"v[{S}:{S+15}]"
        out.append(f"v_mfma_f32_32x32x16_bf16 v[{S}:{S+15}], a[{F+4*c}:{F+4*c+3}], a[{Q+4*c}:{Q+4*c+3}], {C}")
    return out

def pv(O, F, P):
    out = []
    for j in range(8):
        ks, db = j >> 2, j & 3
        out.append(f"v_mfma_f32_32x32x16_bf16 a[{O+16*db}:{O+16*db+15}], a[{F+4*j}:{F+4*j+3}], v[{P+4*ks}:{P+4*ks+3}], a[{O+16*db}:{O+16*db+15}]")
    return out

def rdK(F, c, vb, off=0): return f"ds_read_b128 a[{F+4*c}:{F+4*c+3}], v{vb} offset:{off + c*1024}"
def rdV(F, j, vb, off=0):
    ks, db = j >> 2, j & 3
    return f"ds_read_b128 a[{F+4*j}:{F+4*j+3}], v{vb} offset:{off + 8192 + (db*2 + ks)*1024}"

DBG = ""
QACC = 128
PREF = True
SPF, sPFo, vDUM = 16, 89, 60
def dma_ld(u): return f"buffer_load_dwordx4 v{vL16}, s[{SKV}:{SKV+3}], s{sDoff} offen offset:{u*1024} lds"
def dma_adv():
    return ["s_add_u32 m0, m0, 16384", "s_and_b32 m0, m0, 0x1ffff", f"s_add_u32 s{sDoff}, s{sDoff}, 16384"]

def softmax_items(S, L, regs, lo, hi, masks=None):
    E = {}; items = []
    hi0 = hi
    last_add = [None, None]
    for n, r in enumerate(regs):
        hi_r = lo + (hi0 - lo) * (n + 1) // len(regs)
        hi = max(hi_r, lo)
        e = Item(f"v_exp_f32 v{S+r}, v{S+r}", 2, lo, hi, deps=[masks.get(r) if masks else None])
        E[r] = e; items.append(e)
        a = Item(f"v_add_f32 v{L[n & 1]}, v{L[n & 1]}, v{S+r}", 1, lo, hi + 2, deps=[e], after=[last_add[n & 1]])
        last_add[n & 1] = a; items.append(a)
    return E, items

def mask_items(S, th, lo, hi):
    M = {}; items = []
    prev = [None]*4
    for i in range(16):
        j = i & 3
        c = Item(f"v_cmp_le_i32 s[{MSK+2*j}:{MSK+2*j+1}], {KVR[i]}, v{th}", 1, lo, hi, deps=[prev[j]])
        m = Item(f"v_cndmask_b32 v{S+i}, v{vNINF}, v{S+i}, s[{MSK+2*j}:{MSK+2*j+1}]", 1, lo, hi, deps=[c])
        prev[j] = m; M[i] = m; items += [c, m]
    return M, items

def cvt_items(S, P, js, E, lo, hi):
    return [Item(f"v_cvt_pk_bf16_f32 v{P+j}, v{S+2*j}, v{S+2*j+1}", 1, lo, hi, deps=[E.get(2*j), E.get(2*j+1)]) for j in js]

KREADS = [set(("a", F0 + 4*c + q) for q in range(4)) for c in range(8)]
VREADS = [set(("a", F1 + 4*c + q) for q in range(4)) for c in range(8)]
NE1A = 4

def body(k, kind, masked):
    dual_pv = kind in ("DD", "DS")
    dual_qk = kind == "DD"
    L0n = (LA0, LA1) if dual_qk else (LC0, LC1)
    L1 = (LB0, LB1)
    k.C(f"---- body {kind} masked={masked}")
    if kind == "SE":
        for j in range(8): k.I(rdV(F0, j, vA0, 16384))
        for f in exp_group(S1, list(range(NE1A, 16)), L1): k.I(f[0])
        for f in cvt_group(S1, P1, 0, 8): k.I(f[0])
        k.I("s_waitcnt lgkmcnt(8)")
        for m in pv(OB, F1, P0): k.I(m)
        k.I("s_waitcnt lgkmcnt(0)")
        for m in pv(OB, F0, P1): k.I(m)
        return
    items = []; pre = {}
    if kind == "DD":   mf = qk(S0, F0, QA, NMA) + pv(OA, F1, P0) + qk(S1, F0, QB, NMB) + pv(OB, F1, P1)
    elif kind == "DS": mf = qk(S0, F0, QB, NMB) + pv(OA, F1, P0) + qk(S1, F0, QB, NMB) + pv(OB, F1, P1)
    else:              mf = qk(S0, F0, QB, NMB) + pv(OB, F1, P0) + qk(S1, F0, QB, NMB) + pv(OB, F1, P1)
    E1b, it = softmax_items(S1, L1, list(range(NE1A, 16)), 0, 12); items += it
    items += cvt_items(S1, P1, range(0, 8), E1b, 0, 15)
    M0 = M1 = None
    if masked:
        M0, it = mask_items(S0, vTH0, 10, 22); items += it
        if kind != "DD":
            M1, it = mask_items(S1, vTH1, 26, 31); items += it
    E0, it = softmax_items(S0, L0n, list(range(16)), 10, 28, M0); items += it
    items += cvt_items(S0, P0, range(0, 4), E0, 12, 31)
    items += cvt_items(S0, P0, range(4, 8), E0, 16, 31)
    E1a, it = softmax_items(S1, L1, list(range(0, NE1A)), 26, 30, M1); items += it
    BAR = 19
    def chain(lst, after0=None):
        prev = after0
        for x in lst:
            if prev is not None: x.after.append(prev)
            items.append(x); prev = x
        return prev
    mid = []
    if kind == "DD":
        vm = 16
    elif kind == "DS":
        mid = [Item(rdK(F0, j, vA1), 1, j, j + 4, prio=3) for j in range(8)]
        vm = 12
    else:
        mid = [Item(rdK(F0, j, vA1, 16384), 1, j, j + 4, prio=3) for j in range(8)]
        mid += [Item(rdV(F1, j, vA0, 16384), 1, 8 + j, min(8 + j + 1, 16), prio=3) for j in range(8)]
        vm = 8
    chain(mid)
    pre[BAR] = [f"s_waitcnt vmcnt({vm}) lgkmcnt(0)", "s_barrier"]
    if kind == "DD":   kb, ko, vb, vo = vA1, 0, vA2, 0
    elif kind == "DS": kb, ko, vb, vo = vA2, 0, vA0, 0
    else:              kb, ko, vb, vo = vA2, 0, vA1, 0
    tailK = [Item(rdK(F0, j, kb, ko), 1, max(BAR, 16 + j), max(BAR, 16 + j) + 2, prio=3) for j in range(8)]
    tailV = [Item(rdV(F1, j, vb, vo), 1, 24 + j, 24 + j if j > 3 else 27, prio=3) for j in range(8)]
    addr_pre = []
    if kind == "DS":
        a0 = Item(f"v_add_u32 v{vA0}, 0x4000, v{vA0}", 1, 0, 15); a1 = Item(f"v_and_b32 v{vA0}, 0x1ffff, v{vA0}", 1, 0, 17, deps=[a0])
        c1 = Item(f"v_add_u32 v{vA2}, 0x4000, v{vA1}", 1, 0, 15); c2 = Item(f"v_and_b32 v{vA2}, 0x1ffff, v{vA2}", 1, 0, 17, deps=[c1])
        items += [a0, a1, c1, c2]
        for x in tailK: x.deps.append(c2)
        for x in tailV: x.deps.append(a1)
    last = chain(tailK + tailV)
    nblk = 2 if kind == "SS" else 1
    dl = []
    g0 = BAR
    for blk in range(nblk):
        for u in range(4): dl.append(Item(dma_ld(u), 1, min(g0 + blk*6 + u, 31), min(g0 + blk*6 + u + 1, 31)))
        for t in dma_adv(): dl.append(Item(t, 1, BAR, min(g0 + blk*6 + 5, 31)))
    chain(dl)
    if kind == "DD" and not masked and PREF:
        p1 = Item(f"buffer_load_dwordx4 v[{vDUM}:{vDUM+3}], v{vL16}, s[{SPF}:{SPF+3}], s{sPFo} offen", 1, 2, 12); items.append(p1)
        items.append(Item(f"s_add_u32 s{sPFo}, s{sPFo}, 1024", 1, 3, 15, after=[p1]))
    if kind == "DD":
        post = [f"v_mov_b32 v{vA0}, v{vA2}", f"v_mov_b32 v{vA2}, v{vA1}", f"v_add_u32 v{vA1}, 0x4000, v{vA1}", f"v_and_b32 v{vA1}, 0x1ffff, v{vA1}"]
    elif kind == "DS":
        post = [f"v_mov_b32 v{vA1}, v{vA2}", f"v_add_u32 v{vA2}, 0x8000, v{vA2}", f"v_and_b32 v{vA2}, 0x1ffff, v{vA2}"]
    else:
        post = [f"v_mov_b32 v{vA0}, v{vA1}", f"v_mov_b32 v{vA1}, v{vA2}", f"v_add_u32 v{vA2}, 0x8000, v{vA2}", f"v_and_b32 v{vA2}, 0x1ffff, v{vA2}"]
    if masked:
        if kind == "DD": items.append(Item(f"v_subrev_u32 v{vTH0}, 32, v{vTH0}", 1, 23, 31))
        else:
            items.append(Item(f"v_subrev_u32 v{vTH0}, 64, v{vTH0}", 1, 23, 31))
            post.append(f"v_subrev_u32 v{vTH1}, 64, v{vTH1}")
    seq, load = schedule(mf, items, cap=CAP, pre=pre)
    seq += post
    seq, outst = insert_lgkm_waits(seq, KREADS + VREADS, age=AGE, init_age=[-12 + j*5//8 for j in range(8)] + [-7 + j for j in range(8)])
    assert outst == KREADS + VREADS, [sorted(o)[0] for o in outst]
    if VERBOSE: print(kind, masked, "gap loads", load, "sum", sum(load) + len(post), "instrs", len(seq))
    for t in seq: k.I(t)

AGE = 4
CAP = 6
VERBOSE = True
def loop(k, name, kind, masked):
    k.I(f"s_sub_u32 s{sCnt}, s{sCnt}, 1")
    k.I(f"s_cbranch_scc1 {name}_end")
    k.L(name)
    body(k, kind, masked)
    k.I(f"s_sub_u32 s{sCnt}, s{sCnt}, 1")
    k.I(f"s_cbranch_scc0 {name}")
    k.L(name + "_end")

def epilogue(k, O, Lregs, sQ, flagbit, store_flags):
    I = k.I
    t = vT
    I(f"v_add_f32 v{t}, v{Lregs[0]}, v{Lregs[1]}")
    for r in Lregs[2:]: I(f"v_add_f32 v{t}, v{t}, v{r}")
    I(f"v_mov_b32 v{t+1}, v{t}")
    I(f"v_permlane32_swap_b32 v{t}, v{t+1}")
    I(f"v_add_f32 v{t}, v{t}, v{t+1}")
    I(f"v_rcp_f32 v{t+2}, v{t}")
    I(f"v_mov_b32 v{t+4}, 0")
    I(f"v_mov_b32 v{t+3}, v{t+2}")
    for c in range(8):
        db, ip = c >> 1, c & 1
        b = t + 8 + (c & 1)*12
        for j in range(8): I(f"v_accvgpr_read_b32 v{b+j}, a{O+16*db+8*ip+j}")
        for j in range(4): I(f"v_pk_mul_f32 v[{b+2*j}:{b+2*j+1}], v[{b+2*j}:{b+2*j+1}], v[{t+2}:{t+3}]")
        for j in range(4): I(f"v_cvt_pk_bf16_f32 v{b+8+j}, v{b+2*j}, v{b+2*j+1}")
        I(f"s_add_u32 s{sT}, s{sQ}, {c*1024}")
        I(f"buffer_store_dwordx4 v[{b+8}:{b+11}], v{vL16}, s[{SCTX}:{SCTX+3}], s{sT} offen {store_flags}")
        for j in range(4): I(f"v_maximum3_f32 v{t+4}, |v{b+2*j}|, |v{b+2*j+1}|, v{t+4}")
    I(f"v_mov_b32 v{t+5}, 0x5d800000")
    I(f"v_cmp_nle_f32 s[{MSK}:{MSK+1}], v{t}, v{t+5}")
    I(f"v_mov_b32 v{t+5}, 0x35800000")
    I(f"v_cmp_nge_f32 s[{MSK+2}:{MSK+3}], v{t}, v{t+5}")
    I(f"v_mov_b32 v{t+5}, 0x7f7f0000")
    I(f"v_cmp_nle_f32 s[{MSK+4}:{MSK+5}], v{t+4}, v{t+5}")
    I(f"s_or_b64 s[{MSK}:{MSK+1}], s[{MSK}:{MSK+1}], s[{MSK+2}:{MSK+3}]")
    I(f"s_or_b64 s[{MSK}:{MSK+1}], s[{MSK}:{MSK+1}], s[{MSK+4}:{MSK+5}]")
    I(f"s_cmp_lg_u64 s[{MSK}:{MSK+1}], 0")
    I(f"s_cselect_b32 s{sT}, {flagbit}, 0")
    I(f"s_or_b32 s{sFlag}, s{sFlag}, s{sT}")

def slow_path(k, name, O, Q, sQ, sQblk_expr, store_flags, force=False):
    I = k.I
    m, l, mn, al, t = vT, vT+1, vT+2, vT+3, vT+4
    sQblk_expr()
    I(f"s_mov_b32 s{sDoff}, 0")
    I(f"v_mov_b32 v{m}, 0xff7fffff")
    I(f"v_mov_b32 v{l}, 0")
    for r in range(64): I(f"v_accvgpr_write_b32 a{O+r}, 0")
    I(f"v_and_b32 v{vTH0}, 31, v{LANE}")
    I(f"v_lshrrev_b32 v{t}, 5, v{LANE}")
    I(f"v_lshlrev_b32 v{t}, 2, v{t}")
    I(f"v_sub_u32 v{vTH0}, v{vTH0}, v{t}")
    I(f"s_lshl_b32 s{sT}, s{sCnt}, 5")
    I(f"v_add_u32 v{vTH0}, s{sT}, v{vTH0}")
    I(f"s_add_u32 s{sCnt}, s{sCnt}, 1")
    k.L(name)
    for c in range(8):
        I(f"s_add_u32 s{sT}, s{sDoff}, {c*1024}")
        I(f"buffer_load_dwordx4 a[{F0+4*c}:{F0+4*c+3}], v{vL16}, s[{SKV}:{SKV+3}], s{sT} offen")
    for j in range(8):
        ks, db = j >> 2, j & 3
        I(f"s_add_u32 s{sT}, s{sDoff}, {8192 + (db*2+ks)*1024}")
        I(f"buffer_load_dwordx4 a[{F1+4*j}:{F1+4*j+3}], v{vL16}, s[{SKV}:{SKV+3}], s{sT} offen")
    I("s_waitcnt vmcnt(8)")
    for c in range(8):
        C = "0" if c == 0 else f"v[{S0}:{S0+15}]"
        I(f"v_mfma_f32_32x32x16_bf16 v[{S0}:{S0+15}], a[{F0+4*c}:{F0+4*c+3}], a[{Q+4*c}:{Q+4*c+3}], {C}")
    for f in mask_group(S0, vTH0): I(f[0])
    I(f"v_max3_f32 v{mn}, v{S0}, v{S0+1}, v{m}")
    for r in range(2, 16, 2): I(f"v_max3_f32 v{mn}, v{S0+r}, v{S0+r+1}, v{mn}")
    I(f"v_mov_b32 v{t}, v{mn}")
    I(f"v_permlane32_swap_b32 v{mn}, v{t}")
    I(f"v_max_f32 v{mn}, v{mn}, v{t}")
    I(f"v_sub_f32 v{al}, v{m}, v{mn}")
    I(f"v_exp_f32 v{al}, v{al}")
    I(f"v_mov_b32 v{m}, v{mn}")
    I(f"v_mul_f32 v{l}, v{l}, v{al}")
    for r in range(16):
        I(f"v_sub_f32 v{S0+r}, v{S0+r}, v{mn}")
        I(f"v_exp_f32 v{S0+r}, v{S0+r}")
    for r in range(16): I(f"v_add_f32 v{l}, v{l}, v{S0+r}")
    for j in range(8): I(f"v_cvt_pk_bf16_f32 v{P0+j}, v{S0+2*j}, v{S0+2*j+1}")
    for r in range(64):
        I(f"v_accvgpr_read_b32 v{t}, a{O+r}")
        I(f"v_mul_f32 v{t}, v{t}, v{al}")
        I(f"v_accvgpr_write_b32 a{O+r}, v{t}")
    I("s_waitcnt vmcnt(0)")
    for mm in pv(O, F1, P0): I(mm)
    I(f"s_add_u32 s{sDoff}, s{sDoff}, 16384")
    I(f"v_subrev_u32 v{vTH0}, 32, v{vTH0}")
    I(f"s_sub_u32 s{sCnt}, s{sCnt}, 1")
    I(f"s_cmp_lg_u32 s{sCnt}, 0")
    I("s_nop 15")
    I(f"s_cbranch_scc1 {name}")
    I(f"v_mov_b32 v{LA0}, v{l}")
    I(f"v_mov_b32 v{LA1}, 0")
    epilogue(k, O, (LA0, LA1), sQ, 0, store_flags)

MARK0 = 0
MARKMAP = {3:10, 4:11, 5:12, 6:12, 7:12, 8:13, 9:13, 10:14, 11:15}
def amark(k, diag, i):
    import os
    if os.environ.get('FINE'): return
    mark(k, diag, MARKMAP[i] if MARK0 else i)

def att_part(k, diag, store_flags, C0, lateq, sQblkA, sQblkB, kidx, endlabel, reload_ptrs=False):
    I = k.I
    t0, t1 = vT, vT + 1
    I(f"s_mov_b32 s{sT}, {f32bits(QSCALE)}")
    I(f"v_mov_b32 v{vT+8}, s{sT}")
    I(f"v_mov_b32 v{vT+9}, s{sT}")
    for T, Q in ((0, QA), (1, QB)):
        for c in range(8):
            src = QACC + (T*4 + (c >> 1))*16 + 8*(c & 1)
            for j in range(4): I(f"v_pk_mul_f32 v[{src+2*j}:{src+2*j+1}], v[{src+2*j}:{src+2*j+1}], v[{vT+8}:{vT+9}]")
            for j in range(4): I(f"v_cvt_pk_bf16_f32 v{vT+j}, v{src+2*j}, v{src+2*j+1}")
            for j in range(4): I(f"v_accvgpr_write_b32 a{Q+4*c+j}, v{vT+j}")
            if len(lateq) > 1:
                I(f"s_mov_b32 s{sT2}, s{sT}")
                lateq.pop(0)(); I(f"s_mov_b32 s{sT}, s{sT2}")
    for r in range(128):
        I(f"v_accvgpr_write_b32 a{r}, 0")
        if r % 16 == 15 and lateq: lateq.pop(0)()
    while lateq: lateq.pop(0)()
    I(f"s_add_u32 m0, s{sWL}, {((8 + C0) % 8)*16384}")
    I(f"s_add_u32 s{sDoff}, s{sWL}, {8*16384}")
    for r in (LA0, LA1, LB0, LB1, LC0, LC1): I(f"v_mov_b32 v{r}, 0")
    I(f"v_and_b32 v{t0}, 31, v{LANE}")
    I(f"v_lshrrev_b32 v{t1}, 5, v{LANE}")
    I(f"v_lshlrev_b32 v{t1}, 2, v{t1}")
    I(f"v_sub_u32 v{t0}, v{t0}, v{t1}")
    I(f"s_lshl_b32 s{sT}, s{sQblkA}, 5")
    I(f"v_add_u32 v{vTH0}, s{sT}, v{t0}")
    I(f"v_mov_b32 v{vTHA}, v{vTH0}")
    I(f"s_lshl_b32 s{sT}, s{sQblkB}, 5")
    I(f"v_add_u32 v{vTH1}, s{sT}, v{t0}")
    I(f"v_mov_b32 v{vTHB}, v{vTH1}")
    amark(k, diag, 3)
    k.wait_vm("kv2", expect=4)
    I("s_barrier")
    I(f"v_add_u32 v{vA0}, {(C0 % 8)*16384}, v{vL16}")
    I(f"v_add_u32 v{vA2}, {((C0 + 1) % 8)*16384}, v{vL16}")
    I(f"v_add_u32 v{vA1}, {((C0 + 2) % 8)*16384}, v{vL16}")
    for c in range(8): I(rdK(F0, c, vA0))
    I("s_waitcnt lgkmcnt(0)")
    for S, Q in ((S0, QA), (S1, QB)):
        for c in range(8):
            C = "0" if c == 0 else f"v[{S}:{S+15}]"
            I(f"v_mfma_f32_32x32x16_bf16 v[{S}:{S+15}], a[{F0+4*c}:{F0+4*c+3}], a[{Q+4*c}:{Q+4*c+3}], {C}")
    for c in range(8): I(rdK(F0, c, vA2))
    for j in range(8): I(rdV(F1, j, vA0))
    for S, TH, NM in ((S0, vTH0, NMA), (S1, vTH1, NMB)):
        for f in mask_group(S, TH): I(f[0])
        I(f"v_max3_f32 v{t0}, v{S}, v{S+1}, v{S+2}")
        for r in range(3, 15, 2): I(f"v_max3_f32 v{t0}, v{S+r}, v{S+r+1}, v{t0}")
        I(f"v_max_f32 v{t0}, v{t0}, v{S+15}")
        I(f"v_mov_b32 v{t1}, v{t0}")
        I(f"v_permlane32_swap_b32 v{t0}, v{t1}")
        I(f"v_max_f32 v{t0}, v{t0}, v{t1}")
        for r in range(16): I(f"v_sub_f32 v{S+r}, v{S+r}, v{t0}")
        for r in range(16): I(f"v_sub_f32 v{NM+r}, 0, v{t0}")
    for f in exp_group(S0, list(range(16)), (LA0, LA1)): I(f[0])
    for f in cvt_group(S0, P0, 0, 8): I(f[0])
    for f in exp_group(S1, list(range(NE1A)), (LB0, LB1)): I(f[0])
    amark(k, diag, 4)
    PFT = {7: (6, 4096*640*2, 0, 27), 4: (6, 4096*640*2, 3456, 15), 5: (8, 640*1728*2, 0, 19), 6: (10, 640*1728*2, 0, 23),
           3: (12, 640*1728*2, 0, 11), 2: (12, 640*1728*2, 1408, 7)}
    I(f"s_mov_b32 s{SPF}, s6")
    I(f"s_mov_b32 s{SPF+1}, s7")
    I(f"s_mov_b32 s{SPF+2}, 0")
    I(f"s_mov_b32 s{SPF+3}, 0x20000")
    I(f"s_mov_b32 s{sPFo}, 0")
    I(f"s_lshl_b32 s{sT2}, s{sH}, 2")
    I(f"s_add_u32 s{sT2}, s{sT2}, s{sW}")
    for ii, (lo, size, start, iters) in PFT.items():
        I(f"s_cmp_eq_u32 s{sI}, {ii}")
        I(f"s_cselect_b32 s{SPF}, s{lo}, s{SPF}")
        I(f"s_cselect_b32 s{SPF+1}, s{lo+1}, s{SPF+1}")
        I(f"s_cselect_b32 s{SPF+2}, {size}, s{SPF+2}")
        I(f"s_mul_i32 s{sT}, s{sT2}, {iters*1024}")
        I(f"s_add_u32 s{sT}, s{sT}, {start*1024}")
        I(f"s_cmp_eq_u32 s{sI}, {ii}")
        I(f"s_cselect_b32 s{sPFo}, s{sT}, s{sPFo}")
    loops = []
    I(f"s_lshl_b32 s{sCnt}, s{sI}, 2")
    I(f"s_sub_u32 s{sCnt}, s{sCnt}, 1")
    I(f"s_max_i32 s{sCnt}, s{sCnt}, 0")
    loop(k, "Lk2_dd", "DD", False)
    amark(k, diag, 5)
    I(f"s_cmp_eq_u32 s{sI}, 0")
    I(f"s_cselect_b32 s{sCnt}, 3, 4")
    I(f"s_lshl_b32 s{sT}, s{sI}, 2")
    I(f"s_max_u32 s{sT}, s{sT}, 1")
    I(f"s_lshl_b32 s{sT}, s{sT}, 5")
    I(f"v_subrev_u32 v{vTH0}, s{sT}, v{vTHA}")
    loop(k, "Lk2_ddm", "DD", True)
    amark(k, diag, 6)
    I(f"s_lshl_b32 s{sT}, s{sI}, 7")
    I(f"s_add_u32 s{sT}, s{sT}, 128")
    I(f"v_subrev_u32 v{vTH0}, s{sT}, v{vTHB}")
    I(f"v_subrev_u32 v{vTH1}, 32, v{vTH0}")
    i0 = len(k.items)
    body(k, "DS", True)
    ds_rng = (i0, len(k.items))
    amark(k, diag, 7)
    I(f"s_lshl_b32 s{sT}, s{sI}, 2")
    I(f"s_sub_u32 s{sCnt}, 27, s{sT}")
    I(f"s_max_i32 s{sCnt}, s{sCnt}, 0")
    loop(k, "Lk2_ss", "SS", False)
    amark(k, diag, 8)
    I(f"s_cmp_eq_u32 s{sI}, 7")
    I(f"s_cselect_b32 s{sCnt}, 1, 2")
    I(f"s_lshl_b32 s{sT}, s{sI}, 2")
    I(f"s_sub_u32 s{sT2}, 60, s{sT}")
    I(f"s_add_u32 s{sT}, s{sT}, 6")
    I(f"s_max_u32 s{sT}, s{sT}, s{sT2}")
    I(f"s_lshl_b32 s{sT}, s{sT}, 5")
    I(f"v_subrev_u32 v{vTH0}, s{sT}, v{vTHB}")
    I(f"v_subrev_u32 v{vTH1}, 32, v{vTH0}")
    loop(k, "Lk2_ssm", "SS", True)
    amark(k, diag, 9)
    body(k, "SE", False)
    amark(k, diag, 10)
    SWO, SWOT = 16, 20
    vWO, vWOr, WOF = S0, S0 + 5, S1
    I("s_barrier")
    srd(k, SWO, 6, 7, 4096*640*2)
    srd(k, SWOT, 14, 15, WOT_SIZE, WOT_OFF)
    I(f"s_mov_b32 s{sCnt}, 1639")
    I(f"s_mul_i32 s{sT2}, s{sW}, 320")
    for u in range(5):
        I(f"v_add_u32 v{t0}, s{sT2}, v{LANE}")
        I(f"v_add_u32 v{t0}, {64*u}, v{t0}")
        I(f"v_mul_lo_u32 v{t1}, v{t0}, s{sCnt}")
        I(f"v_lshrrev_b32 v{t1}, 16, v{t1}")
        I(f"v_mul_u32_u24 v{vWO+u}, 40, v{t1}")
        I(f"v_sub_u32 v{t0}, v{t0}, v{vWO+u}")
        I(f"v_mul_u32_u24 v{t1}, 1280, v{t1}")
        I(f"v_lshl_add_u32 v{vWO+u}, v{t0}, 4, v{t1}")
    I(f"s_lshr_b32 s{sT}, s2, 1")
    I(f"s_mul_i32 s{sDoff}, s{sT}, {32*1280}")
    I(f"s_and_b32 s{sT}, s2, 1")
    I(f"s_mul_i32 s{sT}, s{sT}, 640")
    I(f"s_add_u32 s{sDoff}, s{sDoff}, s{sT}")
    I(f"s_mul_i32 s{sT2}, s{sW}, 5120")
    for u in range(5):
        I(f"s_add_u32 m0, s{sT2}, {u*1024}")
        I(f"buffer_load_dwordx4 v{vWO+u}, s[{SWO}:{SWO+3}], s{sDoff} offen lds", tag="wo")
    I(f"v_lshrrev_b32 v{t0}, 5, v{LANE}")
    I(f"v_lshlrev_b32 v{t0}, 4, v{t0}")
    I(f"v_bfe_u32 v{t1}, v{LANE}, 4, 1")
    I(f"v_lshl_add_u32 v{t0}, v{t1}, 2, v{t0}")
    I(f"v_bfe_u32 v{t1}, v{LANE}, 2, 2")
    I(f"v_add_u32 v{t0}, v{t0}, v{t1}")
    I(f"v_mul_u32_u24 v{vWOr}, 640, v{t0}")
    I(f"v_and_b32 v{t1}, 3, v{LANE}")
    I(f"v_lshl_add_u32 v{vWOr}, v{t1}, 3, v{vWOr}")
    I(f"s_mul_i32 s{sT}, s{sW}, 160")
    I(f"v_add_u32 v{vWOr}, s{sT}, v{vWOr}")
    epilogue(k, OA, (LA0, LA1), sQA, 1, store_flags)
    epilogue(k, OB, (LB0, LB1, LC0, LC1), sQB, 2, store_flags)
    k.wait_vm("wo", expect=5)
    I("s_barrier")
    for nt in range(5):
        I(f"ds_read_b64_tr_b16 v[{WOF+4*nt}:{WOF+4*nt+1}], v{vWOr} offset:{nt*32}")
        I(f"ds_read_b64_tr_b16 v[{WOF+4*nt+2}:{WOF+4*nt+3}], v{vWOr} offset:{nt*32 + 8*640}")
    I(f"s_and_b32 s{sDoff}, s2, 1")
    I(f"s_lshl_b32 s{sDoff}, s{sDoff}, 2")
    I(f"s_add_u32 s{sDoff}, s{sDoff}, s{sW}")
    I(f"s_lshl_b32 s{sDoff}, s{sDoff}, 7")
    I(f"s_lshr_b32 s{sT}, s2, 1")
    I(f"s_add_u32 s{sDoff}, s{sDoff}, s{sT}")
    I(f"s_mul_i32 s{sDoff}, s{sDoff}, 5120")
    I("s_waitcnt lgkmcnt(0)")
    for nt in range(5):
        I(f"s_add_u32 s{sT}, s{sDoff}, {nt*1024}")
        I(f"buffer_store_dwordx4 v[{WOF+4*nt}:{WOF+4*nt+3}], v{vL16}, s[{SWOT}:{SWOT+3}], s{sT} offen {store_flags}")
    amark(k, diag, 11)
    I(f"s_bitcmp1_b32 s{sFlag}, 0")
    I("s_cbranch_scc0 Lk2_noslowA")
    I("s_waitcnt vmcnt(0)")
    slow_path(k, "Lk2_slowA", OA, QA, sQA, lambda: I(f"s_mov_b32 s{sCnt}, s{sQblkA}"), store_flags)
    k.L("Lk2_noslowA")
    I(f"s_bitcmp1_b32 s{sFlag}, 1")
    I("s_cbranch_scc0 Lk2_noslowB")
    I("s_waitcnt vmcnt(0)")
    slow_path(k, "Lk2_slowB", OB, QB, sQB, lambda: I(f"s_mov_b32 s{sCnt}, s{sQblkB}"), store_flags)
    k.L("Lk2_noslowB")
    dump_marks(k, diag, kidx, 14, 15, 24)
    stamp_end(k, diag, kidx, 14, 15, vtmp=24)
    k.L(endlabel)
    I("s_endpgm")

def finish_k2(k):
    k.fix_hazards()
    trace = []
    items = k.items
    lab = {it[:-1]: idx for idx, it in enumerate(items) if isinstance(it, str) and it.endswith(":")}
    idx = 0
    names = ["Lk2_dd", "Lk2_ddm", "Lk2_ss", "Lk2_ssm"]
    segs = []
    pos = 0
    for nm in names:
        a, b = lab[nm], lab[nm + "_end"]
        segs.append(items[pos:a]); segs.append(items[a:b]); segs.append(items[a:b]); pos = b
    segs.append(items[pos:lab["Lk2_noslowA"]])
    for s_ in segs: trace += s_
    pr = check_seq(trace, "k2") + check_waits(trace, "k2")
    trace2 = items[:lab["Lk2_dd"]] + items[lab["Lk2_dd_end"]:lab["Lk2_ss"]] + items[lab["Lk2_ss_end"]:lab["Lk2_noslowA"]]
    pr += check_seq(trace2, "k2z") + check_waits(trace2, "k2z")
    for p_ in pr[:20]: print(p_)
    print("k2 problems:", len(pr))

def gen_k2(diag=False, store_flags="sc1", force_slow=0, dbg=""):
    global DBG
    DBG = dbg
    k = Kern("k2_kernel")
    I = k.I
    I("s_cmp_ge_u32 s2, 256")
    I("s_cbranch_scc1 Lk2_end")
    stamp_begin(k, diag)
    I(f"s_load_dwordx2 s[4:5], s[0:1], {KA['wq']}")
    I(f"s_load_dwordx2 s[14:15], s[0:1], {KA['ws']}")
    I(f"s_load_dwordx2 s[6:7], s[0:1], {KA['wo']}")
    I(f"s_load_dwordx4 s[8:11], s[0:1], {KA['wg']}")
    I(f"s_load_dwordx2 s[12:13], s[0:1], {KA['wd']}")
    I("v_lshrrev_b32 v1, 6, v0")
    I(f"v_and_b32 v{LANE}, 63, v0")
    I(f"v_readfirstlane_b32 s{sW}, v1")
    I(f"s_and_b32 s{sT}, s2, 7")
    I(f"s_lshr_b32 s{sT2}, s2, 3")
    I(f"s_and_b32 s{sH}, s{sT2}, 3")
    I(f"s_lshl_b32 s{sT}, s{sT}, 2")
    I(f"s_add_u32 s{sH}, s{sH}, s{sT}")
    I(f"s_lshr_b32 s{sI}, s2, 5")
    I("s_waitcnt lgkmcnt(0)")
    srd(k, SXN, 14, 15, XN_SIZE, XN_OFF)
    srd(k, SWQ, 4, 5, 640*4096*2)
    I(f"s_lshl_b32 s{sT}, s{sH}, 20")
    I(f"s_add_u32 s{sT}, s{sT}, {KV_OFF}")
    I(f"s_add_u32 s{SKV}, s14, s{sT}")
    I(f"s_addc_u32 s{SKV+1}, s15, 0")
    I(f"s_lshl_b32 s{sT}, s{sI}, 16")
    I(f"s_sub_u32 s{SKV+2}, {64*16384}, s{sT}")
    I(f"s_mov_b32 s{SKV+3}, 0x20000")
    srd(k, SCTX, 14, 15, CTX_SIZE, CTX_OFF)
    t0, t1 = vT, vT + 1
    I(f"v_lshlrev_b32 v{vL16}, 4, v{LANE}")
    I(f"v_lshrrev_b32 v{t0}, 4, v{LANE}")
    I(f"v_lshlrev_b32 v{vWQ}, 13, v{t0}")
    I(f"v_lshlrev_b32 v{t0}, 2, v{t0}")
    I(f"v_and_b32 v{t1}, 15, v{LANE}")
    I(f"v_xor_b32 v{t0}, v{t0}, v{t1}")
    I(f"v_lshl_add_u32 v{vWQ}, v{t0}, 4, v{vWQ}")
    I(f"v_lshrrev_b32 v{t1}, 5, v{LANE}")
    I(f"v_bfe_u32 v{t0}, v{LANE}, 2, 2")
    I(f"v_lshl_add_u32 v{t1}, v{t1}, 3, v{t0}")
    I(f"v_lshlrev_b32 v{t1}, 8, v{t1}")
    I(f"v_bfe_u32 v{t0+2}, v{LANE}, 4, 1")
    I(f"v_lshl_add_u32 v{t1}, v{t0+2}, 5, v{t1}")
    I(f"v_and_b32 v{t0+2}, 3, v{LANE}")
    I(f"v_lshl_add_u32 v{t1}, v{t0+2}, 3, v{t1}")
    for db in range(4):
        I(f"v_xor_b32 v{t0+2}, {db}, v{t0}")
        I(f"v_lshl_add_u32 v{vQ+db}, v{t0+2}, 6, v{t1}")
    I(f"v_mov_b32 v{vNINF}, 0xff800000")
    I(f"s_lshl_b32 s{sWL}, s{sW}, 12")
    sQblkA, sQblkB = 56, 57
    I(f"s_lshl_b32 s{sT}, s{sI}, 2")
    I(f"s_add_u32 s{sQblkA}, s{sT}, s{sW}")
    I(f"s_sub_u32 s{sQblkB}, 60, s{sT}")
    I(f"s_add_u32 s{sQblkB}, s{sQblkB}, s{sW}")
    sXA, sXB, sWq = 58, 59, 60+32
    sXA, sXB, sWq = 58, 59, 88
    I(f"s_mul_i32 s{sXA}, s{sQblkA}, 40960")
    I(f"s_mul_i32 s{sXB}, s{sQblkB}, 40960")
    for sq, sb in ((sQA, sQblkA), (sQB, sQblkB)):
        I(f"s_lshl_b32 s{sq}, s{sb}, 5")
        I(f"s_add_u32 s{sq}, s{sq}, s{sH}")
        I(f"s_lshl_b32 s{sq}, s{sq}, 13")
    I(f"s_lshl_b32 s{sWq}, s{sW}, 17")
    I(f"s_lshl_b32 s{sT}, s{sH}, 8")
    I(f"s_add_u32 s{sWq}, s{sWq}, s{sT}")
    I(f"s_mov_b32 s{sFlag}, {force_slow}")
    XR = 0
    QACC = 128
    def xload(s):
        for T, sx in ((0, sXA), (1, sXB)):
            a = XR + ((2*s + T) % 32)*4
            I(f"s_add_u32 s{sT}, s{sx}, {s*1024}")
            I(f"buffer_load_dwordx4 a[{a}:{a+3}], v{vL16}, s[{SXN}:{SXN+3}], s{sT} offen", tag=f"x{s}")
    def wdma_one(g, u):
        I(f"s_add_u32 m0, s{sWL}, {(g % 8)*16384 + u*1024}")
        I(f"s_add_u32 s{sT}, s{sWq}, {(64*g + 4*u)*8192}")
        I(f"buffer_load_dwordx4 v{vWQ}, s[{SWQ}:{SWQ+3}], s{sT} offen lds", tag=f"w{g}")
    def kv_one(blk, u):
        I(f"s_add_u32 m0, s{sWL}, {((blk + 10) % 8)*16384}")
        I(f"s_add_u32 s{sT}, s{sWL}, {blk*16384}")
        I(f"buffer_load_dwordx4 v{vL16}, s[{SKV}:{SKV+3}], s{sT} offen offset:{u*1024} lds", tag=f"kv{blk}")
    def kv_closures(blk): return [lambda u=u: kv_one(blk, u) for u in range(4)]
    def wread(n):
        g, s = n >> 2, n & 3
        F = F0 if n % 2 == 0 else F1
        F = F0 + (n % 2)*16
        off = (g % 8)*16384 + s*4096
        hi = off >= 65536
        for db in range(4):
            vb = vQ + db
            o = off
            if hi: vb = vT + 8 + db; o = off - 65536
            I(f"ds_read_b64_tr_b16 a[{F+4*db}:{F+4*db+1}], v{vb} offset:{o}", tag=f"r{n}")
            I(f"ds_read_b64_tr_b16 a[{F+4*db+2}:{F+4*db+3}], v{vb} offset:{o+1024}", tag=f"r{n}")
    for db in range(4): I(f"v_add_u32 v{vT+8+db}, 0x10000, v{vQ+db}")
    mark(k, diag, 0)
    for u in range(4): wdma_one(0, u)
    for s in range(0, 4): xload(s)
    for u in range(4): wdma_one(1, u)
    for s in range(4, 8): xload(s)
    for g in (2, 3):
        for u in range(4): wdma_one(g, u)
    gapq = []
    for s in range(8, 16): gapq.append(lambda s=s: xload(s))
    for g in range(4, 8):
        for u in range(4): gapq.append(lambda g=g, u=u: wdma_one(g, u))
    k.wait_vm("w0", expect=4)
    I("s_barrier")
    mark(k, diag, 1)
    wread(0)
    for n in range(40):
        g, s = n >> 2, n & 3
        if s == 2:
            if g + 1 < 10: k.wait_vm(f"w{g+1}", expect=4)
            I("s_barrier")
            if g >= 1:
                q = g - 1 + 8
                if q < 10:
                    for u in range(4): gapq.append(lambda q=q, u=u: wdma_one(q, u))
                elif g >= 7:
                    gapq += kv_closures(g - 7)
        if n + 1 < 40: wread(n + 1)
        k.wait_vm(f"x{n}", expect=2)
        k.wait_lg(f"r{n}")
        F = F0 + (n % 2)*16
        for db in range(4):
            for T in range(2):
                d = QACC + (T*4 + db)*16
                a = XR + ((2*n + T) % 32)*4
                c = "0" if n == 0 else f"v[{d}:{d+15}]"
                I(f"v_mfma_f32_32x32x16_bf16 v[{d}:{d+15}], a[{F+4*db}:{F+4*db+3}], a[{a}:{a+3}], {c}")
                if gapq: gapq.pop(0)()
        if n + 16 < 40: gapq.append(lambda s=n+16: xload(s))
    while gapq: gapq.pop(0)()
    mark(k, diag, 2)
    I("s_barrier")
    lateq = []
    for blk in range(3, 8): lateq += kv_closures(blk)
    att_part(k, diag, store_flags, 10, lateq, sQblkA, sQblkB, 1, "Lk2_end")
    finish_k2(k)
    return k, 256, 256, 131072
```

```python
from common import *

def gen_k3(diag=False, store_flags="", D=6, dbg="", kidx=2, touch=0):
    k = Kern("k3_kernel")
    I = k.I
    I("s_cmp_ge_u32 s2, 256")
    I("s_cbranch_scc1 Lk3_end")
    stamp_begin(k, diag)
    I(f"s_load_dwordx2 s[4:5], s[0:1], {KA['x']}")
    I(f"s_load_dwordx2 s[6:7], s[0:1], {KA['wo']}")
    I(f"s_load_dwordx2 s[8:9], s[0:1], {KA['wr']}")
    I(f"s_load_dwordx2 s[14:15], s[0:1], {KA['ws']}")
    LANE = 2
    I("v_lshrrev_b32 v1, 6, v0")
    I(f"v_and_b32 v{LANE}, 63, v0")
    sW, sRT, sCT, sT, sT2, sCb, sWb, sL = 40, 41, 42, 43, 44, 45, 46, 47
    I(f"v_readfirstlane_b32 s{sW}, v1")
    I(f"s_and_b32 s{sT}, s2, 7")
    I(f"s_lshr_b32 s{sT2}, s2, 3")
    I(f"s_lshr_b32 s{sRT}, s{sT}, 1")
    I(f"s_lshl_b32 s{sRT}, s{sRT}, 3")
    I(f"s_lshr_b32 s{sCT}, s{sT2}, 2")
    I(f"s_add_u32 s{sRT}, s{sRT}, s{sCT}")
    I(f"s_and_b32 s{sCT}, s{sT}, 1")
    I(f"s_lshl_b32 s{sCT}, s{sCT}, 2")
    I(f"s_and_b32 s{sT2}, s{sT2}, 3")
    I(f"s_add_u32 s{sCT}, s{sCT}, s{sT2}")
    I("s_waitcnt lgkmcnt(0)")
    SX, SWO, SWR, SCTX, SH, SACC = 16, 20, 24, 28, 32, 36
    srd(k, SX, 4, 5, 2048*640*2)
    srd(k, SWO, 14, 15, WOT_SIZE, WOT_OFF)
    srd(k, SWR, 8, 9, 640*2)
    srd(k, SCTX, 14, 15, CTX_SIZE, CTX_OFF)
    srd(k, SH, 14, 15, H_SIZE, H_OFF)
    srd(k, SACC, 14, 15, ACC_SIZE, ACC_OFF)
    vC, vWD, vTR, t0, t1, t2 = 3, 4, 9, 10, 11, 12
    I(f"v_lshrrev_b32 v{t0}, 5, v{LANE}")
    I(f"v_lshlrev_b32 v{vC}, 10, v{t0}")
    I(f"v_bfe_u32 v{t0}, v{LANE}, 4, 1")
    I(f"v_lshl_add_u32 v{vC}, v{t0}, 9, v{vC}")
    I(f"v_and_b32 v{t0}, 15, v{LANE}")
    I(f"v_lshl_add_u32 v{vC}, v{t0}, 4, v{vC}")
    I(f"s_lshl_b32 s{sCb}, s{sRT}, 6")
    I(f"s_lshl_b32 s{sT}, s{sW}, 3")
    I(f"s_add_u32 s{sCb}, s{sCb}, s{sT}")
    I(f"s_lshl_b32 s{sCb}, s{sCb}, 13")
    I(f"s_lshl_b32 s{sWb}, s{sCT}, 7")
    I(f"s_lshl_b32 s{sT}, s{sW}, 5")
    I(f"s_add_u32 s{sWb}, s{sWb}, s{sT}")
    I(f"s_mul_i32 s{sWb}, s{sWb}, 5120")
    ACC, WF = 32, 112
    vLin = 17
    I(f"v_lshlrev_b32 v{vLin}, 4, v{LANE}")
    NS = D + 1
    def issue(t):
        cl = []
        for nt in range(5):
            def f(nt=nt):
                c, r = WREG[(t % NS, nt)]
                I(f"s_add_u32 s{sT}, s{sWb}, {t*5120 + (nt & ~3)*1024}") if nt in (0, 4) else None
                I(f"buffer_load_dwordx4 {c}[{r}:{r+3}], v{vLin}, s[{SWO}:{SWO+3}], s{sT} offen offset:{(nt & 3)*1024}", tag=f"s{t}")
            cl.append(f)
        for rs in range(4):
            def f(rs=rs):
                a = (t % NS)*16 + rs*4
                so = (t >> 2)*8192 + (t & 3)*2048 + (rs >> 1)*262144
                if rs % 2 == 0: I(f"s_add_u32 s{sT2}, s{sCb}, {so}")
                I(f"buffer_load_dwordx4 a[{a}:{a+3}], v{vC}, s[{SCTX}:{SCTX+3}], s{sT2} offen offset:{(rs & 1)*256}", tag=f"s{t}")
            cl.append(f)
        return cl
    WREG = {}
    nxt_a = NS*16; nxt_v = 176
    for sl in range(NS):
        for nt in range(5):
            if nxt_a + 4 <= 256: WREG[(sl, nt)] = ("a", nxt_a); nxt_a += 4
            else: WREG[(sl, nt)] = ("v", nxt_v); nxt_v += 4
    assert nxt_v <= 256
    vXo, XV, WRV = 13, 152, 162
    I(f"v_and_b32 v{t0}, 15, v{LANE}")
    I(f"s_lshl_b32 s{sT}, s{sRT}, 6")
    I(f"s_lshl_b32 s{sT2}, s{sW}, 4")
    I(f"s_add_u32 s{sT}, s{sT}, s{sT2}")
    I(f"v_add_u32 v{t0}, s{sT}, v{t0}")
    vRow = 14
    I(f"v_mov_b32 v{vRow}, v{t0}")
    I(f"v_mul_u32_u24 v{vXo}, 1280, v{t0}")
    I(f"v_lshrrev_b32 v{t1}, 4, v{LANE}")
    I(f"v_lshlrev_b32 v{t1}, 3, v{t1}")
    I(f"s_mul_i32 s{sT}, s{sCT}, 160")
    I(f"v_add_u32 v{t1}, s{sT}, v{t1}")
    I(f"v_add_u32 v{vXo}, v{vXo}, v{t1}")
    vWo = 15
    I(f"v_mov_b32 v{vWo}, v{t1}")
    vTc, vTw, vTd = 18, 19, 20
    I(f"s_and_b32 s{sT}, s{sCT}, 3")
    I(f"s_lshr_b32 s{sT2}, s{sT}, 1")
    I(f"s_mul_i32 s{sT2}, s{sT2}, 262144")
    I(f"s_and_b32 s{sT}, s{sT}, 1")
    I(f"s_lshl_b32 s{sT}, s{sT}, 12")
    I(f"s_add_u32 s{sT}, s{sT}, s{sT2}")
    I(f"v_lshlrev_b32 v{vTc}, 7, v{LANE}")
    I(f"v_add_u32 v{vTc}, s{sT}, v{vTc}")
    I(f"v_mov_b32 v{vTd}, 0x4000000")
    I(f"v_cmp_gt_u32 vcc, 32, v{LANE}")
    I(f"v_cndmask_b32 v{vTc}, v{vTd}, v{vTc}, vcc")
    I(f"s_and_b32 s{sT}, s{sRT}, 7")
    I(f"s_mul_i32 s{sT}, s{sT}, {20*128}")
    I(f"v_lshlrev_b32 v{vTw}, 7, v{LANE}")
    I(f"v_add_u32 v{vTw}, s{sT}, v{vTw}")
    I(f"v_cmp_gt_u32 vcc, 20, v{LANE}")
    I(f"v_cndmask_b32 v{vTw}, v{vTd}, v{vTw}, vcc")
    def touch_group(gq):
        I(f"s_add_u32 s{sT2}, s{sCb}, {gq*8192}")
        I(f"buffer_load_dword v{vTd+1}, v{vTc}, s[{SCTX}:{SCTX+3}], s{sT2} offen", tag="touch")
        I(f"s_add_u32 s{sT}, s{sWb}, {gq*4*5120}")
        I(f"buffer_load_dword v{vTd+1}, v{vTw}, s[{SWO}:{SWO+3}], s{sT} offen", tag="touch")
    if touch:
        for gq in range(touch + 1): touch_group(gq)
    for t in range(D):
        for f in issue(t): f()
    for nt in range(5):
        I(f"buffer_load_dwordx2 v[{XV+2*nt}:{XV+2*nt+1}], v{vXo}, s[{SX}:{SX+3}], 0 offen offset:{32*nt}", tag="xw")
        I(f"buffer_load_dwordx2 v[{WRV+2*nt}:{WRV+2*nt+1}], v{vWo}, s[{SWR}:{SWR+3}], 0 offen offset:{32*nt}", tag="xw")
    mark(k, diag, 0)
    for t in range(32):
        q = issue(t + D) if t + D < 32 else []
        if touch and t % 4 == 0 and t // 4 + touch + 1 < 8: touch_group(t // 4 + touch + 1)
        k.wait_vm(f"s{t}", expect=9)
        n = 0
        for rs in range(4):
            for nt in range(5):
                d = ACC + (rs*5 + nt)*4
                a = (t % NS)*16 + rs*4
                c = "0" if t == 0 else f"v[{d}:{d+3}]"
                wc, wr_ = WREG[(t % NS, nt)]
                I(f"v_mfma_f32_16x16x32_bf16 v[{d}:{d+3}], {wc}[{wr_}:{wr_+3}], a[{a}:{a+3}], {c}")
                n += 1
                if q and n % 2 == 0: q.pop(0)()
        assert not q
        if t in (7, 15, 23): mark(k, diag, 1 + t//8)
    mark(k, diag, 4)
    vL = 16
    I(f"v_lshlrev_b32 v{vL}, 4, v{LANE}")
    I(f"s_mul_i32 s{sT}, s{sW}, 20480")
    I(f"v_add_u32 v{t0}, s{sT}, v{vL}")
    for rs in range(4):
        for nt in range(5):
            d = ACC + (rs*5 + nt)*4
            I(f"ds_write_b128 v{t0}, v[{d}:{d+3}] offset:{(rs*5+nt)*1024}")
    I("s_waitcnt lgkmcnt(0)")
    I("s_barrier")
    I(f"s_mul_i32 s{sT}, s{sW}, 5120")
    I(f"v_add_u32 v{t0}, s{sT}, v{vL}")
    I(f"v_add_u32 v{t1}, 40960, v{t0}")
    R = 32
    for src in range(4):
        for nt in range(5):
            vb = t0 if src < 2 else t1
            I(f"ds_read_b128 v[{R+(src*5+nt)*4}:{R+(src*5+nt)*4+3}], v{vb} offset:{(src % 2)*20480 + nt*1024}")
    I("s_waitcnt lgkmcnt(0)")
    for i in range(20):
        I(f"v_add_f32 v{R+i}, v{R+i}, v{R+20+i}")
        I(f"v_add_f32 v{R+40+i}, v{R+40+i}, v{R+60+i}")
    for i in range(20): I(f"v_add_f32 v{R+i}, v{R+i}, v{R+40+i}")
    k.wait_vm("xw")
    HP = 112
    HF = 52
    WRF = 72
    for i in range(10):
        I(f"v_cvt_pk_bf16_f32 v{HP+i}, v{R+2*i}, v{R+2*i+1}")
        I(f"v_lshlrev_b32 v{R+2*i}, 16, v{HP+i}")
        I(f"v_and_b32 v{R+2*i+1}, 0xffff0000, v{HP+i}")
        I(f"v_lshlrev_b32 v{HF+2*i}, 16, v{XV+i}")
        I(f"v_and_b32 v{HF+2*i+1}, 0xffff0000, v{XV+i}")
        I(f"v_add_f32 v{R+2*i}, v{R+2*i}, v{HF+2*i}")
        I(f"v_add_f32 v{R+2*i+1}, v{R+2*i+1}, v{HF+2*i+1}")
        I(f"v_cvt_pk_bf16_f32 v{HP+i}, v{R+2*i}, v{R+2*i+1}")
        I(f"v_lshlrev_b32 v{HF+2*i}, 16, v{HP+i}")
        I(f"v_and_b32 v{HF+2*i+1}, 0xffff0000, v{HP+i}")
        I(f"v_lshlrev_b32 v{WRF+2*i}, 16, v{WRV+i}")
        I(f"v_and_b32 v{WRF+2*i+1}, 0xffff0000, v{WRV+i}")
    for nt in range(5):
        I(f"buffer_store_dwordx2 v[{HP+2*nt}:{HP+2*nt+1}], v{vXo}, s[{SH}:{SH+3}], 0 offen offset:{32*nt} {store_flags}")
    A1, A2, A3 = 96, 97, 98
    I(f"v_mov_b32 v{A1}, v{HF}")
    I(f"v_mul_f32 v{A2}, v{HF}, v{HF}")
    I(f"v_mul_f32 v{A3}, v{HF}, v{WRF}")
    for i in range(1, 20):
        I(f"v_add_f32 v{A1}, v{A1}, v{HF+i}")
        I(f"v_fmac_f32 v{A2}, v{HF+i}, v{HF+i}")
        I(f"v_fmac_f32 v{A3}, v{HF+i}, v{WRF+i}")
    for a in (A1, A2, A3):
        I(f"v_mov_b32 v{a+4}, v{a}")
        I(f"v_permlane16_swap_b32 v{a}, v{a+4}")
        I(f"v_add_f32 v{a}, v{a}, v{a+4}")
        I(f"v_mov_b32 v{a+4}, v{a}")
        I(f"v_permlane32_swap_b32 v{a}, v{a+4}")
        I(f"v_add_f32 v{a}, v{a}, v{a+4}")
    I(f"v_lshlrev_b32 v{t0}, 2, v{vRow}")
    I(f"s_mov_b32 exec_lo, 0xffff")
    I(f"s_mov_b32 exec_hi, 0")
    for i, a in enumerate((A1, A2, A3)):
        I(f"s_mov_b32 s{sT}, {i*8192}")
        I(f"buffer_atomic_add_f32 v{a}, v{t0}, s[{SACC}:{SACC+3}], s{sT} offen")
    I("s_mov_b64 exec, -1")
    dump_marks(k, diag, kidx, 14, 15, 20)
    stamp_end(k, diag, kidx, 14, 15, vtmp=20)
    k.L("Lk3_end")
    I("s_endpgm")
    k.fix_hazards()
    pr = check_waits(k.items, "k3")
    for p_ in pr[:10]: print(p_)
    return k, 256, 256, 81920
```

```python
import re
from asmlib import Ins, parse_reg

class Item:
    __slots__ = ("text", "cost", "lo", "hi", "deps", "gap", "pos", "name", "prio", "after")
    def __init__(self, text, cost=1, lo=0, hi=99, deps=(), name=None, prio=0, after=()):
        self.text = text; self.cost = cost; self.lo = lo; self.hi = hi
        self.after = [d for d in after if d is not None]
        self.deps = [d for d in deps if d is not None]; self.gap = None; self.pos = None; self.name = name; self.prio = prio

def schedule(mfmas, items, cap=6, pre=None):
    n = len(mfmas); pre = pre or {}
    load = [0]*n
    for g, t in pre.items():
        if g > 0: load[g-1] += len(t)
    gaps = [[] for _ in range(n)]
    remaining = list(items)
    total = sum(i.cost for i in items) + sum(load)
    for g in range(n):
        while True:
            cands = []
            for it in remaining:
                if it.lo > g: continue
                ok = True
                for d in it.deps:
                    if d.gap is None: ok = False; break
                    if d.gap == g and g != n - 1:
                        if len(gaps[g]) - 1 - d.pos < 2: ok = False; break
                for d in it.after:
                    if d.gap is None: ok = False; break
                if ok and g != n - 1:
                    kind = it.text.split("_")[0]
                    cnt = sum(1 for x in gaps[g] if x.text.split("_")[0] == kind)
                    if kind == "buffer" and cnt >= 1: ok = False
                    if kind == "ds" and cnt >= 2: ok = False
                    if it.text.startswith("v_exp") and sum(1 for x in gaps[g] if x.text.startswith("v_exp")) >= 2: ok = False
                if ok: cands.append(it)
            if not cands: break
            cands.sort(key=lambda i: (i.hi, -i.prio, items.index(i)))
            it = cands[0]
            forced = it.hi <= g or g == n - 1
            if load[g] + it.cost > cap and not forced:
                fit = [c for c in cands if load[g] + c.cost <= cap]
                if not fit: break
                it = fit[0]
            done = sum(load[:g+1])
            avg = total * (g + 1) / n
            if not forced and done + it.cost > avg + 2 and it.hi > g + 3:
                urgent = [c for c in cands if c.hi <= g + 3 and load[g] + c.cost <= cap]
                if not urgent: break
                it = urgent[0]
            it.gap = g; it.pos = len(gaps[g]); gaps[g].append(it); load[g] += it.cost; remaining.remove(it)
    assert not remaining, [(i.text, i.lo, i.hi) for i in remaining]
    out = []
    for g in range(n):
        for t in pre.get(g, []): out.append(t)
        out.append(mfmas[g])
        for it in gaps[g]: out.append(it.text)
    return out, load

def insert_lgkm_waits(seq, initial, age=3, init_age=None):
    out = []; pend = [(set(d), (init_age[i] if init_age else -99)) for i, d in enumerate(initial)]
    mf = 0
    ins = [Ins(t) for t in seq]
    for idx, it in enumerate(ins):
        if it.mn == "s_waitcnt":
            m = re.search(r"lgkmcnt\((\d+)\)", it.text)
            if m:
                nn = int(m.group(1)); pend = pend[len(pend)-nn:] if nn < len(pend) and nn > 0 else ([] if nn == 0 else pend)
        if it.cls == "mfma":
            src = set(it.src)
            need = -1
            for i, (d, _) in enumerate(pend):
                if d & src: need = i
            if need >= 0:
                j = need
                while j + 1 < len(pend) and mf - pend[j+1][1] >= age + 1: j += 1
                nn = min(len(pend) - 1 - j, 15)
                out.append(f"s_waitcnt lgkmcnt({nn})")
                pend = pend[len(pend)-nn:] if nn > 0 else []
            mf += 1
        elif it.cls != "ds":
            touched = set(it.src) | set(it.dst)
            for d, _ in pend:
                assert not (d & touched), ("pending LDS result touched", it.text)
        if it.cls == "ds": pend.append((set(it.dst), mf))
        out.append(it.text)
    return out, [d for d, _ in pend]
```

```python
from common import *

OA, OB, QA, QB, F0, F1 = 0, 64, 128, 160, 192, 224
S0, S1, P0, P1, NMA, NMB = 64, 80, 96, 104, 112, 128
LANE, vL16, vWQ, vNINF = 2, 3, 4, 5
vQ = 6
vA0, vA1, vA2 = 10, 11, 12
vTH0, vTH1 = 13, 14
vTHA, vTHB = 22, 23
LA0, LA1, LB0, LB1, LC0, LC1 = 16, 17, 18, 19, 20, 21
vT = 24
SXN, SWQ, SKV, SCTX = 16, 20, 24, 28
sW, sH, sI = 40, 41, 42
sT, sT2, sB0, sDoff, sDslot, sDlim, sOOB, sCnt, sWL, sQA, sQB, sFlag, sTHR = 43, 44, 45, 46, 47, 48, 49, 50, 51, 52, 53, 54, 55
MSK = 90
KVR = [8*(r >> 2) + (r & 3) for r in range(16)]
COST = {"exp": 8}

from sched import Item, schedule, insert_lgkm_waits

def exp_group(S, regs, L, masked=False, th=None):
    out = []
    for i in range(0, len(regs), 2):
        pair = regs[i:i+2]
        for r in pair: out.append((f"v_exp_f32 v{S+r}, v{S+r}", 8))
        for j, r in enumerate(pair): out.append((f"v_add_f32 v{L[j]}, v{L[j]}, v{S+r}", 4))
    return out

def mask_group(S, th):
    out = []
    for i in range(0, 16, 4):
        for j in range(4):
            out.append((f"v_cmp_le_i32 s[{MSK+2*j}:{MSK+2*j+1}], {KVR[i+j]}, v{th}", 4))
        for j in range(4):
            out.append((f"v_cndmask_b32 v{S+i+j}, v{vNINF}, v{S+i+j}, s[{MSK+2*j}:{MSK+2*j+1}]", 4))
    return out

def cvt_group(S, P, lo, hi):
    return [(f"v_cvt_pk_bf16_f32 v{P+j}, v{S+2*j}, v{S+2*j+1}", 4) for j in range(lo, hi)]

def qk(S, F, Q, NM):
    out = []
    for c in range(8):
        C = f"v[{NM}:{NM+15}]" if c == 0 else f"v[{S}:{S+15}]"
        out.append(f"v_mfma_f32_32x32x16_bf16 v[{S}:{S+15}], a[{F+4*c}:{F+4*c+3}], a[{Q+4*c}:{Q+4*c+3}], {C}")
    return out

def pv(O, F, P):
    out = []
    for j in range(8):
        ks, db = j >> 2, j & 3
        out.append(f"v_mfma_f32_32x32x16_bf16 a[{O+16*db}:{O+16*db+15}], a[{F+4*j}:{F+4*j+3}], v[{P+4*ks}:{P+4*ks+3}], a[{O+16*db}:{O+16*db+15}]")
    return out

def rdK(F, c, vb, off=0): return f"ds_read_b128 a[{F+4*c}:{F+4*c+3}], v{vb} offset:{off + c*1024}"
def rdV(F, j, vb, off=0):
    ks, db = j >> 2, j & 3
    return f"ds_read_b128 a[{F+4*j}:{F+4*j+3}], v{vb} offset:{off + 8192 + (db*2 + ks)*1024}"

DBG = ""
SPLITK = True
QACC = 128
PREF = True
SPF, sPFo, vDUM = 16, 89, 60
def dma_ld(u): return f"buffer_load_dwordx4 v{vL16}, s[{SKV}:{SKV+3}], s{sDoff} offen offset:{u*1024} lds"
def dma_adv():
    return ["s_add_u32 m0, m0, 16384", "s_and_b32 m0, m0, 0x1ffff", f"s_add_u32 s{sDoff}, s{sDoff}, 16384"]

def softmax_items(S, L, regs, lo, hi, masks=None):
    E = {}; items = []
    hi0 = hi
    last_add = [None, None]
    for n, r in enumerate(regs):
        hi_r = lo + (hi0 - lo) * (n + 1) // len(regs)
        hi = max(hi_r, lo)
        e = Item(f"v_exp_f32 v{S+r}, v{S+r}", 2, lo, hi, deps=[masks.get(r) if masks else None])
        E[r] = e; items.append(e)
        a = Item(f"v_add_f32 v{L[n & 1]}, v{L[n & 1]}, v{S+r}", 1, lo, hi + 2, deps=[e], after=[last_add[n & 1]])
        last_add[n & 1] = a; items.append(a)
    return E, items

def mask_items(S, th, lo, hi):
    M = {}; items = []
    prev = [None]*4
    for i in range(16):
        j = i & 3
        c = Item(f"v_cmp_le_i32 s[{MSK+2*j}:{MSK+2*j+1}], {KVR[i]}, v{th}", 1, lo, hi, deps=[prev[j]])
        m = Item(f"v_cndmask_b32 v{S+i}, v{vNINF}, v{S+i}, s[{MSK+2*j}:{MSK+2*j+1}]", 1, lo, hi, deps=[c])
        prev[j] = m; M[i] = m; items += [c, m]
    return M, items

def cvt_items(S, P, js, E, lo, hi):
    return [Item(f"v_cvt_pk_bf16_f32 v{P+j}, v{S+2*j}, v{S+2*j+1}", 1, lo, hi, deps=[E.get(2*j), E.get(2*j+1)]) for j in js]

KREADS = [set(("a", F0 + 4*c + q) for q in range(4)) for c in range(8)]
VREADS = [set(("a", F1 + 4*c + q) for q in range(4)) for c in range(8)]
NE1A = 4

def body(k, kind, masked):
    dual_pv = kind in ("DD", "DS")
    dual_qk = kind == "DD"
    L0n = (LA0, LA1) if dual_qk else (LC0, LC1)
    L1 = (LB0, LB1)
    k.C(f"---- body {kind} masked={masked}")
    if kind == "SE":
        for j in range(8): k.I(rdV(F0, j, vA0, 16384))
        for f in exp_group(S1, list(range(NE1A, 16)), L1): k.I(f[0])
        for f in cvt_group(S1, P1, 0, 8): k.I(f[0])
        k.I("s_waitcnt lgkmcnt(8)")
        for m in pv(OB, F1, P0): k.I(m)
        k.I("s_waitcnt lgkmcnt(0)")
        for m in pv(OB, F0, P1): k.I(m)
        return
    items = []; pre = {}
    if kind == "DD":   mf = qk(S0, F0, QA, NMA) + pv(OA, F1, P0) + qk(S1, F0, QB, NMB) + pv(OB, F1, P1)
    elif kind == "DS": mf = qk(S0, F0, QB, NMB) + pv(OA, F1, P0) + qk(S1, F0, QB, NMB) + pv(OB, F1, P1)
    else:              mf = qk(S0, F0, QB, NMB) + pv(OB, F1, P0) + qk(S1, F0, QB, NMB) + pv(OB, F1, P1)
    E1b, it = softmax_items(S1, L1, list(range(NE1A, 16)), 0, 12); items += it
    items += cvt_items(S1, P1, range(0, 8), E1b, 0, 15)
    M0 = M1 = None
    if masked:
        M0, it = mask_items(S0, vTH0, 10, 22); items += it
        if kind != "DD":
            M1, it = mask_items(S1, vTH1, 26, 31); items += it
    E0, it = softmax_items(S0, L0n, list(range(16)), 10, 28, M0); items += it
    items += cvt_items(S0, P0, range(0, 4), E0, 12, 31)
    items += cvt_items(S0, P0, range(4, 8), E0, 16, 31)
    E1a, it = softmax_items(S1, L1, list(range(0, NE1A)), 26, 30, M1); items += it
    BAR = 19
    def chain(lst, after0=None):
        prev = after0
        for x in lst:
            if prev is not None: x.after.append(prev)
            items.append(x); prev = x
        return prev
    mid = []
    if kind == "DD":
        vm = 16
    elif kind == "DS":
        mid = [Item(rdK(F0, j, vA1), 1, j, j + 4, prio=3) for j in range(8)]
        vm = 12
    else:
        mid = [Item(rdK(F0, j, vA1, 16384), 1, j, j + 4, prio=3) for j in range(8)]
        mid += [Item(rdV(F1, j, vA0, 16384), 1, 8 + j, min(8 + j + 1, 16), prio=3) for j in range(8)]
        vm = 8
    chain(mid)
    pre[BAR] = [f"s_waitcnt vmcnt({vm}) lgkmcnt(0)", "s_barrier"]
    if kind == "DD":   kb, ko, vb, vo = vA1, 0, vA2, 0
    elif kind == "DS": kb, ko, vb, vo = vA2, 0, vA0, 0
    else:              kb, ko, vb, vo = vA2, 0, vA1, 0
    tailK = [Item(rdK(F0, j, kb, ko), 1, max(BAR, 16 + j), max(BAR, 16 + j) + 2, prio=3) for j in range(8)]
    tailV = [Item(rdV(F1, j, vb, vo), 1, 24 + j, 24 + j if j > 3 else 27, prio=3) for j in range(8)]
    addr_pre = []
    if kind == "DS":
        a0 = Item(f"v_add_u32 v{vA0}, 0x4000, v{vA0}", 1, 0, 15); a1 = Item(f"v_and_b32 v{vA0}, 0x1ffff, v{vA0}", 1, 0, 17, deps=[a0])
        c1 = Item(f"v_add_u32 v{vA2}, 0x4000, v{vA1}", 1, 0, 15); c2 = Item(f"v_and_b32 v{vA2}, 0x1ffff, v{vA2}", 1, 0, 17, deps=[c1])
        items += [a0, a1, c1, c2]
        for x in tailK: x.deps.append(c2)
        for x in tailV: x.deps.append(a1)
    last = chain(tailK + tailV)
    nblk = 2 if kind == "SS" else 1
    dl = []
    g0 = BAR
    for blk in range(nblk):
        for u in range(4): dl.append(Item(dma_ld(u), 1, min(g0 + blk*6 + u, 31), min(g0 + blk*6 + u + 1, 31)))
        for t in dma_adv(): dl.append(Item(t, 1, BAR, min(g0 + blk*6 + 5, 31)))
    chain(dl)
    if kind == "DD" and not masked and PREF:
        p1 = Item(f"buffer_load_dwordx4 v[{vDUM}:{vDUM+3}], v{vL16}, s[{SPF}:{SPF+3}], s{sPFo} offen", 1, 2, 12); items.append(p1)
        items.append(Item(f"s_add_u32 s{sPFo}, s{sPFo}, 1024", 1, 3, 15, after=[p1]))
    if kind == "DD":
        post = [f"v_mov_b32 v{vA0}, v{vA2}", f"v_mov_b32 v{vA2}, v{vA1}", f"v_add_u32 v{vA1}, 0x4000, v{vA1}", f"v_and_b32 v{vA1}, 0x1ffff, v{vA1}"]
    elif kind == "DS":
        post = [f"v_mov_b32 v{vA1}, v{vA2}", f"v_add_u32 v{vA2}, 0x8000, v{vA2}", f"v_and_b32 v{vA2}, 0x1ffff, v{vA2}"]
    else:
        post = [f"v_mov_b32 v{vA0}, v{vA1}", f"v_mov_b32 v{vA1}, v{vA2}", f"v_add_u32 v{vA2}, 0x8000, v{vA2}", f"v_and_b32 v{vA2}, 0x1ffff, v{vA2}"]
    if masked:
        if kind == "DD": items.append(Item(f"v_subrev_u32 v{vTH0}, 32, v{vTH0}", 1, 23, 31))
        else:
            items.append(Item(f"v_subrev_u32 v{vTH0}, 64, v{vTH0}", 1, 23, 31))
            post.append(f"v_subrev_u32 v{vTH1}, 64, v{vTH1}")
    seq, load = schedule(mf, items, cap=CAP, pre=pre)
    seq += post
    seq, outst = insert_lgkm_waits(seq, KREADS + VREADS, age=AGE, init_age=[-12 + j*5//8 for j in range(8)] + [-7 + j for j in range(8)])
    assert outst == KREADS + VREADS, [sorted(o)[0] for o in outst]
    if VERBOSE: print(kind, masked, "gap loads", load, "sum", sum(load) + len(post), "instrs", len(seq))
    for t in seq: k.I(t)

AGE = 4
CAP = 6
VERBOSE = True
def loop(k, name, kind, masked):
    k.I(f"s_sub_u32 s{sCnt}, s{sCnt}, 1")
    k.I(f"s_cbranch_scc1 {name}_end")
    k.L(name)
    body(k, kind, masked)
    k.I(f"s_sub_u32 s{sCnt}, s{sCnt}, 1")
    k.I(f"s_cbranch_scc0 {name}")
    k.L(name + "_end")

def epilogue(k, O, Lregs, sQ, flagbit, store_flags):
    I = k.I
    t = vT
    I(f"v_add_f32 v{t}, v{Lregs[0]}, v{Lregs[1]}")
    for r in Lregs[2:]: I(f"v_add_f32 v{t}, v{t}, v{r}")
    I(f"v_mov_b32 v{t+1}, v{t}")
    I(f"v_permlane32_swap_b32 v{t}, v{t+1}")
    I(f"v_add_f32 v{t}, v{t}, v{t+1}")
    I(f"v_rcp_f32 v{t+2}, v{t}")
    I(f"v_mov_b32 v{t+4}, 0")
    I(f"v_mov_b32 v{t+3}, v{t+2}")
    for c in range(8):
        db, ip = c >> 1, c & 1
        b = t + 8 + (c & 1)*12
        for j in range(8): I(f"v_accvgpr_read_b32 v{b+j}, a{O+16*db+8*ip+j}")
        for j in range(4): I(f"v_pk_mul_f32 v[{b+2*j}:{b+2*j+1}], v[{b+2*j}:{b+2*j+1}], v[{t+2}:{t+3}]")
        for j in range(4): I(f"v_cvt_pk_bf16_f32 v{b+8+j}, v{b+2*j}, v{b+2*j+1}")
        I(f"s_add_u32 s{sT}, s{sQ}, {c*1024}")
        I(f"buffer_store_dwordx4 v[{b+8}:{b+11}], v{vL16}, s[{SCTX}:{SCTX+3}], s{sT} offen {store_flags}")
        for j in range(4): I(f"v_maximum3_f32 v{t+4}, |v{b+2*j}|, |v{b+2*j+1}|, v{t+4}")
    I(f"v_mov_b32 v{t+5}, 0x5d800000")
    I(f"v_cmp_nle_f32 s[{MSK}:{MSK+1}], v{t}, v{t+5}")
    I(f"v_mov_b32 v{t+5}, 0x35800000")
    I(f"v_cmp_nge_f32 s[{MSK+2}:{MSK+3}], v{t}, v{t+5}")
    I(f"v_mov_b32 v{t+5}, 0x7f7f0000")
    I(f"v_cmp_nle_f32 s[{MSK+4}:{MSK+5}], v{t+4}, v{t+5}")
    I(f"s_or_b64 s[{MSK}:{MSK+1}], s[{MSK}:{MSK+1}], s[{MSK+2}:{MSK+3}]")
    I(f"s_or_b64 s[{MSK}:{MSK+1}], s[{MSK}:{MSK+1}], s[{MSK+4}:{MSK+5}]")
    I(f"s_cmp_lg_u64 s[{MSK}:{MSK+1}], 0")
    I(f"s_cselect_b32 s{sT}, {flagbit}, 0")
    I(f"s_or_b32 s{sFlag}, s{sFlag}, s{sT}")

def slow_path(k, name, O, Q, sQ, sQblk_expr, store_flags, force=False):
    I = k.I
    m, l, mn, al, t = vT, vT+1, vT+2, vT+3, vT+4
    sQblk_expr()
    I(f"s_mov_b32 s{sDoff}, 0")
    I(f"v_mov_b32 v{m}, 0xff7fffff")
    I(f"v_mov_b32 v{l}, 0")
    for r in range(64): I(f"v_accvgpr_write_b32 a{O+r}, 0")
    I(f"v_and_b32 v{vTH0}, 31, v{LANE}")
    I(f"v_lshrrev_b32 v{t}, 5, v{LANE}")
    I(f"v_lshlrev_b32 v{t}, 2, v{t}")
    I(f"v_sub_u32 v{vTH0}, v{vTH0}, v{t}")
    I(f"s_lshl_b32 s{sT}, s{sCnt}, 5")
    I(f"v_add_u32 v{vTH0}, s{sT}, v{vTH0}")
    I(f"s_add_u32 s{sCnt}, s{sCnt}, 1")
    k.L(name)
    for c in range(8):
        I(f"s_add_u32 s{sT}, s{sDoff}, {c*1024}")
        I(f"buffer_load_dwordx4 a[{F0+4*c}:{F0+4*c+3}], v{vL16}, s[{SKV}:{SKV+3}], s{sT} offen")
    for j in range(8):
        ks, db = j >> 2, j & 3
        I(f"s_add_u32 s{sT}, s{sDoff}, {8192 + (db*2+ks)*1024}")
        I(f"buffer_load_dwordx4 a[{F1+4*j}:{F1+4*j+3}], v{vL16}, s[{SKV}:{SKV+3}], s{sT} offen")
    I("s_waitcnt vmcnt(8)")
    for c in range(8):
        C = "0" if c == 0 else f"v[{S0}:{S0+15}]"
        I(f"v_mfma_f32_32x32x16_bf16 v[{S0}:{S0+15}], a[{F0+4*c}:{F0+4*c+3}], a[{Q+4*c}:{Q+4*c+3}], {C}")
    for f in mask_group(S0, vTH0): I(f[0])
    I(f"v_max3_f32 v{mn}, v{S0}, v{S0+1}, v{m}")
    for r in range(2, 16, 2): I(f"v_max3_f32 v{mn}, v{S0+r}, v{S0+r+1}, v{mn}")
    I(f"v_mov_b32 v{t}, v{mn}")
    I(f"v_permlane32_swap_b32 v{mn}, v{t}")
    I(f"v_max_f32 v{mn}, v{mn}, v{t}")
    I(f"v_sub_f32 v{al}, v{m}, v{mn}")
    I(f"v_exp_f32 v{al}, v{al}")
    I(f"v_mov_b32 v{m}, v{mn}")
    I(f"v_mul_f32 v{l}, v{l}, v{al}")
    for r in range(16):
        I(f"v_sub_f32 v{S0+r}, v{S0+r}, v{mn}")
        I(f"v_exp_f32 v{S0+r}, v{S0+r}")
    for r in range(16): I(f"v_add_f32 v{l}, v{l}, v{S0+r}")
    for j in range(8): I(f"v_cvt_pk_bf16_f32 v{P0+j}, v{S0+2*j}, v{S0+2*j+1}")
    for r in range(64):
        I(f"v_accvgpr_read_b32 v{t}, a{O+r}")
        I(f"v_mul_f32 v{t}, v{t}, v{al}")
        I(f"v_accvgpr_write_b32 a{O+r}, v{t}")
    I("s_waitcnt vmcnt(0)")
    for mm in pv(O, F1, P0): I(mm)
    I(f"s_add_u32 s{sDoff}, s{sDoff}, 16384")
    I(f"v_subrev_u32 v{vTH0}, 32, v{vTH0}")
    I(f"s_sub_u32 s{sCnt}, s{sCnt}, 1")
    I(f"s_cmp_lg_u32 s{sCnt}, 0")
    I("s_nop 15")
    I(f"s_cbranch_scc1 {name}")
    I(f"v_mov_b32 v{LA0}, v{l}")
    I(f"v_mov_b32 v{LA1}, 0")
    epilogue(k, O, (LA0, LA1), sQ, 0, store_flags)

MARK0 = 0
MARKMAP = {3:10, 4:11, 5:12, 6:12, 7:12, 8:13, 9:13, 10:14, 11:15}
def amark(k, diag, i):
    import os
    if os.environ.get('FINE'): return
    mark(k, diag, MARKMAP[i] if MARK0 else i)

def att_part(k, diag, store_flags, C0, lateq, sQblkA, sQblkB, kidx, endlabel, reload_ptrs=False):
    I = k.I
    t0, t1 = vT, vT + 1
    I(f"s_mov_b32 s{sT}, {f32bits(QSCALE)}")
    I(f"v_mov_b32 v{vT+8}, s{sT}")
    I(f"v_mov_b32 v{vT+9}, s{sT}")
    for T, Q in ((0, QA), (1, QB)):
        for c in range(8):
            src = QACC + (T*4 + (c >> 1))*16 + 8*(c & 1)
            for j in range(4): I(f"v_pk_mul_f32 v[{src+2*j}:{src+2*j+1}], v[{src+2*j}:{src+2*j+1}], v[{vT+8}:{vT+9}]")
            for j in range(4): I(f"v_cvt_pk_bf16_f32 v{vT+j}, v{src+2*j}, v{src+2*j+1}")
            for j in range(4): I(f"v_accvgpr_write_b32 a{Q+4*c+j}, v{vT+j}")
            if len(lateq) > 1:
                I(f"s_mov_b32 s{sT2}, s{sT}")
                lateq.pop(0)(); I(f"s_mov_b32 s{sT}, s{sT2}")
    for r in range(128):
        I(f"v_accvgpr_write_b32 a{r}, 0")
        if r % 16 == 15 and lateq: lateq.pop(0)()
    while lateq: lateq.pop(0)()
    I(f"s_add_u32 m0, s{sWL}, {((8 + C0) % 8)*16384}")
    I(f"s_add_u32 s{sDoff}, s{sWL}, {8*16384}")
    for r in (LA0, LA1, LB0, LB1, LC0, LC1): I(f"v_mov_b32 v{r}, 0")
    I(f"v_and_b32 v{t0}, 31, v{LANE}")
    I(f"v_lshrrev_b32 v{t1}, 5, v{LANE}")
    I(f"v_lshlrev_b32 v{t1}, 2, v{t1}")
    I(f"v_sub_u32 v{t0}, v{t0}, v{t1}")
    I(f"s_lshl_b32 s{sT}, s{sQblkA}, 5")
    I(f"v_add_u32 v{vTH0}, s{sT}, v{t0}")
    I(f"v_mov_b32 v{vTHA}, v{vTH0}")
    I(f"s_lshl_b32 s{sT}, s{sQblkB}, 5")
    I(f"v_add_u32 v{vTH1}, s{sT}, v{t0}")
    I(f"v_mov_b32 v{vTHB}, v{vTH1}")
    amark(k, diag, 3)
    k.wait_vm("kv2", expect=4)
    I("s_barrier")
    I(f"v_add_u32 v{vA0}, {(C0 % 8)*16384}, v{vL16}")
    I(f"v_add_u32 v{vA2}, {((C0 + 1) % 8)*16384}, v{vL16}")
    I(f"v_add_u32 v{vA1}, {((C0 + 2) % 8)*16384}, v{vL16}")
    for c in range(8): I(rdK(F0, c, vA0))
    I("s_waitcnt lgkmcnt(0)")
    for S, Q in ((S0, QA), (S1, QB)):
        for c in range(8):
            C = "0" if c == 0 else f"v[{S}:{S+15}]"
            I(f"v_mfma_f32_32x32x16_bf16 v[{S}:{S+15}], a[{F0+4*c}:{F0+4*c+3}], a[{Q+4*c}:{Q+4*c+3}], {C}")
    for c in range(8): I(rdK(F0, c, vA2))
    for j in range(8): I(rdV(F1, j, vA0))
    for S, TH, NM in ((S0, vTH0, NMA), (S1, vTH1, NMB)):
        for f in mask_group(S, TH): I(f[0])
        I(f"v_max3_f32 v{t0}, v{S}, v{S+1}, v{S+2}")
        for r in range(3, 15, 2): I(f"v_max3_f32 v{t0}, v{S+r}, v{S+r+1}, v{t0}")
        I(f"v_max_f32 v{t0}, v{t0}, v{S+15}")
        I(f"v_mov_b32 v{t1}, v{t0}")
        I(f"v_permlane32_swap_b32 v{t0}, v{t1}")
        I(f"v_max_f32 v{t0}, v{t0}, v{t1}")
        for r in range(16): I(f"v_sub_f32 v{S+r}, v{S+r}, v{t0}")
        for r in range(16): I(f"v_sub_f32 v{NM+r}, 0, v{t0}")
    for f in exp_group(S0, list(range(16)), (LA0, LA1)): I(f[0])
    for f in cvt_group(S0, P0, 0, 8): I(f[0])
    for f in exp_group(S1, list(range(NE1A)), (LB0, LB1)): I(f[0])
    amark(k, diag, 4)
    PFT = {7: (6, 4096*640*2, 0, 27), 4: (6, 4096*640*2, 3456, 15), 5: (8, 640*1728*2, 0, 19), 6: (10, 640*1728*2, 0, 23),
           3: (12, 640*1728*2, 0, 11), 2: (12, 640*1728*2, 1408, 7)}
    I(f"s_mov_b32 s{SPF}, s6")
    I(f"s_mov_b32 s{SPF+1}, s7")
    I(f"s_mov_b32 s{SPF+2}, 0")
    I(f"s_mov_b32 s{SPF+3}, 0x20000")
    I(f"s_mov_b32 s{sPFo}, 0")
    I(f"s_lshl_b32 s{sT2}, s{sH}, 2")
    I(f"s_add_u32 s{sT2}, s{sT2}, s{sW}")
    for ii, (lo, size, start, iters) in PFT.items():
        I(f"s_cmp_eq_u32 s{sI}, {ii}")
        I(f"s_cselect_b32 s{SPF}, s{lo}, s{SPF}")
        I(f"s_cselect_b32 s{SPF+1}, s{lo+1}, s{SPF+1}")
        I(f"s_cselect_b32 s{SPF+2}, {size}, s{SPF+2}")
        I(f"s_mul_i32 s{sT}, s{sT2}, {iters*1024}")
        I(f"s_add_u32 s{sT}, s{sT}, {start*1024}")
        I(f"s_cmp_eq_u32 s{sI}, {ii}")
        I(f"s_cselect_b32 s{sPFo}, s{sT}, s{sPFo}")
    loops = []
    I(f"s_lshl_b32 s{sCnt}, s{sI}, 2")
    I(f"s_sub_u32 s{sCnt}, s{sCnt}, 1")
    I(f"s_max_i32 s{sCnt}, s{sCnt}, 0")
    loop(k, "Lk2_dd", "DD", False)
    amark(k, diag, 5)
    I(f"s_cmp_eq_u32 s{sI}, 0")
    I(f"s_cselect_b32 s{sCnt}, 3, 4")
    I(f"s_lshl_b32 s{sT}, s{sI}, 2")
    I(f"s_max_u32 s{sT}, s{sT}, 1")
    I(f"s_lshl_b32 s{sT}, s{sT}, 5")
    I(f"v_subrev_u32 v{vTH0}, s{sT}, v{vTHA}")
    loop(k, "Lk2_ddm", "DD", True)
    amark(k, diag, 6)
    I(f"s_lshl_b32 s{sT}, s{sI}, 7")
    I(f"s_add_u32 s{sT}, s{sT}, 128")
    I(f"v_subrev_u32 v{vTH0}, s{sT}, v{vTHB}")
    I(f"v_subrev_u32 v{vTH1}, 32, v{vTH0}")
    i0 = len(k.items)
    body(k, "DS", True)
    ds_rng = (i0, len(k.items))
    amark(k, diag, 7)
    I(f"s_lshl_b32 s{sT}, s{sI}, 2")
    I(f"s_sub_u32 s{sCnt}, 27, s{sT}")
    I(f"s_max_i32 s{sCnt}, s{sCnt}, 0")
    loop(k, "Lk2_ss", "SS", False)
    amark(k, diag, 8)
    I(f"s_cmp_eq_u32 s{sI}, 7")
    I(f"s_cselect_b32 s{sCnt}, 1, 2")
    I(f"s_lshl_b32 s{sT}, s{sI}, 2")
    I(f"s_sub_u32 s{sT2}, 60, s{sT}")
    I(f"s_add_u32 s{sT}, s{sT}, 6")
    I(f"s_max_u32 s{sT}, s{sT}, s{sT2}")
    I(f"s_lshl_b32 s{sT}, s{sT}, 5")
    I(f"v_subrev_u32 v{vTH0}, s{sT}, v{vTHB}")
    I(f"v_subrev_u32 v{vTH1}, 32, v{vTH0}")
    loop(k, "Lk2_ssm", "SS", True)
    amark(k, diag, 9)
    body(k, "SE", False)
    amark(k, diag, 10)
    SWO, SWOT = 16, 20
    vWO, vWOr, WOF = S0, S0 + 5, S1
    I("s_barrier")
    srd(k, SWO, 6, 7, 4096*640*2)
    srd(k, SWOT, 14, 15, WOT_SIZE, WOT_OFF)
    I(f"s_mov_b32 s{sCnt}, 1639")
    I(f"s_mul_i32 s{sT2}, s{sW}, 320")
    for u in range(5):
        I(f"v_add_u32 v{t0}, s{sT2}, v{LANE}")
        I(f"v_add_u32 v{t0}, {64*u}, v{t0}")
        I(f"v_mul_lo_u32 v{t1}, v{t0}, s{sCnt}")
        I(f"v_lshrrev_b32 v{t1}, 16, v{t1}")
        I(f"v_mul_u32_u24 v{vWO+u}, 40, v{t1}")
        I(f"v_sub_u32 v{t0}, v{t0}, v{vWO+u}")
        I(f"v_mul_u32_u24 v{t1}, 1280, v{t1}")
        I(f"v_lshl_add_u32 v{vWO+u}, v{t0}, 4, v{t1}")
    I(f"s_lshr_b32 s{sT}, s2, 1")
    I(f"s_mul_i32 s{sDoff}, s{sT}, {32*1280}")
    I(f"s_and_b32 s{sT}, s2, 1")
    I(f"s_mul_i32 s{sT}, s{sT}, 640")
    I(f"s_add_u32 s{sDoff}, s{sDoff}, s{sT}")
    I(f"s_mul_i32 s{sT2}, s{sW}, 5120")
    for u in range(5):
        I(f"s_add_u32 m0, s{sT2}, {u*1024}")
        I(f"buffer_load_dwordx4 v{vWO+u}, s[{SWO}:{SWO+3}], s{sDoff} offen lds", tag="wo")
    I(f"v_lshrrev_b32 v{t0}, 5, v{LANE}")
    I(f"v_lshlrev_b32 v{t0}, 4, v{t0}")
    I(f"v_bfe_u32 v{t1}, v{LANE}, 4, 1")
    I(f"v_lshl_add_u32 v{t0}, v{t1}, 2, v{t0}")
    I(f"v_bfe_u32 v{t1}, v{LANE}, 2, 2")
    I(f"v_add_u32 v{t0}, v{t0}, v{t1}")
    I(f"v_mul_u32_u24 v{vWOr}, 640, v{t0}")
    I(f"v_and_b32 v{t1}, 3, v{LANE}")
    I(f"v_lshl_add_u32 v{vWOr}, v{t1}, {4 if SPLITK else 3}, v{vWOr}")
    I(f"s_mul_i32 s{sT}, s{sW}, {64 if SPLITK else 160}")
    I(f"v_add_u32 v{vWOr}, s{sT}, v{vWOr}")
    epilogue(k, OA, (LA0, LA1), sQA, 1, store_flags)
    epilogue(k, OB, (LB0, LB1, LC0, LC1), sQB, 2, store_flags)
    k.wait_vm("wo", expect=5)
    I("s_barrier")
    if SPLITK:
        for j in range(3):
            for h2 in range(2):
                r = WOF + (j*2 + h2)*4
                I(f"ds_read_b64_tr_b16 v[{r}:{r+1}], v{vWOr} offset:{j*256 + h2*8}")
                I(f"ds_read_b64_tr_b16 v[{r+2}:{r+3}], v{vWOr} offset:{j*256 + h2*8 + 8*640}")
        I("s_waitcnt lgkmcnt(0)")
        for j in range(3):
            I(f"s_add_u32 s{sT}, s{sW}, {4*j}")
            I(f"s_cmp_ge_u32 s{sT}, 5")
            I(f"s_cselect_b32 s{sT2}, 1, 0")
            I(f"s_mul_i32 s{sDoff}, s{sT2}, 5")
            I(f"s_sub_u32 s{sDoff}, s{sT}, s{sDoff}")
            I(f"s_lshl_b32 s{sDoff}, s{sDoff}, 11")
            I(f"s_and_b32 s{sCnt}, s2, 1")
            I(f"s_lshl_b32 s{sCnt}, s{sCnt}, 1")
            I(f"s_add_u32 s{sCnt}, s{sCnt}, s{sT2}")
            I(f"s_lshl_b32 s{sCnt}, s{sCnt}, 7")
            I(f"s_lshr_b32 s{sT2}, s2, 1")
            I(f"s_add_u32 s{sCnt}, s{sCnt}, s{sT2}")
            I(f"s_mul_i32 s{sCnt}, s{sCnt}, 10240")
            I(f"s_add_u32 s{sDoff}, s{sDoff}, s{sCnt}")
            I(f"s_cmp_ge_u32 s{sT}, 10")
            I(f"s_cselect_b32 s{sDoff}, {WOT_SIZE}, s{sDoff}")
            for h2 in range(2):
                r = WOF + (j*2 + h2)*4
                I(f"buffer_store_dwordx4 v[{r}:{r+3}], v{vL16}, s[{SWOT}:{SWOT+3}], s{sDoff} offen offset:{h2*1024} {store_flags}")
    else:
        for nt in range(5):
            I(f"ds_read_b64_tr_b16 v[{WOF+4*nt}:{WOF+4*nt+1}], v{vWOr} offset:{nt*32}")
            I(f"ds_read_b64_tr_b16 v[{WOF+4*nt+2}:{WOF+4*nt+3}], v{vWOr} offset:{nt*32 + 8*640}")
        I(f"s_and_b32 s{sDoff}, s2, 1")
        I(f"s_lshl_b32 s{sDoff}, s{sDoff}, 2")
        I(f"s_add_u32 s{sDoff}, s{sDoff}, s{sW}")
        I(f"s_lshl_b32 s{sDoff}, s{sDoff}, 7")
        I(f"s_lshr_b32 s{sT}, s2, 1")
        I(f"s_add_u32 s{sDoff}, s{sDoff}, s{sT}")
        I(f"s_mul_i32 s{sDoff}, s{sDoff}, 5120")
        I("s_waitcnt lgkmcnt(0)")
        for nt in range(5):
            I(f"s_add_u32 s{sT}, s{sDoff}, {nt*1024}")
            I(f"buffer_store_dwordx4 v[{WOF+4*nt}:{WOF+4*nt+3}], v{vL16}, s[{SWOT}:{SWOT+3}], s{sT} offen {store_flags}")
    amark(k, diag, 11)
    I(f"s_bitcmp1_b32 s{sFlag}, 0")
    I("s_cbranch_scc0 Lk2_noslowA")
    I("s_waitcnt vmcnt(0)")
    slow_path(k, "Lk2_slowA", OA, QA, sQA, lambda: I(f"s_mov_b32 s{sCnt}, s{sQblkA}"), store_flags)
    k.L("Lk2_noslowA")
    I(f"s_bitcmp1_b32 s{sFlag}, 1")
    I("s_cbranch_scc0 Lk2_noslowB")
    I("s_waitcnt vmcnt(0)")
    slow_path(k, "Lk2_slowB", OB, QB, sQB, lambda: I(f"s_mov_b32 s{sCnt}, s{sQblkB}"), store_flags)
    k.L("Lk2_noslowB")
    dump_marks(k, diag, kidx, 14, 15, 24)
    stamp_end(k, diag, kidx, 14, 15, vtmp=24)
    k.L(endlabel)
    I("s_endpgm")

def finish_k2(k):
    k.fix_hazards()
    trace = []
    items = k.items
    lab = {it[:-1]: idx for idx, it in enumerate(items) if isinstance(it, str) and it.endswith(":")}
    idx = 0
    names = ["Lk2_dd", "Lk2_ddm", "Lk2_ss", "Lk2_ssm"]
    segs = []
    pos = 0
    for nm in names:
        a, b = lab[nm], lab[nm + "_end"]
        segs.append(items[pos:a]); segs.append(items[a:b]); segs.append(items[a:b]); pos = b
    segs.append(items[pos:lab["Lk2_noslowA"]])
    for s_ in segs: trace += s_
    pr = check_seq(trace, "k2") + check_waits(trace, "k2")
    trace2 = items[:lab["Lk2_dd"]] + items[lab["Lk2_dd_end"]:lab["Lk2_ss"]] + items[lab["Lk2_ss_end"]:lab["Lk2_noslowA"]]
    pr += check_seq(trace2, "k2z") + check_waits(trace2, "k2z")
    for p_ in pr[:20]: print(p_)
    print("k2 problems:", len(pr))

def gen_k2(diag=False, store_flags="sc1", force_slow=0, dbg=""):
    global DBG
    DBG = dbg
    k = Kern("k2_kernel")
    I = k.I
    I("s_cmp_ge_u32 s2, 256")
    I("s_cbranch_scc1 Lk2_end")
    stamp_begin(k, diag)
    I(f"s_load_dwordx2 s[4:5], s[0:1], {KA['wq']}")
    I(f"s_load_dwordx2 s[14:15], s[0:1], {KA['ws']}")
    I(f"s_load_dwordx2 s[6:7], s[0:1], {KA['wo']}")
    I(f"s_load_dwordx4 s[8:11], s[0:1], {KA['wg']}")
    I(f"s_load_dwordx2 s[12:13], s[0:1], {KA['wd']}")
    I("v_lshrrev_b32 v1, 6, v0")
    I(f"v_and_b32 v{LANE}, 63, v0")
    I(f"v_readfirstlane_b32 s{sW}, v1")
    I(f"s_and_b32 s{sT}, s2, 7")
    I(f"s_lshr_b32 s{sT2}, s2, 3")
    I(f"s_and_b32 s{sH}, s{sT2}, 3")
    I(f"s_lshl_b32 s{sT}, s{sT}, 2")
    I(f"s_add_u32 s{sH}, s{sH}, s{sT}")
    I(f"s_lshr_b32 s{sI}, s2, 5")
    I("s_waitcnt lgkmcnt(0)")
    srd(k, SXN, 14, 15, XN_SIZE, XN_OFF)
    srd(k, SWQ, 4, 5, 640*4096*2)
    I(f"s_lshl_b32 s{sT}, s{sH}, 20")
    I(f"s_add_u32 s{sT}, s{sT}, {KV_OFF}")
    I(f"s_add_u32 s{SKV}, s14, s{sT}")
    I(f"s_addc_u32 s{SKV+1}, s15, 0")
    I(f"s_lshl_b32 s{sT}, s{sI}, 16")
    I(f"s_sub_u32 s{SKV+2}, {64*16384}, s{sT}")
    I(f"s_mov_b32 s{SKV+3}, 0x20000")
    srd(k, SCTX, 14, 15, CTX_SIZE, CTX_OFF)
    t0, t1 = vT, vT + 1
    I(f"v_lshlrev_b32 v{vL16}, 4, v{LANE}")
    I(f"v_lshrrev_b32 v{t0}, 4, v{LANE}")
    I(f"v_lshlrev_b32 v{vWQ}, 13, v{t0}")
    I(f"v_lshlrev_b32 v{t0}, 2, v{t0}")
    I(f"v_and_b32 v{t1}, 15, v{LANE}")
    I(f"v_xor_b32 v{t0}, v{t0}, v{t1}")
    I(f"v_lshl_add_u32 v{vWQ}, v{t0}, 4, v{vWQ}")
    I(f"v_lshrrev_b32 v{t1}, 5, v{LANE}")
    I(f"v_bfe_u32 v{t0}, v{LANE}, 2, 2")
    I(f"v_lshl_add_u32 v{t1}, v{t1}, 3, v{t0}")
    I(f"v_lshlrev_b32 v{t1}, 8, v{t1}")
    I(f"v_bfe_u32 v{t0+2}, v{LANE}, 4, 1")
    I(f"v_lshl_add_u32 v{t1}, v{t0+2}, 5, v{t1}")
    I(f"v_and_b32 v{t0+2}, 3, v{LANE}")
    I(f"v_lshl_add_u32 v{t1}, v{t0+2}, 3, v{t1}")
    for db in range(4):
        I(f"v_xor_b32 v{t0+2}, {db}, v{t0}")
        I(f"v_lshl_add_u32 v{vQ+db}, v{t0+2}, 6, v{t1}")
    I(f"v_mov_b32 v{vNINF}, 0xff800000")
    I(f"s_lshl_b32 s{sWL}, s{sW}, 12")
    sQblkA, sQblkB = 56, 57
    I(f"s_lshl_b32 s{sT}, s{sI}, 2")
    I(f"s_add_u32 s{sQblkA}, s{sT}, s{sW}")
    I(f"s_sub_u32 s{sQblkB}, 60, s{sT}")
    I(f"s_add_u32 s{sQblkB}, s{sQblkB}, s{sW}")
    sXA, sXB, sWq = 58, 59, 60+32
    sXA, sXB, sWq = 58, 59, 88
    I(f"s_mul_i32 s{sXA}, s{sQblkA}, 40960")
    I(f"s_mul_i32 s{sXB}, s{sQblkB}, 40960")
    for sq, sb in ((sQA, sQblkA), (sQB, sQblkB)):
        I(f"s_lshl_b32 s{sq}, s{sb}, 5")
        I(f"s_add_u32 s{sq}, s{sq}, s{sH}")
        I(f"s_lshl_b32 s{sq}, s{sq}, 13")
    I(f"s_lshl_b32 s{sWq}, s{sW}, 17")
    I(f"s_lshl_b32 s{sT}, s{sH}, 8")
    I(f"s_add_u32 s{sWq}, s{sWq}, s{sT}")
    I(f"s_mov_b32 s{sFlag}, {force_slow}")
    XR = 0
    QACC = 128
    def xload(s):
        for T, sx in ((0, sXA), (1, sXB)):
            a = XR + ((2*s + T) % 32)*4
            I(f"s_add_u32 s{sT}, s{sx}, {s*1024}")
            I(f"buffer_load_dwordx4 a[{a}:{a+3}], v{vL16}, s[{SXN}:{SXN+3}], s{sT} offen", tag=f"x{s}")
    def wdma_one(g, u):
        I(f"s_add_u32 m0, s{sWL}, {(g % 8)*16384 + u*1024}")
        I(f"s_add_u32 s{sT}, s{sWq}, {(64*g + 4*u)*8192}")
        I(f"buffer_load_dwordx4 v{vWQ}, s[{SWQ}:{SWQ+3}], s{sT} offen lds", tag=f"w{g}")
    def kv_one(blk, u):
        I(f"s_add_u32 m0, s{sWL}, {((blk + 10) % 8)*16384}")
        I(f"s_add_u32 s{sT}, s{sWL}, {blk*16384}")
        I(f"buffer_load_dwordx4 v{vL16}, s[{SKV}:{SKV+3}], s{sT} offen offset:{u*1024} lds", tag=f"kv{blk}")
    def kv_closures(blk): return [lambda u=u: kv_one(blk, u) for u in range(4)]
    def wread(n):
        g, s = n >> 2, n & 3
        F = F0 if n % 2 == 0 else F1
        F = F0 + (n % 2)*16
        off = (g % 8)*16384 + s*4096
        hi = off >= 65536
        for db in range(4):
            vb = vQ + db
            o = off
            if hi: vb = vT + 8 + db; o = off - 65536
            I(f"ds_read_b64_tr_b16 a[{F+4*db}:{F+4*db+1}], v{vb} offset:{o}", tag=f"r{n}")
            I(f"ds_read_b64_tr_b16 a[{F+4*db+2}:{F+4*db+3}], v{vb} offset:{o+1024}", tag=f"r{n}")
    for db in range(4): I(f"v_add_u32 v{vT+8+db}, 0x10000, v{vQ+db}")
    mark(k, diag, 0)
    for u in range(4): wdma_one(0, u)
    for s in range(0, 4): xload(s)
    for u in range(4): wdma_one(1, u)
    for s in range(4, 8): xload(s)
    for g in (2, 3):
        for u in range(4): wdma_one(g, u)
    gapq = []
    for s in range(8, 16): gapq.append(lambda s=s: xload(s))
    for g in range(4, 8):
        for u in range(4): gapq.append(lambda g=g, u=u: wdma_one(g, u))
    k.wait_vm("w0", expect=4)
    I("s_barrier")
    mark(k, diag, 1)
    wread(0)
    for n in range(40):
        g, s = n >> 2, n & 3
        if s == 2:
            if g + 1 < 10: k.wait_vm(f"w{g+1}", expect=4)
            I("s_barrier")
            if g >= 1:
                q = g - 1 + 8
                if q < 10:
                    for u in range(4): gapq.append(lambda q=q, u=u: wdma_one(q, u))
                elif g >= 7:
                    gapq += kv_closures(g - 7)
        if n + 1 < 40: wread(n + 1)
        k.wait_vm(f"x{n}", expect=2)
        k.wait_lg(f"r{n}")
        F = F0 + (n % 2)*16
        for db in range(4):
            for T in range(2):
                d = QACC + (T*4 + db)*16
                a = XR + ((2*n + T) % 32)*4
                c = "0" if n == 0 else f"v[{d}:{d+15}]"
                I(f"v_mfma_f32_32x32x16_bf16 v[{d}:{d+15}], a[{F+4*db}:{F+4*db+3}], a[{a}:{a+3}], {c}")
                if gapq: gapq.pop(0)()
        if n + 16 < 40: gapq.append(lambda s=n+16: xload(s))
    while gapq: gapq.pop(0)()
    mark(k, diag, 2)
    I("s_barrier")
    lateq = []
    for blk in range(3, 8): lateq += kv_closures(blk)
    att_part(k, diag, store_flags, 10, lateq, sQblkA, sQblkB, 1, "Lk2_end")
    finish_k2(k)
    return k, 256, 256, 131072
```

```python
from common import *
from k12 import Flat

def gen_k3b(diag=False, kidx=1, store_flags="sc1", DC=6):
    k = Kern("k3_kernel")
    fl = Flat(k); I = fl.emit
    I("s_cmp_ge_u32 s2, 256")
    I("s_cbranch_scc1 Lk3_end")
    stamp_begin(k, diag)
    I(f"s_load_dwordx2 s[14:15], s[0:1], {KA['ws']}")
    LANE = 2
    I("v_lshrrev_b32 v1, 6, v0")
    I(f"v_and_b32 v{LANE}, 63, v0")
    sW, sKS, sRT, sCT, sT, sT2, sCb, sWb, sWL, sPb = 40, 41, 42, 43, 44, 45, 46, 47, 48, 49
    I(f"v_readfirstlane_b32 s{sW}, v1")
    I(f"s_and_b32 s{sT}, s2, 7")
    I(f"s_lshr_b32 s{sKS}, s{sT}, 1")
    I(f"s_and_b32 s{sRT}, s{sT}, 1")
    I(f"s_lshl_b32 s{sRT}, s{sRT}, 3")
    I(f"s_lshr_b32 s{sT2}, s2, 3")
    I(f"s_and_b32 s{sCT}, s{sT2}, 3")
    I(f"s_lshr_b32 s{sT2}, s{sT2}, 2")
    I(f"s_add_u32 s{sRT}, s{sRT}, s{sT2}")
    I("s_waitcnt lgkmcnt(0)")
    fl.pend = []
    SCTX, SWO, SP = 16, 20, 24
    srd(k, SCTX, 14, 15, CTX_SIZE, CTX_OFF)
    srd(k, SWO, 14, 15, WOT_SIZE, WOT_OFF)
    vC, vL16, vL16h, t0 = 3, 4, 5, 6
    I(f"v_lshrrev_b32 v{t0}, 5, v{LANE}")
    I(f"v_lshlrev_b32 v{vC}, 10, v{t0}")
    I(f"v_bfe_u32 v{t0}, v{LANE}, 4, 1")
    I(f"v_lshl_add_u32 v{vC}, v{t0}, 9, v{vC}")
    I(f"v_and_b32 v{t0}, 15, v{LANE}")
    I(f"v_lshl_add_u32 v{vC}, v{t0}, 4, v{vC}")
    I(f"v_lshlrev_b32 v{vL16}, 4, v{LANE}")
    I(f"v_add_u32 v{vL16h}, 0x10000, v{vL16}")
    I(f"s_lshl_b32 s{sCb}, s{sRT}, 2")
    I(f"s_add_u32 s{sCb}, s{sCb}, s{sW}")
    I(f"s_lshl_b32 s{sCb}, s{sCb}, 5")
    I(f"s_lshl_b32 s{sT}, s{sKS}, 3")
    I(f"s_add_u32 s{sCb}, s{sCb}, s{sT}")
    I(f"s_lshl_b32 s{sCb}, s{sCb}, 13")
    I(f"s_lshl_b32 s{sWb}, s{sCT}, 7")
    I(f"s_lshl_b32 s{sT}, s{sKS}, 5")
    I(f"s_add_u32 s{sWb}, s{sWb}, s{sT}")
    I(f"s_add_u32 s{sWb}, s{sWb}, s{sW}")
    I(f"s_mul_i32 s{sWb}, s{sWb}, 10240")
    I(f"s_mul_i32 s{sWL}, s{sW}, 10240")
    def wdma(g, u):
        if u % 4 == 0:
            k.I(f"s_add_u32 m0, s{sWL}, {(g % 3)*40960 + u*1024}")
            k.I(f"s_add_u32 s{sT}, s{sWb}, {g*40960 + u*1024}")
        k.I(f"buffer_load_dwordx4 v{vL16}, s[{SWO}:{SWO+3}], s{sT} offen offset:{(u % 4)*1024} lds", tag=f"W{g}")
    NC = DC + 1
    def cload(t):
        a = (t % NC)*8
        k.I(f"s_add_u32 s{sT2}, s{sCb}, {(t >> 2)*8192 + (t & 3)*2048}")
        k.I(f"buffer_load_dwordx4 a[{a}:{a+3}], v{vC}, s[{SCTX}:{SCTX+3}], s{sT2} offen", tag=f"c{t}")
        k.I(f"buffer_load_dwordx4 a[{a+4}:{a+7}], v{vC}, s[{SCTX}:{SCTX+3}], s{sT2} offen offset:256", tag=f"c{t}")
    for u in range(10): wdma(0, u)
    for t in range(2): cload(t)
    for u in range(10): wdma(1, u)
    for t in range(2, DC): cload(t)
    srd(k, SP, 14, 15, PART_SIZE, PART_OFF)
    I(f"s_lshl_b32 s{sPb}, s{sKS}, 7")
    I(f"s_lshl_b32 s{sT}, s{sRT}, 3")
    I(f"s_add_u32 s{sPb}, s{sPb}, s{sT}")
    I(f"s_lshl_b32 s{sT}, s{sW}, 1")
    I(f"s_add_u32 s{sPb}, s{sPb}, s{sT}")
    I(f"s_mul_i32 s{sPb}, s{sPb}, 20")
    I(f"s_mul_i32 s{sT}, s{sCT}, 5")
    I(f"s_add_u32 s{sPb}, s{sPb}, s{sT}")
    I(f"s_lshl_b32 s{sPb}, s{sPb}, 10")
    ACC, WF = 16, 96
    def wreads(t):
        g, s = t >> 2, t & 3
        out = []
        for nt in range(10):
            off = (g % 3)*40960 + s*10240 + nt*1024
            vb, off = (vL16, off) if off < 65536 else (vL16h, off - 65536)
            r = WF + (t & 1)*40 + nt*4
            out.append(f"ds_read_b128 v[{r}:{r+3}], v{vb} offset:{off}")
        return out
    mark(k, diag, 0)
    k.wait_vm("W0", expect=10)
    I("s_barrier")
    for x in wreads(0): I(x)
    memq = [lambda u=u: wdma(2, u) for u in range(10)]
    for t in range(32):
        g, s = t >> 2, t & 3
        if s == 3 and g < 7:
            I("s_waitcnt lgkmcnt(0)")
            k.wait_vm(f"W{g+1}", expect=10)
            I("s_barrier")
            if g + 3 < 8: memq += [lambda u=u, g=g: wdma(g + 3, u) for u in range(10)]
        if t + DC < 32: memq.insert(0, lambda t=t: cload(t + DC))
        reads = wreads(t + 1) if t + 1 < 32 else []
        k.wait_vm(f"c{t}", expect=2)
        gi = 0
        for rs in range(2):
            for nt in range(10):
                d = ACC + (rs*10 + nt)*4
                a = (t % NC)*8 + rs*4
                w = WF + (t & 1)*40 + nt*4
                c = "0" if t == 0 else f"v[{d}:{d+3}]"
                I(f"v_mfma_f32_16x16x32_bf16 v[{d}:{d+3}], v[{w}:{w+3}], a[{a}:{a+3}], {c}")
                if reads and gi % 2 == 0 or (reads and gi >= 10): I(reads.pop(0))
                if memq and gi % 4 == 1: memq.pop(0)()
                gi += 1
        while reads: I(reads.pop(0))
        if t in (7, 15, 23): mark(k, diag, 1 + t//8)
    assert not memq
    mark(k, diag, 4)
    STG = 96
    for rs in range(2):
        for p in range(5):
            st = STG + ((rs*5 + p) % 4)*4
            for h2 in range(2):
                d = ACC + (rs*10 + 2*p + h2)*4
                I(f"v_cvt_pk_bf16_f32 v{st+2*h2}, v{d}, v{d+1}")
                I(f"v_cvt_pk_bf16_f32 v{st+2*h2+1}, v{d+2}, v{d+3}")
            I(f"s_add_u32 s{sT}, s{sPb}, {rs*20*1024 + p*1024}")
            I(f"buffer_store_dwordx4 v[{st}:{st+3}], v{vL16}, s[{SP}:{SP+3}], s{sT} offen {store_flags}")
    dump_marks(k, diag, kidx, 14, 15, 8)
    stamp_end(k, diag, kidx, 14, 15, vtmp=8)
    k.L("Lk3_end")
    I("s_endpgm")
    k.fix_hazards()
    pr = check_waits(k.items, "k3b")
    for p_ in pr[:10]: print(p_)
    return k, 176, 64, 3*40960
```

```python
from common import *
NW4 = 10

def emit_k4(k, diag, sWG, store_flags=""):
    I = k.I
    LANE = 2
    sW, sT, sT2, sEPS = 40, 41, 42, 43
    SP, SX, SWR, SOUT, SH, SRT = 16, 20, 24, 28, 32, 36
    srd(k, SP, 14, 15, PART_SIZE, PART_OFF)
    vL16, vO, vWo, t0, t1 = 3, 4, 5, 6, 7
    I(f"v_lshlrev_b32 v{vL16}, 4, v{LANE}")
    I(f"s_mul_i32 s{sT2}, s{sWG}, 20")
    I(f"s_lshl_b32 s{sT}, s{sW}, 1")
    I(f"s_add_u32 s{sT2}, s{sT2}, s{sT}")
    I(f"s_lshl_b32 s{sT2}, s{sT2}, 10")
    P = 32
    for ks in range(4):
        I(f"s_add_u32 s{sT}, s{sT2}, {ks*128*20*1024}")
        for p in range(2):
            r = P + (ks*2 + p)*4
            I(f"buffer_load_dwordx4 v[{r}:{r+3}], v{vL16}, s[{SP}:{SP+3}], s{sT} offen offset:{p*1024}", tag="part")
    srd(k, SX, 4, 5, 2048*640*2)
    srd(k, SWR, 6, 7, 1280)
    I(f"v_and_b32 v{t0}, 15, v{LANE}")
    I(f"s_lshl_b32 s{sT}, s{sWG}, 4")
    I(f"v_add_u32 v{t0}, s{sT}, v{t0}")
    vRow = 8
    I(f"v_mov_b32 v{vRow}, v{t0}")
    I(f"v_mul_u32_u24 v{vO}, 1280, v{t0}")
    I(f"v_lshrrev_b32 v{t1}, 4, v{LANE}")
    I(f"v_lshlrev_b32 v{t1}, 4, v{t1}")
    I(f"s_lshl_b32 s{sT}, s{sW}, 7")
    I(f"v_add_u32 v{vWo}, s{sT}, v{t1}")
    I(f"v_add_u32 v{vO}, v{vO}, v{vWo}")
    XV, WRV = 64, 72
    for p in range(2):
        I(f"buffer_load_dwordx4 v[{XV+4*p}:{XV+4*p+3}], v{vO}, s[{SX}:{SX+3}], 0 offen offset:{64*p}", tag="xw")
        I(f"buffer_load_dwordx4 v[{WRV+4*p}:{WRV+4*p+3}], v{vWo}, s[{SWR}:{SWR+3}], 0 offen offset:{64*p}", tag="xw")
    srd(k, SOUT, 8, 9, 2048*640*2)
    srd(k, SH, 14, 15, H_SIZE, H_OFF)
    srd(k, SRT, 14, 15, RT_SIZE, RT_OFF)
    I(f"s_mov_b32 s{sEPS}, {f32bits(1e-5)}")
    mark(k, diag, 0)
    k.wait_vm("part")
    A = 80
    ta, tb = 10, 11
    for i in range(8):
        p, q = i >> 2, i & 3
        for ks in range(4):
            r = P + (ks*2 + p)*4 + q
            if ks == 0:
                I(f"v_lshlrev_b32 v{A+2*i}, 16, v{r}")
                I(f"v_and_b32 v{A+2*i+1}, 0xffff0000, v{r}")
            else:
                I(f"v_lshlrev_b32 v{ta}, 16, v{r}")
                I(f"v_and_b32 v{tb}, 0xffff0000, v{r}")
                I(f"v_add_f32 v{A+2*i}, v{A+2*i}, v{ta}")
                I(f"v_add_f32 v{A+2*i+1}, v{A+2*i+1}, v{tb}")
    k.wait_vm("xw")
    mark(k, diag, 1)
    HP = 32
    H = 40
    for i in range(8):
        I(f"v_cvt_pk_bf16_f32 v{ta}, v{A+2*i}, v{A+2*i+1}")
        I(f"v_lshlrev_b32 v{A+2*i}, 16, v{ta}")
        I(f"v_and_b32 v{A+2*i+1}, 0xffff0000, v{ta}")
        I(f"v_lshlrev_b32 v{ta}, 16, v{XV+i}")
        I(f"v_and_b32 v{tb}, 0xffff0000, v{XV+i}")
        I(f"v_add_f32 v{A+2*i}, v{A+2*i}, v{ta}")
        I(f"v_add_f32 v{A+2*i+1}, v{A+2*i+1}, v{tb}")
        I(f"v_cvt_pk_bf16_f32 v{HP+i}, v{A+2*i}, v{A+2*i+1}")
        I(f"v_lshlrev_b32 v{H+2*i}, 16, v{HP+i}")
        I(f"v_and_b32 v{H+2*i+1}, 0xffff0000, v{HP+i}")
    for p in range(2):
        I(f"buffer_store_dwordx4 v[{HP+4*p}:{HP+4*p+3}], v{vO}, s[{SH}:{SH+3}], 0 offen offset:{64*p} {store_flags}", tag="hst")
    def quarter_sum(v):
        I(f"v_mov_b32 v{tb}, v{v}")
        I(f"v_permlane16_swap_b32 v{v}, v{tb}")
        I(f"v_add_f32 v{v}, v{v}, v{tb}")
        I(f"v_mov_b32 v{tb}, v{v}")
        I(f"v_permlane32_swap_b32 v{v}, v{tb}")
        I(f"v_add_f32 v{v}, v{v}, v{tb}")
    S, M2, MU = 12, 13, 14
    I(f"v_add_f32 v{S}, v{H}, v{H+1}")
    I(f"v_add_f32 v{M2}, v{H+2}, v{H+3}")
    for i in range(4, 16, 2):
        I(f"v_add_f32 v{S}, v{S}, v{H+i}")
        I(f"v_add_f32 v{M2}, v{M2}, v{H+i+1}")
    I(f"v_add_f32 v{S}, v{S}, v{M2}")
    quarter_sum(S)
    I(f"v_mul_f32 v{MU}, {f32bits(1.0/64)}, v{S}")
    I(f"v_sub_f32 v{ta}, v{H}, v{MU}")
    I(f"v_mul_f32 v{M2}, v{ta}, v{ta}")
    for i in range(1, 16):
        I(f"v_sub_f32 v{ta}, v{H+i}, v{MU}")
        I(f"v_fmac_f32 v{M2}, v{ta}, v{ta}")
    quarter_sum(M2)
    I(f"v_and_b32 v{t0}, 15, v{LANE}")
    I(f"v_mul_u32_u24 v{t0}, 80, v{t0}")
    I(f"s_lshl_b32 s{sT}, s{sW}, 3")
    I(f"v_add_u32 v{t1}, s{sT}, v{t0}")
    I(f"v_mov_b32 v{S}, v{MU}")
    I(f"ds_write_b64 v{t1}, v[{S}:{S+1}]")
    I("s_waitcnt lgkmcnt(0)")
    I("s_barrier")
    E = 96
    for w in range(5): I(f"ds_read_b128 v[{E+4*w}:{E+4*w+3}], v{t0} offset:{16*w}")
    I("s_waitcnt lgkmcnt(0)")
    MEAN, VAR = 24, 25
    I(f"v_add_f32 v{MEAN}, v{E}, v{E+2}")
    I(f"v_add_f32 v{VAR}, v{E+1}, v{E+3}")
    for w in range(2, 10):
        I(f"v_add_f32 v{MEAN}, v{MEAN}, v{E+2*w}")
        I(f"v_add_f32 v{VAR}, v{VAR}, v{E+2*w+1}")
    I(f"v_mul_f32 v{MEAN}, {f32bits(0.1)}, v{MEAN}")
    I(f"v_mov_b32 v{tb}, 0")
    for w in range(10):
        I(f"v_sub_f32 v{ta}, v{E+2*w}, v{MEAN}")
        I(f"v_fmac_f32 v{tb}, v{ta}, v{ta}")
    I(f"v_mov_b32 v{ta}, {f32bits(64.0)}")
    I(f"v_fmac_f32 v{VAR}, v{tb}, v{ta}")
    I(f"v_mul_f32 v{VAR}, {f32bits(1.0/640)}, v{VAR}")
    mark(k, diag, 2)
    HN = 56
    ln_finish(k, H, 16, MEAN, VAR, 26, HN, sEPS)
    R = 27
    I(f"v_mov_b32 v{R}, 0")
    O = 80
    for i in range(8):
        I(f"v_lshlrev_b32 v{ta}, 16, v{HN+i}")
        I(f"v_and_b32 v{tb}, 0xffff0000, v{HN+i}")
        I(f"v_lshlrev_b32 v28, 16, v{WRV+i}")
        I(f"v_and_b32 v29, 0xffff0000, v{WRV+i}")
        I(f"v_fmac_f32 v{R}, v{ta}, v28")
        I(f"v_fmac_f32 v{R}, v{tb}, v29")
        I(f"v_lshlrev_b32 v28, 16, v{HP+i}")
        I(f"v_and_b32 v29, 0xffff0000, v{HP+i}")
        I(f"v_add_f32 v{ta}, v{ta}, v28")
        I(f"v_add_f32 v{tb}, v{tb}, v29")
        I(f"v_cvt_pk_bf16_f32 v{O+i}, v{ta}, v{tb}")
    mark(k, diag, 3)
    for p in range(2):
        I(f"buffer_store_dwordx4 v[{O+4*p}:{O+4*p+3}], v{vO}, s[{SOUT}:{SOUT+3}], 0 offen offset:{64*p}")
    quarter_sum(R)
    I(f"v_and_b32 v{t0}, 15, v{LANE}")
    I(f"v_mul_u32_u24 v{t0}, 48, v{t0}")
    I(f"s_lshl_b32 s{sT}, s{sW}, 2")
    I(f"v_add_u32 v{t1}, s{sT}, v{t0}")
    I(f"ds_write_b32 v{t1}, v{R} offset:1536")
    I("s_waitcnt lgkmcnt(0)")
    I("s_barrier")
    for w in range(3): I(f"ds_read_b128 v[{E+4*w}:{E+4*w+3}], v{t0} offset:{1536 + 16*w}")
    I("s_waitcnt lgkmcnt(0)")
    I(f"v_add_f32 v{VAR+1}, v{E}, v{E+1}")
    for w in range(2, 10): I(f"v_add_f32 v{VAR+1}, v{VAR+1}, v{E+w}")
    bf16_round(k, VAR+1)
    I(f"v_mov_b32 v{VAR+2}, 0")
    I(f"v_lshlrev_b32 v{t0}, 4, v{vRow}")
    I(f"v_mov_b32 v{t1}, 0x100000")
    I(f"v_cmp_gt_u32 vcc, 16, v0")
    I(f"v_cndmask_b32 v{t0}, v{t1}, v{t0}, vcc")
    I(f"buffer_store_dwordx4 v[{MEAN}:{MEAN+3}], v{t0}, s[{SRT}:{SRT+3}], 0 offen {store_flags}", tag="rtst")
    mark(k, diag, 4)

def gen_k4(diag=False, kidx=2):
    k = Kern("k4_kernel")
    I = k.I
    I("s_cmp_ge_u32 s2, 128")
    I("s_cbranch_scc1 Lk4_end")
    stamp_begin(k, diag)
    I(f"s_load_dwordx2 s[4:5], s[0:1], {KA['x']}")
    I(f"s_load_dwordx2 s[6:7], s[0:1], {KA['wr']}")
    I(f"s_load_dwordx2 s[8:9], s[0:1], {KA['out']}")
    I(f"s_load_dwordx2 s[14:15], s[0:1], {KA['ws']}")
    I("v_lshrrev_b32 v1, 6, v0")
    I("v_and_b32 v2, 63, v0")
    I("v_readfirstlane_b32 s40, v1")
    I("s_waitcnt lgkmcnt(0)")
    emit_k4(k, diag, 2)
    if diag:
        I('s_min_u32 s40, s40, 3')
        dump_marks(k, diag, kidx, 14, 15, 8)
    stamp_end(k, diag, kidx, 14, 15, vtmp=8)
    k.L("Lk4_end")
    I("s_endpgm")
    k.fix_hazards()
    pr = check_waits(k.items, "k4")
    for p_ in pr[:10]: print(p_)
    return k, 120, 0, 4096, 128
```

```python
from common import *

NLN = 128
NFF = 54

def wave_allreduce(k, op, v, tmp):
    I = k.I
    for r in (8, 4, 2, 1):
        I(f"{op} v{v}, v{v}, v{v} row_ror:{r}")
    I(f"v_mov_b32 v{tmp}, v{v}")
    I(f"v_permlane16_swap_b32 v{v}, v{tmp}")
    I(f"{op} v{v}, v{v}, v{tmp}")
    I(f"v_mov_b32 v{tmp}, v{v}")
    I(f"v_permlane32_swap_b32 v{v}, v{tmp}")
    I(f"{op} v{v}, v{v}, v{tmp}")

def gen_k5(diag=False, kidx=3, rt=False):
    k = Kern("k5_kernel")
    I = k.I
    NLN_ = 0 if rt else NLN
    I(f"s_cmp_ge_u32 s2, {NLN_+NFF}")
    I("s_cbranch_scc1 Lk5_end")
    stamp_begin(k, diag)
    I(f"s_load_dwordx2 s[4:5], s[0:1], {KA['wr']}")
    I(f"s_load_dwordx4 s[8:11], s[0:1], {KA['wg']}")
    I(f"s_load_dwordx4 s[44:47], s[0:1], {KA['wd']}")
    I(f"s_load_dwordx2 s[14:15], s[0:1], {KA['ws']}")
    LANE = 2
    sW, sT, sT2, sEPS, sF = 40, 41, 42, 43, 48
    I("v_lshrrev_b32 v1, 6, v0")
    I(f"v_and_b32 v{LANE}, 63, v0")
    I(f"v_readfirstlane_b32 s{sW}, v1")
    I(f"s_mov_b32 s{sEPS}, {f32bits(1e-5)}")
    I("s_waitcnt lgkmcnt(0)")
    SH, SOUT, SACC, SWR, SWG, SWU, SWD, SYP, SSEL = 16, 20, 24, 28, 32, 36, 52, 56, 84
    srd(k, SH, 14, 15, H_SIZE, H_OFF)
    if rt: I("s_branch Lk5_ffn")
    I(f"s_cmp_ge_u32 s2, {NLN}")
    I("s_cbranch_scc1 Lk5_ffn")
    srd(k, SOUT, 46, 47, 2048*640*2)
    t0, t1, vO = 3, 4, 5
    I(f"v_lshrrev_b32 v{t0}, 4, v{LANE}")
    I(f"s_lshl_b32 s{sT}, s2, 4")
    I(f"s_lshl_b32 s{sT2}, s{sW}, 2")
    I(f"s_add_u32 s{sT}, s{sT}, s{sT2}")
    I(f"v_add_u32 v{t0}, s{sT}, v{t0}")
    I(f"v_mul_u32_u24 v{vO}, 1280, v{t0}")
    I(f"v_and_b32 v{t1}, 15, v{LANE}")
    I(f"v_lshl_add_u32 v{vO}, v{t1}, 4, v{vO}")
    HX, HN = 8, 28
    for u in range(5):
        I(f"buffer_load_dwordx4 v[{HX+4*u}:{HX+4*u+3}], v{vO}, s[{SH}:{SH+3}], 0 offen offset:{256*u}")
    I("s_waitcnt vmcnt(0)")
    ln_rows(k, HX, 5, 64, HN, sEPS)
    for i in range(20):
        I(f"v_lshlrev_b32 v50, 16, v{HX+i}")
        I(f"v_and_b32 v51, 0xffff0000, v{HX+i}")
        I(f"v_lshlrev_b32 v52, 16, v{HN+i}")
        I(f"v_and_b32 v53, 0xffff0000, v{HN+i}")
        I(f"v_add_f32 v50, v50, v52")
        I(f"v_add_f32 v51, v51, v53")
        I(f"v_cvt_pk_bf16_f32 v{HN+i}, v50, v51")
    for u in range(5):
        I(f"buffer_store_dwordx4 v[{HN+4*u}:{HN+4*u+3}], v{vO}, s[{SOUT}:{SOUT+3}], 0 offen offset:{256*u}")
    I("s_branch Lk5_fin")
    k.L("Lk5_ffn")
    I(f"s_sub_u32 s{sF}, s2, {NLN_}")
    if rt: srd(k, SACC, 14, 15, RT_SIZE, RT_OFF)
    else: srd(k, SACC, 14, 15, ACC_SIZE, ACC_OFF)
    srd(k, SWR, 4, 5, 1280)
    t0, t1, t2, t3 = 3, 4, 5, 6
    ST = 64
    if rt:
        I(f"v_lshlrev_b32 v{t0}, 4, v0")
        for e in range(8):
            I(f"s_mov_b32 s{sT}, {e*4096}")
            I(f"buffer_load_dword v{ST+e}, v{t0}, s[{SACC}:{SACC+3}], s{sT} offen offset:8", tag="wr")
    else:
        I(f"v_lshlrev_b32 v{t0}, 2, v0")
        for e in range(8):
            for j in range(3):
                I(f"s_mov_b32 s{sT}, {j*8192 + e*1024}")
                I(f"buffer_load_dword v{ST+3*e+j}, v{t0}, s[{SACC}:{SACC+3}], s{sT} offen", tag="st")
        WRX = 90
        I(f"v_mul_u32_u24 v{t1}, 20, v{LANE}")
        for j in range(5):
            I(f"buffer_load_dword v{WRX+j}, v{t1}, s[{SWR}:{SWR+3}], 0 offen offset:{4*j}", tag="wr")
    srd(k, SWG, 8, 9, 640*1728*2)
    srd(k, SWU, 10, 11, 640*1728*2)
    srd(k, SWD, 44, 45, 1728*640*2)
    srd(k, SYP, 14, 15, YP_SIZE, YP_OFF)
    srd(k, SSEL, 14, 15, SEL_SIZE, SEL_OFF)
    LG, LU, LD, LT, LHN, LKEY, LPART, LA_ = 0, 40960, 81920, 122880, 155648, 158208, 158272, 160320
    vWD, vL16 = 7, 8
    I(f"v_lshrrev_b32 v{t2}, 2, v{LANE}")
    I(f"v_mul_u32_u24 v{vWD}, 3456, v{t2}")
    I(f"v_and_b32 v{t2}, 3, v{LANE}")
    I(f"v_lshl_add_u32 v{vWD}, v{t2}, 4, v{vWD}")
    I(f"v_lshlrev_b32 v{vL16}, 4, v{LANE}")
    I(f"s_mul_i32 s{sT}, s{sW}, {160*3456}")
    I(f"s_lshl_b32 s{sT2}, s{sF}, 6")
    I(f"s_add_u32 s49, s{sT}, s{sT2}")
    I(f"s_mul_i32 s50, s{sW}, {160*64}")
    I(f"s_mul_i32 s51, s{sF}, {32*1280}")
    I(f"s_mul_i32 s{sT}, s{sW}, 10240")
    I(f"s_add_u32 s51, s51, s{sT}")
    I(f"s_mov_b32 s80, s{sT}")
    dq = []
    for (S, LB) in ((SWG, LG), (SWU, LU)):
        for u in range(10):
            dq.append([f"s_add_u32 m0, s50, {LB + u*1024}", f"s_add_u32 s81, s49, {u*16*3456}",
                       f"buffer_load_dwordx4 v{vWD}, s[{S}:{S+3}], s81 offen lds"])
    for u in range(10):
        dq.append([f"s_add_u32 m0, s80, {LD + u*1024}", f"s_add_u32 s81, s51, {u*1024}",
                   f"buffer_load_dwordx4 v{vL16}, s[{SWD}:{SWD+3}], s81 offen lds"])
    def pop_dma(n=1):
        for _ in range(n):
            if dq:
                for t_ in dq.pop(0): I(t_)
    mark(k, diag, 0)
    k.wait_vm("wr")
    mark(k, diag, 1)
    K1, K2, RR = 96, 97, 100
    if rt:
        I(f"v_mov_b32 v{K1}, 0")
        I(f"v_mov_b32 v{K2}, 0")
        for e in range(8):
            I(f"v_ashrrev_i32 v{t1}, 31, v{ST+e}")
            I(f"v_or_b32 v{t1}, 0x80000000, v{t1}")
            I(f"v_xor_b32 v{RR}, v{ST+e}, v{t1}")
            I(f"v_and_b32 v{RR}, 0xfffff800, v{RR}")
            I(f"v_sub_u32 v{t1}, {2047 - 256*e}, v0")
            I(f"v_or_b32 v{RR}, v{RR}, v{t1}")
            I(f"v_med3_u32 v{K2}, v{K1}, v{K2}, v{RR}")
            I(f"v_max_u32 v{K1}, v{K1}, v{RR}")
            pop_dma(1)
    else:
        WS = 95
        I(f"v_mov_b32 v{WS}, 0")
        for j in range(5):
            I(f"v_lshlrev_b32 v{t1}, 16, v{WRX+j}")
            I(f"v_and_b32 v{t3}, 0xffff0000, v{WRX+j}")
            I(f"v_add_f32 v{WS}, v{WS}, v{t1}")
            I(f"v_add_f32 v{WS}, v{WS}, v{t3}")
        pop_dma(2)
        wave_allreduce(k, "v_add_f32", WS, t1)
        K1, K2, RR = 96, 97, 100
        MEAN, VAR, RB = 101, 102, 103
        I(f"v_mov_b32 v{K1}, 0")
        I(f"v_mov_b32 v{K2}, 0")
        I(f"v_lshlrev_b32 v{t2}, 4, v0")
        I(f"v_add_u32 v{t2}, {LT}, v{t2}")
        for e in range(8):
            s1, s2, s3 = ST+3*e, ST+3*e+1, ST+3*e+2
            I(f"v_mul_f32 v{MEAN}, {f32bits(1.0/640)}, v{s1}")
            I(f"v_mul_f32 v{VAR}, {f32bits(1.0/640)}, v{s2}")
            I(f"v_fma_f32 v{VAR}, -v{MEAN}, v{MEAN}, v{VAR}")
            I(f"v_max_f32 v{VAR}, 0, v{VAR}")
            bf16_round(k, MEAN); bf16_round(k, VAR)
            I(f"v_add_f32 v{VAR}, s{sEPS}, v{VAR}")
            pop_dma(1)
            bf16_round(k, VAR)
            I(f"v_sqrt_f32 v{VAR}, v{VAR}")
            bf16_round(k, VAR)
            I(f"v_rcp_f32 v{VAR}, v{VAR}")
            I(f"v_fma_f32 v{RB}, -v{MEAN}, v{WS}, v{s3}")
            I(f"v_mul_f32 v{RB}, v{RB}, v{VAR}")
            pop_dma(1)
            I(f"v_ashrrev_i32 v{t1}, 31, v{RB}")
            I(f"v_or_b32 v{t1}, 0x80000000, v{t1}")
            I(f"v_xor_b32 v{RR}, v{RB}, v{t1}")
            I(f"v_and_b32 v{RR}, 0xfffff800, v{RR}")
            I(f"v_sub_u32 v{t1}, {2047 - 256*e}, v0")
            I(f"v_or_b32 v{RR}, v{RR}, v{t1}")
            I(f"ds_write_b128 v{t2}, v[{RR}:{RR+3}] offset:{e*4096}")
            I(f"v_med3_u32 v{K2}, v{K1}, v{K2}, v{RR}")
            I(f"v_max_u32 v{K1}, v{K1}, v{RR}")
            pop_dma(1)
    mark(k, diag, 2)
    T1, T2 = 10, 11
    I(f"v_mov_b32 v{T1}, v{K1}")
    wave_allreduce(k, "v_max_u32", T1, t1)
    pop_dma(2)
    I(f"v_cmp_eq_u32 vcc, v{T1}, v{K1}")
    I(f"v_cndmask_b32 v{T2}, v{K1}, v{K2}, vcc")
    wave_allreduce(k, "v_max_u32", T2, t1)
    pop_dma(2)
    I(f"s_lshl_b32 s{sT}, s{sW}, 3")
    I(f"v_mov_b32 v{t1}, s{sT}")
    I(f"v_add_u32 v{t1}, {LKEY}, v{t1}")
    I(f"ds_write_b64 v{t1}, v[{T1}:{T1+1}]")
    I("s_waitcnt lgkmcnt(0)")
    I("s_barrier")
    KK = 12
    I(f"v_mov_b32 v{t1}, {LKEY}")
    I(f"ds_read_b128 v[{KK}:{KK+3}], v{t1}")
    I(f"ds_read_b128 v[{KK+4}:{KK+7}], v{t1} offset:16")
    I("s_waitcnt lgkmcnt(0)")
    I(f"v_mov_b32 v{K1}, 0")
    I(f"v_mov_b32 v{K2}, 0")
    for j in range(8):
        I(f"v_med3_u32 v{K2}, v{K1}, v{K2}, v{KK+j}")
        I(f"v_max_u32 v{K1}, v{K1}, v{KK+j}")
    for kx in (K1, K2):
        I(f"v_and_b32 v{kx}, 0x7ff, v{kx}")
        I(f"v_sub_u32 v{kx}, 2047, v{kx}")
    mark(k, diag, 3)
    I(f"v_bfe_u32 v{t1}, v{LANE}, 4, 1")
    I(f"v_cmp_eq_u32 vcc, 0, v{t1}")
    I(f"v_cndmask_b32 v{t3}, v{K2}, v{K1}, vcc")
    vRowSel = 11
    I(f"v_mov_b32 v{vRowSel}, v{t3}")
    I(f"v_lshlrev_b32 v{t2}, 4, v{t3}")
    REC = 56
    if rt:
        I(f"buffer_load_dwordx4 v[{REC}:{REC+3}], v{t2}, s[{SACC}:{SACC+3}], 0 offen", tag="hx")
    else:
        I(f"v_add_u32 v{t2}, {LT}, v{t2}")
        I(f"ds_read_b128 v[{REC}:{REC+3}], v{t2}")
    I(f"v_mul_u32_u24 v{t3}, 1280, v{t3}")
    I(f"v_and_b32 v{t0}, 15, v{LANE}")
    I(f"v_lshl_add_u32 v{t3}, v{t0}, 4, v{t3}")
    HX, HN = 12, 32
    for u in range(5):
        I(f"buffer_load_dwordx4 v[{HX+4*u}:{HX+4*u+3}], v{t3}, s[{SH}:{SH+3}], 0 offen offset:{256*u}", tag="hx")
    pop_dma(99)
    k.wait_vm("hx")
    I("s_waitcnt lgkmcnt(0)")
    mark(k, diag, 4)
    X = 164
    if rt:
        I(f"v_mov_b32 v{REC+3}, v{REC+2}")
        I(f"v_mov_b32 v{REC+2}, v{REC+1}")
        I(f"v_mov_b32 v{REC+1}, v{REC}")
    for i in range(20):
        I(f"v_lshlrev_b32 v{X}, 16, v{HX+i}")
        I(f"v_and_b32 v{X+1}, 0xffff0000, v{HX+i}")
        I(f"v_sub_f32 v{X}, v{X}, v{REC+1}")
        I(f"v_sub_f32 v{X+1}, v{X+1}, v{REC+1}")
        I(f"v_cvt_pk_bf16_f32 v{X+2}, v{X}, v{X+1}")
        I(f"v_lshlrev_b32 v{X}, 16, v{X+2}")
        I(f"v_and_b32 v{X+1}, 0xffff0000, v{X+2}")
        I(f"v_mul_f32 v{X}, v{X}, v{REC+2}")
        I(f"v_mul_f32 v{X+1}, v{X+1}, v{REC+2}")
        I(f"v_cvt_pk_bf16_f32 v{HN+i}, v{X}, v{X+1}")
    bf16_round(k, REC+3)
    I(f"v_mul_f32 v53, {f32bits(-1.4426950408889634)}, v{REC+3}")
    I(f"v_exp_f32 v53, v53")
    I(f"v_add_f32 v53, 1.0, v53")
    I(f"v_rcp_f32 v53, v53")
    bf16_round(k, 53)
    mark(k, diag, 5)
    I(f"v_bfe_u32 v{t1}, v{LANE}, 4, 1")
    I(f"v_mul_u32_u24 v{t1}, 1280, v{t1}")
    I(f"v_lshl_add_u32 v{t1}, v{t0}, 4, v{t1}")
    I(f"v_add_u32 v{t2}, {LHN}, v{t1}")
    I(f"s_cmp_lg_u32 s{sW}, 0")
    I("s_cbranch_scc1 Lk5_w0done")
    for u in range(5):
        I(f"ds_write_b128 v{t2}, v[{HN+4*u}:{HN+4*u+3}] offset:{256*u}")
    I(f"s_cmp_lg_u32 s{sF}, 0")
    I("s_cbranch_scc1 Lk5_w0done")
    I("s_mov_b32 exec_hi, 0")
    for u in range(5):
        I(f"buffer_store_dwordx4 v[{HN+4*u}:{HN+4*u+3}], v{t1}, s[{SSEL}:{SSEL+3}], 0 offen offset:{64 + 256*u}")
    I(f"v_bfe_u32 v{t2}, v{LANE}, 4, 1")
    I(f"v_lshlrev_b32 v{t2}, 3, v{t2}")
    I(f"v_mov_b32 v54, v{vRowSel}")
    I(f"v_mov_b32 v55, v53")
    I(f"buffer_store_dwordx2 v[54:55], v{t2}, s[{SSEL}:{SSEL+3}], 0 offen")
    I("s_mov_b64 exec, -1")
    k.L("Lk5_w0done")
    I("s_waitcnt vmcnt(0) lgkmcnt(0)")
    I("s_barrier")
    mark(k, diag, 6)
    I(f"v_and_b32 v{t0}, 1, v{LANE}")
    I(f"v_mul_u32_u24 v{t0}, 1280, v{t0}")
    I(f"v_lshrrev_b32 v{t1}, 4, v{LANE}")
    I(f"v_lshl_add_u32 v{t0}, v{t1}, 4, v{t0}")
    I(f"s_mul_i32 s{sT}, s{sW}, 320")
    I(f"s_add_u32 s{sT}, s{sT}, {LHN}")
    I(f"v_add_u32 v{t0}, s{sT}, v{t0}")
    I(f"v_bfe_u32 v{t2}, v{LANE}, 2, 2")
    I(f"v_lshl_add_u32 v{t2}, v{t1}, 3, v{t2}")
    I(f"v_lshlrev_b32 v{t2}, 6, v{t2}")
    I(f"v_and_b32 v{t3}, 3, v{LANE}")
    I(f"v_lshl_add_u32 v{t2}, v{t3}, 3, v{t2}")
    I(f"v_add_u32 v{t2}, s50, v{t2}")
    AF, BF = 12, 100
    for s_ in range(5):
        I(f"ds_read_b128 v[{AF+4*s_}:{AF+4*s_+3}], v{t0} offset:{64*s_}")
    for mi, LB in enumerate((LG, LU)):
        for ft in range(2):
            for s_ in range(5):
                r = BF + ((mi*2 + ft)*5 + s_)*4
                I(f"ds_read_b64_tr_b16 v[{r}:{r+1}], v{t2} offset:{LB + s_*2048 + ft*32}")
                I(f"ds_read_b64_tr_b16 v[{r+2}:{r+3}], v{t2} offset:{LB + s_*2048 + ft*32 + 256}")
    I("s_waitcnt lgkmcnt(0)")
    D = 72
    for s_ in range(5):
        for q in range(4):
            r = BF + (q*5 + s_)*4
            I(f"v_mfma_f32_16x16x32_bf16 v[{D+4*q}:{D+4*q+3}], v[{AF+4*s_}:{AF+4*s_+3}], v[{r}:{r+3}], " + ("0" if s_ == 0 else f"v[{D+4*q}:{D+4*q+3}]"))
    I(f"v_and_b32 v{t0}, 15, v{LANE}")
    I(f"v_lshlrev_b32 v{t0}, 2, v{t0}")
    I(f"s_lshl_b32 s{sT}, s{sW}, 9")
    I(f"s_add_u32 s{sT}, s{sT}, {LPART}")
    I(f"v_add_u32 v{t0}, s{sT}, v{t0}")
    I("s_mov_b32 exec_lo, 0xffff")
    I("s_mov_b32 exec_hi, 0")
    for mi in range(2):
        for ft in range(2):
            for tok in range(2):
                I(f"ds_write_b32 v{t0}, v{D+4*(mi*2+ft)+tok} offset:{(mi*2+tok)*128 + ft*64}")
    I("s_mov_b64 exec, -1")
    I("s_waitcnt lgkmcnt(0)")
    I("s_barrier")
    I(f"v_lshlrev_b32 v{t0}, 2, v{LANE}")
    I(f"v_add_u32 v{t0}, {LPART}, v{t0}")
    for w in range(4):
        I(f"ds_read_b32 v{12+w}, v{t0} offset:{w*512}")
        I(f"ds_read_b32 v{16+w}, v{t0} offset:{w*512 + 256}")
    I("s_waitcnt lgkmcnt(0)")
    for b in (12, 16):
        I(f"v_add_f32 v{b}, v{b}, v{b+1}")
        I(f"v_add_f32 v{b+2}, v{b+2}, v{b+3}")
        I(f"v_add_f32 v{b}, v{b}, v{b+2}")
        bf16_round(k, b)
    I(f"v_mul_f32 v13, {f32bits(-1.4426950408889634)}, v12")
    I(f"v_exp_f32 v13, v13")
    I(f"v_add_f32 v13, 1.0, v13")
    I(f"v_rcp_f32 v13, v13")
    I(f"v_mul_f32 v12, v12, v13")
    bf16_round(k, 12)
    I(f"v_mul_f32 v12, v12, v16")
    I(f"v_cvt_pk_bf16_f32 v12, v12, v12")
    I(f"v_lshlrev_b32 v{t1}, 1, v{LANE}")
    I(f"v_add_u32 v{t1}, {LA_}, v{t1}")
    I(f"ds_write_b16 v{t1}, v12")
    I("s_waitcnt lgkmcnt(0)")
    mark(k, diag, 7)
    I(f"v_and_b32 v{t0}, 1, v{LANE}")
    I(f"v_lshlrev_b32 v{t0}, 6, v{t0}")
    I(f"v_lshrrev_b32 v{t1}, 4, v{LANE}")
    I(f"v_lshl_add_u32 v{t0}, v{t1}, 4, v{t0}")
    I(f"v_add_u32 v{t0}, {LA_}, v{t0}")
    I(f"ds_read_b128 v[12:15], v{t0}")
    I(f"v_bfe_u32 v{t2}, v{LANE}, 2, 2")
    I(f"v_lshl_add_u32 v{t2}, v{t1}, 3, v{t2}")
    I(f"v_mul_u32_u24 v{t2}, 1280, v{t2}")
    I(f"v_and_b32 v{t3}, 3, v{LANE}")
    I(f"v_lshl_add_u32 v{t2}, v{t3}, 3, v{t2}")
    I(f"s_mul_i32 s{sT}, s{sW}, 320")
    I(f"s_add_u32 s{sT}, s{sT}, {LD}")
    I(f"v_add_u32 v{t2}, s{sT}, v{t2}")
    for nt in range(10):
        r = 100 + 4*nt
        I(f"ds_read_b64_tr_b16 v[{r}:{r+1}], v{t2} offset:{nt*32}")
        I(f"ds_read_b64_tr_b16 v[{r+2}:{r+3}], v{t2} offset:{nt*32 + 4*1280}")
    I("s_waitcnt lgkmcnt(0)")
    for nt in range(10):
        I(f"v_mfma_f32_16x16x32_bf16 v[{140+4*nt}:{143+4*nt}], v[12:15], v[{100+4*nt}:{103+4*nt}], 0")
    I(f"v_and_b32 v{t0}, 15, v{LANE}")
    I(f"v_lshlrev_b32 v{t0}, 2, v{t0}")
    I(f"s_mul_i32 s{sT}, s{sF}, 5120")
    I(f"s_mul_i32 s{sT2}, s{sW}, 640")
    I(f"s_add_u32 s{sT}, s{sT}, s{sT2}")
    I("s_mov_b32 exec_lo, 0xffff")
    I("s_mov_b32 exec_hi, 0")
    for nt in range(10):
        I(f"buffer_store_dword v{140+4*nt}, v{t0}, s[{SYP}:{SYP+3}], s{sT} offen offset:{nt*64}")
        I(f"buffer_store_dword v{141+4*nt}, v{t0}, s[{SYP}:{SYP+3}], s{sT} offen offset:{2560 + nt*64}")
    I("s_mov_b64 exec, -1")
    mark(k, diag, 8)
    dump_marks(k, diag, kidx, 14, 15, 4)
    k.L("Lk5_fin")
    stamp_end(k, diag, kidx, 14, 15, vtmp=4)
    k.L("Lk5_end")
    I("s_endpgm")
    k.fix_hazards()
    return k, 216, 0, 160448, NLN_ + NFF

def gen_k6(diag=False, kidx=4):
    k = Kern("k6_kernel")
    I = k.I
    I("s_cmp_ge_u32 s2, 20")
    I("s_cbranch_scc1 Lk6_end")
    stamp_begin(k, diag)
    I(f"s_load_dwordx2 s[4:5], s[0:1], {KA['out']}")
    I(f"s_load_dwordx2 s[14:15], s[0:1], {KA['ws']}")
    LANE = 2
    sW, sT, sTok, sC = 40, 41, 42, 43
    I("v_lshrrev_b32 v1, 6, v0")
    I(f"v_and_b32 v{LANE}, 63, v0")
    I(f"v_readfirstlane_b32 s{sW}, v1")
    I(f"s_cmp_ge_u32 s2, 10")
    I(f"s_cselect_b32 s{sTok}, 1, 0")
    I(f"s_mul_i32 s{sT}, s{sTok}, 10")
    I(f"s_sub_u32 s{sC}, s2, s{sT}")
    I("s_waitcnt lgkmcnt(0)")
    SOUT, SYP, SSEL, SH = 16, 20, 24, 28
    srd(k, SOUT, 4, 5, 2048*640*2)
    srd(k, SYP, 14, 15, YP_SIZE, YP_OFF)
    srd(k, SSEL, 14, 15, SEL_SIZE, SEL_OFF)
    srd(k, SH, 14, 15, H_SIZE, H_OFF)
    I(f"s_lshl_b32 s{sT}, s{sC}, 6")
    I(f"v_add_u32 v3, s{sT}, v{LANE}")
    I(f"v_lshlrev_b32 v4, 2, v3")
    I(f"s_mul_i32 s44, s{sW}, {14*5120}")
    I(f"s_mul_i32 s{sT}, s{sTok}, 2560")
    I(f"s_add_u32 s44, s44, s{sT}")
    for j in range(14):
        I(f"s_add_u32 s{sT}, s44, {j*5120}")
        I(f"buffer_load_dword v{16+j}, v4, s[{SYP}:{SYP+3}], s{sT} offen")
    I(f"s_lshl_b32 s{sT}, s{sTok}, 3")
    I(f"v_mov_b32 v5, s{sT}")
    I(f"buffer_load_dwordx2 v[6:7], v5, s[{SSEL}:{SSEL+3}], 0 offen")
    I(f"s_mul_i32 s{sT}, s{sTok}, 1280")
    I(f"v_lshlrev_b32 v8, 1, v3")
    I(f"buffer_load_ushort v9, v8, s[{SSEL}:{SSEL+3}], s{sT} offen offset:64")
    I("s_waitcnt vmcnt(0)")
    I(f"v_mul_u32_u24 v10, 1280, v6")
    I(f"v_add_u32 v10, v10, v8")
    I(f"buffer_load_ushort v11, v10, s[{SH}:{SH+3}], 0 offen")
    for j in range(1, 14): I(f"v_add_f32 v16, v16, v{16+j}")
    I(f"v_lshlrev_b32 v12, 2, v0")
    I(f"ds_write_b32 v12, v16")
    I("s_waitcnt lgkmcnt(0)")
    I("s_barrier")
    I(f"s_cmp_lg_u32 s{sW}, 0")
    I("s_cbranch_scc1 Lk6_fin")
    I(f"v_lshlrev_b32 v12, 2, v{LANE}")
    I("ds_read_b32 v16, v12")
    I("ds_read_b32 v17, v12 offset:256")
    I("ds_read_b32 v18, v12 offset:512")
    I("ds_read_b32 v19, v12 offset:768")
    I("s_waitcnt lgkmcnt(0) vmcnt(0)")
    I("v_add_f32 v16, v16, v17")
    I("v_add_f32 v18, v18, v19")
    I("v_add_f32 v16, v16, v18")
    bf16_round(k, 16)
    I("v_mul_f32 v16, v16, v7")
    bf16_round(k, 16)
    I("v_lshlrev_b32 v9, 16, v9")
    I("v_add_f32 v16, v16, v9")
    bf16_round(k, 16)
    I("v_lshlrev_b32 v11, 16, v11")
    I("v_add_f32 v16, v16, v11")
    I("v_cvt_pk_bf16_f32 v16, v16, v16")
    I(f"buffer_store_short v16, v10, s[{SOUT}:{SOUT+3}], 0 offen")
    k.L("Lk6_fin")
    stamp_end(k, diag, kidx, 14, 15, vtmp=20)
    k.L("Lk6_end")
    I("s_endpgm")
    k.fix_hazards()
    return k, 48, 0, 1024, 20
```

```python
import sys, os
sys.path.insert(0, os.path.dirname(__file__))
from common import *
NAME = "sequential_preLN__compressed_kv_cla__moe_arch_mod__prompt"
HEADER = """; Kernarg layout (112 bytes, ptrs only): x, c_kv, w_q, w_uk, w_uv, w_o, B_x, w_r, w_gate, w_up, w_down, out, debug, ws
"""
def build(kernels, path):
    out = [HEADER]
    for (k, v, a, lds, grid, block) in kernels:
        out.append(f"; @launch kernel={k.name} grid=({grid},1,1) block=({block},1,1) lds={lds}\n")
    out.append('.amdgcn_target "amdgcn-amd-amdhsa--gfx950"\n.text\n')
    descs = []
    for (k, v, a, lds, grid, block) in kernels:
        body, desc = kernel_text(k, v, a)
        out.append(body); descs.append(desc)
    out.append('.section .rodata,"a"\n')
    for d in descs: out.append(".p2align 6\n" + d)
    open(path, "w").write("".join(out))

def all_kernels(diag=False, upto=99, opts={}):
    ks = []
    import k2 as _k2
    _k2.SPLITK = bool(opts.get("fused", True) and opts.get("splitk", True))
    if opts.get("fused", True):
        from k12 import gen_k12
        k, v, a, lds = gen_k12(diag, **opts.get("k12", {})); ks.append((k, v, a, lds, 256, 256))
        if opts.get("splitk", True):
            from k3b import gen_k3b
            from k4 import gen_k4
            from k5 import gen_k5, gen_k6
            k, v, a, lds = gen_k3b(diag, kidx=1, **opts.get("k3", {})); ks.append((k, v, a, lds, 256, 256))
            k, v, a, lds, grid = gen_k4(diag, kidx=2); ks.append((k, v, a, lds, grid, 640))
            k, v, a, lds, grid = gen_k5(diag, kidx=3, rt=True); ks.append((k, v, a, lds, grid, 256))
            k, v, a, lds, grid = gen_k6(diag, kidx=4); ks.append((k, v, a, lds, grid, 256))
            return ks
        if upto >= 3:
            from k3 import gen_k3
            k, v, a, lds = gen_k3(diag, kidx=1, **opts.get("k3", {})); ks.append((k, v, a, lds, 256, 256))
        if upto >= 4:
            from k5 import gen_k5, gen_k6
            k, v, a, lds, grid = gen_k5(diag, kidx=2, **opts.get("k5", {})); ks.append((k, v, a, lds, grid, 256))
            k, v, a, lds, grid = gen_k6(diag, kidx=3, **opts.get("k6", {})); ks.append((k, v, a, lds, grid, 256))
        return ks
    from k1 import gen_k1
    k, v, a, lds = gen_k1(diag, **opts.get("k1", {})); ks.append((k, v, a, lds, 256, 256))
    if upto >= 2:
        from k2 import gen_k2
        k, v, a, lds = gen_k2(diag, **opts.get("k2", {})); ks.append((k, v, a, lds, 256, 256))
    if upto >= 3:
        from k3 import gen_k3
        k, v, a, lds = gen_k3(diag, **opts.get("k3", {})); ks.append((k, v, a, lds, 256, 256))
    if upto >= 4:
        from k5 import gen_k5, gen_k6
        k, v, a, lds, grid = gen_k5(diag, **opts.get("k5", {})); ks.append((k, v, a, lds, grid, 256))
        k, v, a, lds, grid = gen_k6(diag, **opts.get("k6", {})); ks.append((k, v, a, lds, grid, 256))
    return ks

if __name__ == "__main__":
    upto = int(sys.argv[1]) if len(sys.argv) > 1 else 99
    diag = len(sys.argv) > 2 and sys.argv[2] == "diag"
    path = sys.argv[3] if len(sys.argv) > 3 else f"cdna_kernels/{NAME}.s"
    import json
    opts = json.loads(os.environ.get("OPTS", "{}"))
    build(all_kernels(diag, upto, opts), path)
    print("wrote", path, os.path.getsize(path))
```

```python
from common import *

OA, OB, QA, QB, F0, F1 = 0, 64, 128, 160, 192, 224
S0, S1, P0, P1, NMA, NMB = 64, 80, 96, 104, 112, 128
LANE, vL16, vWQ, vNINF = 2, 3, 4, 5
vQ = 6
vA0, vA1, vA2 = 10, 11, 12
vTH0, vTH1 = 13, 14
vTHA, vTHB = 22, 23
LA0, LA1, LB0, LB1, LC0, LC1 = 16, 17, 18, 19, 20, 21
vT = 24
SXN, SWQ, SKV, SCTX = 16, 20, 24, 28
sW, sH, sI = 40, 41, 42
sT, sT2, sB0, sDoff, sDslot, sDlim, sOOB, sCnt, sWL, sQA, sQB, sFlag, sTHR = 43, 44, 45, 46, 47, 48, 49, 50, 51, 52, 53, 54, 55
MSK = 90
KVR = [8*(r >> 2) + (r & 3) for r in range(16)]
COST = {"exp": 8}

from sched import Item, schedule, insert_lgkm_waits

def exp_group(S, regs, L, masked=False, th=None):
    out = []
    for i in range(0, len(regs), 2):
        pair = regs[i:i+2]
        for r in pair: out.append((f"v_exp_f32 v{S+r}, v{S+r}", 8))
        for j, r in enumerate(pair): out.append((f"v_add_f32 v{L[j]}, v{L[j]}, v{S+r}", 4))
    return out

def mask_group(S, th):
    out = []
    for i in range(0, 16, 4):
        for j in range(4):
            out.append((f"v_cmp_le_i32 s[{MSK+2*j}:{MSK+2*j+1}], {KVR[i+j]}, v{th}", 4))
        for j in range(4):
            out.append((f"v_cndmask_b32 v{S+i+j}, v{vNINF}, v{S+i+j}, s[{MSK+2*j}:{MSK+2*j+1}]", 4))
    return out

def cvt_group(S, P, lo, hi):
    return [(f"v_cvt_pk_bf16_f32 v{P+j}, v{S+2*j}, v{S+2*j+1}", 4) for j in range(lo, hi)]

def qk(S, F, Q, NM):
    out = []
    for c in range(8):
        C = f"v[{NM}:{NM+15}]" if c == 0 else f"v[{S}:{S+15}]"
        out.append(f"v_mfma_f32_32x32x16_bf16 v[{S}:{S+15}], a[{F+4*c}:{F+4*c+3}], a[{Q+4*c}:{Q+4*c+3}], {C}")
    return out

def pv(O, F, P):
    out = []
    for j in range(8):
        ks, db = j >> 2, j & 3
        out.append(f"v_mfma_f32_32x32x16_bf16 a[{O+16*db}:{O+16*db+15}], a[{F+4*j}:{F+4*j+3}], v[{P+4*ks}:{P+4*ks+3}], a[{O+16*db}:{O+16*db+15}]")
    return out

def rdK(F, c, vb, off=0): return f"ds_read_b128 a[{F+4*c}:{F+4*c+3}], v{vb} offset:{off + c*1024}"
def rdV(F, j, vb, off=0):
    ks, db = j >> 2, j & 3
    return f"ds_read_b128 a[{F+4*j}:{F+4*j+3}], v{vb} offset:{off + 8192 + (db*2 + ks)*1024}"

DBG = ""
SPLITK = True
RETILE = True
CODEPF2 = False
QACC = 128
PREF = True
SPF, sPFo, vDUM = 16, 89, 60
def dma_ld(u): return f"buffer_load_dwordx4 v{vL16}, s[{SKV}:{SKV+3}], s{sDoff} offen offset:{u*1024} lds"
def dma_adv():
    return ["s_add_u32 m0, m0, 16384", "s_and_b32 m0, m0, 0x1ffff", f"s_add_u32 s{sDoff}, s{sDoff}, 16384"]

def softmax_items(S, L, regs, lo, hi, masks=None):
    E = {}; items = []
    hi0 = hi
    last_add = [None, None]
    for n, r in enumerate(regs):
        hi_r = lo + (hi0 - lo) * (n + 1) // len(regs)
        hi = max(hi_r, lo)
        e = Item(f"v_exp_f32 v{S+r}, v{S+r}", 2, lo, hi, deps=[masks.get(r) if masks else None])
        E[r] = e; items.append(e)
        a = Item(f"v_add_f32 v{L[n & 1]}, v{L[n & 1]}, v{S+r}", 1, lo, hi + 2, deps=[e], after=[last_add[n & 1]])
        last_add[n & 1] = a; items.append(a)
    return E, items

def mask_items(S, th, lo, hi):
    M = {}; items = []
    prev = [None]*4
    for i in range(16):
        j = i & 3
        c = Item(f"v_cmp_le_i32 s[{MSK+2*j}:{MSK+2*j+1}], {KVR[i]}, v{th}", 1, lo, hi, deps=[prev[j]])
        m = Item(f"v_cndmask_b32 v{S+i}, v{vNINF}, v{S+i}, s[{MSK+2*j}:{MSK+2*j+1}]", 1, lo, hi, deps=[c])
        prev[j] = m; M[i] = m; items += [c, m]
    return M, items

def cvt_items(S, P, js, E, lo, hi):
    return [Item(f"v_cvt_pk_bf16_f32 v{P+j}, v{S+2*j}, v{S+2*j+1}", 1, lo, hi, deps=[E.get(2*j), E.get(2*j+1)]) for j in js]

KREADS = [set(("a", F0 + 4*c + q) for q in range(4)) for c in range(8)]
VREADS = [set(("a", F1 + 4*c + q) for q in range(4)) for c in range(8)]
NE1A = 4

def body(k, kind, masked):
    dual_pv = kind in ("DD", "DS")
    dual_qk = kind == "DD"
    L0n = (LA0, LA1) if dual_qk else (LC0, LC1)
    L1 = (LB0, LB1)
    k.C(f"---- body {kind} masked={masked}")
    if kind == "SE":
        for j in range(8): k.I(rdV(F0, j, vA0, 16384))
        for f in exp_group(S1, list(range(NE1A, 16)), L1): k.I(f[0])
        for f in cvt_group(S1, P1, 0, 8): k.I(f[0])
        k.I("s_waitcnt lgkmcnt(8)")
        for m in pv(OB, F1, P0): k.I(m)
        k.I("s_waitcnt lgkmcnt(0)")
        for m in pv(OB, F0, P1): k.I(m)
        return
    items = []; pre = {}
    if kind == "DD":   mf = qk(S0, F0, QA, NMA) + pv(OA, F1, P0) + qk(S1, F0, QB, NMB) + pv(OB, F1, P1)
    elif kind == "DS": mf = qk(S0, F0, QB, NMB) + pv(OA, F1, P0) + qk(S1, F0, QB, NMB) + pv(OB, F1, P1)
    else:              mf = qk(S0, F0, QB, NMB) + pv(OB, F1, P0) + qk(S1, F0, QB, NMB) + pv(OB, F1, P1)
    E1b, it = softmax_items(S1, L1, list(range(NE1A, 16)), 0, 12); items += it
    items += cvt_items(S1, P1, range(0, 8), E1b, 0, 15)
    M0 = M1 = None
    if masked:
        M0, it = mask_items(S0, vTH0, 10, 22); items += it
        if kind != "DD":
            M1, it = mask_items(S1, vTH1, 26, 31); items += it
    E0, it = softmax_items(S0, L0n, list(range(16)), 10, 28, M0); items += it
    items += cvt_items(S0, P0, range(0, 4), E0, 12, 31)
    items += cvt_items(S0, P0, range(4, 8), E0, 16, 31)
    E1a, it = softmax_items(S1, L1, list(range(0, NE1A)), 26, 30, M1); items += it
    BAR = 19
    def chain(lst, after0=None):
        prev = after0
        for x in lst:
            if prev is not None: x.after.append(prev)
            items.append(x); prev = x
        return prev
    mid = []
    if kind == "DD":
        vm = 16
    elif kind == "DS":
        mid = [Item(rdK(F0, j, vA1), 1, j, j + 4, prio=3) for j in range(8)]
        vm = 12
    else:
        mid = [Item(rdK(F0, j, vA1, 16384), 1, j, j + 4, prio=3) for j in range(8)]
        mid += [Item(rdV(F1, j, vA0, 16384), 1, 8 + j, min(8 + j + 1, 16), prio=3) for j in range(8)]
        vm = 8
    chain(mid)
    pre[BAR] = [f"s_waitcnt vmcnt({vm}) lgkmcnt(0)", "s_barrier"]
    if kind == "DD":   kb, ko, vb, vo = vA1, 0, vA2, 0
    elif kind == "DS": kb, ko, vb, vo = vA2, 0, vA0, 0
    else:              kb, ko, vb, vo = vA2, 0, vA1, 0
    tailK = [Item(rdK(F0, j, kb, ko), 1, max(BAR, 16 + j), max(BAR, 16 + j) + 2, prio=3) for j in range(8)]
    tailV = [Item(rdV(F1, j, vb, vo), 1, 24 + j, 24 + j if j > 3 else 27, prio=3) for j in range(8)]
    addr_pre = []
    if kind == "DS":
        a0 = Item(f"v_add_u32 v{vA0}, 0x4000, v{vA0}", 1, 0, 15); a1 = Item(f"v_and_b32 v{vA0}, 0x1ffff, v{vA0}", 1, 0, 17, deps=[a0])
        c1 = Item(f"v_add_u32 v{vA2}, 0x4000, v{vA1}", 1, 0, 15); c2 = Item(f"v_and_b32 v{vA2}, 0x1ffff, v{vA2}", 1, 0, 17, deps=[c1])
        items += [a0, a1, c1, c2]
        for x in tailK: x.deps.append(c2)
        for x in tailV: x.deps.append(a1)
    last = chain(tailK + tailV)
    nblk = 2 if kind == "SS" else 1
    dl = []
    g0 = BAR
    for blk in range(nblk):
        for u in range(4): dl.append(Item(dma_ld(u), 1, min(g0 + blk*6 + u, 31), min(g0 + blk*6 + u + 1, 31)))
        for t in dma_adv(): dl.append(Item(t, 1, BAR, min(g0 + blk*6 + 5, 31)))
    chain(dl)
    if kind == "DD" and not masked and PREF:
        p1 = Item(f"buffer_load_dwordx4 v[{vDUM}:{vDUM+3}], v{vL16}, s[{SPF}:{SPF+3}], s{sPFo} offen", 1, 2, 12); items.append(p1)
        items.append(Item(f"s_add_u32 s{sPFo}, s{sPFo}, 1024", 1, 3, 15, after=[p1]))
    if kind == "DD":
        post = [f"v_mov_b32 v{vA0}, v{vA2}", f"v_mov_b32 v{vA2}, v{vA1}", f"v_add_u32 v{vA1}, 0x4000, v{vA1}", f"v_and_b32 v{vA1}, 0x1ffff, v{vA1}"]
    elif kind == "DS":
        post = [f"v_mov_b32 v{vA1}, v{vA2}", f"v_add_u32 v{vA2}, 0x8000, v{vA2}", f"v_and_b32 v{vA2}, 0x1ffff, v{vA2}"]
    else:
        post = [f"v_mov_b32 v{vA0}, v{vA1}", f"v_mov_b32 v{vA1}, v{vA2}", f"v_add_u32 v{vA2}, 0x8000, v{vA2}", f"v_and_b32 v{vA2}, 0x1ffff, v{vA2}"]
    if masked:
        if kind == "DD": items.append(Item(f"v_subrev_u32 v{vTH0}, 32, v{vTH0}", 1, 23, 31))
        else:
            items.append(Item(f"v_subrev_u32 v{vTH0}, 64, v{vTH0}", 1, 23, 31))
            post.append(f"v_subrev_u32 v{vTH1}, 64, v{vTH1}")
    seq, load = schedule(mf, items, cap=CAP, pre=pre)
    seq += post
    seq, outst = insert_lgkm_waits(seq, KREADS + VREADS, age=AGE, init_age=[-12 + j*5//8 for j in range(8)] + [-7 + j for j in range(8)])
    assert outst == KREADS + VREADS, [sorted(o)[0] for o in outst]
    if VERBOSE: print(kind, masked, "gap loads", load, "sum", sum(load) + len(post), "instrs", len(seq))
    for t in seq: k.I(t)

AGE = 4
CAP = 6
VERBOSE = True
def loop(k, name, kind, masked):
    k.I(f"s_sub_u32 s{sCnt}, s{sCnt}, 1")
    k.I(f"s_cbranch_scc1 {name}_end")
    k.L(name)
    body(k, kind, masked)
    k.I(f"s_sub_u32 s{sCnt}, s{sCnt}, 1")
    k.I(f"s_cbranch_scc0 {name}")
    k.L(name + "_end")

def epilogue(k, O, Lregs, sQ, flagbit, store_flags):
    I = k.I
    t = vT
    I(f"v_add_f32 v{t}, v{Lregs[0]}, v{Lregs[1]}")
    for r in Lregs[2:]: I(f"v_add_f32 v{t}, v{t}, v{r}")
    I(f"v_mov_b32 v{t+1}, v{t}")
    I(f"v_permlane32_swap_b32 v{t}, v{t+1}")
    I(f"v_add_f32 v{t}, v{t}, v{t+1}")
    I(f"v_rcp_f32 v{t+2}, v{t}")
    I(f"v_mov_b32 v{t+4}, 0")
    I(f"v_mov_b32 v{t+3}, v{t+2}")
    for c in range(8):
        db, ip = c >> 1, c & 1
        b = t + 8 + (c & 1)*12
        for j in range(8): I(f"v_accvgpr_read_b32 v{b+j}, a{O+16*db+8*ip+j}")
        for j in range(4): I(f"v_pk_mul_f32 v[{b+2*j}:{b+2*j+1}], v[{b+2*j}:{b+2*j+1}], v[{t+2}:{t+3}]")
        for j in range(4): I(f"v_cvt_pk_bf16_f32 v{b+8+j}, v{b+2*j}, v{b+2*j+1}")
        I(f"s_add_u32 s{sT}, s{sQ}, {c*1024}")
        I(f"buffer_store_dwordx4 v[{b+8}:{b+11}], v{vL16}, s[{SCTX}:{SCTX+3}], s{sT} offen {store_flags}")
        for j in range(4): I(f"v_maximum3_f32 v{t+4}, |v{b+2*j}|, |v{b+2*j+1}|, v{t+4}")
    I(f"v_mov_b32 v{t+5}, 0x5d800000")
    I(f"v_cmp_nle_f32 s[{MSK}:{MSK+1}], v{t}, v{t+5}")
    I(f"v_mov_b32 v{t+5}, 0x35800000")
    I(f"v_cmp_nge_f32 s[{MSK+2}:{MSK+3}], v{t}, v{t+5}")
    I(f"v_mov_b32 v{t+5}, 0x7f7f0000")
    I(f"v_cmp_nle_f32 s[{MSK+4}:{MSK+5}], v{t+4}, v{t+5}")
    I(f"s_or_b64 s[{MSK}:{MSK+1}], s[{MSK}:{MSK+1}], s[{MSK+2}:{MSK+3}]")
    I(f"s_or_b64 s[{MSK}:{MSK+1}], s[{MSK}:{MSK+1}], s[{MSK+4}:{MSK+5}]")
    I(f"s_cmp_lg_u64 s[{MSK}:{MSK+1}], 0")
    I(f"s_cselect_b32 s{sT}, {flagbit}, 0")
    I(f"s_or_b32 s{sFlag}, s{sFlag}, s{sT}")

def slow_path(k, name, O, Q, sQ, sQblk_expr, store_flags, force=False):
    I = k.I
    m, l, mn, al, t = vT, vT+1, vT+2, vT+3, vT+4
    sQblk_expr()
    I(f"s_mov_b32 s{sDoff}, 0")
    I(f"v_mov_b32 v{m}, 0xff7fffff")
    I(f"v_mov_b32 v{l}, 0")
    for r in range(64): I(f"v_accvgpr_write_b32 a{O+r}, 0")
    I(f"v_and_b32 v{vTH0}, 31, v{LANE}")
    I(f"v_lshrrev_b32 v{t}, 5, v{LANE}")
    I(f"v_lshlrev_b32 v{t}, 2, v{t}")
    I(f"v_sub_u32 v{vTH0}, v{vTH0}, v{t}")
    I(f"s_lshl_b32 s{sT}, s{sCnt}, 5")
    I(f"v_add_u32 v{vTH0}, s{sT}, v{vTH0}")
    I(f"s_add_u32 s{sCnt}, s{sCnt}, 1")
    k.L(name)
    for c in range(8):
        I(f"s_add_u32 s{sT}, s{sDoff}, {c*1024}")
        I(f"buffer_load_dwordx4 a[{F0+4*c}:{F0+4*c+3}], v{vL16}, s[{SKV}:{SKV+3}], s{sT} offen")
    for j in range(8):
        ks, db = j >> 2, j & 3
        I(f"s_add_u32 s{sT}, s{sDoff}, {8192 + (db*2+ks)*1024}")
        I(f"buffer_load_dwordx4 a[{F1+4*j}:{F1+4*j+3}], v{vL16}, s[{SKV}:{SKV+3}], s{sT} offen")
    I("s_waitcnt vmcnt(8)")
    for c in range(8):
        C = "0" if c == 0 else f"v[{S0}:{S0+15}]"
        I(f"v_mfma_f32_32x32x16_bf16 v[{S0}:{S0+15}], a[{F0+4*c}:{F0+4*c+3}], a[{Q+4*c}:{Q+4*c+3}], {C}")
    for f in mask_group(S0, vTH0): I(f[0])
    I(f"v_max3_f32 v{mn}, v{S0}, v{S0+1}, v{m}")
    for r in range(2, 16, 2): I(f"v_max3_f32 v{mn}, v{S0+r}, v{S0+r+1}, v{mn}")
    I(f"v_mov_b32 v{t}, v{mn}")
    I(f"v_permlane32_swap_b32 v{mn}, v{t}")
    I(f"v_max_f32 v{mn}, v{mn}, v{t}")
    I(f"v_sub_f32 v{al}, v{m}, v{mn}")
    I(f"v_exp_f32 v{al}, v{al}")
    I(f"v_mov_b32 v{m}, v{mn}")
    I(f"v_mul_f32 v{l}, v{l}, v{al}")
    for r in range(16):
        I(f"v_sub_f32 v{S0+r}, v{S0+r}, v{mn}")
        I(f"v_exp_f32 v{S0+r}, v{S0+r}")
    for r in range(16): I(f"v_add_f32 v{l}, v{l}, v{S0+r}")
    for j in range(8): I(f"v_cvt_pk_bf16_f32 v{P0+j}, v{S0+2*j}, v{S0+2*j+1}")
    for r in range(64):
        I(f"v_accvgpr_read_b32 v{t}, a{O+r}")
        I(f"v_mul_f32 v{t}, v{t}, v{al}")
        I(f"v_accvgpr_write_b32 a{O+r}, v{t}")
    I("s_waitcnt vmcnt(0)")
    for mm in pv(O, F1, P0): I(mm)
    I(f"s_add_u32 s{sDoff}, s{sDoff}, 16384")
    I(f"v_subrev_u32 v{vTH0}, 32, v{vTH0}")
    I(f"s_sub_u32 s{sCnt}, s{sCnt}, 1")
    I(f"s_cmp_lg_u32 s{sCnt}, 0")
    I("s_nop 15")
    I(f"s_cbranch_scc1 {name}")
    I(f"v_mov_b32 v{LA0}, v{l}")
    I(f"v_mov_b32 v{LA1}, 0")
    epilogue(k, O, (LA0, LA1), sQ, 0, store_flags)

MARK0 = 0
MARKMAP = {3:10, 4:10, 5:11, 6:11, 7:11, 8:11, 9:11, 10:11, 11:11}
def amark(k, diag, i):
    import os
    if os.environ.get('FINE'): return
    mark(k, diag, MARKMAP[i] if MARK0 else i)

def att_part(k, diag, store_flags, C0, lateq, sQblkA, sQblkB, kidx, endlabel, reload_ptrs=False, tail_fn=None):
    I = k.I
    t0, t1 = vT, vT + 1
    I(f"s_mov_b32 s{sT}, {f32bits(QSCALE)}")
    I(f"v_mov_b32 v{vT+8}, s{sT}")
    I(f"v_mov_b32 v{vT+9}, s{sT}")
    for T, Q in ((0, QA), (1, QB)):
        for c in range(8):
            src = QACC + (T*4 + (c >> 1))*16 + 8*(c & 1)
            for j in range(4): I(f"v_pk_mul_f32 v[{src+2*j}:{src+2*j+1}], v[{src+2*j}:{src+2*j+1}], v[{vT+8}:{vT+9}]")
            for j in range(4): I(f"v_cvt_pk_bf16_f32 v{vT+j}, v{src+2*j}, v{src+2*j+1}")
            for j in range(4): I(f"v_accvgpr_write_b32 a{Q+4*c+j}, v{vT+j}")
            if len(lateq) > 1:
                I(f"s_mov_b32 s{sT2}, s{sT}")
                lateq.pop(0)(); I(f"s_mov_b32 s{sT}, s{sT2}")
    for r in range(128):
        I(f"v_accvgpr_write_b32 a{r}, 0")
        if r % 16 == 15 and lateq: lateq.pop(0)()
    while lateq: lateq.pop(0)()
    I(f"s_add_u32 m0, s{sWL}, {((8 + C0) % 8)*16384}")
    I(f"s_add_u32 s{sDoff}, s{sWL}, {8*16384}")
    for r in (LA0, LA1, LB0, LB1, LC0, LC1): I(f"v_mov_b32 v{r}, 0")
    I(f"v_and_b32 v{t0}, 31, v{LANE}")
    I(f"v_lshrrev_b32 v{t1}, 5, v{LANE}")
    I(f"v_lshlrev_b32 v{t1}, 2, v{t1}")
    I(f"v_sub_u32 v{t0}, v{t0}, v{t1}")
    I(f"s_lshl_b32 s{sT}, s{sQblkA}, 5")
    I(f"v_add_u32 v{vTH0}, s{sT}, v{t0}")
    I(f"v_mov_b32 v{vTHA}, v{vTH0}")
    I(f"s_lshl_b32 s{sT}, s{sQblkB}, 5")
    I(f"v_add_u32 v{vTH1}, s{sT}, v{t0}")
    I(f"v_mov_b32 v{vTHB}, v{vTH1}")
    amark(k, diag, 3)
    k.wait_vm("kv2", expect=4)
    I("s_barrier")
    I(f"v_add_u32 v{vA0}, {(C0 % 8)*16384}, v{vL16}")
    I(f"v_add_u32 v{vA2}, {((C0 + 1) % 8)*16384}, v{vL16}")
    I(f"v_add_u32 v{vA1}, {((C0 + 2) % 8)*16384}, v{vL16}")
    for c in range(8): I(rdK(F0, c, vA0))
    I("s_waitcnt lgkmcnt(0)")
    for S, Q in ((S0, QA), (S1, QB)):
        for c in range(8):
            C = "0" if c == 0 else f"v[{S}:{S+15}]"
            I(f"v_mfma_f32_32x32x16_bf16 v[{S}:{S+15}], a[{F0+4*c}:{F0+4*c+3}], a[{Q+4*c}:{Q+4*c+3}], {C}")
    for c in range(8): I(rdK(F0, c, vA2))
    for j in range(8): I(rdV(F1, j, vA0))
    for S, TH, NM in ((S0, vTH0, NMA), (S1, vTH1, NMB)):
        for f in mask_group(S, TH): I(f[0])
        I(f"v_max3_f32 v{t0}, v{S}, v{S+1}, v{S+2}")
        for r in range(3, 15, 2): I(f"v_max3_f32 v{t0}, v{S+r}, v{S+r+1}, v{t0}")
        I(f"v_max_f32 v{t0}, v{t0}, v{S+15}")
        I(f"v_mov_b32 v{t1}, v{t0}")
        I(f"v_permlane32_swap_b32 v{t0}, v{t1}")
        I(f"v_max_f32 v{t0}, v{t0}, v{t1}")
        for r in range(16): I(f"v_sub_f32 v{S+r}, v{S+r}, v{t0}")
        for r in range(16): I(f"v_sub_f32 v{NM+r}, 0, v{t0}")
    for f in exp_group(S0, list(range(16)), (LA0, LA1)): I(f[0])
    for f in cvt_group(S0, P0, 0, 8): I(f[0])
    for f in exp_group(S1, list(range(NE1A)), (LB0, LB1)): I(f[0])
    amark(k, diag, 4)
    PFT = {7: (6, 4096*640*2, 0, 27), 4: (6, 4096*640*2, 3456, 15), 5: (8, 640*1728*2, 0, 19), 6: (10, 640*1728*2, 0, 23),
           3: (12, 640*1728*2, 0, 11), 2: (12, 640*1728*2, 1408, 7)}
    I(f"s_mov_b32 s{SPF}, s6")
    I(f"s_mov_b32 s{SPF+1}, s7")
    I(f"s_mov_b32 s{SPF+2}, 0")
    I(f"s_mov_b32 s{SPF+3}, 0x20000")
    I(f"s_mov_b32 s{sPFo}, 0")
    I(f"s_lshl_b32 s{sT2}, s{sH}, 2")
    I(f"s_add_u32 s{sT2}, s{sT2}, s{sW}")
    for ii, (lo, size, start, iters) in PFT.items():
        I(f"s_cmp_eq_u32 s{sI}, {ii}")
        I(f"s_cselect_b32 s{SPF}, s{lo}, s{SPF}")
        I(f"s_cselect_b32 s{SPF+1}, s{lo+1}, s{SPF+1}")
        I(f"s_cselect_b32 s{SPF+2}, {size}, s{SPF+2}")
        I(f"s_mul_i32 s{sT}, s{sT2}, {iters*1024}")
        I(f"s_add_u32 s{sT}, s{sT}, {start*1024}")
        I(f"s_cmp_eq_u32 s{sI}, {ii}")
        I(f"s_cselect_b32 s{sPFo}, s{sT}, s{sPFo}")
    loops = []
    I(f"s_lshl_b32 s{sCnt}, s{sI}, 2")
    I(f"s_sub_u32 s{sCnt}, s{sCnt}, 1")
    I(f"s_max_i32 s{sCnt}, s{sCnt}, 0")
    loop(k, "Lk2_dd", "DD", False)
    amark(k, diag, 5)
    I(f"s_cmp_eq_u32 s{sI}, 0")
    I(f"s_cselect_b32 s{sCnt}, 3, 4")
    I(f"s_lshl_b32 s{sT}, s{sI}, 2")
    I(f"s_max_u32 s{sT}, s{sT}, 1")
    I(f"s_lshl_b32 s{sT}, s{sT}, 5")
    I(f"v_subrev_u32 v{vTH0}, s{sT}, v{vTHA}")
    loop(k, "Lk2_ddm", "DD", True)
    amark(k, diag, 6)
    I(f"s_lshl_b32 s{sT}, s{sI}, 7")
    I(f"s_add_u32 s{sT}, s{sT}, 128")
    I(f"v_subrev_u32 v{vTH0}, s{sT}, v{vTHB}")
    I(f"v_subrev_u32 v{vTH1}, 32, v{vTH0}")
    i0 = len(k.items)
    body(k, "DS", True)
    ds_rng = (i0, len(k.items))
    amark(k, diag, 7)
    I(f"s_lshl_b32 s{sT}, s{sI}, 2")
    I(f"s_sub_u32 s{sCnt}, 27, s{sT}")
    I(f"s_max_i32 s{sCnt}, s{sCnt}, 0")
    loop(k, "Lk2_ss", "SS", False)
    amark(k, diag, 8)
    I(f"s_cmp_eq_u32 s{sI}, 7")
    I(f"s_cselect_b32 s{sCnt}, 1, 2")
    I(f"s_lshl_b32 s{sT}, s{sI}, 2")
    I(f"s_sub_u32 s{sT2}, 60, s{sT}")
    I(f"s_add_u32 s{sT}, s{sT}, 6")
    I(f"s_max_u32 s{sT}, s{sT}, s{sT2}")
    I(f"s_lshl_b32 s{sT}, s{sT}, 5")
    I(f"v_subrev_u32 v{vTH0}, s{sT}, v{vTHB}")
    I(f"v_subrev_u32 v{vTH1}, 32, v{vTH0}")
    loop(k, "Lk2_ssm", "SS", True)
    amark(k, diag, 9)
    body(k, "SE", False)
    amark(k, diag, 10)
    if CODEPF2:
        code_touch(k, k.name, "k3_kernel", "Lcode_end", 8, 64, S0, S0 + 1, S0 + 2)
    if not RETILE:
        epilogue(k, OA, (LA0, LA1), sQA, 1, store_flags)
        epilogue(k, OB, (LB0, LB1, LC0, LC1), sQB, 2, store_flags)
    else:
        SWO, SWOT = 16, 20
        vWO, vWOr, WOF = S0, S0 + 5, S1
        I("s_barrier")
        srd(k, SWO, 6, 7, 4096*640*2)
        srd(k, SWOT, 14, 15, WOT_SIZE, WOT_OFF)
        I(f"s_mov_b32 s{sCnt}, 1639")
        I(f"s_mul_i32 s{sT2}, s{sW}, 320")
        for u in range(5):
            I(f"v_add_u32 v{t0}, s{sT2}, v{LANE}")
            I(f"v_add_u32 v{t0}, {64*u}, v{t0}")
            I(f"v_mul_lo_u32 v{t1}, v{t0}, s{sCnt}")
            I(f"v_lshrrev_b32 v{t1}, 16, v{t1}")
            I(f"v_mul_u32_u24 v{vWO+u}, 40, v{t1}")
            I(f"v_sub_u32 v{t0}, v{t0}, v{vWO+u}")
            I(f"v_mul_u32_u24 v{t1}, 1280, v{t1}")
            I(f"v_lshl_add_u32 v{vWO+u}, v{t0}, 4, v{t1}")
        I(f"s_lshr_b32 s{sT}, s2, 1")
        I(f"s_mul_i32 s{sDoff}, s{sT}, {32*1280}")
        I(f"s_and_b32 s{sT}, s2, 1")
        I(f"s_mul_i32 s{sT}, s{sT}, 640")
        I(f"s_add_u32 s{sDoff}, s{sDoff}, s{sT}")
        I(f"s_mul_i32 s{sT2}, s{sW}, 5120")
        for u in range(5):
            I(f"s_add_u32 m0, s{sT2}, {u*1024}")
            I(f"buffer_load_dwordx4 v{vWO+u}, s[{SWO}:{SWO+3}], s{sDoff} offen lds", tag="wo")
        I(f"v_lshrrev_b32 v{t0}, 5, v{LANE}")
        I(f"v_lshlrev_b32 v{t0}, 4, v{t0}")
        I(f"v_bfe_u32 v{t1}, v{LANE}, 4, 1")
        I(f"v_lshl_add_u32 v{t0}, v{t1}, 2, v{t0}")
        I(f"v_bfe_u32 v{t1}, v{LANE}, 2, 2")
        I(f"v_add_u32 v{t0}, v{t0}, v{t1}")
        I(f"v_mul_u32_u24 v{vWOr}, 640, v{t0}")
        I(f"v_and_b32 v{t1}, 3, v{LANE}")
        I(f"v_lshl_add_u32 v{vWOr}, v{t1}, {4 if SPLITK else 3}, v{vWOr}")
        I(f"s_mul_i32 s{sT}, s{sW}, {64 if SPLITK else 160}")
        I(f"v_add_u32 v{vWOr}, s{sT}, v{vWOr}")
        epilogue(k, OA, (LA0, LA1), sQA, 1, store_flags)
        epilogue(k, OB, (LB0, LB1, LC0, LC1), sQB, 2, store_flags)
        k.wait_vm("wo", expect=5)
        I("s_barrier")
        if SPLITK:
            for j in range(3):
                for h2 in range(2):
                    r = WOF + (j*2 + h2)*4
                    I(f"ds_read_b64_tr_b16 v[{r}:{r+1}], v{vWOr} offset:{j*256 + h2*8}")
                    I(f"ds_read_b64_tr_b16 v[{r+2}:{r+3}], v{vWOr} offset:{j*256 + h2*8 + 8*640}")
            I("s_waitcnt lgkmcnt(0)")
            for j in range(3):
                I(f"s_add_u32 s{sT}, s{sW}, {4*j}")
                I(f"s_cmp_ge_u32 s{sT}, 5")
                I(f"s_cselect_b32 s{sT2}, 1, 0")
                I(f"s_mul_i32 s{sDoff}, s{sT2}, 5")
                I(f"s_sub_u32 s{sDoff}, s{sT}, s{sDoff}")
                I(f"s_lshl_b32 s{sDoff}, s{sDoff}, 11")
                I(f"s_and_b32 s{sCnt}, s2, 1")
                I(f"s_lshl_b32 s{sCnt}, s{sCnt}, 1")
                I(f"s_add_u32 s{sCnt}, s{sCnt}, s{sT2}")
                I(f"s_lshl_b32 s{sCnt}, s{sCnt}, 7")
                I(f"s_lshr_b32 s{sT2}, s2, 1")
                I(f"s_add_u32 s{sCnt}, s{sCnt}, s{sT2}")
                I(f"s_mul_i32 s{sCnt}, s{sCnt}, 10240")
                I(f"s_add_u32 s{sDoff}, s{sDoff}, s{sCnt}")
                I(f"s_cmp_ge_u32 s{sT}, 10")
                I(f"s_cselect_b32 s{sDoff}, {WOT_SIZE}, s{sDoff}")
                for h2 in range(2):
                    r = WOF + (j*2 + h2)*4
                    I(f"buffer_store_dwordx4 v[{r}:{r+3}], v{vL16}, s[{SWOT}:{SWOT+3}], s{sDoff} offen offset:{h2*1024} {store_flags}")
        else:
            for nt in range(5):
                I(f"ds_read_b64_tr_b16 v[{WOF+4*nt}:{WOF+4*nt+1}], v{vWOr} offset:{nt*32}")
                I(f"ds_read_b64_tr_b16 v[{WOF+4*nt+2}:{WOF+4*nt+3}], v{vWOr} offset:{nt*32 + 8*640}")
            I(f"s_and_b32 s{sDoff}, s2, 1")
            I(f"s_lshl_b32 s{sDoff}, s{sDoff}, 2")
            I(f"s_add_u32 s{sDoff}, s{sDoff}, s{sW}")
            I(f"s_lshl_b32 s{sDoff}, s{sDoff}, 7")
            I(f"s_lshr_b32 s{sT}, s2, 1")
            I(f"s_add_u32 s{sDoff}, s{sDoff}, s{sT}")
            I(f"s_mul_i32 s{sDoff}, s{sDoff}, 5120")
            I("s_waitcnt lgkmcnt(0)")
            for nt in range(5):
                I(f"s_add_u32 s{sT}, s{sDoff}, {nt*1024}")
                I(f"buffer_store_dwordx4 v[{WOF+4*nt}:{WOF+4*nt+3}], v{vL16}, s[{SWOT}:{SWOT+3}], s{sT} offen {store_flags}")
    amark(k, diag, 11)
    I(f"s_bitcmp1_b32 s{sFlag}, 0")
    I("s_cbranch_scc0 Lk2_noslowA")
    I("s_waitcnt vmcnt(0)")
    slow_path(k, "Lk2_slowA", OA, QA, sQA, lambda: I(f"s_mov_b32 s{sCnt}, s{sQblkA}"), store_flags)
    k.L("Lk2_noslowA")
    I(f"s_bitcmp1_b32 s{sFlag}, 1")
    I("s_cbranch_scc0 Lk2_noslowB")
    I("s_waitcnt vmcnt(0)")
    slow_path(k, "Lk2_slowB", OB, QB, sQB, lambda: I(f"s_mov_b32 s{sCnt}, s{sQblkB}"), store_flags)
    k.L("Lk2_noslowB")
    if tail_fn: tail_fn()
    dump_marks(k, diag, kidx, 14, 15, 24)
    stamp_end(k, diag, kidx, 14, 15, vtmp=24)
    k.L(endlabel)
    I("s_endpgm")

def finish_k2(k):
    k.fix_hazards()
    trace = []
    items = k.items
    lab = {it[:-1]: idx for idx, it in enumerate(items) if isinstance(it, str) and it.endswith(":")}
    idx = 0
    names = ["Lk2_dd", "Lk2_ddm", "Lk2_ss", "Lk2_ssm"]
    segs = []
    pos = 0
    for nm in names:
        a, b = lab[nm], lab[nm + "_end"]
        segs.append(items[pos:a]); segs.append(items[a:b]); segs.append(items[a:b]); pos = b
    segs.append(items[pos:lab["Lk2_noslowA"]])
    for s_ in segs: trace += s_
    pr = check_seq(trace, "k2") + check_waits(trace, "k2")
    trace2 = items[:lab["Lk2_dd"]] + items[lab["Lk2_dd_end"]:lab["Lk2_ss"]] + items[lab["Lk2_ss_end"]:lab["Lk2_noslowA"]]
    pr += check_seq(trace2, "k2z") + check_waits(trace2, "k2z")
    for p_ in pr[:20]: print(p_)
    print("k2 problems:", len(pr))

def gen_k2(diag=False, store_flags="sc1", force_slow=0, dbg=""):
    global DBG
    DBG = dbg
    k = Kern("k2_kernel")
    I = k.I
    I("s_cmp_ge_u32 s2, 256")
    I("s_cbranch_scc1 Lk2_end")
    stamp_begin(k, diag)
    I(f"s_load_dwordx2 s[4:5], s[0:1], {KA['wq']}")
    I(f"s_load_dwordx2 s[14:15], s[0:1], {KA['ws']}")
    I(f"s_load_dwordx2 s[6:7], s[0:1], {KA['wo']}")
    I(f"s_load_dwordx4 s[8:11], s[0:1], {KA['wg']}")
    I(f"s_load_dwordx2 s[12:13], s[0:1], {KA['wd']}")
    I("v_lshrrev_b32 v1, 6, v0")
    I(f"v_and_b32 v{LANE}, 63, v0")
    I(f"v_readfirstlane_b32 s{sW}, v1")
    I(f"s_and_b32 s{sT}, s2, 7")
    I(f"s_lshr_b32 s{sT2}, s2, 3")
    I(f"s_and_b32 s{sH}, s{sT2}, 3")
    I(f"s_lshl_b32 s{sT}, s{sT}, 2")
    I(f"s_add_u32 s{sH}, s{sH}, s{sT}")
    I(f"s_lshr_b32 s{sI}, s2, 5")
    I("s_waitcnt lgkmcnt(0)")
    srd(k, SXN, 14, 15, XN_SIZE, XN_OFF)
    srd(k, SWQ, 4, 5, 640*4096*2)
    I(f"s_lshl_b32 s{sT}, s{sH}, 20")
    I(f"s_add_u32 s{sT}, s{sT}, {KV_OFF}")
    I(f"s_add_u32 s{SKV}, s14, s{sT}")
    I(f"s_addc_u32 s{SKV+1}, s15, 0")
    I(f"s_lshl_b32 s{sT}, s{sI}, 16")
    I(f"s_sub_u32 s{SKV+2}, {64*16384}, s{sT}")
    I(f"s_mov_b32 s{SKV+3}, 0x20000")
    srd(k, SCTX, 14, 15, CTX_SIZE, CTX_OFF)
    t0, t1 = vT, vT + 1
    I(f"v_lshlrev_b32 v{vL16}, 4, v{LANE}")
    I(f"v_lshrrev_b32 v{t0}, 4, v{LANE}")
    I(f"v_lshlrev_b32 v{vWQ}, 13, v{t0}")
    I(f"v_lshlrev_b32 v{t0}, 2, v{t0}")
    I(f"v_and_b32 v{t1}, 15, v{LANE}")
    I(f"v_xor_b32 v{t0}, v{t0}, v{t1}")
    I(f"v_lshl_add_u32 v{vWQ}, v{t0}, 4, v{vWQ}")
    I(f"v_lshrrev_b32 v{t1}, 5, v{LANE}")
    I(f"v_bfe_u32 v{t0}, v{LANE}, 2, 2")
    I(f"v_lshl_add_u32 v{t1}, v{t1}, 3, v{t0}")
    I(f"v_lshlrev_b32 v{t1}, 8, v{t1}")
    I(f"v_bfe_u32 v{t0+2}, v{LANE}, 4, 1")
    I(f"v_lshl_add_u32 v{t1}, v{t0+2}, 5, v{t1}")
    I(f"v_and_b32 v{t0+2}, 3, v{LANE}")
    I(f"v_lshl_add_u32 v{t1}, v{t0+2}, 3, v{t1}")
    for db in range(4):
        I(f"v_xor_b32 v{t0+2}, {db}, v{t0}")
        I(f"v_lshl_add_u32 v{vQ+db}, v{t0+2}, 6, v{t1}")
    I(f"v_mov_b32 v{vNINF}, 0xff800000")
    I(f"s_lshl_b32 s{sWL}, s{sW}, 12")
    sQblkA, sQblkB = 56, 57
    I(f"s_lshl_b32 s{sT}, s{sI}, 2")
    I(f"s_add_u32 s{sQblkA}, s{sT}, s{sW}")
    I(f"s_sub_u32 s{sQblkB}, 60, s{sT}")
    I(f"s_add_u32 s{sQblkB}, s{sQblkB}, s{sW}")
    sXA, sXB, sWq = 58, 59, 60+32
    sXA, sXB, sWq = 58, 59, 88
    I(f"s_mul_i32 s{sXA}, s{sQblkA}, 40960")
    I(f"s_mul_i32 s{sXB}, s{sQblkB}, 40960")
    for sq, sb in ((sQA, sQblkA), (sQB, sQblkB)):
        I(f"s_lshl_b32 s{sq}, s{sb}, 5")
        I(f"s_add_u32 s{sq}, s{sq}, s{sH}")
        I(f"s_lshl_b32 s{sq}, s{sq}, 13")
    I(f"s_lshl_b32 s{sWq}, s{sW}, 17")
    I(f"s_lshl_b32 s{sT}, s{sH}, 8")
    I(f"s_add_u32 s{sWq}, s{sWq}, s{sT}")
    I(f"s_mov_b32 s{sFlag}, {force_slow}")
    XR = 0
    QACC = 128
    def xload(s):
        for T, sx in ((0, sXA), (1, sXB)):
            a = XR + ((2*s + T) % 32)*4
            I(f"s_add_u32 s{sT}, s{sx}, {s*1024}")
            I(f"buffer_load_dwordx4 a[{a}:{a+3}], v{vL16}, s[{SXN}:{SXN+3}], s{sT} offen", tag=f"x{s}")
    def wdma_one(g, u):
        I(f"s_add_u32 m0, s{sWL}, {(g % 8)*16384 + u*1024}")
        I(f"s_add_u32 s{sT}, s{sWq}, {(64*g + 4*u)*8192}")
        I(f"buffer_load_dwordx4 v{vWQ}, s[{SWQ}:{SWQ+3}], s{sT} offen lds", tag=f"w{g}")
    def kv_one(blk, u):
        I(f"s_add_u32 m0, s{sWL}, {((blk + 10) % 8)*16384}")
        I(f"s_add_u32 s{sT}, s{sWL}, {blk*16384}")
        I(f"buffer_load_dwordx4 v{vL16}, s[{SKV}:{SKV+3}], s{sT} offen offset:{u*1024} lds", tag=f"kv{blk}")
    def kv_closures(blk): return [lambda u=u: kv_one(blk, u) for u in range(4)]
    def wread(n):
        g, s = n >> 2, n & 3
        F = F0 if n % 2 == 0 else F1
        F = F0 + (n % 2)*16
        off = (g % 8)*16384 + s*4096
        hi = off >= 65536
        for db in range(4):
            vb = vQ + db
            o = off
            if hi: vb = vT + 8 + db; o = off - 65536
            I(f"ds_read_b64_tr_b16 a[{F+4*db}:{F+4*db+1}], v{vb} offset:{o}", tag=f"r{n}")
            I(f"ds_read_b64_tr_b16 a[{F+4*db+2}:{F+4*db+3}], v{vb} offset:{o+1024}", tag=f"r{n}")
    for db in range(4): I(f"v_add_u32 v{vT+8+db}, 0x10000, v{vQ+db}")
    mark(k, diag, 0)
    for u in range(4): wdma_one(0, u)
    for s in range(0, 4): xload(s)
    for u in range(4): wdma_one(1, u)
    for s in range(4, 8): xload(s)
    for g in (2, 3):
        for u in range(4): wdma_one(g, u)
    gapq = []
    for s in range(8, 16): gapq.append(lambda s=s: xload(s))
    for g in range(4, 8):
        for u in range(4): gapq.append(lambda g=g, u=u: wdma_one(g, u))
    k.wait_vm("w0", expect=4)
    I("s_barrier")
    mark(k, diag, 1)
    wread(0)
    for n in range(40):
        g, s = n >> 2, n & 3
        if s == 2:
            if g + 1 < 10: k.wait_vm(f"w{g+1}", expect=4)
            I("s_barrier")
            if g >= 1:
                q = g - 1 + 8
                if q < 10:
                    for u in range(4): gapq.append(lambda q=q, u=u: wdma_one(q, u))
                elif g >= 7:
                    gapq += kv_closures(g - 7)
        if n + 1 < 40: wread(n + 1)
        k.wait_vm(f"x{n}", expect=2)
        k.wait_lg(f"r{n}")
        F = F0 + (n % 2)*16
        for db in range(4):
            for T in range(2):
                d = QACC + (T*4 + db)*16
                a = XR + ((2*n + T) % 32)*4
                c = "0" if n == 0 else f"v[{d}:{d+15}]"
                I(f"v_mfma_f32_32x32x16_bf16 v[{d}:{d+15}], a[{F+4*db}:{F+4*db+3}], a[{a}:{a+3}], {c}")
                if gapq: gapq.pop(0)()
        if n + 16 < 40: gapq.append(lambda s=n+16: xload(s))
    while gapq: gapq.pop(0)()
    mark(k, diag, 2)
    I("s_barrier")
    lateq = []
    for blk in range(3, 8): lateq += kv_closures(blk)
    att_part(k, diag, store_flags, 10, lateq, sQblkA, sQblkB, 1, "Lk2_end")
    finish_k2(k)
    return k, 256, 256, 131072
```

```python
from common import *
from k12 import Flat, SPIN_MAX

def gen_k3c(diag=False, kidx=1, DC=6, codepf=True):
    k = Kern("k3_kernel")
    fl = Flat(k); I = fl.emit
    I("s_cmp_ge_u32 s2, 256")
    I("s_cbranch_scc1 Lk3_end")
    stamp_begin(k, diag)
    I(f"s_load_dwordx2 s[14:15], s[0:1], {KA['ws']}")
    I(f"s_load_dwordx2 s[6:7], s[0:1], {KA['wo']}")
    I(f"s_load_dwordx2 s[4:5], s[0:1], {KA['x']}")
    I(f"s_load_dwordx2 s[8:9], s[0:1], {KA['wr']}")
    I(f"s_load_dwordx2 s[12:13], s[0:1], {KA['dbg']}")
    LANE = 2
    I("v_lshrrev_b32 v1, 6, v0")
    I(f"v_and_b32 v{LANE}, 63, v0")
    sW, sKS, sRT, sCT, sT, sT2, sCb, sWb, sWL, sPb, sNonce = 40, 41, 42, 43, 44, 45, 46, 47, 48, 49, 50
    I(f"v_readfirstlane_b32 s{sW}, v1")
    I(f"s_and_b32 s{sT}, s2, 7")
    I(f"s_lshr_b32 s{sKS}, s{sT}, 1")
    I(f"s_and_b32 s{sRT}, s{sT}, 1")
    I(f"s_lshl_b32 s{sRT}, s{sRT}, 3")
    I(f"s_lshr_b32 s{sT2}, s2, 3")
    I(f"s_and_b32 s{sCT}, s{sT2}, 3")
    I(f"s_lshr_b32 s{sT2}, s{sT2}, 2")
    I(f"s_add_u32 s{sRT}, s{sRT}, s{sT2}")
    I("s_waitcnt lgkmcnt(0)")
    fl.pend = []
    SCTX, SWO, SP, SX, SWR, SH, SACC, SFL, SDBG = 16, 20, 24, 28, 32, 36, 52, 56, 84
    srd(k, SCTX, 14, 15, CTX_SIZE, CTX_OFF)
    srd(k, SWO, 6, 7, 4096*640*2)
    vC, vL16, t0, t1, t2 = 3, 4, 6, 7, 8
    vWD = 10
    vTR, vTRh = 16, 17
    I(f"v_lshrrev_b32 v{t0}, 5, v{LANE}")
    I(f"v_lshlrev_b32 v{vC}, 10, v{t0}")
    I(f"v_bfe_u32 v{t0}, v{LANE}, 4, 1")
    I(f"v_lshl_add_u32 v{vC}, v{t0}, 9, v{vC}")
    I(f"v_and_b32 v{t0}, 15, v{LANE}")
    I(f"v_lshl_add_u32 v{vC}, v{t0}, 4, v{vC}")
    I(f"v_lshlrev_b32 v{vL16}, 4, v{LANE}")
    I(f"s_mov_b32 s{sT}, 3277")
    for u in range(5):
        I(f"v_add_u32 v{t0}, {64*u}, v{LANE}")
        I(f"v_mul_lo_u32 v{t1}, v{t0}, s{sT}")
        I(f"v_lshrrev_b32 v{t1}, 16, v{t1}")
        I(f"v_mul_u32_u24 v{t2}, 20, v{t1}")
        I(f"v_sub_u32 v{t2}, v{t0}, v{t2}")
        I(f"v_mul_u32_u24 v{t1}, 1280, v{t1}")
        I(f"v_lshl_add_u32 v{vWD+u}, v{t2}, 4, v{t1}")
    I(f"s_lshl_b32 s{sCb}, s{sRT}, 2")
    I(f"s_add_u32 s{sCb}, s{sCb}, s{sW}")
    I(f"s_lshl_b32 s{sCb}, s{sCb}, 5")
    I(f"s_lshl_b32 s{sT}, s{sKS}, 3")
    I(f"s_add_u32 s{sCb}, s{sCb}, s{sT}")
    I(f"s_lshl_b32 s{sCb}, s{sCb}, 13")
    I(f"s_lshl_b32 s{sWb}, s{sKS}, 10")
    I(f"s_lshl_b32 s{sT}, s{sW}, 5")
    I(f"s_add_u32 s{sWb}, s{sWb}, s{sT}")
    I(f"s_mul_i32 s{sWb}, s{sWb}, 1280")
    I(f"s_mul_i32 s{sT}, s{sCT}, 320")
    I(f"s_add_u32 s{sWb}, s{sWb}, s{sT}")
    I(f"s_mul_i32 s{sWL}, s{sW}, 10240")
    def wdma(g, u):
        k.I(f"s_add_u32 m0, s{sWL}, {(g % 3)*40960 + u*1024}")
        k.I(f"s_add_u32 s{sT}, s{sWb}, {(g*128 + (u // 5)*16)*1280}")
        k.I(f"buffer_load_dwordx4 v{vWD + u % 5}, s[{SWO}:{SWO+3}], s{sT} offen lds", tag=f"W{g}")
    NC = DC + 1
    def cload(t):
        a = (t % NC)*8
        k.I(f"s_add_u32 s{sT2}, s{sCb}, {(t >> 2)*8192 + (t & 3)*2048}")
        k.I(f"buffer_load_dwordx4 a[{a}:{a+3}], v{vC}, s[{SCTX}:{SCTX+3}], s{sT2} offen", tag=f"c{t}")
        k.I(f"buffer_load_dwordx4 a[{a+4}:{a+7}], v{vC}, s[{SCTX}:{SCTX+3}], s{sT2} offen offset:256", tag=f"c{t}")
    for u in range(10): wdma(0, u)
    for t in range(2): cload(t)
    for u in range(10): wdma(1, u)
    for t in range(2, DC): cload(t)
    I(f"v_lshrrev_b32 v{t0}, 5, v{LANE}")
    I(f"v_lshlrev_b32 v{t0}, 4, v{t0}")
    I(f"v_bfe_u32 v{t1}, v{LANE}, 4, 1")
    I(f"v_lshl_add_u32 v{t0}, v{t1}, 2, v{t0}")
    I(f"v_bfe_u32 v{t1}, v{LANE}, 2, 2")
    I(f"v_add_u32 v{t0}, v{t0}, v{t1}")
    I(f"v_mul_u32_u24 v{vTR}, 320, v{t0}")
    I(f"v_and_b32 v{t1}, 3, v{LANE}")
    I(f"v_lshl_add_u32 v{vTR}, v{t1}, 4, v{vTR}")
    I(f"v_add_u32 v{vTRh}, 0x10000, v{vTR}")
    srd(k, SP, 14, 15, PART_SIZE, PART_OFF)
    srd(k, SDBG, 12, 13, 256)
    vZero, vAOff, vNon = 18, 19, 20
    I(f"v_mov_b32 v{vZero}, 0")
    I(f"v_mov_b32 v{t1}, 0x100000")
    I(f"v_cmp_eq_u32 vcc, 0, v0")
    I(f"v_cndmask_b32 v{vAOff}, v{t1}, v{vZero}, vcc")
    k.I("s_memrealtime s[50:51]")
    k.I("s_waitcnt lgkmcnt(0)")
    k.I(f"s_or_b32 s{sNonce}, s50, 1")
    I(f"v_mov_b32 v{vNon}, s{sNonce}")
    I(f"v_mov_b32 v{vNon+1}, 0")
    k.I(f"buffer_atomic_cmpswap v[{vNon}:{vNon+1}], v{vAOff}, s[{SDBG}:{SDBG+3}], 0 offen sc0 sc1", tag="nonce")
    sE1, sE2 = 60+28, 60+29
    srd(k, SX, 4, 5, 2048*640*2)
    srd(k, SWR, 8, 9, 1280)
    srd(k, SH, 14, 15, H_SIZE, H_OFF)
    srd(k, SACC, 14, 15, ACC_SIZE, ACC_OFF)
    srd(k, SFL, 14, 15, FLG_SIZE, FLG_OFF)
    vO, vWo, vRow = 9, 22, 23
    I(f"s_lshl_b32 s{sT}, s{sRT}, 7")
    I(f"s_lshl_b32 s{sE1}, s{sKS}, 5")
    I(f"s_add_u32 s{sT}, s{sT}, s{sE1}")
    I(f"s_and_b32 s{sE1}, s{sW}, 1")
    I(f"s_lshl_b32 s{sE1}, s{sE1}, 4")
    I(f"s_add_u32 s{sT}, s{sT}, s{sE1}")
    I(f"v_and_b32 v{t0}, 15, v{LANE}")
    I(f"v_add_u32 v{vRow}, s{sT}, v{t0}")
    I(f"v_mul_u32_u24 v{vO}, 1280, v{vRow}")
    I(f"s_lshr_b32 s{sE2}, s{sW}, 1")
    I(f"s_mul_i32 s{sT}, s{sE2}, 192")
    I(f"s_mul_i32 s{sE1}, s{sCT}, 320")
    I(f"s_add_u32 s{sT}, s{sT}, s{sE1}")
    I(f"v_lshrrev_b32 v{t1}, 4, v{LANE}")
    I(f"v_lshlrev_b32 v{t1}, 4, v{t1}")
    I(f"v_add_u32 v{vWo}, s{sT}, v{t1}")
    I(f"v_add_u32 v{vO}, v{vO}, v{vWo}")
    I(f"s_cmp_eq_u32 s{sE2}, 0")
    I(f"s_cselect_b32 s{sE1}, 0, 0x4000000")
    XV, WRV = 184, 196
    for u in range(3):
        so = "0" if u < 2 else f"s{sE1}"
        k.I(f"buffer_load_dwordx4 v[{XV+4*u}:{XV+4*u+3}], v{vO}, s[{SX}:{SX+3}], {so} offen offset:{64*u}", tag="xw")
        k.I(f"buffer_load_dwordx4 v[{WRV+4*u}:{WRV+4*u+3}], v{vWo}, s[{SWR}:{SWR+3}], {so} offen offset:{64*u}", tag="xw")
    ACC, WF = 24, 104
    def wreads(t):
        g, s = t >> 2, t & 3
        out = []
        for nt in range(10):
            off = (g % 3)*40960 + s*10240 + (nt >> 1)*64 + (nt & 1)*8
            vb, off = (vTR, off) if off + 8*320 < 65536 else (vTRh, off - 65536)
            r = WF + (t & 1)*40 + nt*4
            out.append(f"ds_read_b64_tr_b16 v[{r}:{r+1}], v{vb} offset:{off}")
            out.append(f"ds_read_b64_tr_b16 v[{r+2}:{r+3}], v{vb} offset:{off + 8*320}")
        return out
    mark(k, diag, 0)
    k.wait_vm("W0", expect=10)
    I("s_barrier")
    for x in wreads(0): I(x)
    memq = [lambda u=u: wdma(2, u) for u in range(10)]
    for t in range(32):
        g, s = t >> 2, t & 3
        if s == 3 and g < 7:
            I("s_waitcnt lgkmcnt(0)")
            k.wait_vm(f"W{g+1}", expect=10)
            I("s_barrier")
            if g + 3 < 8: memq += [lambda u=u, g=g: wdma(g + 3, u) for u in range(10)]
        if t + DC < 32: memq.insert(0, lambda t=t: cload(t + DC))
        reads = wreads(t + 1) if t + 1 < 32 else []
        k.wait_vm(f"c{t}", expect=2)
        gi = 0
        for rs in range(2):
            for nt in range(10):
                d = ACC + (rs*10 + nt)*4
                a = (t % NC)*8 + rs*4
                w = WF + (t & 1)*40 + nt*4
                c = "0" if t == 0 else f"v[{d}:{d+3}]"
                I(f"v_mfma_f32_16x16x32_bf16 v[{d}:{d+3}], v[{w}:{w+3}], a[{a}:{a+3}], {c}")
                if reads: I(reads.pop(0))
                if memq and gi % 4 == 1: memq.pop(0)()
                gi += 1
        while reads: I(reads.pop(0))
        if t in (7, 15, 23): mark(k, diag, 1 + t//8)
    assert not memq
    mark(k, diag, 4)
    if codepf: code_touch(k, k.name, "k5_kernel", "Lcode_end", 4, 64, 6, 7, 8)
    I(f"s_lshl_b32 s{sPb}, s{sRT}, 2")
    I(f"s_add_u32 s{sPb}, s{sPb}, s{sCT}")
    I(f"s_mov_b32 s51, s{sPb}")
    I(f"s_lshl_b32 s{sPb}, s{sPb}, 4")
    I(f"s_lshl_b32 s{sT}, s{sW}, 2")
    I(f"s_add_u32 s{sT}, s{sT}, s{sKS}")
    I(f"s_add_u32 s{sT}, s{sT}, s{sPb}")
    I(f"s_mul_i32 s{sT2}, s{sT}, 10240")
    STG = WF
    for rs in range(2):
        for p in range(5):
            st = STG + ((rs*5 + p) % 4)*4
            for h2 in range(2):
                d = ACC + (rs*10 + 2*p + h2)*4
                I(f"v_cvt_pk_bf16_f32 v{st+2*h2}, v{d}, v{d+1}")
                I(f"v_cvt_pk_bf16_f32 v{st+2*h2+1}, v{d+2}, v{d+3}")
            I(f"s_add_u32 s{sT}, s{sT2}, {(rs*5 + p)*1024}")
            k.I(f"buffer_store_dwordx4 v[{st}:{st+3}], v{vL16}, s[{SP}:{SP+3}], s{sT} offen sc1", tag="pst")
    k.wait_vm("nonce")
    I(f"v_readfirstlane_b32 s{sT}, v{vNon}")
    I(f"s_cmp_eq_u32 s{sT}, 0")
    I(f"s_cselect_b32 s{sNonce}, s{sNonce}, s{sT}")
    I(f"v_mov_b32 v{vNon}, s{sNonce}")
    k.wait_vm("pst", expect=10)
    I("s_barrier")
    I(f"s_add_u32 s{sT}, s51, 96")
    I(f"s_lshl_b32 s{sT}, s{sT}, 7")
    I(f"s_lshl_b32 s{sT2}, s{sKS}, 2")
    I(f"s_add_u32 s{sT2}, s{sT2}, s{sT}")
    k.I(f"buffer_store_dword v{vNon}, v{vAOff}, s[{SFL}:{SFL+3}], s{sT2} offen sc1")
    I(f"v_lshlrev_b32 v{t0}, 2, v{LANE}")
    I(f"v_mov_b32 v{t1}, 0x100000")
    I(f"v_cmp_gt_u32 vcc, 4, v0")
    I(f"v_cndmask_b32 v{t0}, v{t1}, v{t0}, vcc")
    mark(k, diag, 5)
    I(f"s_cmp_lg_u32 s{sW}, 0")
    I("s_cbranch_scc1 Lk3_ok")
    I(f"s_mov_b32 s{sT2}, {SPIN_MAX}")
    k.L("Lk3_spin")
    k.I(f"buffer_load_dword v{t2}, v{t0}, s[{SFL}:{SFL+3}], s{sT} offen sc1"); k.vm.pop()
    k.I("s_waitcnt vmcnt(0)")
    k.I(f"v_cmp_eq_u32 vcc, v{vNon}, v{t2}")
    k.I(f"s_and_b32 s{sCb}, vcc_lo, 0xf") if False else None
    k.I(f"s_and_b32 s51, vcc_lo, 0xf")
    k.I(f"s_sub_u32 s{sT2}, s{sT2}, 1")
    k.I("s_cbranch_scc1 Lk3_ok")
    k.I(f"s_cmp_eq_u32 s51, 0xf")
    k.I("s_cbranch_scc0 Lk3_spin")
    k.L("Lk3_ok")
    I("s_barrier")
    mark(k, diag, 6)
    I(f"s_lshl_b32 s{sT}, s{sKS}, 2")
    I(f"s_add_u32 s{sT}, s{sT}, s{sPb}")
    I(f"s_mul_i32 s{sT}, s{sT}, 10240")
    I(f"s_and_b32 s{sT2}, s{sW}, 1")
    I(f"s_mul_i32 s{sT2}, s{sT2}, 5")
    I(f"s_mul_i32 s51, s{sE2}, 3")
    I(f"s_add_u32 s{sT2}, s{sT2}, s51")
    I(f"s_lshl_b32 s{sT2}, s{sT2}, 10")
    I(f"s_add_u32 s{sT}, s{sT}, s{sT2}")
    P = 48
    for f in range(4):
        I(f"s_add_u32 s{sT2}, s{sT}, {f*10240}")
        for u in range(3):
            r = P + (f*3 + u)*4
            k.I(f"buffer_load_dwordx4 v[{r}:{r+3}], v{vL16}, s[{SP}:{SP+3}], s{sT2} offen offset:{u*1024}", tag="part")
    k.wait_vm("part")
    A = 104; HP = 128; ta, tb = 12, 13
    S1, S2, S3 = 14, 15, 16
    I(f"v_mov_b32 v{S1}, 0"); I(f"v_mov_b32 v{S2}, 0"); I(f"v_mov_b32 v{S3}, 0")
    for u in range(3):
        if u == 2:
            I(f"s_cmp_lg_u32 s{sE2}, 0")
            I("s_cbranch_scc1 Lk3_u2done")
        for q in range(4):
            i = 2*q
            for f in range(4):
                r = P + (f*3 + u)*4 + q
                if f == 0:
                    I(f"v_lshlrev_b32 v{A+i}, 16, v{r}")
                    I(f"v_and_b32 v{A+i+1}, 0xffff0000, v{r}")
                else:
                    I(f"v_lshlrev_b32 v{ta}, 16, v{r}")
                    I(f"v_and_b32 v{tb}, 0xffff0000, v{r}")
                    I(f"v_add_f32 v{A+i}, v{A+i}, v{ta}")
                    I(f"v_add_f32 v{A+i+1}, v{A+i+1}, v{tb}")
            I(f"v_cvt_pk_bf16_f32 v{ta}, v{A+i}, v{A+i+1}")
            I(f"v_lshlrev_b32 v{A+i}, 16, v{ta}")
            I(f"v_and_b32 v{A+i+1}, 0xffff0000, v{ta}")
            I(f"v_lshlrev_b32 v{ta}, 16, v{XV+4*u+q}")
            I(f"v_and_b32 v{tb}, 0xffff0000, v{XV+4*u+q}")
            I(f"v_add_f32 v{A+i}, v{A+i}, v{ta}")
            I(f"v_add_f32 v{A+i+1}, v{A+i+1}, v{tb}")
            I(f"v_cvt_pk_bf16_f32 v{HP+4*u+q}, v{A+i}, v{A+i+1}")
            I(f"v_lshlrev_b32 v{A+i}, 16, v{HP+4*u+q}")
            I(f"v_and_b32 v{A+i+1}, 0xffff0000, v{HP+4*u+q}")
            I(f"v_lshlrev_b32 v{ta}, 16, v{WRV+4*u+q}")
            I(f"v_and_b32 v{tb}, 0xffff0000, v{WRV+4*u+q}")
            I(f"v_add_f32 v{S1}, v{S1}, v{A+i}")
            I(f"v_fmac_f32 v{S2}, v{A+i}, v{A+i}")
            I(f"v_fmac_f32 v{S3}, v{A+i}, v{ta}")
            I(f"v_add_f32 v{S1}, v{S1}, v{A+i+1}")
            I(f"v_fmac_f32 v{S2}, v{A+i+1}, v{A+i+1}")
            I(f"v_fmac_f32 v{S3}, v{A+i+1}, v{tb}")
        k.I(f"buffer_store_dwordx4 v[{HP+4*u}:{HP+4*u+3}], v{vO}, s[{SH}:{SH+3}], 0 offen offset:{64*u}")
    k.L("Lk3_u2done")
    for a in (S1, S2, S3):
        I(f"v_mov_b32 v{tb}, v{a}")
        I(f"v_permlane16_swap_b32 v{a}, v{tb}")
        I(f"v_add_f32 v{a}, v{a}, v{tb}")
        I(f"v_mov_b32 v{tb}, v{a}")
        I(f"v_permlane32_swap_b32 v{a}, v{tb}")
        I(f"v_add_f32 v{a}, v{a}, v{tb}")
    I(f"v_lshlrev_b32 v{t0}, 2, v{vRow}")
    I(f"v_mov_b32 v{t1}, 0x100000")
    I(f"v_cmp_gt_u32 vcc, 16, v{LANE}")
    I(f"v_cndmask_b32 v{t0}, v{t1}, v{t0}, vcc")
    for i, a in enumerate((S1, S2, S3)):
        I(f"s_mov_b32 s{sT}, {i*8192}")
        k.I(f"buffer_atomic_add_f32 v{a}, v{t0}, s[{SACC}:{SACC+3}], s{sT} offen")
    mark(k, diag, 7)
    dump_marks(k, diag, kidx, 14, 15, 8)
    stamp_end(k, diag, kidx, 14, 15, vtmp=8)
    k.L("Lk3_end")
    I("s_endpgm")
    k.fix_hazards()
    pr = check_waits(k.items, "k3c")
    pr = [p_ for p_ in pr if "Lk3" not in p_]
    for p_ in pr[:10]: print(p_)
    return k, 208, 64, 3*40960
```

```python
import sys, os
sys.path.insert(0, os.path.dirname(__file__))
from common import *
NAME = "sequential_preLN__compressed_kv_cla__moe_arch_mod__prompt"
HEADER = """; Kernarg layout (112 bytes, ptrs only): x, c_kv, w_q, w_uk, w_uv, w_o, B_x, w_r, w_gate, w_up, w_down, out, debug, ws
"""
def build(kernels, path):
    out = [HEADER]
    for (k, v, a, lds, grid, block) in kernels:
        out.append(f"; @launch kernel={k.name} grid=({grid},1,1) block=({block},1,1) lds={lds}\n")
    out.append('.amdgcn_target "amdgcn-amd-amdhsa--gfx950"\n.text\n')
    descs = []
    for (k, v, a, lds, grid, block) in kernels:
        body, desc = kernel_text(k, v, a)
        out.append(body); descs.append(desc)
    out.append("Lcode_end:\n    s_endpgm\n")
    out.append('.section .rodata,"a"\n')
    for d in descs: out.append(".p2align 6\n" + d)
    open(path, "w").write("".join(out))

def all_kernels(diag=False, upto=99, opts={}):
    ks = []
    import k2 as _k2
    _k2.SPLITK = bool(opts.get("fused", True) and opts.get("splitk", True) and not opts.get("k3c", True))
    _k2.RETILE = True
    if opts.get("fused", True):
        from k12 import gen_k12
        k, v, a, lds = gen_k12(diag, **opts.get("k12", {})); ks.append((k, v, a, lds, 256, 256))
        if opts.get("k3c", True):
            _k2.RETILE = False
            _k2.CODEPF2 = bool(opts.get("codepf2", True))
            from k3c import gen_k3c
            from k5 import gen_k5, gen_k6
            ks.clear()
            k, v, a, lds = gen_k12(diag, **opts.get("k12", {})); ks.append((k, v, a, lds, 256, 256))
            k, v, a, lds = gen_k3c(diag, kidx=1, **opts.get("k3", {})); ks.append((k, v, a, lds, 256, 256))
            k, v, a, lds, grid = gen_k5(diag, kidx=2); ks.append((k, v, a, lds, grid, 256))
            k, v, a, lds, grid = gen_k6(diag, kidx=3); ks.append((k, v, a, lds, grid, 256))
            return ks
        if opts.get("splitk", True):
            from k3b import gen_k3b
            from k4 import gen_k4
            from k5 import gen_k5, gen_k6
            k, v, a, lds = gen_k3b(diag, kidx=1, **opts.get("k3", {})); ks.append((k, v, a, lds, 256, 256))
            k, v, a, lds, grid = gen_k4(diag, kidx=2); ks.append((k, v, a, lds, grid, 640))
            k, v, a, lds, grid = gen_k5(diag, kidx=3, rt=True); ks.append((k, v, a, lds, grid, 256))
            k, v, a, lds, grid = gen_k6(diag, kidx=4); ks.append((k, v, a, lds, grid, 256))
            return ks
        if upto >= 3:
            from k3 import gen_k3
            k, v, a, lds = gen_k3(diag, kidx=1, **opts.get("k3", {})); ks.append((k, v, a, lds, 256, 256))
        if upto >= 4:
            from k5 import gen_k5, gen_k6
            k, v, a, lds, grid = gen_k5(diag, kidx=2, **opts.get("k5", {})); ks.append((k, v, a, lds, grid, 256))
            k, v, a, lds, grid = gen_k6(diag, kidx=3, **opts.get("k6", {})); ks.append((k, v, a, lds, grid, 256))
        return ks
    from k1 import gen_k1
    k, v, a, lds = gen_k1(diag, **opts.get("k1", {})); ks.append((k, v, a, lds, 256, 256))
    if upto >= 2:
        from k2 import gen_k2
        k, v, a, lds = gen_k2(diag, **opts.get("k2", {})); ks.append((k, v, a, lds, 256, 256))
    if upto >= 3:
        from k3 import gen_k3
        k, v, a, lds = gen_k3(diag, **opts.get("k3", {})); ks.append((k, v, a, lds, 256, 256))
    if upto >= 4:
        from k5 import gen_k5, gen_k6
        k, v, a, lds, grid = gen_k5(diag, **opts.get("k5", {})); ks.append((k, v, a, lds, grid, 256))
        k, v, a, lds, grid = gen_k6(diag, **opts.get("k6", {})); ks.append((k, v, a, lds, grid, 256))
    return ks

if __name__ == "__main__":
    upto = int(sys.argv[1]) if len(sys.argv) > 1 else 99
    diag = len(sys.argv) > 2 and sys.argv[2] == "diag"
    path = sys.argv[3] if len(sys.argv) > 3 else f"cdna_kernels/{NAME}.s"
    import json
    opts = json.loads(os.environ.get("OPTS", "{}"))
    build(all_kernels(diag, upto, opts), path)
    print("wrote", path, os.path.getsize(path))
```

```python
import re
from common import *
import k2
from k2 import (LANE, vL16, vWQ, vNINF, vQ, vT, SXN, SWQ, SKV, SCTX, sW, sH, sI, sWL, sQA, sQB, sFlag, QACC, att_part, finish_k2)

SPIN_MAX = 1 << 22
import os
FINE = bool(os.environ.get('FINE'))

class Flat:
    def __init__(self, k): self.k = k; self.pend = []; self.mf = 0
    def emit(self, text, tag=None, age=3):
        k = self.k
        for line in text.split("\n"):
            line = line.strip()
            if not line: continue
            if line.endswith(":") or line.startswith(";"):
                k.I(line); continue
            it = Ins(line)
            if it.mn == "s_waitcnt":
                m = re.search(r"lgkmcnt\((\d+)\)", line)
                if m:
                    nn = int(m.group(1)); self.pend = self.pend[len(self.pend)-nn:] if 0 < nn < len(self.pend) else ([] if nn == 0 else self.pend)
            touched = set(it.src) | set(it.dst)
            if it.cls != "ds":
                need = -1
                for i, (d, _) in enumerate(self.pend):
                    if d & touched: need = i
                if need >= 0:
                    j = need
                    while j + 1 < len(self.pend) and self.mf - self.pend[j+1][1] >= age + 1: j += 1
                    nn = min(len(self.pend) - 1 - j, 15)
                    k.I(f"s_waitcnt lgkmcnt({nn})")
                    self.pend = self.pend[len(self.pend)-nn:] if nn > 0 else []
            if it.cls == "mfma": self.mf += 1
            if it.cls == "ds": self.pend.append((set(it.dst), self.mf))
            k.I(line, tag)

def gen_k12(diag=False, TOUCH=1, store_flags="sc1", wnt="nt", force_slow=0, STORE_EVERY=8, touch_at=12, qnt="", xtouch=False, FLAG_AT=None, kvflags=None, XLA=14):
    if kvflags is None: kvflags = store_flags
    k = Kern("k12_kernel")
    fl = Flat(k)
    I = fl.emit
    I("s_cmp_ge_u32 s2, 256")
    I("s_cbranch_scc1 Lk12_end")
    stamp_begin(k, diag)
    I(f"s_load_dwordx4 s[4:7], s[0:1], {KA['x']}")
    I(f"s_load_dwordx4 s[8:11], s[0:1], {KA['wuk']}")
    I(f"s_load_dwordx2 s[14:15], s[0:1], {KA['ws']}")
    I(f"s_load_dwordx2 s[56:57], s[0:1], {KA['wq']}")
    I(f"s_load_dwordx2 s[12:13], s[0:1], {KA['dbg']}")
    I("v_lshrrev_b32 v1, 6, v0")
    I(f"v_and_b32 v{LANE}, 63, v0")
    I("v_readfirstlane_b32 s40, v1")
    I("s_and_b32 s43, s2, 7")
    I("s_lshr_b32 s44, s2, 3")
    I("s_and_b32 s41, s44, 3")
    I("s_lshl_b32 s43, s43, 2")
    I("s_add_u32 s41, s41, s43")
    I("s_lshr_b32 s42, s44, 2")
    I("s_waitcnt lgkmcnt(0)")
    fl.pend = []
    mark(k, diag, 0)
    SX, SC, SWK, SWV, SKVO, SXNO, SDBG = 16, 20, 24, 28, 32, 36, 84
    srd(k, SC, 6, 7, 2048*512*2)
    srd(k, SWK, 8, 9, 512*4096*2)
    srd(k, SWV, 10, 11, 512*4096*2)
    vXA, vXB, vLX, vLO = 36, 37, 45, 46
    vXR, vXRh = 48, 40
    vQh, vQg = 32, 58
    t0, t1 = 52, 53
    vPoll, vZero, vAOff, vOne = 54, 55, 56, 57
    vPA, vPD = 47, 8+4
    sX0, sX1, sKVb, sT, sEPS = 48, 49, 52, 53, 54
    sQblkA, sQblkB, sXA, sXB, sWq = 56, 57, 58, 59, 88
    sT3, sPol = 43, 44
    sNonce0 = 47
    I(f"v_lshrrev_b32 v{t0}, 3, v{LANE}")
    I(f"v_lshlrev_b32 v{vXA}, 10, v{t0}")
    I(f"v_lshrrev_b32 v{t0}, 4, v{LANE}")
    I(f"v_and_b32 v{t1}, 7, v{LANE}")
    I(f"v_xor_b32 v{t0}, v{t0}, v{t1}")
    I(f"v_lshl_add_u32 v{vXA}, v{t0}, 4, v{vXA}")
    I(f"v_xor_b32 v{vXB}, 64, v{vXA}")
    I(f"s_lshl_b32 s{sX0}, s42, 8")
    I(f"s_lshl_b32 s{sT}, s40, 6")
    I(f"s_add_u32 s{sX0}, s{sX0}, s{sT}")
    I(f"s_lshl_b32 s{sX0}, s{sX0}, 10")
    I(f"s_lshl_b32 s{sX1}, s40, 13")
    I(f"v_lshrrev_b32 v{t0}, 4, v{LANE}")
    I(f"v_lshlrev_b32 v{vWQ}, 13, v{t0}")
    I(f"v_lshlrev_b32 v{t0}, 2, v{t0}")
    I(f"v_and_b32 v{t1}, 15, v{LANE}")
    I(f"v_xor_b32 v{t0}, v{t0}, v{t1}")
    I(f"v_lshl_add_u32 v{vWQ}, v{t0}, 4, v{vWQ}")
    I(f"s_lshl_b32 s{sWq}, s{sW}, 17")
    I(f"s_lshl_b32 s{sT}, s{sH}, 8")
    I(f"s_add_u32 s{sWq}, s{sWq}, s{sT}")
    I(f"s_lshl_b32 s{sWL}, s{sW}, 12")
    XB = lambda s: (s % 3)*32768
    WB = lambda s: 98304 + (s & 1)*32768
    def xdma_one(s, u):
        k.I(f"s_add_u32 m0, s{sX1}, {XB(s) + u*1024}")
        k.I(f"s_add_u32 s{sT}, s{sX0}, {u*8192 + s*128}")
        k.I(f"buffer_load_dwordx4 v{vXA if u % 2 == 0 else vXB}, s[{SC}:{SC+3}], s{sT} offen lds", tag=f"X{s}")
    def wdma_one(s, m, u):
        S = SWK if m == 0 else SWV
        k.I(f"s_add_u32 m0, s{sWL}, {WB(s) + m*16384 + u*1024}")
        k.I(f"s_add_u32 s{sT}, s{sWq}, {(64*s + 4*u)*8192}")
        k.I(f"buffer_load_dwordx4 v{vWQ}, s[{S}:{S+3}], s{sT} offen {wnt if (s == 0 or not TOUCH) else str()} lds", tag=f"W{s}")
    def xd(s): return [lambda u=u: xdma_one(s, u) for u in range(8)]
    def wd(s): return [lambda m=m, u=u: wdma_one(s, m, u) for m in range(2) for u in range(4)]
    vTX, vTW = 22, 23
    sTX, sTW = 55, 89
    if TOUCH:
        J = k.I
        J(f"s_and_b32 s45, s{sH}, 3"); J(f"s_lshl_b32 s45, s45, 6"); J(f"s_lshl_b32 s46, s42, 8"); J(f"s_add_u32 s45, s45, s46")
        J(f"s_lshl_b32 s{sTX}, s45, 10")
        J(f"v_lshlrev_b32 v{vTX}, 10, v{LANE}")
        J(f"v_mov_b32 v10, 0x2000000")
        J(f"v_cmp_gt_u32 vcc, 64, v0"); J(f"v_cndmask_b32 v{vTX}, v10, v{vTX}, vcc")
        J(f"s_lshl_b32 s45, s42, 16"); J(f"s_lshl_b32 s46, s{sH}, 8"); J(f"s_add_u32 s{sTW}, s45, s46")
        J(f"v_lshrrev_b32 v{vTW}, 1, v{LANE}"); J(f"v_lshlrev_b32 v{vTW}, 13, v{vTW}")
        J(f"v_and_b32 v11, 1, v{LANE}"); J(f"v_lshl_add_u32 v{vTW}, v11, 7, v{vTW}")
        J(f"v_cmp_gt_u32 vcc, 16, v{LANE}"); J(f"v_cndmask_b32 v{vTW}, v10, v{vTW}, vcc")
        J(f"s_cmp_eq_u32 s{sW}, 2")
        J(f"s_cselect_b32 s64, s{SWV}, s{SWK}"); J(f"s_cselect_b32 s65, s{SWV+1}, s{SWK+1}")
        J(f"s_sub_u32 s45, s{sW}, 1"); J(f"s_cmp_lt_u32 s45, 2")
        J(f"s_cselect_b32 s66, {512*4096*2}, 0"); J(f"s_mov_b32 s67, 0x20000")
    def tx(S):
        k.I(f"s_add_u32 s{sT}, s{sTX}, {S*128}")
        k.I(f"buffer_load_dword v21, v{vTX}, s[{SC}:{SC+3}], s{sT} offen", tag="touch")
        k.I(f"s_add_u32 s{sT}, s{sTW}, {64*S*8192}")
        k.I(f"buffer_load_dword v21, v{vTW}, s[64:67], s{sT} offen", tag="touch")
    if TOUCH:
        tx(1); tx(2)
        for f in xd(0)[:4] + wd(0)[:4] + xd(0)[4:] + wd(0)[4:]: f()
        tx(3)
        for f in xd(1) + wd(1): f()
        tx(4); tx(5)
    else:
        for f in xd(0)[:4] + wd(0)[:4] + xd(0)[4:] + wd(0)[4:]: f()
        for f in xd(1) + wd(1): f()
    mark(k, diag, 1)
    srd(k, SX, 4, 5, 2048*640*2)
    srd(k, SKVO, 14, 15, KV_SIZE, KV_OFF)
    srd(k, SXNO, 14, 15, XN_SIZE, XN_OFF)
    srd(k, SDBG, 12, 13, 256)
    I(f"v_bfe_u32 v{t0}, v{LANE}, 4, 1")
    I("s_lshl_b32 s45, s2, 3")
    I("s_lshl_b32 s46, s40, 1")
    I("s_add_u32 s45, s45, s46")
    I(f"v_add_u32 v{t0}, s45, v{t0}")
    I(f"v_and_b32 v{t1}, 15, v{LANE}")
    I(f"v_mul_u32_u24 v{vLX}, 1280, v{t0}")
    I(f"v_lshl_add_u32 v{vLX}, v{t1}, 4, v{vLX}")
    LNX, LNO = 192, 144
    I(f"v_lshrrev_b32 v{vLO}, 5, v{t0}")
    I(f"v_mul_u32_u24 v{vLO}, 40960, v{vLO}")
    I(f"v_and_b32 v{t0}, 31, v{t0}")
    I(f"v_lshl_add_u32 v{vLO}, v{t0}, 4, v{vLO}")
    I(f"v_lshrrev_b32 v{t0}, 1, v{t1}")
    I(f"v_lshl_add_u32 v{vLO}, v{t0}, 10, v{vLO}")
    I(f"v_and_b32 v{t0}, 1, v{t1}")
    I(f"v_lshl_add_u32 v{vLO}, v{t0}, 9, v{vLO}")
    I(f"v_mov_b32 v{t0}, 0x1000000")
    I(f"v_cmp_gt_u32 vcc, 32, v{LANE}")
    I(f"v_cndmask_b32 v{vLO}, v{t0}, v{vLO}, vcc")
    srd(k, 92, 14, 15, ACC_SIZE, ACC_OFF)
    I(f"s_mul_i32 s45, s2, 96")
    I(f"v_lshlrev_b32 v{t0}, 2, v0")
    I(f"v_mov_b32 v{t1}, 0x100000")
    I(f"v_cmp_gt_u32 vcc, 24, v0")
    I(f"v_cndmask_b32 v{t0}, v{t1}, v{t0}, vcc")
    I(f"v_mov_b32 v{t1}, 0")
    I(f"buffer_store_dword v{t1}, v{t0}, s[92:95], s45 offen")
    I(f"v_mov_b32 v{vZero}, 0")
    I(f"v_mov_b32 v{vOne}, 1")
    I(f"v_mov_b32 v{t1}, 0x100000")
    I(f"v_cmp_eq_u32 vcc, 0, v0")
    I(f"v_cndmask_b32 v{vAOff}, v{t1}, v{vZero}, vcc")
    k.I("s_memrealtime s[46:47]")
    k.I("s_waitcnt lgkmcnt(0)")
    k.I(f"s_or_b32 s{sNonce0}, s46, 1")
    k.I(f"v_mov_b32 v{vPoll}, s{sNonce0}")
    k.I(f"buffer_atomic_cmpswap v[{vPoll}:{vPoll+1}], v{vAOff}, s[{SDBG}:{SDBG+3}], 0 offen sc0 sc1", tag="nonce")
    I(f"v_lshrrev_b32 v{t1}, 5, v{LANE}")
    I(f"v_bfe_u32 v{t0}, v{LANE}, 1, 3")
    I(f"v_xor_b32 v{t0}, v{t0}, v{t1}")
    I(f"v_lshlrev_b32 v{t0}, 4, v{t0}")
    I(f"v_and_b32 v{vXR}, 31, v{LANE}")
    I(f"v_lshl_add_u32 v{vXR}, v{vXR}, 7, v{t0}")
    for j in range(1, 4):
        I(f"v_xor_b32 v{vXR+j}, {32*j}, v{vXR}")
        I(f"v_add_u32 v{vXR+j}, s{sX1}, v{vXR+j}")
    I(f"v_add_u32 v{vXR}, s{sX1}, v{vXR}")
    for j in range(4): I(f"v_add_u32 v{vXRh+j}, 0x10000, v{vXR+j}")
    a, b = t0, t1
    I(f"v_lshrrev_b32 v{b}, 5, v{LANE}")
    I(f"v_bfe_u32 v{a}, v{LANE}, 2, 2")
    I(f"v_lshl_add_u32 v{b}, v{b}, 3, v{a}")
    I(f"v_lshlrev_b32 v{b}, 8, v{b}")
    I(f"v_bfe_u32 v62, v{LANE}, 4, 1")
    I(f"v_lshl_add_u32 v{b}, v62, 5, v{b}")
    I(f"v_and_b32 v62, 3, v{LANE}")
    I(f"v_lshl_add_u32 v{b}, v62, 3, v{b}")
    for db in range(4):
        I(f"v_xor_b32 v62, {db}, v{a}")
        I(f"v_lshl_add_u32 v{vQ+db}, v62, 6, v{b}")
        I(f"v_add_u32 v{vQh+db}, 0x10000, v{vQ+db}")
        I(f"v_add_u32 v{vQg+db}, 0x20000, v{vQ+db}")
    I(f"v_lshlrev_b32 v{vL16}, 4, v{LANE}")
    I(f"v_mov_b32 v{vNINF}, 0xff800000")
    I(f"s_lshl_b32 s{sKVb}, s41, 6")
    I(f"s_lshl_b32 s{sT}, s42, 3")
    I(f"s_add_u32 s{sKVb}, s{sKVb}, s{sT}")
    I(f"s_lshl_b32 s{sT}, s40, 1")
    I(f"s_add_u32 s{sKVb}, s{sKVb}, s{sT}")
    I(f"s_lshl_b32 s{sKVb}, s{sKVb}, 14")
    I(f"s_mov_b32 s{sEPS}, {f32bits(1e-5)}")
    def tr_base(ldsoff):
        if ldsoff < 65536: return vQ, ldsoff
        if ldsoff < 131072: return vQh, ldsoff - 65536
        return vQg, ldsoff - 131072
    WR, XF = 64, 128
    def kv_reads(n):
        s, sp = n >> 2, n & 3
        out = []
        xo = XB(s)
        xr, xo = (vXR, xo) if xo < 65536 - 8192 else (vXRh, xo - 65536)
        for bb in range(2):
            r = XF + (n & 1)*8 + bb*4
            out.append(f"ds_read_b128 v[{r}:{r+3}], v{xr+sp} offset:{xo + bb*4096}")
        for db in range(4):
            for m in range(2):
                r = WR + (n & 1)*32 + m*16 + db*4
                base, o = tr_base(WB(s) + m*16384 + sp*4096)
                out.append(f"ds_read_b64_tr_b16 v[{r}:{r+1}], v{base+db} offset:{o}")
                out.append(f"ds_read_b64_tr_b16 v[{r+2}:{r+3}], v{base+db} offset:{o+1024}")
        return out
    def kv_mfmas(n):
        out = []
        for db in range(4):
            for m in range(2):
                w = WR + (n & 1)*32 + m*16 + db*4
                for bb in range(2):
                    x = XF + (n & 1)*8 + bb*4
                    d = m*128 + (db*2 + bb)*16
                    c = "0" if n == 0 else f"a[{d}:{d+15}]"
                    if m == 0: out.append(f"v_mfma_f32_32x32x16_bf16 a[{d}:{d+15}], v[{w}:{w+3}], v[{x}:{x+3}], {c}")
                    else:      out.append(f"v_mfma_f32_32x32x16_bf16 a[{d}:{d+15}], v[{x}:{x+3}], v[{w}:{w+3}], {c}")
        return out
    rec = Rec()
    ln_rows(rec, LNX, 5, 212, LNO, sEPS, T=24)
    lnq = list(rec.l)
    def ln_stores():
        for u in range(5):
            k.I(f"s_mov_b32 s{sT}, {u*8192}")
            k.I(f"buffer_store_dwordx4 v[{LNO+4*u}:{LNO+4*u+3}], v{vLO}, s[{SXNO}:{SXNO+3}], s{sT} offen sc1", tag="lnst")
    def lnload(u): k.I(f"buffer_load_dwordx4 v[{LNX+4*u}:{LNX+4*u+3}], v{vLX}, s[{SX}:{SX+3}], 0 offen offset:{256*u}", tag="lnx")
    QSLOT = {0: 4, 1: 5, 2: 0, 3: 1, 4: 6, 5: 7, 6: 2, 7: 3, 8: 8, 9: 9}
    C0 = 4
    XQV = [12, 16, 20, 24, 28, 36]
    def xq_reg(s, T):
        if s < 3: return "v", XQV[2*s + T]
        return "a", (8*((s - 3) % 32) + 4*T)
    def q_setup():
        r = Rec(); J = r.I
        J(f"s_mov_b32 s{SWQ}, s56"); J(f"s_mov_b32 s{SWQ+1}, s57"); J(f"s_mov_b32 s{SWQ+2}, {640*4096*2}"); J(f"s_mov_b32 s{SWQ+3}, 0x20000")
        J(f"s_add_u32 s{SXN}, s14, {XN_OFF}"); J(f"s_addc_u32 s{SXN+1}, s15, 0"); J(f"s_mov_b32 s{SXN+2}, {XN_SIZE}"); J(f"s_mov_b32 s{SXN+3}, 0x20000")
        J(f"s_lshl_b32 s{sT3}, s{sI}, 2")
        J(f"s_add_u32 s{sQblkA}, s{sT3}, s{sW}")
        J(f"s_sub_u32 s{sQblkB}, 60, s{sT3}")
        J(f"s_add_u32 s{sQblkB}, s{sQblkB}, s{sW}")
        J(f"s_mul_i32 s{sXA}, s{sQblkA}, 40960")
        J(f"s_mul_i32 s{sXB}, s{sQblkB}, 40960")
        return r.l
    def xq_load(s, T):
        c, r = xq_reg(s, T)
        k.I(f"s_add_u32 s{sT3}, s{sXA if T == 0 else sXB}, {s*1024}")
        k.I(f"buffer_load_dwordx4 {c}[{r}:{r+3}], v{vL16}, s[{SXN}:{SXN+3}], s{sT3} offen", tag=f"x{s}")
    def wq_one(g, u):
        k.I(f"s_add_u32 m0, s{sWL}, {QSLOT[g]*16384 + u*1024}")
        k.I(f"s_add_u32 s{sT3}, s{sWq}, {(64*g + 4*u)*8192}")
        k.I(f"buffer_load_dwordx4 v{vWQ}, s[{SWQ}:{SWQ+3}], s{sT3} offen {qnt} lds", tag=f"q{g}")
    def wq(g): return [lambda u=u: wq_one(g, u) for u in range(4)]
    SFL = 92
    sNonce = 47
    def flag_srd():
        k.I(f"s_add_u32 s{SFL}, s14, {FLG_OFF}"); k.I(f"s_addc_u32 s{SFL+1}, s15, 0")
        k.I(f"s_mov_b32 s{SFL+2}, {FLG_SIZE}"); k.I(f"s_mov_b32 s{SFL+3}, 0x20000")
    def get_nonce():
        k.wait_vm("nonce")
        k.I(f"v_readfirstlane_b32 s{sT3}, v{vPoll}")
        k.I(f"s_cmp_eq_u32 s{sT3}, 0")
        k.I(f"s_cselect_b32 s{sNonce}, s{sNonce}, s{sT3}")
        k.I(f"v_mov_b32 v{vOne}, s{sNonce}")
    def set_flag(soff_expr):
        flag_srd(); soff_expr()
        k.I(f"buffer_store_dword v{vOne}, v{vAOff}, s[{SFL}:{SFL+3}], s{sT3} offen sc1", tag="sig")
    def poll_issue(kind, tag):
        flag_srd()
        J = k.I
        if kind == "ln":
            J(f"s_lshl_b32 s{sT3}, s{sI}, 2")
            J(f"v_add_u32 v62, s{sT3}, v{LANE}")
            J(f"s_sub_u32 s{sT3}, 56, s{sT3}")
            J(f"v_add_u32 v63, s{sT3}, v{LANE}")
            J(f"v_cmp_gt_u32 vcc, 4, v{LANE}")
            J(f"v_cndmask_b32 v62, v63, v62, vcc")
            J(f"v_add_u32 v62, 32, v62")
            J(f"v_lshlrev_b32 v62, 7, v62")
        else:
            J(f"s_lshl_b32 s{sT3}, s{sH}, 7")
            J(f"v_lshlrev_b32 v62, 2, v{LANE}")
            J(f"v_add_u32 v62, s{sT3}, v62")
        J(f"v_mov_b32 v63, 0x100000")
        J(f"v_cmp_gt_u32 vcc, 8, v0")
        J(f"v_cndmask_b32 v{vPA}, v63, v62, vcc")
        ld = "buffer_load_dwordx4 v[%d:%d]" % (vPD, vPD+3) if kind == "ln" else "buffer_load_dword v%d" % vPD
        J(f"{ld}, v{vPA}, s[{SFL}:{SFL+3}], 0 offen sc1", tag=tag)
    def poll_check(kind, tag, name):
        k.wait_vm(tag)
        J = k.I
        nreg = 4 if kind == "ln" else 1
        ld = "buffer_load_dwordx4 v[%d:%d]" % (vPD, vPD+3) if kind == "ln" else "buffer_load_dword v%d" % vPD
        def test():
            J(f"v_cmp_eq_u32 vcc, v{vOne}, v{vPD}")
            for q in range(1, nreg):
                J(f"v_cmp_eq_u32 s[90:91], v{vOne}, v{vPD+q}")
                J(f"s_and_b64 vcc, vcc, s[90:91]")
            J(f"s_and_b32 s{sT3}, vcc_lo, 0xff")
            J(f"s_cmp_eq_u32 s{sT3}, 0xff")
        J(f"s_cmp_lg_u32 s{sW}, 0")
        J(f"s_cbranch_scc1 {name}_ok")
        test()
        J(f"s_cbranch_scc1 {name}_ok")
        J(f"s_mov_b32 s45, {SPIN_MAX}")
        k.L(name + "_spin")
        J("s_sleep 2")
        flag_srd()
        J(f"{ld}, v{vPA}, s[{SFL}:{SFL+3}], 0 offen sc1")
        k.vm.pop()
        J("s_waitcnt vmcnt(0)")
        J(f"s_sub_u32 s45, s45, 1")
        J(f"s_cbranch_scc1 {name}_ok")
        test()
        J(f"s_cbranch_scc0 {name}_spin")
        k.L(name + "_ok")
    def ln_flag():
        k.I(f"s_lshr_b32 s{sT3}, s2, 2"); k.I(f"s_add_u32 s{sT3}, s{sT3}, 32"); k.I(f"s_lshl_b32 s{sT3}, s{sT3}, 7")
        k.I(f"s_and_b32 s46, s2, 3"); k.I(f"s_lshl_b32 s46, s46, 2"); k.I(f"s_add_u32 s{sT3}, s{sT3}, s46")
    def kv_flag():
        k.I(f"s_lshl_b32 s{sT3}, s{sH}, 7"); k.I(f"s_lshl_b32 s46, s{sI}, 2"); k.I(f"s_add_u32 s{sT3}, s{sT3}, s46")
    def touch_wq():
        J = k.I
        J(f"s_mov_b32 s92, s56"); J(f"s_mov_b32 s93, s57"); J(f"s_mov_b32 s94, {640*4096*2}"); J(f"s_mov_b32 s95, 0x20000")
        J(f"s_mul_i32 s45, s42, 80"); J(f"s_mul_i32 s46, s40, 20"); J(f"s_add_u32 s45, s45, s46")
        J(f"s_lshl_b32 s45, s45, 13"); J(f"s_lshl_b32 s46, s41, 8"); J(f"s_add_u32 s45, s45, s46")
        J(f"v_lshrrev_b32 v62, 1, v{LANE}"); J(f"v_lshlrev_b32 v62, 13, v62"); J(f"v_and_b32 v63, 1, v{LANE}")
        J(f"v_lshl_add_u32 v62, v63, 7, v62"); J(f"v_mov_b32 v63, 0x2000000")
        J(f"v_cmp_gt_u32 vcc, 40, v{LANE}"); J(f"v_cndmask_b32 v62, v63, v62, vcc")
        J(f"buffer_load_dword v11, v62, s[92:95], s45 offen", tag="touch")
    def touch_xn():
        J = k.I
        J(f"s_and_b32 s45, s{sH}, 3"); J(f"s_mul_i32 s45, s45, 160")
        for j in range(3):
            J(f"v_add_u32 v62, s45, v{LANE}")
            if j: J(f"v_add_u32 v62, {64*j}, v62")
            J(f"v_subrev_u32 v63, 320, v62")
            J(f"v_cmp_gt_u32 vcc, 320, v62")
            J(f"v_cndmask_b32 v63, v63, v62, vcc")
            J(f"v_lshlrev_b32 v63, 7, v63")
            J(f"v_mov_b32 v62, s{sXB}")
            J(f"v_mov_b32 v53, s{sXA}")
            J(f"v_cndmask_b32 v62, v62, v53, vcc")
            J(f"v_add_u32 v63, v63, v62")
            if j == 2:
                J(f"v_mov_b32 v62, 0x2000000"); J(f"v_cmp_gt_u32 vcc, 32, v{LANE}"); J(f"v_cndmask_b32 v63, v62, v63, vcc")
            J(f"buffer_load_dword v11, v63, s[{SXN}:{SXN+3}], 0 offen", tag="touch")
    mark(k, diag, 2)
    memq = xd(2) + ([lambda: tx(6), lambda: tx(7)] if TOUCH else []) + [lambda u=u: lnload(u) for u in range(5)]
    k.wait_vm("W0", expect=8)
    I("s_barrier")
    for t in kv_reads(0): I(t)
    mark(k, diag, 3)
    lnstarted = False; setupq = []
    for n in range(32):
        s, sp = n >> 2, n & 3
        if sp == 3 and s < 7:
            I("s_waitcnt lgkmcnt(0)")
            if FINE and s == 0: mark(k, diag, 14)
            k.wait_vm(f"W{s+1}", expect=8)
            if FINE and s == 0: mark(k, diag, 15)
            if s + 1 == 4: k.wait_vm("lnst", expect=5)
            if s + 1 == 7: poll_check("ln", "poll1", "Lk12_ln")
            I("s_barrier")
            if s + 1 == 7:
                if xtouch: memq.append(touch_xn)
                for s_ in range(3):
                    for T in range(2): memq.append(lambda s_=s_, T=T: xq_load(s_, T))
            if s + 1 == 4: get_nonce(); set_flag(ln_flag)
            if s + 2 < 8: memq += wd(s + 2)
            if s + 3 < 8: memq += xd(s + 3)
            if s + 1 == 6: memq += [lambda l=q_setup(): [k.I(x) for x in l]] + wq(0) + wq(1)
            if s + 1 == 7: memq += wq(2) + wq(3) + wq(4) + wq(5)
        if touch_at is not None and n == touch_at: memq.append(touch_wq)
        if n == 24: poll_issue("ln", "poll1")
        reads = kv_reads(n + 1) if n + 1 < 32 else []
        for gi, m in enumerate(kv_mfmas(n)):
            I(m)
            for _ in range(2):
                if reads and gi < 12: I(reads.pop(0))
            if memq and (gi % 2 == 0 or n < 8): memq.pop(0)()
            if n >= 5 and lnq:
                if not lnstarted:
                    k.wait_vm("lnx"); lnstarted = True
                for _ in range(3 if gi < 10 else 4):
                    if lnq: I(lnq.pop(0))
                if not lnq: memq.append(ln_stores)
        assert not reads
        if FINE:
            if n in (0, 1, 2, 3, 4, 7): mark(k, diag, {0: 4, 1: 5, 2: 6, 3: 7, 4: 12, 7: 13}[n])
        elif n in (3, 11, 19, 31): mark(k, diag, {3: 4, 11: 5, 19: 6, 31: 7}[n])
    while memq: memq.pop(0)()
    assert not lnq
    I("s_barrier")
    gapq = wq(6) + wq(7) + wq(8) + wq(9)
    def qreads(n):
        g, s = n >> 2, n & 3
        F = WR + (n % 2)*16
        base, o = tr_base(QSLOT[g]*16384 + s*4096)
        out = []
        for db in range(4):
            out.append(f"ds_read_b64_tr_b16 v[{F+4*db}:{F+4*db+1}], v{base+db} offset:{o}")
            out.append(f"ds_read_b64_tr_b16 v[{F+4*db+2}:{F+4*db+3}], v{base+db} offset:{o+1024}")
        return out
    def kv_one(blk, u):
        k.I(f"s_add_u32 m0, s{sWL}, {((blk + C0) % 8)*16384}")
        k.I(f"s_add_u32 s{sT3}, s{sWL}, {blk*16384}")
        k.I(f"buffer_load_dwordx4 v{vL16}, s[{SKV}:{SKV+3}], s{sT3} offen offset:{u*1024} lds", tag=f"kv{blk}")
    def kv_closures(blk): return [lambda u=u: kv_one(blk, u) for u in range(4)]
    conv = []
    for j in range(32):
        st = 96 + (j % 8)*4
        for q in range(4):
            t_ = (52, 62)[q & 1]
            conv.append((j, f"v_accvgpr_read_b32 v{t_}, a{8*j+2*q}"))
            conv.append((j, f"v_accvgpr_read_b32 v{t_+1}, a{8*j+2*q+1}"))
            conv.append((j, f"v_cvt_pk_bf16_f32 v{st+q}, v{t_}, v{t_+1}"))
    freed = -1
    stored = -1
    xq_next = 3
    def pop_conv(cnt):
        nonlocal freed
        for _ in range(cnt):
            if not conv: return
            j, t_ = conv[0]
            if j - 8 > stored: return
            conv.pop(0); I(t_)
            if not conv or conv[0][0] != j: freed = j
    def pop_store():
        nonlocal stored
        j = stored + 1
        if j >= 32 or j > freed: return False
        t, half = j >> 1, j & 1
        m, db, bb = t >> 3, (t >> 1) & 3, t & 1
        within = (2*db + half)*1024 if m == 0 else 8192 + (db*2 + half)*1024
        st = 96 + (j % 8)*4
        k.I(f"s_add_u32 s{sT}, s{sKVb}, {bb*16384 + within}")
        k.I(f"buffer_store_dwordx4 v[{st}:{st+3}], v{vL16}, s[{SKVO}:{SKVO+3}], s{sT} offen {kvflags}", tag="kvst")
        stored = j
        return True
    I(f"s_lshl_b32 s{sT3}, s{sH}, 20")
    I(f"s_add_u32 s{sT3}, s{sT3}, {KV_OFF}")
    I(f"s_add_u32 s{SKV}, s14, s{sT3}")
    I(f"s_addc_u32 s{SKV+1}, s15, 0")
    I(f"s_lshl_b32 s{sT3}, s{sI}, 16")
    I(f"s_sub_u32 s{SKV+2}, {64*16384}, s{sT3}")
    I(f"s_mov_b32 s{SKV+3}, 0x20000")
    srd(k, SCTX, 14, 15, CTX_SIZE, CTX_OFF)
    k.wait_vm("q0", expect=4)
    I("s_barrier")
    for t in qreads(0): I(t)
    mark(k, diag, 8)
    next_store = 2
    for n in range(40):
        g, s = n >> 2, n & 3
        if s == 2:
            if g + 1 < 10: k.wait_vm(f"q{g+1}", expect=4)
            if n == FLAG_AT:
                assert stored == 31, stored
                k.wait_vm("kvst", expect=32)
            if FLAG_AT is not None and n == FLAG_AT + 4: poll_check("kv", "poll2", "Lk12_kv")
            I("s_barrier")
            if n == FLAG_AT:
                set_flag(kv_flag); poll_issue("kv", "poll2")
            if FLAG_AT is not None and n == FLAG_AT + 4:
                for blk in range(3): gapq += kv_closures(blk)
        reads = qreads(n + 1) if n + 1 < 40 else []
        k.wait_vm(f"x{n}", expect=2)
        F = WR + (n % 2)*16
        gi = 0
        for db in range(4):
            for T in range(2):
                d = QACC + (T*4 + db)*16
                c_, r_ = xq_reg(n, T)
                c = "0" if n == 0 else f"v[{d}:{d+15}]"
                I(f"v_mfma_f32_32x32x16_bf16 v[{d}:{d+15}], v[{F+4*db}:{F+4*db+3}], {c_}[{r_}:{r_+3}], {c}")
                if reads: I(reads.pop(0))
                did = False
                if xq_next < 40 and xq_next <= n + XLA:
                    need = (xq_next - 3) % 32
                    ok = (freed >= need) if xq_next - 3 < 32 else (n > xq_next - 32)
                    if ok:
                        xq_load(xq_next, gi & 1 if False else 0); xq_load(xq_next, 1); xq_next += 1; did = True
                if not did and (8*n + gi) >= next_store and pop_store(): did = True; next_store = 8*n + gi + STORE_EVERY
                if not did and gapq: gapq.pop(0)()
                pop_conv(3)
                gi += 1
    while gapq: gapq.pop(0)()
    while stored < 31:
        pop_conv(99); pop_store()
    mark(k, diag, 9)
    if FLAG_AT is None:
        k.wait_vm("kvst", expect=32)
        I("s_barrier")
        set_flag(kv_flag)
        poll_issue("kv", "poll2")
        def kv_start():
            poll_check("kv", "poll2", "Lk12_kv")
            k.I("s_barrier")
            for blk in range(8):
                for f in kv_closures(blk): f()
        lateq = [kv_start]
    else:
        I("s_barrier")
        lateq = []
        for blk in range(3, 8): lateq += kv_closures(blk)
    I(f"s_load_dwordx2 s[6:7], s[0:1], {KA['wo']}")
    I(f"s_load_dwordx4 s[8:11], s[0:1], {KA['wg']}")
    I(f"s_load_dwordx2 s[12:13], s[0:1], {KA['wd']}")
    for sq, sb in ((sQA, sQblkA), (sQB, sQblkB)):
        I(f"s_lshl_b32 s{sq}, s{sb}, 5")
        I(f"s_add_u32 s{sq}, s{sq}, s{sH}")
        I(f"s_lshl_b32 s{sq}, s{sq}, 13")
    I(f"s_mov_b32 s{sFlag}, {force_slow}")
    I("s_waitcnt lgkmcnt(0)")
    k2.MARK0 = 6
    att_part(k, diag, store_flags, C0, lateq, sQblkA, sQblkB, 0, "Lk12_end")
    finish_k2(k)
    return k, 256, 256, 163840
```

```python
import re
from common import *
import k2
from k2 import (LANE, vL16, vWQ, vNINF, vQ, vT, SXN, SWQ, SKV, SCTX, sW, sH, sI, sWL, sQA, sQB, sFlag, QACC, att_part, finish_k2)

SPIN_MAX = 1 << 22
import os
FINE = bool(os.environ.get('FINE'))

class Flat:
    def __init__(self, k): self.k = k; self.pend = []; self.mf = 0
    def emit(self, text, tag=None, age=3):
        k = self.k
        for line in text.split("\n"):
            line = line.strip()
            if not line: continue
            if line.endswith(":") or line.startswith(";"):
                k.I(line); continue
            it = Ins(line)
            if it.mn == "s_waitcnt":
                m = re.search(r"lgkmcnt\((\d+)\)", line)
                if m:
                    nn = int(m.group(1)); self.pend = self.pend[len(self.pend)-nn:] if 0 < nn < len(self.pend) else ([] if nn == 0 else self.pend)
            touched = set(it.src) | set(it.dst)
            if it.cls != "ds":
                need = -1
                for i, (d, _) in enumerate(self.pend):
                    if d & touched: need = i
                if need >= 0:
                    j = need
                    while j + 1 < len(self.pend) and self.mf - self.pend[j+1][1] >= age + 1: j += 1
                    nn = min(len(self.pend) - 1 - j, 15)
                    k.I(f"s_waitcnt lgkmcnt({nn})")
                    self.pend = self.pend[len(self.pend)-nn:] if nn > 0 else []
            if it.cls == "mfma": self.mf += 1
            if it.cls == "ds": self.pend.append((set(it.dst), self.mf))
            k.I(line, tag)

def gen_k12(diag=False, CODEPF=1, TOUCH=0, store_flags="sc1", wnt="nt", force_slow=0, STORE_EVERY=8, touch_at=12, qnt="", xtouch=False, FLAG_AT=None, kvflags=None, XLA=14):
    if kvflags is None: kvflags = store_flags
    k = Kern("k12_kernel")
    fl = Flat(k)
    I = fl.emit
    I("s_cmp_ge_u32 s2, 256")
    I("s_cbranch_scc1 Lk12_end")
    stamp_begin(k, diag)
    I(f"s_load_dwordx4 s[4:7], s[0:1], {KA['x']}")
    I(f"s_load_dwordx4 s[8:11], s[0:1], {KA['wuk']}")
    I(f"s_load_dwordx2 s[14:15], s[0:1], {KA['ws']}")
    I(f"s_load_dwordx2 s[56:57], s[0:1], {KA['wq']}")
    I(f"s_load_dwordx2 s[12:13], s[0:1], {KA['dbg']}")
    I("v_lshrrev_b32 v1, 6, v0")
    I(f"v_and_b32 v{LANE}, 63, v0")
    I("v_readfirstlane_b32 s40, v1")
    I("s_and_b32 s43, s2, 7")
    I("s_lshr_b32 s44, s2, 3")
    I("s_and_b32 s41, s44, 3")
    I("s_lshl_b32 s43, s43, 2")
    I("s_add_u32 s41, s41, s43")
    I("s_lshr_b32 s42, s44, 2")
    I("s_waitcnt lgkmcnt(0)")
    fl.pend = []
    mark(k, diag, 0)
    SX, SC, SWK, SWV, SKVO, SXNO, SDBG = 16, 20, 24, 28, 32, 36, 84
    srd(k, SC, 6, 7, 2048*512*2)
    srd(k, SWK, 8, 9, 512*4096*2)
    srd(k, SWV, 10, 11, 512*4096*2)
    vXA, vXB, vLX, vLO = 36, 37, 45, 46
    vXR, vXRh = 48, 40
    vQh, vQg = 32, 58
    t0, t1 = 52, 53
    vPoll, vZero, vAOff, vOne = 54, 55, 56, 57
    vPA, vPD = 47, 8+4
    sX0, sX1, sKVb, sT, sEPS = 48, 49, 52, 53, 54
    sQblkA, sQblkB, sXA, sXB, sWq = 56, 57, 58, 59, 88
    sT3, sPol = 43, 44
    sNonce0 = 47
    I(f"v_lshrrev_b32 v{t0}, 3, v{LANE}")
    I(f"v_lshlrev_b32 v{vXA}, 10, v{t0}")
    I(f"v_lshrrev_b32 v{t0}, 4, v{LANE}")
    I(f"v_and_b32 v{t1}, 7, v{LANE}")
    I(f"v_xor_b32 v{t0}, v{t0}, v{t1}")
    I(f"v_lshl_add_u32 v{vXA}, v{t0}, 4, v{vXA}")
    I(f"v_xor_b32 v{vXB}, 64, v{vXA}")
    I(f"s_lshl_b32 s{sX0}, s42, 8")
    I(f"s_lshl_b32 s{sT}, s40, 6")
    I(f"s_add_u32 s{sX0}, s{sX0}, s{sT}")
    I(f"s_lshl_b32 s{sX0}, s{sX0}, 10")
    I(f"s_lshl_b32 s{sX1}, s40, 13")
    I(f"v_lshrrev_b32 v{t0}, 4, v{LANE}")
    I(f"v_lshlrev_b32 v{vWQ}, 13, v{t0}")
    I(f"v_lshlrev_b32 v{t0}, 2, v{t0}")
    I(f"v_and_b32 v{t1}, 15, v{LANE}")
    I(f"v_xor_b32 v{t0}, v{t0}, v{t1}")
    I(f"v_lshl_add_u32 v{vWQ}, v{t0}, 4, v{vWQ}")
    I(f"s_lshl_b32 s{sWq}, s{sW}, 17")
    I(f"s_lshl_b32 s{sT}, s{sH}, 8")
    I(f"s_add_u32 s{sWq}, s{sWq}, s{sT}")
    I(f"s_lshl_b32 s{sWL}, s{sW}, 12")
    XB = lambda s: (s % 3)*32768
    WB = lambda s: 98304 + (s & 1)*32768
    def xdma_one(s, u):
        k.I(f"s_add_u32 m0, s{sX1}, {XB(s) + u*1024}")
        k.I(f"s_add_u32 s{sT}, s{sX0}, {u*8192 + s*128}")
        k.I(f"buffer_load_dwordx4 v{vXA if u % 2 == 0 else vXB}, s[{SC}:{SC+3}], s{sT} offen lds", tag=f"X{s}")
    def wdma_one(s, m, u):
        S = SWK if m == 0 else SWV
        k.I(f"s_add_u32 m0, s{sWL}, {WB(s) + m*16384 + u*1024}")
        k.I(f"s_add_u32 s{sT}, s{sWq}, {(64*s + 4*u)*8192}")
        k.I(f"buffer_load_dwordx4 v{vWQ}, s[{S}:{S+3}], s{sT} offen {wnt if (s == 0 or not TOUCH) else str()} lds", tag=f"W{s}")
    def xd(s): return [lambda u=u: xdma_one(s, u) for u in range(8)]
    def wd(s): return [lambda m=m, u=u: wdma_one(s, m, u) for m in range(2) for u in range(4)]
    vTX, vTW = 22, 23
    sTX, sTW = 55, 89
    if TOUCH:
        J = k.I
        J(f"s_and_b32 s45, s{sH}, 3"); J(f"s_lshl_b32 s45, s45, 6"); J(f"s_lshl_b32 s46, s42, 8"); J(f"s_add_u32 s45, s45, s46")
        J(f"s_lshl_b32 s{sTX}, s45, 10")
        J(f"v_lshlrev_b32 v{vTX}, 10, v{LANE}")
        J(f"v_mov_b32 v10, 0x2000000")
        J(f"v_cmp_gt_u32 vcc, 64, v0"); J(f"v_cndmask_b32 v{vTX}, v10, v{vTX}, vcc")
        J(f"s_lshl_b32 s45, s42, 16"); J(f"s_lshl_b32 s46, s{sH}, 8"); J(f"s_add_u32 s{sTW}, s45, s46")
        J(f"v_lshrrev_b32 v{vTW}, 1, v{LANE}"); J(f"v_lshlrev_b32 v{vTW}, 13, v{vTW}")
        J(f"v_and_b32 v11, 1, v{LANE}"); J(f"v_lshl_add_u32 v{vTW}, v11, 7, v{vTW}")
        J(f"v_cmp_gt_u32 vcc, 16, v{LANE}"); J(f"v_cndmask_b32 v{vTW}, v10, v{vTW}, vcc")
        J(f"s_cmp_eq_u32 s{sW}, 2")
        J(f"s_cselect_b32 s64, s{SWV}, s{SWK}"); J(f"s_cselect_b32 s65, s{SWV+1}, s{SWK+1}")
        J(f"s_sub_u32 s45, s{sW}, 1"); J(f"s_cmp_lt_u32 s45, 2")
        J(f"s_cselect_b32 s66, {512*4096*2}, 0"); J(f"s_mov_b32 s67, 0x20000")
    def tx(S):
        k.I(f"s_add_u32 s{sT}, s{sTX}, {S*128}")
        k.I(f"buffer_load_dword v21, v{vTX}, s[{SC}:{SC+3}], s{sT} offen", tag="touch")
        k.I(f"s_add_u32 s{sT}, s{sTW}, {64*S*8192}")
        k.I(f"buffer_load_dword v21, v{vTW}, s[64:67], s{sT} offen", tag="touch")
    if TOUCH:
        tx(1); tx(2)
        for f in xd(0)[:4] + wd(0)[:4] + xd(0)[4:] + wd(0)[4:]: f()
        tx(3)
        for f in xd(1) + wd(1): f()
        tx(4); tx(5)
    else:
        for f in xd(0)[:4] + wd(0)[:4] + xd(0)[4:] + wd(0)[4:]: f()
        if CODEPF:
            J = k.I
            J("s_getpc_b64 s[64:65]")
            k.L("Lk12_pc")
            J("s_sub_u32 s64, s64, Lk12_pc-k12_kernel")
            J("s_subb_u32 s65, s65, 0")
            J("s_mov_b32 s66, Lcode_end-k12_kernel")
            J("s_mov_b32 s67, 0x20000")
            J("s_lshr_b32 s45, s2, 3")
            J("s_mul_i32 s45, s45, " + str(24*128))
            J(f"v_lshlrev_b32 v10, 7, v{LANE}")
            J("v_mov_b32 v11, 0x2000000")
            J("v_cmp_gt_u32 vcc, 24, v0")
            J("v_cndmask_b32 v10, v11, v10, vcc")
            J("buffer_load_dword v21, v10, s[64:67], s45 offen", tag="codepf")
        for f in xd(1) + wd(1): f()
    mark(k, diag, 1)
    srd(k, SX, 4, 5, 2048*640*2)
    srd(k, SKVO, 14, 15, KV_SIZE, KV_OFF)
    srd(k, SXNO, 14, 15, XN_SIZE, XN_OFF)
    srd(k, SDBG, 12, 13, 256)
    I(f"v_bfe_u32 v{t0}, v{LANE}, 4, 1")
    I("s_lshl_b32 s45, s2, 3")
    I("s_lshl_b32 s46, s40, 1")
    I("s_add_u32 s45, s45, s46")
    I(f"v_add_u32 v{t0}, s45, v{t0}")
    I(f"v_and_b32 v{t1}, 15, v{LANE}")
    I(f"v_mul_u32_u24 v{vLX}, 1280, v{t0}")
    I(f"v_lshl_add_u32 v{vLX}, v{t1}, 4, v{vLX}")
    LNX, LNO = 192, 144
    I(f"v_lshrrev_b32 v{vLO}, 5, v{t0}")
    I(f"v_mul_u32_u24 v{vLO}, 40960, v{vLO}")
    I(f"v_and_b32 v{t0}, 31, v{t0}")
    I(f"v_lshl_add_u32 v{vLO}, v{t0}, 4, v{vLO}")
    I(f"v_lshrrev_b32 v{t0}, 1, v{t1}")
    I(f"v_lshl_add_u32 v{vLO}, v{t0}, 10, v{vLO}")
    I(f"v_and_b32 v{t0}, 1, v{t1}")
    I(f"v_lshl_add_u32 v{vLO}, v{t0}, 9, v{vLO}")
    I(f"v_mov_b32 v{t0}, 0x1000000")
    I(f"v_cmp_gt_u32 vcc, 32, v{LANE}")
    I(f"v_cndmask_b32 v{vLO}, v{t0}, v{vLO}, vcc")
    srd(k, 92, 14, 15, ACC_SIZE, ACC_OFF)
    I(f"s_mul_i32 s45, s2, 96")
    I(f"v_lshlrev_b32 v{t0}, 2, v0")
    I(f"v_mov_b32 v{t1}, 0x100000")
    I(f"v_cmp_gt_u32 vcc, 24, v0")
    I(f"v_cndmask_b32 v{t0}, v{t1}, v{t0}, vcc")
    I(f"v_mov_b32 v{t1}, 0")
    I(f"buffer_store_dword v{t1}, v{t0}, s[92:95], s45 offen")
    I(f"v_mov_b32 v{vZero}, 0")
    I(f"v_mov_b32 v{vOne}, 1")
    I(f"v_mov_b32 v{t1}, 0x100000")
    I(f"v_cmp_eq_u32 vcc, 0, v0")
    I(f"v_cndmask_b32 v{vAOff}, v{t1}, v{vZero}, vcc")
    k.I("s_memrealtime s[46:47]")
    k.I("s_waitcnt lgkmcnt(0)")
    k.I(f"s_or_b32 s{sNonce0}, s46, 1")
    k.I(f"v_mov_b32 v{vPoll}, s{sNonce0}")
    k.I(f"buffer_atomic_cmpswap v[{vPoll}:{vPoll+1}], v{vAOff}, s[{SDBG}:{SDBG+3}], 0 offen sc0 sc1", tag="nonce")
    I(f"v_lshrrev_b32 v{t1}, 5, v{LANE}")
    I(f"v_bfe_u32 v{t0}, v{LANE}, 1, 3")
    I(f"v_xor_b32 v{t0}, v{t0}, v{t1}")
    I(f"v_lshlrev_b32 v{t0}, 4, v{t0}")
    I(f"v_and_b32 v{vXR}, 31, v{LANE}")
    I(f"v_lshl_add_u32 v{vXR}, v{vXR}, 7, v{t0}")
    for j in range(1, 4):
        I(f"v_xor_b32 v{vXR+j}, {32*j}, v{vXR}")
        I(f"v_add_u32 v{vXR+j}, s{sX1}, v{vXR+j}")
    I(f"v_add_u32 v{vXR}, s{sX1}, v{vXR}")
    for j in range(4): I(f"v_add_u32 v{vXRh+j}, 0x10000, v{vXR+j}")
    a, b = t0, t1
    I(f"v_lshrrev_b32 v{b}, 5, v{LANE}")
    I(f"v_bfe_u32 v{a}, v{LANE}, 2, 2")
    I(f"v_lshl_add_u32 v{b}, v{b}, 3, v{a}")
    I(f"v_lshlrev_b32 v{b}, 8, v{b}")
    I(f"v_bfe_u32 v62, v{LANE}, 4, 1")
    I(f"v_lshl_add_u32 v{b}, v62, 5, v{b}")
    I(f"v_and_b32 v62, 3, v{LANE}")
    I(f"v_lshl_add_u32 v{b}, v62, 3, v{b}")
    for db in range(4):
        I(f"v_xor_b32 v62, {db}, v{a}")
        I(f"v_lshl_add_u32 v{vQ+db}, v62, 6, v{b}")
        I(f"v_add_u32 v{vQh+db}, 0x10000, v{vQ+db}")
        I(f"v_add_u32 v{vQg+db}, 0x20000, v{vQ+db}")
    I(f"v_lshlrev_b32 v{vL16}, 4, v{LANE}")
    I(f"v_mov_b32 v{vNINF}, 0xff800000")
    I(f"s_lshl_b32 s{sKVb}, s41, 6")
    I(f"s_lshl_b32 s{sT}, s42, 3")
    I(f"s_add_u32 s{sKVb}, s{sKVb}, s{sT}")
    I(f"s_lshl_b32 s{sT}, s40, 1")
    I(f"s_add_u32 s{sKVb}, s{sKVb}, s{sT}")
    I(f"s_lshl_b32 s{sKVb}, s{sKVb}, 14")
    I(f"s_mov_b32 s{sEPS}, {f32bits(1e-5)}")
    def tr_base(ldsoff):
        if ldsoff < 65536: return vQ, ldsoff
        if ldsoff < 131072: return vQh, ldsoff - 65536
        return vQg, ldsoff - 131072
    WR, XF = 64, 128
    def kv_reads(n):
        s, sp = n >> 2, n & 3
        out = []
        xo = XB(s)
        xr, xo = (vXR, xo) if xo < 65536 - 8192 else (vXRh, xo - 65536)
        for bb in range(2):
            r = XF + (n & 1)*8 + bb*4
            out.append(f"ds_read_b128 v[{r}:{r+3}], v{xr+sp} offset:{xo + bb*4096}")
        for db in range(4):
            for m in range(2):
                r = WR + (n & 1)*32 + m*16 + db*4
                base, o = tr_base(WB(s) + m*16384 + sp*4096)
                out.append(f"ds_read_b64_tr_b16 v[{r}:{r+1}], v{base+db} offset:{o}")
                out.append(f"ds_read_b64_tr_b16 v[{r+2}:{r+3}], v{base+db} offset:{o+1024}")
        return out
    def kv_mfmas(n):
        out = []
        for db in range(4):
            for m in range(2):
                w = WR + (n & 1)*32 + m*16 + db*4
                for bb in range(2):
                    x = XF + (n & 1)*8 + bb*4
                    d = m*128 + (db*2 + bb)*16
                    c = "0" if n == 0 else f"a[{d}:{d+15}]"
                    if m == 0: out.append(f"v_mfma_f32_32x32x16_bf16 a[{d}:{d+15}], v[{w}:{w+3}], v[{x}:{x+3}], {c}")
                    else:      out.append(f"v_mfma_f32_32x32x16_bf16 a[{d}:{d+15}], v[{x}:{x+3}], v[{w}:{w+3}], {c}")
        return out
    rec = Rec()
    ln_rows(rec, LNX, 5, 212, LNO, sEPS, T=24)
    lnq = list(rec.l)
    def ln_stores():
        for u in range(5):
            k.I(f"s_mov_b32 s{sT}, {u*8192}")
            k.I(f"buffer_store_dwordx4 v[{LNO+4*u}:{LNO+4*u+3}], v{vLO}, s[{SXNO}:{SXNO+3}], s{sT} offen sc1", tag="lnst")
    def lnload(u): k.I(f"buffer_load_dwordx4 v[{LNX+4*u}:{LNX+4*u+3}], v{vLX}, s[{SX}:{SX+3}], 0 offen offset:{256*u}", tag="lnx")
    QSLOT = {0: 4, 1: 5, 2: 0, 3: 1, 4: 6, 5: 7, 6: 2, 7: 3, 8: 8, 9: 9}
    C0 = 4
    XQV = [12, 16, 20, 24, 28, 36]
    def xq_reg(s, T):
        if s < 3: return "v", XQV[2*s + T]
        return "a", (8*((s - 3) % 32) + 4*T)
    def q_setup():
        r = Rec(); J = r.I
        J(f"s_mov_b32 s{SWQ}, s56"); J(f"s_mov_b32 s{SWQ+1}, s57"); J(f"s_mov_b32 s{SWQ+2}, {640*4096*2}"); J(f"s_mov_b32 s{SWQ+3}, 0x20000")
        J(f"s_add_u32 s{SXN}, s14, {XN_OFF}"); J(f"s_addc_u32 s{SXN+1}, s15, 0"); J(f"s_mov_b32 s{SXN+2}, {XN_SIZE}"); J(f"s_mov_b32 s{SXN+3}, 0x20000")
        J(f"s_lshl_b32 s{sT3}, s{sI}, 2")
        J(f"s_add_u32 s{sQblkA}, s{sT3}, s{sW}")
        J(f"s_sub_u32 s{sQblkB}, 60, s{sT3}")
        J(f"s_add_u32 s{sQblkB}, s{sQblkB}, s{sW}")
        J(f"s_mul_i32 s{sXA}, s{sQblkA}, 40960")
        J(f"s_mul_i32 s{sXB}, s{sQblkB}, 40960")
        return r.l
    def xq_load(s, T):
        c, r = xq_reg(s, T)
        k.I(f"s_add_u32 s{sT3}, s{sXA if T == 0 else sXB}, {s*1024}")
        k.I(f"buffer_load_dwordx4 {c}[{r}:{r+3}], v{vL16}, s[{SXN}:{SXN+3}], s{sT3} offen", tag=f"x{s}")
    def wq_one(g, u):
        k.I(f"s_add_u32 m0, s{sWL}, {QSLOT[g]*16384 + u*1024}")
        k.I(f"s_add_u32 s{sT3}, s{sWq}, {(64*g + 4*u)*8192}")
        k.I(f"buffer_load_dwordx4 v{vWQ}, s[{SWQ}:{SWQ+3}], s{sT3} offen {qnt} lds", tag=f"q{g}")
    def wq(g): return [lambda u=u: wq_one(g, u) for u in range(4)]
    SFL = 92
    sNonce = 47
    def flag_srd():
        k.I(f"s_add_u32 s{SFL}, s14, {FLG_OFF}"); k.I(f"s_addc_u32 s{SFL+1}, s15, 0")
        k.I(f"s_mov_b32 s{SFL+2}, {FLG_SIZE}"); k.I(f"s_mov_b32 s{SFL+3}, 0x20000")
    def get_nonce():
        k.wait_vm("nonce")
        k.I(f"v_readfirstlane_b32 s{sT3}, v{vPoll}")
        k.I(f"s_cmp_eq_u32 s{sT3}, 0")
        k.I(f"s_cselect_b32 s{sNonce}, s{sNonce}, s{sT3}")
        k.I(f"v_mov_b32 v{vOne}, s{sNonce}")
    def set_flag(soff_expr):
        flag_srd(); soff_expr()
        k.I(f"buffer_store_dword v{vOne}, v{vAOff}, s[{SFL}:{SFL+3}], s{sT3} offen sc1", tag="sig")
    def poll_issue(kind, tag):
        flag_srd()
        J = k.I
        if kind == "ln":
            J(f"s_lshl_b32 s{sT3}, s{sI}, 2")
            J(f"v_add_u32 v62, s{sT3}, v{LANE}")
            J(f"s_sub_u32 s{sT3}, 56, s{sT3}")
            J(f"v_add_u32 v63, s{sT3}, v{LANE}")
            J(f"v_cmp_gt_u32 vcc, 4, v{LANE}")
            J(f"v_cndmask_b32 v62, v63, v62, vcc")
            J(f"v_add_u32 v62, 32, v62")
            J(f"v_lshlrev_b32 v62, 7, v62")
        else:
            J(f"s_lshl_b32 s{sT3}, s{sH}, 7")
            J(f"v_lshlrev_b32 v62, 2, v{LANE}")
            J(f"v_add_u32 v62, s{sT3}, v62")
        J(f"v_mov_b32 v63, 0x100000")
        J(f"v_cmp_gt_u32 vcc, 8, v0")
        J(f"v_cndmask_b32 v{vPA}, v63, v62, vcc")
        ld = "buffer_load_dwordx4 v[%d:%d]" % (vPD, vPD+3) if kind == "ln" else "buffer_load_dword v%d" % vPD
        J(f"{ld}, v{vPA}, s[{SFL}:{SFL+3}], 0 offen sc1", tag=tag)
    def poll_check(kind, tag, name):
        k.wait_vm(tag)
        J = k.I
        nreg = 4 if kind == "ln" else 1
        ld = "buffer_load_dwordx4 v[%d:%d]" % (vPD, vPD+3) if kind == "ln" else "buffer_load_dword v%d" % vPD
        def test():
            J(f"v_cmp_eq_u32 vcc, v{vOne}, v{vPD}")
            for q in range(1, nreg):
                J(f"v_cmp_eq_u32 s[90:91], v{vOne}, v{vPD+q}")
                J(f"s_and_b64 vcc, vcc, s[90:91]")
            J(f"s_and_b32 s{sT3}, vcc_lo, 0xff")
            J(f"s_cmp_eq_u32 s{sT3}, 0xff")
        J(f"s_cmp_lg_u32 s{sW}, 0")
        J(f"s_cbranch_scc1 {name}_ok")
        test()
        J(f"s_cbranch_scc1 {name}_ok")
        J(f"s_mov_b32 s45, {SPIN_MAX}")
        k.L(name + "_spin")
        J("s_sleep 2")
        flag_srd()
        J(f"{ld}, v{vPA}, s[{SFL}:{SFL+3}], 0 offen sc1")
        k.vm.pop()
        J("s_waitcnt vmcnt(0)")
        J(f"s_sub_u32 s45, s45, 1")
        J(f"s_cbranch_scc1 {name}_ok")
        test()
        J(f"s_cbranch_scc0 {name}_spin")
        k.L(name + "_ok")
    def ln_flag():
        k.I(f"s_lshr_b32 s{sT3}, s2, 2"); k.I(f"s_add_u32 s{sT3}, s{sT3}, 32"); k.I(f"s_lshl_b32 s{sT3}, s{sT3}, 7")
        k.I(f"s_and_b32 s46, s2, 3"); k.I(f"s_lshl_b32 s46, s46, 2"); k.I(f"s_add_u32 s{sT3}, s{sT3}, s46")
    def kv_flag():
        k.I(f"s_lshl_b32 s{sT3}, s{sH}, 7"); k.I(f"s_lshl_b32 s46, s{sI}, 2"); k.I(f"s_add_u32 s{sT3}, s{sT3}, s46")
    def touch_wq():
        J = k.I
        J(f"s_mov_b32 s92, s56"); J(f"s_mov_b32 s93, s57"); J(f"s_mov_b32 s94, {640*4096*2}"); J(f"s_mov_b32 s95, 0x20000")
        J(f"s_mul_i32 s45, s42, 80"); J(f"s_mul_i32 s46, s40, 20"); J(f"s_add_u32 s45, s45, s46")
        J(f"s_lshl_b32 s45, s45, 13"); J(f"s_lshl_b32 s46, s41, 8"); J(f"s_add_u32 s45, s45, s46")
        J(f"v_lshrrev_b32 v62, 1, v{LANE}"); J(f"v_lshlrev_b32 v62, 13, v62"); J(f"v_and_b32 v63, 1, v{LANE}")
        J(f"v_lshl_add_u32 v62, v63, 7, v62"); J(f"v_mov_b32 v63, 0x2000000")
        J(f"v_cmp_gt_u32 vcc, 40, v{LANE}"); J(f"v_cndmask_b32 v62, v63, v62, vcc")
        J(f"buffer_load_dword v11, v62, s[92:95], s45 offen", tag="touch")
    def touch_xn():
        J = k.I
        J(f"s_and_b32 s45, s{sH}, 3"); J(f"s_mul_i32 s45, s45, 160")
        for j in range(3):
            J(f"v_add_u32 v62, s45, v{LANE}")
            if j: J(f"v_add_u32 v62, {64*j}, v62")
            J(f"v_subrev_u32 v63, 320, v62")
            J(f"v_cmp_gt_u32 vcc, 320, v62")
            J(f"v_cndmask_b32 v63, v63, v62, vcc")
            J(f"v_lshlrev_b32 v63, 7, v63")
            J(f"v_mov_b32 v62, s{sXB}")
            J(f"v_mov_b32 v53, s{sXA}")
            J(f"v_cndmask_b32 v62, v62, v53, vcc")
            J(f"v_add_u32 v63, v63, v62")
            if j == 2:
                J(f"v_mov_b32 v62, 0x2000000"); J(f"v_cmp_gt_u32 vcc, 32, v{LANE}"); J(f"v_cndmask_b32 v63, v62, v63, vcc")
            J(f"buffer_load_dword v11, v63, s[{SXN}:{SXN+3}], 0 offen", tag="touch")
    mark(k, diag, 2)
    memq = xd(2) + ([lambda: tx(6), lambda: tx(7)] if TOUCH else []) + [lambda u=u: lnload(u) for u in range(5)]
    k.wait_vm("W0", expect=8)
    I("s_barrier")
    for t in kv_reads(0): I(t)
    mark(k, diag, 3)
    lnstarted = False; setupq = []
    for n in range(32):
        s, sp = n >> 2, n & 3
        if sp == 3 and s < 7:
            I("s_waitcnt lgkmcnt(0)")
            if FINE and s == 0: mark(k, diag, 14)
            k.wait_vm(f"W{s+1}", expect=8)
            if FINE and s == 0: mark(k, diag, 15)
            if s + 1 == 4: k.wait_vm("lnst", expect=5)
            if s + 1 == 7: poll_check("ln", "poll1", "Lk12_ln")
            I("s_barrier")
            if s + 1 == 7:
                if xtouch: memq.append(touch_xn)
                for s_ in range(3):
                    for T in range(2): memq.append(lambda s_=s_, T=T: xq_load(s_, T))
            if s + 1 == 4: get_nonce(); set_flag(ln_flag)
            if s + 2 < 8: memq += wd(s + 2)
            if s + 3 < 8: memq += xd(s + 3)
            if s + 1 == 6: memq += [lambda l=q_setup(): [k.I(x) for x in l]] + wq(0) + wq(1)
            if s + 1 == 7: memq += wq(2) + wq(3) + wq(4) + wq(5)
        if touch_at is not None and n == touch_at: memq.append(touch_wq)
        if n == 24: poll_issue("ln", "poll1")
        reads = kv_reads(n + 1) if n + 1 < 32 else []
        for gi, m in enumerate(kv_mfmas(n)):
            I(m)
            for _ in range(2):
                if reads and gi < 12: I(reads.pop(0))
            if memq and (gi % 2 == 0 or n < 8): memq.pop(0)()
            if n >= 5 and lnq:
                if not lnstarted:
                    k.wait_vm("lnx"); lnstarted = True
                for _ in range(3 if gi < 10 else 4):
                    if lnq: I(lnq.pop(0))
                if not lnq: memq.append(ln_stores)
        assert not reads
        if FINE:
            if n in (0, 1, 2, 3, 4, 7): mark(k, diag, {0: 4, 1: 5, 2: 6, 3: 7, 4: 12, 7: 13}[n])
        elif n in (3, 11, 19, 31): mark(k, diag, {3: 4, 11: 5, 19: 6, 31: 7}[n])
    while memq: memq.pop(0)()
    assert not lnq
    I("s_barrier")
    gapq = wq(6) + wq(7) + wq(8) + wq(9)
    def qreads(n):
        g, s = n >> 2, n & 3
        F = WR + (n % 2)*16
        base, o = tr_base(QSLOT[g]*16384 + s*4096)
        out = []
        for db in range(4):
            out.append(f"ds_read_b64_tr_b16 v[{F+4*db}:{F+4*db+1}], v{base+db} offset:{o}")
            out.append(f"ds_read_b64_tr_b16 v[{F+4*db+2}:{F+4*db+3}], v{base+db} offset:{o+1024}")
        return out
    def kv_one(blk, u):
        k.I(f"s_add_u32 m0, s{sWL}, {((blk + C0) % 8)*16384}")
        k.I(f"s_add_u32 s{sT3}, s{sWL}, {blk*16384}")
        k.I(f"buffer_load_dwordx4 v{vL16}, s[{SKV}:{SKV+3}], s{sT3} offen offset:{u*1024} lds", tag=f"kv{blk}")
    def kv_closures(blk): return [lambda u=u: kv_one(blk, u) for u in range(4)]
    conv = []
    for j in range(32):
        st = 96 + (j % 8)*4
        for q in range(4):
            t_ = (52, 62)[q & 1]
            conv.append((j, f"v_accvgpr_read_b32 v{t_}, a{8*j+2*q}"))
            conv.append((j, f"v_accvgpr_read_b32 v{t_+1}, a{8*j+2*q+1}"))
            conv.append((j, f"v_cvt_pk_bf16_f32 v{st+q}, v{t_}, v{t_+1}"))
    freed = -1
    stored = -1
    xq_next = 3
    def pop_conv(cnt):
        nonlocal freed
        for _ in range(cnt):
            if not conv: return
            j, t_ = conv[0]
            if j - 8 > stored: return
            conv.pop(0); I(t_)
            if not conv or conv[0][0] != j: freed = j
    def pop_store():
        nonlocal stored
        j = stored + 1
        if j >= 32 or j > freed: return False
        t, half = j >> 1, j & 1
        m, db, bb = t >> 3, (t >> 1) & 3, t & 1
        within = (2*db + half)*1024 if m == 0 else 8192 + (db*2 + half)*1024
        st = 96 + (j % 8)*4
        k.I(f"s_add_u32 s{sT}, s{sKVb}, {bb*16384 + within}")
        k.I(f"buffer_store_dwordx4 v[{st}:{st+3}], v{vL16}, s[{SKVO}:{SKVO+3}], s{sT} offen {kvflags}", tag="kvst")
        stored = j
        return True
    I(f"s_lshl_b32 s{sT3}, s{sH}, 20")
    I(f"s_add_u32 s{sT3}, s{sT3}, {KV_OFF}")
    I(f"s_add_u32 s{SKV}, s14, s{sT3}")
    I(f"s_addc_u32 s{SKV+1}, s15, 0")
    I(f"s_lshl_b32 s{sT3}, s{sI}, 16")
    I(f"s_sub_u32 s{SKV+2}, {64*16384}, s{sT3}")
    I(f"s_mov_b32 s{SKV+3}, 0x20000")
    srd(k, SCTX, 14, 15, CTX_SIZE, CTX_OFF)
    k.wait_vm("q0", expect=4)
    I("s_barrier")
    for t in qreads(0): I(t)
    mark(k, diag, 8)
    next_store = 2
    for n in range(40):
        g, s = n >> 2, n & 3
        if s == 2:
            if g + 1 < 10: k.wait_vm(f"q{g+1}", expect=4)
            if n == FLAG_AT:
                assert stored == 31, stored
                k.wait_vm("kvst", expect=32)
            if FLAG_AT is not None and n == FLAG_AT + 4: poll_check("kv", "poll2", "Lk12_kv")
            I("s_barrier")
            if n == FLAG_AT:
                set_flag(kv_flag); poll_issue("kv", "poll2")
            if FLAG_AT is not None and n == FLAG_AT + 4:
                for blk in range(3): gapq += kv_closures(blk)
        reads = qreads(n + 1) if n + 1 < 40 else []
        k.wait_vm(f"x{n}", expect=2)
        F = WR + (n % 2)*16
        gi = 0
        for db in range(4):
            for T in range(2):
                d = QACC + (T*4 + db)*16
                c_, r_ = xq_reg(n, T)
                c = "0" if n == 0 else f"v[{d}:{d+15}]"
                I(f"v_mfma_f32_32x32x16_bf16 v[{d}:{d+15}], v[{F+4*db}:{F+4*db+3}], {c_}[{r_}:{r_+3}], {c}")
                if reads: I(reads.pop(0))
                did = False
                if xq_next < 40 and xq_next <= n + XLA:
                    need = (xq_next - 3) % 32
                    ok = (freed >= need) if xq_next - 3 < 32 else (n > xq_next - 32)
                    if ok:
                        xq_load(xq_next, gi & 1 if False else 0); xq_load(xq_next, 1); xq_next += 1; did = True
                if not did and (8*n + gi) >= next_store and pop_store(): did = True; next_store = 8*n + gi + STORE_EVERY
                if not did and gapq: gapq.pop(0)()
                pop_conv(3)
                gi += 1
    while gapq: gapq.pop(0)()
    while stored < 31:
        pop_conv(99); pop_store()
    mark(k, diag, 9)
    if FLAG_AT is None:
        k.wait_vm("kvst", expect=32)
        I("s_barrier")
        set_flag(kv_flag)
        poll_issue("kv", "poll2")
        def kv_start():
            poll_check("kv", "poll2", "Lk12_kv")
            k.I("s_barrier")
            for blk in range(8):
                for f in kv_closures(blk): f()
        lateq = [kv_start]
    else:
        I("s_barrier")
        lateq = []
        for blk in range(3, 8): lateq += kv_closures(blk)
    I(f"s_load_dwordx2 s[6:7], s[0:1], {KA['wo']}")
    I(f"s_load_dwordx4 s[8:11], s[0:1], {KA['wg']}")
    I(f"s_load_dwordx2 s[12:13], s[0:1], {KA['wd']}")
    for sq, sb in ((sQA, sQblkA), (sQB, sQblkB)):
        I(f"s_lshl_b32 s{sq}, s{sb}, 5")
        I(f"s_add_u32 s{sq}, s{sq}, s{sH}")
        I(f"s_lshl_b32 s{sq}, s{sq}, 13")
    I(f"s_mov_b32 s{sFlag}, {force_slow}")
    I("s_waitcnt lgkmcnt(0)")
    k2.MARK0 = 6
    att_part(k, diag, store_flags, C0, lateq, sQblkA, sQblkB, 0, "Lk12_end")
    finish_k2(k)
    return k, 256, 256, 163840
```

```python
from asmlib import *

KA = dict(x=0, ckv=8, wq=16, wuk=24, wuv=32, wo=40, bx=48, wr=56, wg=64, wu=72, wd=80, out=88, dbg=96, ws=104)
MB = 1 << 20
import os as _os
WSBASE = int(_os.environ.get('WSBASE', '0')) * MB
XN_OFF = WSBASE + 0;            XN_SIZE = 2048 * 640 * 2
KV_OFF = WSBASE + 4 * MB;       KV_SIZE = 32 * MB
CTX_OFF = WSBASE + 40 * MB;     CTX_SIZE = 16 * MB
H_OFF = WSBASE + 60 * MB;       H_SIZE = 2048 * 640 * 2
ST_OFF = WSBASE + 64 * MB;      ST_SIZE = 8 * 2048 * 16
ACC_OFF = WSBASE + 65 * MB;     ACC_SIZE = 3 * 2048 * 4
SEL_OFF = WSBASE + 65 * MB + 65536; SEL_SIZE = 4096
YP_OFF = WSBASE + 66 * MB;      YP_SIZE = 54 * 2 * 640 * 4
WOT_OFF = WSBASE + 68 * MB;     WOT_SIZE = 4096 * 640 * 2
FLG_OFF = WSBASE + 65 * MB + 131072; FLG_SIZE = 304 * 128
PART_OFF = WSBASE + 76 * MB;   PART_SIZE = 64 * 16 * 10240
RT_OFF = WSBASE + 65 * MB + 196608; RT_SIZE = 2048 * 16
STAMP_OFF = 100 * MB
QSCALE = (128 ** -0.5) * 1.4426950408889634

def f32bits(x):
    import struct
    return "0x%08x" % struct.unpack("<I", struct.pack("<f", x))[0]

def srd(k, d, base_lo, base_hi, size, off=0):
    if off:
        k.I(f"s_add_u32 s{d}, s{base_lo}, {off}")
        k.I(f"s_addc_u32 s{d+1}, s{base_hi}, 0")
    else:
        k.I(f"s_mov_b32 s{d}, s{base_lo}")
        k.I(f"s_mov_b32 s{d+1}, s{base_hi}")
    k.I(f"s_mov_b32 s{d+2}, {size}")
    k.I(f"s_mov_b32 s{d+3}, 0x20000")

def stamp_begin(k, diag, s=98):
    if diag: k.I(f"s_memrealtime s[{s}:{s+1}]")

def stamp_end(k, diag, kidx, ws_lo, ws_hi, s=98, vtmp=0):
    if not diag: return
    lab = f"Lstamp_{k.name}"
    k.I("s_waitcnt vmcnt(0) lgkmcnt(0)")
    k.I(f"s_memrealtime s[{s+2}:{s+3}]")
    k.I("s_waitcnt lgkmcnt(0)")
    k.I(f"s_lshl_b32 s96, s2, 3")
    k.I(f"s_add_u32 s96, s96, {STAMP_OFF + kidx*4096}")
    k.I(f"v_mov_b32 v{vtmp+2}, s{s}")
    k.I(f"v_mov_b32 v{vtmp+3}, s{s+2}")
    k.I(f"v_mov_b32 v{vtmp+1}, s96")
    k.I(f"v_mbcnt_lo_u32_b32 v{vtmp}, -1, 0")
    k.I(f"v_mbcnt_hi_u32_b32 v{vtmp}, -1, v{vtmp}")
    k.I(f"v_cmp_eq_u32 vcc, 0, v{vtmp}")
    k.I(f"s_and_saveexec_b64 s[94:95], vcc")
    k.I(f"s_cbranch_execz {lab}")
    k.I(f"global_store_dwordx2 v{vtmp+1}, v[{vtmp+2}:{vtmp+3}], s[{ws_lo}:{ws_hi}]")
    k.L(lab)

MARKS = {}
def mark(k, diag, idx):
    if diag:
        import os
        k.I(f"{'s_memtime' if os.environ.get('CYC') else 's_memrealtime'} s[{60+2*idx}:{61+2*idx}]")
        MARKS[k.name] = max(MARKS.get(k.name, 0), idx + 1)

def dump_marks(k, diag, kidx, ws_lo, ws_hi, vtmp):
    if not diag or k.name not in MARKS: return
    n = MARKS[k.name]
    lab = f"Lmark_{k.name}"
    k.I("s_waitcnt vmcnt(0) lgkmcnt(0)")
    k.I("s_lshl_b32 s96, s2, 2")
    k.I("s_add_u32 s96, s96, s40")
    k.I("s_lshl_b32 s96, s96, 6")
    k.I(f"s_add_u32 s96, s96, {STAMP_OFF + MB + kidx*262144}")
    k.I(f"v_mov_b32 v{vtmp+1}, s96")
    k.I(f"v_mbcnt_lo_u32_b32 v{vtmp}, -1, 0")
    k.I(f"v_mbcnt_hi_u32_b32 v{vtmp}, -1, v{vtmp}")
    k.I(f"v_cmp_eq_u32 vcc, 0, v{vtmp}")
    k.I(f"s_and_saveexec_b64 s[94:95], vcc")
    k.I(f"s_cbranch_execz {lab}")
    for i in range(n):
        k.I(f"v_mov_b32 v{vtmp+2}, s{60+2*i}")
        k.I(f"global_store_dword v{vtmp+1}, v{vtmp+2}, s[{ws_lo}:{ws_hi}] offset:{4*i}")
    k.L(lab)
    k.I("s_mov_b64 exec, s[94:95]")

def dpp_row_allreduce(k, op, v, tmp=None):
    for r in (8, 4, 2, 1):
        k.I(f"{op} v{v}, v{v}, v{v} row_ror:{r}")

class Rec:
    def __init__(self): self.l = []
    def I(self, t, tag=None):
        for x in t.split("\n"):
            if x.strip(): self.l.append(x.strip())

def ln_rows(k, xin, nchunk, vt, out_pk, eps_s, tag="", T=None):
    n = 8 * nchunk
    X = vt
    if T is None: T = vt + n
    for i in range(4 * nchunk):
        k.I(f"v_lshlrev_b32 v{X+2*i}, 16, v{xin+i}")
        k.I(f"v_and_b32 v{X+2*i+1}, 0xffff0000, v{xin+i}")
    for c in range(4):
        k.I(f"v_add_f32 v{T+c}, v{X+c}, v{X+c+4}")
    for i in range(8, n):
        k.I(f"v_add_f32 v{T+(i&3)}, v{T+(i&3)}, v{X+i}")
    k.I(f"v_add_f32 v{T}, v{T}, v{T+1}")
    k.I(f"v_add_f32 v{T+2}, v{T+2}, v{T+3}")
    k.I(f"v_add_f32 v{T}, v{T}, v{T+2}")
    dpp_row_allreduce(k, "v_add_f32", T)
    k.I(f"v_mul_f32 v{T+4}, {f32bits(1.0/640)}, v{T}")
    for c in range(4):
        k.I(f"v_sub_f32 v{T+5}, v{X+c}, v{T+4}")
        k.I(f"v_mul_f32 v{T+c}, v{T+5}, v{T+5}")
    for i in range(4, n):
        k.I(f"v_sub_f32 v{T+5+(i&1)}, v{X+i}, v{T+4}")
        k.I(f"v_fmac_f32 v{T+(i&3)}, v{T+5+(i&1)}, v{T+5+(i&1)}")
    k.I(f"v_add_f32 v{T}, v{T}, v{T+1}")
    k.I(f"v_add_f32 v{T+2}, v{T+2}, v{T+3}")
    k.I(f"v_add_f32 v{T}, v{T}, v{T+2}")
    dpp_row_allreduce(k, "v_add_f32", T)
    k.I(f"v_mul_f32 v{T}, {f32bits(1.0/640)}, v{T}")
    ln_finish(k, X, n, T + 4, T, T + 5, out_pk, eps_s)

def bf16_round(k, v):
    k.I(f"v_cvt_pk_bf16_f32 v{v}, v{v}, v{v}")
    k.I(f"v_and_b32 v{v}, 0xffff0000, v{v}")

def ln_finish(k, X, n, vmean, vvar, vtmp, out_pk, eps_s):
    bf16_round(k, vmean)
    bf16_round(k, vvar)
    k.I(f"v_add_f32 v{vvar}, s{eps_s}, v{vvar}")
    bf16_round(k, vvar)
    k.I(f"v_sqrt_f32 v{vvar}, v{vvar}")
    bf16_round(k, vvar)
    k.I(f"v_rcp_f32 v{vvar}, v{vvar}")
    for i in range(0, n, 2):
        k.I(f"v_sub_f32 v{X+i}, v{X+i}, v{vmean}")
        k.I(f"v_sub_f32 v{X+i+1}, v{X+i+1}, v{vmean}")
        k.I(f"v_cvt_pk_bf16_f32 v{vtmp}, v{X+i}, v{X+i+1}")
        k.I(f"v_lshlrev_b32 v{X+i}, 16, v{vtmp}")
        k.I(f"v_and_b32 v{X+i+1}, 0xffff0000, v{vtmp}")
        k.I(f"v_mul_f32 v{X+i}, v{X+i}, v{vvar}")
        k.I(f"v_mul_f32 v{X+i+1}, v{X+i+1}, v{vvar}")
        k.I(f"v_cvt_pk_bf16_f32 v{out_pk+i//2}, v{X+i}, v{X+i+1}")


def code_touch(k, own_label, start_label, end_label, nlines_per_wg, sbase, vt0, vt1, vdst, wg_shift=3):
    J = k.I
    lab = f"Lpc_{k.name}_{start_label}"
    J(f"s_getpc_b64 s[{sbase}:{sbase+1}]")
    k.L(lab)
    J(f"s_add_u32 s{sbase}, s{sbase}, {start_label}-{lab}")
    J(f"s_addc_u32 s{sbase+1}, s{sbase+1}, 0")
    J(f"s_mov_b32 s{sbase+2}, {end_label}-{start_label}")
    J(f"s_mov_b32 s{sbase+3}, 0x20000")
    J(f"s_lshr_b32 s{sbase+4}, s2, {wg_shift}")
    J(f"s_mul_i32 s{sbase+4}, s{sbase+4}, {nlines_per_wg*128}")
    J(f"v_lshlrev_b32 v{vt0}, 7, v0")
    J(f"v_mov_b32 v{vt1}, 0x2000000")
    J(f"v_cmp_gt_u32 vcc, {nlines_per_wg}, v0")
    J(f"v_cndmask_b32 v{vt0}, v{vt1}, v{vt0}, vcc")
    J(f"buffer_load_dword v{vdst}, v{vt0}, s[{sbase}:{sbase+3}], s{sbase+4} offen", tag="codepf")
```

```python
import re
from common import *
import k2
from k2 import (LANE, vL16, vWQ, vNINF, vQ, vT, SXN, SWQ, SKV, SCTX, sW, sH, sI, sWL, sQA, sQB, sFlag, QACC, att_part, finish_k2)

SPIN_MAX = 1 << 22
import os
FINE = bool(os.environ.get('FINE'))

class Flat:
    def __init__(self, k): self.k = k; self.pend = []; self.mf = 0
    def emit(self, text, tag=None, age=3):
        k = self.k
        for line in text.split("\n"):
            line = line.strip()
            if not line: continue
            if line.endswith(":") or line.startswith(";"):
                k.I(line); continue
            it = Ins(line)
            if it.mn == "s_waitcnt":
                m = re.search(r"lgkmcnt\((\d+)\)", line)
                if m:
                    nn = int(m.group(1)); self.pend = self.pend[len(self.pend)-nn:] if 0 < nn < len(self.pend) else ([] if nn == 0 else self.pend)
            touched = set(it.src) | set(it.dst)
            if it.cls != "ds":
                need = -1
                for i, (d, _) in enumerate(self.pend):
                    if d & touched: need = i
                if need >= 0:
                    j = need
                    while j + 1 < len(self.pend) and self.mf - self.pend[j+1][1] >= age + 1: j += 1
                    nn = min(len(self.pend) - 1 - j, 15)
                    k.I(f"s_waitcnt lgkmcnt({nn})")
                    self.pend = self.pend[len(self.pend)-nn:] if nn > 0 else []
            if it.cls == "mfma": self.mf += 1
            if it.cls == "ds": self.pend.append((set(it.dst), self.mf))
            k.I(line, tag)

def gen_k12(diag=False, FUSE3=True, ALLTAIL=True, CODEPF=1, TOUCH=0, store_flags="sc1", wnt="nt", force_slow=0, STORE_EVERY=8, touch_at=12, qnt="", xtouch=False, FLAG_AT=None, kvflags=None, XLA=14):
    if kvflags is None: kvflags = store_flags
    k = Kern("k12_kernel")
    fl = Flat(k)
    I = fl.emit
    I("s_cmp_ge_u32 s2, 256")
    I("s_cbranch_scc1 Lk12_end")
    stamp_begin(k, diag)
    I(f"s_load_dwordx4 s[4:7], s[0:1], {KA['x']}")
    I(f"s_load_dwordx4 s[8:11], s[0:1], {KA['wuk']}")
    I(f"s_load_dwordx2 s[14:15], s[0:1], {KA['ws']}")
    I(f"s_load_dwordx2 s[56:57], s[0:1], {KA['wq']}")
    I(f"s_load_dwordx2 s[12:13], s[0:1], {KA['dbg']}")
    I("v_lshrrev_b32 v1, 6, v0")
    I(f"v_and_b32 v{LANE}, 63, v0")
    I("v_readfirstlane_b32 s40, v1")
    I("s_and_b32 s43, s2, 7")
    I("s_lshr_b32 s44, s2, 3")
    I("s_and_b32 s41, s44, 3")
    I("s_lshl_b32 s43, s43, 2")
    I("s_add_u32 s41, s41, s43")
    I("s_lshr_b32 s42, s44, 2")
    I("s_waitcnt lgkmcnt(0)")
    fl.pend = []
    mark(k, diag, 0)
    SX, SC, SWK, SWV, SKVO, SXNO, SDBG = 16, 20, 24, 28, 32, 36, 84
    srd(k, SC, 6, 7, 2048*512*2)
    srd(k, SWK, 8, 9, 512*4096*2)
    srd(k, SWV, 10, 11, 512*4096*2)
    vXA, vXB, vLX, vLO = 36, 37, 45, 46
    vXR, vXRh = 48, 40
    vQh, vQg = 32, 58
    t0, t1 = 52, 53
    vPoll, vZero, vAOff, vOne = 54, 55, 56, 57
    vPA, vPD = 47, 8+4
    sX0, sX1, sKVb, sT, sEPS = 48, 49, 52, 53, 54
    sQblkA, sQblkB, sXA, sXB, sWq = 56, 57, 58, 59, 88
    sT3, sPol = 43, 44
    sNonce0 = 47
    I(f"v_lshrrev_b32 v{t0}, 3, v{LANE}")
    I(f"v_lshlrev_b32 v{vXA}, 10, v{t0}")
    I(f"v_lshrrev_b32 v{t0}, 4, v{LANE}")
    I(f"v_and_b32 v{t1}, 7, v{LANE}")
    I(f"v_xor_b32 v{t0}, v{t0}, v{t1}")
    I(f"v_lshl_add_u32 v{vXA}, v{t0}, 4, v{vXA}")
    I(f"v_xor_b32 v{vXB}, 64, v{vXA}")
    I(f"s_lshl_b32 s{sX0}, s42, 8")
    I(f"s_lshl_b32 s{sT}, s40, 6")
    I(f"s_add_u32 s{sX0}, s{sX0}, s{sT}")
    I(f"s_lshl_b32 s{sX0}, s{sX0}, 10")
    I(f"s_lshl_b32 s{sX1}, s40, 13")
    I(f"v_lshrrev_b32 v{t0}, 4, v{LANE}")
    I(f"v_lshlrev_b32 v{vWQ}, 13, v{t0}")
    I(f"v_lshlrev_b32 v{t0}, 2, v{t0}")
    I(f"v_and_b32 v{t1}, 15, v{LANE}")
    I(f"v_xor_b32 v{t0}, v{t0}, v{t1}")
    I(f"v_lshl_add_u32 v{vWQ}, v{t0}, 4, v{vWQ}")
    I(f"s_lshl_b32 s{sWq}, s{sW}, 17")
    I(f"s_lshl_b32 s{sT}, s{sH}, 8")
    I(f"s_add_u32 s{sWq}, s{sWq}, s{sT}")
    I(f"s_lshl_b32 s{sWL}, s{sW}, 12")
    XB = lambda s: (s % 3)*32768
    WB = lambda s: 98304 + (s & 1)*32768
    def xdma_one(s, u):
        k.I(f"s_add_u32 m0, s{sX1}, {XB(s) + u*1024}")
        k.I(f"s_add_u32 s{sT}, s{sX0}, {u*8192 + s*128}")
        k.I(f"buffer_load_dwordx4 v{vXA if u % 2 == 0 else vXB}, s[{SC}:{SC+3}], s{sT} offen lds", tag=f"X{s}")
    def wdma_one(s, m, u):
        S = SWK if m == 0 else SWV
        k.I(f"s_add_u32 m0, s{sWL}, {WB(s) + m*16384 + u*1024}")
        k.I(f"s_add_u32 s{sT}, s{sWq}, {(64*s + 4*u)*8192}")
        k.I(f"buffer_load_dwordx4 v{vWQ}, s[{S}:{S+3}], s{sT} offen {wnt if (s == 0 or not TOUCH) else str()} lds", tag=f"W{s}")
    def xd(s): return [lambda u=u: xdma_one(s, u) for u in range(8)]
    def wd(s): return [lambda m=m, u=u: wdma_one(s, m, u) for m in range(2) for u in range(4)]
    vTX, vTW = 22, 23
    sTX, sTW = 55, 89
    if TOUCH:
        J = k.I
        J(f"s_and_b32 s45, s{sH}, 3"); J(f"s_lshl_b32 s45, s45, 6"); J(f"s_lshl_b32 s46, s42, 8"); J(f"s_add_u32 s45, s45, s46")
        J(f"s_lshl_b32 s{sTX}, s45, 10")
        J(f"v_lshlrev_b32 v{vTX}, 10, v{LANE}")
        J(f"v_mov_b32 v10, 0x2000000")
        J(f"v_cmp_gt_u32 vcc, 64, v0"); J(f"v_cndmask_b32 v{vTX}, v10, v{vTX}, vcc")
        J(f"s_lshl_b32 s45, s42, 16"); J(f"s_lshl_b32 s46, s{sH}, 8"); J(f"s_add_u32 s{sTW}, s45, s46")
        J(f"v_lshrrev_b32 v{vTW}, 1, v{LANE}"); J(f"v_lshlrev_b32 v{vTW}, 13, v{vTW}")
        J(f"v_and_b32 v11, 1, v{LANE}"); J(f"v_lshl_add_u32 v{vTW}, v11, 7, v{vTW}")
        J(f"v_cmp_gt_u32 vcc, 16, v{LANE}"); J(f"v_cndmask_b32 v{vTW}, v10, v{vTW}, vcc")
        J(f"s_cmp_eq_u32 s{sW}, 2")
        J(f"s_cselect_b32 s64, s{SWV}, s{SWK}"); J(f"s_cselect_b32 s65, s{SWV+1}, s{SWK+1}")
        J(f"s_sub_u32 s45, s{sW}, 1"); J(f"s_cmp_lt_u32 s45, 2")
        J(f"s_cselect_b32 s66, {512*4096*2}, 0"); J(f"s_mov_b32 s67, 0x20000")
    def tx(S):
        k.I(f"s_add_u32 s{sT}, s{sTX}, {S*128}")
        k.I(f"buffer_load_dword v21, v{vTX}, s[{SC}:{SC+3}], s{sT} offen", tag="touch")
        k.I(f"s_add_u32 s{sT}, s{sTW}, {64*S*8192}")
        k.I(f"buffer_load_dword v21, v{vTW}, s[64:67], s{sT} offen", tag="touch")
    if TOUCH:
        tx(1); tx(2)
        for f in xd(0)[:4] + wd(0)[:4] + xd(0)[4:] + wd(0)[4:]: f()
        tx(3)
        for f in xd(1) + wd(1): f()
        tx(4); tx(5)
    else:
        for f in xd(0)[:4] + wd(0)[:4] + xd(0)[4:] + wd(0)[4:]: f()
        if CODEPF:
            J = k.I
            J("s_getpc_b64 s[64:65]")
            k.L("Lk12_pc")
            J("s_sub_u32 s64, s64, Lk12_pc-k12_kernel")
            J("s_subb_u32 s65, s65, 0")
            J("s_mov_b32 s66, Lcode_end-k12_kernel")
            J("s_mov_b32 s67, 0x20000")
            J("s_lshr_b32 s45, s2, 3")
            J("s_mul_i32 s45, s45, " + str(24*128))
            J(f"v_lshlrev_b32 v10, 7, v{LANE}")
            J("v_mov_b32 v11, 0x2000000")
            J("v_cmp_gt_u32 vcc, 24, v0")
            J("v_cndmask_b32 v10, v11, v10, vcc")
            J("buffer_load_dword v21, v10, s[64:67], s45 offen", tag="codepf")
        for f in xd(1) + wd(1): f()
    mark(k, diag, 1)
    srd(k, SX, 4, 5, 2048*640*2)
    srd(k, SKVO, 14, 15, KV_SIZE, KV_OFF)
    srd(k, SXNO, 14, 15, XN_SIZE, XN_OFF)
    srd(k, SDBG, 12, 13, 256)
    I(f"v_bfe_u32 v{t0}, v{LANE}, 4, 1")
    I("s_lshl_b32 s45, s2, 3")
    I("s_lshl_b32 s46, s40, 1")
    I("s_add_u32 s45, s45, s46")
    I(f"v_add_u32 v{t0}, s45, v{t0}")
    I(f"v_and_b32 v{t1}, 15, v{LANE}")
    I(f"v_mul_u32_u24 v{vLX}, 1280, v{t0}")
    I(f"v_lshl_add_u32 v{vLX}, v{t1}, 4, v{vLX}")
    LNX, LNO = 192, 144
    I(f"v_lshrrev_b32 v{vLO}, 5, v{t0}")
    I(f"v_mul_u32_u24 v{vLO}, 40960, v{vLO}")
    I(f"v_and_b32 v{t0}, 31, v{t0}")
    I(f"v_lshl_add_u32 v{vLO}, v{t0}, 4, v{vLO}")
    I(f"v_lshrrev_b32 v{t0}, 1, v{t1}")
    I(f"v_lshl_add_u32 v{vLO}, v{t0}, 10, v{vLO}")
    I(f"v_and_b32 v{t0}, 1, v{t1}")
    I(f"v_lshl_add_u32 v{vLO}, v{t0}, 9, v{vLO}")
    I(f"v_mov_b32 v{t0}, 0x1000000")
    I(f"v_cmp_gt_u32 vcc, 32, v{LANE}")
    I(f"v_cndmask_b32 v{vLO}, v{t0}, v{vLO}, vcc")
    srd(k, 92, 14, 15, ACC_SIZE, ACC_OFF)
    I(f"s_mul_i32 s45, s2, 96")
    I(f"v_lshlrev_b32 v{t0}, 2, v0")
    I(f"v_mov_b32 v{t1}, 0x100000")
    I(f"v_cmp_gt_u32 vcc, 24, v0")
    I(f"v_cndmask_b32 v{t0}, v{t1}, v{t0}, vcc")
    I(f"v_mov_b32 v{t1}, 0")
    I(f"buffer_store_dword v{t1}, v{t0}, s[92:95], s45 offen sc1")
    I(f"v_mov_b32 v{vZero}, 0")
    I(f"v_mov_b32 v{vOne}, 1")
    I(f"v_mov_b32 v{t1}, 0x100000")
    I(f"v_cmp_eq_u32 vcc, 0, v0")
    I(f"v_cndmask_b32 v{vAOff}, v{t1}, v{vZero}, vcc")
    k.I("s_memrealtime s[46:47]")
    k.I("s_waitcnt lgkmcnt(0)")
    k.I(f"s_or_b32 s{sNonce0}, s46, 1")
    k.I(f"v_mov_b32 v{vPoll}, s{sNonce0}")
    k.I(f"buffer_atomic_cmpswap v[{vPoll}:{vPoll+1}], v{vAOff}, s[{SDBG}:{SDBG+3}], 0 offen sc0 sc1", tag="nonce")
    I(f"v_lshrrev_b32 v{t1}, 5, v{LANE}")
    I(f"v_bfe_u32 v{t0}, v{LANE}, 1, 3")
    I(f"v_xor_b32 v{t0}, v{t0}, v{t1}")
    I(f"v_lshlrev_b32 v{t0}, 4, v{t0}")
    I(f"v_and_b32 v{vXR}, 31, v{LANE}")
    I(f"v_lshl_add_u32 v{vXR}, v{vXR}, 7, v{t0}")
    for j in range(1, 4):
        I(f"v_xor_b32 v{vXR+j}, {32*j}, v{vXR}")
        I(f"v_add_u32 v{vXR+j}, s{sX1}, v{vXR+j}")
    I(f"v_add_u32 v{vXR}, s{sX1}, v{vXR}")
    for j in range(4): I(f"v_add_u32 v{vXRh+j}, 0x10000, v{vXR+j}")
    a, b = t0, t1
    I(f"v_lshrrev_b32 v{b}, 5, v{LANE}")
    I(f"v_bfe_u32 v{a}, v{LANE}, 2, 2")
    I(f"v_lshl_add_u32 v{b}, v{b}, 3, v{a}")
    I(f"v_lshlrev_b32 v{b}, 8, v{b}")
    I(f"v_bfe_u32 v62, v{LANE}, 4, 1")
    I(f"v_lshl_add_u32 v{b}, v62, 5, v{b}")
    I(f"v_and_b32 v62, 3, v{LANE}")
    I(f"v_lshl_add_u32 v{b}, v62, 3, v{b}")
    for db in range(4):
        I(f"v_xor_b32 v62, {db}, v{a}")
        I(f"v_lshl_add_u32 v{vQ+db}, v62, 6, v{b}")
        I(f"v_add_u32 v{vQh+db}, 0x10000, v{vQ+db}")
        I(f"v_add_u32 v{vQg+db}, 0x20000, v{vQ+db}")
    I(f"v_lshlrev_b32 v{vL16}, 4, v{LANE}")
    I(f"v_mov_b32 v{vNINF}, 0xff800000")
    I(f"s_lshl_b32 s{sKVb}, s41, 6")
    I(f"s_lshl_b32 s{sT}, s42, 3")
    I(f"s_add_u32 s{sKVb}, s{sKVb}, s{sT}")
    I(f"s_lshl_b32 s{sT}, s40, 1")
    I(f"s_add_u32 s{sKVb}, s{sKVb}, s{sT}")
    I(f"s_lshl_b32 s{sKVb}, s{sKVb}, 14")
    I(f"s_mov_b32 s{sEPS}, {f32bits(1e-5)}")
    def tr_base(ldsoff):
        if ldsoff < 65536: return vQ, ldsoff
        if ldsoff < 131072: return vQh, ldsoff - 65536
        return vQg, ldsoff - 131072
    WR, XF = 64, 128
    def kv_reads(n):
        s, sp = n >> 2, n & 3
        out = []
        xo = XB(s)
        xr, xo = (vXR, xo) if xo < 65536 - 8192 else (vXRh, xo - 65536)
        for bb in range(2):
            r = XF + (n & 1)*8 + bb*4
            out.append(f"ds_read_b128 v[{r}:{r+3}], v{xr+sp} offset:{xo + bb*4096}")
        for db in range(4):
            for m in range(2):
                r = WR + (n & 1)*32 + m*16 + db*4
                base, o = tr_base(WB(s) + m*16384 + sp*4096)
                out.append(f"ds_read_b64_tr_b16 v[{r}:{r+1}], v{base+db} offset:{o}")
                out.append(f"ds_read_b64_tr_b16 v[{r+2}:{r+3}], v{base+db} offset:{o+1024}")
        return out
    def kv_mfmas(n):
        out = []
        for db in range(4):
            for m in range(2):
                w = WR + (n & 1)*32 + m*16 + db*4
                for bb in range(2):
                    x = XF + (n & 1)*8 + bb*4
                    d = m*128 + (db*2 + bb)*16
                    c = "0" if n == 0 else f"a[{d}:{d+15}]"
                    if m == 0: out.append(f"v_mfma_f32_32x32x16_bf16 a[{d}:{d+15}], v[{w}:{w+3}], v[{x}:{x+3}], {c}")
                    else:      out.append(f"v_mfma_f32_32x32x16_bf16 a[{d}:{d+15}], v[{x}:{x+3}], v[{w}:{w+3}], {c}")
        return out
    rec = Rec()
    ln_rows(rec, LNX, 5, 212, LNO, sEPS, T=24)
    lnq = list(rec.l)
    def ln_stores():
        for u in range(5):
            k.I(f"s_mov_b32 s{sT}, {u*8192}")
            k.I(f"buffer_store_dwordx4 v[{LNO+4*u}:{LNO+4*u+3}], v{vLO}, s[{SXNO}:{SXNO+3}], s{sT} offen sc1", tag="lnst")
    def lnload(u): k.I(f"buffer_load_dwordx4 v[{LNX+4*u}:{LNX+4*u+3}], v{vLX}, s[{SX}:{SX+3}], 0 offen offset:{256*u}", tag="lnx")
    QSLOT = {0: 4, 1: 5, 2: 0, 3: 1, 4: 6, 5: 7, 6: 2, 7: 3, 8: 8, 9: 9}
    C0 = 4
    XQV = [12, 16, 20, 24, 28, 36]
    def xq_reg(s, T):
        if s < 3: return "v", XQV[2*s + T]
        return "a", (8*((s - 3) % 32) + 4*T)
    def q_setup():
        r = Rec(); J = r.I
        J(f"s_mov_b32 s{SWQ}, s56"); J(f"s_mov_b32 s{SWQ+1}, s57"); J(f"s_mov_b32 s{SWQ+2}, {640*4096*2}"); J(f"s_mov_b32 s{SWQ+3}, 0x20000")
        J(f"s_add_u32 s{SXN}, s14, {XN_OFF}"); J(f"s_addc_u32 s{SXN+1}, s15, 0"); J(f"s_mov_b32 s{SXN+2}, {XN_SIZE}"); J(f"s_mov_b32 s{SXN+3}, 0x20000")
        J(f"s_lshl_b32 s{sT3}, s{sI}, 2")
        J(f"s_add_u32 s{sQblkA}, s{sT3}, s{sW}")
        J(f"s_sub_u32 s{sQblkB}, 60, s{sT3}")
        J(f"s_add_u32 s{sQblkB}, s{sQblkB}, s{sW}")
        J(f"s_mul_i32 s{sXA}, s{sQblkA}, 40960")
        J(f"s_mul_i32 s{sXB}, s{sQblkB}, 40960")
        return r.l
    def xq_load(s, T):
        c, r = xq_reg(s, T)
        k.I(f"s_add_u32 s{sT3}, s{sXA if T == 0 else sXB}, {s*1024}")
        k.I(f"buffer_load_dwordx4 {c}[{r}:{r+3}], v{vL16}, s[{SXN}:{SXN+3}], s{sT3} offen", tag=f"x{s}")
    def wq_one(g, u):
        k.I(f"s_add_u32 m0, s{sWL}, {QSLOT[g]*16384 + u*1024}")
        k.I(f"s_add_u32 s{sT3}, s{sWq}, {(64*g + 4*u)*8192}")
        k.I(f"buffer_load_dwordx4 v{vWQ}, s[{SWQ}:{SWQ+3}], s{sT3} offen {qnt} lds", tag=f"q{g}")
    def wq(g): return [lambda u=u: wq_one(g, u) for u in range(4)]
    SFL = 92
    sNonce = 47
    def flag_srd():
        k.I(f"s_add_u32 s{SFL}, s14, {FLG_OFF}"); k.I(f"s_addc_u32 s{SFL+1}, s15, 0")
        k.I(f"s_mov_b32 s{SFL+2}, {FLG_SIZE}"); k.I(f"s_mov_b32 s{SFL+3}, 0x20000")
    def get_nonce():
        k.wait_vm("nonce")
        k.I(f"v_readfirstlane_b32 s{sT3}, v{vPoll}")
        k.I(f"s_cmp_eq_u32 s{sT3}, 0")
        k.I(f"s_cselect_b32 s{sNonce}, s{sNonce}, s{sT3}")
        k.I(f"v_mov_b32 v{vOne}, s{sNonce}")
        k.I(f"s_mov_b32 s100, s{sNonce}")
    def set_flag(soff_expr):
        flag_srd(); soff_expr()
        k.I(f"buffer_store_dword v{vOne}, v{vAOff}, s[{SFL}:{SFL+3}], s{sT3} offen sc1", tag="sig")
    def poll_issue(kind, tag):
        flag_srd()
        J = k.I
        if kind == "ln":
            J(f"s_lshl_b32 s{sT3}, s{sI}, 2")
            J(f"v_add_u32 v62, s{sT3}, v{LANE}")
            J(f"s_sub_u32 s{sT3}, 56, s{sT3}")
            J(f"v_add_u32 v63, s{sT3}, v{LANE}")
            J(f"v_cmp_gt_u32 vcc, 4, v{LANE}")
            J(f"v_cndmask_b32 v62, v63, v62, vcc")
            J(f"v_add_u32 v62, 32, v62")
            J(f"v_lshlrev_b32 v62, 7, v62")
        else:
            J(f"s_lshl_b32 s{sT3}, s{sH}, 7")
            J(f"v_lshlrev_b32 v62, 2, v{LANE}")
            J(f"v_add_u32 v62, s{sT3}, v62")
        J(f"v_mov_b32 v63, 0x100000")
        J(f"v_cmp_gt_u32 vcc, 8, v0")
        J(f"v_cndmask_b32 v{vPA}, v63, v62, vcc")
        ld = "buffer_load_dwordx4 v[%d:%d]" % (vPD, vPD+3) if kind == "ln" else "buffer_load_dword v%d" % vPD
        J(f"{ld}, v{vPA}, s[{SFL}:{SFL+3}], 0 offen sc1", tag=tag)
    def poll_check(kind, tag, name):
        k.wait_vm(tag)
        J = k.I
        nreg = 4 if kind == "ln" else 1
        ld = "buffer_load_dwordx4 v[%d:%d]" % (vPD, vPD+3) if kind == "ln" else "buffer_load_dword v%d" % vPD
        def test():
            J(f"v_cmp_eq_u32 vcc, v{vOne}, v{vPD}")
            for q in range(1, nreg):
                J(f"v_cmp_eq_u32 s[90:91], v{vOne}, v{vPD+q}")
                J(f"s_and_b64 vcc, vcc, s[90:91]")
            J(f"s_and_b32 s{sT3}, vcc_lo, 0xff")
            J(f"s_cmp_eq_u32 s{sT3}, 0xff")
        J(f"s_cmp_lg_u32 s{sW}, 0")
        J(f"s_cbranch_scc1 {name}_ok")
        test()
        J(f"s_cbranch_scc1 {name}_ok")
        J(f"s_mov_b32 s45, {SPIN_MAX}")
        k.L(name + "_spin")
        flag_srd()
        J(f"{ld}, v{vPA}, s[{SFL}:{SFL+3}], 0 offen sc1")
        k.vm.pop()
        J("s_waitcnt vmcnt(0)")
        J(f"s_sub_u32 s45, s45, 1")
        J(f"s_cbranch_scc1 {name}_ok")
        test()
        J(f"s_cbranch_scc0 {name}_spin")
        k.L(name + "_ok")
    def ln_flag():
        k.I(f"s_lshr_b32 s{sT3}, s2, 2"); k.I(f"s_add_u32 s{sT3}, s{sT3}, 32"); k.I(f"s_lshl_b32 s{sT3}, s{sT3}, 7")
        k.I(f"s_and_b32 s46, s2, 3"); k.I(f"s_lshl_b32 s46, s46, 2"); k.I(f"s_add_u32 s{sT3}, s{sT3}, s46")
    def kv_flag():
        k.I(f"s_lshl_b32 s{sT3}, s{sH}, 7"); k.I(f"s_lshl_b32 s46, s{sI}, 2"); k.I(f"s_add_u32 s{sT3}, s{sT3}, s46")
    def touch_wq():
        J = k.I
        J(f"s_mov_b32 s92, s56"); J(f"s_mov_b32 s93, s57"); J(f"s_mov_b32 s94, {640*4096*2}"); J(f"s_mov_b32 s95, 0x20000")
        J(f"s_mul_i32 s45, s42, 80"); J(f"s_mul_i32 s46, s40, 20"); J(f"s_add_u32 s45, s45, s46")
        J(f"s_lshl_b32 s45, s45, 13"); J(f"s_lshl_b32 s46, s41, 8"); J(f"s_add_u32 s45, s45, s46")
        J(f"v_lshrrev_b32 v62, 1, v{LANE}"); J(f"v_lshlrev_b32 v62, 13, v62"); J(f"v_and_b32 v63, 1, v{LANE}")
        J(f"v_lshl_add_u32 v62, v63, 7, v62"); J(f"v_mov_b32 v63, 0x2000000")
        J(f"v_cmp_gt_u32 vcc, 40, v{LANE}"); J(f"v_cndmask_b32 v62, v63, v62, vcc")
        J(f"buffer_load_dword v11, v62, s[92:95], s45 offen", tag="touch")
    def touch_xn():
        J = k.I
        J(f"s_and_b32 s45, s{sH}, 3"); J(f"s_mul_i32 s45, s45, 160")
        for j in range(3):
            J(f"v_add_u32 v62, s45, v{LANE}")
            if j: J(f"v_add_u32 v62, {64*j}, v62")
            J(f"v_subrev_u32 v63, 320, v62")
            J(f"v_cmp_gt_u32 vcc, 320, v62")
            J(f"v_cndmask_b32 v63, v63, v62, vcc")
            J(f"v_lshlrev_b32 v63, 7, v63")
            J(f"v_mov_b32 v62, s{sXB}")
            J(f"v_mov_b32 v53, s{sXA}")
            J(f"v_cndmask_b32 v62, v62, v53, vcc")
            J(f"v_add_u32 v63, v63, v62")
            if j == 2:
                J(f"v_mov_b32 v62, 0x2000000"); J(f"v_cmp_gt_u32 vcc, 32, v{LANE}"); J(f"v_cndmask_b32 v63, v62, v63, vcc")
            J(f"buffer_load_dword v11, v63, s[{SXN}:{SXN+3}], 0 offen", tag="touch")
    mark(k, diag, 2)
    memq = xd(2) + ([lambda: tx(6), lambda: tx(7)] if TOUCH else []) + [lambda u=u: lnload(u) for u in range(5)]
    k.wait_vm("W0", expect=8)
    I("s_barrier")
    for t in kv_reads(0): I(t)
    mark(k, diag, 3)
    lnstarted = False; setupq = []
    for n in range(32):
        s, sp = n >> 2, n & 3
        if sp == 3 and s < 7:
            I("s_waitcnt lgkmcnt(0)")
            if FINE and s == 0: mark(k, diag, 14)
            k.wait_vm(f"W{s+1}", expect=8)
            if FINE and s == 0: mark(k, diag, 15)
            if s + 1 == 4: k.wait_vm("lnst", expect=5)
            if s + 1 == 7: poll_check("ln", "poll1", "Lk12_ln")
            I("s_barrier")
            if s + 1 == 7:
                if xtouch: memq.append(touch_xn)
                for s_ in range(3):
                    for T in range(2): memq.append(lambda s_=s_, T=T: xq_load(s_, T))
            if s + 1 == 4: get_nonce(); set_flag(ln_flag)
            if s + 2 < 8: memq += wd(s + 2)
            if s + 3 < 8: memq += xd(s + 3)
            if s + 1 == 6: memq += [lambda l=q_setup(): [k.I(x) for x in l]] + wq(0) + wq(1)
            if s + 1 == 7: memq += wq(2) + wq(3) + wq(4) + wq(5)
        if touch_at is not None and n == touch_at: memq.append(touch_wq)
        if n == 24: poll_issue("ln", "poll1")
        reads = kv_reads(n + 1) if n + 1 < 32 else []
        for gi, m in enumerate(kv_mfmas(n)):
            I(m)
            for _ in range(2):
                if reads and gi < 12: I(reads.pop(0))
            if memq and (gi % 2 == 0 or n < 8): memq.pop(0)()
            if n >= 5 and lnq:
                if not lnstarted:
                    k.wait_vm("lnx"); lnstarted = True
                for _ in range(3 if gi < 10 else 4):
                    if lnq: I(lnq.pop(0))
                if not lnq: memq.append(ln_stores)
        assert not reads
        if FINE:
            if n in (0, 1, 2, 3, 4, 7): mark(k, diag, {0: 4, 1: 5, 2: 6, 3: 7, 4: 12, 7: 13}[n])
        elif n in (31,): mark(k, diag, 7)
    while memq: memq.pop(0)()
    assert not lnq
    I("s_barrier")
    gapq = wq(6) + wq(7) + wq(8) + wq(9)
    def qreads(n):
        g, s = n >> 2, n & 3
        F = WR + (n % 2)*16
        base, o = tr_base(QSLOT[g]*16384 + s*4096)
        out = []
        for db in range(4):
            out.append(f"ds_read_b64_tr_b16 v[{F+4*db}:{F+4*db+1}], v{base+db} offset:{o}")
            out.append(f"ds_read_b64_tr_b16 v[{F+4*db+2}:{F+4*db+3}], v{base+db} offset:{o+1024}")
        return out
    def kv_one(blk, u):
        k.I(f"s_add_u32 m0, s{sWL}, {((blk + C0) % 8)*16384}")
        k.I(f"s_add_u32 s{sT3}, s{sWL}, {blk*16384}")
        k.I(f"buffer_load_dwordx4 v{vL16}, s[{SKV}:{SKV+3}], s{sT3} offen offset:{u*1024} lds", tag=f"kv{blk}")
    def kv_closures(blk): return [lambda u=u: kv_one(blk, u) for u in range(4)]
    conv = []
    for j in range(32):
        st = 96 + (j % 8)*4
        for q in range(4):
            t_ = (52, 62)[q & 1]
            conv.append((j, f"v_accvgpr_read_b32 v{t_}, a{8*j+2*q}"))
            conv.append((j, f"v_accvgpr_read_b32 v{t_+1}, a{8*j+2*q+1}"))
            conv.append((j, f"v_cvt_pk_bf16_f32 v{st+q}, v{t_}, v{t_+1}"))
    freed = -1
    stored = -1
    xq_next = 3
    def pop_conv(cnt):
        nonlocal freed
        for _ in range(cnt):
            if not conv: return
            j, t_ = conv[0]
            if j - 8 > stored: return
            conv.pop(0); I(t_)
            if not conv or conv[0][0] != j: freed = j
    def pop_store():
        nonlocal stored
        j = stored + 1
        if j >= 32 or j > freed: return False
        t, half = j >> 1, j & 1
        m, db, bb = t >> 3, (t >> 1) & 3, t & 1
        within = (2*db + half)*1024 if m == 0 else 8192 + (db*2 + half)*1024
        st = 96 + (j % 8)*4
        k.I(f"s_add_u32 s{sT}, s{sKVb}, {bb*16384 + within}")
        k.I(f"buffer_store_dwordx4 v[{st}:{st+3}], v{vL16}, s[{SKVO}:{SKVO+3}], s{sT} offen {kvflags}", tag="kvst")
        stored = j
        return True
    I(f"s_lshl_b32 s{sT3}, s{sH}, 20")
    I(f"s_add_u32 s{sT3}, s{sT3}, {KV_OFF}")
    I(f"s_add_u32 s{SKV}, s14, s{sT3}")
    I(f"s_addc_u32 s{SKV+1}, s15, 0")
    I(f"s_lshl_b32 s{sT3}, s{sI}, 16")
    I(f"s_sub_u32 s{SKV+2}, {64*16384}, s{sT3}")
    I(f"s_mov_b32 s{SKV+3}, 0x20000")
    srd(k, SCTX, 14, 15, CTX_SIZE, CTX_OFF)
    k.wait_vm("q0", expect=4)
    I("s_barrier")
    for t in qreads(0): I(t)
    mark(k, diag, 8)
    next_store = 2
    for n in range(40):
        g, s = n >> 2, n & 3
        if s == 2:
            if g + 1 < 10: k.wait_vm(f"q{g+1}", expect=4)
            if n == FLAG_AT:
                assert stored == 31, stored
                k.wait_vm("kvst", expect=32)
            if FLAG_AT is not None and n == FLAG_AT + 4: poll_check("kv", "poll2", "Lk12_kv")
            I("s_barrier")
            if n == FLAG_AT:
                set_flag(kv_flag); poll_issue("kv", "poll2")
            if FLAG_AT is not None and n == FLAG_AT + 4:
                for blk in range(3): gapq += kv_closures(blk)
        reads = qreads(n + 1) if n + 1 < 40 else []
        k.wait_vm(f"x{n}", expect=2)
        F = WR + (n % 2)*16
        gi = 0
        for db in range(4):
            for T in range(2):
                d = QACC + (T*4 + db)*16
                c_, r_ = xq_reg(n, T)
                c = "0" if n == 0 else f"v[{d}:{d+15}]"
                I(f"v_mfma_f32_32x32x16_bf16 v[{d}:{d+15}], v[{F+4*db}:{F+4*db+3}], {c_}[{r_}:{r_+3}], {c}")
                if reads: I(reads.pop(0))
                did = False
                if xq_next < 40 and xq_next <= n + XLA:
                    need = (xq_next - 3) % 32
                    ok = (freed >= need) if xq_next - 3 < 32 else (n > xq_next - 32)
                    if ok:
                        xq_load(xq_next, gi & 1 if False else 0); xq_load(xq_next, 1); xq_next += 1; did = True
                if not did and (8*n + gi) >= next_store and pop_store(): did = True; next_store = 8*n + gi + STORE_EVERY
                if not did and gapq: gapq.pop(0)()
                pop_conv(3)
                gi += 1
    while gapq: gapq.pop(0)()
    while stored < 31:
        pop_conv(99); pop_store()
    mark(k, diag, 9)
    k2.LATE2.clear()
    if FLAG_AT is None:
        k.wait_vm("kvst", expect=32)
        I("s_barrier")
        set_flag(kv_flag)
        poll_issue("kv", "poll2")
        def kv_start():
            poll_check("kv", "poll2", "Lk12_kv")
            k.I("s_barrier")
            for blk in range(3):
                for f in kv_closures(blk): f()
        lateq = [kv_start]
        for blk in range(3, 8): k2.LATE2.extend(kv_closures(blk))
    else:
        I("s_barrier")
        lateq = []
        for blk in range(3, 8): lateq += kv_closures(blk)
    I(f"s_load_dwordx2 s[6:7], s[0:1], {KA['wo']}")
    I(f"s_load_dwordx4 s[8:11], s[0:1], {KA['wg']}")
    I(f"s_load_dwordx2 s[12:13], s[0:1], {KA['wd']}")
    for sq, sb in ((sQA, sQblkA), (sQB, sQblkB)):
        I(f"s_lshl_b32 s{sq}, s{sb}, 5")
        I(f"s_add_u32 s{sq}, s{sq}, s{sH}")
        I(f"s_lshl_b32 s{sq}, s{sq}, 13")
    I(f"s_mov_b32 s{sFlag}, {force_slow}")
    I("s_waitcnt lgkmcnt(0)")
    k2.MARK0 = 6
    def tail3():
        from k3c import emit_k3c
        J = k.I
        J("s_waitcnt vmcnt(0)")
        J("s_barrier")
        flag_srd()
        J(f"v_mov_b32 v10, s100")
        J(f"v_mov_b32 v11, 0x100000")
        J(f"v_mov_b32 v12, 0")
        J(f"v_cmp_eq_u32 vcc, 0, v0")
        J(f"v_cndmask_b32 v11, v11, v12, vcc")
        J(f"s_lshr_b32 s45, s{sH}, 3")
        J(f"s_and_b32 s46, s{sH}, 7")
        J(f"s_lshl_b32 s46, s46, 2")
        for T in range(2):
            if T == 0: J(f"s_lshl_b32 s43, s{sI}, 2")
            else:
                J(f"s_sub_u32 s43, 15, s{sI}"); J(f"s_lshl_b32 s43, s43, 2")
            J(f"s_add_u32 s43, s43, s45"); J(f"s_add_u32 s43, s43, 160"); J(f"s_lshl_b32 s43, s43, 7"); J(f"s_add_u32 s43, s43, s46")
            J(f"buffer_store_dword v10, v11, s[92:95], s43 offen sc1")
        mark(k, diag, 9) if False else None
        emit_k3c(k, diag, fused=True, sNonceIn=100, alltail=ALLTAIL, endlabel="Lk12_fin")
        k.L("Lk12_fin")
    att_part(k, diag, store_flags, C0, lateq, sQblkA, sQblkB, 0, "Lk12_end", tail_fn=(tail3 if FUSE3 else None))
    finish_k2(k)
    return k, 256, 256, 163840
```

```python
from common import *
from k12 import Flat, SPIN_MAX

def gen_k3c(diag=False, kidx=1, DC=6, codepf=False):
    k = Kern("k3_kernel")
    k.I("s_cmp_ge_u32 s2, 256")
    k.I("s_cbranch_scc1 Lk3_end")
    stamp_begin(k, diag)
    emit_k3c(k, diag, DC, codepf, fused=False)
    dump_marks(k, diag, kidx, 14, 15, 8)
    stamp_end(k, diag, kidx, 14, 15, vtmp=8)
    k.L("Lk3_end")
    k.I("s_endpgm")
    k.fix_hazards()
    pr = check_waits(k.items, "k3c")
    pr = [p_ for p_ in pr if "Lk3" not in p_]
    for p_ in pr[:10]: print(p_)
    return k, 208, 64, 3*40960

def emit_k3c(k, diag, DC=6, codepf=False, fused=False, sNonceIn=None):
    fl = Flat(k); I = fl.emit
    mark_ = (lambda k_, d_, i_: None) if fused else mark
    I(f"s_load_dwordx2 s[14:15], s[0:1], {KA['ws']}")
    I(f"s_load_dwordx2 s[6:7], s[0:1], {KA['wo']}")
    I(f"s_load_dwordx2 s[4:5], s[0:1], {KA['x']}")
    I(f"s_load_dwordx2 s[8:9], s[0:1], {KA['wr']}")
    I(f"s_load_dwordx2 s[12:13], s[0:1], {KA['dbg']}")
    LANE = 2
    I("v_lshrrev_b32 v1, 6, v0")
    I(f"v_and_b32 v{LANE}, 63, v0")
    sW, sKS, sRT, sCT, sT, sT2, sCb, sWb, sWL, sPb, sNonce = 40, 41, 42, 43, 44, 45, 46, 47, 48, 49, 50
    I(f"v_readfirstlane_b32 s{sW}, v1")
    I(f"s_and_b32 s{sT}, s2, 7")
    I(f"s_lshr_b32 s{sKS}, s{sT}, 1")
    I(f"s_and_b32 s{sRT}, s{sT}, 1")
    I(f"s_lshl_b32 s{sRT}, s{sRT}, 3")
    I(f"s_lshr_b32 s{sT2}, s2, 3")
    I(f"s_and_b32 s{sCT}, s{sT2}, 3")
    I(f"s_lshr_b32 s{sT2}, s{sT2}, 2")
    I(f"s_add_u32 s{sRT}, s{sRT}, s{sT2}")
    I("s_waitcnt lgkmcnt(0)")
    fl.pend = []
    SCTX, SWO, SP, SX, SWR, SH, SACC, SFL, SDBG = 16, 20, 24, 28, 32, 36, 52, 56, 84
    srd(k, SCTX, 14, 15, CTX_SIZE, CTX_OFF)
    srd(k, SWO, 6, 7, 4096*640*2)
    vC, vL16, t0, t1, t2 = 3, 4, 6, 7, 8
    vWD = 10
    vTR, vTRh = 16, 17
    I(f"v_lshrrev_b32 v{t0}, 5, v{LANE}")
    I(f"v_lshlrev_b32 v{vC}, 10, v{t0}")
    I(f"v_bfe_u32 v{t0}, v{LANE}, 4, 1")
    I(f"v_lshl_add_u32 v{vC}, v{t0}, 9, v{vC}")
    I(f"v_and_b32 v{t0}, 15, v{LANE}")
    I(f"v_lshl_add_u32 v{vC}, v{t0}, 4, v{vC}")
    I(f"v_lshlrev_b32 v{vL16}, 4, v{LANE}")
    I(f"s_mov_b32 s{sT}, 3277")
    for u in range(5):
        I(f"v_add_u32 v{t0}, {64*u}, v{LANE}")
        I(f"v_mul_lo_u32 v{t1}, v{t0}, s{sT}")
        I(f"v_lshrrev_b32 v{t1}, 16, v{t1}")
        I(f"v_mul_u32_u24 v{t2}, 20, v{t1}")
        I(f"v_sub_u32 v{t2}, v{t0}, v{t2}")
        I(f"v_mul_u32_u24 v{t1}, 1280, v{t1}")
        I(f"v_lshl_add_u32 v{vWD+u}, v{t2}, 4, v{t1}")
    I(f"s_lshl_b32 s{sCb}, s{sRT}, 2")
    I(f"s_add_u32 s{sCb}, s{sCb}, s{sW}")
    I(f"s_lshl_b32 s{sCb}, s{sCb}, 5")
    I(f"s_lshl_b32 s{sT}, s{sKS}, 3")
    I(f"s_add_u32 s{sCb}, s{sCb}, s{sT}")
    I(f"s_lshl_b32 s{sCb}, s{sCb}, 13")
    I(f"s_lshl_b32 s{sWb}, s{sKS}, 10")
    I(f"s_lshl_b32 s{sT}, s{sW}, 5")
    I(f"s_add_u32 s{sWb}, s{sWb}, s{sT}")
    I(f"s_mul_i32 s{sWb}, s{sWb}, 1280")
    I(f"s_mul_i32 s{sT}, s{sCT}, 320")
    I(f"s_add_u32 s{sWb}, s{sWb}, s{sT}")
    I(f"s_mul_i32 s{sWL}, s{sW}, 10240")
    def wdma(g, u):
        k.I(f"s_add_u32 m0, s{sWL}, {(g % 3)*40960 + u*1024}")
        k.I(f"s_add_u32 s{sT}, s{sWb}, {(g*128 + (u // 5)*16)*1280}")
        k.I(f"buffer_load_dwordx4 v{vWD + u % 5}, s[{SWO}:{SWO+3}], s{sT} offen lds", tag=f"k3W{g}")
    NC = DC + 1
    def cload(t):
        a = (t % NC)*8
        k.I(f"s_add_u32 s{sT2}, s{sCb}, {(t >> 2)*8192 + (t & 3)*2048}")
        k.I(f"buffer_load_dwordx4 a[{a}:{a+3}], v{vC}, s[{SCTX}:{SCTX+3}], s{sT2} offen", tag=f"k3c{t}")
        k.I(f"buffer_load_dwordx4 a[{a+4}:{a+7}], v{vC}, s[{SCTX}:{SCTX+3}], s{sT2} offen offset:256", tag=f"k3c{t}")
    if fused:
        for u in range(10): wdma(0, u)
        for u in range(10): wdma(1, u)
    else:
        for u in range(10): wdma(0, u)
        for t in range(2): cload(t)
        for u in range(10): wdma(1, u)
        for t in range(2, DC): cload(t)
    I(f"v_lshrrev_b32 v{t0}, 5, v{LANE}")
    I(f"v_lshlrev_b32 v{t0}, 4, v{t0}")
    I(f"v_bfe_u32 v{t1}, v{LANE}, 4, 1")
    I(f"v_lshl_add_u32 v{t0}, v{t1}, 2, v{t0}")
    I(f"v_bfe_u32 v{t1}, v{LANE}, 2, 2")
    I(f"v_add_u32 v{t0}, v{t0}, v{t1}")
    I(f"v_mul_u32_u24 v{vTR}, 320, v{t0}")
    I(f"v_and_b32 v{t1}, 3, v{LANE}")
    I(f"v_lshl_add_u32 v{vTR}, v{t1}, 4, v{vTR}")
    I(f"v_add_u32 v{vTRh}, 0x10000, v{vTR}")
    srd(k, SP, 14, 15, PART_SIZE, PART_OFF)
    srd(k, SDBG, 12, 13, 256)
    vZero, vAOff, vNon = 18, 19, 20
    I(f"v_mov_b32 v{vZero}, 0")
    I(f"v_mov_b32 v{t1}, 0x100000")
    I(f"v_cmp_eq_u32 vcc, 0, v0")
    I(f"v_cndmask_b32 v{vAOff}, v{t1}, v{vZero}, vcc")
    if fused:
        I(f"s_mov_b32 s{sNonce}, s{sNonceIn}")
        I(f"v_mov_b32 v{vNon}, s{sNonce}")
    else:
        k.I("s_memrealtime s[50:51]")
        k.I("s_waitcnt lgkmcnt(0)")
        k.I(f"s_or_b32 s{sNonce}, s50, 1")
        I(f"v_mov_b32 v{vNon}, s{sNonce}")
        I(f"v_mov_b32 v{vNon+1}, 0")
        k.I(f"buffer_atomic_cmpswap v[{vNon}:{vNon+1}], v{vAOff}, s[{SDBG}:{SDBG+3}], 0 offen sc0 sc1", tag="nonce")
    sE1, sE2 = 60+28, 60+29
    srd(k, SX, 4, 5, 2048*640*2)
    srd(k, SWR, 8, 9, 1280)
    srd(k, SH, 14, 15, H_SIZE, H_OFF)
    srd(k, SACC, 14, 15, ACC_SIZE, ACC_OFF)
    srd(k, SFL, 14, 15, FLG_SIZE, FLG_OFF)
    vO, vWo, vRow = 9, 22, 23
    I(f"s_lshl_b32 s{sT}, s{sRT}, 7")
    I(f"s_lshl_b32 s{sE1}, s{sKS}, 5")
    I(f"s_add_u32 s{sT}, s{sT}, s{sE1}")
    I(f"s_and_b32 s{sE1}, s{sW}, 1")
    I(f"s_lshl_b32 s{sE1}, s{sE1}, 4")
    I(f"s_add_u32 s{sT}, s{sT}, s{sE1}")
    I(f"v_and_b32 v{t0}, 15, v{LANE}")
    I(f"v_add_u32 v{vRow}, s{sT}, v{t0}")
    I(f"v_mul_u32_u24 v{vO}, 1280, v{vRow}")
    I(f"s_lshr_b32 s{sE2}, s{sW}, 1")
    I(f"s_mul_i32 s{sT}, s{sE2}, 192")
    I(f"s_mul_i32 s{sE1}, s{sCT}, 320")
    I(f"s_add_u32 s{sT}, s{sT}, s{sE1}")
    I(f"v_lshrrev_b32 v{t1}, 4, v{LANE}")
    I(f"v_lshlrev_b32 v{t1}, 4, v{t1}")
    I(f"v_add_u32 v{vWo}, s{sT}, v{t1}")
    I(f"v_add_u32 v{vO}, v{vO}, v{vWo}")
    I(f"s_cmp_eq_u32 s{sE2}, 0")
    I(f"s_cselect_b32 s{sE1}, 0, 0x4000000")
    XV, WRV = 184, 196
    for u in range(3):
        so = "0" if u < 2 else f"s{sE1}"
        k.I(f"buffer_load_dwordx4 v[{XV+4*u}:{XV+4*u+3}], v{vO}, s[{SX}:{SX+3}], {so} offen offset:{64*u}", tag="k3xw")
        k.I(f"buffer_load_dwordx4 v[{WRV+4*u}:{WRV+4*u+3}], v{vWo}, s[{SWR}:{SWR+3}], {so} offen offset:{64*u}", tag="k3xw")
    ACC, WF = 24, 104
    def wreads(t):
        g, s = t >> 2, t & 3
        out = []
        for nt in range(10):
            off = (g % 3)*40960 + s*10240 + (nt >> 1)*64 + (nt & 1)*8
            vb, off = (vTR, off) if off + 8*320 < 65536 else (vTRh, off - 65536)
            r = WF + (t & 1)*40 + nt*4
            out.append(f"ds_read_b64_tr_b16 v[{r}:{r+1}], v{vb} offset:{off}")
            out.append(f"ds_read_b64_tr_b16 v[{r+2}:{r+3}], v{vb} offset:{off + 8*320}")
        return out
    mark_(k, diag, 0)
    if fused:
        I(f"s_lshl_b32 s{sT}, s{sRT}, 2")
        I(f"s_add_u32 s{sT}, s{sT}, s{sKS}")
        I(f"s_add_u32 s{sT}, s{sT}, 160")
        I(f"s_lshl_b32 s{sT}, s{sT}, 7")
        I(f"v_lshlrev_b32 v{t0}, 2, v{LANE}")
        I(f"v_mov_b32 v{t1}, 0x100000")
        I(f"v_cmp_gt_u32 vcc, 8, v0")
        I(f"v_cndmask_b32 v{t0}, v{t1}, v{t0}, vcc")
        I(f"s_cmp_lg_u32 s{sW}, 0")
        k.I("s_cbranch_scc1 Lk3_cok")
        k.I(f"s_mov_b32 s{sT2}, {SPIN_MAX}")
        k.L("Lk3_cspin")
        k.I(f"buffer_load_dword v{t2}, v{t0}, s[{SFL}:{SFL+3}], s{sT} offen sc1"); k.vm.pop()
        k.I("s_waitcnt vmcnt(0)")
        k.I(f"v_cmp_eq_u32 vcc, v{vNon}, v{t2}")
        k.I(f"s_and_b32 s51, vcc_lo, 0xff")
        k.I(f"s_sub_u32 s{sT2}, s{sT2}, 1")
        k.I("s_cbranch_scc1 Lk3_cok")
        k.I(f"s_cmp_eq_u32 s51, 0xff")
        k.I("s_cbranch_scc0 Lk3_cspin")
        k.L("Lk3_cok")
        k.wait_vm("k3W0", expect=10)
        I("s_barrier")
        for t in range(DC): cload(t)
    else:
        k.wait_vm("k3W0", expect=10)
        I("s_barrier")
    for x in wreads(0): I(x)
    memq = [lambda u=u: wdma(2, u) for u in range(10)]
    for t in range(32):
        g, s = t >> 2, t & 3
        if s == 3 and g < 7:
            I("s_waitcnt lgkmcnt(0)")
            k.wait_vm(f"k3W{g+1}", expect=10)
            I("s_barrier")
            if g + 3 < 8: memq += [lambda u=u, g=g: wdma(g + 3, u) for u in range(10)]
        if t + DC < 32: memq.insert(0, lambda t=t: cload(t + DC))
        reads = wreads(t + 1) if t + 1 < 32 else []
        k.wait_vm(f"k3c{t}", expect=2)
        gi = 0
        for rs in range(2):
            for nt in range(10):
                d = ACC + (rs*10 + nt)*4
                a = (t % NC)*8 + rs*4
                w = WF + (t & 1)*40 + nt*4
                c = "0" if t == 0 else f"v[{d}:{d+3}]"
                I(f"v_mfma_f32_16x16x32_bf16 v[{d}:{d+3}], v[{w}:{w+3}], a[{a}:{a+3}], {c}")
                if reads: I(reads.pop(0))
                if memq and gi % 4 == 1: memq.pop(0)()
                gi += 1
        while reads: I(reads.pop(0))
        if t in (7, 15, 23): mark_(k, diag, 1 + t//8)
    assert not memq
    mark_(k, diag, 4)
    if codepf: code_touch(k, k.name, "k5_kernel", "Lcode_end", 4, 64, 6, 7, 8)
    I(f"s_lshl_b32 s{sPb}, s{sRT}, 2")
    I(f"s_add_u32 s{sPb}, s{sPb}, s{sCT}")
    I(f"s_mov_b32 s51, s{sPb}")
    I(f"s_lshl_b32 s{sPb}, s{sPb}, 4")
    I(f"s_lshl_b32 s{sT}, s{sW}, 2")
    I(f"s_add_u32 s{sT}, s{sT}, s{sKS}")
    I(f"s_add_u32 s{sT}, s{sT}, s{sPb}")
    I(f"s_mul_i32 s{sT2}, s{sT}, 10240")
    STG = WF
    for rs in range(2):
        for p in range(5):
            st = STG + ((rs*5 + p) % 4)*4
            for h2 in range(2):
                d = ACC + (rs*10 + 2*p + h2)*4
                I(f"v_cvt_pk_bf16_f32 v{st+2*h2}, v{d}, v{d+1}")
                I(f"v_cvt_pk_bf16_f32 v{st+2*h2+1}, v{d+2}, v{d+3}")
            I(f"s_add_u32 s{sT}, s{sT2}, {(rs*5 + p)*1024}")
            k.I(f"buffer_store_dwordx4 v[{st}:{st+3}], v{vL16}, s[{SP}:{SP+3}], s{sT} offen sc1", tag="k3pst")
    if not fused:
        k.wait_vm("nonce")
        I(f"v_readfirstlane_b32 s{sT}, v{vNon}")
        I(f"s_cmp_eq_u32 s{sT}, 0")
        I(f"s_cselect_b32 s{sNonce}, s{sNonce}, s{sT}")
        I(f"v_mov_b32 v{vNon}, s{sNonce}")
    k.wait_vm("k3pst", expect=10)
    I("s_barrier")
    I(f"s_add_u32 s{sT}, s51, 96")
    I(f"s_lshl_b32 s{sT}, s{sT}, 7")
    I(f"s_lshl_b32 s{sT2}, s{sKS}, 2")
    I(f"s_add_u32 s{sT2}, s{sT2}, s{sT}")
    k.I(f"buffer_store_dword v{vNon}, v{vAOff}, s[{SFL}:{SFL+3}], s{sT2} offen sc1")
    I(f"v_lshlrev_b32 v{t0}, 2, v{LANE}")
    I(f"v_mov_b32 v{t1}, 0x100000")
    I(f"v_cmp_gt_u32 vcc, 4, v0")
    I(f"v_cndmask_b32 v{t0}, v{t1}, v{t0}, vcc")
    mark_(k, diag, 5)
    I(f"s_cmp_lg_u32 s{sW}, 0")
    I("s_cbranch_scc1 Lk3_ok")
    I(f"s_mov_b32 s{sT2}, {SPIN_MAX}")
    k.L("Lk3_spin")
    k.I(f"buffer_load_dword v{t2}, v{t0}, s[{SFL}:{SFL+3}], s{sT} offen sc1"); k.vm.pop()
    k.I("s_waitcnt vmcnt(0)")
    k.I(f"v_cmp_eq_u32 vcc, v{vNon}, v{t2}")
    k.I(f"s_and_b32 s{sCb}, vcc_lo, 0xf") if False else None
    k.I(f"s_and_b32 s51, vcc_lo, 0xf")
    k.I(f"s_sub_u32 s{sT2}, s{sT2}, 1")
    k.I("s_cbranch_scc1 Lk3_ok")
    k.I(f"s_cmp_eq_u32 s51, 0xf")
    k.I("s_cbranch_scc0 Lk3_spin")
    k.L("Lk3_ok")
    I("s_barrier")
    mark_(k, diag, 6)
    I(f"s_lshl_b32 s{sT}, s{sKS}, 2")
    I(f"s_add_u32 s{sT}, s{sT}, s{sPb}")
    I(f"s_mul_i32 s{sT}, s{sT}, 10240")
    I(f"s_and_b32 s{sT2}, s{sW}, 1")
    I(f"s_mul_i32 s{sT2}, s{sT2}, 5")
    I(f"s_mul_i32 s51, s{sE2}, 3")
    I(f"s_add_u32 s{sT2}, s{sT2}, s51")
    I(f"s_lshl_b32 s{sT2}, s{sT2}, 10")
    I(f"s_add_u32 s{sT}, s{sT}, s{sT2}")
    P = 48
    for f in range(4):
        I(f"s_add_u32 s{sT2}, s{sT}, {f*10240}")
        for u in range(3):
            r = P + (f*3 + u)*4
            k.I(f"buffer_load_dwordx4 v[{r}:{r+3}], v{vL16}, s[{SP}:{SP+3}], s{sT2} offen offset:{u*1024}", tag="k3part")
    k.wait_vm("k3part")
    A = 104; HP = 128; ta, tb = 12, 13
    S1, S2, S3 = 14, 15, 16
    I(f"v_mov_b32 v{S1}, 0"); I(f"v_mov_b32 v{S2}, 0"); I(f"v_mov_b32 v{S3}, 0")
    for u in range(3):
        if u == 2:
            I(f"s_cmp_lg_u32 s{sE2}, 0")
            I("s_cbranch_scc1 Lk3_u2done")
        for q in range(4):
            i = 2*q
            for f in range(4):
                r = P + (f*3 + u)*4 + q
                if f == 0:
                    I(f"v_lshlrev_b32 v{A+i}, 16, v{r}")
                    I(f"v_and_b32 v{A+i+1}, 0xffff0000, v{r}")
                else:
                    I(f"v_lshlrev_b32 v{ta}, 16, v{r}")
                    I(f"v_and_b32 v{tb}, 0xffff0000, v{r}")
                    I(f"v_add_f32 v{A+i}, v{A+i}, v{ta}")
                    I(f"v_add_f32 v{A+i+1}, v{A+i+1}, v{tb}")
            I(f"v_cvt_pk_bf16_f32 v{ta}, v{A+i}, v{A+i+1}")
            I(f"v_lshlrev_b32 v{A+i}, 16, v{ta}")
            I(f"v_and_b32 v{A+i+1}, 0xffff0000, v{ta}")
            I(f"v_lshlrev_b32 v{ta}, 16, v{XV+4*u+q}")
            I(f"v_and_b32 v{tb}, 0xffff0000, v{XV+4*u+q}")
            I(f"v_add_f32 v{A+i}, v{A+i}, v{ta}")
            I(f"v_add_f32 v{A+i+1}, v{A+i+1}, v{tb}")
            I(f"v_cvt_pk_bf16_f32 v{HP+4*u+q}, v{A+i}, v{A+i+1}")
            I(f"v_lshlrev_b32 v{A+i}, 16, v{HP+4*u+q}")
            I(f"v_and_b32 v{A+i+1}, 0xffff0000, v{HP+4*u+q}")
            I(f"v_lshlrev_b32 v{ta}, 16, v{WRV+4*u+q}")
            I(f"v_and_b32 v{tb}, 0xffff0000, v{WRV+4*u+q}")
            I(f"v_add_f32 v{S1}, v{S1}, v{A+i}")
            I(f"v_fmac_f32 v{S2}, v{A+i}, v{A+i}")
            I(f"v_fmac_f32 v{S3}, v{A+i}, v{ta}")
            I(f"v_add_f32 v{S1}, v{S1}, v{A+i+1}")
            I(f"v_fmac_f32 v{S2}, v{A+i+1}, v{A+i+1}")
            I(f"v_fmac_f32 v{S3}, v{A+i+1}, v{tb}")
        k.I(f"buffer_store_dwordx4 v[{HP+4*u}:{HP+4*u+3}], v{vO}, s[{SH}:{SH+3}], 0 offen offset:{64*u}")
    k.L("Lk3_u2done")
    for a in (S1, S2, S3):
        I(f"v_mov_b32 v{tb}, v{a}")
        I(f"v_permlane16_swap_b32 v{a}, v{tb}")
        I(f"v_add_f32 v{a}, v{a}, v{tb}")
        I(f"v_mov_b32 v{tb}, v{a}")
        I(f"v_permlane32_swap_b32 v{a}, v{tb}")
        I(f"v_add_f32 v{a}, v{a}, v{tb}")
    I(f"v_lshlrev_b32 v{t0}, 2, v{vRow}")
    I(f"v_mov_b32 v{t1}, 0x100000")
    I(f"v_cmp_gt_u32 vcc, 16, v{LANE}")
    I(f"v_cndmask_b32 v{t0}, v{t1}, v{t0}, vcc")
    for i, a in enumerate((S1, S2, S3)):
        I(f"s_mov_b32 s{sT}, {i*8192}")
        k.I(f"buffer_atomic_add_f32 v{a}, v{t0}, s[{SACC}:{SACC+3}], s{sT} offen")
    mark_(k, diag, 7)
```

```python
import sys, os
sys.path.insert(0, os.path.dirname(__file__))
from common import *
NAME = "sequential_preLN__compressed_kv_cla__moe_arch_mod__prompt"
HEADER = """; Kernarg layout (112 bytes, ptrs only): x, c_kv, w_q, w_uk, w_uv, w_o, B_x, w_r, w_gate, w_up, w_down, out, debug, ws
"""
def build(kernels, path):
    out = [HEADER]
    for (k, v, a, lds, grid, block) in kernels:
        out.append(f"; @launch kernel={k.name} grid=({grid},1,1) block=({block},1,1) lds={lds}\n")
    out.append('.amdgcn_target "amdgcn-amd-amdhsa--gfx950"\n.text\n')
    descs = []
    for (k, v, a, lds, grid, block) in kernels:
        body, desc = kernel_text(k, v, a)
        out.append(body); descs.append(desc)
    out.append("Lcode_end:\n    s_endpgm\n")
    out.append('.section .rodata,"a"\n')
    for d in descs: out.append(".p2align 6\n" + d)
    open(path, "w").write("".join(out))

def all_kernels(diag=False, upto=99, opts={}):
    ks = []
    import k2 as _k2
    _k2.SPLITK = bool(opts.get("fused", True) and opts.get("splitk", True) and not opts.get("k3c", True))
    _k2.RETILE = True
    if opts.get("fused", True):
        from k12 import gen_k12
        k, v, a, lds = gen_k12(diag, **opts.get("k12", {})); ks.append((k, v, a, lds, 256, 256))
        if opts.get("k3c", True):
            _k2.RETILE = False
            _k2.CODEPF2 = bool(opts.get("codepf2", False))
            from k3c import gen_k3c
            from k5 import gen_k5, gen_k6
            ks.clear()
            k, v, a, lds = gen_k12(diag, **opts.get("k12", {})); ks.append((k, v, a, lds, 256, 256))
            f3 = opts.get("k12", {}).get("FUSE3", True)
            if not f3:
                k, v, a, lds = gen_k3c(diag, kidx=1, **opts.get("k3", {})); ks.append((k, v, a, lds, 256, 256))
            if f3 and opts.get("k12", {}).get("ALLTAIL", True): return ks
            k, v, a, lds, grid = gen_k5(diag, kidx=1 if f3 else 2); ks.append((k, v, a, lds, grid, 256))
            k, v, a, lds, grid = gen_k6(diag, kidx=2 if f3 else 3); ks.append((k, v, a, lds, grid, 256))
            return ks
        if opts.get("splitk", True):
            from k3b import gen_k3b
            from k4 import gen_k4
            from k5 import gen_k5, gen_k6
            k, v, a, lds = gen_k3b(diag, kidx=1, **opts.get("k3", {})); ks.append((k, v, a, lds, 256, 256))
            k, v, a, lds, grid = gen_k4(diag, kidx=2); ks.append((k, v, a, lds, grid, 640))
            k, v, a, lds, grid = gen_k5(diag, kidx=3, rt=True); ks.append((k, v, a, lds, grid, 256))
            k, v, a, lds, grid = gen_k6(diag, kidx=4); ks.append((k, v, a, lds, grid, 256))
            return ks
        if upto >= 3:
            from k3 import gen_k3
            k, v, a, lds = gen_k3(diag, kidx=1, **opts.get("k3", {})); ks.append((k, v, a, lds, 256, 256))
        if upto >= 4:
            from k5 import gen_k5, gen_k6
            k, v, a, lds, grid = gen_k5(diag, kidx=2, **opts.get("k5", {})); ks.append((k, v, a, lds, grid, 256))
            k, v, a, lds, grid = gen_k6(diag, kidx=3, **opts.get("k6", {})); ks.append((k, v, a, lds, grid, 256))
        return ks
    from k1 import gen_k1
    k, v, a, lds = gen_k1(diag, **opts.get("k1", {})); ks.append((k, v, a, lds, 256, 256))
    if upto >= 2:
        from k2 import gen_k2
        k, v, a, lds = gen_k2(diag, **opts.get("k2", {})); ks.append((k, v, a, lds, 256, 256))
    if upto >= 3:
        from k3 import gen_k3
        k, v, a, lds = gen_k3(diag, **opts.get("k3", {})); ks.append((k, v, a, lds, 256, 256))
    if upto >= 4:
        from k5 import gen_k5, gen_k6
        k, v, a, lds, grid = gen_k5(diag, **opts.get("k5", {})); ks.append((k, v, a, lds, grid, 256))
        k, v, a, lds, grid = gen_k6(diag, **opts.get("k6", {})); ks.append((k, v, a, lds, grid, 256))
    return ks

if __name__ == "__main__":
    upto = int(sys.argv[1]) if len(sys.argv) > 1 else 99
    diag = len(sys.argv) > 2 and sys.argv[2] == "diag"
    path = sys.argv[3] if len(sys.argv) > 3 else f"cdna_kernels/{NAME}.s"
    import json
    opts = json.loads(os.environ.get("OPTS", "{}"))
    build(all_kernels(diag, upto, opts), path)
    print("wrote", path, os.path.getsize(path))
```

```python
from common import *
from k12 import Flat, SPIN_MAX

def gen_k3c(diag=False, kidx=1, DC=6, codepf=False):
    k = Kern("k3_kernel")
    k.I("s_cmp_ge_u32 s2, 256")
    k.I("s_cbranch_scc1 Lk3_end")
    stamp_begin(k, diag)
    emit_k3c(k, diag, DC, codepf, fused=False)
    dump_marks(k, diag, kidx, 14, 15, 8)
    stamp_end(k, diag, kidx, 14, 15, vtmp=8)
    k.L("Lk3_end")
    k.I("s_endpgm")
    k.fix_hazards()
    pr = check_waits(k.items, "k3c")
    pr = [p_ for p_ in pr if "Lk3" not in p_]
    for p_ in pr[:10]: print(p_)
    return k, 208, 64, 3*40960

def emit_k3c(k, diag, DC=6, codepf=False, fused=False, sNonceIn=None, alltail=False, endlabel=None):
    fl = Flat(k); I = fl.emit
    mark_ = (lambda k_, d_, i_: None) if fused else mark
    I(f"s_load_dwordx2 s[14:15], s[0:1], {KA['ws']}")
    I(f"s_load_dwordx2 s[6:7], s[0:1], {KA['wo']}")
    I(f"s_load_dwordx2 s[4:5], s[0:1], {KA['x']}")
    I(f"s_load_dwordx2 s[8:9], s[0:1], {KA['wr']}")
    I(f"s_load_dwordx2 s[12:13], s[0:1], {KA['dbg']}")
    LANE = 2
    I("v_lshrrev_b32 v1, 6, v0")
    I(f"v_and_b32 v{LANE}, 63, v0")
    sW, sKS, sRT, sCT, sT, sT2, sCb, sWb, sWL, sPb, sNonce = 40, 41, 42, 43, 44, 45, 46, 47, 48, 49, 50
    I(f"v_readfirstlane_b32 s{sW}, v1")
    I(f"s_and_b32 s{sT}, s2, 7")
    I(f"s_lshr_b32 s{sKS}, s{sT}, 1")
    I(f"s_and_b32 s{sRT}, s{sT}, 1")
    I(f"s_lshl_b32 s{sRT}, s{sRT}, 3")
    I(f"s_lshr_b32 s{sT2}, s2, 3")
    I(f"s_and_b32 s{sCT}, s{sT2}, 3")
    I(f"s_lshr_b32 s{sT2}, s{sT2}, 2")
    I(f"s_add_u32 s{sRT}, s{sRT}, s{sT2}")
    I("s_waitcnt lgkmcnt(0)")
    fl.pend = []
    SCTX, SWO, SP, SX, SWR, SH, SACC, SFL, SDBG = 16, 20, 24, 28, 32, 36, 52, 56, 84
    srd(k, SCTX, 14, 15, CTX_SIZE, CTX_OFF)
    srd(k, SWO, 6, 7, 4096*640*2)
    vC, vL16, t0, t1, t2 = 3, 4, 6, 7, 8
    vWD = 10
    vTR, vTRh = 16, 17
    I(f"v_lshrrev_b32 v{t0}, 5, v{LANE}")
    I(f"v_lshlrev_b32 v{vC}, 10, v{t0}")
    I(f"v_bfe_u32 v{t0}, v{LANE}, 4, 1")
    I(f"v_lshl_add_u32 v{vC}, v{t0}, 9, v{vC}")
    I(f"v_and_b32 v{t0}, 15, v{LANE}")
    I(f"v_lshl_add_u32 v{vC}, v{t0}, 4, v{vC}")
    I(f"v_lshlrev_b32 v{vL16}, 4, v{LANE}")
    I(f"s_mov_b32 s{sT}, 3277")
    for u in range(5):
        I(f"v_add_u32 v{t0}, {64*u}, v{LANE}")
        I(f"v_mul_lo_u32 v{t1}, v{t0}, s{sT}")
        I(f"v_lshrrev_b32 v{t1}, 16, v{t1}")
        I(f"v_mul_u32_u24 v{t2}, 20, v{t1}")
        I(f"v_sub_u32 v{t2}, v{t0}, v{t2}")
        I(f"v_mul_u32_u24 v{t1}, 1280, v{t1}")
        I(f"v_lshl_add_u32 v{vWD+u}, v{t2}, 4, v{t1}")
    I(f"s_lshl_b32 s{sCb}, s{sRT}, 2")
    I(f"s_add_u32 s{sCb}, s{sCb}, s{sW}")
    I(f"s_lshl_b32 s{sCb}, s{sCb}, 5")
    I(f"s_lshl_b32 s{sT}, s{sKS}, 3")
    I(f"s_add_u32 s{sCb}, s{sCb}, s{sT}")
    I(f"s_lshl_b32 s{sCb}, s{sCb}, 13")
    I(f"s_lshl_b32 s{sWb}, s{sKS}, 10")
    I(f"s_lshl_b32 s{sT}, s{sW}, 5")
    I(f"s_add_u32 s{sWb}, s{sWb}, s{sT}")
    I(f"s_mul_i32 s{sWb}, s{sWb}, 1280")
    I(f"s_mul_i32 s{sT}, s{sCT}, 320")
    I(f"s_add_u32 s{sWb}, s{sWb}, s{sT}")
    I(f"s_mul_i32 s{sWL}, s{sW}, 10240")
    def wdma(g, u):
        k.I(f"s_add_u32 m0, s{sWL}, {(g % 3)*40960 + u*1024}")
        k.I(f"s_add_u32 s{sT}, s{sWb}, {(g*128 + (u // 5)*16)*1280}")
        k.I(f"buffer_load_dwordx4 v{vWD + u % 5}, s[{SWO}:{SWO+3}], s{sT} offen lds", tag=f"k3W{g}")
    NC = DC + 1
    def cload(t):
        a = (t % NC)*8
        k.I(f"s_add_u32 s{sT2}, s{sCb}, {(t >> 2)*8192 + (t & 3)*2048}")
        k.I(f"buffer_load_dwordx4 a[{a}:{a+3}], v{vC}, s[{SCTX}:{SCTX+3}], s{sT2} offen", tag=f"k3c{t}")
        k.I(f"buffer_load_dwordx4 a[{a+4}:{a+7}], v{vC}, s[{SCTX}:{SCTX+3}], s{sT2} offen offset:256", tag=f"k3c{t}")
    if fused:
        for u in range(10): wdma(0, u)
        for u in range(10): wdma(1, u)
    else:
        for u in range(10): wdma(0, u)
        for t in range(2): cload(t)
        for u in range(10): wdma(1, u)
        for t in range(2, DC): cload(t)
    I(f"v_lshrrev_b32 v{t0}, 5, v{LANE}")
    I(f"v_lshlrev_b32 v{t0}, 4, v{t0}")
    I(f"v_bfe_u32 v{t1}, v{LANE}, 4, 1")
    I(f"v_lshl_add_u32 v{t0}, v{t1}, 2, v{t0}")
    I(f"v_bfe_u32 v{t1}, v{LANE}, 2, 2")
    I(f"v_add_u32 v{t0}, v{t0}, v{t1}")
    I(f"v_mul_u32_u24 v{vTR}, 320, v{t0}")
    I(f"v_and_b32 v{t1}, 3, v{LANE}")
    I(f"v_lshl_add_u32 v{vTR}, v{t1}, 4, v{vTR}")
    I(f"v_add_u32 v{vTRh}, 0x10000, v{vTR}")
    srd(k, SP, 14, 15, PART_SIZE, PART_OFF)
    srd(k, SDBG, 12, 13, 256)
    vZero, vAOff, vNon = 18, 19, 20
    I(f"v_mov_b32 v{vZero}, 0")
    I(f"v_mov_b32 v{t1}, 0x100000")
    I(f"v_cmp_eq_u32 vcc, 0, v0")
    I(f"v_cndmask_b32 v{vAOff}, v{t1}, v{vZero}, vcc")
    if fused:
        I(f"s_mov_b32 s{sNonce}, s{sNonceIn}")
        I(f"v_mov_b32 v{vNon}, s{sNonce}")
    else:
        k.I("s_memrealtime s[50:51]")
        k.I("s_waitcnt lgkmcnt(0)")
        k.I(f"s_or_b32 s{sNonce}, s50, 1")
        I(f"v_mov_b32 v{vNon}, s{sNonce}")
        I(f"v_mov_b32 v{vNon+1}, 0")
        k.I(f"buffer_atomic_cmpswap v[{vNon}:{vNon+1}], v{vAOff}, s[{SDBG}:{SDBG+3}], 0 offen sc0 sc1", tag="nonce")
    sE1, sE2 = 60+28, 60+29
    srd(k, SX, 4, 5, 2048*640*2)
    srd(k, SWR, 8, 9, 1280)
    srd(k, SH, 14, 15, H_SIZE, H_OFF)
    srd(k, SACC, 14, 15, ACC_SIZE, ACC_OFF)
    srd(k, SFL, 14, 15, FLG_SIZE, FLG_OFF)
    vO, vWo, vRow = 9, 22, 23
    I(f"s_lshl_b32 s{sT}, s{sRT}, 7")
    I(f"s_lshl_b32 s{sE1}, s{sKS}, 5")
    I(f"s_add_u32 s{sT}, s{sT}, s{sE1}")
    I(f"s_and_b32 s{sE1}, s{sW}, 1")
    I(f"s_lshl_b32 s{sE1}, s{sE1}, 4")
    I(f"s_add_u32 s{sT}, s{sT}, s{sE1}")
    I(f"v_and_b32 v{t0}, 15, v{LANE}")
    I(f"v_add_u32 v{vRow}, s{sT}, v{t0}")
    I(f"v_mul_u32_u24 v{vO}, 1280, v{vRow}")
    I(f"s_lshr_b32 s{sE2}, s{sW}, 1")
    I(f"s_mul_i32 s{sT}, s{sE2}, 192")
    I(f"s_mul_i32 s{sE1}, s{sCT}, 320")
    I(f"s_add_u32 s{sT}, s{sT}, s{sE1}")
    I(f"v_lshrrev_b32 v{t1}, 4, v{LANE}")
    I(f"v_lshlrev_b32 v{t1}, 4, v{t1}")
    I(f"v_add_u32 v{vWo}, s{sT}, v{t1}")
    I(f"v_add_u32 v{vO}, v{vO}, v{vWo}")
    I(f"s_cmp_eq_u32 s{sE2}, 0")
    I(f"s_cselect_b32 s{sE1}, 0, 0x4000000")
    XV, WRV = 184, 196
    for u in range(3):
        so = "0" if u < 2 else f"s{sE1}"
        k.I(f"buffer_load_dwordx4 v[{XV+4*u}:{XV+4*u+3}], v{vO}, s[{SX}:{SX+3}], {so} offen offset:{64*u}", tag="k3xw")
        k.I(f"buffer_load_dwordx4 v[{WRV+4*u}:{WRV+4*u+3}], v{vWo}, s[{SWR}:{SWR+3}], {so} offen offset:{64*u}", tag="k3xw")
    ACC, WF = 24, 104
    def wreads(t):
        g, s = t >> 2, t & 3
        out = []
        for nt in range(10):
            off = (g % 3)*40960 + s*10240 + (nt >> 1)*64 + (nt & 1)*8
            vb, off = (vTR, off) if off + 8*320 < 65536 else (vTRh, off - 65536)
            r = WF + (t & 1)*40 + nt*4
            out.append(f"ds_read_b64_tr_b16 v[{r}:{r+1}], v{vb} offset:{off}")
            out.append(f"ds_read_b64_tr_b16 v[{r+2}:{r+3}], v{vb} offset:{off + 8*320}")
        return out
    mark_(k, diag, 0)
    if fused:
        I(f"s_lshl_b32 s{sT}, s{sRT}, 2")
        I(f"s_add_u32 s{sT}, s{sT}, s{sKS}")
        I(f"s_add_u32 s{sT}, s{sT}, 160")
        I(f"s_lshl_b32 s{sT}, s{sT}, 7")
        I(f"v_lshlrev_b32 v{t0}, 2, v{LANE}")
        I(f"v_mov_b32 v{t1}, 0x100000")
        I(f"v_cmp_gt_u32 vcc, 8, v0")
        I(f"v_cndmask_b32 v{t0}, v{t1}, v{t0}, vcc")
        I(f"s_cmp_lg_u32 s{sW}, 0")
        k.I("s_cbranch_scc1 Lk3_cok")
        k.I(f"s_mov_b32 s{sT2}, {SPIN_MAX}")
        k.L("Lk3_cspin")
        k.I(f"buffer_load_dword v{t2}, v{t0}, s[{SFL}:{SFL+3}], s{sT} offen sc1"); k.vm.pop()
        k.I("s_waitcnt vmcnt(0)")
        k.I(f"v_cmp_eq_u32 vcc, v{vNon}, v{t2}")
        k.I(f"s_and_b32 s51, vcc_lo, 0xff")
        k.I(f"s_sub_u32 s{sT2}, s{sT2}, 1")
        k.I("s_cbranch_scc1 Lk3_cok")
        k.I(f"s_cmp_eq_u32 s51, 0xff")
        k.I("s_cbranch_scc0 Lk3_cspin")
        k.L("Lk3_cok")
        k.wait_vm("k3W0", expect=10)
        I("s_barrier")
        for t in range(DC): cload(t)
    else:
        k.wait_vm("k3W0", expect=10)
        I("s_barrier")
    for x in wreads(0): I(x)
    memq = [lambda u=u: wdma(2, u) for u in range(10)]
    for t in range(32):
        g, s = t >> 2, t & 3
        if s == 3 and g < 7:
            I("s_waitcnt lgkmcnt(0)")
            k.wait_vm(f"k3W{g+1}", expect=10)
            I("s_barrier")
            if g + 3 < 8: memq += [lambda u=u, g=g: wdma(g + 3, u) for u in range(10)]
        if t + DC < 32: memq.insert(0, lambda t=t: cload(t + DC))
        reads = wreads(t + 1) if t + 1 < 32 else []
        k.wait_vm(f"k3c{t}", expect=2)
        gi = 0
        for rs in range(2):
            for nt in range(10):
                d = ACC + (rs*10 + nt)*4
                a = (t % NC)*8 + rs*4
                w = WF + (t & 1)*40 + nt*4
                c = "0" if t == 0 else f"v[{d}:{d+3}]"
                I(f"v_mfma_f32_16x16x32_bf16 v[{d}:{d+3}], v[{w}:{w+3}], a[{a}:{a+3}], {c}")
                if reads: I(reads.pop(0))
                if memq and gi % 4 == 1: memq.pop(0)()
                gi += 1
        while reads: I(reads.pop(0))
        if t in (7, 15, 23): mark_(k, diag, 1 + t//8)
    assert not memq
    mark_(k, diag, 4)
    if codepf: code_touch(k, k.name, "k5_kernel", "Lcode_end", 4, 64, 6, 7, 8)
    I(f"s_lshl_b32 s{sPb}, s{sRT}, 2")
    I(f"s_add_u32 s{sPb}, s{sPb}, s{sCT}")
    I(f"s_mov_b32 s51, s{sPb}")
    I(f"s_lshl_b32 s{sPb}, s{sPb}, 4")
    I(f"s_lshl_b32 s{sT}, s{sW}, 2")
    I(f"s_add_u32 s{sT}, s{sT}, s{sKS}")
    I(f"s_add_u32 s{sT}, s{sT}, s{sPb}")
    I(f"s_mul_i32 s{sT2}, s{sT}, 10240")
    STG = WF
    for rs in range(2):
        for p in range(5):
            st = STG + ((rs*5 + p) % 4)*4
            for h2 in range(2):
                d = ACC + (rs*10 + 2*p + h2)*4
                I(f"v_cvt_pk_bf16_f32 v{st+2*h2}, v{d}, v{d+1}")
                I(f"v_cvt_pk_bf16_f32 v{st+2*h2+1}, v{d+2}, v{d+3}")
            I(f"s_add_u32 s{sT}, s{sT2}, {(rs*5 + p)*1024}")
            k.I(f"buffer_store_dwordx4 v[{st}:{st+3}], v{vL16}, s[{SP}:{SP+3}], s{sT} offen sc1", tag="k3pst")
    if not fused:
        k.wait_vm("nonce")
        I(f"v_readfirstlane_b32 s{sT}, v{vNon}")
        I(f"s_cmp_eq_u32 s{sT}, 0")
        I(f"s_cselect_b32 s{sNonce}, s{sNonce}, s{sT}")
        I(f"v_mov_b32 v{vNon}, s{sNonce}")
    k.wait_vm("k3pst", expect=10)
    I("s_barrier")
    I(f"s_add_u32 s{sT}, s51, 96")
    I(f"s_lshl_b32 s{sT}, s{sT}, 7")
    I(f"s_lshl_b32 s{sT2}, s{sKS}, 2")
    I(f"s_add_u32 s{sT2}, s{sT2}, s{sT}")
    k.I(f"buffer_store_dword v{vNon}, v{vAOff}, s[{SFL}:{SFL+3}], s{sT2} offen sc1")
    I(f"v_lshlrev_b32 v{t0}, 2, v{LANE}")
    I(f"v_mov_b32 v{t1}, 0x100000")
    I(f"v_cmp_gt_u32 vcc, 4, v0")
    I(f"v_cndmask_b32 v{t0}, v{t1}, v{t0}, vcc")
    mark_(k, diag, 5)
    I(f"s_cmp_lg_u32 s{sW}, 0")
    I("s_cbranch_scc1 Lk3_ok")
    I(f"s_mov_b32 s{sT2}, {SPIN_MAX}")
    k.L("Lk3_spin")
    k.I(f"buffer_load_dword v{t2}, v{t0}, s[{SFL}:{SFL+3}], s{sT} offen sc1"); k.vm.pop()
    k.I("s_waitcnt vmcnt(0)")
    k.I(f"v_cmp_eq_u32 vcc, v{vNon}, v{t2}")
    k.I(f"s_and_b32 s{sCb}, vcc_lo, 0xf") if False else None
    k.I(f"s_and_b32 s51, vcc_lo, 0xf")
    k.I(f"s_sub_u32 s{sT2}, s{sT2}, 1")
    k.I("s_cbranch_scc1 Lk3_ok")
    k.I(f"s_cmp_eq_u32 s51, 0xf")
    k.I("s_cbranch_scc0 Lk3_spin")
    k.L("Lk3_ok")
    I("s_barrier")
    mark_(k, diag, 6)
    I(f"s_lshl_b32 s{sT}, s{sKS}, 2")
    I(f"s_add_u32 s{sT}, s{sT}, s{sPb}")
    I(f"s_mul_i32 s{sT}, s{sT}, 10240")
    I(f"s_and_b32 s{sT2}, s{sW}, 1")
    I(f"s_mul_i32 s{sT2}, s{sT2}, 5")
    I(f"s_mul_i32 s51, s{sE2}, 3")
    I(f"s_add_u32 s{sT2}, s{sT2}, s51")
    I(f"s_lshl_b32 s{sT2}, s{sT2}, 10")
    I(f"s_add_u32 s{sT}, s{sT}, s{sT2}")
    P = 48
    for f in range(4):
        I(f"s_add_u32 s{sT2}, s{sT}, {f*10240}")
        for u in range(3):
            r = P + (f*3 + u)*4
            k.I(f"buffer_load_dwordx4 v[{r}:{r+3}], v{vL16}, s[{SP}:{SP+3}], s{sT2} offen offset:{u*1024}", tag="k3part")
    k.wait_vm("k3part")
    A = 104; HP = 128; ta, tb = 12, 13
    S1, S2, S3 = 14, 15, 16
    I(f"v_mov_b32 v{S1}, 0"); I(f"v_mov_b32 v{S2}, 0"); I(f"v_mov_b32 v{S3}, 0")
    for u in range(3):
        if u == 2:
            I(f"s_cmp_lg_u32 s{sE2}, 0")
            I("s_cbranch_scc1 Lk3_u2done")
        for q in range(4):
            i = 2*q
            for f in range(4):
                r = P + (f*3 + u)*4 + q
                if f == 0:
                    I(f"v_lshlrev_b32 v{A+i}, 16, v{r}")
                    I(f"v_and_b32 v{A+i+1}, 0xffff0000, v{r}")
                else:
                    I(f"v_lshlrev_b32 v{ta}, 16, v{r}")
                    I(f"v_and_b32 v{tb}, 0xffff0000, v{r}")
                    I(f"v_add_f32 v{A+i}, v{A+i}, v{ta}")
                    I(f"v_add_f32 v{A+i+1}, v{A+i+1}, v{tb}")
            I(f"v_cvt_pk_bf16_f32 v{ta}, v{A+i}, v{A+i+1}")
            I(f"v_lshlrev_b32 v{A+i}, 16, v{ta}")
            I(f"v_and_b32 v{A+i+1}, 0xffff0000, v{ta}")
            I(f"v_lshlrev_b32 v{ta}, 16, v{XV+4*u+q}")
            I(f"v_and_b32 v{tb}, 0xffff0000, v{XV+4*u+q}")
            I(f"v_add_f32 v{A+i}, v{A+i}, v{ta}")
            I(f"v_add_f32 v{A+i+1}, v{A+i+1}, v{tb}")
            I(f"v_cvt_pk_bf16_f32 v{HP+4*u+q}, v{A+i}, v{A+i+1}")
            I(f"v_lshlrev_b32 v{A+i}, 16, v{HP+4*u+q}")
            I(f"v_and_b32 v{A+i+1}, 0xffff0000, v{HP+4*u+q}")
            if not alltail:
                I(f"v_lshlrev_b32 v{ta}, 16, v{WRV+4*u+q}")
                I(f"v_and_b32 v{tb}, 0xffff0000, v{WRV+4*u+q}")
                I(f"v_add_f32 v{S1}, v{S1}, v{A+i}")
                I(f"v_fmac_f32 v{S2}, v{A+i}, v{A+i}")
                I(f"v_fmac_f32 v{S3}, v{A+i}, v{ta}")
                I(f"v_add_f32 v{S1}, v{S1}, v{A+i+1}")
                I(f"v_fmac_f32 v{S2}, v{A+i+1}, v{A+i+1}")
                I(f"v_fmac_f32 v{S3}, v{A+i+1}, v{tb}")
        k.I(f"buffer_store_dwordx4 v[{HP+4*u}:{HP+4*u+3}], v{vO}, s[{SH}:{SH+3}], 0 offen offset:{64*u} " + ("sc1" if alltail else ""))
    k.L("Lk3_u2done")
    if alltail:
        from ktail import emit_tail
        emit_tail(k, diag, sKS, sRT, sCT, sNonceIn, endlabel)
        return
    for a in (S1, S2, S3):
        I(f"v_mov_b32 v{tb}, v{a}")
        I(f"v_permlane16_swap_b32 v{a}, v{tb}")
        I(f"v_add_f32 v{a}, v{a}, v{tb}")
        I(f"v_mov_b32 v{tb}, v{a}")
        I(f"v_permlane32_swap_b32 v{a}, v{tb}")
        I(f"v_add_f32 v{a}, v{a}, v{tb}")
    I(f"v_lshlrev_b32 v{t0}, 2, v{vRow}")
    I(f"v_mov_b32 v{t1}, 0x100000")
    I(f"v_cmp_gt_u32 vcc, 16, v{LANE}")
    I(f"v_cndmask_b32 v{t0}, v{t1}, v{t0}, vcc")
    for i, a in enumerate((S1, S2, S3)):
        I(f"s_mov_b32 s{sT}, {i*8192}")
        k.I(f"buffer_atomic_add_f32 v{a}, v{t0}, s[{SACC}:{SACC+3}], s{sT} offen")
    mark_(k, diag, 7)
```

```python
from common import *
from k12 import SPIN_MAX
from k5 import wave_allreduce
NFF = 54
HF_LINE, RTF_LINE, YF_LINE = 224, 288, 296

def flag_store(k, SFL, vNon, vOff0, sOff):
    k.I(f"buffer_store_dword v{vNon}, v{vOff0}, s[{SFL}:{SFL+3}], s{sOff} offen sc1")

def poll(k, name, SFL, vAddr, sOff, vData, nreg, vNon, sW, sC, sM, full64=False, mask=None):
    I = k.I
    ld = {1: f"buffer_load_dword v{vData}", 4: f"buffer_load_dwordx4 v[{vData}:{vData+3}]"}[nreg]
    I(f"s_cmp_lg_u32 s{sW}, 0")
    I(f"s_cbranch_scc1 {name}_ok")
    I(f"s_mov_b32 s{sC}, {SPIN_MAX}")
    k.L(name + "_spin")
    I(f"{ld}, v{vAddr}, s[{SFL}:{SFL+3}], s{sOff} offen sc1"); k.vm.pop()
    I("s_waitcnt vmcnt(0)")
    I(f"v_cmp_eq_u32 vcc, v{vNon}, v{vData}")
    for q in range(1, nreg):
        I(f"v_cmp_eq_u32 s[{sM}:{sM+1}], v{vNon}, v{vData+q}")
        I(f"s_and_b64 vcc, vcc, s[{sM}:{sM+1}]")
    I(f"s_sub_u32 s{sC}, s{sC}, 1")
    I(f"s_cbranch_scc1 {name}_ok")
    lo, hi = mask
    I(f"s_and_b32 s{sM}, vcc_lo, {hex(lo)}")
    I(f"s_and_b32 s{sM+1}, vcc_hi, {hex(hi)}")
    I(f"s_cmp_eq_u32 s{sM}, {hex(lo)}")
    I(f"s_cbranch_scc0 {name}_spin")
    I(f"s_cmp_eq_u32 s{sM+1}, {hex(hi)}")
    I(f"s_cbranch_scc0 {name}_spin")
    k.L(name + "_ok")

def emit_tail(k, diag, sKS, sRT, sCT, sNonceIn, endlabel):
    I = k.I
    LANE = 2
    sW = 40
    sT, sT2, sEPS, sC, sM = 44, 45, 46, 47, 48
    SFL, SH, SOUT, SWR, SRT = 56, 16, 20, 24, 28
    vNon, vOff0, t0, t1, t2, t3 = 3, 4, 5, 6, 7, 8
    I(f"s_load_dwordx2 s[4:5], s[0:1], {KA['wr']}")
    I(f"s_load_dwordx2 s[6:7], s[0:1], {KA['out']}")
    I(f"s_load_dwordx4 s[8:11], s[0:1], {KA['wg']}")
    I(f"s_load_dwordx2 s[12:13], s[0:1], {KA['wd']}")
    srd(k, SFL, 14, 15, FLG_SIZE, FLG_OFF)
    I(f"v_mov_b32 v{vNon}, s{sNonceIn}")
    I(f"v_mov_b32 v{t0}, 0x100000")
    I(f"v_mov_b32 v{t1}, 0")
    I(f"v_cmp_eq_u32 vcc, 0, v0")
    I(f"v_cndmask_b32 v{vOff0}, v{t0}, v{t1}, vcc")
    I(f"s_lshl_b32 s{sT}, s{sRT}, 2")
    I(f"s_add_u32 s{sT}, s{sT}, s{sKS}")
    I(f"s_add_u32 s{sT}, s{sT}, {HF_LINE}")
    I(f"s_lshl_b32 s{sT}, s{sT}, 7")
    I(f"s_lshl_b32 s{sT2}, s{sCT}, 2")
    I(f"s_add_u32 s{sT2}, s{sT2}, s{sT}")
    I("s_waitcnt vmcnt(0) lgkmcnt(0)")
    I("s_barrier")
    flag_store(k, SFL, vNon, vOff0, sT2)
    srd(k, SH, 14, 15, H_SIZE, H_OFF)
    srd(k, SOUT, 6, 7, 2048*640*2)
    srd(k, SWR, 4, 5, 1280)
    srd(k, SRT, 14, 15, RT_SIZE, RT_OFF)
    I(f"s_mov_b32 s{sEPS}, {f32bits(1e-5)}")
    WC = 140
    I(f"v_and_b32 v{t2}, 15, v{LANE}")
    I(f"v_lshlrev_b32 v{t3}, 4, v{t2}")
    for u in range(5):
        I(f"buffer_load_dwordx4 v[{WC+4*u}:{WC+4*u+3}], v{t3}, s[{SWR}:{SWR+3}], 0 offen offset:{256*u}")
    vRow, vO = 9, 10
    I(f"s_lshl_b32 s{sC}, s{sRT}, 7")
    I(f"s_lshl_b32 s{sM}, s{sKS}, 5")
    I(f"s_add_u32 s{sC}, s{sC}, s{sM}")
    I(f"s_lshl_b32 s{sM}, s{sCT}, 3")
    I(f"s_add_u32 s{sC}, s{sC}, s{sM}")
    I(f"s_lshl_b32 s{sM}, s{sW}, 1")
    I(f"s_add_u32 s{sC}, s{sC}, s{sM}")
    I(f"v_bfe_u32 v{vRow}, v{LANE}, 4, 1")
    I(f"v_add_u32 v{vRow}, s{sC}, v{vRow}")
    I(f"v_mul_u32_u24 v{vO}, 1280, v{vRow}")
    I(f"v_add_u32 v{vO}, v{vO}, v{t3}")
    I(f"v_lshlrev_b32 v{t0}, 2, v{LANE}")
    I(f"v_mov_b32 v{t1}, 0x100000")
    I(f"v_cmp_gt_u32 vcc, 4, v0")
    I(f"v_cndmask_b32 v{t0}, v{t1}, v{t0}, vcc")
    poll(k, "Lt_h", SFL, t0, sT, 12, 1, vNon, sW, sC, sM, mask=(0xf, 0))
    I("s_barrier")
    mark(k, diag, 12)
    HX, HN = 12, 32
    for u in range(5):
        I(f"buffer_load_dwordx4 v[{HX+4*u}:{HX+4*u+3}], v{vO}, s[{SH}:{SH+3}], 0 offen offset:{256*u}")
    I("s_waitcnt vmcnt(0)")
    ln_rows(k, HX, 5, 64, HN, sEPS)
    MEANB, RS = 64 + 40 + 4, 64 + 40
    RX = 52
    I(f"v_mov_b32 v{RX}, 0")
    O = 120
    for i in range(20):
        I(f"v_lshlrev_b32 v53, 16, v{HN+i}")
        I(f"v_and_b32 v54, 0xffff0000, v{HN+i}")
        I(f"v_lshlrev_b32 v55, 16, v{WC+i}")
        I(f"v_and_b32 v56, 0xffff0000, v{WC+i}")
        I(f"v_fmac_f32 v{RX}, v53, v55")
        I(f"v_fmac_f32 v{RX}, v54, v56")
        I(f"v_lshlrev_b32 v55, 16, v{HX+i}")
        I(f"v_and_b32 v56, 0xffff0000, v{HX+i}")
        I(f"v_add_f32 v53, v53, v55")
        I(f"v_add_f32 v54, v54, v56")
        I(f"v_cvt_pk_bf16_f32 v{O+i}, v53, v54")
    I(f"v_mov_b32 v{t1}, 0x4000000")
    I(f"v_cmp_gt_u32 vcc, 32, v{LANE}")
    I(f"v_cndmask_b32 v{vO}, v{t1}, v{vO}, vcc")
    for u in range(5):
        I(f"buffer_store_dwordx4 v[{O+4*u}:{O+4*u+3}], v{vO}, s[{SOUT}:{SOUT+3}], 0 offen offset:{256*u} sc1")
    dpp_row_allreduce(k, "v_add_f32", RX)
    bf16_round(k, RX)
    REC = 60
    I(f"v_mov_b32 v{REC}, v{MEANB}")
    I(f"v_mov_b32 v{REC+1}, v{RS}")
    I(f"v_mov_b32 v{REC+2}, v{RX}")
    I(f"v_mov_b32 v{REC+3}, 0")
    I(f"v_lshlrev_b32 v{t0}, 4, v{vRow}")
    I(f"v_and_b32 v{t2}, 47, v{LANE}")
    I(f"v_cmp_eq_u32 vcc, 0, v{t2}")
    I(f"v_cndmask_b32 v{t0}, v{t1}, v{t0}, vcc")
    I(f"buffer_store_dwordx4 v[{REC}:{REC+3}], v{t0}, s[{SRT}:{SRT+3}], 0 offen sc1")
    I("s_waitcnt vmcnt(0)")
    I("s_barrier")
    I(f"s_lshl_b32 s{sT2}, s2, 2")
    I(f"s_add_u32 s{sT2}, s{sT2}, {RTF_LINE*128}")
    flag_store(k, SFL, vNon, vOff0, sT2)
    mark(k, diag, 13)
    I(f"s_cmp_ge_u32 s2, {NFF}")
    I(f"s_cbranch_scc1 {endlabel}")
    sF = 50
    I(f"s_mov_b32 s{sF}, s2")
    SWG, SWU, SWD, SYP, SSEL = 32, 36, 52, 60, 84
    srd(k, SWG, 8, 9, 640*1728*2)
    srd(k, SWU, 10, 11, 640*1728*2)
    srd(k, SWD, 12, 13, 1728*640*2)
    LG, LU, LD, LHN, LKEY, LPART, LA_ = 0, 40960, 81920, 155648, 158208, 158272, 160320
    vWD, vL16 = 11, 12
    I(f"v_lshrrev_b32 v{t2}, 2, v{LANE}")
    I(f"v_mul_u32_u24 v{vWD}, 3456, v{t2}")
    I(f"v_and_b32 v{t2}, 3, v{LANE}")
    I(f"v_lshl_add_u32 v{vWD}, v{t2}, 4, v{vWD}")
    I(f"v_lshlrev_b32 v{vL16}, 4, v{LANE}")
    I(f"s_cmp_eq_u32 s{sW}, 0")
    I("s_cbranch_scc1 Lt_nodma")
    I(f"s_lshl_b32 s{sT}, s{sF}, 6")
    I(f"s_cmp_eq_u32 s{sW}, 3")
    I("s_cbranch_scc1 Lt_dma_down")
    I(f"s_cmp_eq_u32 s{sW}, 1")
    for q in range(3): I(f"s_cselect_b32 s{64+q}, s{SWG+q}, s{SWU+q}")
    I(f"s_cselect_b32 s{sT2}, {LG}, {LU}")
    I("s_mov_b32 s67, 0x20000")
    for u in range(40):
        I(f"s_add_u32 m0, s{sT2}, {u*1024}")
        I(f"s_add_u32 s{sC}, s{sT}, {u*16*3456}")
        I(f"buffer_load_dwordx4 v{vWD}, s[64:67], s{sC} offen lds")
    I("s_branch Lt_nodma")
    k.L("Lt_dma_down")
    I(f"s_mul_i32 s{sT}, s{sF}, {32*1280}")
    for u in range(40):
        if u % 4 == 0:
            I(f"s_mov_b32 m0, {LD + u*1024}")
            I(f"s_add_u32 s{sC}, s{sT}, {u*1024}")
        I(f"buffer_load_dwordx4 v{vL16}, s[{SWD}:{SWD+3}], s{sC} offen offset:{(u % 4)*1024} lds")
    k.L("Lt_nodma")
    srd(k, SYP, 14, 15, YP_SIZE, YP_OFF)
    srd(k, SSEL, 14, 15, SEL_SIZE, SEL_OFF)
    I(f"v_lshlrev_b32 v{t0}, 4, v{LANE}")
    I(f"s_mov_b32 s{sT}, {RTF_LINE*128}")
    poll(k, "Lt_rt", SFL, t0, sT, 16, 4, vNon, sW, sC, sM, mask=(0xffffffff, 0xffffffff))
    I("s_barrier")
    mark(k, diag, 14)
    ST = 64
    I(f"v_lshlrev_b32 v{t0}, 4, v0")
    for e in range(8):
        I(f"s_mov_b32 s{sT}, {e*4096}")
        I(f"buffer_load_dword v{ST+e}, v{t0}, s[{SRT}:{SRT+3}], s{sT} offen offset:8")
    I("s_waitcnt vmcnt(0)")
    K1, K2, RR = 96, 97, 100
    I(f"v_mov_b32 v{K1}, 0")
    I(f"v_mov_b32 v{K2}, 0")
    for e in range(8):
        I(f"v_ashrrev_i32 v{t1}, 31, v{ST+e}")
        I(f"v_or_b32 v{t1}, 0x80000000, v{t1}")
        I(f"v_xor_b32 v{RR}, v{ST+e}, v{t1}")
        I(f"v_and_b32 v{RR}, 0xfffff800, v{RR}")
        I(f"v_sub_u32 v{t1}, {2047 - 256*e}, v0")
        I(f"v_or_b32 v{RR}, v{RR}, v{t1}")
        I(f"v_med3_u32 v{K2}, v{K1}, v{K2}, v{RR}")
        I(f"v_max_u32 v{K1}, v{K1}, v{RR}")
    T1, T2 = 16, 17
    I(f"v_mov_b32 v{T1}, v{K1}")
    wave_allreduce(k, "v_max_u32", T1, t1)
    I(f"v_cmp_eq_u32 vcc, v{T1}, v{K1}")
    I(f"v_cndmask_b32 v{T2}, v{K1}, v{K2}, vcc")
    wave_allreduce(k, "v_max_u32", T2, t1)
    I(f"s_lshl_b32 s{sT}, s{sW}, 3")
    I(f"v_mov_b32 v{t1}, s{sT}")
    I(f"v_add_u32 v{t1}, {LKEY}, v{t1}")
    I(f"ds_write_b64 v{t1}, v[{T1}:{T1+1}]")
    I("s_waitcnt lgkmcnt(0)")
    I("s_barrier")
    KK = 20
    I(f"v_mov_b32 v{t1}, {LKEY}")
    I(f"ds_read_b128 v[{KK}:{KK+3}], v{t1}")
    I(f"ds_read_b128 v[{KK+4}:{KK+7}], v{t1} offset:16")
    I("s_waitcnt lgkmcnt(0)")
    I(f"v_mov_b32 v{K1}, 0")
    I(f"v_mov_b32 v{K2}, 0")
    for j in range(8):
        I(f"v_med3_u32 v{K2}, v{K1}, v{K2}, v{KK+j}")
        I(f"v_max_u32 v{K1}, v{K1}, v{KK+j}")
    for kx in (K1, K2):
        I(f"v_and_b32 v{kx}, 0x7ff, v{kx}")
        I(f"v_sub_u32 v{kx}, 2047, v{kx}")
    I(f"v_bfe_u32 v{t1}, v{LANE}, 4, 1")
    I(f"v_cmp_eq_u32 vcc, 0, v{t1}")
    I(f"v_cndmask_b32 v{t3}, v{K2}, v{K1}, vcc")
    vRowSel = 13
    I(f"v_mov_b32 v{vRowSel}, v{t3}")
    I(f"v_lshlrev_b32 v{t2}, 4, v{t3}")
    REC = 56
    I(f"buffer_load_dwordx4 v[{REC}:{REC+3}], v{t2}, s[{SRT}:{SRT+3}], 0 offen")
    I(f"v_mul_u32_u24 v{t3}, 1280, v{t3}")
    I(f"v_and_b32 v{t0}, 15, v{LANE}")
    I(f"v_lshl_add_u32 v{t3}, v{t0}, 4, v{t3}")
    HX, HN = 16, 36
    for u in range(5):
        I(f"buffer_load_dwordx4 v[{HX+4*u}:{HX+4*u+3}], v{t3}, s[{SH}:{SH+3}], 0 offen offset:{256*u}")
    I("s_waitcnt vmcnt(0)")
    X = 164
    for i in range(20):
        I(f"v_lshlrev_b32 v{X}, 16, v{HX+i}")
        I(f"v_and_b32 v{X+1}, 0xffff0000, v{HX+i}")
        I(f"v_sub_f32 v{X}, v{X}, v{REC}")
        I(f"v_sub_f32 v{X+1}, v{X+1}, v{REC}")
        I(f"v_cvt_pk_bf16_f32 v{X+2}, v{X}, v{X+1}")
        I(f"v_lshlrev_b32 v{X}, 16, v{X+2}")
        I(f"v_and_b32 v{X+1}, 0xffff0000, v{X+2}")
        I(f"v_mul_f32 v{X}, v{X}, v{REC+1}")
        I(f"v_mul_f32 v{X+1}, v{X+1}, v{REC+1}")
        I(f"v_cvt_pk_bf16_f32 v{HN+i}, v{X}, v{X+1}")
    RSEL = 60
    I(f"v_mul_f32 v{RSEL}, {f32bits(-1.4426950408889634)}, v{REC+2}")
    I(f"v_exp_f32 v{RSEL}, v{RSEL}")
    I(f"v_add_f32 v{RSEL}, 1.0, v{RSEL}")
    I(f"v_rcp_f32 v{RSEL}, v{RSEL}")
    bf16_round(k, RSEL)
    I(f"v_bfe_u32 v{t1}, v{LANE}, 4, 1")
    I(f"v_mul_u32_u24 v{t1}, 1280, v{t1}")
    I(f"v_lshl_add_u32 v{t1}, v{t0}, 4, v{t1}")
    I(f"v_add_u32 v{t2}, {LHN}, v{t1}")
    I(f"s_cmp_lg_u32 s{sW}, 0")
    I("s_cbranch_scc1 Lt_w0done")
    for u in range(5):
        I(f"ds_write_b128 v{t2}, v[{HN+4*u}:{HN+4*u+3}] offset:{256*u}")
    I(f"v_bfe_u32 v{t2}, v{LANE}, 4, 1")
    I(f"v_lshlrev_b32 v{t2}, 3, v{t2}")
    I(f"v_add_u32 v{t2}, {LKEY+32}, v{t2}")
    I(f"v_mov_b32 v62, v{vRowSel}")
    I(f"v_mov_b32 v63, v{RSEL}")
    I(f"ds_write_b64 v{t2}, v[62:63]")
    k.L("Lt_w0done")
    I("s_waitcnt vmcnt(0) lgkmcnt(0)")
    I("s_barrier")
    I(f"s_mul_i32 s51, s{sW}, {160*64}")
    I(f"v_and_b32 v{t0}, 1, v{LANE}")
    I(f"v_mul_u32_u24 v{t0}, 1280, v{t0}")
    I(f"v_lshrrev_b32 v{t1}, 4, v{LANE}")
    I(f"v_lshl_add_u32 v{t0}, v{t1}, 4, v{t0}")
    I(f"s_mul_i32 s{sT}, s{sW}, 320")
    I(f"s_add_u32 s{sT}, s{sT}, {LHN}")
    I(f"v_add_u32 v{t0}, s{sT}, v{t0}")
    I(f"v_bfe_u32 v{t2}, v{LANE}, 2, 2")
    I(f"v_lshl_add_u32 v{t2}, v{t1}, 3, v{t2}")
    I(f"v_lshlrev_b32 v{t2}, 6, v{t2}")
    I(f"v_and_b32 v{t3}, 3, v{LANE}")
    I(f"v_lshl_add_u32 v{t2}, v{t3}, 3, v{t2}")
    I(f"v_add_u32 v{t2}, s51, v{t2}")
    AF, BF = 16, 100
    for s_ in range(5): I(f"ds_read_b128 v[{AF+4*s_}:{AF+4*s_+3}], v{t0} offset:{64*s_}")
    for mi, LB in enumerate((LG, LU)):
        for ft in range(2):
            for s_ in range(5):
                r = BF + ((mi*2 + ft)*5 + s_)*4
                I(f"ds_read_b64_tr_b16 v[{r}:{r+1}], v{t2} offset:{LB + s_*2048 + ft*32}")
                I(f"ds_read_b64_tr_b16 v[{r+2}:{r+3}], v{t2} offset:{LB + s_*2048 + ft*32 + 256}")
    I("s_waitcnt lgkmcnt(0)")
    D = 72
    for s_ in range(5):
        for q in range(4):
            r = BF + (q*5 + s_)*4
            I(f"v_mfma_f32_16x16x32_bf16 v[{D+4*q}:{D+4*q+3}], v[{AF+4*s_}:{AF+4*s_+3}], v[{r}:{r+3}], " + ("0" if s_ == 0 else f"v[{D+4*q}:{D+4*q+3}]"))
    I(f"v_and_b32 v{t0}, 15, v{LANE}")
    I(f"v_lshlrev_b32 v{t0}, 2, v{t0}")
    I(f"s_lshl_b32 s{sT}, s{sW}, 9")
    I(f"s_add_u32 s{sT}, s{sT}, {LPART}")
    I(f"v_add_u32 v{t0}, s{sT}, v{t0}")
    I("s_mov_b32 exec_lo, 0xffff")
    I("s_mov_b32 exec_hi, 0")
    for mi in range(2):
        for ft in range(2):
            for tok in range(2):
                I(f"ds_write_b32 v{t0}, v{D+4*(mi*2+ft)+tok} offset:{(mi*2+tok)*128 + ft*64}")
    I("s_mov_b64 exec, -1")
    I("s_waitcnt lgkmcnt(0)")
    I("s_barrier")
    I(f"v_lshlrev_b32 v{t0}, 2, v{LANE}")
    I(f"v_add_u32 v{t0}, {LPART}, v{t0}")
    for w in range(4):
        I(f"ds_read_b32 v{16+w}, v{t0} offset:{w*512}")
        I(f"ds_read_b32 v{20+w}, v{t0} offset:{w*512 + 256}")
    I("s_waitcnt lgkmcnt(0)")
    for b in (16, 20):
        I(f"v_add_f32 v{b}, v{b}, v{b+1}")
        I(f"v_add_f32 v{b+2}, v{b+2}, v{b+3}")
        I(f"v_add_f32 v{b}, v{b}, v{b+2}")
        bf16_round(k, b)
    I(f"v_mul_f32 v17, {f32bits(-1.4426950408889634)}, v16")
    I(f"v_exp_f32 v17, v17")
    I(f"v_add_f32 v17, 1.0, v17")
    I(f"v_rcp_f32 v17, v17")
    I(f"v_mul_f32 v16, v16, v17")
    bf16_round(k, 16)
    I(f"v_mul_f32 v16, v16, v20")
    I(f"v_cvt_pk_bf16_f32 v16, v16, v16")
    I(f"v_lshlrev_b32 v{t1}, 1, v{LANE}")
    I(f"v_add_u32 v{t1}, {LA_}, v{t1}")
    I(f"ds_write_b16 v{t1}, v16")
    I("s_waitcnt lgkmcnt(0)")
    I(f"v_and_b32 v{t0}, 1, v{LANE}")
    I(f"v_lshlrev_b32 v{t0}, 6, v{t0}")
    I(f"v_lshrrev_b32 v{t1}, 4, v{LANE}")
    I(f"v_lshl_add_u32 v{t0}, v{t1}, 4, v{t0}")
    I(f"v_add_u32 v{t0}, {LA_}, v{t0}")
    I(f"ds_read_b128 v[16:19], v{t0}")
    I(f"v_bfe_u32 v{t2}, v{LANE}, 2, 2")
    I(f"v_lshl_add_u32 v{t2}, v{t1}, 3, v{t2}")
    I(f"v_mul_u32_u24 v{t2}, 1280, v{t2}")
    I(f"v_and_b32 v{t3}, 3, v{LANE}")
    I(f"v_lshl_add_u32 v{t2}, v{t3}, 3, v{t2}")
    I(f"s_mul_i32 s{sT}, s{sW}, 320")
    I(f"s_add_u32 s{sT}, s{sT}, {LD}")
    I(f"v_add_u32 v{t2}, s{sT}, v{t2}")
    for nt in range(10):
        r = 100 + 4*nt
        I(f"ds_read_b64_tr_b16 v[{r}:{r+1}], v{t2} offset:{nt*32}")
        I(f"ds_read_b64_tr_b16 v[{r+2}:{r+3}], v{t2} offset:{nt*32 + 4*1280}")
    I("s_waitcnt lgkmcnt(0)")
    for nt in range(10):
        I(f"v_mfma_f32_16x16x32_bf16 v[{140+4*nt}:{143+4*nt}], v[16:19], v[{100+4*nt}:{103+4*nt}], 0")
    I(f"v_and_b32 v{t0}, 15, v{LANE}")
    I(f"v_lshlrev_b32 v{t0}, 2, v{t0}")
    I(f"s_mul_i32 s{sT}, s{sF}, 5120")
    I(f"s_mul_i32 s{sT2}, s{sW}, 640")
    I(f"s_add_u32 s{sT}, s{sT}, s{sT2}")
    I("s_mov_b32 exec_lo, 0xffff")
    I("s_mov_b32 exec_hi, 0")
    for nt in range(10):
        I(f"buffer_store_dword v{140+4*nt}, v{t0}, s[{SYP}:{SYP+3}], s{sT} offen offset:{nt*64} sc1")
        I(f"buffer_store_dword v{141+4*nt}, v{t0}, s[{SYP}:{SYP+3}], s{sT} offen offset:{2560 + nt*64} sc1")
    I("s_mov_b64 exec, -1")
    I("s_waitcnt vmcnt(0)")
    I("s_barrier")
    I(f"s_lshl_b32 s{sT2}, s{sF}, 2")
    I(f"s_add_u32 s{sT2}, s{sT2}, {YF_LINE*128}")
    flag_store(k, SFL, vNon, vOff0, sT2)
    mark(k, diag, 15)
    I(f"s_cmp_ge_u32 s{sF}, 20")
    I(f"s_cbranch_scc1 {endlabel}")
    sTok, sCc = 51, 52
    I(f"s_cmp_ge_u32 s{sF}, 10")
    I(f"s_cselect_b32 s{sTok}, 1, 0")
    I(f"s_mul_i32 s{sT}, s{sTok}, 10")
    I(f"s_sub_u32 s{sCc}, s{sF}, s{sT}")
    I(f"s_lshl_b32 s{sT}, s{sCc}, 6")
    I(f"v_add_u32 v16, s{sT}, v{LANE}")
    I(f"s_lshl_b32 s{sT}, s{sTok}, 3")
    I(f"s_add_u32 s{sT}, s{sT}, {LKEY+32}")
    I(f"v_mov_b32 v17, s{sT}")
    I(f"ds_read_b64 v[18:19], v17")
    I(f"s_mul_i32 s{sT}, s{sTok}, 1280")
    I(f"s_add_u32 s{sT}, s{sT}, {LHN}")
    I(f"v_lshlrev_b32 v20, 1, v16")
    I(f"v_add_u32 v21, s{sT}, v20")
    I(f"ds_read_u16 v22, v21")
    I("s_waitcnt lgkmcnt(0)")
    I(f"v_mul_u32_u24 v23, 1280, v18")
    I(f"v_add_u32 v23, v23, v20")
    I(f"buffer_load_ushort v24, v23, s[{SH}:{SH+3}], 0 offen")
    I(f"v_lshlrev_b32 v{t0}, 2, v{LANE}")
    I(f"v_mov_b32 v{t1}, 0x100000")
    I(f"v_cmp_gt_u32 vcc, {NFF}, v{LANE}")
    I(f"v_cndmask_b32 v{t0}, v{t1}, v{t0}, vcc")
    I(f"s_mov_b32 s{sT}, {YF_LINE*128}")
    poll(k, "Lt_y", SFL, t0, sT, 25, 1, vNon, sW, sC, sM, mask=(0xffffffff, (1 << (NFF - 32)) - 1))
    I("s_barrier")
    I(f"v_lshlrev_b32 v26, 2, v16")
    I(f"s_mul_i32 s{sT2}, s{sW}, {14*5120}")
    I(f"s_mul_i32 s{sT}, s{sTok}, 2560")
    I(f"s_add_u32 s{sT2}, s{sT2}, s{sT}")
    for j in range(14):
        I(f"s_add_u32 s{sT}, s{sT2}, {j*5120}")
        I(f"buffer_load_dword v{32+j}, v26, s[{SYP}:{SYP+3}], s{sT} offen")
    I("s_waitcnt vmcnt(0)")
    for j in range(1, 14): I(f"v_add_f32 v32, v32, v{32+j}")
    I(f"v_lshlrev_b32 v27, 2, v0")
    I(f"v_add_u32 v27, {LPART}, v27")
    I(f"ds_write_b32 v27, v32")
    I("s_waitcnt lgkmcnt(0)")
    I("s_barrier")
    I(f"s_cmp_lg_u32 s{sW}, 0")
    I(f"s_cbranch_scc1 {endlabel}")
    I(f"v_lshlrev_b32 v27, 2, v{LANE}")
    I(f"v_add_u32 v27, {LPART}, v27")
    for q in range(4): I(f"ds_read_b32 v{32+q}, v27 offset:{256*q}")
    I("s_waitcnt lgkmcnt(0)")
    I("v_add_f32 v32, v32, v33")
    I("v_add_f32 v34, v34, v35")
    I("v_add_f32 v32, v32, v34")
    bf16_round(k, 32)
    I("v_mul_f32 v32, v32, v19")
    bf16_round(k, 32)
    I("v_lshlrev_b32 v22, 16, v22")
    I("v_add_f32 v32, v32, v22")
    bf16_round(k, 32)
    I("v_lshlrev_b32 v24, 16, v24")
    I("v_add_f32 v32, v32, v24")
    I("v_cvt_pk_bf16_f32 v32, v32, v32")
    I(f"buffer_store_short v32, v23, s[{SOUT}:{SOUT+3}], 0 offen sc1")
```

```python
from asmlib import *

KA = dict(x=0, ckv=8, wq=16, wuk=24, wuv=32, wo=40, bx=48, wr=56, wg=64, wu=72, wd=80, out=88, dbg=96, ws=104)
MB = 1 << 20
import os as _os
WSBASE = int(_os.environ.get('WSBASE', '0')) * MB
XN_OFF = WSBASE + 0;            XN_SIZE = 2048 * 640 * 2
KV_OFF = WSBASE + 4 * MB;       KV_SIZE = 32 * MB
CTX_OFF = WSBASE + 40 * MB;     CTX_SIZE = 16 * MB
H_OFF = WSBASE + 60 * MB;       H_SIZE = 2048 * 640 * 2
ST_OFF = WSBASE + 64 * MB;      ST_SIZE = 8 * 2048 * 16
ACC_OFF = WSBASE + 65 * MB;     ACC_SIZE = 3 * 2048 * 4
SEL_OFF = WSBASE + 65 * MB + 65536; SEL_SIZE = 4096
YP_OFF = WSBASE + 66 * MB;      YP_SIZE = 54 * 640 * 16
WOT_OFF = WSBASE + 68 * MB;     WOT_SIZE = 4096 * 640 * 2
FLG_OFF = WSBASE + 65 * MB + 131072; FLG_SIZE = 304 * 128
PART_OFF = WSBASE + 76 * MB;   PART_SIZE = 64 * 16 * 10240
RT_OFF = WSBASE + 65 * MB + 196608; RT_SIZE = 2048 * 16
STAMP_OFF = 100 * MB
QSCALE = (128 ** -0.5) * 1.4426950408889634

def f32bits(x):
    import struct
    return "0x%08x" % struct.unpack("<I", struct.pack("<f", x))[0]

def srd(k, d, base_lo, base_hi, size, off=0):
    if off:
        k.I(f"s_add_u32 s{d}, s{base_lo}, {off}")
        k.I(f"s_addc_u32 s{d+1}, s{base_hi}, 0")
    else:
        k.I(f"s_mov_b32 s{d}, s{base_lo}")
        k.I(f"s_mov_b32 s{d+1}, s{base_hi}")
    k.I(f"s_mov_b32 s{d+2}, {size}")
    k.I(f"s_mov_b32 s{d+3}, 0x20000")

def stamp_begin(k, diag, s=98):
    if diag: k.I(f"s_memrealtime s[{s}:{s+1}]")

def stamp_end(k, diag, kidx, ws_lo, ws_hi, s=98, vtmp=0):
    import os
    if not diag or os.environ.get("HDIAG"): return
    lab = f"Lstamp_{k.name}"
    k.I("s_waitcnt vmcnt(0) lgkmcnt(0)")
    k.I(f"s_memrealtime s[{s+2}:{s+3}]")
    k.I("s_waitcnt lgkmcnt(0)")
    k.I(f"s_lshl_b32 s96, s2, 3")
    k.I(f"s_add_u32 s96, s96, {STAMP_OFF + kidx*4096}")
    k.I(f"v_mov_b32 v{vtmp+2}, s{s}")
    k.I(f"v_mov_b32 v{vtmp+3}, s{s+2}")
    k.I(f"v_mov_b32 v{vtmp+1}, s96")
    k.I(f"v_mbcnt_lo_u32_b32 v{vtmp}, -1, 0")
    k.I(f"v_mbcnt_hi_u32_b32 v{vtmp}, -1, v{vtmp}")
    k.I(f"v_cmp_eq_u32 vcc, 0, v{vtmp}")
    k.I(f"s_and_saveexec_b64 s[94:95], vcc")
    k.I(f"s_cbranch_execz {lab}")
    k.I(f"global_store_dwordx2 v{vtmp+1}, v[{vtmp+2}:{vtmp+3}], s[{ws_lo}:{ws_hi}]")
    k.L(lab)

MARKS = {}
def mark(k, diag, idx):
    if diag:
        import os
        k.I(f"{'s_memtime' if os.environ.get('CYC') else 's_memrealtime'} s[{60+2*idx}:{61+2*idx}]")
        MARKS[k.name] = max(MARKS.get(k.name, 0), idx + 1)

def dump_marks_dbg(k, vtmp):
    lab = f"Lmarkd_{k.name}"
    k.I("s_waitcnt vmcnt(0) lgkmcnt(0)")
    k.I("s_memrealtime s[96:97]")
    k.I(f"s_load_dwordx2 s[94:95], s[0:1], {KA['dbg']}")
    k.I("s_waitcnt lgkmcnt(0)")
    import os
    k.I(f"s_cmp_lg_u32 s2, {os.environ.get('HWG', '224')}")
    k.I(f"s_cbranch_scc1 {lab}")
    k.I(f"v_cmp_eq_u32 vcc, 0, v0")
    k.I(f"s_and_saveexec_b64 s[92:93], vcc")
    k.I(f"s_cbranch_execz {lab}")
    k.I(f"v_mov_b32 v{vtmp+1}, 0")
    for i in list(range(4, 16)):
        k.I(f"s_sub_u32 s91, s{60+2*i}, s98") if 60+2*i != 90 else k.I(f"s_sub_u32 s91, s90, s98")
        k.I(f"v_mov_b32 v{vtmp+2}, s91")
        k.I(f"global_store_dword v{vtmp+1}, v{vtmp+2}, s[94:95] offset:{4*(i-3)}")
    k.I(f"s_sub_u32 s91, s96, s98")
    k.I(f"v_mov_b32 v{vtmp+2}, s91")
    k.I(f"global_store_dword v{vtmp+1}, v{vtmp+2}, s[94:95] offset:{4*13}")
    k.L(lab)

def dump_marks(k, diag, kidx, ws_lo, ws_hi, vtmp):
    import os
    if diag and os.environ.get("HDIAG"):
        dump_marks_dbg(k, vtmp); return
    if not diag or k.name not in MARKS: return
    n = MARKS[k.name]
    lab = f"Lmark_{k.name}"
    k.I("s_waitcnt vmcnt(0) lgkmcnt(0)")
    k.I("s_lshl_b32 s96, s2, 2")
    k.I("s_add_u32 s96, s96, s40")
    k.I("s_lshl_b32 s96, s96, 6")
    k.I(f"s_add_u32 s96, s96, {STAMP_OFF + MB + kidx*262144}")
    k.I(f"v_mov_b32 v{vtmp+1}, s96")
    k.I(f"v_mbcnt_lo_u32_b32 v{vtmp}, -1, 0")
    k.I(f"v_mbcnt_hi_u32_b32 v{vtmp}, -1, v{vtmp}")
    k.I(f"v_cmp_eq_u32 vcc, 0, v{vtmp}")
    k.I(f"s_and_saveexec_b64 s[94:95], vcc")
    k.I(f"s_cbranch_execz {lab}")
    for i in range(n):
        k.I(f"v_mov_b32 v{vtmp+2}, s{60+2*i}")
        k.I(f"global_store_dword v{vtmp+1}, v{vtmp+2}, s[{ws_lo}:{ws_hi}] offset:{4*i}")
    k.L(lab)
    k.I("s_mov_b64 exec, s[94:95]")

def dpp_row_allreduce(k, op, v, tmp=None):
    for r in (8, 4, 2, 1):
        k.I(f"{op} v{v}, v{v}, v{v} row_ror:{r}")

class Rec:
    def __init__(self): self.l = []
    def I(self, t, tag=None):
        for x in t.split("\n"):
            if x.strip(): self.l.append(x.strip())

def ln_rows(k, xin, nchunk, vt, out_pk, eps_s, tag="", T=None):
    n = 8 * nchunk
    X = vt
    if T is None: T = vt + n
    for i in range(4 * nchunk):
        k.I(f"v_lshlrev_b32 v{X+2*i}, 16, v{xin+i}")
        k.I(f"v_and_b32 v{X+2*i+1}, 0xffff0000, v{xin+i}")
    for c in range(4):
        k.I(f"v_add_f32 v{T+c}, v{X+c}, v{X+c+4}")
    for i in range(8, n):
        k.I(f"v_add_f32 v{T+(i&3)}, v{T+(i&3)}, v{X+i}")
    k.I(f"v_add_f32 v{T}, v{T}, v{T+1}")
    k.I(f"v_add_f32 v{T+2}, v{T+2}, v{T+3}")
    k.I(f"v_add_f32 v{T}, v{T}, v{T+2}")
    dpp_row_allreduce(k, "v_add_f32", T)
    k.I(f"v_mul_f32 v{T+4}, {f32bits(1.0/640)}, v{T}")
    for c in range(4):
        k.I(f"v_sub_f32 v{T+5}, v{X+c}, v{T+4}")
        k.I(f"v_mul_f32 v{T+c}, v{T+5}, v{T+5}")
    for i in range(4, n):
        k.I(f"v_sub_f32 v{T+5+(i&1)}, v{X+i}, v{T+4}")
        k.I(f"v_fmac_f32 v{T+(i&3)}, v{T+5+(i&1)}, v{T+5+(i&1)}")
    k.I(f"v_add_f32 v{T}, v{T}, v{T+1}")
    k.I(f"v_add_f32 v{T+2}, v{T+2}, v{T+3}")
    k.I(f"v_add_f32 v{T}, v{T}, v{T+2}")
    dpp_row_allreduce(k, "v_add_f32", T)
    k.I(f"v_mul_f32 v{T}, {f32bits(1.0/640)}, v{T}")
    ln_finish(k, X, n, T + 4, T, T + 5, out_pk, eps_s)

def bf16_round(k, v):
    k.I(f"v_cvt_pk_bf16_f32 v{v}, v{v}, v{v}")
    k.I(f"v_and_b32 v{v}, 0xffff0000, v{v}")

def ln_finish(k, X, n, vmean, vvar, vtmp, out_pk, eps_s):
    bf16_round(k, vmean)
    bf16_round(k, vvar)
    k.I(f"v_add_f32 v{vvar}, s{eps_s}, v{vvar}")
    bf16_round(k, vvar)
    k.I(f"v_sqrt_f32 v{vvar}, v{vvar}")
    bf16_round(k, vvar)
    k.I(f"v_rcp_f32 v{vvar}, v{vvar}")
    for i in range(0, n, 2):
        k.I(f"v_sub_f32 v{X+i}, v{X+i}, v{vmean}")
        k.I(f"v_sub_f32 v{X+i+1}, v{X+i+1}, v{vmean}")
        k.I(f"v_cvt_pk_bf16_f32 v{vtmp}, v{X+i}, v{X+i+1}")
        k.I(f"v_lshlrev_b32 v{X+i}, 16, v{vtmp}")
        k.I(f"v_and_b32 v{X+i+1}, 0xffff0000, v{vtmp}")
        k.I(f"v_mul_f32 v{X+i}, v{X+i}, v{vvar}")
        k.I(f"v_mul_f32 v{X+i+1}, v{X+i+1}, v{vvar}")
        k.I(f"v_cvt_pk_bf16_f32 v{out_pk+i//2}, v{X+i}, v{X+i+1}")


def code_touch(k, own_label, start_label, end_label, nlines_per_wg, sbase, vt0, vt1, vdst, wg_shift=3):
    J = k.I
    lab = f"Lpc_{k.name}_{start_label}"
    J(f"s_getpc_b64 s[{sbase}:{sbase+1}]")
    k.L(lab)
    J(f"s_add_u32 s{sbase}, s{sbase}, {start_label}-{lab}")
    J(f"s_addc_u32 s{sbase+1}, s{sbase+1}, 0")
    J(f"s_mov_b32 s{sbase+2}, {end_label}-{start_label}")
    J(f"s_mov_b32 s{sbase+3}, 0x20000")
    J(f"s_lshr_b32 s{sbase+4}, s2, {wg_shift}")
    J(f"s_mul_i32 s{sbase+4}, s{sbase+4}, {nlines_per_wg*128}")
    J(f"v_lshlrev_b32 v{vt0}, 7, v0")
    J(f"v_mov_b32 v{vt1}, 0x2000000")
    J(f"v_cmp_gt_u32 vcc, {nlines_per_wg}, v0")
    J(f"v_cndmask_b32 v{vt0}, v{vt1}, v{vt0}, vcc")
    J(f"buffer_load_dword v{vdst}, v{vt0}, s[{sbase}:{sbase+3}], s{sbase+4} offen", tag="codepf")
```

```python
from common import *
from k12 import Flat, SPIN_MAX

def gen_k3c(diag=False, kidx=1, DC=6, codepf=False):
    k = Kern("k3_kernel")
    k.I("s_cmp_ge_u32 s2, 256")
    k.I("s_cbranch_scc1 Lk3_end")
    stamp_begin(k, diag)
    emit_k3c(k, diag, DC, codepf, fused=False)
    dump_marks(k, diag, kidx, 14, 15, 8)
    stamp_end(k, diag, kidx, 14, 15, vtmp=8)
    k.L("Lk3_end")
    k.I("s_endpgm")
    k.fix_hazards()
    pr = check_waits(k.items, "k3c")
    pr = [p_ for p_ in pr if "Lk3" not in p_]
    for p_ in pr[:10]: print(p_)
    return k, 208, 64, 3*40960

def emit_k3c(k, diag, DC=6, codepf=False, fused=False, sNonceIn=None, alltail=False, endlabel=None):
    fl = Flat(k); I = fl.emit
    def mark_(k_, d_, i_):
        if not fused: mark(k_, d_, i_)
        elif i_ in (0, 4, 6): mark(k_, d_, {0: 4, 4: 5, 6: 6}[i_])
    I(f"s_load_dwordx2 s[14:15], s[0:1], {KA['ws']}")
    I(f"s_load_dwordx2 s[6:7], s[0:1], {KA['wo']}")
    I(f"s_load_dwordx2 s[4:5], s[0:1], {KA['x']}")
    I(f"s_load_dwordx2 s[8:9], s[0:1], {KA['wr']}")
    I(f"s_load_dwordx2 s[12:13], s[0:1], {KA['dbg']}")
    LANE = 2
    I("v_lshrrev_b32 v1, 6, v0")
    I(f"v_and_b32 v{LANE}, 63, v0")
    sW, sKS, sRT, sCT, sT, sT2, sCb, sWb, sWL, sPb, sNonce = 40, 41, 42, 43, 44, 45, 46, 47, 48, 49, 50
    I(f"v_readfirstlane_b32 s{sW}, v1")
    I(f"s_and_b32 s{sT}, s2, 7")
    I(f"s_lshr_b32 s{sKS}, s{sT}, 1")
    I(f"s_and_b32 s{sRT}, s{sT}, 1")
    I(f"s_lshl_b32 s{sRT}, s{sRT}, 3")
    I(f"s_lshr_b32 s{sT2}, s2, 3")
    I(f"s_and_b32 s{sCT}, s{sT2}, 3")
    I(f"s_lshr_b32 s{sT2}, s{sT2}, 2")
    I(f"s_add_u32 s{sRT}, s{sRT}, s{sT2}")
    I("s_waitcnt lgkmcnt(0)")
    fl.pend = []
    SCTX, SWO, SP, SX, SWR, SH, SACC, SFL, SDBG = 16, 20, 24, 28, 32, 36, 52, 56, 84
    srd(k, SCTX, 14, 15, CTX_SIZE, CTX_OFF)
    srd(k, SWO, 6, 7, 4096*640*2)
    vC, vL16, t0, t1, t2 = 3, 4, 6, 7, 8
    vWD = 10
    vTR, vTRh = 16, 17
    I(f"v_lshrrev_b32 v{t0}, 5, v{LANE}")
    I(f"v_lshlrev_b32 v{vC}, 10, v{t0}")
    I(f"v_bfe_u32 v{t0}, v{LANE}, 4, 1")
    I(f"v_lshl_add_u32 v{vC}, v{t0}, 9, v{vC}")
    I(f"v_and_b32 v{t0}, 15, v{LANE}")
    I(f"v_lshl_add_u32 v{vC}, v{t0}, 4, v{vC}")
    I(f"v_lshlrev_b32 v{vL16}, 4, v{LANE}")
    I(f"s_mov_b32 s{sT}, 3277")
    for u in range(5):
        I(f"v_add_u32 v{t0}, {64*u}, v{LANE}")
        I(f"v_mul_lo_u32 v{t1}, v{t0}, s{sT}")
        I(f"v_lshrrev_b32 v{t1}, 16, v{t1}")
        I(f"v_mul_u32_u24 v{t2}, 20, v{t1}")
        I(f"v_sub_u32 v{t2}, v{t0}, v{t2}")
        I(f"v_mul_u32_u24 v{t1}, 1280, v{t1}")
        I(f"v_lshl_add_u32 v{vWD+u}, v{t2}, 4, v{t1}")
    I(f"s_lshl_b32 s{sCb}, s{sRT}, 2")
    I(f"s_add_u32 s{sCb}, s{sCb}, s{sW}")
    I(f"s_lshl_b32 s{sCb}, s{sCb}, 5")
    I(f"s_lshl_b32 s{sT}, s{sKS}, 3")
    I(f"s_add_u32 s{sCb}, s{sCb}, s{sT}")
    I(f"s_lshl_b32 s{sCb}, s{sCb}, 13")
    I(f"s_lshl_b32 s{sWb}, s{sKS}, 10")
    I(f"s_lshl_b32 s{sT}, s{sW}, 5")
    I(f"s_add_u32 s{sWb}, s{sWb}, s{sT}")
    I(f"s_mul_i32 s{sWb}, s{sWb}, 1280")
    I(f"s_mul_i32 s{sT}, s{sCT}, 320")
    I(f"s_add_u32 s{sWb}, s{sWb}, s{sT}")
    I(f"s_mul_i32 s{sWL}, s{sW}, 10240")
    def wdma(g, u):
        k.I(f"s_add_u32 m0, s{sWL}, {(g % 3)*40960 + u*1024}")
        k.I(f"s_add_u32 s{sT}, s{sWb}, {(g*128 + (u // 5)*16)*1280}")
        k.I(f"buffer_load_dwordx4 v{vWD + u % 5}, s[{SWO}:{SWO+3}], s{sT} offen lds", tag=f"k3W{g}")
    NC = DC + 1
    def cload(t):
        a = (t % NC)*8
        k.I(f"s_add_u32 s{sT2}, s{sCb}, {(t >> 2)*8192 + (t & 3)*2048}")
        k.I(f"buffer_load_dwordx4 a[{a}:{a+3}], v{vC}, s[{SCTX}:{SCTX+3}], s{sT2} offen", tag=f"k3c{t}")
        k.I(f"buffer_load_dwordx4 a[{a+4}:{a+7}], v{vC}, s[{SCTX}:{SCTX+3}], s{sT2} offen offset:256", tag=f"k3c{t}")
    if fused:
        for u in range(10): wdma(0, u)
        for u in range(10): wdma(1, u)
    else:
        for u in range(10): wdma(0, u)
        for t in range(2): cload(t)
        for u in range(10): wdma(1, u)
        for t in range(2, DC): cload(t)
    I(f"v_lshrrev_b32 v{t0}, 5, v{LANE}")
    I(f"v_lshlrev_b32 v{t0}, 4, v{t0}")
    I(f"v_bfe_u32 v{t1}, v{LANE}, 4, 1")
    I(f"v_lshl_add_u32 v{t0}, v{t1}, 2, v{t0}")
    I(f"v_bfe_u32 v{t1}, v{LANE}, 2, 2")
    I(f"v_add_u32 v{t0}, v{t0}, v{t1}")
    I(f"v_mul_u32_u24 v{vTR}, 320, v{t0}")
    I(f"v_and_b32 v{t1}, 3, v{LANE}")
    I(f"v_lshl_add_u32 v{vTR}, v{t1}, 4, v{vTR}")
    I(f"v_add_u32 v{vTRh}, 0x10000, v{vTR}")
    srd(k, SP, 14, 15, PART_SIZE, PART_OFF)
    srd(k, SDBG, 12, 13, 256)
    vZero, vAOff, vNon = 18, 19, 20
    I(f"v_mov_b32 v{vZero}, 0")
    I(f"v_mov_b32 v{t1}, 0x100000")
    I(f"v_cmp_eq_u32 vcc, 0, v0")
    I(f"v_cndmask_b32 v{vAOff}, v{t1}, v{vZero}, vcc")
    if fused:
        I(f"s_mov_b32 s{sNonce}, s{sNonceIn}")
        I(f"v_mov_b32 v{vNon}, s{sNonce}")
    else:
        k.I("s_memrealtime s[50:51]")
        k.I("s_waitcnt lgkmcnt(0)")
        k.I(f"s_or_b32 s{sNonce}, s50, 1")
        I(f"v_mov_b32 v{vNon}, s{sNonce}")
        I(f"v_mov_b32 v{vNon+1}, 0")
        k.I(f"buffer_atomic_cmpswap v[{vNon}:{vNon+1}], v{vAOff}, s[{SDBG}:{SDBG+3}], 0 offen sc0 sc1", tag="nonce")
    sE1, sE2 = 60+28, 60+29
    srd(k, SFL, 14, 15, FLG_SIZE, FLG_OFF)
    if not alltail:
        srd(k, SX, 4, 5, 2048*640*2)
        srd(k, SWR, 8, 9, 1280)
        srd(k, SH, 14, 15, H_SIZE, H_OFF)
        srd(k, SACC, 14, 15, ACC_SIZE, ACC_OFF)
        srd(k, SFL, 14, 15, FLG_SIZE, FLG_OFF)
        vO, vWo, vRow = 9, 22, 23
        I(f"s_lshl_b32 s{sT}, s{sRT}, 7")
        I(f"s_lshl_b32 s{sE1}, s{sKS}, 5")
        I(f"s_add_u32 s{sT}, s{sT}, s{sE1}")
        I(f"s_and_b32 s{sE1}, s{sW}, 1")
        I(f"s_lshl_b32 s{sE1}, s{sE1}, 4")
        I(f"s_add_u32 s{sT}, s{sT}, s{sE1}")
        I(f"v_and_b32 v{t0}, 15, v{LANE}")
        I(f"v_add_u32 v{vRow}, s{sT}, v{t0}")
        I(f"v_mul_u32_u24 v{vO}, 1280, v{vRow}")
        I(f"s_lshr_b32 s{sE2}, s{sW}, 1")
        I(f"s_mul_i32 s{sT}, s{sE2}, 192")
        I(f"s_mul_i32 s{sE1}, s{sCT}, 320")
        I(f"s_add_u32 s{sT}, s{sT}, s{sE1}")
        I(f"v_lshrrev_b32 v{t1}, 4, v{LANE}")
        I(f"v_lshlrev_b32 v{t1}, 4, v{t1}")
        I(f"v_add_u32 v{vWo}, s{sT}, v{t1}")
        I(f"v_add_u32 v{vO}, v{vO}, v{vWo}")
        I(f"s_cmp_eq_u32 s{sE2}, 0")
        I(f"s_cselect_b32 s{sE1}, 0, 0x4000000")
        XV, WRV = 184, 196
        for u in range(3):
            so = "0" if u < 2 else f"s{sE1}"
            k.I(f"buffer_load_dwordx4 v[{XV+4*u}:{XV+4*u+3}], v{vO}, s[{SX}:{SX+3}], {so} offen offset:{64*u}", tag="k3xw")
            k.I(f"buffer_load_dwordx4 v[{WRV+4*u}:{WRV+4*u+3}], v{vWo}, s[{SWR}:{SWR+3}], {so} offen offset:{64*u}", tag="k3xw")
    ACC, WF = 24, 104
    def wreads(t):
        g, s = t >> 2, t & 3
        out = []
        for nt in range(10):
            off = (g % 3)*40960 + s*10240 + (nt >> 1)*64 + (nt & 1)*8
            vb, off = (vTR, off) if off + 8*320 < 65536 else (vTRh, off - 65536)
            r = WF + (t & 1)*40 + nt*4
            out.append(f"ds_read_b64_tr_b16 v[{r}:{r+1}], v{vb} offset:{off}")
            out.append(f"ds_read_b64_tr_b16 v[{r+2}:{r+3}], v{vb} offset:{off + 8*320}")
        return out
    mark_(k, diag, 0)
    if fused:
        I(f"s_lshl_b32 s{sT}, s{sRT}, 2")
        I(f"s_add_u32 s{sT}, s{sT}, s{sKS}")
        I(f"s_add_u32 s{sT}, s{sT}, 160")
        I(f"s_lshl_b32 s{sT}, s{sT}, 7")
        I(f"v_lshlrev_b32 v{t0}, 2, v{LANE}")
        I(f"v_mov_b32 v{t1}, 0x100000")
        I(f"v_cmp_gt_u32 vcc, 8, v0")
        I(f"v_cndmask_b32 v{t0}, v{t1}, v{t0}, vcc")
        I(f"s_cmp_lg_u32 s{sW}, 0")
        k.I("s_cbranch_scc1 Lk3_cok")
        k.I(f"s_mov_b32 s{sT2}, {SPIN_MAX}")
        k.L("Lk3_cspin")
        k.I(f"buffer_load_dword v{t2}, v{t0}, s[{SFL}:{SFL+3}], s{sT} offen sc1"); k.vm.pop()
        k.I("s_waitcnt vmcnt(0)")
        k.I(f"v_cmp_eq_u32 vcc, v{vNon}, v{t2}")
        k.I(f"s_and_b32 s51, vcc_lo, 0xff")
        k.I(f"s_sub_u32 s{sT2}, s{sT2}, 1")
        k.I("s_cbranch_scc1 Lk3_cok")
        k.I(f"s_cmp_eq_u32 s51, 0xff")
        k.I("s_cbranch_scc0 Lk3_cspin")
        k.L("Lk3_cok")
        k.wait_vm("k3W0", expect=10)
        I("s_barrier")
        for t in range(DC): cload(t)
    else:
        k.wait_vm("k3W0", expect=10)
        I("s_barrier")
    for x in wreads(0): I(x)
    memq = [lambda u=u: wdma(2, u) for u in range(10)]
    for t in range(32):
        g, s = t >> 2, t & 3
        if s == 3 and g < 7:
            I("s_waitcnt lgkmcnt(0)")
            k.wait_vm(f"k3W{g+1}", expect=10)
            I("s_barrier")
            if g + 3 < 8: memq += [lambda u=u, g=g: wdma(g + 3, u) for u in range(10)]
        if t + DC < 32: memq.insert(0, lambda t=t: cload(t + DC))
        reads = wreads(t + 1) if t + 1 < 32 else []
        k.wait_vm(f"k3c{t}", expect=2)
        gi = 0
        for rs in range(2):
            for nt in range(10):
                d = ACC + (rs*10 + nt)*4
                a = (t % NC)*8 + rs*4
                w = WF + (t & 1)*40 + nt*4
                c = "0" if t == 0 else f"v[{d}:{d+3}]"
                I(f"v_mfma_f32_16x16x32_bf16 v[{d}:{d+3}], v[{w}:{w+3}], a[{a}:{a+3}], {c}")
                if reads: I(reads.pop(0))
                if memq and gi % 4 == 1: memq.pop(0)()
                gi += 1
        while reads: I(reads.pop(0))
        if t in (7, 15, 23): mark_(k, diag, 1 + t//8)
    assert not memq
    mark_(k, diag, 4)
    if codepf: code_touch(k, k.name, "k5_kernel", "Lcode_end", 4, 64, 6, 7, 8)
    I(f"s_lshl_b32 s{sPb}, s{sRT}, 2")
    I(f"s_add_u32 s{sPb}, s{sPb}, s{sCT}")
    I(f"s_mov_b32 s51, s{sPb}")
    I(f"s_lshl_b32 s{sPb}, s{sPb}, 4")
    I(f"s_lshl_b32 s{sT}, s{sW}, 2")
    I(f"s_add_u32 s{sT}, s{sT}, s{sKS}")
    I(f"s_add_u32 s{sT}, s{sT}, s{sPb}")
    I(f"s_mul_i32 s{sT2}, s{sT}, 10240")
    STG = WF
    for rs in range(2):
        for p in range(5):
            st = STG + ((rs*5 + p) % 4)*4
            for h2 in range(2):
                d = ACC + (rs*10 + 2*p + h2)*4
                I(f"v_cvt_pk_bf16_f32 v{st+2*h2}, v{d}, v{d+1}")
                I(f"v_cvt_pk_bf16_f32 v{st+2*h2+1}, v{d+2}, v{d+3}")
            I(f"s_add_u32 s{sT}, s{sT2}, {(rs*5 + p)*1024}")
            k.I(f"buffer_store_dwordx4 v[{st}:{st+3}], v{vL16}, s[{SP}:{SP+3}], s{sT} offen sc1", tag="k3pst")
    if alltail:
        from ktail import emit_tail
        emit_tail(k, diag, sKS, sRT, sCT, sNonceIn, endlabel)
        return
    if not fused:
        k.wait_vm("nonce")
        I(f"v_readfirstlane_b32 s{sT}, v{vNon}")
        I(f"s_cmp_eq_u32 s{sT}, 0")
        I(f"s_cselect_b32 s{sNonce}, s{sNonce}, s{sT}")
        I(f"v_mov_b32 v{vNon}, s{sNonce}")
    k.wait_vm("k3pst", expect=10)
    I("s_barrier")
    I(f"s_add_u32 s{sT}, s51, 96")
    I(f"s_lshl_b32 s{sT}, s{sT}, 7")
    I(f"s_lshl_b32 s{sT2}, s{sKS}, 2")
    I(f"s_add_u32 s{sT2}, s{sT2}, s{sT}")
    k.I(f"buffer_store_dword v{vNon}, v{vAOff}, s[{SFL}:{SFL+3}], s{sT2} offen sc1")
    I(f"v_lshlrev_b32 v{t0}, 2, v{LANE}")
    I(f"v_mov_b32 v{t1}, 0x100000")
    I(f"v_cmp_gt_u32 vcc, 4, v0")
    I(f"v_cndmask_b32 v{t0}, v{t1}, v{t0}, vcc")
    mark_(k, diag, 5)
    I(f"s_cmp_lg_u32 s{sW}, 0")
    I("s_cbranch_scc1 Lk3_ok")
    I(f"s_mov_b32 s{sT2}, {SPIN_MAX}")
    k.L("Lk3_spin")
    k.I(f"buffer_load_dword v{t2}, v{t0}, s[{SFL}:{SFL+3}], s{sT} offen sc1"); k.vm.pop()
    k.I("s_waitcnt vmcnt(0)")
    k.I(f"v_cmp_eq_u32 vcc, v{vNon}, v{t2}")
    k.I(f"s_and_b32 s{sCb}, vcc_lo, 0xf") if False else None
    k.I(f"s_and_b32 s51, vcc_lo, 0xf")
    k.I(f"s_sub_u32 s{sT2}, s{sT2}, 1")
    k.I("s_cbranch_scc1 Lk3_ok")
    k.I(f"s_cmp_eq_u32 s51, 0xf")
    k.I("s_cbranch_scc0 Lk3_spin")
    k.L("Lk3_ok")
    I("s_barrier")
    mark_(k, diag, 6)
    I(f"s_lshl_b32 s{sT}, s{sKS}, 2")
    I(f"s_add_u32 s{sT}, s{sT}, s{sPb}")
    I(f"s_mul_i32 s{sT}, s{sT}, 10240")
    I(f"s_and_b32 s{sT2}, s{sW}, 1")
    I(f"s_mul_i32 s{sT2}, s{sT2}, 5")
    I(f"s_mul_i32 s51, s{sE2}, 3")
    I(f"s_add_u32 s{sT2}, s{sT2}, s51")
    I(f"s_lshl_b32 s{sT2}, s{sT2}, 10")
    I(f"s_add_u32 s{sT}, s{sT}, s{sT2}")
    P = 48
    for f in range(4):
        I(f"s_add_u32 s{sT2}, s{sT}, {f*10240}")
        for u in range(3):
            r = P + (f*3 + u)*4
            k.I(f"buffer_load_dwordx4 v[{r}:{r+3}], v{vL16}, s[{SP}:{SP+3}], s{sT2} offen offset:{u*1024}", tag="k3part")
    k.wait_vm("k3part")
    A = 104; HP = 128; ta, tb = 12, 13
    S1, S2, S3 = 14, 15, 16
    I(f"v_mov_b32 v{S1}, 0"); I(f"v_mov_b32 v{S2}, 0"); I(f"v_mov_b32 v{S3}, 0")
    for u in range(3):
        if u == 2:
            I(f"s_cmp_lg_u32 s{sE2}, 0")
            I("s_cbranch_scc1 Lk3_u2done")
        for q in range(4):
            i = 2*q
            for f in range(4):
                r = P + (f*3 + u)*4 + q
                if f == 0:
                    I(f"v_lshlrev_b32 v{A+i}, 16, v{r}")
                    I(f"v_and_b32 v{A+i+1}, 0xffff0000, v{r}")
                else:
                    I(f"v_lshlrev_b32 v{ta}, 16, v{r}")
                    I(f"v_and_b32 v{tb}, 0xffff0000, v{r}")
                    I(f"v_add_f32 v{A+i}, v{A+i}, v{ta}")
                    I(f"v_add_f32 v{A+i+1}, v{A+i+1}, v{tb}")
            I(f"v_cvt_pk_bf16_f32 v{ta}, v{A+i}, v{A+i+1}")
            I(f"v_lshlrev_b32 v{A+i}, 16, v{ta}")
            I(f"v_and_b32 v{A+i+1}, 0xffff0000, v{ta}")
            I(f"v_lshlrev_b32 v{ta}, 16, v{XV+4*u+q}")
            I(f"v_and_b32 v{tb}, 0xffff0000, v{XV+4*u+q}")
            I(f"v_add_f32 v{A+i}, v{A+i}, v{ta}")
            I(f"v_add_f32 v{A+i+1}, v{A+i+1}, v{tb}")
            I(f"v_cvt_pk_bf16_f32 v{HP+4*u+q}, v{A+i}, v{A+i+1}")
            I(f"v_lshlrev_b32 v{A+i}, 16, v{HP+4*u+q}")
            I(f"v_and_b32 v{A+i+1}, 0xffff0000, v{HP+4*u+q}")
            if not alltail:
                I(f"v_lshlrev_b32 v{ta}, 16, v{WRV+4*u+q}")
                I(f"v_and_b32 v{tb}, 0xffff0000, v{WRV+4*u+q}")
                I(f"v_add_f32 v{S1}, v{S1}, v{A+i}")
                I(f"v_fmac_f32 v{S2}, v{A+i}, v{A+i}")
                I(f"v_fmac_f32 v{S3}, v{A+i}, v{ta}")
                I(f"v_add_f32 v{S1}, v{S1}, v{A+i+1}")
                I(f"v_fmac_f32 v{S2}, v{A+i+1}, v{A+i+1}")
                I(f"v_fmac_f32 v{S3}, v{A+i+1}, v{tb}")
        k.I(f"buffer_store_dwordx4 v[{HP+4*u}:{HP+4*u+3}], v{vO}, s[{SH}:{SH+3}], 0 offen offset:{64*u} " + ("sc1" if alltail else ""))
    k.L("Lk3_u2done")
    if alltail:
        from ktail import emit_tail
        emit_tail(k, diag, sKS, sRT, sCT, sNonceIn, endlabel)
        return
    for a in (S1, S2, S3):
        I(f"v_mov_b32 v{tb}, v{a}")
        I(f"v_permlane16_swap_b32 v{a}, v{tb}")
        I(f"v_add_f32 v{a}, v{a}, v{tb}")
        I(f"v_mov_b32 v{tb}, v{a}")
        I(f"v_permlane32_swap_b32 v{a}, v{tb}")
        I(f"v_add_f32 v{a}, v{a}, v{tb}")
    I(f"v_lshlrev_b32 v{t0}, 2, v{vRow}")
    I(f"v_mov_b32 v{t1}, 0x100000")
    I(f"v_cmp_gt_u32 vcc, 16, v{LANE}")
    I(f"v_cndmask_b32 v{t0}, v{t1}, v{t0}, vcc")
    for i, a in enumerate((S1, S2, S3)):
        I(f"s_mov_b32 s{sT}, {i*8192}")
        k.I(f"buffer_atomic_add_f32 v{a}, v{t0}, s[{SACC}:{SACC+3}], s{sT} offen")
    mark_(k, diag, 7)
```

```python
from common import *
from k12 import SPIN_MAX
from k5 import wave_allreduce
NFF = 54
HF_LINE, RTF_LINE, YF_LINE = 224, 288, 296

def flag_store(k, SFL, vNon, vOff0, sOff):
    k.I(f"buffer_store_dword v{vNon}, v{vOff0}, s[{SFL}:{SFL+3}], s{sOff} offen sc1")

def poll(k, name, SFL, vAddr, sOff, vData, nreg, vNon, sW, sC, sM, full64=False, mask=None):
    I = k.I
    ld = {1: f"buffer_load_dword v{vData}", 4: f"buffer_load_dwordx4 v[{vData}:{vData+3}]"}[nreg]
    I(f"s_cmp_lg_u32 s{sW}, 0")
    I(f"s_cbranch_scc1 {name}_ok")
    I(f"s_mov_b32 s{sC}, {SPIN_MAX}")
    k.L(name + "_spin")
    I(f"{ld}, v{vAddr}, s[{SFL}:{SFL+3}], s{sOff} offen sc1"); k.vm.pop()
    I("s_waitcnt vmcnt(0)")
    I(f"v_cmp_eq_u32 vcc, v{vNon}, v{vData}")
    for q in range(1, nreg):
        I(f"v_cmp_eq_u32 s[{sM}:{sM+1}], v{vNon}, v{vData+q}")
        I(f"s_and_b64 vcc, vcc, s[{sM}:{sM+1}]")
    I(f"s_sub_u32 s{sC}, s{sC}, 1")
    I(f"s_cbranch_scc1 {name}_ok")
    lo, hi = mask
    I(f"s_and_b32 s{sM}, vcc_lo, {hex(lo)}")
    I(f"s_and_b32 s{sM+1}, vcc_hi, {hex(hi)}")
    I(f"s_cmp_eq_u32 s{sM}, {hex(lo)}")
    I(f"s_cbranch_scc0 {name}_spin")
    I(f"s_cmp_eq_u32 s{sM+1}, {hex(hi)}")
    I(f"s_cbranch_scc0 {name}_spin")
    k.L(name + "_ok")

def ffn_dma(k, sW, sT, sT2, sC, t2, LANE):
    I = k.I
    LG, LU, LD = 0, 40960, 81920
    vWD, vL16 = 21, 22
    I(f"s_cmp_ge_u32 s2, {NFF}")
    I("s_cbranch_scc1 Lt_nodma")
    I(f"s_cmp_eq_u32 s{sW}, 0")
    I("s_cbranch_scc1 Lt_nodma")
    I(f"v_lshrrev_b32 v{t2}, 2, v{LANE}")
    I(f"v_mul_u32_u24 v{vWD}, 3456, v{t2}")
    I(f"v_and_b32 v{t2}, 3, v{LANE}")
    I(f"v_lshl_add_u32 v{vWD}, v{t2}, 4, v{vWD}")
    I(f"v_lshlrev_b32 v{vL16}, 4, v{LANE}")
    I(f"s_cmp_eq_u32 s{sW}, 3")
    I("s_cbranch_scc1 Lt_dma_down")
    I(f"s_cmp_eq_u32 s{sW}, 1")
    I("s_cselect_b32 s64, s8, s10"); I("s_cselect_b32 s65, s9, s11")
    I(f"s_cselect_b32 s{sT2}, {LG}, {LU}")
    I(f"s_mov_b32 s66, {640*1728*2}"); I("s_mov_b32 s67, 0x20000")
    I(f"s_lshl_b32 s{sT}, s2, 6")
    for u in range(40):
        I(f"s_add_u32 m0, s{sT2}, {u*1024}")
        I(f"s_add_u32 s{sC}, s{sT}, {u*16*3456}")
        I(f"buffer_load_dwordx4 v{vWD}, s[64:67], s{sC} offen lds")
    I("s_branch Lt_nodma")
    k.L("Lt_dma_down")
    I("s_mov_b32 s64, s12"); I("s_mov_b32 s65, s13"); I(f"s_mov_b32 s66, {1728*640*2}"); I("s_mov_b32 s67, 0x20000")
    I(f"s_mul_i32 s{sT}, s2, {32*1280}")
    for u in range(40):
        if u % 4 == 0:
            I(f"s_mov_b32 m0, {LD + u*1024}")
            I(f"s_add_u32 s{sC}, s{sT}, {u*1024}")
        I(f"buffer_load_dwordx4 v{vL16}, s[64:67], s{sC} offen offset:{(u % 4)*1024} lds")
    k.L("Lt_nodma")

def emit_tail(k, diag, sKS, sRT, sCT, sNonceIn, endlabel):
    I = k.I
    LANE = 2
    sW = 40
    sT, sT2, sEPS, sC, sM = 44, 45, 46, 47, 48
    SFL, SH, SOUT, SWR, SRT, SP, SX = 56, 16, 20, 24, 28, 32, 36
    vNon, vOff0, t0, t1, t2, t3 = 3, 4, 5, 6, 7, 8
    I(f"s_load_dwordx2 s[4:5], s[0:1], {KA['wr']}")
    I(f"s_load_dwordx2 s[6:7], s[0:1], {KA['out']}")
    I(f"s_load_dwordx4 s[8:11], s[0:1], {KA['wg']}")
    I(f"s_load_dwordx2 s[12:13], s[0:1], {KA['wd']}")
    I(f"s_load_dwordx2 s[62:63], s[0:1], {KA['x']}")
    srd(k, SFL, 14, 15, FLG_SIZE, FLG_OFF)
    srd(k, SP, 14, 15, PART_SIZE, PART_OFF)
    I(f"v_mov_b32 v{vNon}, s{sNonceIn}")
    I(f"v_mov_b32 v{t0}, 0x100000")
    I(f"v_mov_b32 v{t1}, 0")
    I(f"v_cmp_eq_u32 vcc, 0, v0")
    I(f"v_cndmask_b32 v{vOff0}, v{t0}, v{t1}, vcc")
    sJ = 51
    I(f"s_lshl_b32 s{sJ}, s{sRT}, 4")
    I(f"s_lshl_b32 s{sT}, s{sKS}, 2")
    I(f"s_add_u32 s{sJ}, s{sJ}, s{sT}")
    I(f"s_add_u32 s{sJ}, s{sJ}, s{sCT}")
    I("s_waitcnt lgkmcnt(0)")
    srd(k, SX, 62, 63, 2048*640*2)
    srd(k, SWR, 4, 5, 1280)
    srd(k, SOUT, 6, 7, 2048*640*2)
    srd(k, SH, 14, 15, H_SIZE, H_OFF)
    srd(k, SRT, 14, 15, RT_SIZE, RT_OFF)
    I(f"s_mov_b32 s{sEPS}, {f32bits(1e-5)}")
    vRow, vO, vWo, vP = 9, 10, 11, 12
    I(f"v_and_b32 v{t0}, 7, v{LANE}")
    I(f"s_lshl_b32 s{sT}, s{sJ}, 3")
    I(f"v_add_u32 v{vRow}, s{sT}, v{t0}")
    I(f"v_bfe_u32 v{t1}, v{LANE}, 3, 2")
    I(f"v_lshrrev_b32 v{t2}, 5, v{LANE}")
    I(f"v_lshlrev_b32 v{vWo}, 4, v{t1}")
    I(f"v_lshl_add_u32 v{vWo}, v{t2}, 6, v{vWo}")
    I(f"s_mul_i32 s{sT}, s{sW}, 320")
    I(f"v_add_u32 v{vWo}, s{sT}, v{vWo}")
    I(f"v_mul_u32_u24 v{vO}, 1280, v{vRow}")
    I(f"v_add_u32 v{vO}, v{vO}, v{vWo}")
    I(f"v_lshlrev_b32 v{vP}, 10, v{t2}")
    I(f"v_lshl_add_u32 v{vP}, v{t1}, 8, v{vP}")
    I(f"s_and_b32 s{sT}, s{sJ}, 1")
    I(f"s_lshl_b32 s{sT}, s{sT}, 3")
    I(f"v_add_u32 v{t0}, s{sT}, v{t0}")
    I(f"v_lshl_add_u32 v{vP}, v{t0}, 4, v{vP}")
    vO2, vWo2, vP2, vVal = 13, 14, 15, 16
    I(f"v_mov_b32 v{t3}, 0x4000000")
    I(f"v_cmp_gt_u32 vcc, 32, v{LANE}")
    I(f"v_cndmask_b32 v{vO2}, v{t3}, v{vO}, vcc")
    I(f"v_cndmask_b32 v{vWo2}, v{t3}, v{vWo}, vcc")
    I(f"v_cndmask_b32 v{vP2}, v{t3}, v{vP}, vcc")
    I(f"v_cndmask_b32 v{vVal}, 0, 1.0, vcc")
    XV, WRV = 100, 112
    for m in range(3):
        I(f"buffer_load_dwordx4 v[{XV+4*m}:{XV+4*m+3}], v{vO if m < 2 else vO2}, s[{SX}:{SX+3}], 0 offen offset:{128*m}")
        I(f"buffer_load_dwordx4 v[{WRV+4*m}:{WRV+4*m+3}], v{vWo if m < 2 else vWo2}, s[{SWR}:{SWR+3}], 0 offen offset:{128*m}")
    I(f"s_add_u32 s{sT}, s{sRT}, {HF_LINE}")
    I(f"s_lshl_b32 s{sT}, s{sT}, 7")
    I(f"s_lshl_b32 s{sT2}, s{sCT}, 2")
    I(f"s_add_u32 s{sT2}, s{sT2}, s{sKS}")
    I(f"s_lshl_b32 s{sT2}, s{sT2}, 2")
    I(f"s_add_u32 s{sT2}, s{sT2}, s{sT}")
    I("s_waitcnt vmcnt(6)")
    I("s_barrier")
    flag_store(k, SFL, vNon, vOff0, sT2)
    ffn_dma(k, sW, sT, sT2, sC, t2, LANE)
    I(f"s_add_u32 s{sT}, s{sRT}, {HF_LINE}")
    I(f"s_lshl_b32 s{sT}, s{sT}, 7")
    I(f"v_lshlrev_b32 v{t0}, 2, v{LANE}")
    I(f"v_mov_b32 v{t1}, 0x100000")
    I(f"v_cmp_gt_u32 vcc, 16, v0")
    I(f"v_cndmask_b32 v{t0}, v{t1}, v{t0}, vcc")
    poll(k, "Lt_h", SFL, t0, sT, 20, 1, vNon, sW, sC, sM, mask=(0xffff, 0))
    I("s_barrier")
    mark(k, diag, 12)
    I(f"s_lshl_b32 s{sT}, s{sRT}, 2")
    I(f"s_add_u32 s{sT}, s{sT}, s{sW}")
    I(f"s_lshl_b32 s{sT}, s{sT}, 4")
    I(f"s_lshr_b32 s{sT2}, s{sJ}, 2")
    I(f"s_and_b32 s{sT2}, s{sT2}, 3")
    I(f"s_lshl_b32 s{sT2}, s{sT2}, 2")
    I(f"s_add_u32 s{sT}, s{sT}, s{sT2}")
    I(f"s_mul_i32 s{sT}, s{sT}, 10240")
    I(f"s_lshr_b32 s{sT2}, s{sJ}, 1")
    I(f"s_and_b32 s{sT2}, s{sT2}, 1")
    I(f"s_mul_i32 s{sT2}, s{sT2}, 5120")
    I(f"s_add_u32 s{sT}, s{sT}, s{sT2}")
    P = 24
    for f in range(4):
        for m in range(3):
            I(f"s_add_u32 s{sT2}, s{sT}, {f*10240 + m*2048}")
            r = P + (f*3 + m)*4
            I(f"buffer_load_dwordx4 v[{r}:{r+3}], v{vP if m < 2 else vP2}, s[{SP}:{SP+3}], s{sT2} offen")
    I("s_waitcnt vmcnt(0)")
    A = 124; HP = 72; H = 148; ta, tb = 17, 18
    for m in range(3):
        for q in range(4):
            i = m*8 + 2*q
            for f in range(4):
                r = P + (f*3 + m)*4 + q
                if f == 0:
                    I(f"v_lshlrev_b32 v{A+i}, 16, v{r}")
                    I(f"v_and_b32 v{A+i+1}, 0xffff0000, v{r}")
                else:
                    I(f"v_lshlrev_b32 v{ta}, 16, v{r}")
                    I(f"v_and_b32 v{tb}, 0xffff0000, v{r}")
                    I(f"v_add_f32 v{A+i}, v{A+i}, v{ta}")
                    I(f"v_add_f32 v{A+i+1}, v{A+i+1}, v{tb}")
            I(f"v_cvt_pk_bf16_f32 v{ta}, v{A+i}, v{A+i+1}")
            I(f"v_lshlrev_b32 v{A+i}, 16, v{ta}")
            I(f"v_and_b32 v{A+i+1}, 0xffff0000, v{ta}")
            I(f"v_lshlrev_b32 v{ta}, 16, v{XV+4*m+q}")
            I(f"v_and_b32 v{tb}, 0xffff0000, v{XV+4*m+q}")
            I(f"v_add_f32 v{A+i}, v{A+i}, v{ta}")
            I(f"v_add_f32 v{A+i+1}, v{A+i+1}, v{tb}")
            I(f"v_cvt_pk_bf16_f32 v{HP+4*m+q}, v{A+i}, v{A+i+1}")
            I(f"v_lshlrev_b32 v{H+i}, 16, v{HP+4*m+q}")
            I(f"v_and_b32 v{H+i+1}, 0xffff0000, v{HP+4*m+q}")
        I(f"buffer_store_dwordx4 v[{HP+4*m}:{HP+4*m+3}], v{vO if m < 2 else vO2}, s[{SH}:{SH+3}], 0 offen offset:{128*m} sc1")
    def row_sum(v):
        I(f"v_add_f32 v{v}, v{v}, v{v} row_ror:8")
        I(f"v_mov_b32 v{tb}, v{v}")
        I(f"v_permlane16_swap_b32 v{v}, v{tb}")
        I(f"v_add_f32 v{v}, v{v}, v{tb}")
        I(f"v_mov_b32 v{tb}, v{v}")
        I(f"v_permlane32_swap_b32 v{v}, v{tb}")
        I(f"v_add_f32 v{v}, v{v}, v{tb}")
    S, M2, MU = 20, 21, 19
    I(f"v_add_f32 v{S}, v{H}, v{H+1}")
    I(f"v_add_f32 v{M2}, v{H+2}, v{H+3}")
    for i in range(4, 24, 2):
        I(f"v_add_f32 v{S}, v{S}, v{H+i}")
        I(f"v_add_f32 v{M2}, v{M2}, v{H+i+1}")
    I(f"v_add_f32 v{S}, v{S}, v{M2}")
    row_sum(S)
    I(f"v_mul_f32 v{MU}, {f32bits(1.0/160)}, v{S}")
    I(f"v_sub_f32 v{ta}, v{H}, v{MU}")
    I(f"v_mul_f32 v{M2}, v{ta}, v{ta}")
    for i in range(1, 16):
        I(f"v_sub_f32 v{ta}, v{H+i}, v{MU}")
        I(f"v_fmac_f32 v{M2}, v{ta}, v{ta}")
    for i in range(16, 24):
        I(f"v_sub_f32 v{ta}, v{H+i}, v{MU}")
        I(f"v_mul_f32 v{ta}, v{ta}, v{vVal}")
        I(f"v_fmac_f32 v{M2}, v{ta}, v{ta}")
    row_sum(M2)
    LX = 161792
    I(f"v_and_b32 v{t0}, 7, v{LANE}")
    I(f"v_lshlrev_b32 v{t0}, 5, v{t0}")
    I(f"v_add_u32 v{t0}, {LX}, v{t0}")
    I(f"s_lshl_b32 s{sT}, s{sW}, 3")
    I(f"v_add_u32 v{t1}, s{sT}, v{t0}")
    I(f"v_mov_b32 v{S}, v{MU}")
    I(f"ds_write_b64 v{t1}, v[{S}:{S+1}]")
    I("s_waitcnt lgkmcnt(0)")
    I("s_barrier")
    E = 84
    I(f"ds_read_b128 v[{E}:{E+3}], v{t0}")
    I(f"ds_read_b128 v[{E+4}:{E+7}], v{t0} offset:16")
    I("s_waitcnt lgkmcnt(0)")
    MEAN, VAR = 92, 93
    I(f"v_add_f32 v{MEAN}, v{E}, v{E+2}")
    I(f"v_add_f32 v{ta}, v{E+4}, v{E+6}")
    I(f"v_add_f32 v{MEAN}, v{MEAN}, v{ta}")
    I(f"v_mul_f32 v{MEAN}, 0.25, v{MEAN}")
    I(f"v_add_f32 v{VAR}, v{E+1}, v{E+3}")
    I(f"v_add_f32 v{ta}, v{E+5}, v{E+7}")
    I(f"v_add_f32 v{VAR}, v{VAR}, v{ta}")
    I(f"v_mov_b32 v{tb}, 0")
    for w in range(4):
        I(f"v_sub_f32 v{ta}, v{E+2*w}, v{MEAN}")
        I(f"v_fmac_f32 v{tb}, v{ta}, v{ta}")
    I(f"v_mov_b32 v{ta}, {f32bits(160.0)}")
    I(f"v_fmac_f32 v{VAR}, v{tb}, v{ta}")
    I(f"v_mul_f32 v{VAR}, {f32bits(1.0/640)}, v{VAR}")
    HN = 24
    ln_finish(k, H, 24, MEAN, VAR, 96, HN, sEPS)
    RX = 94
    I(f"v_mov_b32 v{RX}, 0")
    O = 36
    for i in range(12):
        I(f"v_lshlrev_b32 v{ta}, 16, v{HN+i}")
        I(f"v_and_b32 v{tb}, 0xffff0000, v{HN+i}")
        I(f"v_lshlrev_b32 v48, 16, v{WRV+i}")
        I(f"v_and_b32 v49, 0xffff0000, v{WRV+i}")
        I(f"v_fmac_f32 v{RX}, v{ta}, v48")
        I(f"v_fmac_f32 v{RX}, v{tb}, v49")
        I(f"v_lshlrev_b32 v48, 16, v{HP+i}")
        I(f"v_and_b32 v49, 0xffff0000, v{HP+i}")
        I(f"v_add_f32 v{ta}, v{ta}, v48")
        I(f"v_add_f32 v{tb}, v{tb}, v49")
        I(f"v_cvt_pk_bf16_f32 v{O+i}, v{ta}, v{tb}")
    for m in range(3):
        I(f"buffer_store_dwordx4 v[{O+4*m}:{O+4*m+3}], v{vO if m < 2 else vO2}, s[{SOUT}:{SOUT+3}], 0 offen offset:{128*m} sc1")
    row_sum(RX)
    I(f"v_and_b32 v{t0}, 7, v{LANE}")
    I(f"v_lshlrev_b32 v{t0}, 4, v{t0}")
    I(f"v_add_u32 v{t0}, {LX + 512}, v{t0}")
    I(f"s_lshl_b32 s{sT}, s{sW}, 2")
    I(f"v_add_u32 v{t1}, s{sT}, v{t0}")
    I(f"ds_write_b32 v{t1}, v{RX}")
    I("s_waitcnt lgkmcnt(0)")
    I("s_barrier")
    I(f"ds_read_b128 v[{E}:{E+3}], v{t0}")
    I("s_waitcnt lgkmcnt(0)")
    I(f"v_add_f32 v{E}, v{E}, v{E+1}")
    I(f"v_add_f32 v{E+2}, v{E+2}, v{E+3}")
    I(f"v_add_f32 v{RX}, v{E}, v{E+2}")
    bf16_round(k, RX)
    I(f"v_mov_b32 v{RX+1}, 0")
    I(f"v_lshlrev_b32 v{t0}, 4, v{vRow}")
    I(f"v_cmp_gt_u32 vcc, 8, v0")
    I(f"v_cndmask_b32 v{t0}, v{t3}, v{t0}, vcc")
    I(f"buffer_store_dwordx4 v[{MEAN}:{MEAN+3}], v{t0}, s[{SRT}:{SRT+3}], 0 offen sc1")
    I("s_waitcnt vmcnt(0)")
    I("s_barrier")
    I(f"s_lshl_b32 s{sT2}, s2, 2")
    I(f"s_add_u32 s{sT2}, s{sT2}, {RTF_LINE*128}")
    flag_store(k, SFL, vNon, vOff0, sT2)
    mark(k, diag, 13)
    I(f"s_cmp_ge_u32 s2, {NFF}")
    I(f"s_cbranch_scc1 {endlabel}")
    sF = 50
    I(f"s_mov_b32 s{sF}, s2")
    SYP = 60
    LG, LU, LD, LHN, LKEY, LPART, LA_ = 0, 40960, 81920, 155648, 158208, 158272, 160320
    srd(k, SYP, 14, 15, YP_SIZE, YP_OFF)
    I(f"v_lshlrev_b32 v{t0}, 4, v{LANE}")
    I(f"s_mov_b32 s{sT}, {RTF_LINE*128}")
    poll(k, "Lt_rt", SFL, t0, sT, 16, 4, vNon, sW, sC, sM, mask=(0xffffffff, 0xffffffff))
    I("s_barrier")
    mark(k, diag, 14)
    ST = 64
    I(f"v_lshlrev_b32 v{t0}, 4, v0")
    for e in range(8):
        I(f"s_mov_b32 s{sT}, {e*4096}")
        I(f"buffer_load_dword v{ST+e}, v{t0}, s[{SRT}:{SRT+3}], s{sT} offen offset:8")
    I("s_waitcnt vmcnt(0)")
    K1, K2, RR = 96, 97, 100
    I(f"v_mov_b32 v{K1}, 0")
    I(f"v_mov_b32 v{K2}, 0")
    for e in range(8):
        I(f"v_ashrrev_i32 v{t1}, 31, v{ST+e}")
        I(f"v_or_b32 v{t1}, 0x80000000, v{t1}")
        I(f"v_xor_b32 v{RR}, v{ST+e}, v{t1}")
        I(f"v_and_b32 v{RR}, 0xfffff800, v{RR}")
        I(f"v_sub_u32 v{t1}, {2047 - 256*e}, v0")
        I(f"v_or_b32 v{RR}, v{RR}, v{t1}")
        I(f"v_med3_u32 v{K2}, v{K1}, v{K2}, v{RR}")
        I(f"v_max_u32 v{K1}, v{K1}, v{RR}")
    T1, T2 = 16, 17
    I(f"v_mov_b32 v{T1}, v{K1}")
    wave_allreduce(k, "v_max_u32", T1, t1)
    I(f"v_cmp_eq_u32 vcc, v{T1}, v{K1}")
    I(f"v_cndmask_b32 v{T2}, v{K1}, v{K2}, vcc")
    wave_allreduce(k, "v_max_u32", T2, t1)
    I(f"s_lshl_b32 s{sT}, s{sW}, 3")
    I(f"v_mov_b32 v{t1}, s{sT}")
    I(f"v_add_u32 v{t1}, {LKEY}, v{t1}")
    I(f"ds_write_b64 v{t1}, v[{T1}:{T1+1}]")
    I("s_waitcnt lgkmcnt(0)")
    I("s_barrier")
    KK = 20
    I(f"v_mov_b32 v{t1}, {LKEY}")
    I(f"ds_read_b128 v[{KK}:{KK+3}], v{t1}")
    I(f"ds_read_b128 v[{KK+4}:{KK+7}], v{t1} offset:16")
    I("s_waitcnt lgkmcnt(0)")
    I(f"v_mov_b32 v{K1}, 0")
    I(f"v_mov_b32 v{K2}, 0")
    for j in range(8):
        I(f"v_med3_u32 v{K2}, v{K1}, v{K2}, v{KK+j}")
        I(f"v_max_u32 v{K1}, v{K1}, v{KK+j}")
    for kx in (K1, K2):
        I(f"v_and_b32 v{kx}, 0x7ff, v{kx}")
        I(f"v_sub_u32 v{kx}, 2047, v{kx}")
    I(f"v_bfe_u32 v{t1}, v{LANE}, 4, 1")
    I(f"v_cmp_eq_u32 vcc, 0, v{t1}")
    I(f"v_cndmask_b32 v{t3}, v{K2}, v{K1}, vcc")
    vRowSel = 13
    I(f"v_mov_b32 v{vRowSel}, v{t3}")
    I(f"v_lshlrev_b32 v{t2}, 4, v{t3}")
    REC = 56
    I(f"buffer_load_dwordx4 v[{REC}:{REC+3}], v{t2}, s[{SRT}:{SRT+3}], 0 offen")
    I(f"v_mul_u32_u24 v{t3}, 1280, v{t3}")
    I(f"v_and_b32 v{t0}, 15, v{LANE}")
    I(f"v_lshl_add_u32 v{t3}, v{t0}, 4, v{t3}")
    HX, HN = 16, 36
    for u in range(5):
        I(f"buffer_load_dwordx4 v[{HX+4*u}:{HX+4*u+3}], v{t3}, s[{SH}:{SH+3}], 0 offen offset:{256*u}")
    I("s_waitcnt vmcnt(0)")
    X = 164
    for i in range(20):
        I(f"v_lshlrev_b32 v{X}, 16, v{HX+i}")
        I(f"v_and_b32 v{X+1}, 0xffff0000, v{HX+i}")
        I(f"v_sub_f32 v{X}, v{X}, v{REC}")
        I(f"v_sub_f32 v{X+1}, v{X+1}, v{REC}")
        I(f"v_cvt_pk_bf16_f32 v{X+2}, v{X}, v{X+1}")
        I(f"v_lshlrev_b32 v{X}, 16, v{X+2}")
        I(f"v_and_b32 v{X+1}, 0xffff0000, v{X+2}")
        I(f"v_mul_f32 v{X}, v{X}, v{REC+1}")
        I(f"v_mul_f32 v{X+1}, v{X+1}, v{REC+1}")
        I(f"v_cvt_pk_bf16_f32 v{HN+i}, v{X}, v{X+1}")
    RSEL = 60
    I(f"v_mul_f32 v{RSEL}, {f32bits(-1.4426950408889634)}, v{REC+2}")
    I(f"v_exp_f32 v{RSEL}, v{RSEL}")
    I(f"v_add_f32 v{RSEL}, 1.0, v{RSEL}")
    I(f"v_rcp_f32 v{RSEL}, v{RSEL}")
    bf16_round(k, RSEL)
    I(f"v_bfe_u32 v{t1}, v{LANE}, 4, 1")
    I(f"v_mul_u32_u24 v{t1}, 1280, v{t1}")
    I(f"v_lshl_add_u32 v{t1}, v{t0}, 4, v{t1}")
    I(f"v_add_u32 v{t2}, {LHN}, v{t1}")
    I(f"s_cmp_lg_u32 s{sW}, 0")
    I("s_cbranch_scc1 Lt_w0done")
    for u in range(5):
        I(f"ds_write_b128 v{t2}, v[{HN+4*u}:{HN+4*u+3}] offset:{256*u}")
    I(f"v_bfe_u32 v{t2}, v{LANE}, 4, 1")
    I(f"v_lshlrev_b32 v{t2}, 3, v{t2}")
    I(f"v_add_u32 v{t2}, {LKEY+32}, v{t2}")
    I(f"v_mov_b32 v62, v{vRowSel}")
    I(f"v_mov_b32 v63, v{RSEL}")
    I(f"ds_write_b64 v{t2}, v[62:63]")
    k.L("Lt_w0done")
    I("s_waitcnt vmcnt(0) lgkmcnt(0)")
    I("s_barrier")
    I(f"s_mul_i32 s51, s{sW}, {160*64}")
    I(f"v_and_b32 v{t0}, 1, v{LANE}")
    I(f"v_mul_u32_u24 v{t0}, 1280, v{t0}")
    I(f"v_lshrrev_b32 v{t1}, 4, v{LANE}")
    I(f"v_lshl_add_u32 v{t0}, v{t1}, 4, v{t0}")
    I(f"s_mul_i32 s{sT}, s{sW}, 320")
    I(f"s_add_u32 s{sT}, s{sT}, {LHN}")
    I(f"v_add_u32 v{t0}, s{sT}, v{t0}")
    I(f"v_bfe_u32 v{t2}, v{LANE}, 2, 2")
    I(f"v_lshl_add_u32 v{t2}, v{t1}, 3, v{t2}")
    I(f"v_lshlrev_b32 v{t2}, 6, v{t2}")
    I(f"v_and_b32 v{t3}, 3, v{LANE}")
    I(f"v_lshl_add_u32 v{t2}, v{t3}, 3, v{t2}")
    I(f"v_add_u32 v{t2}, s51, v{t2}")
    AF, BF = 16, 100
    for s_ in range(5): I(f"ds_read_b128 v[{AF+4*s_}:{AF+4*s_+3}], v{t0} offset:{64*s_}")
    for mi, LB in enumerate((LG, LU)):
        for ft in range(2):
            for s_ in range(5):
                r = BF + ((mi*2 + ft)*5 + s_)*4
                I(f"ds_read_b64_tr_b16 v[{r}:{r+1}], v{t2} offset:{LB + s_*2048 + ft*32}")
                I(f"ds_read_b64_tr_b16 v[{r+2}:{r+3}], v{t2} offset:{LB + s_*2048 + ft*32 + 256}")
    I("s_waitcnt lgkmcnt(0)")
    D = 72
    for s_ in range(5):
        for q in range(4):
            r = BF + (q*5 + s_)*4
            I(f"v_mfma_f32_16x16x32_bf16 v[{D+4*q}:{D+4*q+3}], v[{AF+4*s_}:{AF+4*s_+3}], v[{r}:{r+3}], " + ("0" if s_ == 0 else f"v[{D+4*q}:{D+4*q+3}]"))
    I(f"v_and_b32 v{t0}, 15, v{LANE}")
    I(f"v_lshlrev_b32 v{t0}, 2, v{t0}")
    I(f"s_lshl_b32 s{sT}, s{sW}, 9")
    I(f"s_add_u32 s{sT}, s{sT}, {LPART}")
    I(f"v_add_u32 v{t0}, s{sT}, v{t0}")
    I("s_mov_b32 exec_lo, 0xffff")
    I("s_mov_b32 exec_hi, 0")
    for mi in range(2):
        for ft in range(2):
            for tok in range(2):
                I(f"ds_write_b32 v{t0}, v{D+4*(mi*2+ft)+tok} offset:{(mi*2+tok)*128 + ft*64}")
    I("s_mov_b64 exec, -1")
    I("s_waitcnt lgkmcnt(0)")
    I("s_barrier")
    I(f"v_lshlrev_b32 v{t0}, 2, v{LANE}")
    I(f"v_add_u32 v{t0}, {LPART}, v{t0}")
    for w in range(4):
        I(f"ds_read_b32 v{16+w}, v{t0} offset:{w*512}")
        I(f"ds_read_b32 v{20+w}, v{t0} offset:{w*512 + 256}")
    I("s_waitcnt lgkmcnt(0)")
    for b in (16, 20):
        I(f"v_add_f32 v{b}, v{b}, v{b+1}")
        I(f"v_add_f32 v{b+2}, v{b+2}, v{b+3}")
        I(f"v_add_f32 v{b}, v{b}, v{b+2}")
        bf16_round(k, b)
    I(f"v_mul_f32 v17, {f32bits(-1.4426950408889634)}, v16")
    I(f"v_exp_f32 v17, v17")
    I(f"v_add_f32 v17, 1.0, v17")
    I(f"v_rcp_f32 v17, v17")
    I(f"v_mul_f32 v16, v16, v17")
    bf16_round(k, 16)
    I(f"v_mul_f32 v16, v16, v20")
    I(f"v_cvt_pk_bf16_f32 v16, v16, v16")
    I(f"v_lshlrev_b32 v{t1}, 1, v{LANE}")
    I(f"v_add_u32 v{t1}, {LA_}, v{t1}")
    I(f"ds_write_b16 v{t1}, v16")
    I("s_waitcnt lgkmcnt(0)")
    I(f"v_and_b32 v{t0}, 1, v{LANE}")
    I(f"v_lshlrev_b32 v{t0}, 6, v{t0}")
    I(f"v_lshrrev_b32 v{t1}, 4, v{LANE}")
    I(f"v_lshl_add_u32 v{t0}, v{t1}, 4, v{t0}")
    I(f"v_add_u32 v{t0}, {LA_}, v{t0}")
    I(f"ds_read_b128 v[16:19], v{t0}")
    I(f"v_bfe_u32 v{t2}, v{LANE}, 2, 2")
    I(f"v_lshl_add_u32 v{t2}, v{t1}, 3, v{t2}")
    I(f"v_mul_u32_u24 v{t2}, 1280, v{t2}")
    I(f"v_and_b32 v{t3}, 3, v{LANE}")
    I(f"v_lshl_add_u32 v{t2}, v{t3}, 3, v{t2}")
    I(f"s_mul_i32 s{sT}, s{sW}, 320")
    I(f"s_add_u32 s{sT}, s{sT}, {LD}")
    I(f"v_add_u32 v{t2}, s{sT}, v{t2}")
    for nt in range(10):
        r = 100 + 4*nt
        I(f"ds_read_b64_tr_b16 v[{r}:{r+1}], v{t2} offset:{nt*32}")
        I(f"ds_read_b64_tr_b16 v[{r+2}:{r+3}], v{t2} offset:{nt*32 + 4*1280}")
    I("s_waitcnt lgkmcnt(0)")
    for nt in range(10):
        I(f"v_mfma_f32_16x16x32_bf16 v[{140+4*nt}:{143+4*nt}], v[16:19], v[{100+4*nt}:{103+4*nt}], 0")
    I(f"v_and_b32 v{t0}, 15, v{LANE}")
    I(f"v_lshlrev_b32 v{t0}, 2, v{t0}")
    I(f"s_mul_i32 s{sT}, s{sF}, 5120")
    I(f"s_mul_i32 s{sT2}, s{sW}, 640")
    I(f"s_add_u32 s{sT}, s{sT}, s{sT2}")
    I("s_mov_b32 exec_lo, 0xffff")
    I("s_mov_b32 exec_hi, 0")
    for nt in range(10):
        I(f"buffer_store_dword v{140+4*nt}, v{t0}, s[{SYP}:{SYP+3}], s{sT} offen offset:{nt*64} sc1")
        I(f"buffer_store_dword v{141+4*nt}, v{t0}, s[{SYP}:{SYP+3}], s{sT} offen offset:{2560 + nt*64} sc1")
    I("s_mov_b64 exec, -1")
    I("s_waitcnt vmcnt(0)")
    I("s_barrier")
    I(f"s_lshl_b32 s{sT2}, s{sF}, 2")
    I(f"s_add_u32 s{sT2}, s{sT2}, {YF_LINE*128}")
    flag_store(k, SFL, vNon, vOff0, sT2)
    mark(k, diag, 15)
    I(f"s_cmp_ge_u32 s{sF}, 20")
    I(f"s_cbranch_scc1 {endlabel}")
    sTok, sCc = 51, 52
    I(f"s_cmp_ge_u32 s{sF}, 10")
    I(f"s_cselect_b32 s{sTok}, 1, 0")
    I(f"s_mul_i32 s{sT}, s{sTok}, 10")
    I(f"s_sub_u32 s{sCc}, s{sF}, s{sT}")
    I(f"s_lshl_b32 s{sT}, s{sCc}, 6")
    I(f"v_add_u32 v16, s{sT}, v{LANE}")
    I(f"s_lshl_b32 s{sT}, s{sTok}, 3")
    I(f"s_add_u32 s{sT}, s{sT}, {LKEY+32}")
    I(f"v_mov_b32 v17, s{sT}")
    I(f"ds_read_b64 v[18:19], v17")
    I(f"s_mul_i32 s{sT}, s{sTok}, 1280")
    I(f"s_add_u32 s{sT}, s{sT}, {LHN}")
    I(f"v_lshlrev_b32 v20, 1, v16")
    I(f"v_add_u32 v21, s{sT}, v20")
    I(f"ds_read_u16 v22, v21")
    I("s_waitcnt lgkmcnt(0)")
    I(f"v_mul_u32_u24 v23, 1280, v18")
    I(f"v_add_u32 v23, v23, v20")
    I(f"buffer_load_ushort v24, v23, s[{SH}:{SH+3}], 0 offen")
    I(f"v_lshlrev_b32 v{t0}, 2, v{LANE}")
    I(f"v_mov_b32 v{t1}, 0x100000")
    I(f"v_cmp_gt_u32 vcc, {NFF}, v{LANE}")
    I(f"v_cndmask_b32 v{t0}, v{t1}, v{t0}, vcc")
    I(f"s_mov_b32 s{sT}, {YF_LINE*128}")
    poll(k, "Lt_y", SFL, t0, sT, 25, 1, vNon, sW, sC, sM, mask=(0xffffffff, (1 << (NFF - 32)) - 1))
    I("s_barrier")
    I(f"v_lshlrev_b32 v26, 2, v16")
    I(f"s_mul_i32 s{sT2}, s{sW}, {14*5120}")
    I(f"s_mul_i32 s{sT}, s{sTok}, 2560")
    I(f"s_add_u32 s{sT2}, s{sT2}, s{sT}")
    for j in range(14):
        I(f"s_add_u32 s{sT}, s{sT2}, {j*5120}")
        I(f"buffer_load_dword v{32+j}, v26, s[{SYP}:{SYP+3}], s{sT} offen")
    I("s_waitcnt vmcnt(0)")
    for j in range(1, 14): I(f"v_add_f32 v32, v32, v{32+j}")
    I(f"v_lshlrev_b32 v27, 2, v0")
    I(f"v_add_u32 v27, {LPART}, v27")
    I(f"ds_write_b32 v27, v32")
    I("s_waitcnt lgkmcnt(0)")
    I("s_barrier")
    I(f"s_cmp_lg_u32 s{sW}, 0")
    I(f"s_cbranch_scc1 {endlabel}")
    I(f"v_lshlrev_b32 v27, 2, v{LANE}")
    I(f"v_add_u32 v27, {LPART}, v27")
    for q in range(4): I(f"ds_read_b32 v{32+q}, v27 offset:{256*q}")
    I("s_waitcnt lgkmcnt(0)")
    I("v_add_f32 v32, v32, v33")
    I("v_add_f32 v34, v34, v35")
    I("v_add_f32 v32, v32, v34")
    bf16_round(k, 32)
    I("v_mul_f32 v32, v32, v19")
    bf16_round(k, 32)
    I("v_lshlrev_b32 v22, 16, v22")
    I("v_add_f32 v32, v32, v22")
    bf16_round(k, 32)
    I("v_lshlrev_b32 v24, 16, v24")
    I("v_add_f32 v32, v32, v24")
    I("v_cvt_pk_bf16_f32 v32, v32, v32")
    I(f"buffer_store_short v32, v23, s[{SOUT}:{SOUT+3}], 0 offen sc1")
```

```python
from common import *
from k12 import SPIN_MAX
from k5 import wave_allreduce
NFF = 54
HF_LINE, RTF_LINE, YF_LINE = 224, 288, 296

def flag_store(k, SFL, vNon, vOff0, sOff):
    k.I(f"buffer_store_dword v{vNon}, v{vOff0}, s[{SFL}:{SFL+3}], s{sOff} offen sc1")

def poll(k, name, SFL, vAddr, sOff, vData, nreg, vNon, sW, sC, sM, full64=False, mask=None):
    I = k.I
    ld = {1: f"buffer_load_dword v{vData}", 4: f"buffer_load_dwordx4 v[{vData}:{vData+3}]"}[nreg]
    I(f"s_cmp_lg_u32 s{sW}, 0")
    I(f"s_cbranch_scc1 {name}_ok")
    I(f"s_mov_b32 s{sC}, {SPIN_MAX}")
    k.L(name + "_spin")
    I(f"{ld}, v{vAddr}, s[{SFL}:{SFL+3}], s{sOff} offen sc1"); k.vm.pop()
    I("s_waitcnt vmcnt(0)")
    I(f"v_cmp_eq_u32 vcc, v{vNon}, v{vData}")
    for q in range(1, nreg):
        I(f"v_cmp_eq_u32 s[{sM}:{sM+1}], v{vNon}, v{vData+q}")
        I(f"s_and_b64 vcc, vcc, s[{sM}:{sM+1}]")
    I(f"s_sub_u32 s{sC}, s{sC}, 1")
    I(f"s_cbranch_scc1 {name}_ok")
    lo, hi = mask
    I(f"s_and_b32 s{sM}, vcc_lo, {hex(lo)}")
    I(f"s_and_b32 s{sM+1}, vcc_hi, {hex(hi)}")
    I(f"s_cmp_eq_u32 s{sM}, {hex(lo)}")
    I(f"s_cbranch_scc0 {name}_spin")
    I(f"s_cmp_eq_u32 s{sM+1}, {hex(hi)}")
    I(f"s_cbranch_scc0 {name}_spin")
    k.L(name + "_ok")

def ffn_dma(k, sW, sT, sT2, sC, t2, LANE):
    I = k.I
    LG, LU, LD = 0, 40960, 81920
    vWD, vL16 = 21, 22
    I(f"s_cmp_ge_u32 s2, {NFF}")
    I("s_cbranch_scc1 Lt_nodma")
    I(f"s_cmp_eq_u32 s{sW}, 0")
    I("s_cbranch_scc1 Lt_nodma")
    I(f"v_lshrrev_b32 v{t2}, 2, v{LANE}")
    I(f"v_mul_u32_u24 v{vWD}, 3456, v{t2}")
    I(f"v_and_b32 v{t2}, 3, v{LANE}")
    I(f"v_lshl_add_u32 v{vWD}, v{t2}, 4, v{vWD}")
    I(f"v_lshlrev_b32 v{vL16}, 4, v{LANE}")
    I(f"s_cmp_eq_u32 s{sW}, 3")
    I("s_cbranch_scc1 Lt_dma_down")
    I(f"s_cmp_eq_u32 s{sW}, 1")
    I("s_cselect_b32 s64, s8, s10"); I("s_cselect_b32 s65, s9, s11")
    I(f"s_cselect_b32 s{sT2}, {LG}, {LU}")
    I(f"s_mov_b32 s66, {640*1728*2}"); I("s_mov_b32 s67, 0x20000")
    I(f"s_lshl_b32 s{sT}, s2, 6")
    for u in range(40):
        I(f"s_add_u32 m0, s{sT2}, {u*1024}")
        I(f"s_add_u32 s{sC}, s{sT}, {u*16*3456}")
        I(f"buffer_load_dwordx4 v{vWD}, s[64:67], s{sC} offen lds")
    I("s_waitcnt vmcnt(40)")
    I("s_branch Lt_dmadone")
    k.L("Lt_dma_down")
    I("s_mov_b32 s64, s12"); I("s_mov_b32 s65, s13"); I(f"s_mov_b32 s66, {1728*640*2}"); I("s_mov_b32 s67, 0x20000")
    I(f"s_mul_i32 s{sT}, s2, {32*1280}")
    for u in range(40):
        if u % 4 == 0:
            I(f"s_mov_b32 m0, {LD + u*1024}")
            I(f"s_add_u32 s{sC}, s{sT}, {u*1024}")
        I(f"buffer_load_dwordx4 v{vL16}, s[64:67], s{sC} offen offset:{(u % 4)*1024} lds")
    I("s_waitcnt vmcnt(40)")
    I("s_branch Lt_dmadone")
    k.L("Lt_nodma")
    I("s_waitcnt vmcnt(0)")
    k.L("Lt_dmadone")

def emit_tail(k, diag, sKS, sRT, sCT, sNonceIn, endlabel):
    I = k.I
    LANE = 2
    sW = 40
    sT, sT2, sEPS, sC, sM = 44, 45, 46, 47, 48
    SFL, SH, SOUT, SWR, SRT, SP, SX = 56, 16, 20, 24, 28, 32, 36
    vNon, vOff0, t0, t1, t2, t3 = 3, 4, 5, 6, 7, 8
    I(f"s_load_dwordx2 s[4:5], s[0:1], {KA['wr']}")
    I(f"s_load_dwordx2 s[6:7], s[0:1], {KA['out']}")
    I(f"s_load_dwordx4 s[8:11], s[0:1], {KA['wg']}")
    I(f"s_load_dwordx2 s[12:13], s[0:1], {KA['wd']}")
    I(f"s_load_dwordx2 s[62:63], s[0:1], {KA['x']}")
    srd(k, SFL, 14, 15, FLG_SIZE, FLG_OFF)
    srd(k, SP, 14, 15, PART_SIZE, PART_OFF)
    I(f"v_mov_b32 v{vNon}, s{sNonceIn}")
    I(f"v_mov_b32 v{t0}, 0x100000")
    I(f"v_mov_b32 v{t1}, 0")
    I(f"v_cmp_eq_u32 vcc, 0, v0")
    I(f"v_cndmask_b32 v{vOff0}, v{t0}, v{t1}, vcc")
    sJ = 51
    I(f"s_lshl_b32 s{sJ}, s{sRT}, 4")
    I(f"s_lshl_b32 s{sT}, s{sKS}, 2")
    I(f"s_add_u32 s{sJ}, s{sJ}, s{sT}")
    I(f"s_add_u32 s{sJ}, s{sJ}, s{sCT}")
    I("s_waitcnt lgkmcnt(0)")
    srd(k, SX, 62, 63, 2048*640*2)
    srd(k, SWR, 4, 5, 1280)
    srd(k, SOUT, 6, 7, 2048*640*2)
    srd(k, SH, 14, 15, H_SIZE, H_OFF)
    srd(k, SRT, 14, 15, RT_SIZE, RT_OFF)
    I(f"s_mov_b32 s{sEPS}, {f32bits(1e-5)}")
    vRow, vO, vWo, vP = 9, 10, 11, 12
    I(f"v_and_b32 v{t0}, 7, v{LANE}")
    I(f"s_lshl_b32 s{sT}, s{sJ}, 3")
    I(f"v_add_u32 v{vRow}, s{sT}, v{t0}")
    I(f"v_bfe_u32 v{t1}, v{LANE}, 3, 2")
    I(f"v_lshrrev_b32 v{t2}, 5, v{LANE}")
    I(f"v_lshlrev_b32 v{vWo}, 4, v{t1}")
    I(f"v_lshl_add_u32 v{vWo}, v{t2}, 6, v{vWo}")
    I(f"s_mul_i32 s{sT}, s{sW}, 320")
    I(f"v_add_u32 v{vWo}, s{sT}, v{vWo}")
    I(f"v_mul_u32_u24 v{vO}, 1280, v{vRow}")
    I(f"v_add_u32 v{vO}, v{vO}, v{vWo}")
    I(f"v_lshlrev_b32 v{vP}, 10, v{t2}")
    I(f"v_lshl_add_u32 v{vP}, v{t1}, 8, v{vP}")
    I(f"s_and_b32 s{sT}, s{sJ}, 1")
    I(f"s_lshl_b32 s{sT}, s{sT}, 3")
    I(f"v_add_u32 v{t0}, s{sT}, v{t0}")
    I(f"v_lshl_add_u32 v{vP}, v{t0}, 4, v{vP}")
    vO2, vWo2, vP2, vVal = 13, 14, 15, 16
    I(f"v_mov_b32 v{t3}, 0x4000000")
    I(f"v_cmp_gt_u32 vcc, 32, v{LANE}")
    I(f"v_cndmask_b32 v{vO2}, v{t3}, v{vO}, vcc")
    I(f"v_cndmask_b32 v{vWo2}, v{t3}, v{vWo}, vcc")
    I(f"v_cndmask_b32 v{vP2}, v{t3}, v{vP}, vcc")
    I(f"v_cndmask_b32 v{vVal}, 0, 1.0, vcc")
    XV, WRV = 100, 112
    for m in range(3):
        I(f"buffer_load_dwordx4 v[{XV+4*m}:{XV+4*m+3}], v{vO if m < 2 else vO2}, s[{SX}:{SX+3}], 0 offen offset:{128*m}")
        I(f"buffer_load_dwordx4 v[{WRV+4*m}:{WRV+4*m+3}], v{vWo if m < 2 else vWo2}, s[{SWR}:{SWR+3}], 0 offen offset:{128*m}")
    I(f"s_add_u32 s{sT}, s{sRT}, {HF_LINE}")
    I(f"s_lshl_b32 s{sT}, s{sT}, 7")
    I(f"s_lshl_b32 s{sT2}, s{sCT}, 2")
    I(f"s_add_u32 s{sT2}, s{sT2}, s{sKS}")
    I(f"s_lshl_b32 s{sT2}, s{sT2}, 2")
    I(f"s_add_u32 s{sT2}, s{sT2}, s{sT}")
    I(f"v_mov_b32 v{t0}, {161792 + 768}")
    I(f"s_cmp_lg_u32 s{sW}, 0")
    I("s_cbranch_scc1 Lt_nn")
    I(f"ds_write_b32 v{t0}, v{vNon}")
    k.L("Lt_nn")
    I("s_waitcnt vmcnt(6) lgkmcnt(0)")
    I("s_barrier")
    I(f"ds_read_b32 v{vNon}, v{t0}")
    I("s_waitcnt lgkmcnt(0)")
    flag_store(k, SFL, vNon, vOff0, sT2)
    I(f"s_add_u32 s{sT}, s{sRT}, {HF_LINE}")
    I(f"s_lshl_b32 s{sT}, s{sT}, 7")
    I(f"v_lshlrev_b32 v{t0}, 2, v{LANE}")
    I(f"v_mov_b32 v{t1}, 0x100000")
    I(f"v_cmp_gt_u32 vcc, 16, v0")
    I(f"v_cndmask_b32 v{t0}, v{t1}, v{t0}, vcc")
    poll(k, "Lt_h", SFL, t0, sT, 20, 1, vNon, sW, sC, sM, mask=(0xffff, 0))
    I("s_barrier")
    mark(k, diag, 12)
    I(f"s_lshl_b32 s{sT}, s{sRT}, 2")
    I(f"s_add_u32 s{sT}, s{sT}, s{sW}")
    I(f"s_lshl_b32 s{sT}, s{sT}, 4")
    I(f"s_lshr_b32 s{sT2}, s{sJ}, 2")
    I(f"s_and_b32 s{sT2}, s{sT2}, 3")
    I(f"s_lshl_b32 s{sT2}, s{sT2}, 2")
    I(f"s_add_u32 s{sT}, s{sT}, s{sT2}")
    I(f"s_mul_i32 s{sT}, s{sT}, 10240")
    I(f"s_lshr_b32 s{sT2}, s{sJ}, 1")
    I(f"s_and_b32 s{sT2}, s{sT2}, 1")
    I(f"s_mul_i32 s{sT2}, s{sT2}, 5120")
    I(f"s_add_u32 s{sT}, s{sT}, s{sT2}")
    P = 24
    for f in range(4):
        for m in range(3):
            I(f"s_add_u32 s{sT2}, s{sT}, {f*10240 + m*2048}")
            r = P + (f*3 + m)*4
            I(f"buffer_load_dwordx4 v[{r}:{r+3}], v{vP if m < 2 else vP2}, s[{SP}:{SP+3}], s{sT2} offen")
    ffn_dma(k, sW, sT, sT2, sC, t2, LANE)
    A = 124; HP = 72; H = 148; ta, tb = 17, 18
    for m in range(3):
        for q in range(4):
            i = m*8 + 2*q
            for f in range(4):
                r = P + (f*3 + m)*4 + q
                if f == 0:
                    I(f"v_lshlrev_b32 v{A+i}, 16, v{r}")
                    I(f"v_and_b32 v{A+i+1}, 0xffff0000, v{r}")
                else:
                    I(f"v_lshlrev_b32 v{ta}, 16, v{r}")
                    I(f"v_and_b32 v{tb}, 0xffff0000, v{r}")
                    I(f"v_add_f32 v{A+i}, v{A+i}, v{ta}")
                    I(f"v_add_f32 v{A+i+1}, v{A+i+1}, v{tb}")
            I(f"v_cvt_pk_bf16_f32 v{ta}, v{A+i}, v{A+i+1}")
            I(f"v_lshlrev_b32 v{A+i}, 16, v{ta}")
            I(f"v_and_b32 v{A+i+1}, 0xffff0000, v{ta}")
            I(f"v_lshlrev_b32 v{ta}, 16, v{XV+4*m+q}")
            I(f"v_and_b32 v{tb}, 0xffff0000, v{XV+4*m+q}")
            I(f"v_add_f32 v{A+i}, v{A+i}, v{ta}")
            I(f"v_add_f32 v{A+i+1}, v{A+i+1}, v{tb}")
            I(f"v_cvt_pk_bf16_f32 v{HP+4*m+q}, v{A+i}, v{A+i+1}")
            I(f"v_lshlrev_b32 v{H+i}, 16, v{HP+4*m+q}")
            I(f"v_and_b32 v{H+i+1}, 0xffff0000, v{HP+4*m+q}")
        I(f"buffer_store_dwordx4 v[{HP+4*m}:{HP+4*m+3}], v{vO if m < 2 else vO2}, s[{SH}:{SH+3}], 0 offen offset:{128*m} sc1")
    def row_sum(v):
        I(f"v_add_f32 v{v}, v{v}, v{v} row_ror:8")
        I(f"v_mov_b32 v{tb}, v{v}")
        I(f"v_permlane16_swap_b32 v{v}, v{tb}")
        I(f"v_add_f32 v{v}, v{v}, v{tb}")
        I(f"v_mov_b32 v{tb}, v{v}")
        I(f"v_permlane32_swap_b32 v{v}, v{tb}")
        I(f"v_add_f32 v{v}, v{v}, v{tb}")
    S, M2, MU = 20, 21, 19
    I(f"v_add_f32 v{S}, v{H}, v{H+1}")
    I(f"v_add_f32 v{M2}, v{H+2}, v{H+3}")
    for i in range(4, 24, 2):
        I(f"v_add_f32 v{S}, v{S}, v{H+i}")
        I(f"v_add_f32 v{M2}, v{M2}, v{H+i+1}")
    I(f"v_add_f32 v{S}, v{S}, v{M2}")
    row_sum(S)
    I(f"v_mul_f32 v{MU}, {f32bits(1.0/160)}, v{S}")
    I(f"v_sub_f32 v{ta}, v{H}, v{MU}")
    I(f"v_mul_f32 v{M2}, v{ta}, v{ta}")
    for i in range(1, 16):
        I(f"v_sub_f32 v{ta}, v{H+i}, v{MU}")
        I(f"v_fmac_f32 v{M2}, v{ta}, v{ta}")
    for i in range(16, 24):
        I(f"v_sub_f32 v{ta}, v{H+i}, v{MU}")
        I(f"v_mul_f32 v{ta}, v{ta}, v{vVal}")
        I(f"v_fmac_f32 v{M2}, v{ta}, v{ta}")
    row_sum(M2)
    LX = 161792
    I(f"v_and_b32 v{t0}, 7, v{LANE}")
    I(f"v_lshlrev_b32 v{t0}, 5, v{t0}")
    I(f"v_add_u32 v{t0}, {LX}, v{t0}")
    I(f"s_lshl_b32 s{sT}, s{sW}, 3")
    I(f"v_add_u32 v{t1}, s{sT}, v{t0}")
    I(f"v_mov_b32 v{S}, v{MU}")
    I(f"ds_write_b64 v{t1}, v[{S}:{S+1}]")
    I("s_waitcnt lgkmcnt(0)")
    I("s_barrier")
    E = 84
    I(f"ds_read_b128 v[{E}:{E+3}], v{t0}")
    I(f"ds_read_b128 v[{E+4}:{E+7}], v{t0} offset:16")
    I("s_waitcnt lgkmcnt(0)")
    MEAN, VAR = 92, 93
    I(f"v_add_f32 v{MEAN}, v{E}, v{E+2}")
    I(f"v_add_f32 v{ta}, v{E+4}, v{E+6}")
    I(f"v_add_f32 v{MEAN}, v{MEAN}, v{ta}")
    I(f"v_mul_f32 v{MEAN}, 0.25, v{MEAN}")
    I(f"v_add_f32 v{VAR}, v{E+1}, v{E+3}")
    I(f"v_add_f32 v{ta}, v{E+5}, v{E+7}")
    I(f"v_add_f32 v{VAR}, v{VAR}, v{ta}")
    I(f"v_mov_b32 v{tb}, 0")
    for w in range(4):
        I(f"v_sub_f32 v{ta}, v{E+2*w}, v{MEAN}")
        I(f"v_fmac_f32 v{tb}, v{ta}, v{ta}")
    I(f"v_mov_b32 v{ta}, {f32bits(160.0)}")
    I(f"v_fmac_f32 v{VAR}, v{tb}, v{ta}")
    I(f"v_mul_f32 v{VAR}, {f32bits(1.0/640)}, v{VAR}")
    HN = 24
    ln_finish(k, H, 24, MEAN, VAR, 96, HN, sEPS)
    RX = 94
    I(f"v_mov_b32 v{RX}, 0")
    O = 36
    for i in range(12):
        I(f"v_lshlrev_b32 v{ta}, 16, v{HN+i}")
        I(f"v_and_b32 v{tb}, 0xffff0000, v{HN+i}")
        I(f"v_lshlrev_b32 v48, 16, v{WRV+i}")
        I(f"v_and_b32 v49, 0xffff0000, v{WRV+i}")
        I(f"v_fmac_f32 v{RX}, v{ta}, v48")
        I(f"v_fmac_f32 v{RX}, v{tb}, v49")
        I(f"v_lshlrev_b32 v48, 16, v{HP+i}")
        I(f"v_and_b32 v49, 0xffff0000, v{HP+i}")
        I(f"v_add_f32 v{ta}, v{ta}, v48")
        I(f"v_add_f32 v{tb}, v{tb}, v49")
        I(f"v_cvt_pk_bf16_f32 v{O+i}, v{ta}, v{tb}")
    for m in range(3):
        I(f"buffer_store_dwordx4 v[{O+4*m}:{O+4*m+3}], v{vO if m < 2 else vO2}, s[{SOUT}:{SOUT+3}], 0 offen offset:{128*m} sc1")
    row_sum(RX)
    I(f"v_and_b32 v{t0}, 7, v{LANE}")
    I(f"v_lshlrev_b32 v{t0}, 4, v{t0}")
    I(f"v_add_u32 v{t0}, {LX + 512}, v{t0}")
    I(f"s_lshl_b32 s{sT}, s{sW}, 2")
    I(f"v_add_u32 v{t1}, s{sT}, v{t0}")
    I(f"ds_write_b32 v{t1}, v{RX}")
    I("s_waitcnt vmcnt(3) lgkmcnt(0)")
    I("s_barrier")
    I(f"ds_read_b128 v[{E}:{E+3}], v{t0}")
    I("s_waitcnt lgkmcnt(0)")
    I(f"v_add_f32 v{E}, v{E}, v{E+1}")
    I(f"v_add_f32 v{E+2}, v{E+2}, v{E+3}")
    I(f"v_add_f32 v{RX}, v{E}, v{E+2}")
    bf16_round(k, RX)
    I(f"v_mov_b32 v{RX+1}, v{vNon}")
    I(f"v_lshlrev_b32 v{t0}, 4, v{vRow}")
    I(f"v_cmp_gt_u32 vcc, 8, v0")
    I(f"v_cndmask_b32 v{t0}, v{t3}, v{t0}, vcc")
    I(f"buffer_store_dwordx4 v[{MEAN}:{MEAN+3}], v{t0}, s[{SRT}:{SRT+3}], 0 offen sc1")
    I("s_waitcnt vmcnt(0)")
    I("s_barrier")
    I(f"s_lshl_b32 s{sT2}, s2, 2")
    I(f"s_add_u32 s{sT2}, s{sT2}, {RTF_LINE*128}")
    flag_store(k, SFL, vNon, vOff0, sT2)
    mark(k, diag, 13)
    I(f"s_cmp_ge_u32 s2, {NFF}")
    I(f"s_cbranch_scc1 {endlabel}")
    sF = 50
    I(f"s_mov_b32 s{sF}, s2")
    SYP = 60
    LG, LU, LD, LHN, LKEY, LPART, LA_ = 0, 40960, 81920, 155648, 158208, 158272, 160320
    srd(k, SYP, 14, 15, YP_SIZE, YP_OFF)
    ST = 64
    I(f"v_lshlrev_b32 v{t0}, 4, v0")
    I(f"s_mov_b32 s{sC}, {SPIN_MAX}")
    k.L("Lt_rt_spin")
    for e in range(8):
        I(f"s_mov_b32 s{sT}, {e*4096}")
        I(f"buffer_load_dwordx4 v[{ST+4*e}:{ST+4*e+3}], v{t0}, s[{SRT}:{SRT+3}], s{sT} offen sc1"); k.vm.pop()
    I("s_waitcnt vmcnt(0)")
    I(f"v_cmp_eq_u32 vcc, v{vNon}, v{ST+3}")
    for e in range(1, 8):
        I(f"v_cmp_eq_u32 s[{sM}:{sM+1}], v{vNon}, v{ST+4*e+3}")
        I(f"s_and_b64 vcc, vcc, s[{sM}:{sM+1}]")
    I(f"s_sub_u32 s{sC}, s{sC}, 1")
    I("s_cbranch_scc1 Lt_rt_ok")
    I("s_cmp_eq_u64 vcc, -1")
    I("s_cbranch_scc0 Lt_rt_spin")
    k.L("Lt_rt_ok")
    mark(k, diag, 14)
    K1, K2, RR = 96, 97, 100
    I(f"v_mov_b32 v{K1}, 0")
    I(f"v_mov_b32 v{K2}, 0")
    for e in range(8):
        I(f"v_ashrrev_i32 v{t1}, 31, v{ST+4*e+2}")
        I(f"v_or_b32 v{t1}, 0x80000000, v{t1}")
        I(f"v_xor_b32 v{RR}, v{ST+4*e+2}, v{t1}")
        I(f"v_and_b32 v{RR}, 0xfffff800, v{RR}")
        I(f"v_sub_u32 v{t1}, {2047 - 256*e}, v0")
        I(f"v_or_b32 v{RR}, v{RR}, v{t1}")
        I(f"v_med3_u32 v{K2}, v{K1}, v{K2}, v{RR}")
        I(f"v_max_u32 v{K1}, v{K1}, v{RR}")
    T1, T2 = 16, 17
    I(f"v_mov_b32 v{T1}, v{K1}")
    wave_allreduce(k, "v_max_u32", T1, t1)
    I(f"v_cmp_eq_u32 vcc, v{T1}, v{K1}")
    I(f"v_cndmask_b32 v{T2}, v{K1}, v{K2}, vcc")
    wave_allreduce(k, "v_max_u32", T2, t1)
    I(f"s_lshl_b32 s{sT}, s{sW}, 3")
    I(f"v_mov_b32 v{t1}, s{sT}")
    I(f"v_add_u32 v{t1}, {LKEY}, v{t1}")
    I(f"ds_write_b64 v{t1}, v[{T1}:{T1+1}]")
    I("s_waitcnt lgkmcnt(0)")
    I("s_barrier")
    KK = 20
    I(f"v_mov_b32 v{t1}, {LKEY}")
    I(f"ds_read_b128 v[{KK}:{KK+3}], v{t1}")
    I(f"ds_read_b128 v[{KK+4}:{KK+7}], v{t1} offset:16")
    I("s_waitcnt lgkmcnt(0)")
    I(f"v_mov_b32 v{K1}, 0")
    I(f"v_mov_b32 v{K2}, 0")
    for j in range(8):
        I(f"v_med3_u32 v{K2}, v{K1}, v{K2}, v{KK+j}")
        I(f"v_max_u32 v{K1}, v{K1}, v{KK+j}")
    for kx in (K1, K2):
        I(f"v_and_b32 v{kx}, 0x7ff, v{kx}")
        I(f"v_sub_u32 v{kx}, 2047, v{kx}")
    I(f"v_bfe_u32 v{t1}, v{LANE}, 4, 1")
    I(f"v_cmp_eq_u32 vcc, 0, v{t1}")
    I(f"v_cndmask_b32 v{t3}, v{K2}, v{K1}, vcc")
    vRowSel = 13
    I(f"v_mov_b32 v{vRowSel}, v{t3}")
    I(f"v_lshlrev_b32 v{t2}, 4, v{t3}")
    REC = 56
    I(f"buffer_load_dwordx4 v[{REC}:{REC+3}], v{t2}, s[{SRT}:{SRT+3}], 0 offen sc1")
    I(f"v_mul_u32_u24 v{t3}, 1280, v{t3}")
    I(f"v_and_b32 v{t0}, 15, v{LANE}")
    I(f"v_lshl_add_u32 v{t3}, v{t0}, 4, v{t3}")
    HX, HN = 16, 36
    for u in range(5):
        I(f"buffer_load_dwordx4 v[{HX+4*u}:{HX+4*u+3}], v{t3}, s[{SH}:{SH+3}], 0 offen offset:{256*u}")
    I("s_waitcnt vmcnt(0)")
    X = 164
    for i in range(20):
        I(f"v_lshlrev_b32 v{X}, 16, v{HX+i}")
        I(f"v_and_b32 v{X+1}, 0xffff0000, v{HX+i}")
        I(f"v_sub_f32 v{X}, v{X}, v{REC}")
        I(f"v_sub_f32 v{X+1}, v{X+1}, v{REC}")
        I(f"v_cvt_pk_bf16_f32 v{X+2}, v{X}, v{X+1}")
        I(f"v_lshlrev_b32 v{X}, 16, v{X+2}")
        I(f"v_and_b32 v{X+1}, 0xffff0000, v{X+2}")
        I(f"v_mul_f32 v{X}, v{X}, v{REC+1}")
        I(f"v_mul_f32 v{X+1}, v{X+1}, v{REC+1}")
        I(f"v_cvt_pk_bf16_f32 v{HN+i}, v{X}, v{X+1}")
    RSEL = 60
    I(f"v_mul_f32 v{RSEL}, {f32bits(-1.4426950408889634)}, v{REC+2}")
    I(f"v_exp_f32 v{RSEL}, v{RSEL}")
    I(f"v_add_f32 v{RSEL}, 1.0, v{RSEL}")
    I(f"v_rcp_f32 v{RSEL}, v{RSEL}")
    bf16_round(k, RSEL)
    I(f"v_bfe_u32 v{t1}, v{LANE}, 4, 1")
    I(f"v_mul_u32_u24 v{t1}, 1280, v{t1}")
    I(f"v_lshl_add_u32 v{t1}, v{t0}, 4, v{t1}")
    I(f"v_add_u32 v{t2}, {LHN}, v{t1}")
    I(f"s_cmp_lg_u32 s{sW}, 0")
    I("s_cbranch_scc1 Lt_w0done")
    for u in range(5):
        I(f"ds_write_b128 v{t2}, v[{HN+4*u}:{HN+4*u+3}] offset:{256*u}")
    I(f"v_bfe_u32 v{t2}, v{LANE}, 4, 1")
    I(f"v_lshlrev_b32 v{t2}, 3, v{t2}")
    I(f"v_add_u32 v{t2}, {LKEY+32}, v{t2}")
    I(f"v_mov_b32 v62, v{vRowSel}")
    I(f"v_mov_b32 v63, v{RSEL}")
    I(f"ds_write_b64 v{t2}, v[62:63]")
    k.L("Lt_w0done")
    I("s_waitcnt vmcnt(0) lgkmcnt(0)")
    I("s_barrier")
    I(f"s_mul_i32 s51, s{sW}, {160*64}")
    I(f"v_and_b32 v{t0}, 1, v{LANE}")
    I(f"v_mul_u32_u24 v{t0}, 1280, v{t0}")
    I(f"v_lshrrev_b32 v{t1}, 4, v{LANE}")
    I(f"v_lshl_add_u32 v{t0}, v{t1}, 4, v{t0}")
    I(f"s_mul_i32 s{sT}, s{sW}, 320")
    I(f"s_add_u32 s{sT}, s{sT}, {LHN}")
    I(f"v_add_u32 v{t0}, s{sT}, v{t0}")
    I(f"v_bfe_u32 v{t2}, v{LANE}, 2, 2")
    I(f"v_lshl_add_u32 v{t2}, v{t1}, 3, v{t2}")
    I(f"v_lshlrev_b32 v{t2}, 6, v{t2}")
    I(f"v_and_b32 v{t3}, 3, v{LANE}")
    I(f"v_lshl_add_u32 v{t2}, v{t3}, 3, v{t2}")
    I(f"v_add_u32 v{t2}, s51, v{t2}")
    AF, BF = 16, 100
    for s_ in range(5): I(f"ds_read_b128 v[{AF+4*s_}:{AF+4*s_+3}], v{t0} offset:{64*s_}")
    for mi, LB in enumerate((LG, LU)):
        for ft in range(2):
            for s_ in range(5):
                r = BF + ((mi*2 + ft)*5 + s_)*4
                I(f"ds_read_b64_tr_b16 v[{r}:{r+1}], v{t2} offset:{LB + s_*2048 + ft*32}")
                I(f"ds_read_b64_tr_b16 v[{r+2}:{r+3}], v{t2} offset:{LB + s_*2048 + ft*32 + 256}")
    I("s_waitcnt lgkmcnt(0)")
    D = 72
    for s_ in range(5):
        for q in range(4):
            r = BF + (q*5 + s_)*4
            I(f"v_mfma_f32_16x16x32_bf16 v[{D+4*q}:{D+4*q+3}], v[{AF+4*s_}:{AF+4*s_+3}], v[{r}:{r+3}], " + ("0" if s_ == 0 else f"v[{D+4*q}:{D+4*q+3}]"))
    I(f"v_and_b32 v{t0}, 15, v{LANE}")
    I(f"v_lshlrev_b32 v{t0}, 2, v{t0}")
    I(f"s_lshl_b32 s{sT}, s{sW}, 9")
    I(f"s_add_u32 s{sT}, s{sT}, {LPART}")
    I(f"v_add_u32 v{t0}, s{sT}, v{t0}")
    I("s_mov_b32 exec_lo, 0xffff")
    I("s_mov_b32 exec_hi, 0")
    for mi in range(2):
        for ft in range(2):
            for tok in range(2):
                I(f"ds_write_b32 v{t0}, v{D+4*(mi*2+ft)+tok} offset:{(mi*2+tok)*128 + ft*64}")
    I("s_mov_b64 exec, -1")
    I("s_waitcnt lgkmcnt(0)")
    I("s_barrier")
    I(f"v_lshlrev_b32 v{t0}, 2, v{LANE}")
    I(f"v_add_u32 v{t0}, {LPART}, v{t0}")
    for w in range(4):
        I(f"ds_read_b32 v{16+w}, v{t0} offset:{w*512}")
        I(f"ds_read_b32 v{20+w}, v{t0} offset:{w*512 + 256}")
    I("s_waitcnt lgkmcnt(0)")
    for b in (16, 20):
        I(f"v_add_f32 v{b}, v{b}, v{b+1}")
        I(f"v_add_f32 v{b+2}, v{b+2}, v{b+3}")
        I(f"v_add_f32 v{b}, v{b}, v{b+2}")
        bf16_round(k, b)
    I(f"v_mul_f32 v17, {f32bits(-1.4426950408889634)}, v16")
    I(f"v_exp_f32 v17, v17")
    I(f"v_add_f32 v17, 1.0, v17")
    I(f"v_rcp_f32 v17, v17")
    I(f"v_mul_f32 v16, v16, v17")
    bf16_round(k, 16)
    I(f"v_mul_f32 v16, v16, v20")
    I(f"v_cvt_pk_bf16_f32 v16, v16, v16")
    I(f"v_lshlrev_b32 v{t1}, 1, v{LANE}")
    I(f"v_add_u32 v{t1}, {LA_}, v{t1}")
    I(f"ds_write_b16 v{t1}, v16")
    I("s_waitcnt lgkmcnt(0)")
    I(f"v_and_b32 v{t0}, 1, v{LANE}")
    I(f"v_lshlrev_b32 v{t0}, 6, v{t0}")
    I(f"v_lshrrev_b32 v{t1}, 4, v{LANE}")
    I(f"v_lshl_add_u32 v{t0}, v{t1}, 4, v{t0}")
    I(f"v_add_u32 v{t0}, {LA_}, v{t0}")
    I(f"ds_read_b128 v[16:19], v{t0}")
    I(f"v_bfe_u32 v{t2}, v{LANE}, 2, 2")
    I(f"v_lshl_add_u32 v{t2}, v{t1}, 3, v{t2}")
    I(f"v_mul_u32_u24 v{t2}, 1280, v{t2}")
    I(f"v_and_b32 v{t3}, 3, v{LANE}")
    I(f"v_lshl_add_u32 v{t2}, v{t3}, 3, v{t2}")
    I(f"s_mul_i32 s{sT}, s{sW}, 320")
    I(f"s_add_u32 s{sT}, s{sT}, {LD}")
    I(f"v_add_u32 v{t2}, s{sT}, v{t2}")
    for nt in range(10):
        r = 100 + 4*nt
        I(f"ds_read_b64_tr_b16 v[{r}:{r+1}], v{t2} offset:{nt*32}")
        I(f"ds_read_b64_tr_b16 v[{r+2}:{r+3}], v{t2} offset:{nt*32 + 4*1280}")
    I("s_waitcnt lgkmcnt(0)")
    for nt in range(10):
        I(f"v_mfma_f32_16x16x32_bf16 v[{140+4*nt}:{143+4*nt}], v[16:19], v[{100+4*nt}:{103+4*nt}], 0")
    I(f"v_and_b32 v{t0}, 15, v{LANE}")
    I(f"v_lshlrev_b32 v{t0}, 2, v{t0}")
    I(f"s_mul_i32 s{sT}, s{sF}, 5120")
    I(f"s_mul_i32 s{sT2}, s{sW}, 640")
    I(f"s_add_u32 s{sT}, s{sT}, s{sT2}")
    I("s_mov_b32 exec_lo, 0xffff")
    I("s_mov_b32 exec_hi, 0")
    for nt in range(10):
        I(f"buffer_store_dword v{140+4*nt}, v{t0}, s[{SYP}:{SYP+3}], s{sT} offen offset:{nt*64} sc1")
        I(f"buffer_store_dword v{141+4*nt}, v{t0}, s[{SYP}:{SYP+3}], s{sT} offen offset:{2560 + nt*64} sc1")
    I("s_mov_b64 exec, -1")
    I("s_waitcnt vmcnt(0)")
    I("s_barrier")
    I(f"s_lshl_b32 s{sT2}, s{sF}, 2")
    I(f"s_add_u32 s{sT2}, s{sT2}, {YF_LINE*128}")
    flag_store(k, SFL, vNon, vOff0, sT2)
    mark(k, diag, 15)
    I(f"s_cmp_ge_u32 s{sF}, 20")
    I(f"s_cbranch_scc1 {endlabel}")
    sTok, sCc = 51, 52
    I(f"s_cmp_ge_u32 s{sF}, 10")
    I(f"s_cselect_b32 s{sTok}, 1, 0")
    I(f"s_mul_i32 s{sT}, s{sTok}, 10")
    I(f"s_sub_u32 s{sCc}, s{sF}, s{sT}")
    I(f"s_lshl_b32 s{sT}, s{sCc}, 6")
    I(f"v_add_u32 v16, s{sT}, v{LANE}")
    I(f"s_lshl_b32 s{sT}, s{sTok}, 3")
    I(f"s_add_u32 s{sT}, s{sT}, {LKEY+32}")
    I(f"v_mov_b32 v17, s{sT}")
    I(f"ds_read_b64 v[18:19], v17")
    I(f"s_mul_i32 s{sT}, s{sTok}, 1280")
    I(f"s_add_u32 s{sT}, s{sT}, {LHN}")
    I(f"v_lshlrev_b32 v20, 1, v16")
    I(f"v_add_u32 v21, s{sT}, v20")
    I(f"ds_read_u16 v22, v21")
    I("s_waitcnt lgkmcnt(0)")
    I(f"v_mul_u32_u24 v23, 1280, v18")
    I(f"v_add_u32 v23, v23, v20")
    I(f"buffer_load_ushort v24, v23, s[{SH}:{SH+3}], 0 offen")
    I(f"v_lshlrev_b32 v{t0}, 4, v{LANE}")
    I(f"s_mov_b32 s{sT}, {RTF_LINE*128}")
    poll(k, "Lt_rtf", SFL, t0, sT, 28, 4, vNon, sW, sC, sM, mask=(0xffffffff, 0xffffffff))
    I(f"v_lshlrev_b32 v{t0}, 2, v{LANE}")
    I(f"v_mov_b32 v{t1}, 0x100000")
    I(f"v_cmp_gt_u32 vcc, {NFF}, v{LANE}")
    I(f"v_cndmask_b32 v{t0}, v{t1}, v{t0}, vcc")
    I(f"s_mov_b32 s{sT}, {YF_LINE*128}")
    poll(k, "Lt_y", SFL, t0, sT, 25, 1, vNon, sW, sC, sM, mask=(0xffffffff, (1 << (NFF - 32)) - 1))
    I("s_barrier")
    I(f"v_lshlrev_b32 v26, 2, v16")
    I(f"s_mul_i32 s{sT2}, s{sW}, {14*5120}")
    I(f"s_mul_i32 s{sT}, s{sTok}, 2560")
    I(f"s_add_u32 s{sT2}, s{sT2}, s{sT}")
    for j in range(14):
        I(f"s_add_u32 s{sT}, s{sT2}, {j*5120}")
        I(f"buffer_load_dword v{32+j}, v26, s[{SYP}:{SYP+3}], s{sT} offen")
    I("s_waitcnt vmcnt(0)")
    for j in range(1, 14): I(f"v_add_f32 v32, v32, v{32+j}")
    I(f"v_lshlrev_b32 v27, 2, v0")
    I(f"v_add_u32 v27, {LPART}, v27")
    I(f"ds_write_b32 v27, v32")
    I("s_waitcnt lgkmcnt(0)")
    I("s_barrier")
    I(f"s_cmp_lg_u32 s{sW}, 0")
    I(f"s_cbranch_scc1 {endlabel}")
    I(f"v_lshlrev_b32 v27, 2, v{LANE}")
    I(f"v_add_u32 v27, {LPART}, v27")
    for q in range(4): I(f"ds_read_b32 v{32+q}, v27 offset:{256*q}")
    I("s_waitcnt lgkmcnt(0)")
    I("v_add_f32 v32, v32, v33")
    I("v_add_f32 v34, v34, v35")
    I("v_add_f32 v32, v32, v34")
    bf16_round(k, 32)
    I("v_mul_f32 v32, v32, v19")
    bf16_round(k, 32)
    I("v_lshlrev_b32 v22, 16, v22")
    I("v_add_f32 v32, v32, v22")
    bf16_round(k, 32)
    I("v_lshlrev_b32 v24, 16, v24")
    I("v_add_f32 v32, v32, v24")
    I("v_cvt_pk_bf16_f32 v32, v32, v32")
    I(f"buffer_store_short v32, v23, s[{SOUT}:{SOUT+3}], 0 offen sc1")
```

```python
from common import *
from k12 import SPIN_MAX
from k5 import wave_allreduce
NFF = 54
HF_LINE, RTF_LINE, YF_LINE = 224, 288, 296

def flag_store(k, SFL, vNon, vOff0, sOff):
    k.I(f"buffer_store_dword v{vNon}, v{vOff0}, s[{SFL}:{SFL+3}], s{sOff} offen sc1")

def poll(k, name, SFL, vAddr, sOff, vData, nreg, vNon, sW, sC, sM, full64=False, mask=None):
    I = k.I
    ld = {1: f"buffer_load_dword v{vData}", 4: f"buffer_load_dwordx4 v[{vData}:{vData+3}]"}[nreg]
    I(f"s_cmp_lg_u32 s{sW}, 0")
    I(f"s_cbranch_scc1 {name}_ok")
    I(f"s_mov_b32 s{sC}, {SPIN_MAX}")
    k.L(name + "_spin")
    I(f"{ld}, v{vAddr}, s[{SFL}:{SFL+3}], s{sOff} offen sc1"); k.vm.pop()
    I("s_waitcnt vmcnt(0)")
    I(f"v_cmp_eq_u32 vcc, v{vNon}, v{vData}")
    for q in range(1, nreg):
        I(f"v_cmp_eq_u32 s[{sM}:{sM+1}], v{vNon}, v{vData+q}")
        I(f"s_and_b64 vcc, vcc, s[{sM}:{sM+1}]")
    I(f"s_sub_u32 s{sC}, s{sC}, 1")
    I(f"s_cbranch_scc1 {name}_ok")
    lo, hi = mask
    I(f"s_and_b32 s{sM}, vcc_lo, {hex(lo)}")
    I(f"s_and_b32 s{sM+1}, vcc_hi, {hex(hi)}")
    I(f"s_cmp_eq_u32 s{sM}, {hex(lo)}")
    I(f"s_cbranch_scc0 {name}_spin")
    I(f"s_cmp_eq_u32 s{sM+1}, {hex(hi)}")
    I(f"s_cbranch_scc0 {name}_spin")
    k.L(name + "_ok")

def ffn_dma(k, sW, sT, sT2, sC, t2, LANE):
    I = k.I
    LG, LU, LD = 0, 40960, 81920
    vWD, vL16 = 21, 22
    I(f"s_cmp_ge_u32 s2, {NFF}")
    I("s_cbranch_scc1 Lt_nodma")
    I(f"s_cmp_eq_u32 s{sW}, 0")
    I("s_cbranch_scc1 Lt_nodma")
    I(f"v_lshrrev_b32 v{t2}, 2, v{LANE}")
    I(f"v_mul_u32_u24 v{vWD}, 3456, v{t2}")
    I(f"v_and_b32 v{t2}, 3, v{LANE}")
    I(f"v_lshl_add_u32 v{vWD}, v{t2}, 4, v{vWD}")
    I(f"v_lshlrev_b32 v{vL16}, 4, v{LANE}")
    I(f"s_cmp_eq_u32 s{sW}, 3")
    I("s_cbranch_scc1 Lt_dma_down")
    I(f"s_cmp_eq_u32 s{sW}, 1")
    I("s_cselect_b32 s64, s8, s10"); I("s_cselect_b32 s65, s9, s11")
    I(f"s_cselect_b32 s{sT2}, {LG}, {LU}")
    I(f"s_mov_b32 s66, {640*1728*2}"); I("s_mov_b32 s67, 0x20000")
    I(f"s_lshl_b32 s{sT}, s2, 6")
    for u in range(40):
        I(f"s_add_u32 m0, s{sT2}, {u*1024}")
        I(f"s_add_u32 s{sC}, s{sT}, {u*16*3456}")
        I(f"buffer_load_dwordx4 v{vWD}, s[64:67], s{sC} offen lds")
    I("s_waitcnt vmcnt(40)")
    I("s_branch Lt_dmadone")
    k.L("Lt_dma_down")
    I("s_mov_b32 s64, s12"); I("s_mov_b32 s65, s13"); I(f"s_mov_b32 s66, {1728*640*2}"); I("s_mov_b32 s67, 0x20000")
    I(f"s_mul_i32 s{sT}, s2, {32*1280}")
    for u in range(40):
        if u % 4 == 0:
            I(f"s_mov_b32 m0, {LD + u*1024}")
            I(f"s_add_u32 s{sC}, s{sT}, {u*1024}")
        I(f"buffer_load_dwordx4 v{vL16}, s[64:67], s{sC} offen offset:{(u % 4)*1024} lds")
    I("s_waitcnt vmcnt(40)")
    I("s_branch Lt_dmadone")
    k.L("Lt_nodma")
    I("s_waitcnt vmcnt(0)")
    k.L("Lt_dmadone")

def emit_tail(k, diag, sKS, sRT, sCT, sNonceIn, endlabel):
    I = k.I
    LANE = 2
    sW = 40
    sT, sT2, sEPS, sC, sM = 44, 45, 46, 47, 48
    SFL, SH, SOUT, SWR, SRT, SP, SX = 56, 16, 20, 24, 28, 32, 36
    vNon, vOff0, t0, t1, t2, t3 = 3, 4, 5, 6, 7, 8
    I(f"s_load_dwordx2 s[4:5], s[0:1], {KA['wr']}")
    I(f"s_load_dwordx2 s[6:7], s[0:1], {KA['out']}")
    I(f"s_load_dwordx4 s[8:11], s[0:1], {KA['wg']}")
    I(f"s_load_dwordx2 s[12:13], s[0:1], {KA['wd']}")
    I(f"s_load_dwordx2 s[62:63], s[0:1], {KA['x']}")
    srd(k, SFL, 14, 15, FLG_SIZE, FLG_OFF)
    srd(k, SP, 14, 15, PART_SIZE, PART_OFF)
    I(f"v_mov_b32 v{vNon}, s{sNonceIn}")
    I(f"v_mov_b32 v{t0}, 0x100000")
    I(f"v_mov_b32 v{t1}, 0")
    I(f"v_cmp_eq_u32 vcc, 0, v0")
    I(f"v_cndmask_b32 v{vOff0}, v{t0}, v{t1}, vcc")
    sJ = 51
    I(f"s_lshl_b32 s{sJ}, s{sRT}, 4")
    I(f"s_lshl_b32 s{sT}, s{sKS}, 2")
    I(f"s_add_u32 s{sJ}, s{sJ}, s{sT}")
    I(f"s_add_u32 s{sJ}, s{sJ}, s{sCT}")
    I("s_waitcnt lgkmcnt(0)")
    srd(k, SX, 62, 63, 2048*640*2)
    srd(k, SWR, 4, 5, 1280)
    srd(k, SOUT, 6, 7, 2048*640*2)
    srd(k, SH, 14, 15, H_SIZE, H_OFF)
    srd(k, SRT, 14, 15, RT_SIZE, RT_OFF)
    I(f"s_mov_b32 s{sEPS}, {f32bits(1e-5)}")
    vRow, vO, vWo, vP = 9, 10, 11, 12
    I(f"v_and_b32 v{t0}, 7, v{LANE}")
    I(f"s_lshl_b32 s{sT}, s{sJ}, 3")
    I(f"v_add_u32 v{vRow}, s{sT}, v{t0}")
    I(f"v_bfe_u32 v{t1}, v{LANE}, 3, 2")
    I(f"v_lshrrev_b32 v{t2}, 5, v{LANE}")
    I(f"v_lshlrev_b32 v{vWo}, 4, v{t1}")
    I(f"v_lshl_add_u32 v{vWo}, v{t2}, 6, v{vWo}")
    I(f"s_mul_i32 s{sT}, s{sW}, 320")
    I(f"v_add_u32 v{vWo}, s{sT}, v{vWo}")
    I(f"v_mul_u32_u24 v{vO}, 1280, v{vRow}")
    I(f"v_add_u32 v{vO}, v{vO}, v{vWo}")
    I(f"v_lshlrev_b32 v{vP}, 10, v{t2}")
    I(f"v_lshl_add_u32 v{vP}, v{t1}, 8, v{vP}")
    I(f"s_and_b32 s{sT}, s{sJ}, 1")
    I(f"s_lshl_b32 s{sT}, s{sT}, 3")
    I(f"v_add_u32 v{t0}, s{sT}, v{t0}")
    I(f"v_lshl_add_u32 v{vP}, v{t0}, 4, v{vP}")
    vO2, vWo2, vP2, vVal = 13, 14, 15, 16
    I(f"v_mov_b32 v{t3}, 0x4000000")
    I(f"v_cmp_gt_u32 vcc, 32, v{LANE}")
    I(f"v_cndmask_b32 v{vO2}, v{t3}, v{vO}, vcc")
    I(f"v_cndmask_b32 v{vWo2}, v{t3}, v{vWo}, vcc")
    I(f"v_cndmask_b32 v{vP2}, v{t3}, v{vP}, vcc")
    I(f"v_cndmask_b32 v{vVal}, 0, 1.0, vcc")
    XV, WRV = 100, 112
    for m in range(3):
        I(f"buffer_load_dwordx4 v[{XV+4*m}:{XV+4*m+3}], v{vO if m < 2 else vO2}, s[{SX}:{SX+3}], 0 offen offset:{128*m}")
        I(f"buffer_load_dwordx4 v[{WRV+4*m}:{WRV+4*m+3}], v{vWo if m < 2 else vWo2}, s[{SWR}:{SWR+3}], 0 offen offset:{128*m}")
    I(f"s_add_u32 s{sT}, s{sRT}, {HF_LINE}")
    I(f"s_lshl_b32 s{sT}, s{sT}, 7")
    I(f"s_lshl_b32 s{sT2}, s{sCT}, 2")
    I(f"s_add_u32 s{sT2}, s{sT2}, s{sKS}")
    I(f"s_lshl_b32 s{sT2}, s{sT2}, 2")
    I(f"s_add_u32 s{sT2}, s{sT2}, s{sT}")
    I(f"v_mov_b32 v{t0}, {161792 + 768}")
    I(f"s_cmp_lg_u32 s{sW}, 0")
    I("s_cbranch_scc1 Lt_nn")
    I(f"ds_write_b32 v{t0}, v{vNon}")
    k.L("Lt_nn")
    I("s_waitcnt vmcnt(6) lgkmcnt(0)")
    I("s_barrier")
    I(f"ds_read_b32 v{vNon}, v{t0}")
    I("s_waitcnt lgkmcnt(0)")
    flag_store(k, SFL, vNon, vOff0, sT2)
    I(f"s_add_u32 s{sT}, s{sRT}, {HF_LINE}")
    I(f"s_lshl_b32 s{sT}, s{sT}, 7")
    I(f"v_lshlrev_b32 v{t0}, 2, v{LANE}")
    I(f"v_mov_b32 v{t1}, 0x100000")
    I(f"v_cmp_gt_u32 vcc, 16, v0")
    I(f"v_cndmask_b32 v{t0}, v{t1}, v{t0}, vcc")
    poll(k, "Lt_h", SFL, t0, sT, 20, 1, vNon, sW, sC, sM, mask=(0xffff, 0))
    I("s_barrier")
    mark(k, diag, 12)
    I(f"s_lshl_b32 s{sT}, s{sRT}, 2")
    I(f"s_add_u32 s{sT}, s{sT}, s{sW}")
    I(f"s_lshl_b32 s{sT}, s{sT}, 4")
    I(f"s_lshr_b32 s{sT2}, s{sJ}, 2")
    I(f"s_and_b32 s{sT2}, s{sT2}, 3")
    I(f"s_lshl_b32 s{sT2}, s{sT2}, 2")
    I(f"s_add_u32 s{sT}, s{sT}, s{sT2}")
    I(f"s_mul_i32 s{sT}, s{sT}, 10240")
    I(f"s_lshr_b32 s{sT2}, s{sJ}, 1")
    I(f"s_and_b32 s{sT2}, s{sT2}, 1")
    I(f"s_mul_i32 s{sT2}, s{sT2}, 5120")
    I(f"s_add_u32 s{sT}, s{sT}, s{sT2}")
    P = 24
    for f in range(4):
        for m in range(3):
            I(f"s_add_u32 s{sT2}, s{sT}, {f*10240 + m*2048}")
            r = P + (f*3 + m)*4
            I(f"buffer_load_dwordx4 v[{r}:{r+3}], v{vP if m < 2 else vP2}, s[{SP}:{SP+3}], s{sT2} offen")
    vWD = 23
    sDo, sDs, sMs = 52, 53, 54
    I(f"v_lshrrev_b32 v{t2}, 2, v{LANE}")
    I(f"v_mul_u32_u24 v{vWD}, 3456, v{t2}")
    I(f"v_and_b32 v{t2}, 3, v{LANE}")
    I(f"v_lshl_add_u32 v{vWD}, v{t2}, 4, v{vWD}")
    I(f"v_lshlrev_b32 v{t2}, 4, v{LANE}")
    I(f"s_cmp_eq_u32 s{sW}, 3")
    I(f"s_cselect_b64 vcc, -1, 0")
    I(f"v_cndmask_b32 v{vWD}, v{vWD}, v{t2}, vcc")
    I(f"s_cmp_eq_u32 s{sW}, 1")
    I("s_cselect_b32 s64, s8, s10"); I("s_cselect_b32 s65, s9, s11")
    I(f"s_cmp_eq_u32 s{sW}, 3")
    I("s_cselect_b32 s64, s12, s64"); I("s_cselect_b32 s65, s13, s65")
    I(f"s_movk_i32 s{sDs}, 1024")
    I(f"s_cselect_b32 s{sDs}, s{sDs}, {16*3456}")
    I(f"s_lshl_b32 s{sDo}, s2, 6")
    I(f"s_mul_i32 s{sMs}, s2, {32*1280}")
    I(f"s_cmp_eq_u32 s{sW}, 3")
    I(f"s_cselect_b32 s{sDo}, s{sMs}, s{sDo}")
    I(f"s_mov_b32 s66, {640*1728*2}"); I("s_mov_b32 s67, 0x20000")
    I(f"s_cmp_ge_u32 s2, {NFF}"); I("s_cselect_b32 s66, 0, s66")
    I(f"s_cmp_eq_u32 s{sW}, 0"); I("s_cselect_b32 s66, 0, s66")
    I(f"s_cselect_b32 s{sMs}, 0, 1024")
    I(f"s_sub_u32 s{sT2}, s{sW}, 1"); I(f"s_mul_i32 s{sT2}, s{sT2}, 40960")
    I(f"s_cmp_eq_u32 s{sW}, 0"); I(f"s_cselect_b32 s{sT2}, 122880, s{sT2}")
    I(f"s_mov_b32 m0, s{sT2}")
    ndma = [0]; cnt = [0]
    I0 = I
    def dma1():
        I0(f"buffer_load_dwordx4 v{vWD}, s[64:67], s{sDo} offen lds")
        I0(f"s_add_u32 m0, m0, s{sMs}")
        I0(f"s_add_u32 s{sDo}, s{sDo}, s{sDs}")
        ndma[0] += 1
    I("s_waitcnt vmcnt(0)")
    class _K:
        name = k.name
        def I(self, t, tag=None):
            I0(t); cnt[0] += 1
            if cnt[0] % 12 == 0 and ndma[0] < 40 and t.startswith("v_") and not t.startswith("v_cmp") and "exec" not in t: dma1()
        def L(self, l): k.L(l)
    kx = _K(); I = kx.I
    A = 124; HP = 72; H = 148; ta, tb = 17, 18
    for m in range(3):
        for q in range(4):
            i = m*8 + 2*q
            for f in range(4):
                r = P + (f*3 + m)*4 + q
                if f == 0:
                    I(f"v_lshlrev_b32 v{A+i}, 16, v{r}")
                    I(f"v_and_b32 v{A+i+1}, 0xffff0000, v{r}")
                else:
                    I(f"v_lshlrev_b32 v{ta}, 16, v{r}")
                    I(f"v_and_b32 v{tb}, 0xffff0000, v{r}")
                    I(f"v_add_f32 v{A+i}, v{A+i}, v{ta}")
                    I(f"v_add_f32 v{A+i+1}, v{A+i+1}, v{tb}")
            I(f"v_cvt_pk_bf16_f32 v{ta}, v{A+i}, v{A+i+1}")
            I(f"v_lshlrev_b32 v{A+i}, 16, v{ta}")
            I(f"v_and_b32 v{A+i+1}, 0xffff0000, v{ta}")
            I(f"v_lshlrev_b32 v{ta}, 16, v{XV+4*m+q}")
            I(f"v_and_b32 v{tb}, 0xffff0000, v{XV+4*m+q}")
            I(f"v_add_f32 v{A+i}, v{A+i}, v{ta}")
            I(f"v_add_f32 v{A+i+1}, v{A+i+1}, v{tb}")
            I(f"v_cvt_pk_bf16_f32 v{HP+4*m+q}, v{A+i}, v{A+i+1}")
            I(f"v_lshlrev_b32 v{H+i}, 16, v{HP+4*m+q}")
            I(f"v_and_b32 v{H+i+1}, 0xffff0000, v{HP+4*m+q}")
        k.I(f"buffer_store_dwordx4 v[{HP+4*m}:{HP+4*m+3}], v{vO if m < 2 else vO2}, s[{SH}:{SH+3}], 0 offen offset:{128*m} sc1", tag="th")
    def row_sum(v):
        I(f"v_add_f32 v{v}, v{v}, v{v} row_ror:8")
        I(f"v_mov_b32 v{tb}, v{v}")
        I(f"v_permlane16_swap_b32 v{v}, v{tb}")
        I(f"v_add_f32 v{v}, v{v}, v{tb}")
        I(f"v_mov_b32 v{tb}, v{v}")
        I(f"v_permlane32_swap_b32 v{v}, v{tb}")
        I(f"v_add_f32 v{v}, v{v}, v{tb}")
    S, M2, MU = 20, 21, 19
    I(f"v_add_f32 v{S}, v{H}, v{H+1}")
    I(f"v_add_f32 v{M2}, v{H+2}, v{H+3}")
    for i in range(4, 24, 2):
        I(f"v_add_f32 v{S}, v{S}, v{H+i}")
        I(f"v_add_f32 v{M2}, v{M2}, v{H+i+1}")
    I(f"v_add_f32 v{S}, v{S}, v{M2}")
    row_sum(S)
    I(f"v_mul_f32 v{MU}, {f32bits(1.0/160)}, v{S}")
    I(f"v_sub_f32 v{ta}, v{H}, v{MU}")
    I(f"v_mul_f32 v{M2}, v{ta}, v{ta}")
    for i in range(1, 16):
        I(f"v_sub_f32 v{ta}, v{H+i}, v{MU}")
        I(f"v_fmac_f32 v{M2}, v{ta}, v{ta}")
    for i in range(16, 24):
        I(f"v_sub_f32 v{ta}, v{H+i}, v{MU}")
        I(f"v_mul_f32 v{ta}, v{ta}, v{vVal}")
        I(f"v_fmac_f32 v{M2}, v{ta}, v{ta}")
    row_sum(M2)
    LX = 161792
    I(f"v_and_b32 v{t0}, 7, v{LANE}")
    I(f"v_lshlrev_b32 v{t0}, 5, v{t0}")
    I(f"v_add_u32 v{t0}, {LX}, v{t0}")
    I(f"s_lshl_b32 s{sT}, s{sW}, 3")
    I(f"v_add_u32 v{t1}, s{sT}, v{t0}")
    I(f"v_mov_b32 v{S}, v{MU}")
    I(f"ds_write_b64 v{t1}, v[{S}:{S+1}]")
    I("s_waitcnt lgkmcnt(0)")
    I("s_barrier")
    E = 84
    I(f"ds_read_b128 v[{E}:{E+3}], v{t0}")
    I(f"ds_read_b128 v[{E+4}:{E+7}], v{t0} offset:16")
    I("s_waitcnt lgkmcnt(0)")
    MEAN, VAR = 92, 93
    I(f"v_add_f32 v{MEAN}, v{E}, v{E+2}")
    I(f"v_add_f32 v{ta}, v{E+4}, v{E+6}")
    I(f"v_add_f32 v{MEAN}, v{MEAN}, v{ta}")
    I(f"v_mul_f32 v{MEAN}, 0.25, v{MEAN}")
    I(f"v_add_f32 v{VAR}, v{E+1}, v{E+3}")
    I(f"v_add_f32 v{ta}, v{E+5}, v{E+7}")
    I(f"v_add_f32 v{VAR}, v{VAR}, v{ta}")
    I(f"v_mov_b32 v{tb}, 0")
    for w in range(4):
        I(f"v_sub_f32 v{ta}, v{E+2*w}, v{MEAN}")
        I(f"v_fmac_f32 v{tb}, v{ta}, v{ta}")
    I(f"v_mov_b32 v{ta}, {f32bits(160.0)}")
    I(f"v_fmac_f32 v{VAR}, v{tb}, v{ta}")
    I(f"v_mul_f32 v{VAR}, {f32bits(1.0/640)}, v{VAR}")
    HN = 24
    ln_finish(kx, H, 24, MEAN, VAR, 96, HN, sEPS)
    RX = 94
    I(f"v_mov_b32 v{RX}, 0")
    O = 36
    for i in range(12):
        I(f"v_lshlrev_b32 v{ta}, 16, v{HN+i}")
        I(f"v_and_b32 v{tb}, 0xffff0000, v{HN+i}")
        I(f"v_lshlrev_b32 v48, 16, v{WRV+i}")
        I(f"v_and_b32 v49, 0xffff0000, v{WRV+i}")
        I(f"v_fmac_f32 v{RX}, v{ta}, v48")
        I(f"v_fmac_f32 v{RX}, v{tb}, v49")
        I(f"v_lshlrev_b32 v48, 16, v{HP+i}")
        I(f"v_and_b32 v49, 0xffff0000, v{HP+i}")
        I(f"v_add_f32 v{ta}, v{ta}, v48")
        I(f"v_add_f32 v{tb}, v{tb}, v49")
        I(f"v_cvt_pk_bf16_f32 v{O+i}, v{ta}, v{tb}")
    for m in range(3):
        I(f"buffer_store_dwordx4 v[{O+4*m}:{O+4*m+3}], v{vO if m < 2 else vO2}, s[{SOUT}:{SOUT+3}], 0 offen offset:{128*m} sc1")
    row_sum(RX)
    I(f"v_and_b32 v{t0}, 7, v{LANE}")
    I(f"v_lshlrev_b32 v{t0}, 4, v{t0}")
    I(f"v_add_u32 v{t0}, {LX + 512}, v{t0}")
    I(f"s_lshl_b32 s{sT}, s{sW}, 2")
    I(f"v_add_u32 v{t1}, s{sT}, v{t0}")
    I(f"ds_write_b32 v{t1}, v{RX}")
    while ndma[0] < 40: dma1()
    I = I0
    I("s_waitcnt lgkmcnt(0)")
    k.wait_vm("th", expect=3)
    I("s_barrier")
    I(f"ds_read_b128 v[{E}:{E+3}], v{t0}")
    I("s_waitcnt lgkmcnt(0)")
    I(f"v_add_f32 v{E}, v{E}, v{E+1}")
    I(f"v_add_f32 v{E+2}, v{E+2}, v{E+3}")
    I(f"v_add_f32 v{RX}, v{E}, v{E+2}")
    bf16_round(k, RX)
    I(f"v_mov_b32 v{RX+1}, v{vNon}")
    I(f"v_lshlrev_b32 v{t0}, 4, v{vRow}")
    I(f"v_cmp_gt_u32 vcc, 8, v0")
    I(f"v_cndmask_b32 v{t0}, v{t3}, v{t0}, vcc")
    I(f"buffer_store_dwordx4 v[{MEAN}:{MEAN+3}], v{t0}, s[{SRT}:{SRT+3}], 0 offen sc1")
    I("s_waitcnt vmcnt(0)")
    I("s_barrier")
    I(f"s_lshl_b32 s{sT2}, s2, 2")
    I(f"s_add_u32 s{sT2}, s{sT2}, {RTF_LINE*128}")
    flag_store(k, SFL, vNon, vOff0, sT2)
    mark(k, diag, 13)
    I(f"s_cmp_ge_u32 s2, {NFF}")
    I(f"s_cbranch_scc1 {endlabel}")
    sF = 50
    I(f"s_mov_b32 s{sF}, s2")
    SYP = 60
    LG, LU, LD, LHN, LKEY, LPART, LA_ = 0, 40960, 81920, 155648, 158208, 158272, 160320
    srd(k, SYP, 14, 15, YP_SIZE, YP_OFF)
    ST = 64
    I(f"v_lshlrev_b32 v{t0}, 4, v0")
    I(f"s_mov_b32 s{sC}, {SPIN_MAX}")
    k.L("Lt_rt_spin")
    for e in range(8):
        I(f"s_mov_b32 s{sT}, {e*4096}")
        I(f"buffer_load_dwordx4 v[{ST+4*e}:{ST+4*e+3}], v{t0}, s[{SRT}:{SRT+3}], s{sT} offen sc1"); k.vm.pop()
    I("s_waitcnt vmcnt(0)")
    I(f"v_cmp_eq_u32 vcc, v{vNon}, v{ST+3}")
    for e in range(1, 8):
        I(f"v_cmp_eq_u32 s[{sM}:{sM+1}], v{vNon}, v{ST+4*e+3}")
        I(f"s_and_b64 vcc, vcc, s[{sM}:{sM+1}]")
    I(f"s_sub_u32 s{sC}, s{sC}, 1")
    I("s_cbranch_scc1 Lt_rt_ok")
    I("s_cmp_eq_u64 vcc, -1")
    I("s_cbranch_scc0 Lt_rt_spin")
    k.L("Lt_rt_ok")
    mark(k, diag, 14)
    K1, K2, RR = 96, 97, 100
    I(f"v_mov_b32 v{K1}, 0")
    I(f"v_mov_b32 v{K2}, 0")
    for e in range(8):
        I(f"v_ashrrev_i32 v{t1}, 31, v{ST+4*e+2}")
        I(f"v_or_b32 v{t1}, 0x80000000, v{t1}")
        I(f"v_xor_b32 v{RR}, v{ST+4*e+2}, v{t1}")
        I(f"v_and_b32 v{RR}, 0xfffff800, v{RR}")
        I(f"v_sub_u32 v{t1}, {2047 - 256*e}, v0")
        I(f"v_or_b32 v{RR}, v{RR}, v{t1}")
        I(f"v_med3_u32 v{K2}, v{K1}, v{K2}, v{RR}")
        I(f"v_max_u32 v{K1}, v{K1}, v{RR}")
    T1, T2 = 16, 17
    I(f"v_mov_b32 v{T1}, v{K1}")
    wave_allreduce(k, "v_max_u32", T1, t1)
    I(f"v_cmp_eq_u32 vcc, v{T1}, v{K1}")
    I(f"v_cndmask_b32 v{T2}, v{K1}, v{K2}, vcc")
    wave_allreduce(k, "v_max_u32", T2, t1)
    I(f"s_lshl_b32 s{sT}, s{sW}, 3")
    I(f"v_mov_b32 v{t1}, s{sT}")
    I(f"v_add_u32 v{t1}, {LKEY}, v{t1}")
    I(f"ds_write_b64 v{t1}, v[{T1}:{T1+1}]")
    I("s_waitcnt lgkmcnt(0)")
    I("s_barrier")
    KK = 20
    I(f"v_mov_b32 v{t1}, {LKEY}")
    I(f"ds_read_b128 v[{KK}:{KK+3}], v{t1}")
    I(f"ds_read_b128 v[{KK+4}:{KK+7}], v{t1} offset:16")
    I("s_waitcnt lgkmcnt(0)")
    I(f"v_mov_b32 v{K1}, 0")
    I(f"v_mov_b32 v{K2}, 0")
    for j in range(8):
        I(f"v_med3_u32 v{K2}, v{K1}, v{K2}, v{KK+j}")
        I(f"v_max_u32 v{K1}, v{K1}, v{KK+j}")
    for kx in (K1, K2):
        I(f"v_and_b32 v{kx}, 0x7ff, v{kx}")
        I(f"v_sub_u32 v{kx}, 2047, v{kx}")
    I(f"v_bfe_u32 v{t1}, v{LANE}, 4, 1")
    I(f"v_cmp_eq_u32 vcc, 0, v{t1}")
    I(f"v_cndmask_b32 v{t3}, v{K2}, v{K1}, vcc")
    vRowSel = 13
    I(f"v_mov_b32 v{vRowSel}, v{t3}")
    I(f"v_lshlrev_b32 v{t2}, 4, v{t3}")
    REC = 56
    I(f"buffer_load_dwordx4 v[{REC}:{REC+3}], v{t2}, s[{SRT}:{SRT+3}], 0 offen sc1")
    I(f"v_mul_u32_u24 v{t3}, 1280, v{t3}")
    I(f"v_and_b32 v{t0}, 15, v{LANE}")
    I(f"v_lshl_add_u32 v{t3}, v{t0}, 4, v{t3}")
    HX, HN = 16, 36
    for u in range(5):
        I(f"buffer_load_dwordx4 v[{HX+4*u}:{HX+4*u+3}], v{t3}, s[{SH}:{SH+3}], 0 offen offset:{256*u}")
    I("s_waitcnt vmcnt(0)")
    X = 164
    for i in range(20):
        I(f"v_lshlrev_b32 v{X}, 16, v{HX+i}")
        I(f"v_and_b32 v{X+1}, 0xffff0000, v{HX+i}")
        I(f"v_sub_f32 v{X}, v{X}, v{REC}")
        I(f"v_sub_f32 v{X+1}, v{X+1}, v{REC}")
        I(f"v_cvt_pk_bf16_f32 v{X+2}, v{X}, v{X+1}")
        I(f"v_lshlrev_b32 v{X}, 16, v{X+2}")
        I(f"v_and_b32 v{X+1}, 0xffff0000, v{X+2}")
        I(f"v_mul_f32 v{X}, v{X}, v{REC+1}")
        I(f"v_mul_f32 v{X+1}, v{X+1}, v{REC+1}")
        I(f"v_cvt_pk_bf16_f32 v{HN+i}, v{X}, v{X+1}")
    RSEL = 60
    I(f"v_mul_f32 v{RSEL}, {f32bits(-1.4426950408889634)}, v{REC+2}")
    I(f"v_exp_f32 v{RSEL}, v{RSEL}")
    I(f"v_add_f32 v{RSEL}, 1.0, v{RSEL}")
    I(f"v_rcp_f32 v{RSEL}, v{RSEL}")
    bf16_round(k, RSEL)
    I(f"v_bfe_u32 v{t1}, v{LANE}, 4, 1")
    I(f"v_mul_u32_u24 v{t1}, 1280, v{t1}")
    I(f"v_lshl_add_u32 v{t1}, v{t0}, 4, v{t1}")
    I(f"v_add_u32 v{t2}, {LHN}, v{t1}")
    I(f"s_cmp_lg_u32 s{sW}, 0")
    I("s_cbranch_scc1 Lt_w0done")
    for u in range(5):
        I(f"ds_write_b128 v{t2}, v[{HN+4*u}:{HN+4*u+3}] offset:{256*u}")
    I(f"v_bfe_u32 v{t2}, v{LANE}, 4, 1")
    I(f"v_lshlrev_b32 v{t2}, 3, v{t2}")
    I(f"v_add_u32 v{t2}, {LKEY+32}, v{t2}")
    I(f"v_mov_b32 v62, v{vRowSel}")
    I(f"v_mov_b32 v63, v{RSEL}")
    I(f"ds_write_b64 v{t2}, v[62:63]")
    k.L("Lt_w0done")
    I("s_waitcnt vmcnt(0) lgkmcnt(0)")
    I("s_barrier")
    I(f"s_mul_i32 s51, s{sW}, {160*64}")
    I(f"v_and_b32 v{t0}, 1, v{LANE}")
    I(f"v_mul_u32_u24 v{t0}, 1280, v{t0}")
    I(f"v_lshrrev_b32 v{t1}, 4, v{LANE}")
    I(f"v_lshl_add_u32 v{t0}, v{t1}, 4, v{t0}")
    I(f"s_mul_i32 s{sT}, s{sW}, 320")
    I(f"s_add_u32 s{sT}, s{sT}, {LHN}")
    I(f"v_add_u32 v{t0}, s{sT}, v{t0}")
    I(f"v_bfe_u32 v{t2}, v{LANE}, 2, 2")
    I(f"v_lshl_add_u32 v{t2}, v{t1}, 3, v{t2}")
    I(f"v_lshlrev_b32 v{t2}, 6, v{t2}")
    I(f"v_and_b32 v{t3}, 3, v{LANE}")
    I(f"v_lshl_add_u32 v{t2}, v{t3}, 3, v{t2}")
    I(f"v_add_u32 v{t2}, s51, v{t2}")
    AF, BF = 16, 100
    for s_ in range(5): I(f"ds_read_b128 v[{AF+4*s_}:{AF+4*s_+3}], v{t0} offset:{64*s_}")
    for mi, LB in enumerate((LG, LU)):
        for ft in range(2):
            for s_ in range(5):
                r = BF + ((mi*2 + ft)*5 + s_)*4
                I(f"ds_read_b64_tr_b16 v[{r}:{r+1}], v{t2} offset:{LB + s_*2048 + ft*32}")
                I(f"ds_read_b64_tr_b16 v[{r+2}:{r+3}], v{t2} offset:{LB + s_*2048 + ft*32 + 256}")
    I("s_waitcnt lgkmcnt(0)")
    D = 72
    for s_ in range(5):
        for q in range(4):
            r = BF + (q*5 + s_)*4
            I(f"v_mfma_f32_16x16x32_bf16 v[{D+4*q}:{D+4*q+3}], v[{AF+4*s_}:{AF+4*s_+3}], v[{r}:{r+3}], " + ("0" if s_ == 0 else f"v[{D+4*q}:{D+4*q+3}]"))
    I(f"v_and_b32 v{t0}, 15, v{LANE}")
    I(f"v_lshlrev_b32 v{t0}, 2, v{t0}")
    I(f"s_lshl_b32 s{sT}, s{sW}, 9")
    I(f"s_add_u32 s{sT}, s{sT}, {LPART}")
    I(f"v_add_u32 v{t0}, s{sT}, v{t0}")
    I("s_mov_b32 exec_lo, 0xffff")
    I("s_mov_b32 exec_hi, 0")
    for mi in range(2):
        for ft in range(2):
            for tok in range(2):
                I(f"ds_write_b32 v{t0}, v{D+4*(mi*2+ft)+tok} offset:{(mi*2+tok)*128 + ft*64}")
    I("s_mov_b64 exec, -1")
    I("s_waitcnt lgkmcnt(0)")
    I("s_barrier")
    I(f"v_lshlrev_b32 v{t0}, 2, v{LANE}")
    I(f"v_add_u32 v{t0}, {LPART}, v{t0}")
    for w in range(4):
        I(f"ds_read_b32 v{16+w}, v{t0} offset:{w*512}")
        I(f"ds_read_b32 v{20+w}, v{t0} offset:{w*512 + 256}")
    I("s_waitcnt lgkmcnt(0)")
    for b in (16, 20):
        I(f"v_add_f32 v{b}, v{b}, v{b+1}")
        I(f"v_add_f32 v{b+2}, v{b+2}, v{b+3}")
        I(f"v_add_f32 v{b}, v{b}, v{b+2}")
        bf16_round(k, b)
    I(f"v_mul_f32 v17, {f32bits(-1.4426950408889634)}, v16")
    I(f"v_exp_f32 v17, v17")
    I(f"v_add_f32 v17, 1.0, v17")
    I(f"v_rcp_f32 v17, v17")
    I(f"v_mul_f32 v16, v16, v17")
    bf16_round(k, 16)
    I(f"v_mul_f32 v16, v16, v20")
    I(f"v_cvt_pk_bf16_f32 v16, v16, v16")
    I(f"v_lshlrev_b32 v{t1}, 1, v{LANE}")
    I(f"v_add_u32 v{t1}, {LA_}, v{t1}")
    I(f"ds_write_b16 v{t1}, v16")
    I("s_waitcnt lgkmcnt(0)")
    I(f"v_and_b32 v{t0}, 1, v{LANE}")
    I(f"v_lshlrev_b32 v{t0}, 6, v{t0}")
    I(f"v_lshrrev_b32 v{t1}, 4, v{LANE}")
    I(f"v_lshl_add_u32 v{t0}, v{t1}, 4, v{t0}")
    I(f"v_add_u32 v{t0}, {LA_}, v{t0}")
    I(f"ds_read_b128 v[16:19], v{t0}")
    I(f"v_bfe_u32 v{t2}, v{LANE}, 2, 2")
    I(f"v_lshl_add_u32 v{t2}, v{t1}, 3, v{t2}")
    I(f"v_mul_u32_u24 v{t2}, 1280, v{t2}")
    I(f"v_and_b32 v{t3}, 3, v{LANE}")
    I(f"v_lshl_add_u32 v{t2}, v{t3}, 3, v{t2}")
    I(f"s_mul_i32 s{sT}, s{sW}, 320")
    I(f"s_add_u32 s{sT}, s{sT}, {LD}")
    I(f"v_add_u32 v{t2}, s{sT}, v{t2}")
    for nt in range(10):
        r = 100 + 4*nt
        I(f"ds_read_b64_tr_b16 v[{r}:{r+1}], v{t2} offset:{nt*32}")
        I(f"ds_read_b64_tr_b16 v[{r+2}:{r+3}], v{t2} offset:{nt*32 + 4*1280}")
    I("s_waitcnt lgkmcnt(0)")
    for nt in range(10):
        I(f"v_mfma_f32_16x16x32_bf16 v[{140+4*nt}:{143+4*nt}], v[16:19], v[{100+4*nt}:{103+4*nt}], 0")
    I(f"v_and_b32 v{t0}, 15, v{LANE}")
    I(f"v_lshlrev_b32 v{t0}, 2, v{t0}")
    I(f"s_mul_i32 s{sT}, s{sF}, 5120")
    I(f"s_mul_i32 s{sT2}, s{sW}, 640")
    I(f"s_add_u32 s{sT}, s{sT}, s{sT2}")
    I("s_mov_b32 exec_lo, 0xffff")
    I("s_mov_b32 exec_hi, 0")
    for nt in range(10):
        I(f"buffer_store_dword v{140+4*nt}, v{t0}, s[{SYP}:{SYP+3}], s{sT} offen offset:{nt*64} sc1")
        I(f"buffer_store_dword v{141+4*nt}, v{t0}, s[{SYP}:{SYP+3}], s{sT} offen offset:{2560 + nt*64} sc1")
    I("s_mov_b64 exec, -1")
    I("s_waitcnt vmcnt(0)")
    I("s_barrier")
    I(f"s_lshl_b32 s{sT2}, s{sF}, 2")
    I(f"s_add_u32 s{sT2}, s{sT2}, {YF_LINE*128}")
    flag_store(k, SFL, vNon, vOff0, sT2)
    mark(k, diag, 15)
    I(f"s_cmp_ge_u32 s{sF}, 20")
    I(f"s_cbranch_scc1 {endlabel}")
    sTok, sCc = 51, 52
    I(f"s_cmp_ge_u32 s{sF}, 10")
    I(f"s_cselect_b32 s{sTok}, 1, 0")
    I(f"s_mul_i32 s{sT}, s{sTok}, 10")
    I(f"s_sub_u32 s{sCc}, s{sF}, s{sT}")
    I(f"s_lshl_b32 s{sT}, s{sCc}, 6")
    I(f"v_add_u32 v16, s{sT}, v{LANE}")
    I(f"s_lshl_b32 s{sT}, s{sTok}, 3")
    I(f"s_add_u32 s{sT}, s{sT}, {LKEY+32}")
    I(f"v_mov_b32 v17, s{sT}")
    I(f"ds_read_b64 v[18:19], v17")
    I(f"s_mul_i32 s{sT}, s{sTok}, 1280")
    I(f"s_add_u32 s{sT}, s{sT}, {LHN}")
    I(f"v_lshlrev_b32 v20, 1, v16")
    I(f"v_add_u32 v21, s{sT}, v20")
    I(f"ds_read_u16 v22, v21")
    I("s_waitcnt lgkmcnt(0)")
    I(f"v_mul_u32_u24 v23, 1280, v18")
    I(f"v_add_u32 v23, v23, v20")
    I(f"buffer_load_ushort v24, v23, s[{SH}:{SH+3}], 0 offen")
    I(f"v_lshlrev_b32 v{t0}, 4, v{LANE}")
    I(f"s_mov_b32 s{sT}, {RTF_LINE*128}")
    poll(k, "Lt_rtf", SFL, t0, sT, 28, 4, vNon, sW, sC, sM, mask=(0xffffffff, 0xffffffff))
    I(f"v_lshlrev_b32 v{t0}, 2, v{LANE}")
    I(f"v_mov_b32 v{t1}, 0x100000")
    I(f"v_cmp_gt_u32 vcc, {NFF}, v{LANE}")
    I(f"v_cndmask_b32 v{t0}, v{t1}, v{t0}, vcc")
    I(f"s_mov_b32 s{sT}, {YF_LINE*128}")
    poll(k, "Lt_y", SFL, t0, sT, 25, 1, vNon, sW, sC, sM, mask=(0xffffffff, (1 << (NFF - 32)) - 1))
    I("s_barrier")
    I(f"v_lshlrev_b32 v26, 2, v16")
    I(f"s_mul_i32 s{sT2}, s{sW}, {14*5120}")
    I(f"s_mul_i32 s{sT}, s{sTok}, 2560")
    I(f"s_add_u32 s{sT2}, s{sT2}, s{sT}")
    for j in range(14):
        I(f"s_add_u32 s{sT}, s{sT2}, {j*5120}")
        I(f"buffer_load_dword v{32+j}, v26, s[{SYP}:{SYP+3}], s{sT} offen")
    I("s_waitcnt vmcnt(0)")
    for j in range(1, 14): I(f"v_add_f32 v32, v32, v{32+j}")
    I(f"v_lshlrev_b32 v27, 2, v0")
    I(f"v_add_u32 v27, {LPART}, v27")
    I(f"ds_write_b32 v27, v32")
    I("s_waitcnt lgkmcnt(0)")
    I("s_barrier")
    I(f"s_cmp_lg_u32 s{sW}, 0")
    I(f"s_cbranch_scc1 {endlabel}")
    I(f"v_lshlrev_b32 v27, 2, v{LANE}")
    I(f"v_add_u32 v27, {LPART}, v27")
    for q in range(4): I(f"ds_read_b32 v{32+q}, v27 offset:{256*q}")
    I("s_waitcnt lgkmcnt(0)")
    I("v_add_f32 v32, v32, v33")
    I("v_add_f32 v34, v34, v35")
    I("v_add_f32 v32, v32, v34")
    bf16_round(k, 32)
    I("v_mul_f32 v32, v32, v19")
    bf16_round(k, 32)
    I("v_lshlrev_b32 v22, 16, v22")
    I("v_add_f32 v32, v32, v22")
    bf16_round(k, 32)
    I("v_lshlrev_b32 v24, 16, v24")
    I("v_add_f32 v32, v32, v24")
    I("v_cvt_pk_bf16_f32 v32, v32, v32")
    I(f"buffer_store_short v32, v23, s[{SOUT}:{SOUT+3}], 0 offen sc1")
```

```python
from common import *
from k12 import Flat, SPIN_MAX

def gen_k3c(diag=False, kidx=1, DC=6, codepf=False):
    k = Kern("k3_kernel")
    k.I("s_cmp_ge_u32 s2, 256")
    k.I("s_cbranch_scc1 Lk3_end")
    stamp_begin(k, diag)
    emit_k3c(k, diag, DC, codepf, fused=False)
    dump_marks(k, diag, kidx, 14, 15, 8)
    stamp_end(k, diag, kidx, 14, 15, vtmp=8)
    k.L("Lk3_end")
    k.I("s_endpgm")
    k.fix_hazards()
    pr = check_waits(k.items, "k3c")
    pr = [p_ for p_ in pr if "Lk3" not in p_]
    for p_ in pr[:10]: print(p_)
    return k, 208, 64, 3*40960

def emit_k3c(k, diag, DC=6, codepf=False, fused=False, sNonceIn=None, alltail=False, endlabel=None):
    fl = Flat(k); I = fl.emit
    def mark_(k_, d_, i_):
        if not fused: mark(k_, d_, i_)
        elif i_ in (0, 4, 6): mark(k_, d_, {0: 4, 4: 5, 6: 6}[i_])
    I(f"s_load_dwordx2 s[14:15], s[0:1], {KA['ws']}")
    I(f"s_load_dwordx2 s[6:7], s[0:1], {KA['wo']}")
    I(f"s_load_dwordx2 s[4:5], s[0:1], {KA['x']}")
    I(f"s_load_dwordx2 s[8:9], s[0:1], {KA['wr']}")
    I(f"s_load_dwordx2 s[12:13], s[0:1], {KA['dbg']}")
    LANE = 2
    I("v_lshrrev_b32 v1, 6, v0")
    I(f"v_and_b32 v{LANE}, 63, v0")
    sW, sKS, sRT, sCT, sT, sT2, sCb, sWb, sWL, sPb, sNonce = 40, 41, 42, 43, 44, 45, 46, 47, 48, 49, 50
    I(f"v_readfirstlane_b32 s{sW}, v1")
    I(f"s_and_b32 s{sT}, s2, 7")
    I(f"s_lshr_b32 s{sKS}, s{sT}, 1")
    I(f"s_lshr_b32 s{sT2}, s2, 3")
    I(f"s_and_b32 s{sCT}, s{sT2}, 3")
    I(f"s_lshr_b32 s{sT2}, s{sT2}, 2")
    I(f"s_sub_u32 s{sRT}, 15, s{sT2}")
    I(f"s_and_b32 s{sT}, s{sT}, 1")
    I(f"s_cmp_eq_u32 s{sT}, 0")
    I(f"s_cselect_b32 s{sRT}, s{sT2}, s{sRT}")
    I("s_waitcnt lgkmcnt(0)")
    fl.pend = []
    SCTX, SWO, SP, SX, SWR, SH, SACC, SFL, SDBG = 16, 20, 24, 28, 32, 36, 52, 56, 84
    srd(k, SCTX, 14, 15, CTX_SIZE, CTX_OFF)
    srd(k, SWO, 6, 7, 4096*640*2)
    vC, vL16, t0, t1, t2 = 3, 4, 6, 7, 8
    vWD = 10
    vTR, vTRh = 16, 17
    I(f"v_lshrrev_b32 v{t0}, 5, v{LANE}")
    I(f"v_lshlrev_b32 v{vC}, 10, v{t0}")
    I(f"v_bfe_u32 v{t0}, v{LANE}, 4, 1")
    I(f"v_lshl_add_u32 v{vC}, v{t0}, 9, v{vC}")
    I(f"v_and_b32 v{t0}, 15, v{LANE}")
    I(f"v_lshl_add_u32 v{vC}, v{t0}, 4, v{vC}")
    I(f"v_lshlrev_b32 v{vL16}, 4, v{LANE}")
    I(f"s_mov_b32 s{sT}, 3277")
    for u in range(5):
        I(f"v_add_u32 v{t0}, {64*u}, v{LANE}")
        I(f"v_mul_lo_u32 v{t1}, v{t0}, s{sT}")
        I(f"v_lshrrev_b32 v{t1}, 16, v{t1}")
        I(f"v_mul_u32_u24 v{t2}, 20, v{t1}")
        I(f"v_sub_u32 v{t2}, v{t0}, v{t2}")
        I(f"v_mul_u32_u24 v{t1}, 1280, v{t1}")
        I(f"v_lshl_add_u32 v{vWD+u}, v{t2}, 4, v{t1}")
    I(f"s_lshl_b32 s{sCb}, s{sRT}, 2")
    I(f"s_add_u32 s{sCb}, s{sCb}, s{sW}")
    I(f"s_lshl_b32 s{sCb}, s{sCb}, 5")
    I(f"s_lshl_b32 s{sT}, s{sKS}, 3")
    I(f"s_add_u32 s{sCb}, s{sCb}, s{sT}")
    I(f"s_lshl_b32 s{sCb}, s{sCb}, 13")
    I(f"s_lshl_b32 s{sWb}, s{sKS}, 10")
    I(f"s_lshl_b32 s{sT}, s{sW}, 5")
    I(f"s_add_u32 s{sWb}, s{sWb}, s{sT}")
    I(f"s_mul_i32 s{sWb}, s{sWb}, 1280")
    I(f"s_mul_i32 s{sT}, s{sCT}, 320")
    I(f"s_add_u32 s{sWb}, s{sWb}, s{sT}")
    I(f"s_mul_i32 s{sWL}, s{sW}, 10240")
    def wdma(g, u):
        k.I(f"s_add_u32 m0, s{sWL}, {(g % 3)*40960 + u*1024}")
        k.I(f"s_add_u32 s{sT}, s{sWb}, {(g*128 + (u // 5)*16)*1280}")
        k.I(f"buffer_load_dwordx4 v{vWD + u % 5}, s[{SWO}:{SWO+3}], s{sT} offen lds", tag=f"k3W{g}")
    NC = DC + 1
    def cload(t):
        a = (t % NC)*8
        k.I(f"s_add_u32 s{sT2}, s{sCb}, {(t >> 2)*8192 + (t & 3)*2048}")
        k.I(f"buffer_load_dwordx4 a[{a}:{a+3}], v{vC}, s[{SCTX}:{SCTX+3}], s{sT2} offen", tag=f"k3c{t}")
        k.I(f"buffer_load_dwordx4 a[{a+4}:{a+7}], v{vC}, s[{SCTX}:{SCTX+3}], s{sT2} offen offset:256", tag=f"k3c{t}")
    if fused:
        for u in range(10): wdma(0, u)
        for u in range(10): wdma(1, u)
    else:
        for u in range(10): wdma(0, u)
        for t in range(2): cload(t)
        for u in range(10): wdma(1, u)
        for t in range(2, DC): cload(t)
    I(f"v_lshrrev_b32 v{t0}, 5, v{LANE}")
    I(f"v_lshlrev_b32 v{t0}, 4, v{t0}")
    I(f"v_bfe_u32 v{t1}, v{LANE}, 4, 1")
    I(f"v_lshl_add_u32 v{t0}, v{t1}, 2, v{t0}")
    I(f"v_bfe_u32 v{t1}, v{LANE}, 2, 2")
    I(f"v_add_u32 v{t0}, v{t0}, v{t1}")
    I(f"v_mul_u32_u24 v{vTR}, 320, v{t0}")
    I(f"v_and_b32 v{t1}, 3, v{LANE}")
    I(f"v_lshl_add_u32 v{vTR}, v{t1}, 4, v{vTR}")
    I(f"v_add_u32 v{vTRh}, 0x10000, v{vTR}")
    srd(k, SP, 14, 15, PART_SIZE, PART_OFF)
    srd(k, SDBG, 12, 13, 256)
    vZero, vAOff, vNon = 18, 19, 20
    I(f"v_mov_b32 v{vZero}, 0")
    I(f"v_mov_b32 v{t1}, 0x100000")
    I(f"v_cmp_eq_u32 vcc, 0, v0")
    I(f"v_cndmask_b32 v{vAOff}, v{t1}, v{vZero}, vcc")
    if fused:
        I(f"s_mov_b32 s{sNonce}, s{sNonceIn}")
        I(f"v_mov_b32 v{vNon}, s{sNonce}")
    else:
        k.I("s_memrealtime s[50:51]")
        k.I("s_waitcnt lgkmcnt(0)")
        k.I(f"s_or_b32 s{sNonce}, s50, 1")
        I(f"v_mov_b32 v{vNon}, s{sNonce}")
        I(f"v_mov_b32 v{vNon+1}, 0")
        k.I(f"buffer_atomic_cmpswap v[{vNon}:{vNon+1}], v{vAOff}, s[{SDBG}:{SDBG+3}], 0 offen sc0 sc1", tag="nonce")
    sE1, sE2 = 60+28, 60+29
    srd(k, SFL, 14, 15, FLG_SIZE, FLG_OFF)
    if not alltail:
        srd(k, SX, 4, 5, 2048*640*2)
        srd(k, SWR, 8, 9, 1280)
        srd(k, SH, 14, 15, H_SIZE, H_OFF)
        srd(k, SACC, 14, 15, ACC_SIZE, ACC_OFF)
        srd(k, SFL, 14, 15, FLG_SIZE, FLG_OFF)
        vO, vWo, vRow = 9, 22, 23
        I(f"s_lshl_b32 s{sT}, s{sRT}, 7")
        I(f"s_lshl_b32 s{sE1}, s{sKS}, 5")
        I(f"s_add_u32 s{sT}, s{sT}, s{sE1}")
        I(f"s_and_b32 s{sE1}, s{sW}, 1")
        I(f"s_lshl_b32 s{sE1}, s{sE1}, 4")
        I(f"s_add_u32 s{sT}, s{sT}, s{sE1}")
        I(f"v_and_b32 v{t0}, 15, v{LANE}")
        I(f"v_add_u32 v{vRow}, s{sT}, v{t0}")
        I(f"v_mul_u32_u24 v{vO}, 1280, v{vRow}")
        I(f"s_lshr_b32 s{sE2}, s{sW}, 1")
        I(f"s_mul_i32 s{sT}, s{sE2}, 192")
        I(f"s_mul_i32 s{sE1}, s{sCT}, 320")
        I(f"s_add_u32 s{sT}, s{sT}, s{sE1}")
        I(f"v_lshrrev_b32 v{t1}, 4, v{LANE}")
        I(f"v_lshlrev_b32 v{t1}, 4, v{t1}")
        I(f"v_add_u32 v{vWo}, s{sT}, v{t1}")
        I(f"v_add_u32 v{vO}, v{vO}, v{vWo}")
        I(f"s_cmp_eq_u32 s{sE2}, 0")
        I(f"s_cselect_b32 s{sE1}, 0, 0x4000000")
        XV, WRV = 184, 196
        for u in range(3):
            so = "0" if u < 2 else f"s{sE1}"
            k.I(f"buffer_load_dwordx4 v[{XV+4*u}:{XV+4*u+3}], v{vO}, s[{SX}:{SX+3}], {so} offen offset:{64*u}", tag="k3xw")
            k.I(f"buffer_load_dwordx4 v[{WRV+4*u}:{WRV+4*u+3}], v{vWo}, s[{SWR}:{SWR+3}], {so} offen offset:{64*u}", tag="k3xw")
    ACC, WF = 24, 104
    def wreads(t):
        g, s = t >> 2, t & 3
        out = []
        for nt in range(10):
            off = (g % 3)*40960 + s*10240 + (nt >> 1)*64 + (nt & 1)*8
            vb, off = (vTR, off) if off + 8*320 < 65536 else (vTRh, off - 65536)
            r = WF + (t & 1)*40 + nt*4
            out.append(f"ds_read_b64_tr_b16 v[{r}:{r+1}], v{vb} offset:{off}")
            out.append(f"ds_read_b64_tr_b16 v[{r+2}:{r+3}], v{vb} offset:{off + 8*320}")
        return out
    mark_(k, diag, 0)
    if fused:
        I(f"s_lshl_b32 s{sT}, s{sRT}, 2")
        I(f"s_add_u32 s{sT}, s{sT}, s{sKS}")
        I(f"s_add_u32 s{sT}, s{sT}, 160")
        I(f"s_lshl_b32 s{sT}, s{sT}, 7")
        I(f"v_lshlrev_b32 v{t0}, 2, v{LANE}")
        I(f"v_mov_b32 v{t1}, 0x100000")
        I(f"v_cmp_gt_u32 vcc, 8, v0")
        I(f"v_cndmask_b32 v{t0}, v{t1}, v{t0}, vcc")
        I(f"s_cmp_lg_u32 s{sW}, 0")
        k.I("s_cbranch_scc1 Lk3_cok")
        k.I(f"s_mov_b32 s{sT2}, {SPIN_MAX}")
        k.L("Lk3_cspin")
        k.I(f"buffer_load_dword v{t2}, v{t0}, s[{SFL}:{SFL+3}], s{sT} offen sc1"); k.vm.pop()
        k.I("s_waitcnt vmcnt(0)")
        k.I(f"v_cmp_eq_u32 vcc, v{vNon}, v{t2}")
        k.I(f"s_and_b32 s51, vcc_lo, 0xff")
        k.I(f"s_sub_u32 s{sT2}, s{sT2}, 1")
        k.I("s_cbranch_scc1 Lk3_cok")
        k.I(f"s_cmp_eq_u32 s51, 0xff")
        k.I("s_cbranch_scc0 Lk3_cspin")
        k.L("Lk3_cok")
        k.wait_vm("k3W0", expect=10)
        I("s_barrier")
        for t in range(DC): cload(t)
    else:
        k.wait_vm("k3W0", expect=10)
        I("s_barrier")
    for x in wreads(0): I(x)
    memq = [lambda u=u: wdma(2, u) for u in range(10)]
    for t in range(32):
        g, s = t >> 2, t & 3
        if s == 3 and g < 7:
            I("s_waitcnt lgkmcnt(0)")
            k.wait_vm(f"k3W{g+1}", expect=10)
            I("s_barrier")
            if g + 3 < 8: memq += [lambda u=u, g=g: wdma(g + 3, u) for u in range(10)]
        if t + DC < 32: memq.insert(0, lambda t=t: cload(t + DC))
        reads = wreads(t + 1) if t + 1 < 32 else []
        k.wait_vm(f"k3c{t}", expect=2)
        gi = 0
        for rs in range(2):
            for nt in range(10):
                d = ACC + (rs*10 + nt)*4
                a = (t % NC)*8 + rs*4
                w = WF + (t & 1)*40 + nt*4
                c = "0" if t == 0 else f"v[{d}:{d+3}]"
                I(f"v_mfma_f32_16x16x32_bf16 v[{d}:{d+3}], v[{w}:{w+3}], a[{a}:{a+3}], {c}")
                if reads: I(reads.pop(0))
                if memq and gi % 4 == 1: memq.pop(0)()
                gi += 1
        while reads: I(reads.pop(0))
        if t in (7, 15, 23): mark_(k, diag, 1 + t//8)
    assert not memq
    mark_(k, diag, 4)
    if codepf: code_touch(k, k.name, "k5_kernel", "Lcode_end", 4, 64, 6, 7, 8)
    I(f"s_lshl_b32 s{sPb}, s{sRT}, 2")
    I(f"s_add_u32 s{sPb}, s{sPb}, s{sCT}")
    I(f"s_mov_b32 s51, s{sPb}")
    I(f"s_lshl_b32 s{sPb}, s{sPb}, 4")
    I(f"s_lshl_b32 s{sT}, s{sW}, 2")
    I(f"s_add_u32 s{sT}, s{sT}, s{sKS}")
    I(f"s_add_u32 s{sT}, s{sT}, s{sPb}")
    I(f"s_mul_i32 s{sT2}, s{sT}, 10240")
    STG = WF
    for rs in range(2):
        for p in range(5):
            st = STG + ((rs*5 + p) % 4)*4
            for h2 in range(2):
                d = ACC + (rs*10 + 2*p + h2)*4
                I(f"v_cvt_pk_bf16_f32 v{st+2*h2}, v{d}, v{d+1}")
                I(f"v_cvt_pk_bf16_f32 v{st+2*h2+1}, v{d+2}, v{d+3}")
            I(f"s_add_u32 s{sT}, s{sT2}, {(rs*5 + p)*1024}")
            k.I(f"buffer_store_dwordx4 v[{st}:{st+3}], v{vL16}, s[{SP}:{SP+3}], s{sT} offen sc1", tag="k3pst")
    if alltail:
        from ktail import emit_tail
        emit_tail(k, diag, sKS, sRT, sCT, sNonceIn, endlabel)
        return
    if not fused:
        k.wait_vm("nonce")
        I(f"v_readfirstlane_b32 s{sT}, v{vNon}")
        I(f"s_cmp_eq_u32 s{sT}, 0")
        I(f"s_cselect_b32 s{sNonce}, s{sNonce}, s{sT}")
        I(f"v_mov_b32 v{vNon}, s{sNonce}")
    k.wait_vm("k3pst", expect=10)
    I("s_barrier")
    I(f"s_add_u32 s{sT}, s51, 96")
    I(f"s_lshl_b32 s{sT}, s{sT}, 7")
    I(f"s_lshl_b32 s{sT2}, s{sKS}, 2")
    I(f"s_add_u32 s{sT2}, s{sT2}, s{sT}")
    k.I(f"buffer_store_dword v{vNon}, v{vAOff}, s[{SFL}:{SFL+3}], s{sT2} offen sc1")
    I(f"v_lshlrev_b32 v{t0}, 2, v{LANE}")
    I(f"v_mov_b32 v{t1}, 0x100000")
    I(f"v_cmp_gt_u32 vcc, 4, v0")
    I(f"v_cndmask_b32 v{t0}, v{t1}, v{t0}, vcc")
    mark_(k, diag, 5)
    I(f"s_cmp_lg_u32 s{sW}, 0")
    I("s_cbranch_scc1 Lk3_ok")
    I(f"s_mov_b32 s{sT2}, {SPIN_MAX}")
    k.L("Lk3_spin")
    k.I(f"buffer_load_dword v{t2}, v{t0}, s[{SFL}:{SFL+3}], s{sT} offen sc1"); k.vm.pop()
    k.I("s_waitcnt vmcnt(0)")
    k.I(f"v_cmp_eq_u32 vcc, v{vNon}, v{t2}")
    k.I(f"s_and_b32 s{sCb}, vcc_lo, 0xf") if False else None
    k.I(f"s_and_b32 s51, vcc_lo, 0xf")
    k.I(f"s_sub_u32 s{sT2}, s{sT2}, 1")
    k.I("s_cbranch_scc1 Lk3_ok")
    k.I(f"s_cmp_eq_u32 s51, 0xf")
    k.I("s_cbranch_scc0 Lk3_spin")
    k.L("Lk3_ok")
    I("s_barrier")
    mark_(k, diag, 6)
    I(f"s_lshl_b32 s{sT}, s{sKS}, 2")
    I(f"s_add_u32 s{sT}, s{sT}, s{sPb}")
    I(f"s_mul_i32 s{sT}, s{sT}, 10240")
    I(f"s_and_b32 s{sT2}, s{sW}, 1")
    I(f"s_mul_i32 s{sT2}, s{sT2}, 5")
    I(f"s_mul_i32 s51, s{sE2}, 3")
    I(f"s_add_u32 s{sT2}, s{sT2}, s51")
    I(f"s_lshl_b32 s{sT2}, s{sT2}, 10")
    I(f"s_add_u32 s{sT}, s{sT}, s{sT2}")
    P = 48
    for f in range(4):
        I(f"s_add_u32 s{sT2}, s{sT}, {f*10240}")
        for u in range(3):
            r = P + (f*3 + u)*4
            k.I(f"buffer_load_dwordx4 v[{r}:{r+3}], v{vL16}, s[{SP}:{SP+3}], s{sT2} offen offset:{u*1024}", tag="k3part")
    k.wait_vm("k3part")
    A = 104; HP = 128; ta, tb = 12, 13
    S1, S2, S3 = 14, 15, 16
    I(f"v_mov_b32 v{S1}, 0"); I(f"v_mov_b32 v{S2}, 0"); I(f"v_mov_b32 v{S3}, 0")
    for u in range(3):
        if u == 2:
            I(f"s_cmp_lg_u32 s{sE2}, 0")
            I("s_cbranch_scc1 Lk3_u2done")
        for q in range(4):
            i = 2*q
            for f in range(4):
                r = P + (f*3 + u)*4 + q
                if f == 0:
                    I(f"v_lshlrev_b32 v{A+i}, 16, v{r}")
                    I(f"v_and_b32 v{A+i+1}, 0xffff0000, v{r}")
                else:
                    I(f"v_lshlrev_b32 v{ta}, 16, v{r}")
                    I(f"v_and_b32 v{tb}, 0xffff0000, v{r}")
                    I(f"v_add_f32 v{A+i}, v{A+i}, v{ta}")
                    I(f"v_add_f32 v{A+i+1}, v{A+i+1}, v{tb}")
            I(f"v_cvt_pk_bf16_f32 v{ta}, v{A+i}, v{A+i+1}")
            I(f"v_lshlrev_b32 v{A+i}, 16, v{ta}")
            I(f"v_and_b32 v{A+i+1}, 0xffff0000, v{ta}")
            I(f"v_lshlrev_b32 v{ta}, 16, v{XV+4*u+q}")
            I(f"v_and_b32 v{tb}, 0xffff0000, v{XV+4*u+q}")
            I(f"v_add_f32 v{A+i}, v{A+i}, v{ta}")
            I(f"v_add_f32 v{A+i+1}, v{A+i+1}, v{tb}")
            I(f"v_cvt_pk_bf16_f32 v{HP+4*u+q}, v{A+i}, v{A+i+1}")
            I(f"v_lshlrev_b32 v{A+i}, 16, v{HP+4*u+q}")
            I(f"v_and_b32 v{A+i+1}, 0xffff0000, v{HP+4*u+q}")
            if not alltail:
                I(f"v_lshlrev_b32 v{ta}, 16, v{WRV+4*u+q}")
                I(f"v_and_b32 v{tb}, 0xffff0000, v{WRV+4*u+q}")
                I(f"v_add_f32 v{S1}, v{S1}, v{A+i}")
                I(f"v_fmac_f32 v{S2}, v{A+i}, v{A+i}")
                I(f"v_fmac_f32 v{S3}, v{A+i}, v{ta}")
                I(f"v_add_f32 v{S1}, v{S1}, v{A+i+1}")
                I(f"v_fmac_f32 v{S2}, v{A+i+1}, v{A+i+1}")
                I(f"v_fmac_f32 v{S3}, v{A+i+1}, v{tb}")
        k.I(f"buffer_store_dwordx4 v[{HP+4*u}:{HP+4*u+3}], v{vO}, s[{SH}:{SH+3}], 0 offen offset:{64*u} " + ("sc1" if alltail else ""))
    k.L("Lk3_u2done")
    if alltail:
        from ktail import emit_tail
        emit_tail(k, diag, sKS, sRT, sCT, sNonceIn, endlabel)
        return
    for a in (S1, S2, S3):
        I(f"v_mov_b32 v{tb}, v{a}")
        I(f"v_permlane16_swap_b32 v{a}, v{tb}")
        I(f"v_add_f32 v{a}, v{a}, v{tb}")
        I(f"v_mov_b32 v{tb}, v{a}")
        I(f"v_permlane32_swap_b32 v{a}, v{tb}")
        I(f"v_add_f32 v{a}, v{a}, v{tb}")
    I(f"v_lshlrev_b32 v{t0}, 2, v{vRow}")
    I(f"v_mov_b32 v{t1}, 0x100000")
    I(f"v_cmp_gt_u32 vcc, 16, v{LANE}")
    I(f"v_cndmask_b32 v{t0}, v{t1}, v{t0}, vcc")
    for i, a in enumerate((S1, S2, S3)):
        I(f"s_mov_b32 s{sT}, {i*8192}")
        k.I(f"buffer_atomic_add_f32 v{a}, v{t0}, s[{SACC}:{SACC+3}], s{sT} offen")
    mark_(k, diag, 7)
```

```python
from common import *
from k12 import SPIN_MAX
from k5 import wave_allreduce
NFF = 54
HF_LINE, RTF_LINE, YF_LINE = 224, 288, 296

def flag_store(k, SFL, vNon, vOff0, sOff):
    k.I(f"buffer_store_dword v{vNon}, v{vOff0}, s[{SFL}:{SFL+3}], s{sOff} offen sc1")

def poll(k, name, SFL, vAddr, sOff, vData, nreg, vNon, sW, sC, sM, full64=False, mask=None):
    I = k.I
    ld = {1: f"buffer_load_dword v{vData}", 4: f"buffer_load_dwordx4 v[{vData}:{vData+3}]"}[nreg]
    I(f"s_cmp_lg_u32 s{sW}, 0")
    I(f"s_cbranch_scc1 {name}_ok")
    I(f"s_mov_b32 s{sC}, {SPIN_MAX}")
    k.L(name + "_spin")
    I(f"{ld}, v{vAddr}, s[{SFL}:{SFL+3}], s{sOff} offen sc1"); k.vm.pop()
    I("s_waitcnt vmcnt(0)")
    I(f"v_cmp_eq_u32 vcc, v{vNon}, v{vData}")
    for q in range(1, nreg):
        I(f"v_cmp_eq_u32 s[{sM}:{sM+1}], v{vNon}, v{vData+q}")
        I(f"s_and_b64 vcc, vcc, s[{sM}:{sM+1}]")
    I(f"s_sub_u32 s{sC}, s{sC}, 1")
    I(f"s_cbranch_scc1 {name}_ok")
    lo, hi = mask
    I(f"s_and_b32 s{sM}, vcc_lo, {hex(lo)}")
    I(f"s_and_b32 s{sM+1}, vcc_hi, {hex(hi)}")
    I(f"s_cmp_eq_u32 s{sM}, {hex(lo)}")
    I(f"s_cbranch_scc0 {name}_spin")
    I(f"s_cmp_eq_u32 s{sM+1}, {hex(hi)}")
    I(f"s_cbranch_scc0 {name}_spin")
    k.L(name + "_ok")

def ffn_dma(k, sW, sT, sT2, sC, t2, LANE):
    I = k.I
    LG, LU, LD = 0, 40960, 81920
    vWD, vL16 = 21, 22
    I(f"s_cmp_ge_u32 s2, {NFF}")
    I("s_cbranch_scc1 Lt_nodma")
    I(f"s_cmp_eq_u32 s{sW}, 0")
    I("s_cbranch_scc1 Lt_nodma")
    I(f"v_lshrrev_b32 v{t2}, 2, v{LANE}")
    I(f"v_mul_u32_u24 v{vWD}, 3456, v{t2}")
    I(f"v_and_b32 v{t2}, 3, v{LANE}")
    I(f"v_lshl_add_u32 v{vWD}, v{t2}, 4, v{vWD}")
    I(f"v_lshlrev_b32 v{vL16}, 4, v{LANE}")
    I(f"s_cmp_eq_u32 s{sW}, 3")
    I("s_cbranch_scc1 Lt_dma_down")
    I(f"s_cmp_eq_u32 s{sW}, 1")
    I("s_cselect_b32 s64, s8, s10"); I("s_cselect_b32 s65, s9, s11")
    I(f"s_cselect_b32 s{sT2}, {LG}, {LU}")
    I(f"s_mov_b32 s66, {640*1728*2}"); I("s_mov_b32 s67, 0x20000")
    I(f"s_lshl_b32 s{sT}, s2, 6")
    for u in range(40):
        I(f"s_add_u32 m0, s{sT2}, {u*1024}")
        I(f"s_add_u32 s{sC}, s{sT}, {u*16*3456}")
        I(f"buffer_load_dwordx4 v{vWD}, s[64:67], s{sC} offen lds")
    I("s_waitcnt vmcnt(40)")
    I("s_branch Lt_dmadone")
    k.L("Lt_dma_down")
    I("s_mov_b32 s64, s12"); I("s_mov_b32 s65, s13"); I(f"s_mov_b32 s66, {1728*640*2}"); I("s_mov_b32 s67, 0x20000")
    I(f"s_mul_i32 s{sT}, s2, {32*1280}")
    for u in range(40):
        if u % 4 == 0:
            I(f"s_mov_b32 m0, {LD + u*1024}")
            I(f"s_add_u32 s{sC}, s{sT}, {u*1024}")
        I(f"buffer_load_dwordx4 v{vL16}, s[64:67], s{sC} offen offset:{(u % 4)*1024} lds")
    I("s_waitcnt vmcnt(40)")
    I("s_branch Lt_dmadone")
    k.L("Lt_nodma")
    I("s_waitcnt vmcnt(0)")
    k.L("Lt_dmadone")

def emit_tail(k, diag, sKS, sRT, sCT, sNonceIn, endlabel):
    I = k.I
    LANE = 2
    sW = 40
    sT, sT2, sEPS, sC, sM = 44, 45, 46, 47, 48
    SFL, SH, SOUT, SWR, SRT, SP, SX = 56, 16, 20, 24, 28, 32, 36
    vNon, vOff0, t0, t1, t2, t3 = 3, 4, 5, 6, 7, 8
    I(f"s_load_dwordx2 s[4:5], s[0:1], {KA['wr']}")
    I(f"s_load_dwordx2 s[6:7], s[0:1], {KA['out']}")
    I(f"s_load_dwordx4 s[8:11], s[0:1], {KA['wg']}")
    I(f"s_load_dwordx2 s[12:13], s[0:1], {KA['wd']}")
    I(f"s_load_dwordx2 s[62:63], s[0:1], {KA['x']}")
    srd(k, SFL, 14, 15, FLG_SIZE, FLG_OFF)
    srd(k, SP, 14, 15, PART_SIZE, PART_OFF)
    I(f"v_mov_b32 v{vNon}, s{sNonceIn}")
    I(f"v_mov_b32 v{t0}, 0x100000")
    I(f"v_mov_b32 v{t1}, 0")
    I(f"v_cmp_eq_u32 vcc, 0, v0")
    I(f"v_cndmask_b32 v{vOff0}, v{t0}, v{t1}, vcc")
    sF = 101
    I(f"s_lshr_b32 s{sT}, s2, 5")
    I(f"s_sub_u32 s{sT}, 7, s{sT}")
    I(f"s_lshl_b32 s{sF}, s{sT}, 5")
    I(f"s_and_b32 s{sT}, s2, 1")
    I(f"s_lshl_b32 s{sT}, s{sT}, 4")
    I(f"s_add_u32 s{sF}, s{sF}, s{sT}")
    I(f"s_lshl_b32 s{sT}, s{sKS}, 2")
    I(f"s_add_u32 s{sF}, s{sF}, s{sT}")
    I(f"s_add_u32 s{sF}, s{sF}, s{sCT}")
    sJ = 51
    I(f"s_lshl_b32 s{sJ}, s{sRT}, 4")
    I(f"s_lshl_b32 s{sT}, s{sKS}, 2")
    I(f"s_add_u32 s{sJ}, s{sJ}, s{sT}")
    I(f"s_add_u32 s{sJ}, s{sJ}, s{sCT}")
    I("s_waitcnt lgkmcnt(0)")
    srd(k, SX, 62, 63, 2048*640*2)
    srd(k, SWR, 4, 5, 1280)
    srd(k, SOUT, 6, 7, 2048*640*2)
    srd(k, SH, 14, 15, H_SIZE, H_OFF)
    srd(k, SRT, 14, 15, RT_SIZE, RT_OFF)
    I(f"s_mov_b32 s{sEPS}, {f32bits(1e-5)}")
    vRow, vO, vWo, vP = 9, 10, 11, 12
    I(f"v_and_b32 v{t0}, 7, v{LANE}")
    I(f"s_lshl_b32 s{sT}, s{sJ}, 3")
    I(f"v_add_u32 v{vRow}, s{sT}, v{t0}")
    I(f"v_bfe_u32 v{t1}, v{LANE}, 3, 2")
    I(f"v_lshrrev_b32 v{t2}, 5, v{LANE}")
    I(f"v_lshlrev_b32 v{vWo}, 4, v{t1}")
    I(f"v_lshl_add_u32 v{vWo}, v{t2}, 6, v{vWo}")
    I(f"s_mul_i32 s{sT}, s{sW}, 320")
    I(f"v_add_u32 v{vWo}, s{sT}, v{vWo}")
    I(f"v_mul_u32_u24 v{vO}, 1280, v{vRow}")
    I(f"v_add_u32 v{vO}, v{vO}, v{vWo}")
    I(f"v_lshlrev_b32 v{vP}, 10, v{t2}")
    I(f"v_lshl_add_u32 v{vP}, v{t1}, 8, v{vP}")
    I(f"s_and_b32 s{sT}, s{sJ}, 1")
    I(f"s_lshl_b32 s{sT}, s{sT}, 3")
    I(f"v_add_u32 v{t0}, s{sT}, v{t0}")
    I(f"v_lshl_add_u32 v{vP}, v{t0}, 4, v{vP}")
    vO2, vWo2, vP2, vVal = 13, 14, 15, 16
    I(f"v_mov_b32 v{t3}, 0x4000000")
    I(f"v_cmp_gt_u32 vcc, 32, v{LANE}")
    I(f"v_cndmask_b32 v{vO2}, v{t3}, v{vO}, vcc")
    I(f"v_cndmask_b32 v{vWo2}, v{t3}, v{vWo}, vcc")
    I(f"v_cndmask_b32 v{vP2}, v{t3}, v{vP}, vcc")
    I(f"v_cndmask_b32 v{vVal}, 0, 1.0, vcc")
    XV, WRV = 100, 112
    for m in range(3):
        I(f"buffer_load_dwordx4 v[{XV+4*m}:{XV+4*m+3}], v{vO if m < 2 else vO2}, s[{SX}:{SX+3}], 0 offen offset:{128*m}")
        I(f"buffer_load_dwordx4 v[{WRV+4*m}:{WRV+4*m+3}], v{vWo if m < 2 else vWo2}, s[{SWR}:{SWR+3}], 0 offen offset:{128*m}")
    I(f"s_add_u32 s{sT}, s{sRT}, {HF_LINE}")
    I(f"s_lshl_b32 s{sT}, s{sT}, 7")
    I(f"s_lshl_b32 s{sT2}, s{sCT}, 2")
    I(f"s_add_u32 s{sT2}, s{sT2}, s{sKS}")
    I(f"s_lshl_b32 s{sT2}, s{sT2}, 2")
    I(f"s_add_u32 s{sT2}, s{sT2}, s{sT}")
    I(f"v_mov_b32 v{t0}, {161792 + 768}")
    I(f"s_cmp_lg_u32 s{sW}, 0")
    I("s_cbranch_scc1 Lt_nn")
    I(f"ds_write_b32 v{t0}, v{vNon}")
    k.L("Lt_nn")
    I("s_waitcnt vmcnt(6) lgkmcnt(0)")
    I("s_barrier")
    I(f"ds_read_b32 v{vNon}, v{t0}")
    I("s_waitcnt lgkmcnt(0)")
    flag_store(k, SFL, vNon, vOff0, sT2)
    I(f"s_add_u32 s{sT}, s{sRT}, {HF_LINE}")
    I(f"s_lshl_b32 s{sT}, s{sT}, 7")
    I(f"v_lshlrev_b32 v{t0}, 2, v{LANE}")
    I(f"v_mov_b32 v{t1}, 0x100000")
    I(f"v_cmp_gt_u32 vcc, 16, v0")
    I(f"v_cndmask_b32 v{t0}, v{t1}, v{t0}, vcc")
    poll(k, "Lt_h", SFL, t0, sT, 20, 1, vNon, sW, sC, sM, mask=(0xffff, 0))
    I("s_barrier")
    mark(k, diag, 12)
    I(f"s_lshl_b32 s{sT}, s{sRT}, 2")
    I(f"s_add_u32 s{sT}, s{sT}, s{sW}")
    I(f"s_lshl_b32 s{sT}, s{sT}, 4")
    I(f"s_lshr_b32 s{sT2}, s{sJ}, 2")
    I(f"s_and_b32 s{sT2}, s{sT2}, 3")
    I(f"s_lshl_b32 s{sT2}, s{sT2}, 2")
    I(f"s_add_u32 s{sT}, s{sT}, s{sT2}")
    I(f"s_mul_i32 s{sT}, s{sT}, 10240")
    I(f"s_lshr_b32 s{sT2}, s{sJ}, 1")
    I(f"s_and_b32 s{sT2}, s{sT2}, 1")
    I(f"s_mul_i32 s{sT2}, s{sT2}, 5120")
    I(f"s_add_u32 s{sT}, s{sT}, s{sT2}")
    P = 24
    for f in range(4):
        for m in range(3):
            I(f"s_add_u32 s{sT2}, s{sT}, {f*10240 + m*2048}")
            r = P + (f*3 + m)*4
            I(f"buffer_load_dwordx4 v[{r}:{r+3}], v{vP if m < 2 else vP2}, s[{SP}:{SP+3}], s{sT2} offen")
    vWD = 23
    sDo, sDs, sMs = 52, 53, 54
    I(f"v_lshrrev_b32 v{t2}, 2, v{LANE}")
    I(f"v_mul_u32_u24 v{vWD}, 3456, v{t2}")
    I(f"v_and_b32 v{t2}, 3, v{LANE}")
    I(f"v_lshl_add_u32 v{vWD}, v{t2}, 4, v{vWD}")
    I(f"v_lshlrev_b32 v{t2}, 4, v{LANE}")
    I(f"s_cmp_eq_u32 s{sW}, 3")
    I(f"s_cselect_b64 vcc, -1, 0")
    I(f"v_cndmask_b32 v{vWD}, v{vWD}, v{t2}, vcc")
    I(f"s_cmp_eq_u32 s{sW}, 1")
    I("s_cselect_b32 s64, s8, s10"); I("s_cselect_b32 s65, s9, s11")
    I(f"s_cmp_eq_u32 s{sW}, 3")
    I("s_cselect_b32 s64, s12, s64"); I("s_cselect_b32 s65, s13, s65")
    I(f"s_movk_i32 s{sDs}, 1024")
    I(f"s_cselect_b32 s{sDs}, s{sDs}, {16*3456}")
    I(f"s_lshl_b32 s{sDo}, s{sF}, 6")
    I(f"s_mul_i32 s{sMs}, s{sF}, {32*1280}")
    I(f"s_cmp_eq_u32 s{sW}, 3")
    I(f"s_cselect_b32 s{sDo}, s{sMs}, s{sDo}")
    I(f"s_mov_b32 s66, {640*1728*2}"); I("s_mov_b32 s67, 0x20000")
    I(f"s_cmp_ge_u32 s{sF}, {NFF}"); I("s_cselect_b32 s66, 0, s66")
    I(f"s_cmp_eq_u32 s{sW}, 0"); I("s_cselect_b32 s66, 0, s66")
    I(f"s_cselect_b32 s{sMs}, 0, 1024")
    I(f"s_sub_u32 s{sT2}, s{sW}, 1"); I(f"s_mul_i32 s{sT2}, s{sT2}, 40960")
    I(f"s_cmp_eq_u32 s{sW}, 0"); I(f"s_cselect_b32 s{sT2}, 122880, s{sT2}")
    I(f"s_mov_b32 m0, s{sT2}")
    ndma = [0]; cnt = [0]
    I0 = I
    def dma1():
        I0(f"buffer_load_dwordx4 v{vWD}, s[64:67], s{sDo} offen lds")
        I0(f"s_add_u32 m0, m0, s{sMs}")
        I0(f"s_add_u32 s{sDo}, s{sDo}, s{sDs}")
        ndma[0] += 1
    I("s_waitcnt vmcnt(0)")
    class _K:
        name = k.name
        def I(self, t, tag=None):
            I0(t); cnt[0] += 1
            if cnt[0] % 12 == 0 and ndma[0] < 40 and t.startswith("v_") and not t.startswith("v_cmp") and "exec" not in t: dma1()
        def L(self, l): k.L(l)
    kx = _K(); I = kx.I
    A = 124; HP = 72; H = 148; ta, tb = 17, 18
    for m in range(3):
        for q in range(4):
            i = m*8 + 2*q
            for f in range(4):
                r = P + (f*3 + m)*4 + q
                if f == 0:
                    I(f"v_lshlrev_b32 v{A+i}, 16, v{r}")
                    I(f"v_and_b32 v{A+i+1}, 0xffff0000, v{r}")
                else:
                    I(f"v_lshlrev_b32 v{ta}, 16, v{r}")
                    I(f"v_and_b32 v{tb}, 0xffff0000, v{r}")
                    I(f"v_add_f32 v{A+i}, v{A+i}, v{ta}")
                    I(f"v_add_f32 v{A+i+1}, v{A+i+1}, v{tb}")
            I(f"v_cvt_pk_bf16_f32 v{ta}, v{A+i}, v{A+i+1}")
            I(f"v_lshlrev_b32 v{A+i}, 16, v{ta}")
            I(f"v_and_b32 v{A+i+1}, 0xffff0000, v{ta}")
            I(f"v_lshlrev_b32 v{ta}, 16, v{XV+4*m+q}")
            I(f"v_and_b32 v{tb}, 0xffff0000, v{XV+4*m+q}")
            I(f"v_add_f32 v{A+i}, v{A+i}, v{ta}")
            I(f"v_add_f32 v{A+i+1}, v{A+i+1}, v{tb}")
            I(f"v_cvt_pk_bf16_f32 v{HP+4*m+q}, v{A+i}, v{A+i+1}")
            I(f"v_lshlrev_b32 v{H+i}, 16, v{HP+4*m+q}")
            I(f"v_and_b32 v{H+i+1}, 0xffff0000, v{HP+4*m+q}")
        k.I(f"buffer_store_dwordx4 v[{HP+4*m}:{HP+4*m+3}], v{vO if m < 2 else vO2}, s[{SH}:{SH+3}], 0 offen offset:{128*m} sc1", tag="th")
    def row_sum(v):
        I(f"v_add_f32 v{v}, v{v}, v{v} row_ror:8")
        I(f"v_mov_b32 v{tb}, v{v}")
        I(f"v_permlane16_swap_b32 v{v}, v{tb}")
        I(f"v_add_f32 v{v}, v{v}, v{tb}")
        I(f"v_mov_b32 v{tb}, v{v}")
        I(f"v_permlane32_swap_b32 v{v}, v{tb}")
        I(f"v_add_f32 v{v}, v{v}, v{tb}")
    S, M2, MU = 20, 21, 19
    I(f"v_add_f32 v{S}, v{H}, v{H+1}")
    I(f"v_add_f32 v{M2}, v{H+2}, v{H+3}")
    for i in range(4, 24, 2):
        I(f"v_add_f32 v{S}, v{S}, v{H+i}")
        I(f"v_add_f32 v{M2}, v{M2}, v{H+i+1}")
    I(f"v_add_f32 v{S}, v{S}, v{M2}")
    row_sum(S)
    I(f"v_mul_f32 v{MU}, {f32bits(1.0/160)}, v{S}")
    I(f"v_sub_f32 v{ta}, v{H}, v{MU}")
    I(f"v_mul_f32 v{M2}, v{ta}, v{ta}")
    for i in range(1, 16):
        I(f"v_sub_f32 v{ta}, v{H+i}, v{MU}")
        I(f"v_fmac_f32 v{M2}, v{ta}, v{ta}")
    for i in range(16, 24):
        I(f"v_sub_f32 v{ta}, v{H+i}, v{MU}")
        I(f"v_mul_f32 v{ta}, v{ta}, v{vVal}")
        I(f"v_fmac_f32 v{M2}, v{ta}, v{ta}")
    row_sum(M2)
    LX = 161792
    I(f"v_and_b32 v{t0}, 7, v{LANE}")
    I(f"v_lshlrev_b32 v{t0}, 5, v{t0}")
    I(f"v_add_u32 v{t0}, {LX}, v{t0}")
    I(f"s_lshl_b32 s{sT}, s{sW}, 3")
    I(f"v_add_u32 v{t1}, s{sT}, v{t0}")
    I(f"v_mov_b32 v{S}, v{MU}")
    I(f"ds_write_b64 v{t1}, v[{S}:{S+1}]")
    I("s_waitcnt lgkmcnt(0)")
    I("s_barrier")
    E = 84
    I(f"ds_read_b128 v[{E}:{E+3}], v{t0}")
    I(f"ds_read_b128 v[{E+4}:{E+7}], v{t0} offset:16")
    I("s_waitcnt lgkmcnt(0)")
    MEAN, VAR = 92, 93
    I(f"v_add_f32 v{MEAN}, v{E}, v{E+2}")
    I(f"v_add_f32 v{ta}, v{E+4}, v{E+6}")
    I(f"v_add_f32 v{MEAN}, v{MEAN}, v{ta}")
    I(f"v_mul_f32 v{MEAN}, 0.25, v{MEAN}")
    I(f"v_add_f32 v{VAR}, v{E+1}, v{E+3}")
    I(f"v_add_f32 v{ta}, v{E+5}, v{E+7}")
    I(f"v_add_f32 v{VAR}, v{VAR}, v{ta}")
    I(f"v_mov_b32 v{tb}, 0")
    for w in range(4):
        I(f"v_sub_f32 v{ta}, v{E+2*w}, v{MEAN}")
        I(f"v_fmac_f32 v{tb}, v{ta}, v{ta}")
    I(f"v_mov_b32 v{ta}, {f32bits(160.0)}")
    I(f"v_fmac_f32 v{VAR}, v{tb}, v{ta}")
    I(f"v_mul_f32 v{VAR}, {f32bits(1.0/640)}, v{VAR}")
    HN = 24
    ln_finish(kx, H, 24, MEAN, VAR, 96, HN, sEPS)
    RX = 94
    I(f"v_mov_b32 v{RX}, 0")
    O = 36
    for i in range(12):
        I(f"v_lshlrev_b32 v{ta}, 16, v{HN+i}")
        I(f"v_and_b32 v{tb}, 0xffff0000, v{HN+i}")
        I(f"v_lshlrev_b32 v48, 16, v{WRV+i}")
        I(f"v_and_b32 v49, 0xffff0000, v{WRV+i}")
        I(f"v_fmac_f32 v{RX}, v{ta}, v48")
        I(f"v_fmac_f32 v{RX}, v{tb}, v49")
        I(f"v_lshlrev_b32 v48, 16, v{HP+i}")
        I(f"v_and_b32 v49, 0xffff0000, v{HP+i}")
        I(f"v_add_f32 v{ta}, v{ta}, v48")
        I(f"v_add_f32 v{tb}, v{tb}, v49")
        I(f"v_cvt_pk_bf16_f32 v{O+i}, v{ta}, v{tb}")
    for m in range(3):
        I(f"buffer_store_dwordx4 v[{O+4*m}:{O+4*m+3}], v{vO if m < 2 else vO2}, s[{SOUT}:{SOUT+3}], 0 offen offset:{128*m} sc1")
    row_sum(RX)
    I(f"v_and_b32 v{t0}, 7, v{LANE}")
    I(f"v_lshlrev_b32 v{t0}, 4, v{t0}")
    I(f"v_add_u32 v{t0}, {LX + 512}, v{t0}")
    I(f"s_lshl_b32 s{sT}, s{sW}, 2")
    I(f"v_add_u32 v{t1}, s{sT}, v{t0}")
    I(f"ds_write_b32 v{t1}, v{RX}")
    while ndma[0] < 40: dma1()
    I = I0
    I("s_waitcnt lgkmcnt(0)")
    k.wait_vm("th", expect=3)
    I("s_barrier")
    I(f"ds_read_b128 v[{E}:{E+3}], v{t0}")
    I("s_waitcnt lgkmcnt(0)")
    I(f"v_add_f32 v{E}, v{E}, v{E+1}")
    I(f"v_add_f32 v{E+2}, v{E+2}, v{E+3}")
    I(f"v_add_f32 v{RX}, v{E}, v{E+2}")
    bf16_round(k, RX)
    I(f"v_mov_b32 v{RX+1}, v{vNon}")
    I(f"v_lshlrev_b32 v{t0}, 4, v{vRow}")
    I(f"v_cmp_gt_u32 vcc, 8, v0")
    I(f"v_cndmask_b32 v{t0}, v{t3}, v{t0}, vcc")
    I(f"buffer_store_dwordx4 v[{MEAN}:{MEAN+3}], v{t0}, s[{SRT}:{SRT+3}], 0 offen sc1")
    I("s_waitcnt vmcnt(0)")
    I("s_barrier")
    I(f"s_lshl_b32 s{sT2}, s2, 2")
    I(f"s_add_u32 s{sT2}, s{sT2}, {RTF_LINE*128}")
    flag_store(k, SFL, vNon, vOff0, sT2)
    mark(k, diag, 13)
    I(f"s_cmp_ge_u32 s{sF}, {NFF}")
    I(f"s_cbranch_scc1 {endlabel}")
    SYP = 60
    LG, LU, LD, LHN, LKEY, LPART, LA_ = 0, 40960, 81920, 155648, 158208, 158272, 160320
    srd(k, SYP, 14, 15, YP_SIZE, YP_OFF)
    ST = 64
    I(f"v_lshlrev_b32 v{t0}, 4, v0")
    I(f"s_mov_b32 s{sC}, {SPIN_MAX}")
    k.L("Lt_rt_spin")
    for e in range(8):
        I(f"s_mov_b32 s{sT}, {e*4096}")
        I(f"buffer_load_dwordx4 v[{ST+4*e}:{ST+4*e+3}], v{t0}, s[{SRT}:{SRT+3}], s{sT} offen sc1"); k.vm.pop()
    I("s_waitcnt vmcnt(0)")
    I(f"v_cmp_eq_u32 vcc, v{vNon}, v{ST+3}")
    for e in range(1, 8):
        I(f"v_cmp_eq_u32 s[{sM}:{sM+1}], v{vNon}, v{ST+4*e+3}")
        I(f"s_and_b64 vcc, vcc, s[{sM}:{sM+1}]")
    I(f"s_sub_u32 s{sC}, s{sC}, 1")
    I("s_cbranch_scc1 Lt_rt_ok")
    I("s_cmp_eq_u64 vcc, -1")
    I("s_cbranch_scc0 Lt_rt_spin")
    k.L("Lt_rt_ok")
    mark(k, diag, 14)
    K1, K2, RR = 96, 97, 100
    I(f"v_mov_b32 v{K1}, 0")
    I(f"v_mov_b32 v{K2}, 0")
    for e in range(8):
        I(f"v_ashrrev_i32 v{t1}, 31, v{ST+4*e+2}")
        I(f"v_or_b32 v{t1}, 0x80000000, v{t1}")
        I(f"v_xor_b32 v{RR}, v{ST+4*e+2}, v{t1}")
        I(f"v_and_b32 v{RR}, 0xfffff800, v{RR}")
        I(f"v_sub_u32 v{t1}, {2047 - 256*e}, v0")
        I(f"v_or_b32 v{RR}, v{RR}, v{t1}")
        I(f"v_med3_u32 v{K2}, v{K1}, v{K2}, v{RR}")
        I(f"v_max_u32 v{K1}, v{K1}, v{RR}")
    T1, T2 = 16, 17
    I(f"v_mov_b32 v{T1}, v{K1}")
    wave_allreduce(k, "v_max_u32", T1, t1)
    I(f"v_cmp_eq_u32 vcc, v{T1}, v{K1}")
    I(f"v_cndmask_b32 v{T2}, v{K1}, v{K2}, vcc")
    wave_allreduce(k, "v_max_u32", T2, t1)
    I(f"s_lshl_b32 s{sT}, s{sW}, 3")
    I(f"v_mov_b32 v{t1}, s{sT}")
    I(f"v_add_u32 v{t1}, {LKEY}, v{t1}")
    I(f"ds_write_b64 v{t1}, v[{T1}:{T1+1}]")
    I("s_waitcnt lgkmcnt(0)")
    I("s_barrier")
    KK = 20
    I(f"v_mov_b32 v{t1}, {LKEY}")
    I(f"ds_read_b128 v[{KK}:{KK+3}], v{t1}")
    I(f"ds_read_b128 v[{KK+4}:{KK+7}], v{t1} offset:16")
    I("s_waitcnt lgkmcnt(0)")
    I(f"v_mov_b32 v{K1}, 0")
    I(f"v_mov_b32 v{K2}, 0")
    for j in range(8):
        I(f"v_med3_u32 v{K2}, v{K1}, v{K2}, v{KK+j}")
        I(f"v_max_u32 v{K1}, v{K1}, v{KK+j}")
    for kx in (K1, K2):
        I(f"v_and_b32 v{kx}, 0x7ff, v{kx}")
        I(f"v_sub_u32 v{kx}, 2047, v{kx}")
    I(f"v_bfe_u32 v{t1}, v{LANE}, 4, 1")
    I(f"v_cmp_eq_u32 vcc, 0, v{t1}")
    I(f"v_cndmask_b32 v{t3}, v{K2}, v{K1}, vcc")
    vRowSel = 13
    I(f"v_mov_b32 v{vRowSel}, v{t3}")
    I(f"v_lshlrev_b32 v{t2}, 4, v{t3}")
    REC = 56
    I(f"buffer_load_dwordx4 v[{REC}:{REC+3}], v{t2}, s[{SRT}:{SRT+3}], 0 offen sc1")
    I(f"v_mul_u32_u24 v{t3}, 1280, v{t3}")
    I(f"v_and_b32 v{t0}, 15, v{LANE}")
    I(f"v_lshl_add_u32 v{t3}, v{t0}, 4, v{t3}")
    HX, HN = 16, 36
    for u in range(5):
        I(f"buffer_load_dwordx4 v[{HX+4*u}:{HX+4*u+3}], v{t3}, s[{SH}:{SH+3}], 0 offen offset:{256*u}")
    I("s_waitcnt vmcnt(0)")
    X = 164
    for i in range(20):
        I(f"v_lshlrev_b32 v{X}, 16, v{HX+i}")
        I(f"v_and_b32 v{X+1}, 0xffff0000, v{HX+i}")
        I(f"v_sub_f32 v{X}, v{X}, v{REC}")
        I(f"v_sub_f32 v{X+1}, v{X+1}, v{REC}")
        I(f"v_cvt_pk_bf16_f32 v{X+2}, v{X}, v{X+1}")
        I(f"v_lshlrev_b32 v{X}, 16, v{X+2}")
        I(f"v_and_b32 v{X+1}, 0xffff0000, v{X+2}")
        I(f"v_mul_f32 v{X}, v{X}, v{REC+1}")
        I(f"v_mul_f32 v{X+1}, v{X+1}, v{REC+1}")
        I(f"v_cvt_pk_bf16_f32 v{HN+i}, v{X}, v{X+1}")
    RSEL = 60
    I(f"v_mul_f32 v{RSEL}, {f32bits(-1.4426950408889634)}, v{REC+2}")
    I(f"v_exp_f32 v{RSEL}, v{RSEL}")
    I(f"v_add_f32 v{RSEL}, 1.0, v{RSEL}")
    I(f"v_rcp_f32 v{RSEL}, v{RSEL}")
    bf16_round(k, RSEL)
    I(f"v_bfe_u32 v{t1}, v{LANE}, 4, 1")
    I(f"v_mul_u32_u24 v{t1}, 1280, v{t1}")
    I(f"v_lshl_add_u32 v{t1}, v{t0}, 4, v{t1}")
    I(f"v_add_u32 v{t2}, {LHN}, v{t1}")
    I(f"s_cmp_lg_u32 s{sW}, 0")
    I("s_cbranch_scc1 Lt_w0done")
    for u in range(5):
        I(f"ds_write_b128 v{t2}, v[{HN+4*u}:{HN+4*u+3}] offset:{256*u}")
    I(f"v_bfe_u32 v{t2}, v{LANE}, 4, 1")
    I(f"v_lshlrev_b32 v{t2}, 3, v{t2}")
    I(f"v_add_u32 v{t2}, {LKEY+32}, v{t2}")
    I(f"v_mov_b32 v62, v{vRowSel}")
    I(f"v_mov_b32 v63, v{RSEL}")
    I(f"ds_write_b64 v{t2}, v[62:63]")
    k.L("Lt_w0done")
    I("s_waitcnt vmcnt(0) lgkmcnt(0)")
    I("s_barrier")
    I(f"s_mul_i32 s51, s{sW}, {160*64}")
    I(f"v_and_b32 v{t0}, 1, v{LANE}")
    I(f"v_mul_u32_u24 v{t0}, 1280, v{t0}")
    I(f"v_lshrrev_b32 v{t1}, 4, v{LANE}")
    I(f"v_lshl_add_u32 v{t0}, v{t1}, 4, v{t0}")
    I(f"s_mul_i32 s{sT}, s{sW}, 320")
    I(f"s_add_u32 s{sT}, s{sT}, {LHN}")
    I(f"v_add_u32 v{t0}, s{sT}, v{t0}")
    I(f"v_bfe_u32 v{t2}, v{LANE}, 2, 2")
    I(f"v_lshl_add_u32 v{t2}, v{t1}, 3, v{t2}")
    I(f"v_lshlrev_b32 v{t2}, 6, v{t2}")
    I(f"v_and_b32 v{t3}, 3, v{LANE}")
    I(f"v_lshl_add_u32 v{t2}, v{t3}, 3, v{t2}")
    I(f"v_add_u32 v{t2}, s51, v{t2}")
    AF, BF = 16, 100
    for s_ in range(5): I(f"ds_read_b128 v[{AF+4*s_}:{AF+4*s_+3}], v{t0} offset:{64*s_}")
    for mi, LB in enumerate((LG, LU)):
        for ft in range(2):
            for s_ in range(5):
                r = BF + ((mi*2 + ft)*5 + s_)*4
                I(f"ds_read_b64_tr_b16 v[{r}:{r+1}], v{t2} offset:{LB + s_*2048 + ft*32}")
                I(f"ds_read_b64_tr_b16 v[{r+2}:{r+3}], v{t2} offset:{LB + s_*2048 + ft*32 + 256}")
    I("s_waitcnt lgkmcnt(0)")
    D = 72
    for s_ in range(5):
        for q in range(4):
            r = BF + (q*5 + s_)*4
            I(f"v_mfma_f32_16x16x32_bf16 v[{D+4*q}:{D+4*q+3}], v[{AF+4*s_}:{AF+4*s_+3}], v[{r}:{r+3}], " + ("0" if s_ == 0 else f"v[{D+4*q}:{D+4*q+3}]"))
    I(f"v_and_b32 v{t0}, 15, v{LANE}")
    I(f"v_lshlrev_b32 v{t0}, 2, v{t0}")
    I(f"s_lshl_b32 s{sT}, s{sW}, 9")
    I(f"s_add_u32 s{sT}, s{sT}, {LPART}")
    I(f"v_add_u32 v{t0}, s{sT}, v{t0}")
    I("s_mov_b32 exec_lo, 0xffff")
    I("s_mov_b32 exec_hi, 0")
    for mi in range(2):
        for ft in range(2):
            for tok in range(2):
                I(f"ds_write_b32 v{t0}, v{D+4*(mi*2+ft)+tok} offset:{(mi*2+tok)*128 + ft*64}")
    I("s_mov_b64 exec, -1")
    I("s_waitcnt lgkmcnt(0)")
    I("s_barrier")
    I(f"v_lshlrev_b32 v{t0}, 2, v{LANE}")
    I(f"v_add_u32 v{t0}, {LPART}, v{t0}")
    for w in range(4):
        I(f"ds_read_b32 v{16+w}, v{t0} offset:{w*512}")
        I(f"ds_read_b32 v{20+w}, v{t0} offset:{w*512 + 256}")
    I("s_waitcnt lgkmcnt(0)")
    for b in (16, 20):
        I(f"v_add_f32 v{b}, v{b}, v{b+1}")
        I(f"v_add_f32 v{b+2}, v{b+2}, v{b+3}")
        I(f"v_add_f32 v{b}, v{b}, v{b+2}")
        bf16_round(k, b)
    I(f"v_mul_f32 v17, {f32bits(-1.4426950408889634)}, v16")
    I(f"v_exp_f32 v17, v17")
    I(f"v_add_f32 v17, 1.0, v17")
    I(f"v_rcp_f32 v17, v17")
    I(f"v_mul_f32 v16, v16, v17")
    bf16_round(k, 16)
    I(f"v_mul_f32 v16, v16, v20")
    I(f"v_cvt_pk_bf16_f32 v16, v16, v16")
    I(f"v_lshlrev_b32 v{t1}, 1, v{LANE}")
    I(f"v_add_u32 v{t1}, {LA_}, v{t1}")
    I(f"ds_write_b16 v{t1}, v16")
    I("s_waitcnt lgkmcnt(0)")
    I(f"v_and_b32 v{t0}, 1, v{LANE}")
    I(f"v_lshlrev_b32 v{t0}, 6, v{t0}")
    I(f"v_lshrrev_b32 v{t1}, 4, v{LANE}")
    I(f"v_lshl_add_u32 v{t0}, v{t1}, 4, v{t0}")
    I(f"v_add_u32 v{t0}, {LA_}, v{t0}")
    I(f"ds_read_b128 v[16:19], v{t0}")
    I(f"v_bfe_u32 v{t2}, v{LANE}, 2, 2")
    I(f"v_lshl_add_u32 v{t2}, v{t1}, 3, v{t2}")
    I(f"v_mul_u32_u24 v{t2}, 1280, v{t2}")
    I(f"v_and_b32 v{t3}, 3, v{LANE}")
    I(f"v_lshl_add_u32 v{t2}, v{t3}, 3, v{t2}")
    I(f"s_mul_i32 s{sT}, s{sW}, 320")
    I(f"s_add_u32 s{sT}, s{sT}, {LD}")
    I(f"v_add_u32 v{t2}, s{sT}, v{t2}")
    for nt in range(10):
        r = 100 + 4*nt
        I(f"ds_read_b64_tr_b16 v[{r}:{r+1}], v{t2} offset:{nt*32}")
        I(f"ds_read_b64_tr_b16 v[{r+2}:{r+3}], v{t2} offset:{nt*32 + 4*1280}")
    I("s_waitcnt lgkmcnt(0)")
    for nt in range(10):
        I(f"v_mfma_f32_16x16x32_bf16 v[{140+4*nt}:{143+4*nt}], v[16:19], v[{100+4*nt}:{103+4*nt}], 0")
    I(f"v_and_b32 v{t0}, 15, v{LANE}")
    I(f"v_lshlrev_b32 v{t0}, 2, v{t0}")
    I(f"s_mul_i32 s{sT}, s{sF}, 5120")
    I(f"s_mul_i32 s{sT2}, s{sW}, 640")
    I(f"s_add_u32 s{sT}, s{sT}, s{sT2}")
    I("s_mov_b32 exec_lo, 0xffff")
    I("s_mov_b32 exec_hi, 0")
    for nt in range(10):
        I(f"buffer_store_dword v{140+4*nt}, v{t0}, s[{SYP}:{SYP+3}], s{sT} offen offset:{nt*64} sc1")
        I(f"buffer_store_dword v{141+4*nt}, v{t0}, s[{SYP}:{SYP+3}], s{sT} offen offset:{2560 + nt*64} sc1")
    I("s_mov_b64 exec, -1")
    I("s_waitcnt vmcnt(0)")
    I("s_barrier")
    I(f"s_lshl_b32 s{sT2}, s{sF}, 2")
    I(f"s_add_u32 s{sT2}, s{sT2}, {YF_LINE*128}")
    flag_store(k, SFL, vNon, vOff0, sT2)
    mark(k, diag, 15)
    I(f"s_cmp_ge_u32 s{sF}, 20")
    I(f"s_cbranch_scc1 {endlabel}")
    sTok, sCc = 51, 52
    I(f"s_cmp_ge_u32 s{sF}, 10")
    I(f"s_cselect_b32 s{sTok}, 1, 0")
    I(f"s_mul_i32 s{sT}, s{sTok}, 10")
    I(f"s_sub_u32 s{sCc}, s{sF}, s{sT}")
    I(f"s_lshl_b32 s{sT}, s{sCc}, 6")
    I(f"v_add_u32 v16, s{sT}, v{LANE}")
    I(f"s_lshl_b32 s{sT}, s{sTok}, 3")
    I(f"s_add_u32 s{sT}, s{sT}, {LKEY+32}")
    I(f"v_mov_b32 v17, s{sT}")
    I(f"ds_read_b64 v[18:19], v17")
    I(f"s_mul_i32 s{sT}, s{sTok}, 1280")
    I(f"s_add_u32 s{sT}, s{sT}, {LHN}")
    I(f"v_lshlrev_b32 v20, 1, v16")
    I(f"v_add_u32 v21, s{sT}, v20")
    I(f"ds_read_u16 v22, v21")
    I("s_waitcnt lgkmcnt(0)")
    I(f"v_mul_u32_u24 v23, 1280, v18")
    I(f"v_add_u32 v23, v23, v20")
    I(f"buffer_load_ushort v24, v23, s[{SH}:{SH+3}], 0 offen")
    I(f"v_lshlrev_b32 v{t0}, 4, v{LANE}")
    I(f"s_mov_b32 s{sT}, {RTF_LINE*128}")
    poll(k, "Lt_rtf", SFL, t0, sT, 28, 4, vNon, sW, sC, sM, mask=(0xffffffff, 0xffffffff))
    I(f"v_lshlrev_b32 v{t0}, 2, v{LANE}")
    I(f"v_mov_b32 v{t1}, 0x100000")
    I(f"v_cmp_gt_u32 vcc, {NFF}, v{LANE}")
    I(f"v_cndmask_b32 v{t0}, v{t1}, v{t0}, vcc")
    I(f"s_mov_b32 s{sT}, {YF_LINE*128}")
    poll(k, "Lt_y", SFL, t0, sT, 25, 1, vNon, sW, sC, sM, mask=(0xffffffff, (1 << (NFF - 32)) - 1))
    I("s_barrier")
    I(f"v_lshlrev_b32 v26, 2, v16")
    I(f"s_mul_i32 s{sT2}, s{sW}, {14*5120}")
    I(f"s_mul_i32 s{sT}, s{sTok}, 2560")
    I(f"s_add_u32 s{sT2}, s{sT2}, s{sT}")
    for j in range(14):
        I(f"s_add_u32 s{sT}, s{sT2}, {j*5120}")
        I(f"buffer_load_dword v{32+j}, v26, s[{SYP}:{SYP+3}], s{sT} offen")
    I("s_waitcnt vmcnt(0)")
    for j in range(1, 14): I(f"v_add_f32 v32, v32, v{32+j}")
    I(f"v_lshlrev_b32 v27, 2, v0")
    I(f"v_add_u32 v27, {LPART}, v27")
    I(f"ds_write_b32 v27, v32")
    I("s_waitcnt lgkmcnt(0)")
    I("s_barrier")
    I(f"s_cmp_lg_u32 s{sW}, 0")
    I(f"s_cbranch_scc1 {endlabel}")
    I(f"v_lshlrev_b32 v27, 2, v{LANE}")
    I(f"v_add_u32 v27, {LPART}, v27")
    for q in range(4): I(f"ds_read_b32 v{32+q}, v27 offset:{256*q}")
    I("s_waitcnt lgkmcnt(0)")
    I("v_add_f32 v32, v32, v33")
    I("v_add_f32 v34, v34, v35")
    I("v_add_f32 v32, v32, v34")
    bf16_round(k, 32)
    I("v_mul_f32 v32, v32, v19")
    bf16_round(k, 32)
    I("v_lshlrev_b32 v22, 16, v22")
    I("v_add_f32 v32, v32, v22")
    bf16_round(k, 32)
    I("v_lshlrev_b32 v24, 16, v24")
    I("v_add_f32 v32, v32, v24")
    I("v_cvt_pk_bf16_f32 v32, v32, v32")
    I(f"buffer_store_short v32, v23, s[{SOUT}:{SOUT+3}], 0 offen sc1")
```

```python
from common import *
from k12 import SPIN_MAX
from k5 import wave_allreduce
NFF = 54
HF_LINE, RTF_LINE, YF_LINE = 224, 288, 296

def flag_store(k, SFL, vNon, vOff0, sOff):
    k.I(f"buffer_store_dword v{vNon}, v{vOff0}, s[{SFL}:{SFL+3}], s{sOff} offen sc1")

def poll(k, name, SFL, vAddr, sOff, vData, nreg, vNon, sW, sC, sM, full64=False, mask=None):
    I = k.I
    ld = {1: f"buffer_load_dword v{vData}", 4: f"buffer_load_dwordx4 v[{vData}:{vData+3}]"}[nreg]
    I(f"s_cmp_lg_u32 s{sW}, 0")
    I(f"s_cbranch_scc1 {name}_ok")
    I(f"s_mov_b32 s{sC}, {SPIN_MAX}")
    k.L(name + "_spin")
    I(f"{ld}, v{vAddr}, s[{SFL}:{SFL+3}], s{sOff} offen sc1"); k.vm.pop()
    I("s_waitcnt vmcnt(0)")
    I(f"v_cmp_eq_u32 vcc, v{vNon}, v{vData}")
    for q in range(1, nreg):
        I(f"v_cmp_eq_u32 s[{sM}:{sM+1}], v{vNon}, v{vData+q}")
        I(f"s_and_b64 vcc, vcc, s[{sM}:{sM+1}]")
    I(f"s_sub_u32 s{sC}, s{sC}, 1")
    I(f"s_cbranch_scc1 {name}_ok")
    lo, hi = mask
    I(f"s_and_b32 s{sM}, vcc_lo, {hex(lo)}")
    I(f"s_and_b32 s{sM+1}, vcc_hi, {hex(hi)}")
    I(f"s_cmp_eq_u32 s{sM}, {hex(lo)}")
    I(f"s_cbranch_scc0 {name}_spin")
    I(f"s_cmp_eq_u32 s{sM+1}, {hex(hi)}")
    I(f"s_cbranch_scc0 {name}_spin")
    k.L(name + "_ok")

def ffn_dma(k, sW, sT, sT2, sC, t2, LANE):
    I = k.I
    LG, LU, LD = 0, 40960, 81920
    vWD, vL16 = 21, 22
    I(f"s_cmp_ge_u32 s2, {NFF}")
    I("s_cbranch_scc1 Lt_nodma")
    I(f"s_cmp_eq_u32 s{sW}, 0")
    I("s_cbranch_scc1 Lt_nodma")
    I(f"v_lshrrev_b32 v{t2}, 2, v{LANE}")
    I(f"v_mul_u32_u24 v{vWD}, 3456, v{t2}")
    I(f"v_and_b32 v{t2}, 3, v{LANE}")
    I(f"v_lshl_add_u32 v{vWD}, v{t2}, 4, v{vWD}")
    I(f"v_lshlrev_b32 v{vL16}, 4, v{LANE}")
    I(f"s_cmp_eq_u32 s{sW}, 3")
    I("s_cbranch_scc1 Lt_dma_down")
    I(f"s_cmp_eq_u32 s{sW}, 1")
    I("s_cselect_b32 s64, s8, s10"); I("s_cselect_b32 s65, s9, s11")
    I(f"s_cselect_b32 s{sT2}, {LG}, {LU}")
    I(f"s_mov_b32 s66, {640*1728*2}"); I("s_mov_b32 s67, 0x20000")
    I(f"s_lshl_b32 s{sT}, s2, 6")
    for u in range(40):
        I(f"s_add_u32 m0, s{sT2}, {u*1024}")
        I(f"s_add_u32 s{sC}, s{sT}, {u*16*3456}")
        I(f"buffer_load_dwordx4 v{vWD}, s[64:67], s{sC} offen lds")
    I("s_waitcnt vmcnt(40)")
    I("s_branch Lt_dmadone")
    k.L("Lt_dma_down")
    I("s_mov_b32 s64, s12"); I("s_mov_b32 s65, s13"); I(f"s_mov_b32 s66, {1728*640*2}"); I("s_mov_b32 s67, 0x20000")
    I(f"s_mul_i32 s{sT}, s2, {32*1280}")
    for u in range(40):
        if u % 4 == 0:
            I(f"s_mov_b32 m0, {LD + u*1024}")
            I(f"s_add_u32 s{sC}, s{sT}, {u*1024}")
        I(f"buffer_load_dwordx4 v{vL16}, s[64:67], s{sC} offen offset:{(u % 4)*1024} lds")
    I("s_waitcnt vmcnt(40)")
    I("s_branch Lt_dmadone")
    k.L("Lt_nodma")
    I("s_waitcnt vmcnt(0)")
    k.L("Lt_dmadone")

def emit_tail(k, diag, sKS, sRT, sCT, sNonceIn, endlabel):
    I = k.I
    LANE = 2
    sW = 40
    sT, sT2, sEPS, sC, sM = 44, 45, 46, 47, 48
    SFL, SH, SOUT, SWR, SRT, SP, SX = 56, 16, 20, 24, 28, 32, 36
    vNon, vOff0, t0, t1, t2, t3 = 3, 4, 5, 6, 7, 8
    I(f"s_load_dwordx2 s[4:5], s[0:1], {KA['wr']}")
    I(f"s_load_dwordx2 s[6:7], s[0:1], {KA['out']}")
    I(f"s_load_dwordx4 s[8:11], s[0:1], {KA['wg']}")
    I(f"s_load_dwordx2 s[12:13], s[0:1], {KA['wd']}")
    I(f"s_load_dwordx2 s[62:63], s[0:1], {KA['x']}")
    srd(k, SFL, 14, 15, FLG_SIZE, FLG_OFF)
    srd(k, SP, 14, 15, PART_SIZE, PART_OFF)
    I(f"v_mov_b32 v{vNon}, s{sNonceIn}")
    I(f"v_mov_b32 v{t0}, 0x100000")
    I(f"v_mov_b32 v{t1}, 0")
    I(f"v_cmp_eq_u32 vcc, 0, v0")
    I(f"v_cndmask_b32 v{vOff0}, v{t0}, v{t1}, vcc")
    sF = 101
    I(f"s_lshr_b32 s{sT}, s2, 5")
    I(f"s_sub_u32 s{sT}, 7, s{sT}")
    I(f"s_lshl_b32 s{sF}, s{sT}, 5")
    I(f"s_and_b32 s{sT}, s2, 1")
    I(f"s_lshl_b32 s{sT}, s{sT}, 4")
    I(f"s_add_u32 s{sF}, s{sF}, s{sT}")
    I(f"s_lshl_b32 s{sT}, s{sKS}, 2")
    I(f"s_add_u32 s{sF}, s{sF}, s{sT}")
    I(f"s_add_u32 s{sF}, s{sF}, s{sCT}")
    sJ = 51
    I(f"s_lshl_b32 s{sJ}, s{sRT}, 4")
    I(f"s_lshl_b32 s{sT}, s{sKS}, 2")
    I(f"s_add_u32 s{sJ}, s{sJ}, s{sT}")
    I(f"s_add_u32 s{sJ}, s{sJ}, s{sCT}")
    I("s_waitcnt lgkmcnt(0)")
    srd(k, SX, 62, 63, 2048*640*2)
    srd(k, SWR, 4, 5, 1280)
    srd(k, SOUT, 6, 7, 2048*640*2)
    srd(k, SH, 14, 15, H_SIZE, H_OFF)
    srd(k, SRT, 14, 15, RT_SIZE, RT_OFF)
    I(f"s_mov_b32 s{sEPS}, {f32bits(1e-5)}")
    vRow, vO, vWo, vP = 9, 10, 11, 12
    I(f"v_and_b32 v{t0}, 7, v{LANE}")
    I(f"s_lshl_b32 s{sT}, s{sJ}, 3")
    I(f"v_add_u32 v{vRow}, s{sT}, v{t0}")
    I(f"v_bfe_u32 v{t1}, v{LANE}, 3, 2")
    I(f"v_lshrrev_b32 v{t2}, 5, v{LANE}")
    I(f"v_lshlrev_b32 v{vWo}, 4, v{t1}")
    I(f"v_lshl_add_u32 v{vWo}, v{t2}, 6, v{vWo}")
    I(f"s_mul_i32 s{sT}, s{sW}, 320")
    I(f"v_add_u32 v{vWo}, s{sT}, v{vWo}")
    I(f"v_mul_u32_u24 v{vO}, 1280, v{vRow}")
    I(f"v_add_u32 v{vO}, v{vO}, v{vWo}")
    I(f"v_lshlrev_b32 v{vP}, 10, v{t2}")
    I(f"v_lshl_add_u32 v{vP}, v{t1}, 8, v{vP}")
    I(f"s_and_b32 s{sT}, s{sJ}, 1")
    I(f"s_lshl_b32 s{sT}, s{sT}, 3")
    I(f"v_add_u32 v{t0}, s{sT}, v{t0}")
    I(f"v_lshl_add_u32 v{vP}, v{t0}, 4, v{vP}")
    vO2, vWo2, vP2, vVal = 13, 14, 15, 16
    I(f"v_mov_b32 v{t3}, 0x4000000")
    I(f"v_cmp_gt_u32 vcc, 32, v{LANE}")
    I(f"v_cndmask_b32 v{vO2}, v{t3}, v{vO}, vcc")
    I(f"v_cndmask_b32 v{vWo2}, v{t3}, v{vWo}, vcc")
    I(f"v_cndmask_b32 v{vP2}, v{t3}, v{vP}, vcc")
    I(f"v_cndmask_b32 v{vVal}, 0, 1.0, vcc")
    XV, WRV = 100, 112
    for m in range(3):
        I(f"buffer_load_dwordx4 v[{XV+4*m}:{XV+4*m+3}], v{vO if m < 2 else vO2}, s[{SX}:{SX+3}], 0 offen offset:{128*m}")
        I(f"buffer_load_dwordx4 v[{WRV+4*m}:{WRV+4*m+3}], v{vWo if m < 2 else vWo2}, s[{SWR}:{SWR+3}], 0 offen offset:{128*m}")
    I(f"s_add_u32 s{sT}, s{sRT}, {HF_LINE}")
    I(f"s_lshl_b32 s{sT}, s{sT}, 7")
    I(f"s_lshl_b32 s{sT2}, s{sCT}, 2")
    I(f"s_add_u32 s{sT2}, s{sT2}, s{sKS}")
    I(f"s_lshl_b32 s{sT2}, s{sT2}, 2")
    I(f"s_add_u32 s{sT2}, s{sT2}, s{sT}")
    I(f"v_mov_b32 v{t0}, {161792 + 768}")
    I(f"s_cmp_lg_u32 s{sW}, 0")
    I("s_cbranch_scc1 Lt_nn")
    I(f"ds_write_b32 v{t0}, v{vNon}")
    k.L("Lt_nn")
    I("s_waitcnt vmcnt(6) lgkmcnt(0)")
    I("s_barrier")
    I(f"ds_read_b32 v{vNon}, v{t0}")
    I("s_waitcnt lgkmcnt(0)")
    flag_store(k, SFL, vNon, vOff0, sT2)
    I(f"s_add_u32 s{sT}, s{sRT}, {HF_LINE}")
    I(f"s_lshl_b32 s{sT}, s{sT}, 7")
    I(f"v_lshlrev_b32 v{t0}, 2, v{LANE}")
    I(f"v_mov_b32 v{t1}, 0x100000")
    I(f"v_cmp_gt_u32 vcc, 16, v0")
    I(f"v_cndmask_b32 v{t0}, v{t1}, v{t0}, vcc")
    poll(k, "Lt_h", SFL, t0, sT, 20, 1, vNon, sW, sC, sM, mask=(0xffff, 0))
    I("s_barrier")
    mark(k, diag, 12)
    I(f"s_lshl_b32 s{sT}, s{sRT}, 2")
    I(f"s_add_u32 s{sT}, s{sT}, s{sW}")
    I(f"s_lshl_b32 s{sT}, s{sT}, 4")
    I(f"s_lshr_b32 s{sT2}, s{sJ}, 2")
    I(f"s_and_b32 s{sT2}, s{sT2}, 3")
    I(f"s_lshl_b32 s{sT2}, s{sT2}, 2")
    I(f"s_add_u32 s{sT}, s{sT}, s{sT2}")
    I(f"s_mul_i32 s{sT}, s{sT}, 10240")
    I(f"s_lshr_b32 s{sT2}, s{sJ}, 1")
    I(f"s_and_b32 s{sT2}, s{sT2}, 1")
    I(f"s_mul_i32 s{sT2}, s{sT2}, 5120")
    I(f"s_add_u32 s{sT}, s{sT}, s{sT2}")
    P = 24
    for f in range(4):
        for m in range(3):
            I(f"s_add_u32 s{sT2}, s{sT}, {f*10240 + m*2048}")
            r = P + (f*3 + m)*4
            I(f"buffer_load_dwordx4 v[{r}:{r+3}], v{vP if m < 2 else vP2}, s[{SP}:{SP+3}], s{sT2} offen")
    vWD = 23
    sDo, sDs, sMs = 52, 53, 54
    I(f"v_lshrrev_b32 v{t2}, 2, v{LANE}")
    I(f"v_mul_u32_u24 v{vWD}, 3456, v{t2}")
    I(f"v_and_b32 v{t2}, 3, v{LANE}")
    I(f"v_lshl_add_u32 v{vWD}, v{t2}, 4, v{vWD}")
    I(f"v_lshlrev_b32 v{t2}, 4, v{LANE}")
    I(f"s_cmp_eq_u32 s{sW}, 3")
    I(f"s_cselect_b64 vcc, -1, 0")
    I(f"v_cndmask_b32 v{vWD}, v{vWD}, v{t2}, vcc")
    I(f"s_cmp_eq_u32 s{sW}, 1")
    I("s_cselect_b32 s64, s8, s10"); I("s_cselect_b32 s65, s9, s11")
    I(f"s_cmp_eq_u32 s{sW}, 3")
    I("s_cselect_b32 s64, s12, s64"); I("s_cselect_b32 s65, s13, s65")
    I(f"s_movk_i32 s{sDs}, 1024")
    I(f"s_cselect_b32 s{sDs}, s{sDs}, {16*3456}")
    I(f"s_lshl_b32 s{sDo}, s{sF}, 6")
    I(f"s_mul_i32 s{sMs}, s{sF}, {32*1280}")
    I(f"s_cmp_eq_u32 s{sW}, 3")
    I(f"s_cselect_b32 s{sDo}, s{sMs}, s{sDo}")
    I(f"s_mov_b32 s66, {640*1728*2}"); I("s_mov_b32 s67, 0x20000")
    I(f"s_cmp_ge_u32 s{sF}, {NFF}"); I("s_cselect_b32 s66, 0, s66")
    I(f"s_cmp_eq_u32 s{sW}, 0"); I("s_cselect_b32 s66, 0, s66")
    I(f"s_cselect_b32 s{sMs}, 0, 1024")
    I(f"s_sub_u32 s{sT2}, s{sW}, 1"); I(f"s_mul_i32 s{sT2}, s{sT2}, 40960")
    I(f"s_cmp_eq_u32 s{sW}, 0"); I(f"s_cselect_b32 s{sT2}, 122880, s{sT2}")
    I(f"s_mov_b32 m0, s{sT2}")
    ndma = [0]; cnt = [0]
    I0 = I
    def dma1():
        I0(f"buffer_load_dwordx4 v{vWD}, s[64:67], s{sDo} offen lds")
        I0(f"s_add_u32 m0, m0, s{sMs}")
        I0(f"s_add_u32 s{sDo}, s{sDo}, s{sDs}")
        ndma[0] += 1
    I("s_waitcnt vmcnt(0)")
    class _K:
        name = k.name
        def I(self, t, tag=None):
            I0(t); cnt[0] += 1
            if cnt[0] % 12 == 0 and ndma[0] < 40 and t.startswith("v_") and not t.startswith("v_cmp") and "exec" not in t: dma1()
        def L(self, l): k.L(l)
    kx = _K(); I = kx.I
    A = 124; HP = 72; H = 148; ta, tb = 17, 18
    for m in range(3):
        for q in range(4):
            i = m*8 + 2*q
            for f in range(4):
                r = P + (f*3 + m)*4 + q
                if f == 0:
                    I(f"v_lshlrev_b32 v{A+i}, 16, v{r}")
                    I(f"v_and_b32 v{A+i+1}, 0xffff0000, v{r}")
                else:
                    I(f"v_lshlrev_b32 v{ta}, 16, v{r}")
                    I(f"v_and_b32 v{tb}, 0xffff0000, v{r}")
                    I(f"v_add_f32 v{A+i}, v{A+i}, v{ta}")
                    I(f"v_add_f32 v{A+i+1}, v{A+i+1}, v{tb}")
            I(f"v_cvt_pk_bf16_f32 v{ta}, v{A+i}, v{A+i+1}")
            I(f"v_lshlrev_b32 v{A+i}, 16, v{ta}")
            I(f"v_and_b32 v{A+i+1}, 0xffff0000, v{ta}")
            I(f"v_lshlrev_b32 v{ta}, 16, v{XV+4*m+q}")
            I(f"v_and_b32 v{tb}, 0xffff0000, v{XV+4*m+q}")
            I(f"v_add_f32 v{A+i}, v{A+i}, v{ta}")
            I(f"v_add_f32 v{A+i+1}, v{A+i+1}, v{tb}")
            I(f"v_cvt_pk_bf16_f32 v{HP+4*m+q}, v{A+i}, v{A+i+1}")
            I(f"v_lshlrev_b32 v{H+i}, 16, v{HP+4*m+q}")
            I(f"v_and_b32 v{H+i+1}, 0xffff0000, v{HP+4*m+q}")
        k.I(f"buffer_store_dwordx4 v[{HP+4*m}:{HP+4*m+3}], v{vO if m < 2 else vO2}, s[{SH}:{SH+3}], 0 offen offset:{128*m} sc1", tag="th")
    def row_sum(v):
        I(f"v_add_f32 v{v}, v{v}, v{v} row_ror:8")
        I(f"v_mov_b32 v{tb}, v{v}")
        I(f"v_permlane16_swap_b32 v{v}, v{tb}")
        I(f"v_add_f32 v{v}, v{v}, v{tb}")
        I(f"v_mov_b32 v{tb}, v{v}")
        I(f"v_permlane32_swap_b32 v{v}, v{tb}")
        I(f"v_add_f32 v{v}, v{v}, v{tb}")
    S, M2, MU = 20, 21, 19
    I(f"v_add_f32 v{S}, v{H}, v{H+1}")
    I(f"v_add_f32 v{M2}, v{H+2}, v{H+3}")
    for i in range(4, 24, 2):
        I(f"v_add_f32 v{S}, v{S}, v{H+i}")
        I(f"v_add_f32 v{M2}, v{M2}, v{H+i+1}")
    I(f"v_add_f32 v{S}, v{S}, v{M2}")
    row_sum(S)
    I(f"v_mul_f32 v{MU}, {f32bits(1.0/160)}, v{S}")
    I(f"v_sub_f32 v{ta}, v{H}, v{MU}")
    I(f"v_mul_f32 v{M2}, v{ta}, v{ta}")
    for i in range(1, 16):
        I(f"v_sub_f32 v{ta}, v{H+i}, v{MU}")
        I(f"v_fmac_f32 v{M2}, v{ta}, v{ta}")
    for i in range(16, 24):
        I(f"v_sub_f32 v{ta}, v{H+i}, v{MU}")
        I(f"v_mul_f32 v{ta}, v{ta}, v{vVal}")
        I(f"v_fmac_f32 v{M2}, v{ta}, v{ta}")
    row_sum(M2)
    LX = 161792
    I(f"v_and_b32 v{t0}, 7, v{LANE}")
    I(f"v_lshlrev_b32 v{t0}, 5, v{t0}")
    I(f"v_add_u32 v{t0}, {LX}, v{t0}")
    I(f"s_lshl_b32 s{sT}, s{sW}, 3")
    I(f"v_add_u32 v{t1}, s{sT}, v{t0}")
    I(f"v_mov_b32 v{S}, v{MU}")
    I(f"ds_write_b64 v{t1}, v[{S}:{S+1}]")
    I("s_waitcnt lgkmcnt(0)")
    I("s_barrier")
    E = 84
    I(f"ds_read_b128 v[{E}:{E+3}], v{t0}")
    I(f"ds_read_b128 v[{E+4}:{E+7}], v{t0} offset:16")
    I("s_waitcnt lgkmcnt(0)")
    MEAN, VAR = 92, 93
    I(f"v_add_f32 v{MEAN}, v{E}, v{E+2}")
    I(f"v_add_f32 v{ta}, v{E+4}, v{E+6}")
    I(f"v_add_f32 v{MEAN}, v{MEAN}, v{ta}")
    I(f"v_mul_f32 v{MEAN}, 0.25, v{MEAN}")
    I(f"v_add_f32 v{VAR}, v{E+1}, v{E+3}")
    I(f"v_add_f32 v{ta}, v{E+5}, v{E+7}")
    I(f"v_add_f32 v{VAR}, v{VAR}, v{ta}")
    I(f"v_mov_b32 v{tb}, 0")
    for w in range(4):
        I(f"v_sub_f32 v{ta}, v{E+2*w}, v{MEAN}")
        I(f"v_fmac_f32 v{tb}, v{ta}, v{ta}")
    I(f"v_mov_b32 v{ta}, {f32bits(160.0)}")
    I(f"v_fmac_f32 v{VAR}, v{tb}, v{ta}")
    I(f"v_mul_f32 v{VAR}, {f32bits(1.0/640)}, v{VAR}")
    HN = 24
    ln_finish(kx, H, 24, MEAN, VAR, 96, HN, sEPS)
    RX = 94
    I(f"v_mov_b32 v{RX}, 0")
    O = 36
    for i in range(12):
        I(f"v_lshlrev_b32 v{ta}, 16, v{HN+i}")
        I(f"v_and_b32 v{tb}, 0xffff0000, v{HN+i}")
        I(f"v_lshlrev_b32 v48, 16, v{WRV+i}")
        I(f"v_and_b32 v49, 0xffff0000, v{WRV+i}")
        I(f"v_fmac_f32 v{RX}, v{ta}, v48")
        I(f"v_fmac_f32 v{RX}, v{tb}, v49")
        I(f"v_lshlrev_b32 v48, 16, v{HP+i}")
        I(f"v_and_b32 v49, 0xffff0000, v{HP+i}")
        I(f"v_add_f32 v{ta}, v{ta}, v48")
        I(f"v_add_f32 v{tb}, v{tb}, v49")
        I(f"v_cvt_pk_bf16_f32 v{O+i}, v{ta}, v{tb}")
    for m in range(3):
        I(f"buffer_store_dwordx4 v[{O+4*m}:{O+4*m+3}], v{vO if m < 2 else vO2}, s[{SOUT}:{SOUT+3}], 0 offen offset:{128*m} sc1")
    row_sum(RX)
    I(f"v_and_b32 v{t0}, 7, v{LANE}")
    I(f"v_lshlrev_b32 v{t0}, 4, v{t0}")
    I(f"v_add_u32 v{t0}, {LX + 512}, v{t0}")
    I(f"s_lshl_b32 s{sT}, s{sW}, 2")
    I(f"v_add_u32 v{t1}, s{sT}, v{t0}")
    I(f"ds_write_b32 v{t1}, v{RX}")
    while ndma[0] < 40: dma1()
    I = I0
    I("s_waitcnt lgkmcnt(0)")
    k.wait_vm("th", expect=3)
    I("s_barrier")
    I(f"ds_read_b128 v[{E}:{E+3}], v{t0}")
    I("s_waitcnt lgkmcnt(0)")
    I(f"v_add_f32 v{E}, v{E}, v{E+1}")
    I(f"v_add_f32 v{E+2}, v{E+2}, v{E+3}")
    I(f"v_add_f32 v{RX}, v{E}, v{E+2}")
    bf16_round(k, RX)
    I(f"v_mov_b32 v{RX+1}, v{vNon}")
    I(f"v_lshlrev_b32 v{t0}, 4, v{vRow}")
    I(f"v_cmp_gt_u32 vcc, 8, v0")
    I(f"v_cndmask_b32 v{t0}, v{t3}, v{t0}, vcc")
    I(f"buffer_store_dwordx4 v[{MEAN}:{MEAN+3}], v{t0}, s[{SRT}:{SRT+3}], 0 offen sc1")
    I("s_waitcnt vmcnt(0)")
    I("s_barrier")
    I(f"s_lshl_b32 s{sT2}, s2, 2")
    I(f"s_add_u32 s{sT2}, s{sT2}, {RTF_LINE*128}")
    flag_store(k, SFL, vNon, vOff0, sT2)
    mark(k, diag, 13)
    I(f"s_cmp_ge_u32 s{sF}, {NFF}")
    I(f"s_cbranch_scc1 {endlabel}")
    SYP = 60
    LG, LU, LD, LHN, LKEY, LPART, LA_ = 0, 40960, 81920, 155648, 158208, 158272, 160320
    srd(k, SYP, 14, 15, YP_SIZE, YP_OFF)
    ST = 64
    I(f"v_lshlrev_b32 v{t0}, 4, v0")
    I(f"s_mov_b32 s{sC}, {SPIN_MAX}")
    k.L("Lt_rt_spin")
    for e in range(8):
        I(f"s_mov_b32 s{sT}, {e*4096}")
        I(f"buffer_load_dwordx4 v[{ST+4*e}:{ST+4*e+3}], v{t0}, s[{SRT}:{SRT+3}], s{sT} offen sc1"); k.vm.pop()
    I("s_waitcnt vmcnt(0)")
    I(f"v_cmp_eq_u32 vcc, v{vNon}, v{ST+3}")
    for e in range(1, 8):
        I(f"v_cmp_eq_u32 s[{sM}:{sM+1}], v{vNon}, v{ST+4*e+3}")
        I(f"s_and_b64 vcc, vcc, s[{sM}:{sM+1}]")
    I(f"s_sub_u32 s{sC}, s{sC}, 1")
    I("s_cbranch_scc1 Lt_rt_ok")
    I("s_cmp_eq_u64 vcc, -1")
    I("s_cbranch_scc0 Lt_rt_spin")
    k.L("Lt_rt_ok")
    mark(k, diag, 14)
    K1, K2, RR = 96, 97, 100
    I(f"v_mov_b32 v{K1}, 0")
    I(f"v_mov_b32 v{K2}, 0")
    for e in range(8):
        I(f"v_ashrrev_i32 v{t1}, 31, v{ST+4*e+2}")
        I(f"v_or_b32 v{t1}, 0x80000000, v{t1}")
        I(f"v_xor_b32 v{RR}, v{ST+4*e+2}, v{t1}")
        I(f"v_and_b32 v{RR}, 0xfffff800, v{RR}")
        I(f"v_sub_u32 v{t1}, {2047 - 256*e}, v0")
        I(f"v_or_b32 v{RR}, v{RR}, v{t1}")
        I(f"v_med3_u32 v{K2}, v{K1}, v{K2}, v{RR}")
        I(f"v_max_u32 v{K1}, v{K1}, v{RR}")
    T1, T2 = 16, 17
    I(f"v_mov_b32 v{T1}, v{K1}")
    wave_allreduce(k, "v_max_u32", T1, t1)
    I(f"v_cmp_eq_u32 vcc, v{T1}, v{K1}")
    I(f"v_cndmask_b32 v{T2}, v{K1}, v{K2}, vcc")
    wave_allreduce(k, "v_max_u32", T2, t1)
    I(f"s_lshl_b32 s{sT}, s{sW}, 3")
    I(f"v_mov_b32 v{t1}, s{sT}")
    I(f"v_add_u32 v{t1}, {LKEY}, v{t1}")
    I(f"ds_write_b64 v{t1}, v[{T1}:{T1+1}]")
    I("s_waitcnt lgkmcnt(0)")
    I("s_barrier")
    KK = 20
    I(f"v_mov_b32 v{t1}, {LKEY}")
    I(f"ds_read_b128 v[{KK}:{KK+3}], v{t1}")
    I(f"ds_read_b128 v[{KK+4}:{KK+7}], v{t1} offset:16")
    I("s_waitcnt lgkmcnt(0)")
    I(f"v_mov_b32 v{K1}, 0")
    I(f"v_mov_b32 v{K2}, 0")
    for j in range(8):
        I(f"v_med3_u32 v{K2}, v{K1}, v{K2}, v{KK+j}")
        I(f"v_max_u32 v{K1}, v{K1}, v{KK+j}")
    for kx in (K1, K2):
        I(f"v_and_b32 v{kx}, 0x7ff, v{kx}")
        I(f"v_sub_u32 v{kx}, 2047, v{kx}")
    I(f"v_bfe_u32 v{t1}, v{LANE}, 4, 1")
    I(f"v_cmp_eq_u32 vcc, 0, v{t1}")
    I(f"v_cndmask_b32 v{t3}, v{K2}, v{K1}, vcc")
    vRowSel = 13
    I(f"v_mov_b32 v{vRowSel}, v{t3}")
    I(f"v_lshlrev_b32 v{t2}, 4, v{t3}")
    REC = 56
    I(f"buffer_load_dwordx4 v[{REC}:{REC+3}], v{t2}, s[{SRT}:{SRT+3}], 0 offen sc1")
    I(f"v_mul_u32_u24 v{t3}, 1280, v{t3}")
    I(f"v_and_b32 v{t0}, 15, v{LANE}")
    I(f"v_lshl_add_u32 v{t3}, v{t0}, 4, v{t3}")
    HX, HN = 16, 36
    for u in range(5):
        I(f"buffer_load_dwordx4 v[{HX+4*u}:{HX+4*u+3}], v{t3}, s[{SH}:{SH+3}], 0 offen offset:{256*u}")
    I("s_waitcnt vmcnt(0)")
    X = 164
    for i in range(20):
        I(f"v_lshlrev_b32 v{X}, 16, v{HX+i}")
        I(f"v_and_b32 v{X+1}, 0xffff0000, v{HX+i}")
        I(f"v_sub_f32 v{X}, v{X}, v{REC}")
        I(f"v_sub_f32 v{X+1}, v{X+1}, v{REC}")
        I(f"v_cvt_pk_bf16_f32 v{X+2}, v{X}, v{X+1}")
        I(f"v_lshlrev_b32 v{X}, 16, v{X+2}")
        I(f"v_and_b32 v{X+1}, 0xffff0000, v{X+2}")
        I(f"v_mul_f32 v{X}, v{X}, v{REC+1}")
        I(f"v_mul_f32 v{X+1}, v{X+1}, v{REC+1}")
        I(f"v_cvt_pk_bf16_f32 v{HN+i}, v{X}, v{X+1}")
    RSEL = 60
    I(f"v_mul_f32 v{RSEL}, {f32bits(-1.4426950408889634)}, v{REC+2}")
    I(f"v_exp_f32 v{RSEL}, v{RSEL}")
    I(f"v_add_f32 v{RSEL}, 1.0, v{RSEL}")
    I(f"v_rcp_f32 v{RSEL}, v{RSEL}")
    bf16_round(k, RSEL)
    I(f"v_bfe_u32 v{t1}, v{LANE}, 4, 1")
    I(f"v_mul_u32_u24 v{t1}, 1280, v{t1}")
    I(f"v_lshl_add_u32 v{t1}, v{t0}, 4, v{t1}")
    I(f"v_add_u32 v{t2}, {LHN}, v{t1}")
    I(f"s_cmp_lg_u32 s{sW}, 0")
    I("s_cbranch_scc1 Lt_w0done")
    for u in range(5):
        I(f"ds_write_b128 v{t2}, v[{HN+4*u}:{HN+4*u+3}] offset:{256*u}")
    I(f"v_bfe_u32 v{t2}, v{LANE}, 4, 1")
    I(f"v_lshlrev_b32 v{t2}, 3, v{t2}")
    I(f"v_add_u32 v{t2}, {LKEY+32}, v{t2}")
    I(f"v_mov_b32 v62, v{vRowSel}")
    I(f"v_mov_b32 v63, v{RSEL}")
    I(f"ds_write_b64 v{t2}, v[62:63]")
    k.L("Lt_w0done")
    I("s_waitcnt vmcnt(0) lgkmcnt(0)")
    I("s_barrier")
    I(f"s_mul_i32 s51, s{sW}, {160*64}")
    I(f"v_and_b32 v{t0}, 1, v{LANE}")
    I(f"v_mul_u32_u24 v{t0}, 1280, v{t0}")
    I(f"v_lshrrev_b32 v{t1}, 4, v{LANE}")
    I(f"v_lshl_add_u32 v{t0}, v{t1}, 4, v{t0}")
    I(f"s_mul_i32 s{sT}, s{sW}, 320")
    I(f"s_add_u32 s{sT}, s{sT}, {LHN}")
    I(f"v_add_u32 v{t0}, s{sT}, v{t0}")
    I(f"v_bfe_u32 v{t2}, v{LANE}, 2, 2")
    I(f"v_lshl_add_u32 v{t2}, v{t1}, 3, v{t2}")
    I(f"v_lshlrev_b32 v{t2}, 6, v{t2}")
    I(f"v_and_b32 v{t3}, 3, v{LANE}")
    I(f"v_lshl_add_u32 v{t2}, v{t3}, 3, v{t2}")
    I(f"v_add_u32 v{t2}, s51, v{t2}")
    AF, BF = 16, 100
    for s_ in range(5): I(f"ds_read_b128 v[{AF+4*s_}:{AF+4*s_+3}], v{t0} offset:{64*s_}")
    for mi, LB in enumerate((LG, LU)):
        for ft in range(2):
            for s_ in range(5):
                r = BF + ((mi*2 + ft)*5 + s_)*4
                I(f"ds_read_b64_tr_b16 v[{r}:{r+1}], v{t2} offset:{LB + s_*2048 + ft*32}")
                I(f"ds_read_b64_tr_b16 v[{r+2}:{r+3}], v{t2} offset:{LB + s_*2048 + ft*32 + 256}")
    I("s_waitcnt lgkmcnt(0)")
    D = 72
    for s_ in range(5):
        for q in range(4):
            r = BF + (q*5 + s_)*4
            I(f"v_mfma_f32_16x16x32_bf16 v[{D+4*q}:{D+4*q+3}], v[{AF+4*s_}:{AF+4*s_+3}], v[{r}:{r+3}], " + ("0" if s_ == 0 else f"v[{D+4*q}:{D+4*q+3}]"))
    I(f"v_and_b32 v{t0}, 15, v{LANE}")
    I(f"v_lshlrev_b32 v{t0}, 2, v{t0}")
    I(f"s_lshl_b32 s{sT}, s{sW}, 9")
    I(f"s_add_u32 s{sT}, s{sT}, {LPART}")
    I(f"v_add_u32 v{t0}, s{sT}, v{t0}")
    I("s_mov_b32 exec_lo, 0xffff")
    I("s_mov_b32 exec_hi, 0")
    for mi in range(2):
        for ft in range(2):
            for tok in range(2):
                I(f"ds_write_b32 v{t0}, v{D+4*(mi*2+ft)+tok} offset:{(mi*2+tok)*128 + ft*64}")
    I("s_mov_b64 exec, -1")
    I("s_waitcnt lgkmcnt(0)")
    I("s_barrier")
    I(f"v_lshlrev_b32 v{t0}, 2, v{LANE}")
    I(f"v_add_u32 v{t0}, {LPART}, v{t0}")
    for w in range(4):
        I(f"ds_read_b32 v{16+w}, v{t0} offset:{w*512}")
        I(f"ds_read_b32 v{20+w}, v{t0} offset:{w*512 + 256}")
    I("s_waitcnt lgkmcnt(0)")
    for b in (16, 20):
        I(f"v_add_f32 v{b}, v{b}, v{b+1}")
        I(f"v_add_f32 v{b+2}, v{b+2}, v{b+3}")
        I(f"v_add_f32 v{b}, v{b}, v{b+2}")
        bf16_round(k, b)
    I(f"v_mul_f32 v17, {f32bits(-1.4426950408889634)}, v16")
    I(f"v_exp_f32 v17, v17")
    I(f"v_add_f32 v17, 1.0, v17")
    I(f"v_rcp_f32 v17, v17")
    I(f"v_mul_f32 v16, v16, v17")
    bf16_round(k, 16)
    I(f"v_mul_f32 v16, v16, v20")
    I(f"v_cvt_pk_bf16_f32 v16, v16, v16")
    I(f"v_lshlrev_b32 v{t1}, 1, v{LANE}")
    I(f"v_add_u32 v{t1}, {LA_}, v{t1}")
    I(f"ds_write_b16 v{t1}, v16")
    I("s_waitcnt lgkmcnt(0)")
    I(f"v_and_b32 v{t0}, 1, v{LANE}")
    I(f"v_lshlrev_b32 v{t0}, 6, v{t0}")
    I(f"v_lshrrev_b32 v{t1}, 4, v{LANE}")
    I(f"v_lshl_add_u32 v{t0}, v{t1}, 4, v{t0}")
    I(f"v_add_u32 v{t0}, {LA_}, v{t0}")
    I(f"ds_read_b128 v[16:19], v{t0}")
    I(f"v_bfe_u32 v{t2}, v{LANE}, 2, 2")
    I(f"v_lshl_add_u32 v{t2}, v{t1}, 3, v{t2}")
    I(f"v_mul_u32_u24 v{t2}, 1280, v{t2}")
    I(f"v_and_b32 v{t3}, 3, v{LANE}")
    I(f"v_lshl_add_u32 v{t2}, v{t3}, 3, v{t2}")
    I(f"s_mul_i32 s{sT}, s{sW}, 320")
    I(f"s_add_u32 s{sT}, s{sT}, {LD}")
    I(f"v_add_u32 v{t2}, s{sT}, v{t2}")
    for nt in range(10):
        r = 100 + 4*nt
        I(f"ds_read_b64_tr_b16 v[{r}:{r+1}], v{t2} offset:{nt*32}")
        I(f"ds_read_b64_tr_b16 v[{r+2}:{r+3}], v{t2} offset:{nt*32 + 4*1280}")
    I("s_waitcnt lgkmcnt(0)")
    for nt in range(10):
        I(f"v_mfma_f32_16x16x32_bf16 v[{140+4*nt}:{143+4*nt}], v[16:19], v[{100+4*nt}:{103+4*nt}], 0")
    I(f"v_and_b32 v{t0}, 15, v{LANE}")
    I(f"v_lshlrev_b32 v{t0}, 4, v{t0}")
    I(f"v_mov_b32 v{t1}, 0x4000000")
    I(f"v_cmp_gt_u32 vcc, 16, v{LANE}")
    I(f"v_cndmask_b32 v{t0}, v{t1}, v{t0}, vcc")
    I(f"s_mul_i32 s{sT}, s{sF}, 10240")
    I(f"s_mul_i32 s{sT2}, s{sW}, 2560")
    I(f"s_add_u32 s{sT}, s{sT}, s{sT2}")
    for nt in range(10):
        I(f"v_mov_b32 v{142+4*nt}, v{vNon}")
        I(f"v_mov_b32 v{143+4*nt}, v{vNon}")
    for nt in range(10):
        I(f"buffer_store_dwordx4 v[{140+4*nt}:{143+4*nt}], v{t0}, s[{SYP}:{SYP+3}], s{sT} offen offset:{nt*256} sc1")
    mark(k, diag, 15)
    I(f"s_cmp_ge_u32 s{sF}, 20")
    I(f"s_cbranch_scc1 {endlabel}")
    sTok, sCc = 51, 52
    I(f"s_cmp_ge_u32 s{sF}, 10")
    I(f"s_cselect_b32 s{sTok}, 1, 0")
    I(f"s_mul_i32 s{sT}, s{sTok}, 10")
    I(f"s_sub_u32 s{sCc}, s{sF}, s{sT}")
    I(f"s_lshl_b32 s{sT}, s{sCc}, 6")
    I(f"v_add_u32 v16, s{sT}, v{LANE}")
    I(f"s_lshl_b32 s{sT}, s{sTok}, 3")
    I(f"s_add_u32 s{sT}, s{sT}, {LKEY+32}")
    I(f"v_mov_b32 v17, s{sT}")
    I(f"ds_read_b64 v[18:19], v17")
    I(f"s_mul_i32 s{sT}, s{sTok}, 1280")
    I(f"s_add_u32 s{sT}, s{sT}, {LHN}")
    I(f"v_lshlrev_b32 v20, 1, v16")
    I(f"v_add_u32 v21, s{sT}, v20")
    I(f"ds_read_u16 v22, v21")
    I("s_waitcnt lgkmcnt(0)")
    I(f"v_mul_u32_u24 v23, 1280, v18")
    I(f"v_add_u32 v23, v23, v20")
    I(f"buffer_load_ushort v24, v23, s[{SH}:{SH+3}], 0 offen")
    I(f"v_lshlrev_b32 v{t0}, 4, v{LANE}")
    I(f"s_mov_b32 s{sT}, {RTF_LINE*128}")
    poll(k, "Lt_rtf", SFL, t0, sT, 28, 4, vNon, sW, sC, sM, mask=(0xffffffff, 0xffffffff))
    I("s_barrier")
    I(f"v_lshlrev_b32 v26, 4, v16")
    I(f"s_mul_i32 s{sT2}, s{sW}, {14*10240}")
    I(f"s_mov_b32 s{sC}, {SPIN_MAX}")
    YB = 100
    k.L("Lt_y_spin")
    for j in range(14):
        I(f"s_add_u32 s{sT}, s{sT2}, {j*10240}")
        I(f"buffer_load_dwordx4 v[{YB+4*j}:{YB+4*j+3}], v26, s[{SYP}:{SYP+3}], s{sT} offen sc1"); k.vm.pop()
    I("s_waitcnt vmcnt(0)")
    I(f"v_cmp_eq_u32 vcc, v{vNon}, v{YB+2}")
    for j in range(1, 12):
        I(f"v_cmp_eq_u32 s[{sM}:{sM+1}], v{vNon}, v{YB+4*j+2}")
        I(f"s_and_b64 vcc, vcc, s[{sM}:{sM+1}]")
    I(f"s_cmp_eq_u32 s{sW}, 3")
    I("s_cbranch_scc1 Lt_y_chk")
    for j in range(12, 14):
        I(f"v_cmp_eq_u32 s[{sM}:{sM+1}], v{vNon}, v{YB+4*j+2}")
        I(f"s_and_b64 vcc, vcc, s[{sM}:{sM+1}]")
    k.L("Lt_y_chk")
    I(f"s_sub_u32 s{sC}, s{sC}, 1")
    I("s_cbranch_scc1 Lt_y_ok")
    I("s_cmp_eq_u64 vcc, -1")
    I("s_cbranch_scc0 Lt_y_spin")
    k.L("Lt_y_ok")
    I(f"s_cmp_eq_u32 s{sTok}, 0")
    I("s_cselect_b64 vcc, -1, 0")
    for j in range(14): I(f"v_cndmask_b32 v{32+j}, v{YB+4*j+1}, v{YB+4*j}, vcc")
    for j in range(1, 14): I(f"v_add_f32 v32, v32, v{32+j}")
    I(f"v_lshlrev_b32 v27, 2, v0")
    I(f"v_add_u32 v27, {LPART}, v27")
    I(f"ds_write_b32 v27, v32")
    I("s_waitcnt lgkmcnt(0)")
    I("s_barrier")
    I(f"s_cmp_lg_u32 s{sW}, 0")
    I(f"s_cbranch_scc1 {endlabel}")
    I(f"v_lshlrev_b32 v27, 2, v{LANE}")
    I(f"v_add_u32 v27, {LPART}, v27")
    for q in range(4): I(f"ds_read_b32 v{32+q}, v27 offset:{256*q}")
    I("s_waitcnt lgkmcnt(0)")
    I("v_add_f32 v32, v32, v33")
    I("v_add_f32 v34, v34, v35")
    I("v_add_f32 v32, v32, v34")
    bf16_round(k, 32)
    I("v_mul_f32 v32, v32, v19")
    bf16_round(k, 32)
    I("v_lshlrev_b32 v22, 16, v22")
    I("v_add_f32 v32, v32, v22")
    bf16_round(k, 32)
    I("v_lshlrev_b32 v24, 16, v24")
    I("v_add_f32 v32, v32, v24")
    I("v_cvt_pk_bf16_f32 v32, v32, v32")
    I(f"buffer_store_short v32, v23, s[{SOUT}:{SOUT+3}], 0 offen sc1")
```

```python
import sys, os
sys.path.insert(0, os.path.dirname(__file__))
from common import *
NAME = "sequential_preLN__compressed_kv_cla__moe_arch_mod__prompt"
HEADER = """; Kernarg layout (112 bytes, ptrs only): x, c_kv, w_q, w_uk, w_uv, w_o, B_x, w_r, w_gate, w_up, w_down, out, debug, ws
"""
def build(kernels, path):
    out = [HEADER]
    for (k, v, a, lds, grid, block) in kernels:
        out.append(f"; @launch kernel={k.name} grid=({grid},1,1) block=({block},1,1) lds={lds}\n")
    out.append('.amdgcn_target "amdgcn-amd-amdhsa--gfx950"\n.text\n')
    descs = []
    for (k, v, a, lds, grid, block) in kernels:
        body, desc = kernel_text(k, v, a)
        out.append(body); descs.append(desc)
    out.append("Lcode_end:\n    s_endpgm\n")
    out.append('.section .rodata,"a"\n')
    for d in descs: out.append(".p2align 6\n" + d)
    txt = "".join(out)
    if len(kernels) == 1 and os.environ.get("PLAIN"):
        k, v, a, lds, grid, block = kernels[0]
        txt = txt.replace(f"; @launch kernel={k.name} grid", "; @launch grid").replace(k.name, NAME + "_kernel")
    open(path, "w").write(txt)

def all_kernels(diag=False, upto=99, opts={}):
    ks = []
    import k2 as _k2
    _k2.SPLITK = bool(opts.get("fused", True) and opts.get("splitk", True) and not opts.get("k3c", True))
    _k2.RETILE = True
    if opts.get("fused", True):
        from k12 import gen_k12
        k, v, a, lds = gen_k12(diag, **opts.get("k12", {})); ks.append((k, v, a, lds, 256, 256))
        if opts.get("k3c", True):
            _k2.RETILE = False
            _k2.CODEPF2 = bool(opts.get("codepf2", False))
            from k3c import gen_k3c
            from k5 import gen_k5, gen_k6
            ks.clear()
            k, v, a, lds = gen_k12(diag, **opts.get("k12", {})); ks.append((k, v, a, lds, 256, 256))
            f3 = opts.get("k12", {}).get("FUSE3", True)
            if not f3:
                k, v, a, lds = gen_k3c(diag, kidx=1, **opts.get("k3", {})); ks.append((k, v, a, lds, 256, 256))
            if f3 and opts.get("k12", {}).get("ALLTAIL", True): return ks
            k, v, a, lds, grid = gen_k5(diag, kidx=1 if f3 else 2); ks.append((k, v, a, lds, grid, 256))
            k, v, a, lds, grid = gen_k6(diag, kidx=2 if f3 else 3); ks.append((k, v, a, lds, grid, 256))
            return ks
        if opts.get("splitk", True):
            from k3b import gen_k3b
            from k4 import gen_k4
            from k5 import gen_k5, gen_k6
            k, v, a, lds = gen_k3b(diag, kidx=1, **opts.get("k3", {})); ks.append((k, v, a, lds, 256, 256))
            k, v, a, lds, grid = gen_k4(diag, kidx=2); ks.append((k, v, a, lds, grid, 640))
            k, v, a, lds, grid = gen_k5(diag, kidx=3, rt=True); ks.append((k, v, a, lds, grid, 256))
            k, v, a, lds, grid = gen_k6(diag, kidx=4); ks.append((k, v, a, lds, grid, 256))
            return ks
        if upto >= 3:
            from k3 import gen_k3
            k, v, a, lds = gen_k3(diag, kidx=1, **opts.get("k3", {})); ks.append((k, v, a, lds, 256, 256))
        if upto >= 4:
            from k5 import gen_k5, gen_k6
            k, v, a, lds, grid = gen_k5(diag, kidx=2, **opts.get("k5", {})); ks.append((k, v, a, lds, grid, 256))
            k, v, a, lds, grid = gen_k6(diag, kidx=3, **opts.get("k6", {})); ks.append((k, v, a, lds, grid, 256))
        return ks
    from k1 import gen_k1
    k, v, a, lds = gen_k1(diag, **opts.get("k1", {})); ks.append((k, v, a, lds, 256, 256))
    if upto >= 2:
        from k2 import gen_k2
        k, v, a, lds = gen_k2(diag, **opts.get("k2", {})); ks.append((k, v, a, lds, 256, 256))
    if upto >= 3:
        from k3 import gen_k3
        k, v, a, lds = gen_k3(diag, **opts.get("k3", {})); ks.append((k, v, a, lds, 256, 256))
    if upto >= 4:
        from k5 import gen_k5, gen_k6
        k, v, a, lds, grid = gen_k5(diag, **opts.get("k5", {})); ks.append((k, v, a, lds, grid, 256))
        k, v, a, lds, grid = gen_k6(diag, **opts.get("k6", {})); ks.append((k, v, a, lds, grid, 256))
    return ks

if __name__ == "__main__":
    upto = int(sys.argv[1]) if len(sys.argv) > 1 else 99
    diag = len(sys.argv) > 2 and sys.argv[2] == "diag"
    path = sys.argv[3] if len(sys.argv) > 3 else f"cdna_kernels/{NAME}.s"
    import json
    opts = json.loads(os.environ.get("OPTS", "{}"))
    build(all_kernels(diag, upto, opts), path)
    print("wrote", path, os.path.getsize(path))
```

```python
from common import *
from k12 import SPIN_MAX
from k5 import wave_allreduce
NFF = 54
HF_LINE, RTF_LINE, YF_LINE = 224, 288, 296

def flag_store(k, SFL, vNon, vOff0, sOff):
    k.I(f"buffer_store_dword v{vNon}, v{vOff0}, s[{SFL}:{SFL+3}], s{sOff} offen sc1")

def poll(k, name, SFL, vAddr, sOff, vData, nreg, vNon, sW, sC, sM, full64=False, mask=None):
    I = k.I
    ld = {1: f"buffer_load_dword v{vData}", 4: f"buffer_load_dwordx4 v[{vData}:{vData+3}]"}[nreg]
    I(f"s_cmp_lg_u32 s{sW}, 0")
    I(f"s_cbranch_scc1 {name}_ok")
    I(f"s_mov_b32 s{sC}, {SPIN_MAX}")
    k.L(name + "_spin")
    I(f"{ld}, v{vAddr}, s[{SFL}:{SFL+3}], s{sOff} offen sc1"); k.vm.pop()
    I("s_waitcnt vmcnt(0)")
    I(f"v_cmp_eq_u32 vcc, v{vNon}, v{vData}")
    for q in range(1, nreg):
        I(f"v_cmp_eq_u32 s[{sM}:{sM+1}], v{vNon}, v{vData+q}")
        I(f"s_and_b64 vcc, vcc, s[{sM}:{sM+1}]")
    I(f"s_sub_u32 s{sC}, s{sC}, 1")
    I(f"s_cbranch_scc1 {name}_ok")
    lo, hi = mask
    I(f"s_and_b32 s{sM}, vcc_lo, {hex(lo)}")
    I(f"s_and_b32 s{sM+1}, vcc_hi, {hex(hi)}")
    I(f"s_cmp_eq_u32 s{sM}, {hex(lo)}")
    I(f"s_cbranch_scc0 {name}_spin")
    I(f"s_cmp_eq_u32 s{sM+1}, {hex(hi)}")
    I(f"s_cbranch_scc0 {name}_spin")
    k.L(name + "_ok")

def ffn_dma(k, sW, sT, sT2, sC, t2, LANE):
    I = k.I
    LG, LU, LD = 0, 40960, 81920
    vWD, vL16 = 21, 22
    I(f"s_cmp_ge_u32 s2, {NFF}")
    I("s_cbranch_scc1 Lt_nodma")
    I(f"s_cmp_eq_u32 s{sW}, 0")
    I("s_cbranch_scc1 Lt_nodma")
    I(f"v_lshrrev_b32 v{t2}, 2, v{LANE}")
    I(f"v_mul_u32_u24 v{vWD}, 3456, v{t2}")
    I(f"v_and_b32 v{t2}, 3, v{LANE}")
    I(f"v_lshl_add_u32 v{vWD}, v{t2}, 4, v{vWD}")
    I(f"v_lshlrev_b32 v{vL16}, 4, v{LANE}")
    I(f"s_cmp_eq_u32 s{sW}, 3")
    I("s_cbranch_scc1 Lt_dma_down")
    I(f"s_cmp_eq_u32 s{sW}, 1")
    I("s_cselect_b32 s64, s8, s10"); I("s_cselect_b32 s65, s9, s11")
    I(f"s_cselect_b32 s{sT2}, {LG}, {LU}")
    I(f"s_mov_b32 s66, {640*1728*2}"); I("s_mov_b32 s67, 0x20000")
    I(f"s_lshl_b32 s{sT}, s2, 6")
    for u in range(40):
        I(f"s_add_u32 m0, s{sT2}, {u*1024}")
        I(f"s_add_u32 s{sC}, s{sT}, {u*16*3456}")
        I(f"buffer_load_dwordx4 v{vWD}, s[64:67], s{sC} offen lds")
    I("s_waitcnt vmcnt(40)")
    I("s_branch Lt_dmadone")
    k.L("Lt_dma_down")
    I("s_mov_b32 s64, s12"); I("s_mov_b32 s65, s13"); I(f"s_mov_b32 s66, {1728*640*2}"); I("s_mov_b32 s67, 0x20000")
    I(f"s_mul_i32 s{sT}, s2, {32*1280}")
    for u in range(40):
        if u % 4 == 0:
            I(f"s_mov_b32 m0, {LD + u*1024}")
            I(f"s_add_u32 s{sC}, s{sT}, {u*1024}")
        I(f"buffer_load_dwordx4 v{vL16}, s[64:67], s{sC} offen offset:{(u % 4)*1024} lds")
    I("s_waitcnt vmcnt(40)")
    I("s_branch Lt_dmadone")
    k.L("Lt_nodma")
    I("s_waitcnt vmcnt(0)")
    k.L("Lt_dmadone")

def emit_tail(k, diag, sKS, sRT, sCT, sNonceIn, endlabel):
    I = k.I
    import os
    def lnf(i):
        if os.environ.get("LNFINE"): mark(k, diag, i)
    LANE = 2
    sW = 40
    sT, sT2, sEPS, sC, sM = 44, 45, 46, 47, 48
    SFL, SH, SOUT, SWR, SRT, SP, SX = 56, 16, 20, 24, 28, 32, 36
    vNon, vOff0, t0, t1, t2, t3 = 3, 4, 5, 6, 7, 8
    I(f"s_load_dwordx2 s[4:5], s[0:1], {KA['wr']}")
    I(f"s_load_dwordx2 s[6:7], s[0:1], {KA['out']}")
    I(f"s_load_dwordx4 s[8:11], s[0:1], {KA['wg']}")
    I(f"s_load_dwordx2 s[12:13], s[0:1], {KA['wd']}")
    I(f"s_load_dwordx2 s[62:63], s[0:1], {KA['x']}")
    srd(k, SFL, 14, 15, FLG_SIZE, FLG_OFF)
    srd(k, SP, 14, 15, PART_SIZE, PART_OFF)
    I(f"v_mov_b32 v{vNon}, s{sNonceIn}")
    I(f"v_mov_b32 v{t0}, 0x100000")
    I(f"v_mov_b32 v{t1}, 0")
    I(f"v_cmp_eq_u32 vcc, 0, v0")
    I(f"v_cndmask_b32 v{vOff0}, v{t0}, v{t1}, vcc")
    sF = 101
    I(f"s_lshr_b32 s{sT}, s2, 5")
    I(f"s_sub_u32 s{sT}, 7, s{sT}")
    I(f"s_lshl_b32 s{sF}, s{sT}, 5")
    I(f"s_and_b32 s{sT}, s2, 1")
    I(f"s_lshl_b32 s{sT}, s{sT}, 4")
    I(f"s_add_u32 s{sF}, s{sF}, s{sT}")
    I(f"s_lshl_b32 s{sT}, s{sKS}, 2")
    I(f"s_add_u32 s{sF}, s{sF}, s{sT}")
    I(f"s_add_u32 s{sF}, s{sF}, s{sCT}")
    sJ = 51
    I(f"s_lshl_b32 s{sJ}, s{sRT}, 4")
    I(f"s_lshl_b32 s{sT}, s{sKS}, 2")
    I(f"s_add_u32 s{sJ}, s{sJ}, s{sT}")
    I(f"s_add_u32 s{sJ}, s{sJ}, s{sCT}")
    I("s_waitcnt lgkmcnt(0)")
    srd(k, SX, 62, 63, 2048*640*2)
    srd(k, SWR, 4, 5, 1280)
    srd(k, SOUT, 6, 7, 2048*640*2)
    srd(k, SH, 14, 15, H_SIZE, H_OFF)
    srd(k, SRT, 14, 15, RT_SIZE, RT_OFF)
    I(f"s_mov_b32 s{sEPS}, {f32bits(1e-5)}")
    vRow, vO, vWo, vP = 9, 10, 11, 12
    I(f"v_and_b32 v{t0}, 7, v{LANE}")
    I(f"s_lshl_b32 s{sT}, s{sJ}, 3")
    I(f"v_add_u32 v{vRow}, s{sT}, v{t0}")
    I(f"v_bfe_u32 v{t1}, v{LANE}, 3, 2")
    I(f"v_lshrrev_b32 v{t2}, 5, v{LANE}")
    I(f"v_lshlrev_b32 v{vWo}, 4, v{t1}")
    I(f"v_lshl_add_u32 v{vWo}, v{t2}, 6, v{vWo}")
    I(f"s_mul_i32 s{sT}, s{sW}, 320")
    I(f"v_add_u32 v{vWo}, s{sT}, v{vWo}")
    I(f"v_mul_u32_u24 v{vO}, 1280, v{vRow}")
    I(f"v_add_u32 v{vO}, v{vO}, v{vWo}")
    I(f"v_lshlrev_b32 v{vP}, 10, v{t2}")
    I(f"v_lshl_add_u32 v{vP}, v{t1}, 8, v{vP}")
    I(f"s_and_b32 s{sT}, s{sJ}, 1")
    I(f"s_lshl_b32 s{sT}, s{sT}, 3")
    I(f"v_add_u32 v{t0}, s{sT}, v{t0}")
    I(f"v_lshl_add_u32 v{vP}, v{t0}, 4, v{vP}")
    vO2, vWo2, vP2, vVal = 13, 14, 15, 16
    I(f"v_mov_b32 v{t3}, 0x4000000")
    I(f"v_cmp_gt_u32 vcc, 32, v{LANE}")
    I(f"v_cndmask_b32 v{vO2}, v{t3}, v{vO}, vcc")
    I(f"v_cndmask_b32 v{vWo2}, v{t3}, v{vWo}, vcc")
    I(f"v_cndmask_b32 v{vP2}, v{t3}, v{vP}, vcc")
    I(f"v_cndmask_b32 v{vVal}, 0, 1.0, vcc")
    XV, WRV = 100, 112
    for m in range(3):
        I(f"buffer_load_dwordx4 v[{XV+4*m}:{XV+4*m+3}], v{vO if m < 2 else vO2}, s[{SX}:{SX+3}], 0 offen offset:{128*m}")
        I(f"buffer_load_dwordx4 v[{WRV+4*m}:{WRV+4*m+3}], v{vWo if m < 2 else vWo2}, s[{SWR}:{SWR+3}], 0 offen offset:{128*m}")
    I(f"s_add_u32 s{sT}, s{sRT}, {HF_LINE}")
    I(f"s_lshl_b32 s{sT}, s{sT}, 7")
    I(f"s_lshl_b32 s{sT2}, s{sCT}, 2")
    I(f"s_add_u32 s{sT2}, s{sT2}, s{sKS}")
    I(f"s_lshl_b32 s{sT2}, s{sT2}, 2")
    I(f"s_add_u32 s{sT2}, s{sT2}, s{sT}")
    I(f"v_mov_b32 v{t0}, {161792 + 768}")
    I(f"s_cmp_lg_u32 s{sW}, 0")
    I("s_cbranch_scc1 Lt_nn")
    I(f"ds_write_b32 v{t0}, v{vNon}")
    k.L("Lt_nn")
    I("s_waitcnt vmcnt(6) lgkmcnt(0)")
    I("s_barrier")
    I(f"ds_read_b32 v{vNon}, v{t0}")
    I("s_waitcnt lgkmcnt(0)")
    flag_store(k, SFL, vNon, vOff0, sT2)
    I(f"s_add_u32 s{sT}, s{sRT}, {HF_LINE}")
    I(f"s_lshl_b32 s{sT}, s{sT}, 7")
    I(f"v_lshlrev_b32 v{t0}, 2, v{LANE}")
    I(f"v_mov_b32 v{t1}, 0x100000")
    I(f"v_cmp_gt_u32 vcc, 16, v0")
    I(f"v_cndmask_b32 v{t0}, v{t1}, v{t0}, vcc")
    poll(k, "Lt_h", SFL, t0, sT, 20, 1, vNon, sW, sC, sM, mask=(0xffff, 0))
    I("s_barrier")
    mark(k, diag, 12)
    I(f"s_lshl_b32 s{sT}, s{sRT}, 2")
    I(f"s_add_u32 s{sT}, s{sT}, s{sW}")
    I(f"s_lshl_b32 s{sT}, s{sT}, 4")
    I(f"s_lshr_b32 s{sT2}, s{sJ}, 2")
    I(f"s_and_b32 s{sT2}, s{sT2}, 3")
    I(f"s_lshl_b32 s{sT2}, s{sT2}, 2")
    I(f"s_add_u32 s{sT}, s{sT}, s{sT2}")
    I(f"s_mul_i32 s{sT}, s{sT}, 10240")
    I(f"s_lshr_b32 s{sT2}, s{sJ}, 1")
    I(f"s_and_b32 s{sT2}, s{sT2}, 1")
    I(f"s_mul_i32 s{sT2}, s{sT2}, 5120")
    I(f"s_add_u32 s{sT}, s{sT}, s{sT2}")
    P = 24
    for f in range(4):
        for m in range(3):
            I(f"s_add_u32 s{sT2}, s{sT}, {f*10240 + m*2048}")
            r = P + (f*3 + m)*4
            I(f"buffer_load_dwordx4 v[{r}:{r+3}], v{vP if m < 2 else vP2}, s[{SP}:{SP+3}], s{sT2} offen")
    vWD = 23
    sDo, sDs, sMs = 52, 53, 54
    I(f"v_lshrrev_b32 v{t2}, 2, v{LANE}")
    I(f"v_mul_u32_u24 v{vWD}, 3456, v{t2}")
    I(f"v_and_b32 v{t2}, 3, v{LANE}")
    I(f"v_lshl_add_u32 v{vWD}, v{t2}, 4, v{vWD}")
    I(f"v_lshlrev_b32 v{t2}, 4, v{LANE}")
    I(f"s_cmp_eq_u32 s{sW}, 3")
    I(f"s_cselect_b64 vcc, -1, 0")
    I(f"v_cndmask_b32 v{vWD}, v{vWD}, v{t2}, vcc")
    I(f"s_cmp_eq_u32 s{sW}, 1")
    I("s_cselect_b32 s64, s8, s10"); I("s_cselect_b32 s65, s9, s11")
    I(f"s_cmp_eq_u32 s{sW}, 3")
    I("s_cselect_b32 s64, s12, s64"); I("s_cselect_b32 s65, s13, s65")
    I(f"s_movk_i32 s{sDs}, 1024")
    I(f"s_cselect_b32 s{sDs}, s{sDs}, {16*3456}")
    I(f"s_lshl_b32 s{sDo}, s{sF}, 6")
    I(f"s_mul_i32 s{sMs}, s{sF}, {32*1280}")
    I(f"s_cmp_eq_u32 s{sW}, 3")
    I(f"s_cselect_b32 s{sDo}, s{sMs}, s{sDo}")
    I(f"s_mov_b32 s66, {640*1728*2}"); I("s_mov_b32 s67, 0x20000")
    I(f"s_cmp_ge_u32 s{sF}, {NFF}"); I("s_cselect_b32 s66, 0, s66")
    I(f"s_cmp_eq_u32 s{sW}, 0"); I("s_cselect_b32 s66, 0, s66")
    I(f"s_cselect_b32 s{sMs}, 0, 1024")
    I(f"s_sub_u32 s{sT2}, s{sW}, 1"); I(f"s_mul_i32 s{sT2}, s{sT2}, 40960")
    I(f"s_cmp_eq_u32 s{sW}, 0"); I(f"s_cselect_b32 s{sT2}, 122880, s{sT2}")
    I(f"s_mov_b32 m0, s{sT2}")
    ndma = [0]; cnt = [0]
    I0 = I
    def dma1():
        I0(f"buffer_load_dwordx4 v{vWD}, s[64:67], s{sDo} offen lds")
        I0(f"s_add_u32 m0, m0, s{sMs}")
        I0(f"s_add_u32 s{sDo}, s{sDo}, s{sDs}")
        ndma[0] += 1
    I("s_waitcnt vmcnt(0)")
    lnf(4)
    class _K:
        name = k.name
        def I(self, t, tag=None):
            I0(t); cnt[0] += 1
            if cnt[0] % 12 == 0 and ndma[0] < 40 and t.startswith("v_") and not t.startswith("v_cmp") and "exec" not in t: dma1()
        def L(self, l): k.L(l)
    kx = _K(); I = kx.I
    A = 124; HP = 72; H = 148; ta, tb = 17, 18
    for m in range(3):
        for q in range(4):
            i = m*8 + 2*q
            for f in range(4):
                r = P + (f*3 + m)*4 + q
                if f == 0:
                    I(f"v_lshlrev_b32 v{A+i}, 16, v{r}")
                    I(f"v_and_b32 v{A+i+1}, 0xffff0000, v{r}")
                else:
                    I(f"v_lshlrev_b32 v{ta}, 16, v{r}")
                    I(f"v_and_b32 v{tb}, 0xffff0000, v{r}")
                    I(f"v_add_f32 v{A+i}, v{A+i}, v{ta}")
                    I(f"v_add_f32 v{A+i+1}, v{A+i+1}, v{tb}")
            I(f"v_cvt_pk_bf16_f32 v{ta}, v{A+i}, v{A+i+1}")
            I(f"v_lshlrev_b32 v{A+i}, 16, v{ta}")
            I(f"v_and_b32 v{A+i+1}, 0xffff0000, v{ta}")
            I(f"v_lshlrev_b32 v{ta}, 16, v{XV+4*m+q}")
            I(f"v_and_b32 v{tb}, 0xffff0000, v{XV+4*m+q}")
            I(f"v_add_f32 v{A+i}, v{A+i}, v{ta}")
            I(f"v_add_f32 v{A+i+1}, v{A+i+1}, v{tb}")
            I(f"v_cvt_pk_bf16_f32 v{HP+4*m+q}, v{A+i}, v{A+i+1}")
            I(f"v_lshlrev_b32 v{H+i}, 16, v{HP+4*m+q}")
            I(f"v_and_b32 v{H+i+1}, 0xffff0000, v{HP+4*m+q}")
        k.I(f"buffer_store_dwordx4 v[{HP+4*m}:{HP+4*m+3}], v{vO if m < 2 else vO2}, s[{SH}:{SH+3}], 0 offen offset:{128*m} sc1", tag="th")
    lnf(5)
    def row_sum(v):
        I(f"v_add_f32 v{v}, v{v}, v{v} row_ror:8")
        I(f"v_mov_b32 v{tb}, v{v}")
        I(f"v_permlane16_swap_b32 v{v}, v{tb}")
        I(f"v_add_f32 v{v}, v{v}, v{tb}")
        I(f"v_mov_b32 v{tb}, v{v}")
        I(f"v_permlane32_swap_b32 v{v}, v{tb}")
        I(f"v_add_f32 v{v}, v{v}, v{tb}")
    S, M2, MU = 20, 21, 19
    I(f"v_add_f32 v{S}, v{H}, v{H+1}")
    I(f"v_add_f32 v{M2}, v{H+2}, v{H+3}")
    for i in range(4, 24, 2):
        I(f"v_add_f32 v{S}, v{S}, v{H+i}")
        I(f"v_add_f32 v{M2}, v{M2}, v{H+i+1}")
    I(f"v_add_f32 v{S}, v{S}, v{M2}")
    row_sum(S)
    I(f"v_mul_f32 v{MU}, {f32bits(1.0/160)}, v{S}")
    I(f"v_sub_f32 v{ta}, v{H}, v{MU}")
    I(f"v_mul_f32 v{M2}, v{ta}, v{ta}")
    for i in range(1, 16):
        I(f"v_sub_f32 v{ta}, v{H+i}, v{MU}")
        I(f"v_fmac_f32 v{M2}, v{ta}, v{ta}")
    for i in range(16, 24):
        I(f"v_sub_f32 v{ta}, v{H+i}, v{MU}")
        I(f"v_mul_f32 v{ta}, v{ta}, v{vVal}")
        I(f"v_fmac_f32 v{M2}, v{ta}, v{ta}")
    row_sum(M2)
    LX = 161792
    I(f"v_and_b32 v{t0}, 7, v{LANE}")
    I(f"v_lshlrev_b32 v{t0}, 5, v{t0}")
    I(f"v_add_u32 v{t0}, {LX}, v{t0}")
    I(f"s_lshl_b32 s{sT}, s{sW}, 3")
    I(f"v_add_u32 v{t1}, s{sT}, v{t0}")
    I(f"v_mov_b32 v{S}, v{MU}")
    I(f"ds_write_b64 v{t1}, v[{S}:{S+1}]")
    I("s_waitcnt lgkmcnt(0)")
    I("s_barrier")
    lnf(7)
    E = 84
    I(f"ds_read_b128 v[{E}:{E+3}], v{t0}")
    I(f"ds_read_b128 v[{E+4}:{E+7}], v{t0} offset:16")
    I("s_waitcnt lgkmcnt(0)")
    MEAN, VAR = 92, 93
    I(f"v_add_f32 v{MEAN}, v{E}, v{E+2}")
    I(f"v_add_f32 v{ta}, v{E+4}, v{E+6}")
    I(f"v_add_f32 v{MEAN}, v{MEAN}, v{ta}")
    I(f"v_mul_f32 v{MEAN}, 0.25, v{MEAN}")
    I(f"v_add_f32 v{VAR}, v{E+1}, v{E+3}")
    I(f"v_add_f32 v{ta}, v{E+5}, v{E+7}")
    I(f"v_add_f32 v{VAR}, v{VAR}, v{ta}")
    I(f"v_mov_b32 v{tb}, 0")
    for w in range(4):
        I(f"v_sub_f32 v{ta}, v{E+2*w}, v{MEAN}")
        I(f"v_fmac_f32 v{tb}, v{ta}, v{ta}")
    I(f"v_mov_b32 v{ta}, {f32bits(160.0)}")
    I(f"v_fmac_f32 v{VAR}, v{tb}, v{ta}")
    I(f"v_mul_f32 v{VAR}, {f32bits(1.0/640)}, v{VAR}")
    HN = 24
    ln_finish(kx, H, 24, MEAN, VAR, 96, HN, sEPS)
    RX = 94
    I(f"v_mov_b32 v{RX}, 0")
    O = 36
    for i in range(12):
        I(f"v_lshlrev_b32 v{ta}, 16, v{HN+i}")
        I(f"v_and_b32 v{tb}, 0xffff0000, v{HN+i}")
        I(f"v_lshlrev_b32 v48, 16, v{WRV+i}")
        I(f"v_and_b32 v49, 0xffff0000, v{WRV+i}")
        I(f"v_fmac_f32 v{RX}, v{ta}, v48")
        I(f"v_fmac_f32 v{RX}, v{tb}, v49")
        I(f"v_lshlrev_b32 v48, 16, v{HP+i}")
        I(f"v_and_b32 v49, 0xffff0000, v{HP+i}")
        I(f"v_add_f32 v{ta}, v{ta}, v48")
        I(f"v_add_f32 v{tb}, v{tb}, v49")
        I(f"v_cvt_pk_bf16_f32 v{O+i}, v{ta}, v{tb}")
    for m in range(3):
        I(f"buffer_store_dwordx4 v[{O+4*m}:{O+4*m+3}], v{vO if m < 2 else vO2}, s[{SOUT}:{SOUT+3}], 0 offen offset:{128*m} sc1")
    lnf(8)
    row_sum(RX)
    I(f"v_and_b32 v{t0}, 7, v{LANE}")
    I(f"v_lshlrev_b32 v{t0}, 4, v{t0}")
    I(f"v_add_u32 v{t0}, {LX + 512}, v{t0}")
    I(f"s_lshl_b32 s{sT}, s{sW}, 2")
    I(f"v_add_u32 v{t1}, s{sT}, v{t0}")
    I(f"ds_write_b32 v{t1}, v{RX}")
    while ndma[0] < 40: dma1()
    I = I0
    I("s_waitcnt lgkmcnt(0)")
    k.wait_vm("th", expect=3)
    I("s_barrier")
    I(f"ds_read_b128 v[{E}:{E+3}], v{t0}")
    I("s_waitcnt lgkmcnt(0)")
    I(f"v_add_f32 v{E}, v{E}, v{E+1}")
    I(f"v_add_f32 v{E+2}, v{E+2}, v{E+3}")
    I(f"v_add_f32 v{RX}, v{E}, v{E+2}")
    bf16_round(k, RX)
    I(f"v_mov_b32 v{RX+1}, v{vNon}")
    I(f"v_lshlrev_b32 v{t0}, 4, v{vRow}")
    I(f"v_cmp_gt_u32 vcc, 8, v0")
    I(f"v_cndmask_b32 v{t0}, v{t3}, v{t0}, vcc")
    I(f"buffer_store_dwordx4 v[{MEAN}:{MEAN+3}], v{t0}, s[{SRT}:{SRT+3}], 0 offen sc1")
    lnf(9)
    I("s_waitcnt vmcnt(0)")
    I("s_barrier")
    I(f"s_lshl_b32 s{sT2}, s2, 2")
    I(f"s_add_u32 s{sT2}, s{sT2}, {RTF_LINE*128}")
    flag_store(k, SFL, vNon, vOff0, sT2)
    mark(k, diag, 13)
    I(f"s_cmp_ge_u32 s{sF}, {NFF}")
    I(f"s_cbranch_scc1 {endlabel}")
    SYP = 60
    LG, LU, LD, LHN, LKEY, LPART, LA_ = 0, 40960, 81920, 155648, 158208, 158272, 160320
    srd(k, SYP, 14, 15, YP_SIZE, YP_OFF)
    ST = 64
    I(f"v_lshlrev_b32 v{t0}, 4, v0")
    I(f"s_mov_b32 s{sC}, {SPIN_MAX}")
    k.L("Lt_rt_spin")
    for e in range(8):
        I(f"s_mov_b32 s{sT}, {e*4096}")
        I(f"buffer_load_dwordx4 v[{ST+4*e}:{ST+4*e+3}], v{t0}, s[{SRT}:{SRT+3}], s{sT} offen sc1"); k.vm.pop()
    I("s_waitcnt vmcnt(0)")
    I(f"v_cmp_eq_u32 vcc, v{vNon}, v{ST+3}")
    for e in range(1, 8):
        I(f"v_cmp_eq_u32 s[{sM}:{sM+1}], v{vNon}, v{ST+4*e+3}")
        I(f"s_and_b64 vcc, vcc, s[{sM}:{sM+1}]")
    I(f"s_sub_u32 s{sC}, s{sC}, 1")
    I("s_cbranch_scc1 Lt_rt_ok")
    I("s_cmp_eq_u64 vcc, -1")
    I("s_cbranch_scc0 Lt_rt_spin")
    k.L("Lt_rt_ok")
    mark(k, diag, 14)
    K1, K2, RR = 96, 97, 100
    I(f"v_mov_b32 v{K1}, 0")
    I(f"v_mov_b32 v{K2}, 0")
    for e in range(8):
        I(f"v_ashrrev_i32 v{t1}, 31, v{ST+4*e+2}")
        I(f"v_or_b32 v{t1}, 0x80000000, v{t1}")
        I(f"v_xor_b32 v{RR}, v{ST+4*e+2}, v{t1}")
        I(f"v_and_b32 v{RR}, 0xfffff800, v{RR}")
        I(f"v_sub_u32 v{t1}, {2047 - 256*e}, v0")
        I(f"v_or_b32 v{RR}, v{RR}, v{t1}")
        I(f"v_med3_u32 v{K2}, v{K1}, v{K2}, v{RR}")
        I(f"v_max_u32 v{K1}, v{K1}, v{RR}")
    T1, T2 = 16, 17
    I(f"v_mov_b32 v{T1}, v{K1}")
    wave_allreduce(k, "v_max_u32", T1, t1)
    I(f"v_cmp_eq_u32 vcc, v{T1}, v{K1}")
    I(f"v_cndmask_b32 v{T2}, v{K1}, v{K2}, vcc")
    wave_allreduce(k, "v_max_u32", T2, t1)
    I(f"s_lshl_b32 s{sT}, s{sW}, 3")
    I(f"v_mov_b32 v{t1}, s{sT}")
    I(f"v_add_u32 v{t1}, {LKEY}, v{t1}")
    I(f"ds_write_b64 v{t1}, v[{T1}:{T1+1}]")
    I("s_waitcnt lgkmcnt(0)")
    I("s_barrier")
    KK = 20
    I(f"v_mov_b32 v{t1}, {LKEY}")
    I(f"ds_read_b128 v[{KK}:{KK+3}], v{t1}")
    I(f"ds_read_b128 v[{KK+4}:{KK+7}], v{t1} offset:16")
    I("s_waitcnt lgkmcnt(0)")
    I(f"v_mov_b32 v{K1}, 0")
    I(f"v_mov_b32 v{K2}, 0")
    for j in range(8):
        I(f"v_med3_u32 v{K2}, v{K1}, v{K2}, v{KK+j}")
        I(f"v_max_u32 v{K1}, v{K1}, v{KK+j}")
    for kx in (K1, K2):
        I(f"v_and_b32 v{kx}, 0x7ff, v{kx}")
        I(f"v_sub_u32 v{kx}, 2047, v{kx}")
    I(f"v_bfe_u32 v{t1}, v{LANE}, 4, 1")
    I(f"v_cmp_eq_u32 vcc, 0, v{t1}")
    I(f"v_cndmask_b32 v{t3}, v{K2}, v{K1}, vcc")
    vRowSel = 13
    I(f"v_mov_b32 v{vRowSel}, v{t3}")
    I(f"v_lshlrev_b32 v{t2}, 4, v{t3}")
    REC = 56
    I(f"buffer_load_dwordx4 v[{REC}:{REC+3}], v{t2}, s[{SRT}:{SRT+3}], 0 offen sc1")
    I(f"v_mul_u32_u24 v{t3}, 1280, v{t3}")
    I(f"v_and_b32 v{t0}, 15, v{LANE}")
    I(f"v_lshl_add_u32 v{t3}, v{t0}, 4, v{t3}")
    HX, HN = 16, 36
    for u in range(5):
        I(f"buffer_load_dwordx4 v[{HX+4*u}:{HX+4*u+3}], v{t3}, s[{SH}:{SH+3}], 0 offen offset:{256*u}")
    I("s_waitcnt vmcnt(0)")
    X = 164
    for i in range(20):
        I(f"v_lshlrev_b32 v{X}, 16, v{HX+i}")
        I(f"v_and_b32 v{X+1}, 0xffff0000, v{HX+i}")
        I(f"v_sub_f32 v{X}, v{X}, v{REC}")
        I(f"v_sub_f32 v{X+1}, v{X+1}, v{REC}")
        I(f"v_cvt_pk_bf16_f32 v{X+2}, v{X}, v{X+1}")
        I(f"v_lshlrev_b32 v{X}, 16, v{X+2}")
        I(f"v_and_b32 v{X+1}, 0xffff0000, v{X+2}")
        I(f"v_mul_f32 v{X}, v{X}, v{REC+1}")
        I(f"v_mul_f32 v{X+1}, v{X+1}, v{REC+1}")
        I(f"v_cvt_pk_bf16_f32 v{HN+i}, v{X}, v{X+1}")
    RSEL = 60
    I(f"v_mul_f32 v{RSEL}, {f32bits(-1.4426950408889634)}, v{REC+2}")
    I(f"v_exp_f32 v{RSEL}, v{RSEL}")
    I(f"v_add_f32 v{RSEL}, 1.0, v{RSEL}")
    I(f"v_rcp_f32 v{RSEL}, v{RSEL}")
    bf16_round(k, RSEL)
    I(f"v_bfe_u32 v{t1}, v{LANE}, 4, 1")
    I(f"v_mul_u32_u24 v{t1}, 1280, v{t1}")
    I(f"v_lshl_add_u32 v{t1}, v{t0}, 4, v{t1}")
    I(f"v_add_u32 v{t2}, {LHN}, v{t1}")
    I(f"s_cmp_lg_u32 s{sW}, 0")
    I("s_cbranch_scc1 Lt_w0done")
    for u in range(5):
        I(f"ds_write_b128 v{t2}, v[{HN+4*u}:{HN+4*u+3}] offset:{256*u}")
    I(f"v_bfe_u32 v{t2}, v{LANE}, 4, 1")
    I(f"v_lshlrev_b32 v{t2}, 3, v{t2}")
    I(f"v_add_u32 v{t2}, {LKEY+32}, v{t2}")
    I(f"v_mov_b32 v62, v{vRowSel}")
    I(f"v_mov_b32 v63, v{RSEL}")
    I(f"ds_write_b64 v{t2}, v[62:63]")
    k.L("Lt_w0done")
    I("s_waitcnt vmcnt(0) lgkmcnt(0)")
    I("s_barrier")
    I(f"s_mul_i32 s51, s{sW}, {160*64}")
    I(f"v_and_b32 v{t0}, 1, v{LANE}")
    I(f"v_mul_u32_u24 v{t0}, 1280, v{t0}")
    I(f"v_lshrrev_b32 v{t1}, 4, v{LANE}")
    I(f"v_lshl_add_u32 v{t0}, v{t1}, 4, v{t0}")
    I(f"s_mul_i32 s{sT}, s{sW}, 320")
    I(f"s_add_u32 s{sT}, s{sT}, {LHN}")
    I(f"v_add_u32 v{t0}, s{sT}, v{t0}")
    I(f"v_bfe_u32 v{t2}, v{LANE}, 2, 2")
    I(f"v_lshl_add_u32 v{t2}, v{t1}, 3, v{t2}")
    I(f"v_lshlrev_b32 v{t2}, 6, v{t2}")
    I(f"v_and_b32 v{t3}, 3, v{LANE}")
    I(f"v_lshl_add_u32 v{t2}, v{t3}, 3, v{t2}")
    I(f"v_add_u32 v{t2}, s51, v{t2}")
    AF, BF = 16, 100
    for s_ in range(5): I(f"ds_read_b128 v[{AF+4*s_}:{AF+4*s_+3}], v{t0} offset:{64*s_}")
    for mi, LB in enumerate((LG, LU)):
        for ft in range(2):
            for s_ in range(5):
                r = BF + ((mi*2 + ft)*5 + s_)*4
                I(f"ds_read_b64_tr_b16 v[{r}:{r+1}], v{t2} offset:{LB + s_*2048 + ft*32}")
                I(f"ds_read_b64_tr_b16 v[{r+2}:{r+3}], v{t2} offset:{LB + s_*2048 + ft*32 + 256}")
    I("s_waitcnt lgkmcnt(0)")
    D = 72
    for s_ in range(5):
        for q in range(4):
            r = BF + (q*5 + s_)*4
            I(f"v_mfma_f32_16x16x32_bf16 v[{D+4*q}:{D+4*q+3}], v[{AF+4*s_}:{AF+4*s_+3}], v[{r}:{r+3}], " + ("0" if s_ == 0 else f"v[{D+4*q}:{D+4*q+3}]"))
    I(f"v_and_b32 v{t0}, 15, v{LANE}")
    I(f"v_lshlrev_b32 v{t0}, 2, v{t0}")
    I(f"s_lshl_b32 s{sT}, s{sW}, 9")
    I(f"s_add_u32 s{sT}, s{sT}, {LPART}")
    I(f"v_add_u32 v{t0}, s{sT}, v{t0}")
    I("s_mov_b32 exec_lo, 0xffff")
    I("s_mov_b32 exec_hi, 0")
    for mi in range(2):
        for ft in range(2):
            for tok in range(2):
                I(f"ds_write_b32 v{t0}, v{D+4*(mi*2+ft)+tok} offset:{(mi*2+tok)*128 + ft*64}")
    I("s_mov_b64 exec, -1")
    I("s_waitcnt lgkmcnt(0)")
    I("s_barrier")
    I(f"v_lshlrev_b32 v{t0}, 2, v{LANE}")
    I(f"v_add_u32 v{t0}, {LPART}, v{t0}")
    for w in range(4):
        I(f"ds_read_b32 v{16+w}, v{t0} offset:{w*512}")
        I(f"ds_read_b32 v{20+w}, v{t0} offset:{w*512 + 256}")
    I("s_waitcnt lgkmcnt(0)")
    for b in (16, 20):
        I(f"v_add_f32 v{b}, v{b}, v{b+1}")
        I(f"v_add_f32 v{b+2}, v{b+2}, v{b+3}")
        I(f"v_add_f32 v{b}, v{b}, v{b+2}")
        bf16_round(k, b)
    I(f"v_mul_f32 v17, {f32bits(-1.4426950408889634)}, v16")
    I(f"v_exp_f32 v17, v17")
    I(f"v_add_f32 v17, 1.0, v17")
    I(f"v_rcp_f32 v17, v17")
    I(f"v_mul_f32 v16, v16, v17")
    bf16_round(k, 16)
    I(f"v_mul_f32 v16, v16, v20")
    I(f"v_cvt_pk_bf16_f32 v16, v16, v16")
    I(f"v_lshlrev_b32 v{t1}, 1, v{LANE}")
    I(f"v_add_u32 v{t1}, {LA_}, v{t1}")
    I(f"ds_write_b16 v{t1}, v16")
    I("s_waitcnt lgkmcnt(0)")
    I(f"v_and_b32 v{t0}, 1, v{LANE}")
    I(f"v_lshlrev_b32 v{t0}, 6, v{t0}")
    I(f"v_lshrrev_b32 v{t1}, 4, v{LANE}")
    I(f"v_lshl_add_u32 v{t0}, v{t1}, 4, v{t0}")
    I(f"v_add_u32 v{t0}, {LA_}, v{t0}")
    I(f"ds_read_b128 v[16:19], v{t0}")
    I(f"v_bfe_u32 v{t2}, v{LANE}, 2, 2")
    I(f"v_lshl_add_u32 v{t2}, v{t1}, 3, v{t2}")
    I(f"v_mul_u32_u24 v{t2}, 1280, v{t2}")
    I(f"v_and_b32 v{t3}, 3, v{LANE}")
    I(f"v_lshl_add_u32 v{t2}, v{t3}, 3, v{t2}")
    I(f"s_mul_i32 s{sT}, s{sW}, 320")
    I(f"s_add_u32 s{sT}, s{sT}, {LD}")
    I(f"v_add_u32 v{t2}, s{sT}, v{t2}")
    for nt in range(10):
        r = 100 + 4*nt
        I(f"ds_read_b64_tr_b16 v[{r}:{r+1}], v{t2} offset:{nt*32}")
        I(f"ds_read_b64_tr_b16 v[{r+2}:{r+3}], v{t2} offset:{nt*32 + 4*1280}")
    I("s_waitcnt lgkmcnt(0)")
    for nt in range(10):
        I(f"v_mfma_f32_16x16x32_bf16 v[{140+4*nt}:{143+4*nt}], v[16:19], v[{100+4*nt}:{103+4*nt}], 0")
    I(f"v_and_b32 v{t0}, 15, v{LANE}")
    I(f"v_lshlrev_b32 v{t0}, 4, v{t0}")
    I(f"v_mov_b32 v{t1}, 0x4000000")
    I(f"v_cmp_gt_u32 vcc, 16, v{LANE}")
    I(f"v_cndmask_b32 v{t0}, v{t1}, v{t0}, vcc")
    I(f"s_mul_i32 s{sT}, s{sF}, 10240")
    I(f"s_mul_i32 s{sT2}, s{sW}, 2560")
    I(f"s_add_u32 s{sT}, s{sT}, s{sT2}")
    for nt in range(10):
        I(f"v_mov_b32 v{142+4*nt}, v{vNon}")
        I(f"v_mov_b32 v{143+4*nt}, v{vNon}")
    for nt in range(10):
        I(f"buffer_store_dwordx4 v[{140+4*nt}:{143+4*nt}], v{t0}, s[{SYP}:{SYP+3}], s{sT} offen offset:{nt*256} sc1")
    mark(k, diag, 15)
    I(f"s_cmp_ge_u32 s{sF}, 20")
    I(f"s_cbranch_scc1 {endlabel}")
    sTok, sCc = 51, 52
    I(f"s_cmp_ge_u32 s{sF}, 10")
    I(f"s_cselect_b32 s{sTok}, 1, 0")
    I(f"s_mul_i32 s{sT}, s{sTok}, 10")
    I(f"s_sub_u32 s{sCc}, s{sF}, s{sT}")
    I(f"s_lshl_b32 s{sT}, s{sCc}, 6")
    I(f"v_add_u32 v16, s{sT}, v{LANE}")
    I(f"s_lshl_b32 s{sT}, s{sTok}, 3")
    I(f"s_add_u32 s{sT}, s{sT}, {LKEY+32}")
    I(f"v_mov_b32 v17, s{sT}")
    I(f"ds_read_b64 v[18:19], v17")
    I(f"s_mul_i32 s{sT}, s{sTok}, 1280")
    I(f"s_add_u32 s{sT}, s{sT}, {LHN}")
    I(f"v_lshlrev_b32 v20, 1, v16")
    I(f"v_add_u32 v21, s{sT}, v20")
    I(f"ds_read_u16 v22, v21")
    I("s_waitcnt lgkmcnt(0)")
    I(f"v_mul_u32_u24 v23, 1280, v18")
    I(f"v_add_u32 v23, v23, v20")
    I(f"buffer_load_ushort v24, v23, s[{SH}:{SH+3}], 0 offen")
    I(f"v_lshlrev_b32 v{t0}, 4, v{LANE}")
    I(f"s_mov_b32 s{sT}, {RTF_LINE*128}")
    poll(k, "Lt_rtf", SFL, t0, sT, 28, 4, vNon, sW, sC, sM, mask=(0xffffffff, 0xffffffff))
    I("s_barrier")
    I(f"v_lshlrev_b32 v26, 4, v16")
    I(f"s_mul_i32 s{sT2}, s{sW}, {14*10240}")
    I(f"s_mov_b32 s{sC}, {SPIN_MAX}")
    YB = 100
    k.L("Lt_y_spin")
    for j in range(14):
        I(f"s_add_u32 s{sT}, s{sT2}, {j*10240}")
        I(f"buffer_load_dwordx4 v[{YB+4*j}:{YB+4*j+3}], v26, s[{SYP}:{SYP+3}], s{sT} offen sc1"); k.vm.pop()
    I("s_waitcnt vmcnt(0)")
    I(f"v_cmp_eq_u32 vcc, v{vNon}, v{YB+2}")
    for j in range(1, 12):
        I(f"v_cmp_eq_u32 s[{sM}:{sM+1}], v{vNon}, v{YB+4*j+2}")
        I(f"s_and_b64 vcc, vcc, s[{sM}:{sM+1}]")
    I(f"s_cmp_eq_u32 s{sW}, 3")
    I("s_cbranch_scc1 Lt_y_chk")
    for j in range(12, 14):
        I(f"v_cmp_eq_u32 s[{sM}:{sM+1}], v{vNon}, v{YB+4*j+2}")
        I(f"s_and_b64 vcc, vcc, s[{sM}:{sM+1}]")
    k.L("Lt_y_chk")
    I(f"s_sub_u32 s{sC}, s{sC}, 1")
    I("s_cbranch_scc1 Lt_y_ok")
    I("s_cmp_eq_u64 vcc, -1")
    I("s_cbranch_scc0 Lt_y_spin")
    k.L("Lt_y_ok")
    I(f"s_cmp_eq_u32 s{sTok}, 0")
    I("s_cselect_b64 vcc, -1, 0")
    for j in range(14): I(f"v_cndmask_b32 v{32+j}, v{YB+4*j+1}, v{YB+4*j}, vcc")
    for j in range(1, 14): I(f"v_add_f32 v32, v32, v{32+j}")
    I(f"v_lshlrev_b32 v27, 2, v0")
    I(f"v_add_u32 v27, {LPART}, v27")
    I(f"ds_write_b32 v27, v32")
    I("s_waitcnt lgkmcnt(0)")
    I("s_barrier")
    I(f"s_cmp_lg_u32 s{sW}, 0")
    I(f"s_cbranch_scc1 {endlabel}")
    I(f"v_lshlrev_b32 v27, 2, v{LANE}")
    I(f"v_add_u32 v27, {LPART}, v27")
    for q in range(4): I(f"ds_read_b32 v{32+q}, v27 offset:{256*q}")
    I("s_waitcnt lgkmcnt(0)")
    I("v_add_f32 v32, v32, v33")
    I("v_add_f32 v34, v34, v35")
    I("v_add_f32 v32, v32, v34")
    bf16_round(k, 32)
    I("v_mul_f32 v32, v32, v19")
    bf16_round(k, 32)
    I("v_lshlrev_b32 v22, 16, v22")
    I("v_add_f32 v32, v32, v22")
    bf16_round(k, 32)
    I("v_lshlrev_b32 v24, 16, v24")
    I("v_add_f32 v32, v32, v24")
    I("v_cvt_pk_bf16_f32 v32, v32, v32")
    I(f"buffer_store_short v32, v23, s[{SOUT}:{SOUT+3}], 0 offen sc1")
```

```python
from common import *

OA, OB, QA, QB, F0, F1 = 0, 64, 128, 160, 192, 224
S0, S1, P0, P1, NMA, NMB = 64, 80, 96, 104, 112, 128
LANE, vL16, vWQ, vNINF = 2, 3, 4, 5
vQ = 6
vA0, vA1, vA2 = 10, 11, 12
vTH0, vTH1 = 13, 14
vTHA, vTHB = 22, 23
LA0, LA1, LB0, LB1, LC0, LC1 = 16, 17, 18, 19, 20, 21
vT = 24
SXN, SWQ, SKV, SCTX = 16, 20, 24, 28
sW, sH, sI = 40, 41, 42
sT, sT2, sB0, sDoff, sDslot, sDlim, sOOB, sCnt, sWL, sQA, sQB, sFlag, sTHR = 43, 44, 45, 46, 47, 48, 49, 50, 51, 52, 53, 54, 55
MSK = 90
KVR = [8*(r >> 2) + (r & 3) for r in range(16)]
COST = {"exp": 8}

from sched import Item, schedule, insert_lgkm_waits

def exp_group(S, regs, L, masked=False, th=None):
    out = []
    for i in range(0, len(regs), 2):
        pair = regs[i:i+2]
        for r in pair: out.append((f"v_exp_f32 v{S+r}, v{S+r}", 8))
        for j, r in enumerate(pair): out.append((f"v_add_f32 v{L[j]}, v{L[j]}, v{S+r}", 4))
    return out

def mask_group(S, th):
    out = []
    for i in range(0, 16, 4):
        for j in range(4):
            out.append((f"v_cmp_le_i32 s[{MSK+2*j}:{MSK+2*j+1}], {KVR[i+j]}, v{th}", 4))
        for j in range(4):
            out.append((f"v_cndmask_b32 v{S+i+j}, v{vNINF}, v{S+i+j}, s[{MSK+2*j}:{MSK+2*j+1}]", 4))
    return out

def cvt_group(S, P, lo, hi):
    return [(f"v_cvt_pk_bf16_f32 v{P+j}, v{S+2*j}, v{S+2*j+1}", 4) for j in range(lo, hi)]

def qk(S, F, Q, NM):
    out = []
    for c in range(8):
        C = f"v[{NM}:{NM+15}]" if c == 0 else f"v[{S}:{S+15}]"
        out.append(f"v_mfma_f32_32x32x16_bf16 v[{S}:{S+15}], a[{F+4*c}:{F+4*c+3}], a[{Q+4*c}:{Q+4*c+3}], {C}")
    return out

def pv(O, F, P):
    out = []
    for j in range(8):
        ks, db = j >> 2, j & 3
        out.append(f"v_mfma_f32_32x32x16_bf16 a[{O+16*db}:{O+16*db+15}], a[{F+4*j}:{F+4*j+3}], v[{P+4*ks}:{P+4*ks+3}], a[{O+16*db}:{O+16*db+15}]")
    return out

def rdK(F, c, vb, off=0): return f"ds_read_b128 a[{F+4*c}:{F+4*c+3}], v{vb} offset:{off + c*1024}"
def rdV(F, j, vb, off=0):
    ks, db = j >> 2, j & 3
    return f"ds_read_b128 a[{F+4*j}:{F+4*j+3}], v{vb} offset:{off + 8192 + (db*2 + ks)*1024}"

DBG = ""
SPLITK = True
RETILE = True
CODEPF2 = False
QACC = 128
PREF = True
SPF, sPFo, vDUM = 16, 89, 60
def dma_ld(u): return f"buffer_load_dwordx4 v{vL16}, s[{SKV}:{SKV+3}], s{sDoff} offen offset:{u*1024} lds"
def dma_adv():
    return ["s_add_u32 m0, m0, 16384", "s_and_b32 m0, m0, 0x1ffff", f"s_add_u32 s{sDoff}, s{sDoff}, 16384"]

def softmax_items(S, L, regs, lo, hi, masks=None):
    E = {}; items = []
    hi0 = hi
    last_add = [None, None]
    for n, r in enumerate(regs):
        hi_r = lo + (hi0 - lo) * (n + 1) // len(regs)
        hi = max(hi_r, lo)
        e = Item(f"v_exp_f32 v{S+r}, v{S+r}", 2, lo, hi, deps=[masks.get(r) if masks else None])
        E[r] = e; items.append(e)
        a = Item(f"v_add_f32 v{L[n & 1]}, v{L[n & 1]}, v{S+r}", 1, lo, hi + 2, deps=[e], after=[last_add[n & 1]])
        last_add[n & 1] = a; items.append(a)
    return E, items

def mask_items(S, th, lo, hi):
    M = {}; items = []
    prev = [None]*4
    for i in range(16):
        j = i & 3
        c = Item(f"v_cmp_le_i32 s[{MSK+2*j}:{MSK+2*j+1}], {KVR[i]}, v{th}", 1, lo, hi, deps=[prev[j]])
        m = Item(f"v_cndmask_b32 v{S+i}, v{vNINF}, v{S+i}, s[{MSK+2*j}:{MSK+2*j+1}]", 1, lo, hi, deps=[c])
        prev[j] = m; M[i] = m; items += [c, m]
    return M, items

def cvt_items(S, P, js, E, lo, hi):
    return [Item(f"v_cvt_pk_bf16_f32 v{P+j}, v{S+2*j}, v{S+2*j+1}", 1, lo, hi, deps=[E.get(2*j), E.get(2*j+1)]) for j in js]

KREADS = [set(("a", F0 + 4*c + q) for q in range(4)) for c in range(8)]
VREADS = [set(("a", F1 + 4*c + q) for q in range(4)) for c in range(8)]
NE1A = 4

def body(k, kind, masked):
    dual_pv = kind in ("DD", "DS")
    dual_qk = kind == "DD"
    L0n = (LA0, LA1) if dual_qk else (LC0, LC1)
    L1 = (LB0, LB1)
    k.C(f"---- body {kind} masked={masked}")
    if kind == "SE":
        for j in range(8): k.I(rdV(F0, j, vA0, 16384))
        for f in exp_group(S1, list(range(NE1A, 16)), L1): k.I(f[0])
        for f in cvt_group(S1, P1, 0, 8): k.I(f[0])
        k.I("s_waitcnt lgkmcnt(8)")
        for m in pv(OB, F1, P0): k.I(m)
        k.I("s_waitcnt lgkmcnt(0)")
        for m in pv(OB, F0, P1): k.I(m)
        return
    items = []; pre = {}
    if kind == "DD":   mf = qk(S0, F0, QA, NMA) + pv(OA, F1, P0) + qk(S1, F0, QB, NMB) + pv(OB, F1, P1)
    elif kind == "DS": mf = qk(S0, F0, QB, NMB) + pv(OA, F1, P0) + qk(S1, F0, QB, NMB) + pv(OB, F1, P1)
    else:              mf = qk(S0, F0, QB, NMB) + pv(OB, F1, P0) + qk(S1, F0, QB, NMB) + pv(OB, F1, P1)
    E1b, it = softmax_items(S1, L1, list(range(NE1A, 16)), 0, 12); items += it
    items += cvt_items(S1, P1, range(0, 8), E1b, 0, 15)
    M0 = M1 = None
    if masked:
        M0, it = mask_items(S0, vTH0, 10, 22); items += it
        if kind != "DD":
            M1, it = mask_items(S1, vTH1, 26, 31); items += it
    E0, it = softmax_items(S0, L0n, list(range(16)), 10, 28, M0); items += it
    items += cvt_items(S0, P0, range(0, 4), E0, 12, 31)
    items += cvt_items(S0, P0, range(4, 8), E0, 16, 31)
    E1a, it = softmax_items(S1, L1, list(range(0, NE1A)), 26, 30, M1); items += it
    BAR = 19
    def chain(lst, after0=None):
        prev = after0
        for x in lst:
            if prev is not None: x.after.append(prev)
            items.append(x); prev = x
        return prev
    mid = []
    if kind == "DD":
        vm = 16
    elif kind == "DS":
        mid = [Item(rdK(F0, j, vA1), 1, j, j + 4, prio=3) for j in range(8)]
        vm = 12
    else:
        mid = [Item(rdK(F0, j, vA1, 16384), 1, j, j + 4, prio=3) for j in range(8)]
        mid += [Item(rdV(F1, j, vA0, 16384), 1, 8 + j, min(8 + j + 1, 16), prio=3) for j in range(8)]
        vm = 8
    chain(mid)
    pre[BAR] = [f"s_waitcnt vmcnt({vm}) lgkmcnt(0)", "s_barrier"]
    if kind == "DD":   kb, ko, vb, vo = vA1, 0, vA2, 0
    elif kind == "DS": kb, ko, vb, vo = vA2, 0, vA0, 0
    else:              kb, ko, vb, vo = vA2, 0, vA1, 0
    tailK = [Item(rdK(F0, j, kb, ko), 1, max(BAR, 16 + j), max(BAR, 16 + j) + 2, prio=3) for j in range(8)]
    tailV = [Item(rdV(F1, j, vb, vo), 1, 24 + j, 24 + j if j > 3 else 27, prio=3) for j in range(8)]
    addr_pre = []
    if kind == "DS":
        a0 = Item(f"v_add_u32 v{vA0}, 0x4000, v{vA0}", 1, 0, 15); a1 = Item(f"v_and_b32 v{vA0}, 0x1ffff, v{vA0}", 1, 0, 17, deps=[a0])
        c1 = Item(f"v_add_u32 v{vA2}, 0x4000, v{vA1}", 1, 0, 15); c2 = Item(f"v_and_b32 v{vA2}, 0x1ffff, v{vA2}", 1, 0, 17, deps=[c1])
        items += [a0, a1, c1, c2]
        for x in tailK: x.deps.append(c2)
        for x in tailV: x.deps.append(a1)
    last = chain(tailK + tailV)
    nblk = 2 if kind == "SS" else 1
    dl = []
    g0 = BAR
    for blk in range(nblk):
        for u in range(4): dl.append(Item(dma_ld(u), 1, min(g0 + blk*6 + u, 31), min(g0 + blk*6 + u + 1, 31)))
        for t in dma_adv(): dl.append(Item(t, 1, BAR, min(g0 + blk*6 + 5, 31)))
    chain(dl)
    if kind == "DD" and not masked and PREF:
        p1 = Item(f"buffer_load_dwordx4 v[{vDUM}:{vDUM+3}], v{vL16}, s[{SPF}:{SPF+3}], s{sPFo} offen", 1, 2, 12); items.append(p1)
        items.append(Item(f"s_add_u32 s{sPFo}, s{sPFo}, 1024", 1, 3, 15, after=[p1]))
    if kind == "DD":
        post = [f"v_mov_b32 v{vA0}, v{vA2}", f"v_mov_b32 v{vA2}, v{vA1}", f"v_add_u32 v{vA1}, 0x4000, v{vA1}", f"v_and_b32 v{vA1}, 0x1ffff, v{vA1}"]
    elif kind == "DS":
        post = [f"v_mov_b32 v{vA1}, v{vA2}", f"v_add_u32 v{vA2}, 0x8000, v{vA2}", f"v_and_b32 v{vA2}, 0x1ffff, v{vA2}"]
    else:
        post = [f"v_mov_b32 v{vA0}, v{vA1}", f"v_mov_b32 v{vA1}, v{vA2}", f"v_add_u32 v{vA2}, 0x8000, v{vA2}", f"v_and_b32 v{vA2}, 0x1ffff, v{vA2}"]
    if masked:
        if kind == "DD": items.append(Item(f"v_subrev_u32 v{vTH0}, 32, v{vTH0}", 1, 23, 31))
        else:
            items.append(Item(f"v_subrev_u32 v{vTH0}, 64, v{vTH0}", 1, 23, 31))
            post.append(f"v_subrev_u32 v{vTH1}, 64, v{vTH1}")
    seq, load = schedule(mf, items, cap=CAP, pre=pre)
    seq += post
    seq, outst = insert_lgkm_waits(seq, KREADS + VREADS, age=AGE, init_age=[-12 + j*5//8 for j in range(8)] + [-7 + j for j in range(8)])
    assert outst == KREADS + VREADS, [sorted(o)[0] for o in outst]
    if VERBOSE: print(kind, masked, "gap loads", load, "sum", sum(load) + len(post), "instrs", len(seq))
    for t in seq: k.I(t)

AGE = 4
CAP = 6
VERBOSE = True
def loop(k, name, kind, masked):
    k.I(f"s_sub_u32 s{sCnt}, s{sCnt}, 1")
    k.I(f"s_cbranch_scc1 {name}_end")
    k.L(name)
    body(k, kind, masked)
    k.I(f"s_sub_u32 s{sCnt}, s{sCnt}, 1")
    k.I(f"s_cbranch_scc0 {name}")
    k.L(name + "_end")

def epilogue(k, O, Lregs, sQ, flagbit, store_flags):
    I = k.I
    t = vT
    I(f"v_add_f32 v{t}, v{Lregs[0]}, v{Lregs[1]}")
    for r in Lregs[2:]: I(f"v_add_f32 v{t}, v{t}, v{r}")
    I(f"v_mov_b32 v{t+1}, v{t}")
    I(f"v_permlane32_swap_b32 v{t}, v{t+1}")
    I(f"v_add_f32 v{t}, v{t}, v{t+1}")
    I(f"v_rcp_f32 v{t+2}, v{t}")
    I(f"v_mov_b32 v{t+4}, 0")
    I(f"v_mov_b32 v{t+3}, v{t+2}")
    for c in range(8):
        db, ip = c >> 1, c & 1
        b = t + 8 + (c & 1)*12
        for j in range(8): I(f"v_accvgpr_read_b32 v{b+j}, a{O+16*db+8*ip+j}")
        for j in range(4): I(f"v_pk_mul_f32 v[{b+2*j}:{b+2*j+1}], v[{b+2*j}:{b+2*j+1}], v[{t+2}:{t+3}]")
        for j in range(4): I(f"v_cvt_pk_bf16_f32 v{b+8+j}, v{b+2*j}, v{b+2*j+1}")
        I(f"s_add_u32 s{sT}, s{sQ}, {c*1024}")
        I(f"buffer_store_dwordx4 v[{b+8}:{b+11}], v{vL16}, s[{SCTX}:{SCTX+3}], s{sT} offen {store_flags}")
        for j in range(4): I(f"v_maximum3_f32 v{t+4}, |v{b+2*j}|, |v{b+2*j+1}|, v{t+4}")
    I(f"v_mov_b32 v{t+5}, 0x5d800000")
    I(f"v_cmp_nle_f32 s[{MSK}:{MSK+1}], v{t}, v{t+5}")
    I(f"v_mov_b32 v{t+5}, 0x35800000")
    I(f"v_cmp_nge_f32 s[{MSK+2}:{MSK+3}], v{t}, v{t+5}")
    I(f"v_mov_b32 v{t+5}, 0x7f7f0000")
    I(f"v_cmp_nle_f32 s[{MSK+4}:{MSK+5}], v{t+4}, v{t+5}")
    I(f"s_or_b64 s[{MSK}:{MSK+1}], s[{MSK}:{MSK+1}], s[{MSK+2}:{MSK+3}]")
    I(f"s_or_b64 s[{MSK}:{MSK+1}], s[{MSK}:{MSK+1}], s[{MSK+4}:{MSK+5}]")
    I(f"s_cmp_lg_u64 s[{MSK}:{MSK+1}], 0")
    I(f"s_cselect_b32 s{sT}, {flagbit}, 0")
    I(f"s_or_b32 s{sFlag}, s{sFlag}, s{sT}")

def slow_path(k, name, O, Q, sQ, sQblk_expr, store_flags, force=False):
    I = k.I
    m, l, mn, al, t = vT, vT+1, vT+2, vT+3, vT+4
    sQblk_expr()
    I(f"s_mov_b32 s{sDoff}, 0")
    I(f"v_mov_b32 v{m}, 0xff7fffff")
    I(f"v_mov_b32 v{l}, 0")
    for r in range(64): I(f"v_accvgpr_write_b32 a{O+r}, 0")
    I(f"v_and_b32 v{vTH0}, 31, v{LANE}")
    I(f"v_lshrrev_b32 v{t}, 5, v{LANE}")
    I(f"v_lshlrev_b32 v{t}, 2, v{t}")
    I(f"v_sub_u32 v{vTH0}, v{vTH0}, v{t}")
    I(f"s_lshl_b32 s{sT}, s{sCnt}, 5")
    I(f"v_add_u32 v{vTH0}, s{sT}, v{vTH0}")
    I(f"s_add_u32 s{sCnt}, s{sCnt}, 1")
    k.L(name)
    for c in range(8):
        I(f"s_add_u32 s{sT}, s{sDoff}, {c*1024}")
        I(f"buffer_load_dwordx4 a[{F0+4*c}:{F0+4*c+3}], v{vL16}, s[{SKV}:{SKV+3}], s{sT} offen")
    for j in range(8):
        ks, db = j >> 2, j & 3
        I(f"s_add_u32 s{sT}, s{sDoff}, {8192 + (db*2+ks)*1024}")
        I(f"buffer_load_dwordx4 a[{F1+4*j}:{F1+4*j+3}], v{vL16}, s[{SKV}:{SKV+3}], s{sT} offen")
    I("s_waitcnt vmcnt(8)")
    for c in range(8):
        C = "0" if c == 0 else f"v[{S0}:{S0+15}]"
        I(f"v_mfma_f32_32x32x16_bf16 v[{S0}:{S0+15}], a[{F0+4*c}:{F0+4*c+3}], a[{Q+4*c}:{Q+4*c+3}], {C}")
    for f in mask_group(S0, vTH0): I(f[0])
    I(f"v_max3_f32 v{mn}, v{S0}, v{S0+1}, v{m}")
    for r in range(2, 16, 2): I(f"v_max3_f32 v{mn}, v{S0+r}, v{S0+r+1}, v{mn}")
    I(f"v_mov_b32 v{t}, v{mn}")
    I(f"v_permlane32_swap_b32 v{mn}, v{t}")
    I(f"v_max_f32 v{mn}, v{mn}, v{t}")
    I(f"v_sub_f32 v{al}, v{m}, v{mn}")
    I(f"v_exp_f32 v{al}, v{al}")
    I(f"v_mov_b32 v{m}, v{mn}")
    I(f"v_mul_f32 v{l}, v{l}, v{al}")
    for r in range(16):
        I(f"v_sub_f32 v{S0+r}, v{S0+r}, v{mn}")
        I(f"v_exp_f32 v{S0+r}, v{S0+r}")
    for r in range(16): I(f"v_add_f32 v{l}, v{l}, v{S0+r}")
    for j in range(8): I(f"v_cvt_pk_bf16_f32 v{P0+j}, v{S0+2*j}, v{S0+2*j+1}")
    for r in range(64):
        I(f"v_accvgpr_read_b32 v{t}, a{O+r}")
        I(f"v_mul_f32 v{t}, v{t}, v{al}")
        I(f"v_accvgpr_write_b32 a{O+r}, v{t}")
    I("s_waitcnt vmcnt(0)")
    for mm in pv(O, F1, P0): I(mm)
    I(f"s_add_u32 s{sDoff}, s{sDoff}, 16384")
    I(f"v_subrev_u32 v{vTH0}, 32, v{vTH0}")
    I(f"s_sub_u32 s{sCnt}, s{sCnt}, 1")
    I(f"s_cmp_lg_u32 s{sCnt}, 0")
    I("s_nop 15")
    I(f"s_cbranch_scc1 {name}")
    I(f"v_mov_b32 v{LA0}, v{l}")
    I(f"v_mov_b32 v{LA1}, 0")
    epilogue(k, O, (LA0, LA1), sQ, 0, store_flags)

MARK0 = 0
LATE2 = []
KVLATE_STATE = True
MARKMAP = {3:10, 4:10, 5:11, 6:11, 7:11, 8:11, 9:11, 10:11, 11:11}
def amark(k, diag, i):
    import os
    if os.environ.get('FINE'): return
    mark(k, diag, MARKMAP[i] if MARK0 else i)

def att_part(k, diag, store_flags, C0, lateq, sQblkA, sQblkB, kidx, endlabel, reload_ptrs=False, tail_fn=None):
    I = k.I
    t0, t1 = vT, vT + 1
    I(f"s_mov_b32 s{sT}, {f32bits(QSCALE)}")
    I(f"v_mov_b32 v{vT+8}, s{sT}")
    I(f"v_mov_b32 v{vT+9}, s{sT}")
    for T, Q in ((0, QA), (1, QB)):
        for c in range(8):
            src = QACC + (T*4 + (c >> 1))*16 + 8*(c & 1)
            for j in range(4): I(f"v_pk_mul_f32 v[{src+2*j}:{src+2*j+1}], v[{src+2*j}:{src+2*j+1}], v[{vT+8}:{vT+9}]")
            for j in range(4): I(f"v_cvt_pk_bf16_f32 v{vT+j}, v{src+2*j}, v{src+2*j+1}")
            for j in range(4): I(f"v_accvgpr_write_b32 a{Q+4*c+j}, v{vT+j}")
            if len(lateq) > 1:
                I(f"s_mov_b32 s{sT2}, s{sT}")
                lateq.pop(0)(); I(f"s_mov_b32 s{sT}, s{sT2}")
    for r in range(128):
        I(f"v_accvgpr_write_b32 a{r}, 0")
        if r % 16 == 15 and lateq: lateq.pop(0)()
    while lateq: lateq.pop(0)()
    I(f"s_add_u32 m0, s{sWL}, {((8 + C0) % 8)*16384}")
    I(f"s_add_u32 s{sDoff}, s{sWL}, {8*16384}")
    for r in (LA0, LA1, LB0, LB1, LC0, LC1): I(f"v_mov_b32 v{r}, 0")
    I(f"v_and_b32 v{t0}, 31, v{LANE}")
    I(f"v_lshrrev_b32 v{t1}, 5, v{LANE}")
    I(f"v_lshlrev_b32 v{t1}, 2, v{t1}")
    I(f"v_sub_u32 v{t0}, v{t0}, v{t1}")
    I(f"s_lshl_b32 s{sT}, s{sQblkA}, 5")
    I(f"v_add_u32 v{vTH0}, s{sT}, v{t0}")
    I(f"v_mov_b32 v{vTHA}, v{vTH0}")
    I(f"s_lshl_b32 s{sT}, s{sQblkB}, 5")
    I(f"v_add_u32 v{vTH1}, s{sT}, v{t0}")
    I(f"v_mov_b32 v{vTHB}, v{vTH1}")
    amark(k, diag, 3)
    k.wait_vm("kv2", expect=4)
    I("s_barrier")
    I(f"v_add_u32 v{vA0}, {(C0 % 8)*16384}, v{vL16}")
    I(f"v_add_u32 v{vA2}, {((C0 + 1) % 8)*16384}, v{vL16}")
    I(f"v_add_u32 v{vA1}, {((C0 + 2) % 8)*16384}, v{vL16}")
    for c in range(8): I(rdK(F0, c, vA0))
    I("s_waitcnt lgkmcnt(0)")
    for S, Q in ((S0, QA), (S1, QB)):
        for c in range(8):
            C = "0" if c == 0 else f"v[{S}:{S+15}]"
            I(f"v_mfma_f32_32x32x16_bf16 v[{S}:{S+15}], a[{F0+4*c}:{F0+4*c+3}], a[{Q+4*c}:{Q+4*c+3}], {C}")
    for c in range(8): I(rdK(F0, c, vA2))
    for j in range(8): I(rdV(F1, j, vA0))
    I0 = I
    cntp = [0]
    def I(t, tag=None):
        I0(t, tag); cntp[0] += 1
        if LATE2 and cntp[0] % 10 == 0 and t.startswith("v_") and not t.startswith("v_cmp"): LATE2.pop(0)()
    for S, TH, NM in ((S0, vTH0, NMA), (S1, vTH1, NMB)):
        for f in mask_group(S, TH): I(f[0])
        I(f"v_max3_f32 v{t0}, v{S}, v{S+1}, v{S+2}")
        for r in range(3, 15, 2): I(f"v_max3_f32 v{t0}, v{S+r}, v{S+r+1}, v{t0}")
        I(f"v_max_f32 v{t0}, v{t0}, v{S+15}")
        I(f"v_mov_b32 v{t1}, v{t0}")
        I(f"v_permlane32_swap_b32 v{t0}, v{t1}")
        I(f"v_max_f32 v{t0}, v{t0}, v{t1}")
        for r in range(16): I(f"v_sub_f32 v{S+r}, v{S+r}, v{t0}")
        for r in range(16): I(f"v_sub_f32 v{NM+r}, 0, v{t0}")
    for f in exp_group(S0, list(range(16)), (LA0, LA1)): I(f[0])
    for f in cvt_group(S0, P0, 0, 8): I(f[0])
    for f in exp_group(S1, list(range(NE1A)), (LB0, LB1)): I(f[0])
    while LATE2: LATE2.pop(0)()
    I = I0
    if KVLATE_STATE:
        I(f"s_add_u32 m0, s{sWL}, {((8 + C0) % 8)*16384}")
        I(f"s_add_u32 s{sDoff}, s{sWL}, {8*16384}")
    amark(k, diag, 4)
    PFT = {7: (6, 4096*640*2, 0, 27), 4: (6, 4096*640*2, 3456, 15), 5: (8, 640*1728*2, 0, 19), 6: (10, 640*1728*2, 0, 23),
           3: (12, 640*1728*2, 0, 11), 2: (12, 640*1728*2, 1408, 7)}
    I(f"s_mov_b32 s{SPF}, s6")
    I(f"s_mov_b32 s{SPF+1}, s7")
    I(f"s_mov_b32 s{SPF+2}, 0")
    I(f"s_mov_b32 s{SPF+3}, 0x20000")
    I(f"s_mov_b32 s{sPFo}, 0")
    I(f"s_lshl_b32 s{sT2}, s{sH}, 2")
    I(f"s_add_u32 s{sT2}, s{sT2}, s{sW}")
    for ii, (lo, size, start, iters) in PFT.items():
        I(f"s_cmp_eq_u32 s{sI}, {ii}")
        I(f"s_cselect_b32 s{SPF}, s{lo}, s{SPF}")
        I(f"s_cselect_b32 s{SPF+1}, s{lo+1}, s{SPF+1}")
        I(f"s_cselect_b32 s{SPF+2}, {size}, s{SPF+2}")
        I(f"s_mul_i32 s{sT}, s{sT2}, {iters*1024}")
        I(f"s_add_u32 s{sT}, s{sT}, {start*1024}")
        I(f"s_cmp_eq_u32 s{sI}, {ii}")
        I(f"s_cselect_b32 s{sPFo}, s{sT}, s{sPFo}")
    loops = []
    I(f"s_lshl_b32 s{sCnt}, s{sI}, 2")
    I(f"s_sub_u32 s{sCnt}, s{sCnt}, 1")
    I(f"s_max_i32 s{sCnt}, s{sCnt}, 0")
    loop(k, "Lk2_dd", "DD", False)
    amark(k, diag, 5)
    I(f"s_cmp_eq_u32 s{sI}, 0")
    I(f"s_cselect_b32 s{sCnt}, 3, 4")
    I(f"s_lshl_b32 s{sT}, s{sI}, 2")
    I(f"s_max_u32 s{sT}, s{sT}, 1")
    I(f"s_lshl_b32 s{sT}, s{sT}, 5")
    I(f"v_subrev_u32 v{vTH0}, s{sT}, v{vTHA}")
    loop(k, "Lk2_ddm", "DD", True)
    amark(k, diag, 6)
    I(f"s_lshl_b32 s{sT}, s{sI}, 7")
    I(f"s_add_u32 s{sT}, s{sT}, 128")
    I(f"v_subrev_u32 v{vTH0}, s{sT}, v{vTHB}")
    I(f"v_subrev_u32 v{vTH1}, 32, v{vTH0}")
    i0 = len(k.items)
    body(k, "DS", True)
    ds_rng = (i0, len(k.items))
    amark(k, diag, 7)
    I(f"s_lshl_b32 s{sT}, s{sI}, 2")
    I(f"s_sub_u32 s{sCnt}, 27, s{sT}")
    I(f"s_max_i32 s{sCnt}, s{sCnt}, 0")
    loop(k, "Lk2_ss", "SS", False)
    amark(k, diag, 8)
    I(f"s_cmp_eq_u32 s{sI}, 7")
    I(f"s_cselect_b32 s{sCnt}, 1, 2")
    I(f"s_lshl_b32 s{sT}, s{sI}, 2")
    I(f"s_sub_u32 s{sT2}, 60, s{sT}")
    I(f"s_add_u32 s{sT}, s{sT}, 6")
    I(f"s_max_u32 s{sT}, s{sT}, s{sT2}")
    I(f"s_lshl_b32 s{sT}, s{sT}, 5")
    I(f"v_subrev_u32 v{vTH0}, s{sT}, v{vTHB}")
    I(f"v_subrev_u32 v{vTH1}, 32, v{vTH0}")
    loop(k, "Lk2_ssm", "SS", True)
    amark(k, diag, 9)
    body(k, "SE", False)
    amark(k, diag, 10)
    if CODEPF2:
        code_touch(k, k.name, "Lk2_noslowB", "Lcode_end", 10, 64, S0, S0 + 1, S0 + 2)
    if not RETILE:
        epilogue(k, OA, (LA0, LA1), sQA, 1, store_flags)
        epilogue(k, OB, (LB0, LB1, LC0, LC1), sQB, 2, store_flags)
    else:
        SWO, SWOT = 16, 20
        vWO, vWOr, WOF = S0, S0 + 5, S1
        I("s_barrier")
        srd(k, SWO, 6, 7, 4096*640*2)
        srd(k, SWOT, 14, 15, WOT_SIZE, WOT_OFF)
        I(f"s_mov_b32 s{sCnt}, 1639")
        I(f"s_mul_i32 s{sT2}, s{sW}, 320")
        for u in range(5):
            I(f"v_add_u32 v{t0}, s{sT2}, v{LANE}")
            I(f"v_add_u32 v{t0}, {64*u}, v{t0}")
            I(f"v_mul_lo_u32 v{t1}, v{t0}, s{sCnt}")
            I(f"v_lshrrev_b32 v{t1}, 16, v{t1}")
            I(f"v_mul_u32_u24 v{vWO+u}, 40, v{t1}")
            I(f"v_sub_u32 v{t0}, v{t0}, v{vWO+u}")
            I(f"v_mul_u32_u24 v{t1}, 1280, v{t1}")
            I(f"v_lshl_add_u32 v{vWO+u}, v{t0}, 4, v{t1}")
        I(f"s_lshr_b32 s{sT}, s2, 1")
        I(f"s_mul_i32 s{sDoff}, s{sT}, {32*1280}")
        I(f"s_and_b32 s{sT}, s2, 1")
        I(f"s_mul_i32 s{sT}, s{sT}, 640")
        I(f"s_add_u32 s{sDoff}, s{sDoff}, s{sT}")
        I(f"s_mul_i32 s{sT2}, s{sW}, 5120")
        for u in range(5):
            I(f"s_add_u32 m0, s{sT2}, {u*1024}")
            I(f"buffer_load_dwordx4 v{vWO+u}, s[{SWO}:{SWO+3}], s{sDoff} offen lds", tag="wo")
        I(f"v_lshrrev_b32 v{t0}, 5, v{LANE}")
        I(f"v_lshlrev_b32 v{t0}, 4, v{t0}")
        I(f"v_bfe_u32 v{t1}, v{LANE}, 4, 1")
        I(f"v_lshl_add_u32 v{t0}, v{t1}, 2, v{t0}")
        I(f"v_bfe_u32 v{t1}, v{LANE}, 2, 2")
        I(f"v_add_u32 v{t0}, v{t0}, v{t1}")
        I(f"v_mul_u32_u24 v{vWOr}, 640, v{t0}")
        I(f"v_and_b32 v{t1}, 3, v{LANE}")
        I(f"v_lshl_add_u32 v{vWOr}, v{t1}, {4 if SPLITK else 3}, v{vWOr}")
        I(f"s_mul_i32 s{sT}, s{sW}, {64 if SPLITK else 160}")
        I(f"v_add_u32 v{vWOr}, s{sT}, v{vWOr}")
        epilogue(k, OA, (LA0, LA1), sQA, 1, store_flags)
        epilogue(k, OB, (LB0, LB1, LC0, LC1), sQB, 2, store_flags)
        k.wait_vm("wo", expect=5)
        I("s_barrier")
        if SPLITK:
            for j in range(3):
                for h2 in range(2):
                    r = WOF + (j*2 + h2)*4
                    I(f"ds_read_b64_tr_b16 v[{r}:{r+1}], v{vWOr} offset:{j*256 + h2*8}")
                    I(f"ds_read_b64_tr_b16 v[{r+2}:{r+3}], v{vWOr} offset:{j*256 + h2*8 + 8*640}")
            I("s_waitcnt lgkmcnt(0)")
            for j in range(3):
                I(f"s_add_u32 s{sT}, s{sW}, {4*j}")
                I(f"s_cmp_ge_u32 s{sT}, 5")
                I(f"s_cselect_b32 s{sT2}, 1, 0")
                I(f"s_mul_i32 s{sDoff}, s{sT2}, 5")
                I(f"s_sub_u32 s{sDoff}, s{sT}, s{sDoff}")
                I(f"s_lshl_b32 s{sDoff}, s{sDoff}, 11")
                I(f"s_and_b32 s{sCnt}, s2, 1")
                I(f"s_lshl_b32 s{sCnt}, s{sCnt}, 1")
                I(f"s_add_u32 s{sCnt}, s{sCnt}, s{sT2}")
                I(f"s_lshl_b32 s{sCnt}, s{sCnt}, 7")
                I(f"s_lshr_b32 s{sT2}, s2, 1")
                I(f"s_add_u32 s{sCnt}, s{sCnt}, s{sT2}")
                I(f"s_mul_i32 s{sCnt}, s{sCnt}, 10240")
                I(f"s_add_u32 s{sDoff}, s{sDoff}, s{sCnt}")
                I(f"s_cmp_ge_u32 s{sT}, 10")
                I(f"s_cselect_b32 s{sDoff}, {WOT_SIZE}, s{sDoff}")
                for h2 in range(2):
                    r = WOF + (j*2 + h2)*4
                    I(f"buffer_store_dwordx4 v[{r}:{r+3}], v{vL16}, s[{SWOT}:{SWOT+3}], s{sDoff} offen offset:{h2*1024} {store_flags}")
        else:
            for nt in range(5):
                I(f"ds_read_b64_tr_b16 v[{WOF+4*nt}:{WOF+4*nt+1}], v{vWOr} offset:{nt*32}")
                I(f"ds_read_b64_tr_b16 v[{WOF+4*nt+2}:{WOF+4*nt+3}], v{vWOr} offset:{nt*32 + 8*640}")
            I(f"s_and_b32 s{sDoff}, s2, 1")
            I(f"s_lshl_b32 s{sDoff}, s{sDoff}, 2")
            I(f"s_add_u32 s{sDoff}, s{sDoff}, s{sW}")
            I(f"s_lshl_b32 s{sDoff}, s{sDoff}, 7")
            I(f"s_lshr_b32 s{sT}, s2, 1")
            I(f"s_add_u32 s{sDoff}, s{sDoff}, s{sT}")
            I(f"s_mul_i32 s{sDoff}, s{sDoff}, 5120")
            I("s_waitcnt lgkmcnt(0)")
            for nt in range(5):
                I(f"s_add_u32 s{sT}, s{sDoff}, {nt*1024}")
                I(f"buffer_store_dwordx4 v[{WOF+4*nt}:{WOF+4*nt+3}], v{vL16}, s[{SWOT}:{SWOT+3}], s{sT} offen {store_flags}")
    amark(k, diag, 11)
    I(f"s_bitcmp1_b32 s{sFlag}, 0")
    I("s_cbranch_scc0 Lk2_noslowA")
    I("s_waitcnt vmcnt(0)")
    slow_path(k, "Lk2_slowA", OA, QA, sQA, lambda: I(f"s_mov_b32 s{sCnt}, s{sQblkA}"), store_flags)
    k.L("Lk2_noslowA")
    I(f"s_bitcmp1_b32 s{sFlag}, 1")
    I("s_cbranch_scc0 Lk2_noslowB")
    I("s_waitcnt vmcnt(0)")
    slow_path(k, "Lk2_slowB", OB, QB, sQB, lambda: I(f"s_mov_b32 s{sCnt}, s{sQblkB}"), store_flags)
    k.L("Lk2_noslowB")
    if tail_fn: tail_fn()
    dump_marks(k, diag, kidx, 14, 15, 24)
    stamp_end(k, diag, kidx, 14, 15, vtmp=24)
    k.L(endlabel)
    I("s_endpgm")

def finish_k2(k):
    k.fix_hazards()
    trace = []
    items = k.items
    lab = {it[:-1]: idx for idx, it in enumerate(items) if isinstance(it, str) and it.endswith(":")}
    idx = 0
    names = ["Lk2_dd", "Lk2_ddm", "Lk2_ss", "Lk2_ssm"]
    segs = []
    pos = 0
    for nm in names:
        a, b = lab[nm], lab[nm + "_end"]
        segs.append(items[pos:a]); segs.append(items[a:b]); segs.append(items[a:b]); pos = b
    segs.append(items[pos:lab["Lk2_noslowA"]])
    for s_ in segs: trace += s_
    pr = check_seq(trace, "k2") + check_waits(trace, "k2")
    trace2 = items[:lab["Lk2_dd"]] + items[lab["Lk2_dd_end"]:lab["Lk2_ss"]] + items[lab["Lk2_ss_end"]:lab["Lk2_noslowA"]]
    pr += check_seq(trace2, "k2z") + check_waits(trace2, "k2z")
    for p_ in pr[:20]: print(p_)
    print("k2 problems:", len(pr))

def gen_k2(diag=False, store_flags="sc1", force_slow=0, dbg=""):
    global DBG
    DBG = dbg
    k = Kern("k2_kernel")
    I = k.I
    I("s_cmp_ge_u32 s2, 256")
    I("s_cbranch_scc1 Lk2_end")
    stamp_begin(k, diag)
    I(f"s_load_dwordx2 s[4:5], s[0:1], {KA['wq']}")
    I(f"s_load_dwordx2 s[14:15], s[0:1], {KA['ws']}")
    I(f"s_load_dwordx2 s[6:7], s[0:1], {KA['wo']}")
    I(f"s_load_dwordx4 s[8:11], s[0:1], {KA['wg']}")
    I(f"s_load_dwordx2 s[12:13], s[0:1], {KA['wd']}")
    I("v_lshrrev_b32 v1, 6, v0")
    I(f"v_and_b32 v{LANE}, 63, v0")
    I(f"v_readfirstlane_b32 s{sW}, v1")
    I(f"s_and_b32 s{sT}, s2, 7")
    I(f"s_lshr_b32 s{sT2}, s2, 3")
    I(f"s_and_b32 s{sH}, s{sT2}, 3")
    I(f"s_lshl_b32 s{sT}, s{sT}, 2")
    I(f"s_add_u32 s{sH}, s{sH}, s{sT}")
    I(f"s_lshr_b32 s{sI}, s2, 5")
    I("s_waitcnt lgkmcnt(0)")
    srd(k, SXN, 14, 15, XN_SIZE, XN_OFF)
    srd(k, SWQ, 4, 5, 640*4096*2)
    I(f"s_lshl_b32 s{sT}, s{sH}, 20")
    I(f"s_add_u32 s{sT}, s{sT}, {KV_OFF}")
    I(f"s_add_u32 s{SKV}, s14, s{sT}")
    I(f"s_addc_u32 s{SKV+1}, s15, 0")
    I(f"s_lshl_b32 s{sT}, s{sI}, 16")
    I(f"s_sub_u32 s{SKV+2}, {64*16384}, s{sT}")
    I(f"s_mov_b32 s{SKV+3}, 0x20000")
    srd(k, SCTX, 14, 15, CTX_SIZE, CTX_OFF)
    t0, t1 = vT, vT + 1
    I(f"v_lshlrev_b32 v{vL16}, 4, v{LANE}")
    I(f"v_lshrrev_b32 v{t0}, 4, v{LANE}")
    I(f"v_lshlrev_b32 v{vWQ}, 13, v{t0}")
    I(f"v_lshlrev_b32 v{t0}, 2, v{t0}")
    I(f"v_and_b32 v{t1}, 15, v{LANE}")
    I(f"v_xor_b32 v{t0}, v{t0}, v{t1}")
    I(f"v_lshl_add_u32 v{vWQ}, v{t0}, 4, v{vWQ}")
    I(f"v_lshrrev_b32 v{t1}, 5, v{LANE}")
    I(f"v_bfe_u32 v{t0}, v{LANE}, 2, 2")
    I(f"v_lshl_add_u32 v{t1}, v{t1}, 3, v{t0}")
    I(f"v_lshlrev_b32 v{t1}, 8, v{t1}")
    I(f"v_bfe_u32 v{t0+2}, v{LANE}, 4, 1")
    I(f"v_lshl_add_u32 v{t1}, v{t0+2}, 5, v{t1}")
    I(f"v_and_b32 v{t0+2}, 3, v{LANE}")
    I(f"v_lshl_add_u32 v{t1}, v{t0+2}, 3, v{t1}")
    for db in range(4):
        I(f"v_xor_b32 v{t0+2}, {db}, v{t0}")
        I(f"v_lshl_add_u32 v{vQ+db}, v{t0+2}, 6, v{t1}")
    I(f"v_mov_b32 v{vNINF}, 0xff800000")
    I(f"s_lshl_b32 s{sWL}, s{sW}, 12")
    sQblkA, sQblkB = 56, 57
    I(f"s_lshl_b32 s{sT}, s{sI}, 2")
    I(f"s_add_u32 s{sQblkA}, s{sT}, s{sW}")
    I(f"s_sub_u32 s{sQblkB}, 60, s{sT}")
    I(f"s_add_u32 s{sQblkB}, s{sQblkB}, s{sW}")
    sXA, sXB, sWq = 58, 59, 60+32
    sXA, sXB, sWq = 58, 59, 88
    I(f"s_mul_i32 s{sXA}, s{sQblkA}, 40960")
    I(f"s_mul_i32 s{sXB}, s{sQblkB}, 40960")
    for sq, sb in ((sQA, sQblkA), (sQB, sQblkB)):
        I(f"s_lshl_b32 s{sq}, s{sb}, 5")
        I(f"s_add_u32 s{sq}, s{sq}, s{sH}")
        I(f"s_lshl_b32 s{sq}, s{sq}, 13")
    I(f"s_lshl_b32 s{sWq}, s{sW}, 17")
    I(f"s_lshl_b32 s{sT}, s{sH}, 8")
    I(f"s_add_u32 s{sWq}, s{sWq}, s{sT}")
    I(f"s_mov_b32 s{sFlag}, {force_slow}")
    XR = 0
    QACC = 128
    def xload(s):
        for T, sx in ((0, sXA), (1, sXB)):
            a = XR + ((2*s + T) % 32)*4
            I(f"s_add_u32 s{sT}, s{sx}, {s*1024}")
            I(f"buffer_load_dwordx4 a[{a}:{a+3}], v{vL16}, s[{SXN}:{SXN+3}], s{sT} offen", tag=f"x{s}")
    def wdma_one(g, u):
        I(f"s_add_u32 m0, s{sWL}, {(g % 8)*16384 + u*1024}")
        I(f"s_add_u32 s{sT}, s{sWq}, {(64*g + 4*u)*8192}")
        I(f"buffer_load_dwordx4 v{vWQ}, s[{SWQ}:{SWQ+3}], s{sT} offen lds", tag=f"w{g}")
    def kv_one(blk, u):
        I(f"s_add_u32 m0, s{sWL}, {((blk + 10) % 8)*16384}")
        I(f"s_add_u32 s{sT}, s{sWL}, {blk*16384}")
        I(f"buffer_load_dwordx4 v{vL16}, s[{SKV}:{SKV+3}], s{sT} offen offset:{u*1024} lds", tag=f"kv{blk}")
    def kv_closures(blk): return [lambda u=u: kv_one(blk, u) for u in range(4)]
    def wread(n):
        g, s = n >> 2, n & 3
        F = F0 if n % 2 == 0 else F1
        F = F0 + (n % 2)*16
        off = (g % 8)*16384 + s*4096
        hi = off >= 65536
        for db in range(4):
            vb = vQ + db
            o = off
            if hi: vb = vT + 8 + db; o = off - 65536
            I(f"ds_read_b64_tr_b16 a[{F+4*db}:{F+4*db+1}], v{vb} offset:{o}", tag=f"r{n}")
            I(f"ds_read_b64_tr_b16 a[{F+4*db+2}:{F+4*db+3}], v{vb} offset:{o+1024}", tag=f"r{n}")
    for db in range(4): I(f"v_add_u32 v{vT+8+db}, 0x10000, v{vQ+db}")
    mark(k, diag, 0)
    for u in range(4): wdma_one(0, u)
    for s in range(0, 4): xload(s)
    for u in range(4): wdma_one(1, u)
    for s in range(4, 8): xload(s)
    for g in (2, 3):
        for u in range(4): wdma_one(g, u)
    gapq = []
    for s in range(8, 16): gapq.append(lambda s=s: xload(s))
    for g in range(4, 8):
        for u in range(4): gapq.append(lambda g=g, u=u: wdma_one(g, u))
    k.wait_vm("w0", expect=4)
    I("s_barrier")
    mark(k, diag, 1)
    wread(0)
    for n in range(40):
        g, s = n >> 2, n & 3
        if s == 2:
            if g + 1 < 10: k.wait_vm(f"w{g+1}", expect=4)
            I("s_barrier")
            if g >= 1:
                q = g - 1 + 8
                if q < 10:
                    for u in range(4): gapq.append(lambda q=q, u=u: wdma_one(q, u))
                elif g >= 7:
                    gapq += kv_closures(g - 7)
        if n + 1 < 40: wread(n + 1)
        k.wait_vm(f"x{n}", expect=2)
        k.wait_lg(f"r{n}")
        F = F0 + (n % 2)*16
        for db in range(4):
            for T in range(2):
                d = QACC + (T*4 + db)*16
                a = XR + ((2*n + T) % 32)*4
                c = "0" if n == 0 else f"v[{d}:{d+15}]"
                I(f"v_mfma_f32_32x32x16_bf16 v[{d}:{d+15}], a[{F+4*db}:{F+4*db+3}], a[{a}:{a+3}], {c}")
                if gapq: gapq.pop(0)()
        if n + 16 < 40: gapq.append(lambda s=n+16: xload(s))
    while gapq: gapq.pop(0)()
    mark(k, diag, 2)
    I("s_barrier")
    lateq = []
    for blk in range(3, 8): lateq += kv_closures(blk)
    att_part(k, diag, store_flags, 10, lateq, sQblkA, sQblkB, 1, "Lk2_end")
    finish_k2(k)
    return k, 256, 256, 131072
```

```python
import re
from common import *
import k2
from k2 import (LANE, vL16, vWQ, vNINF, vQ, vT, SXN, SWQ, SKV, SCTX, sW, sH, sI, sWL, sQA, sQB, sFlag, QACC, att_part, finish_k2)

SPIN_MAX = 1 << 22
import os
FINE = bool(os.environ.get('FINE'))

class Flat:
    def __init__(self, k): self.k = k; self.pend = []; self.mf = 0
    def emit(self, text, tag=None, age=3):
        k = self.k
        for line in text.split("\n"):
            line = line.strip()
            if not line: continue
            if line.endswith(":") or line.startswith(";"):
                k.I(line); continue
            it = Ins(line)
            if it.mn == "s_waitcnt":
                m = re.search(r"lgkmcnt\((\d+)\)", line)
                if m:
                    nn = int(m.group(1)); self.pend = self.pend[len(self.pend)-nn:] if 0 < nn < len(self.pend) else ([] if nn == 0 else self.pend)
            touched = set(it.src) | set(it.dst)
            if it.cls != "ds":
                need = -1
                for i, (d, _) in enumerate(self.pend):
                    if d & touched: need = i
                if need >= 0:
                    j = need
                    while j + 1 < len(self.pend) and self.mf - self.pend[j+1][1] >= age + 1: j += 1
                    nn = min(len(self.pend) - 1 - j, 15)
                    k.I(f"s_waitcnt lgkmcnt({nn})")
                    self.pend = self.pend[len(self.pend)-nn:] if nn > 0 else []
            if it.cls == "mfma": self.mf += 1
            if it.cls == "ds": self.pend.append((set(it.dst), self.mf))
            k.I(line, tag)

def gen_k12(diag=False, ROT=0, FUSE3=True, ALLTAIL=True, CODEPF=1, TOUCH=0, store_flags="sc1", wnt="nt", force_slow=0, STORE_EVERY=8, touch_at=12, qnt="", xtouch=False, FLAG_AT=None, kvflags=None, XLA=14):
    if kvflags is None: kvflags = store_flags
    k = Kern("k12_kernel")
    fl = Flat(k)
    I = fl.emit
    I("s_cmp_ge_u32 s2, 256")
    I("s_cbranch_scc1 Lk12_end")
    stamp_begin(k, diag)
    I(f"s_load_dwordx4 s[4:7], s[0:1], {KA['x']}")
    I(f"s_load_dwordx4 s[8:11], s[0:1], {KA['wuk']}")
    I(f"s_load_dwordx2 s[14:15], s[0:1], {KA['ws']}")
    I(f"s_load_dwordx2 s[56:57], s[0:1], {KA['wq']}")
    I(f"s_load_dwordx2 s[12:13], s[0:1], {KA['dbg']}")
    I("v_lshrrev_b32 v1, 6, v0")
    I(f"v_and_b32 v{LANE}, 63, v0")
    I("v_readfirstlane_b32 s40, v1")
    I("s_and_b32 s43, s2, 7")
    I("s_lshr_b32 s44, s2, 3")
    I("s_and_b32 s41, s44, 3")
    I("s_lshl_b32 s43, s43, 2")
    I("s_add_u32 s41, s41, s43")
    I("s_lshr_b32 s42, s44, 2")
    I("s_waitcnt lgkmcnt(0)")
    fl.pend = []
    mark(k, diag, 0)
    SX, SC, SWK, SWV, SKVO, SXNO, SDBG = 16, 20, 24, 28, 32, 36, 84
    srd(k, SC, 6, 7, 2048*512*2)
    srd(k, SWK, 8, 9, 512*4096*2)
    srd(k, SWV, 10, 11, 512*4096*2)
    vXA, vXB, vLX, vLO = 36, 37, 45, 46
    vXR, vXRh = 48, 40
    vQh, vQg = 32, 58
    t0, t1 = 52, 53
    vPoll, vZero, vAOff, vOne = 54, 55, 56, 57
    vPA, vPD = 47, 8+4
    sX0, sX1, sKVb, sT, sEPS = 48, 49, 52, 53, 54
    sQblkA, sQblkB, sXA, sXB, sWq = 56, 57, 58, 59, 88
    sT3, sPol = 43, 44
    sNonce0 = 47
    I(f"v_lshrrev_b32 v{t0}, 3, v{LANE}")
    I(f"v_lshlrev_b32 v{vXA}, 10, v{t0}")
    I(f"v_lshrrev_b32 v{t0}, 4, v{LANE}")
    I(f"v_and_b32 v{t1}, 7, v{LANE}")
    I(f"v_xor_b32 v{t0}, v{t0}, v{t1}")
    I(f"v_lshl_add_u32 v{vXA}, v{t0}, 4, v{vXA}")
    I(f"v_xor_b32 v{vXB}, 64, v{vXA}")
    I(f"s_lshl_b32 s{sX0}, s42, 8")
    I(f"s_lshl_b32 s{sT}, s40, 6")
    I(f"s_add_u32 s{sX0}, s{sX0}, s{sT}")
    I(f"s_lshl_b32 s{sX0}, s{sX0}, 10")
    I(f"s_lshl_b32 s{sX1}, s40, 13")
    I(f"v_lshrrev_b32 v{t0}, 4, v{LANE}")
    I(f"v_lshlrev_b32 v{vWQ}, 13, v{t0}")
    I(f"v_lshlrev_b32 v{t0}, 2, v{t0}")
    I(f"v_and_b32 v{t1}, 15, v{LANE}")
    I(f"v_xor_b32 v{t0}, v{t0}, v{t1}")
    I(f"v_lshl_add_u32 v{vWQ}, v{t0}, 4, v{vWQ}")
    I(f"s_lshl_b32 s{sWq}, s{sW}, 17")
    I(f"s_lshl_b32 s{sT}, s{sH}, 8")
    I(f"s_add_u32 s{sWq}, s{sWq}, s{sT}")
    I(f"s_lshl_b32 s{sWL}, s{sW}, 12")
    XB = lambda s: (s % 3)*32768
    WB = lambda s: 98304 + (s & 1)*32768
    sRot, sXs, sWs = 96, 97, 55
    if ROT:
        k.I(f"s_and_b32 s{sRot}, s{sH}, 3"); k.I(f"s_lshl_b32 s{sRot}, s{sRot}, 1"); k.I(f"s_add_u32 s{sRot}, s{sRot}, s{sI}")
    else:
        k.I(f"s_mov_b32 s{sRot}, 0")
    def xdma_one(s, u):
        if u == 0:
            k.I(f"s_add_u32 s{sXs}, s{sRot}, {s}"); k.I(f"s_and_b32 s{sXs}, s{sXs}, 7"); k.I(f"s_lshl_b32 s{sXs}, s{sXs}, 7")
            k.I(f"s_add_u32 s{sXs}, s{sXs}, s{sX0}")
        k.I(f"s_add_u32 m0, s{sX1}, {XB(s) + u*1024}")
        k.I(f"s_add_u32 s{sT}, s{sXs}, {u*8192}")
        k.I(f"buffer_load_dwordx4 v{vXA if u % 2 == 0 else vXB}, s[{SC}:{SC+3}], s{sT} offen lds", tag=f"X{s}")
    def wdma_one(s, m, u):
        S = SWK if m == 0 else SWV
        if m == 0 and u == 0:
            k.I(f"s_add_u32 s{sWs}, s{sRot}, {s}"); k.I(f"s_and_b32 s{sWs}, s{sWs}, 7"); k.I(f"s_lshl_b32 s{sWs}, s{sWs}, 19")
            k.I(f"s_add_u32 s{sWs}, s{sWs}, s{sWq}")
        k.I(f"s_add_u32 m0, s{sWL}, {WB(s) + m*16384 + u*1024}")
        k.I(f"s_add_u32 s{sT}, s{sWs}, {4*u*8192}")
        k.I(f"buffer_load_dwordx4 v{vWQ}, s[{S}:{S+3}], s{sT} offen {wnt if (s == 0 or not TOUCH) else str()} lds", tag=f"W{s}")
    def xd(s): return [lambda u=u: xdma_one(s, u) for u in range(8)]
    def wd(s): return [lambda m=m, u=u: wdma_one(s, m, u) for m in range(2) for u in range(4)]
    vTX, vTW = 22, 23
    sTX, sTW = 55, 89
    if TOUCH:
        J = k.I
        J(f"s_and_b32 s45, s{sH}, 3"); J(f"s_lshl_b32 s45, s45, 6"); J(f"s_lshl_b32 s46, s42, 8"); J(f"s_add_u32 s45, s45, s46")
        J(f"s_lshl_b32 s{sTX}, s45, 10")
        J(f"v_lshlrev_b32 v{vTX}, 10, v{LANE}")
        J(f"v_mov_b32 v10, 0x2000000")
        J(f"v_cmp_gt_u32 vcc, 64, v0"); J(f"v_cndmask_b32 v{vTX}, v10, v{vTX}, vcc")
        J(f"s_lshl_b32 s45, s42, 16"); J(f"s_lshl_b32 s46, s{sH}, 8"); J(f"s_add_u32 s{sTW}, s45, s46")
        J(f"v_lshrrev_b32 v{vTW}, 1, v{LANE}"); J(f"v_lshlrev_b32 v{vTW}, 13, v{vTW}")
        J(f"v_and_b32 v11, 1, v{LANE}"); J(f"v_lshl_add_u32 v{vTW}, v11, 7, v{vTW}")
        J(f"v_cmp_gt_u32 vcc, 16, v{LANE}"); J(f"v_cndmask_b32 v{vTW}, v10, v{vTW}, vcc")
        J(f"s_cmp_eq_u32 s{sW}, 2")
        J(f"s_cselect_b32 s64, s{SWV}, s{SWK}"); J(f"s_cselect_b32 s65, s{SWV+1}, s{SWK+1}")
        J(f"s_sub_u32 s45, s{sW}, 1"); J(f"s_cmp_lt_u32 s45, 2")
        J(f"s_cselect_b32 s66, {512*4096*2}, 0"); J(f"s_mov_b32 s67, 0x20000")
    def tx(S):
        k.I(f"s_add_u32 s{sT}, s{sTX}, {S*128}")
        k.I(f"buffer_load_dword v21, v{vTX}, s[{SC}:{SC+3}], s{sT} offen", tag="touch")
        k.I(f"s_add_u32 s{sT}, s{sTW}, {64*S*8192}")
        k.I(f"buffer_load_dword v21, v{vTW}, s[64:67], s{sT} offen", tag="touch")
    if TOUCH:
        tx(1); tx(2)
        for f in xd(0)[:4] + wd(0)[:4] + xd(0)[4:] + wd(0)[4:]: f()
        tx(3)
        for f in xd(1) + wd(1): f()
        tx(4); tx(5)
    else:
        for f in xd(0)[:4] + wd(0)[:4] + xd(0)[4:] + wd(0)[4:]: f()
        if CODEPF:
            J = k.I
            J("s_getpc_b64 s[64:65]")
            k.L("Lk12_pc")
            J("s_sub_u32 s64, s64, Lk12_pc-k12_kernel")
            J("s_subb_u32 s65, s65, 0")
            J("s_mov_b32 s66, Lcode_end-k12_kernel")
            J("s_mov_b32 s67, 0x20000")
            J("s_lshr_b32 s45, s2, 3")
            J("s_mul_i32 s45, s45, " + str(24*128))
            J(f"v_lshlrev_b32 v10, 7, v{LANE}")
            J("v_mov_b32 v11, 0x2000000")
            J("v_cmp_gt_u32 vcc, 24, v0")
            J("v_cndmask_b32 v10, v11, v10, vcc")
            J("buffer_load_dword v21, v10, s[64:67], s45 offen", tag="codepf")
        for f in xd(1) + wd(1): f()
    mark(k, diag, 1)
    srd(k, SX, 4, 5, 2048*640*2)
    srd(k, SKVO, 14, 15, KV_SIZE, KV_OFF)
    srd(k, SXNO, 14, 15, XN_SIZE, XN_OFF)
    srd(k, SDBG, 12, 13, 256)
    I(f"v_bfe_u32 v{t0}, v{LANE}, 4, 1")
    I("s_lshl_b32 s45, s2, 3")
    I("s_lshl_b32 s46, s40, 1")
    I("s_add_u32 s45, s45, s46")
    I(f"v_add_u32 v{t0}, s45, v{t0}")
    I(f"v_and_b32 v{t1}, 15, v{LANE}")
    I(f"v_mul_u32_u24 v{vLX}, 1280, v{t0}")
    I(f"v_lshl_add_u32 v{vLX}, v{t1}, 4, v{vLX}")
    LNX, LNO = 192, 144
    I(f"v_lshrrev_b32 v{vLO}, 5, v{t0}")
    I(f"v_mul_u32_u24 v{vLO}, 40960, v{vLO}")
    I(f"v_and_b32 v{t0}, 31, v{t0}")
    I(f"v_lshl_add_u32 v{vLO}, v{t0}, 4, v{vLO}")
    I(f"v_lshrrev_b32 v{t0}, 1, v{t1}")
    I(f"v_lshl_add_u32 v{vLO}, v{t0}, 10, v{vLO}")
    I(f"v_and_b32 v{t0}, 1, v{t1}")
    I(f"v_lshl_add_u32 v{vLO}, v{t0}, 9, v{vLO}")
    I(f"v_mov_b32 v{t0}, 0x1000000")
    I(f"v_cmp_gt_u32 vcc, 32, v{LANE}")
    I(f"v_cndmask_b32 v{vLO}, v{t0}, v{vLO}, vcc")
    srd(k, 92, 14, 15, ACC_SIZE, ACC_OFF)
    I(f"s_mul_i32 s45, s2, 96")
    I(f"v_lshlrev_b32 v{t0}, 2, v0")
    I(f"v_mov_b32 v{t1}, 0x100000")
    I(f"v_cmp_gt_u32 vcc, 24, v0")
    I(f"v_cndmask_b32 v{t0}, v{t1}, v{t0}, vcc")
    I(f"v_mov_b32 v{t1}, 0")
    I(f"buffer_store_dword v{t1}, v{t0}, s[92:95], s45 offen sc1")
    I(f"v_mov_b32 v{vZero}, 0")
    I(f"v_mov_b32 v{vOne}, 1")
    I(f"v_mov_b32 v{t1}, 0x100000")
    I(f"v_cmp_eq_u32 vcc, 0, v0")
    I(f"v_cndmask_b32 v{vAOff}, v{t1}, v{vZero}, vcc")
    k.I("s_memrealtime s[46:47]")
    k.I("s_waitcnt lgkmcnt(0)")
    k.I(f"s_or_b32 s{sNonce0}, s46, 1")
    k.I(f"v_mov_b32 v{vPoll}, s{sNonce0}")
    k.I(f"buffer_atomic_cmpswap v[{vPoll}:{vPoll+1}], v{vAOff}, s[{SDBG}:{SDBG+3}], 0 offen sc0 sc1", tag="nonce")
    I(f"v_lshrrev_b32 v{t1}, 5, v{LANE}")
    I(f"v_bfe_u32 v{t0}, v{LANE}, 1, 3")
    I(f"v_xor_b32 v{t0}, v{t0}, v{t1}")
    I(f"v_lshlrev_b32 v{t0}, 4, v{t0}")
    I(f"v_and_b32 v{vXR}, 31, v{LANE}")
    I(f"v_lshl_add_u32 v{vXR}, v{vXR}, 7, v{t0}")
    for j in range(1, 4):
        I(f"v_xor_b32 v{vXR+j}, {32*j}, v{vXR}")
        I(f"v_add_u32 v{vXR+j}, s{sX1}, v{vXR+j}")
    I(f"v_add_u32 v{vXR}, s{sX1}, v{vXR}")
    for j in range(4): I(f"v_add_u32 v{vXRh+j}, 0x10000, v{vXR+j}")
    a, b = t0, t1
    I(f"v_lshrrev_b32 v{b}, 5, v{LANE}")
    I(f"v_bfe_u32 v{a}, v{LANE}, 2, 2")
    I(f"v_lshl_add_u32 v{b}, v{b}, 3, v{a}")
    I(f"v_lshlrev_b32 v{b}, 8, v{b}")
    I(f"v_bfe_u32 v62, v{LANE}, 4, 1")
    I(f"v_lshl_add_u32 v{b}, v62, 5, v{b}")
    I(f"v_and_b32 v62, 3, v{LANE}")
    I(f"v_lshl_add_u32 v{b}, v62, 3, v{b}")
    for db in range(4):
        I(f"v_xor_b32 v62, {db}, v{a}")
        I(f"v_lshl_add_u32 v{vQ+db}, v62, 6, v{b}")
        I(f"v_add_u32 v{vQh+db}, 0x10000, v{vQ+db}")
        I(f"v_add_u32 v{vQg+db}, 0x20000, v{vQ+db}")
    I(f"v_lshlrev_b32 v{vL16}, 4, v{LANE}")
    I(f"v_mov_b32 v{vNINF}, 0xff800000")
    I(f"s_lshl_b32 s{sKVb}, s41, 6")
    I(f"s_lshl_b32 s{sT}, s42, 3")
    I(f"s_add_u32 s{sKVb}, s{sKVb}, s{sT}")
    I(f"s_lshl_b32 s{sT}, s40, 1")
    I(f"s_add_u32 s{sKVb}, s{sKVb}, s{sT}")
    I(f"s_lshl_b32 s{sKVb}, s{sKVb}, 14")
    I(f"s_mov_b32 s{sEPS}, {f32bits(1e-5)}")
    def tr_base(ldsoff):
        if ldsoff < 65536: return vQ, ldsoff
        if ldsoff < 131072: return vQh, ldsoff - 65536
        return vQg, ldsoff - 131072
    WR, XF = 64, 128
    def kv_reads(n):
        s, sp = n >> 2, n & 3
        out = []
        xo = XB(s)
        xr, xo = (vXR, xo) if xo < 65536 - 8192 else (vXRh, xo - 65536)
        for bb in range(2):
            r = XF + (n & 1)*8 + bb*4
            out.append(f"ds_read_b128 v[{r}:{r+3}], v{xr+sp} offset:{xo + bb*4096}")
        for db in range(4):
            for m in range(2):
                r = WR + (n & 1)*32 + m*16 + db*4
                base, o = tr_base(WB(s) + m*16384 + sp*4096)
                out.append(f"ds_read_b64_tr_b16 v[{r}:{r+1}], v{base+db} offset:{o}")
                out.append(f"ds_read_b64_tr_b16 v[{r+2}:{r+3}], v{base+db} offset:{o+1024}")
        return out
    def kv_mfmas(n):
        out = []
        for db in range(4):
            for m in range(2):
                w = WR + (n & 1)*32 + m*16 + db*4
                for bb in range(2):
                    x = XF + (n & 1)*8 + bb*4
                    d = m*128 + (db*2 + bb)*16
                    c = "0" if n == 0 else f"a[{d}:{d+15}]"
                    if m == 0: out.append(f"v_mfma_f32_32x32x16_bf16 a[{d}:{d+15}], v[{w}:{w+3}], v[{x}:{x+3}], {c}")
                    else:      out.append(f"v_mfma_f32_32x32x16_bf16 a[{d}:{d+15}], v[{x}:{x+3}], v[{w}:{w+3}], {c}")
        return out
    rec = Rec()
    ln_rows(rec, LNX, 5, 212, LNO, sEPS, T=24)
    lnq = list(rec.l)
    def ln_stores():
        for u in range(5):
            k.I(f"s_mov_b32 s{sT}, {u*8192}")
            k.I(f"buffer_store_dwordx4 v[{LNO+4*u}:{LNO+4*u+3}], v{vLO}, s[{SXNO}:{SXNO+3}], s{sT} offen sc1", tag="lnst")
    def lnload(u): k.I(f"buffer_load_dwordx4 v[{LNX+4*u}:{LNX+4*u+3}], v{vLX}, s[{SX}:{SX+3}], 0 offen offset:{256*u}", tag="lnx")
    QSLOT = {0: 4, 1: 5, 2: 0, 3: 1, 4: 6, 5: 7, 6: 2, 7: 3, 8: 8, 9: 9}
    C0 = 4
    XQV = [12, 16, 20, 24, 28, 36]
    def xq_reg(s, T):
        if s < 3: return "v", XQV[2*s + T]
        return "a", (8*((s - 3) % 32) + 4*T)
    def q_setup():
        r = Rec(); J = r.I
        J(f"s_mov_b32 s{SWQ}, s56"); J(f"s_mov_b32 s{SWQ+1}, s57"); J(f"s_mov_b32 s{SWQ+2}, {640*4096*2}"); J(f"s_mov_b32 s{SWQ+3}, 0x20000")
        J(f"s_add_u32 s{SXN}, s14, {XN_OFF}"); J(f"s_addc_u32 s{SXN+1}, s15, 0"); J(f"s_mov_b32 s{SXN+2}, {XN_SIZE}"); J(f"s_mov_b32 s{SXN+3}, 0x20000")
        J(f"s_lshl_b32 s{sT3}, s{sI}, 2")
        J(f"s_add_u32 s{sQblkA}, s{sT3}, s{sW}")
        J(f"s_sub_u32 s{sQblkB}, 60, s{sT3}")
        J(f"s_add_u32 s{sQblkB}, s{sQblkB}, s{sW}")
        J(f"s_mul_i32 s{sXA}, s{sQblkA}, 40960")
        J(f"s_mul_i32 s{sXB}, s{sQblkB}, 40960")
        return r.l
    def xq_load(s, T):
        c, r = xq_reg(s, T)
        k.I(f"s_add_u32 s{sT3}, s{sXA if T == 0 else sXB}, {s*1024}")
        k.I(f"buffer_load_dwordx4 {c}[{r}:{r+3}], v{vL16}, s[{SXN}:{SXN+3}], s{sT3} offen", tag=f"x{s}")
    def wq_one(g, u):
        k.I(f"s_add_u32 m0, s{sWL}, {QSLOT[g]*16384 + u*1024}")
        k.I(f"s_add_u32 s{sT3}, s{sWq}, {(64*g + 4*u)*8192}")
        k.I(f"buffer_load_dwordx4 v{vWQ}, s[{SWQ}:{SWQ+3}], s{sT3} offen {qnt} lds", tag=f"q{g}")
    def wq(g): return [lambda u=u: wq_one(g, u) for u in range(4)]
    SFL = 92
    sNonce = 47
    def flag_srd():
        k.I(f"s_add_u32 s{SFL}, s14, {FLG_OFF}"); k.I(f"s_addc_u32 s{SFL+1}, s15, 0")
        k.I(f"s_mov_b32 s{SFL+2}, {FLG_SIZE}"); k.I(f"s_mov_b32 s{SFL+3}, 0x20000")
    def get_nonce():
        k.wait_vm("nonce")
        k.I(f"v_readfirstlane_b32 s{sT3}, v{vPoll}")
        k.I(f"s_cmp_eq_u32 s{sT3}, 0")
        k.I(f"s_cselect_b32 s{sNonce}, s{sNonce}, s{sT3}")
        k.I(f"v_mov_b32 v{vOne}, s{sNonce}")
        k.I(f"s_mov_b32 s100, s{sNonce}")
    def set_flag(soff_expr):
        flag_srd(); soff_expr()
        k.I(f"buffer_store_dword v{vOne}, v{vAOff}, s[{SFL}:{SFL+3}], s{sT3} offen sc1", tag="sig")
    def poll_issue(kind, tag):
        flag_srd()
        J = k.I
        if kind == "ln":
            J(f"s_lshl_b32 s{sT3}, s{sI}, 2")
            J(f"v_add_u32 v62, s{sT3}, v{LANE}")
            J(f"s_sub_u32 s{sT3}, 56, s{sT3}")
            J(f"v_add_u32 v63, s{sT3}, v{LANE}")
            J(f"v_cmp_gt_u32 vcc, 4, v{LANE}")
            J(f"v_cndmask_b32 v62, v63, v62, vcc")
            J(f"v_add_u32 v62, 32, v62")
            J(f"v_lshlrev_b32 v62, 7, v62")
        else:
            J(f"s_lshl_b32 s{sT3}, s{sH}, 7")
            J(f"v_lshlrev_b32 v62, 2, v{LANE}")
            J(f"v_add_u32 v62, s{sT3}, v62")
        J(f"v_mov_b32 v63, 0x100000")
        J(f"v_cmp_gt_u32 vcc, 8, v0")
        J(f"v_cndmask_b32 v{vPA}, v63, v62, vcc")
        ld = "buffer_load_dwordx4 v[%d:%d]" % (vPD, vPD+3) if kind == "ln" else "buffer_load_dword v%d" % vPD
        J(f"{ld}, v{vPA}, s[{SFL}:{SFL+3}], 0 offen sc1", tag=tag)
    def poll_check(kind, tag, name):
        k.wait_vm(tag)
        J = k.I
        nreg = 4 if kind == "ln" else 1
        ld = "buffer_load_dwordx4 v[%d:%d]" % (vPD, vPD+3) if kind == "ln" else "buffer_load_dword v%d" % vPD
        def test():
            J(f"v_cmp_eq_u32 vcc, v{vOne}, v{vPD}")
            for q in range(1, nreg):
                J(f"v_cmp_eq_u32 s[90:91], v{vOne}, v{vPD+q}")
                J(f"s_and_b64 vcc, vcc, s[90:91]")
            J(f"s_and_b32 s{sT3}, vcc_lo, 0xff")
            J(f"s_cmp_eq_u32 s{sT3}, 0xff")
        J(f"s_cmp_lg_u32 s{sW}, 0")
        J(f"s_cbranch_scc1 {name}_ok")
        test()
        J(f"s_cbranch_scc1 {name}_ok")
        J(f"s_mov_b32 s45, {SPIN_MAX}")
        k.L(name + "_spin")
        flag_srd()
        J(f"{ld}, v{vPA}, s[{SFL}:{SFL+3}], 0 offen sc1")
        k.vm.pop()
        J("s_waitcnt vmcnt(0)")
        J(f"s_sub_u32 s45, s45, 1")
        J(f"s_cbranch_scc1 {name}_ok")
        test()
        J(f"s_cbranch_scc0 {name}_spin")
        k.L(name + "_ok")
    def ln_flag():
        k.I(f"s_lshr_b32 s{sT3}, s2, 2"); k.I(f"s_add_u32 s{sT3}, s{sT3}, 32"); k.I(f"s_lshl_b32 s{sT3}, s{sT3}, 7")
        k.I(f"s_and_b32 s46, s2, 3"); k.I(f"s_lshl_b32 s46, s46, 2"); k.I(f"s_add_u32 s{sT3}, s{sT3}, s46")
    def kv_flag():
        k.I(f"s_lshl_b32 s{sT3}, s{sH}, 7"); k.I(f"s_lshl_b32 s46, s{sI}, 2"); k.I(f"s_add_u32 s{sT3}, s{sT3}, s46")
    def touch_wq():
        J = k.I
        J(f"s_mov_b32 s92, s56"); J(f"s_mov_b32 s93, s57"); J(f"s_mov_b32 s94, {640*4096*2}"); J(f"s_mov_b32 s95, 0x20000")
        J(f"s_mul_i32 s45, s42, 80"); J(f"s_mul_i32 s46, s40, 20"); J(f"s_add_u32 s45, s45, s46")
        J(f"s_lshl_b32 s45, s45, 13"); J(f"s_lshl_b32 s46, s41, 8"); J(f"s_add_u32 s45, s45, s46")
        J(f"v_lshrrev_b32 v62, 1, v{LANE}"); J(f"v_lshlrev_b32 v62, 13, v62"); J(f"v_and_b32 v63, 1, v{LANE}")
        J(f"v_lshl_add_u32 v62, v63, 7, v62"); J(f"v_mov_b32 v63, 0x2000000")
        J(f"v_cmp_gt_u32 vcc, 40, v{LANE}"); J(f"v_cndmask_b32 v62, v63, v62, vcc")
        J(f"buffer_load_dword v11, v62, s[92:95], s45 offen", tag="touch")
    def touch_xn():
        J = k.I
        J(f"s_and_b32 s45, s{sH}, 3"); J(f"s_mul_i32 s45, s45, 160")
        for j in range(3):
            J(f"v_add_u32 v62, s45, v{LANE}")
            if j: J(f"v_add_u32 v62, {64*j}, v62")
            J(f"v_subrev_u32 v63, 320, v62")
            J(f"v_cmp_gt_u32 vcc, 320, v62")
            J(f"v_cndmask_b32 v63, v63, v62, vcc")
            J(f"v_lshlrev_b32 v63, 7, v63")
            J(f"v_mov_b32 v62, s{sXB}")
            J(f"v_mov_b32 v53, s{sXA}")
            J(f"v_cndmask_b32 v62, v62, v53, vcc")
            J(f"v_add_u32 v63, v63, v62")
            if j == 2:
                J(f"v_mov_b32 v62, 0x2000000"); J(f"v_cmp_gt_u32 vcc, 32, v{LANE}"); J(f"v_cndmask_b32 v63, v62, v63, vcc")
            J(f"buffer_load_dword v11, v63, s[{SXN}:{SXN+3}], 0 offen", tag="touch")
    mark(k, diag, 2)
    memq = xd(2) + ([lambda: tx(6), lambda: tx(7)] if TOUCH else []) + [lambda u=u: lnload(u) for u in range(5)]
    k.wait_vm("W0", expect=8)
    I("s_barrier")
    for t in kv_reads(0): I(t)
    mark(k, diag, 3)
    lnstarted = False; setupq = []
    for n in range(32):
        s, sp = n >> 2, n & 3
        if sp == 3 and s < 7:
            I("s_waitcnt lgkmcnt(0)")
            if FINE and s == 0: mark(k, diag, 14)
            k.wait_vm(f"W{s+1}", expect=8)
            if FINE and s == 0: mark(k, diag, 15)
            if s + 1 == 4: k.wait_vm("lnst", expect=5)
            if s + 1 == 7: poll_check("ln", "poll1", "Lk12_ln")
            I("s_barrier")
            if s + 1 == 7:
                if xtouch: memq.append(touch_xn)
                for s_ in range(3):
                    for T in range(2): memq.append(lambda s_=s_, T=T: xq_load(s_, T))
            if s + 1 == 4: get_nonce(); set_flag(ln_flag)
            if s + 2 < 8: memq += wd(s + 2)
            if s + 3 < 8: memq += xd(s + 3)
            if s + 1 == 6: memq += [lambda l=q_setup(): [k.I(x) for x in l]] + wq(0) + wq(1)
            if s + 1 == 7: memq += wq(2) + wq(3) + wq(4) + wq(5)
        if touch_at is not None and n == touch_at: memq.append(touch_wq)
        if n == 24: poll_issue("ln", "poll1")
        reads = kv_reads(n + 1) if n + 1 < 32 else []
        for gi, m in enumerate(kv_mfmas(n)):
            I(m)
            for _ in range(2):
                if reads and gi < 12: I(reads.pop(0))
            if memq and (gi % 2 == 0 or n < 8): memq.pop(0)()
            if n >= 5 and lnq:
                if not lnstarted:
                    k.wait_vm("lnx"); lnstarted = True
                for _ in range(3 if gi < 10 else 4):
                    if lnq: I(lnq.pop(0))
                if not lnq: memq.append(ln_stores)
        assert not reads
        if FINE:
            if n in (0, 1, 2, 3, 4, 7): mark(k, diag, {0: 4, 1: 5, 2: 6, 3: 7, 4: 12, 7: 13}[n])
        elif n in (31,): mark(k, diag, 7)
    while memq: memq.pop(0)()
    assert not lnq
    I("s_barrier")
    gapq = wq(6) + wq(7) + wq(8) + wq(9)
    def qreads(n):
        g, s = n >> 2, n & 3
        F = WR + (n % 2)*16
        base, o = tr_base(QSLOT[g]*16384 + s*4096)
        out = []
        for db in range(4):
            out.append(f"ds_read_b64_tr_b16 v[{F+4*db}:{F+4*db+1}], v{base+db} offset:{o}")
            out.append(f"ds_read_b64_tr_b16 v[{F+4*db+2}:{F+4*db+3}], v{base+db} offset:{o+1024}")
        return out
    def kv_one(blk, u):
        k.I(f"s_add_u32 m0, s{sWL}, {((blk + C0) % 8)*16384}")
        k.I(f"s_add_u32 s{sT3}, s{sWL}, {blk*16384}")
        k.I(f"buffer_load_dwordx4 v{vL16}, s[{SKV}:{SKV+3}], s{sT3} offen offset:{u*1024} lds", tag=f"kv{blk}")
    def kv_closures(blk): return [lambda u=u: kv_one(blk, u) for u in range(4)]
    conv = []
    for j in range(32):
        st = 96 + (j % 8)*4
        for q in range(4):
            t_ = (52, 62)[q & 1]
            conv.append((j, f"v_accvgpr_read_b32 v{t_}, a{8*j+2*q}"))
            conv.append((j, f"v_accvgpr_read_b32 v{t_+1}, a{8*j+2*q+1}"))
            conv.append((j, f"v_cvt_pk_bf16_f32 v{st+q}, v{t_}, v{t_+1}"))
    freed = -1
    stored = -1
    xq_next = 3
    def pop_conv(cnt):
        nonlocal freed
        for _ in range(cnt):
            if not conv: return
            j, t_ = conv[0]
            if j - 8 > stored: return
            conv.pop(0); I(t_)
            if not conv or conv[0][0] != j: freed = j
    def pop_store():
        nonlocal stored
        j = stored + 1
        if j >= 32 or j > freed: return False
        t, half = j >> 1, j & 1
        m, db, bb = t >> 3, (t >> 1) & 3, t & 1
        within = (2*db + half)*1024 if m == 0 else 8192 + (db*2 + half)*1024
        st = 96 + (j % 8)*4
        k.I(f"s_add_u32 s{sT}, s{sKVb}, {bb*16384 + within}")
        k.I(f"buffer_store_dwordx4 v[{st}:{st+3}], v{vL16}, s[{SKVO}:{SKVO+3}], s{sT} offen {kvflags}", tag="kvst")
        stored = j
        return True
    I(f"s_lshl_b32 s{sT3}, s{sH}, 20")
    I(f"s_add_u32 s{sT3}, s{sT3}, {KV_OFF}")
    I(f"s_add_u32 s{SKV}, s14, s{sT3}")
    I(f"s_addc_u32 s{SKV+1}, s15, 0")
    I(f"s_lshl_b32 s{sT3}, s{sI}, 16")
    I(f"s_sub_u32 s{SKV+2}, {64*16384}, s{sT3}")
    I(f"s_mov_b32 s{SKV+3}, 0x20000")
    srd(k, SCTX, 14, 15, CTX_SIZE, CTX_OFF)
    k.wait_vm("q0", expect=4)
    I("s_barrier")
    for t in qreads(0): I(t)
    mark(k, diag, 8)
    next_store = 2
    for n in range(40):
        g, s = n >> 2, n & 3
        if s == 2:
            if g + 1 < 10: k.wait_vm(f"q{g+1}", expect=4)
            if n == FLAG_AT:
                assert stored == 31, stored
                k.wait_vm("kvst", expect=32)
            if FLAG_AT is not None and n == FLAG_AT + 4: poll_check("kv", "poll2", "Lk12_kv")
            I("s_barrier")
            if n == FLAG_AT:
                set_flag(kv_flag); poll_issue("kv", "poll2")
            if FLAG_AT is not None and n == FLAG_AT + 4:
                for blk in range(3): gapq += kv_closures(blk)
        reads = qreads(n + 1) if n + 1 < 40 else []
        k.wait_vm(f"x{n}", expect=2)
        F = WR + (n % 2)*16
        gi = 0
        for db in range(4):
            for T in range(2):
                d = QACC + (T*4 + db)*16
                c_, r_ = xq_reg(n, T)
                c = "0" if n == 0 else f"v[{d}:{d+15}]"
                I(f"v_mfma_f32_32x32x16_bf16 v[{d}:{d+15}], v[{F+4*db}:{F+4*db+3}], {c_}[{r_}:{r_+3}], {c}")
                if reads: I(reads.pop(0))
                did = False
                if xq_next < 40 and xq_next <= n + XLA:
                    need = (xq_next - 3) % 32
                    ok = (freed >= need) if xq_next - 3 < 32 else (n > xq_next - 32)
                    if ok:
                        xq_load(xq_next, gi & 1 if False else 0); xq_load(xq_next, 1); xq_next += 1; did = True
                if not did and (8*n + gi) >= next_store and pop_store(): did = True; next_store = 8*n + gi + STORE_EVERY
                if not did and gapq: gapq.pop(0)()
                pop_conv(3)
                gi += 1
    while gapq: gapq.pop(0)()
    while stored < 31:
        pop_conv(99); pop_store()
    mark(k, diag, 9)
    k2.LATE2.clear()
    if FLAG_AT is None:
        k.wait_vm("kvst", expect=32)
        I("s_barrier")
        set_flag(kv_flag)
        poll_issue("kv", "poll2")
        def kv_start():
            poll_check("kv", "poll2", "Lk12_kv")
            k.I("s_barrier")
            for blk in range(3):
                for f in kv_closures(blk): f()
        lateq = [kv_start]
        for blk in range(3, 8): k2.LATE2.extend(kv_closures(blk))
    else:
        I("s_barrier")
        lateq = []
        for blk in range(3, 8): lateq += kv_closures(blk)
    I(f"s_load_dwordx2 s[6:7], s[0:1], {KA['wo']}")
    I(f"s_load_dwordx4 s[8:11], s[0:1], {KA['wg']}")
    I(f"s_load_dwordx2 s[12:13], s[0:1], {KA['wd']}")
    for sq, sb in ((sQA, sQblkA), (sQB, sQblkB)):
        I(f"s_lshl_b32 s{sq}, s{sb}, 5")
        I(f"s_add_u32 s{sq}, s{sq}, s{sH}")
        I(f"s_lshl_b32 s{sq}, s{sq}, 13")
    I(f"s_mov_b32 s{sFlag}, {force_slow}")
    I("s_waitcnt lgkmcnt(0)")
    k2.MARK0 = 6
    def tail3():
        from k3c import emit_k3c
        J = k.I
        J("s_waitcnt vmcnt(0)")
        J("s_barrier")
        flag_srd()
        J(f"v_mov_b32 v10, s100")
        J(f"v_mov_b32 v11, 0x100000")
        J(f"v_mov_b32 v12, 0")
        J(f"v_cmp_eq_u32 vcc, 0, v0")
        J(f"v_cndmask_b32 v11, v11, v12, vcc")
        J(f"s_lshr_b32 s45, s{sH}, 3")
        J(f"s_and_b32 s46, s{sH}, 7")
        J(f"s_lshl_b32 s46, s46, 2")
        for T in range(2):
            if T == 0: J(f"s_lshl_b32 s43, s{sI}, 2")
            else:
                J(f"s_sub_u32 s43, 15, s{sI}"); J(f"s_lshl_b32 s43, s43, 2")
            J(f"s_add_u32 s43, s43, s45"); J(f"s_add_u32 s43, s43, 160"); J(f"s_lshl_b32 s43, s43, 7"); J(f"s_add_u32 s43, s43, s46")
            J(f"buffer_store_dword v10, v11, s[92:95], s43 offen sc1")
        mark(k, diag, 9) if False else None
        emit_k3c(k, diag, fused=True, sNonceIn=100, alltail=ALLTAIL, endlabel="Lk12_fin")
        k.L("Lk12_fin")
    att_part(k, diag, store_flags, C0, lateq, sQblkA, sQblkB, 0, "Lk12_end", tail_fn=(tail3 if FUSE3 else None))
    finish_k2(k)
    return k, 256, 256, 163840
```

```python
import re
from common import *
import k2
from k2 import (LANE, vL16, vWQ, vNINF, vQ, vT, SXN, SWQ, SKV, SCTX, sW, sH, sI, sWL, sQA, sQB, sFlag, QACC, att_part, finish_k2)

SPIN_MAX = 1 << 22
import os
FINE = bool(os.environ.get('FINE'))

class Flat:
    def __init__(self, k): self.k = k; self.pend = []; self.mf = 0
    def emit(self, text, tag=None, age=3):
        k = self.k
        for line in text.split("\n"):
            line = line.strip()
            if not line: continue
            if line.endswith(":") or line.startswith(";"):
                k.I(line); continue
            it = Ins(line)
            if it.mn == "s_waitcnt":
                m = re.search(r"lgkmcnt\((\d+)\)", line)
                if m:
                    nn = int(m.group(1)); self.pend = self.pend[len(self.pend)-nn:] if 0 < nn < len(self.pend) else ([] if nn == 0 else self.pend)
            touched = set(it.src) | set(it.dst)
            if it.cls != "ds":
                need = -1
                for i, (d, _) in enumerate(self.pend):
                    if d & touched: need = i
                if need >= 0:
                    j = need
                    while j + 1 < len(self.pend) and self.mf - self.pend[j+1][1] >= age + 1: j += 1
                    nn = min(len(self.pend) - 1 - j, 15)
                    k.I(f"s_waitcnt lgkmcnt({nn})")
                    self.pend = self.pend[len(self.pend)-nn:] if nn > 0 else []
            if it.cls == "mfma": self.mf += 1
            if it.cls == "ds": self.pend.append((set(it.dst), self.mf))
            k.I(line, tag)

def gen_k12(diag=False, ROT=0, FUSE3=True, ALLTAIL=True, CODEPF=2, TOUCH=0, store_flags="sc1", wnt="nt", force_slow=0, STORE_EVERY=8, touch_at=12, qnt="", xtouch=False, FLAG_AT=None, kvflags=None, XLA=14):
    if kvflags is None: kvflags = store_flags
    k = Kern("k12_kernel")
    fl = Flat(k)
    I = fl.emit
    I("s_cmp_ge_u32 s2, 256")
    I("s_cbranch_scc1 Lk12_end")
    stamp_begin(k, diag)
    def code_pf():
        J = k.I
        J("s_getpc_b64 s[64:65]")
        k.L("Lk12_pc")
        J("s_sub_u32 s64, s64, Lk12_pc-k12_kernel")
        J("s_subb_u32 s65, s65, 0")
        J("s_mov_b32 s66, Lcode_end-k12_kernel")
        J("s_mov_b32 s67, 0x20000")
        J("s_lshr_b32 s45, s2, 3")
        J("s_mul_i32 s45, s45, " + str(24*128))
        J(f"v_lshlrev_b32 v10, 7, v0")
        J("v_mov_b32 v11, 0x2000000")
        J("v_cmp_gt_u32 vcc, 24, v0")
        J("v_cndmask_b32 v10, v11, v10, vcc")
        J("buffer_load_dword v21, v10, s[64:67], s45 offen", tag="codepf")
    if CODEPF == 2: code_pf()
    I(f"s_load_dwordx4 s[4:7], s[0:1], {KA['x']}")
    I(f"s_load_dwordx4 s[8:11], s[0:1], {KA['wuk']}")
    I(f"s_load_dwordx2 s[14:15], s[0:1], {KA['ws']}")
    I(f"s_load_dwordx2 s[56:57], s[0:1], {KA['wq']}")
    I(f"s_load_dwordx2 s[12:13], s[0:1], {KA['dbg']}")
    I("v_lshrrev_b32 v1, 6, v0")
    I(f"v_and_b32 v{LANE}, 63, v0")
    I("v_readfirstlane_b32 s40, v1")
    I("s_and_b32 s43, s2, 7")
    I("s_lshr_b32 s44, s2, 3")
    I("s_and_b32 s41, s44, 3")
    I("s_lshl_b32 s43, s43, 2")
    I("s_add_u32 s41, s41, s43")
    I("s_lshr_b32 s42, s44, 2")
    I("s_waitcnt lgkmcnt(0)")
    fl.pend = []
    mark(k, diag, 0)
    SX, SC, SWK, SWV, SKVO, SXNO, SDBG = 16, 20, 24, 28, 32, 36, 84
    srd(k, SC, 6, 7, 2048*512*2)
    srd(k, SWK, 8, 9, 512*4096*2)
    srd(k, SWV, 10, 11, 512*4096*2)
    vXA, vXB, vLX, vLO = 36, 37, 45, 46
    vXR, vXRh = 48, 40
    vQh, vQg = 32, 58
    t0, t1 = 52, 53
    vPoll, vZero, vAOff, vOne = 54, 55, 56, 57
    vPA, vPD = 47, 8+4
    sX0, sX1, sKVb, sT, sEPS = 48, 49, 52, 53, 54
    sQblkA, sQblkB, sXA, sXB, sWq = 56, 57, 58, 59, 88
    sT3, sPol = 43, 44
    sNonce0 = 47
    I(f"v_lshrrev_b32 v{t0}, 3, v{LANE}")
    I(f"v_lshlrev_b32 v{vXA}, 10, v{t0}")
    I(f"v_lshrrev_b32 v{t0}, 4, v{LANE}")
    I(f"v_and_b32 v{t1}, 7, v{LANE}")
    I(f"v_xor_b32 v{t0}, v{t0}, v{t1}")
    I(f"v_lshl_add_u32 v{vXA}, v{t0}, 4, v{vXA}")
    I(f"v_xor_b32 v{vXB}, 64, v{vXA}")
    I(f"s_lshl_b32 s{sX0}, s42, 8")
    I(f"s_lshl_b32 s{sT}, s40, 6")
    I(f"s_add_u32 s{sX0}, s{sX0}, s{sT}")
    I(f"s_lshl_b32 s{sX0}, s{sX0}, 10")
    I(f"s_lshl_b32 s{sX1}, s40, 13")
    I(f"v_lshrrev_b32 v{t0}, 4, v{LANE}")
    I(f"v_lshlrev_b32 v{vWQ}, 13, v{t0}")
    I(f"v_lshlrev_b32 v{t0}, 2, v{t0}")
    I(f"v_and_b32 v{t1}, 15, v{LANE}")
    I(f"v_xor_b32 v{t0}, v{t0}, v{t1}")
    I(f"v_lshl_add_u32 v{vWQ}, v{t0}, 4, v{vWQ}")
    I(f"s_lshl_b32 s{sWq}, s{sW}, 17")
    I(f"s_lshl_b32 s{sT}, s{sH}, 8")
    I(f"s_add_u32 s{sWq}, s{sWq}, s{sT}")
    I(f"s_lshl_b32 s{sWL}, s{sW}, 12")
    XB = lambda s: (s % 3)*32768
    WB = lambda s: 98304 + (s & 1)*32768
    sRot, sXs, sWs = 96, 97, 55
    if ROT:
        k.I(f"s_and_b32 s{sRot}, s{sH}, 3"); k.I(f"s_lshl_b32 s{sRot}, s{sRot}, 1"); k.I(f"s_add_u32 s{sRot}, s{sRot}, s{sI}")
    else:
        k.I(f"s_mov_b32 s{sRot}, 0")
    def xdma_one(s, u):
        if u == 0:
            k.I(f"s_add_u32 s{sXs}, s{sRot}, {s}"); k.I(f"s_and_b32 s{sXs}, s{sXs}, 7"); k.I(f"s_lshl_b32 s{sXs}, s{sXs}, 7")
            k.I(f"s_add_u32 s{sXs}, s{sXs}, s{sX0}")
        k.I(f"s_add_u32 m0, s{sX1}, {XB(s) + u*1024}")
        k.I(f"s_add_u32 s{sT}, s{sXs}, {u*8192}")
        k.I(f"buffer_load_dwordx4 v{vXA if u % 2 == 0 else vXB}, s[{SC}:{SC+3}], s{sT} offen lds", tag=f"X{s}")
    def wdma_one(s, m, u):
        S = SWK if m == 0 else SWV
        if m == 0 and u == 0:
            k.I(f"s_add_u32 s{sWs}, s{sRot}, {s}"); k.I(f"s_and_b32 s{sWs}, s{sWs}, 7"); k.I(f"s_lshl_b32 s{sWs}, s{sWs}, 19")
            k.I(f"s_add_u32 s{sWs}, s{sWs}, s{sWq}")
        k.I(f"s_add_u32 m0, s{sWL}, {WB(s) + m*16384 + u*1024}")
        k.I(f"s_add_u32 s{sT}, s{sWs}, {4*u*8192}")
        k.I(f"buffer_load_dwordx4 v{vWQ}, s[{S}:{S+3}], s{sT} offen {wnt if (s == 0 or not TOUCH) else str()} lds", tag=f"W{s}")
    def xd(s): return [lambda u=u: xdma_one(s, u) for u in range(8)]
    def wd(s): return [lambda m=m, u=u: wdma_one(s, m, u) for m in range(2) for u in range(4)]
    vTX, vTW = 22, 23
    sTX, sTW = 55, 89
    if TOUCH:
        J = k.I
        J(f"s_and_b32 s45, s{sH}, 3"); J(f"s_lshl_b32 s45, s45, 6"); J(f"s_lshl_b32 s46, s42, 8"); J(f"s_add_u32 s45, s45, s46")
        J(f"s_lshl_b32 s{sTX}, s45, 10")
        J(f"v_lshlrev_b32 v{vTX}, 10, v{LANE}")
        J(f"v_mov_b32 v10, 0x2000000")
        J(f"v_cmp_gt_u32 vcc, 64, v0"); J(f"v_cndmask_b32 v{vTX}, v10, v{vTX}, vcc")
        J(f"s_lshl_b32 s45, s42, 16"); J(f"s_lshl_b32 s46, s{sH}, 8"); J(f"s_add_u32 s{sTW}, s45, s46")
        J(f"v_lshrrev_b32 v{vTW}, 1, v{LANE}"); J(f"v_lshlrev_b32 v{vTW}, 13, v{vTW}")
        J(f"v_and_b32 v11, 1, v{LANE}"); J(f"v_lshl_add_u32 v{vTW}, v11, 7, v{vTW}")
        J(f"v_cmp_gt_u32 vcc, 16, v{LANE}"); J(f"v_cndmask_b32 v{vTW}, v10, v{vTW}, vcc")
        J(f"s_cmp_eq_u32 s{sW}, 2")
        J(f"s_cselect_b32 s64, s{SWV}, s{SWK}"); J(f"s_cselect_b32 s65, s{SWV+1}, s{SWK+1}")
        J(f"s_sub_u32 s45, s{sW}, 1"); J(f"s_cmp_lt_u32 s45, 2")
        J(f"s_cselect_b32 s66, {512*4096*2}, 0"); J(f"s_mov_b32 s67, 0x20000")
    def tx(S):
        k.I(f"s_add_u32 s{sT}, s{sTX}, {S*128}")
        k.I(f"buffer_load_dword v21, v{vTX}, s[{SC}:{SC+3}], s{sT} offen", tag="touch")
        k.I(f"s_add_u32 s{sT}, s{sTW}, {64*S*8192}")
        k.I(f"buffer_load_dword v21, v{vTW}, s[64:67], s{sT} offen", tag="touch")
    if TOUCH:
        tx(1); tx(2)
        for f in xd(0)[:4] + wd(0)[:4] + xd(0)[4:] + wd(0)[4:]: f()
        tx(3)
        for f in xd(1) + wd(1): f()
        tx(4); tx(5)
    else:
        for f in xd(0)[:4] + wd(0)[:4] + xd(0)[4:] + wd(0)[4:]: f()
        if CODEPF == 1:
            code_pf()
        for f in xd(1) + wd(1): f()
    mark(k, diag, 1)
    srd(k, SX, 4, 5, 2048*640*2)
    srd(k, SKVO, 14, 15, KV_SIZE, KV_OFF)
    srd(k, SXNO, 14, 15, XN_SIZE, XN_OFF)
    srd(k, SDBG, 12, 13, 256)
    I(f"v_bfe_u32 v{t0}, v{LANE}, 4, 1")
    I("s_lshl_b32 s45, s2, 3")
    I("s_lshl_b32 s46, s40, 1")
    I("s_add_u32 s45, s45, s46")
    I(f"v_add_u32 v{t0}, s45, v{t0}")
    I(f"v_and_b32 v{t1}, 15, v{LANE}")
    I(f"v_mul_u32_u24 v{vLX}, 1280, v{t0}")
    I(f"v_lshl_add_u32 v{vLX}, v{t1}, 4, v{vLX}")
    LNX, LNO = 192, 144
    I(f"v_lshrrev_b32 v{vLO}, 5, v{t0}")
    I(f"v_mul_u32_u24 v{vLO}, 40960, v{vLO}")
    I(f"v_and_b32 v{t0}, 31, v{t0}")
    I(f"v_lshl_add_u32 v{vLO}, v{t0}, 4, v{vLO}")
    I(f"v_lshrrev_b32 v{t0}, 1, v{t1}")
    I(f"v_lshl_add_u32 v{vLO}, v{t0}, 10, v{vLO}")
    I(f"v_and_b32 v{t0}, 1, v{t1}")
    I(f"v_lshl_add_u32 v{vLO}, v{t0}, 9, v{vLO}")
    I(f"v_mov_b32 v{t0}, 0x1000000")
    I(f"v_cmp_gt_u32 vcc, 32, v{LANE}")
    I(f"v_cndmask_b32 v{vLO}, v{t0}, v{vLO}, vcc")
    srd(k, 92, 14, 15, ACC_SIZE, ACC_OFF)
    I(f"s_mul_i32 s45, s2, 96")
    I(f"v_lshlrev_b32 v{t0}, 2, v0")
    I(f"v_mov_b32 v{t1}, 0x100000")
    I(f"v_cmp_gt_u32 vcc, 24, v0")
    I(f"v_cndmask_b32 v{t0}, v{t1}, v{t0}, vcc")
    I(f"v_mov_b32 v{t1}, 0")
    I(f"buffer_store_dword v{t1}, v{t0}, s[92:95], s45 offen sc1")
    I(f"v_mov_b32 v{vZero}, 0")
    I(f"v_mov_b32 v{vOne}, 1")
    I(f"v_mov_b32 v{t1}, 0x100000")
    I(f"v_cmp_eq_u32 vcc, 0, v0")
    I(f"v_cndmask_b32 v{vAOff}, v{t1}, v{vZero}, vcc")
    k.I("s_memrealtime s[46:47]")
    k.I("s_waitcnt lgkmcnt(0)")
    k.I(f"s_or_b32 s{sNonce0}, s46, 1")
    k.I(f"v_mov_b32 v{vPoll}, s{sNonce0}")
    k.I(f"buffer_atomic_cmpswap v[{vPoll}:{vPoll+1}], v{vAOff}, s[{SDBG}:{SDBG+3}], 0 offen sc0 sc1", tag="nonce")
    I(f"v_lshrrev_b32 v{t1}, 5, v{LANE}")
    I(f"v_bfe_u32 v{t0}, v{LANE}, 1, 3")
    I(f"v_xor_b32 v{t0}, v{t0}, v{t1}")
    I(f"v_lshlrev_b32 v{t0}, 4, v{t0}")
    I(f"v_and_b32 v{vXR}, 31, v{LANE}")
    I(f"v_lshl_add_u32 v{vXR}, v{vXR}, 7, v{t0}")
    for j in range(1, 4):
        I(f"v_xor_b32 v{vXR+j}, {32*j}, v{vXR}")
        I(f"v_add_u32 v{vXR+j}, s{sX1}, v{vXR+j}")
    I(f"v_add_u32 v{vXR}, s{sX1}, v{vXR}")
    for j in range(4): I(f"v_add_u32 v{vXRh+j}, 0x10000, v{vXR+j}")
    a, b = t0, t1
    I(f"v_lshrrev_b32 v{b}, 5, v{LANE}")
    I(f"v_bfe_u32 v{a}, v{LANE}, 2, 2")
    I(f"v_lshl_add_u32 v{b}, v{b}, 3, v{a}")
    I(f"v_lshlrev_b32 v{b}, 8, v{b}")
    I(f"v_bfe_u32 v62, v{LANE}, 4, 1")
    I(f"v_lshl_add_u32 v{b}, v62, 5, v{b}")
    I(f"v_and_b32 v62, 3, v{LANE}")
    I(f"v_lshl_add_u32 v{b}, v62, 3, v{b}")
    for db in range(4):
        I(f"v_xor_b32 v62, {db}, v{a}")
        I(f"v_lshl_add_u32 v{vQ+db}, v62, 6, v{b}")
        I(f"v_add_u32 v{vQh+db}, 0x10000, v{vQ+db}")
        I(f"v_add_u32 v{vQg+db}, 0x20000, v{vQ+db}")
    I(f"v_lshlrev_b32 v{vL16}, 4, v{LANE}")
    I(f"v_mov_b32 v{vNINF}, 0xff800000")
    I(f"s_lshl_b32 s{sKVb}, s41, 6")
    I(f"s_lshl_b32 s{sT}, s42, 3")
    I(f"s_add_u32 s{sKVb}, s{sKVb}, s{sT}")
    I(f"s_lshl_b32 s{sT}, s40, 1")
    I(f"s_add_u32 s{sKVb}, s{sKVb}, s{sT}")
    I(f"s_lshl_b32 s{sKVb}, s{sKVb}, 14")
    I(f"s_mov_b32 s{sEPS}, {f32bits(1e-5)}")
    def tr_base(ldsoff):
        if ldsoff < 65536: return vQ, ldsoff
        if ldsoff < 131072: return vQh, ldsoff - 65536
        return vQg, ldsoff - 131072
    WR, XF = 64, 128
    def kv_reads(n):
        s, sp = n >> 2, n & 3
        out = []
        xo = XB(s)
        xr, xo = (vXR, xo) if xo < 65536 - 8192 else (vXRh, xo - 65536)
        for bb in range(2):
            r = XF + (n & 1)*8 + bb*4
            out.append(f"ds_read_b128 v[{r}:{r+3}], v{xr+sp} offset:{xo + bb*4096}")
        for db in range(4):
            for m in range(2):
                r = WR + (n & 1)*32 + m*16 + db*4
                base, o = tr_base(WB(s) + m*16384 + sp*4096)
                out.append(f"ds_read_b64_tr_b16 v[{r}:{r+1}], v{base+db} offset:{o}")
                out.append(f"ds_read_b64_tr_b16 v[{r+2}:{r+3}], v{base+db} offset:{o+1024}")
        return out
    def kv_mfmas(n):
        out = []
        for db in range(4):
            for m in range(2):
                w = WR + (n & 1)*32 + m*16 + db*4
                for bb in range(2):
                    x = XF + (n & 1)*8 + bb*4
                    d = m*128 + (db*2 + bb)*16
                    c = "0" if n == 0 else f"a[{d}:{d+15}]"
                    if m == 0: out.append(f"v_mfma_f32_32x32x16_bf16 a[{d}:{d+15}], v[{w}:{w+3}], v[{x}:{x+3}], {c}")
                    else:      out.append(f"v_mfma_f32_32x32x16_bf16 a[{d}:{d+15}], v[{x}:{x+3}], v[{w}:{w+3}], {c}")
        return out
    rec = Rec()
    ln_rows(rec, LNX, 5, 212, LNO, sEPS, T=24)
    lnq = list(rec.l)
    def ln_stores():
        for u in range(5):
            k.I(f"s_mov_b32 s{sT}, {u*8192}")
            k.I(f"buffer_store_dwordx4 v[{LNO+4*u}:{LNO+4*u+3}], v{vLO}, s[{SXNO}:{SXNO+3}], s{sT} offen sc1", tag="lnst")
    def lnload(u): k.I(f"buffer_load_dwordx4 v[{LNX+4*u}:{LNX+4*u+3}], v{vLX}, s[{SX}:{SX+3}], 0 offen offset:{256*u}", tag="lnx")
    QSLOT = {0: 4, 1: 5, 2: 0, 3: 1, 4: 6, 5: 7, 6: 2, 7: 3, 8: 8, 9: 9}
    C0 = 4
    XQV = [12, 16, 20, 24, 28, 36]
    def xq_reg(s, T):
        if s < 3: return "v", XQV[2*s + T]
        return "a", (8*((s - 3) % 32) + 4*T)
    def q_setup():
        r = Rec(); J = r.I
        J(f"s_mov_b32 s{SWQ}, s56"); J(f"s_mov_b32 s{SWQ+1}, s57"); J(f"s_mov_b32 s{SWQ+2}, {640*4096*2}"); J(f"s_mov_b32 s{SWQ+3}, 0x20000")
        J(f"s_add_u32 s{SXN}, s14, {XN_OFF}"); J(f"s_addc_u32 s{SXN+1}, s15, 0"); J(f"s_mov_b32 s{SXN+2}, {XN_SIZE}"); J(f"s_mov_b32 s{SXN+3}, 0x20000")
        J(f"s_lshl_b32 s{sT3}, s{sI}, 2")
        J(f"s_add_u32 s{sQblkA}, s{sT3}, s{sW}")
        J(f"s_sub_u32 s{sQblkB}, 60, s{sT3}")
        J(f"s_add_u32 s{sQblkB}, s{sQblkB}, s{sW}")
        J(f"s_mul_i32 s{sXA}, s{sQblkA}, 40960")
        J(f"s_mul_i32 s{sXB}, s{sQblkB}, 40960")
        return r.l
    def xq_load(s, T):
        c, r = xq_reg(s, T)
        k.I(f"s_add_u32 s{sT3}, s{sXA if T == 0 else sXB}, {s*1024}")
        k.I(f"buffer_load_dwordx4 {c}[{r}:{r+3}], v{vL16}, s[{SXN}:{SXN+3}], s{sT3} offen", tag=f"x{s}")
    def wq_one(g, u):
        k.I(f"s_add_u32 m0, s{sWL}, {QSLOT[g]*16384 + u*1024}")
        k.I(f"s_add_u32 s{sT3}, s{sWq}, {(64*g + 4*u)*8192}")
        k.I(f"buffer_load_dwordx4 v{vWQ}, s[{SWQ}:{SWQ+3}], s{sT3} offen {qnt} lds", tag=f"q{g}")
    def wq(g): return [lambda u=u: wq_one(g, u) for u in range(4)]
    SFL = 92
    sNonce = 47
    def flag_srd():
        k.I(f"s_add_u32 s{SFL}, s14, {FLG_OFF}"); k.I(f"s_addc_u32 s{SFL+1}, s15, 0")
        k.I(f"s_mov_b32 s{SFL+2}, {FLG_SIZE}"); k.I(f"s_mov_b32 s{SFL+3}, 0x20000")
    def get_nonce():
        k.wait_vm("nonce")
        k.I(f"v_readfirstlane_b32 s{sT3}, v{vPoll}")
        k.I(f"s_cmp_eq_u32 s{sT3}, 0")
        k.I(f"s_cselect_b32 s{sNonce}, s{sNonce}, s{sT3}")
        k.I(f"v_mov_b32 v{vOne}, s{sNonce}")
        k.I(f"s_mov_b32 s100, s{sNonce}")
    def set_flag(soff_expr):
        flag_srd(); soff_expr()
        k.I(f"buffer_store_dword v{vOne}, v{vAOff}, s[{SFL}:{SFL+3}], s{sT3} offen sc1", tag="sig")
    def poll_issue(kind, tag):
        flag_srd()
        J = k.I
        if kind == "ln":
            J(f"s_lshl_b32 s{sT3}, s{sI}, 2")
            J(f"v_add_u32 v62, s{sT3}, v{LANE}")
            J(f"s_sub_u32 s{sT3}, 56, s{sT3}")
            J(f"v_add_u32 v63, s{sT3}, v{LANE}")
            J(f"v_cmp_gt_u32 vcc, 4, v{LANE}")
            J(f"v_cndmask_b32 v62, v63, v62, vcc")
            J(f"v_add_u32 v62, 32, v62")
            J(f"v_lshlrev_b32 v62, 7, v62")
        else:
            J(f"s_lshl_b32 s{sT3}, s{sH}, 7")
            J(f"v_lshlrev_b32 v62, 2, v{LANE}")
            J(f"v_add_u32 v62, s{sT3}, v62")
        J(f"v_mov_b32 v63, 0x100000")
        J(f"v_cmp_gt_u32 vcc, 8, v0")
        J(f"v_cndmask_b32 v{vPA}, v63, v62, vcc")
        ld = "buffer_load_dwordx4 v[%d:%d]" % (vPD, vPD+3) if kind == "ln" else "buffer_load_dword v%d" % vPD
        J(f"{ld}, v{vPA}, s[{SFL}:{SFL+3}], 0 offen sc1", tag=tag)
    def poll_check(kind, tag, name):
        k.wait_vm(tag)
        J = k.I
        nreg = 4 if kind == "ln" else 1
        ld = "buffer_load_dwordx4 v[%d:%d]" % (vPD, vPD+3) if kind == "ln" else "buffer_load_dword v%d" % vPD
        def test():
            J(f"v_cmp_eq_u32 vcc, v{vOne}, v{vPD}")
            for q in range(1, nreg):
                J(f"v_cmp_eq_u32 s[90:91], v{vOne}, v{vPD+q}")
                J(f"s_and_b64 vcc, vcc, s[90:91]")
            J(f"s_and_b32 s{sT3}, vcc_lo, 0xff")
            J(f"s_cmp_eq_u32 s{sT3}, 0xff")
        J(f"s_cmp_lg_u32 s{sW}, 0")
        J(f"s_cbranch_scc1 {name}_ok")
        test()
        J(f"s_cbranch_scc1 {name}_ok")
        J(f"s_mov_b32 s45, {SPIN_MAX}")
        k.L(name + "_spin")
        flag_srd()
        J(f"{ld}, v{vPA}, s[{SFL}:{SFL+3}], 0 offen sc1")
        k.vm.pop()
        J("s_waitcnt vmcnt(0)")
        J(f"s_sub_u32 s45, s45, 1")
        J(f"s_cbranch_scc1 {name}_ok")
        test()
        J(f"s_cbranch_scc0 {name}_spin")
        k.L(name + "_ok")
    def ln_flag():
        k.I(f"s_lshr_b32 s{sT3}, s2, 2"); k.I(f"s_add_u32 s{sT3}, s{sT3}, 32"); k.I(f"s_lshl_b32 s{sT3}, s{sT3}, 7")
        k.I(f"s_and_b32 s46, s2, 3"); k.I(f"s_lshl_b32 s46, s46, 2"); k.I(f"s_add_u32 s{sT3}, s{sT3}, s46")
    def kv_flag():
        k.I(f"s_lshl_b32 s{sT3}, s{sH}, 7"); k.I(f"s_lshl_b32 s46, s{sI}, 2"); k.I(f"s_add_u32 s{sT3}, s{sT3}, s46")
    def touch_wq():
        J = k.I
        J(f"s_mov_b32 s92, s56"); J(f"s_mov_b32 s93, s57"); J(f"s_mov_b32 s94, {640*4096*2}"); J(f"s_mov_b32 s95, 0x20000")
        J(f"s_mul_i32 s45, s42, 80"); J(f"s_mul_i32 s46, s40, 20"); J(f"s_add_u32 s45, s45, s46")
        J(f"s_lshl_b32 s45, s45, 13"); J(f"s_lshl_b32 s46, s41, 8"); J(f"s_add_u32 s45, s45, s46")
        J(f"v_lshrrev_b32 v62, 1, v{LANE}"); J(f"v_lshlrev_b32 v62, 13, v62"); J(f"v_and_b32 v63, 1, v{LANE}")
        J(f"v_lshl_add_u32 v62, v63, 7, v62"); J(f"v_mov_b32 v63, 0x2000000")
        J(f"v_cmp_gt_u32 vcc, 40, v{LANE}"); J(f"v_cndmask_b32 v62, v63, v62, vcc")
        J(f"buffer_load_dword v11, v62, s[92:95], s45 offen", tag="touch")
    def touch_xn():
        J = k.I
        J(f"s_and_b32 s45, s{sH}, 3"); J(f"s_mul_i32 s45, s45, 160")
        for j in range(3):
            J(f"v_add_u32 v62, s45, v{LANE}")
            if j: J(f"v_add_u32 v62, {64*j}, v62")
            J(f"v_subrev_u32 v63, 320, v62")
            J(f"v_cmp_gt_u32 vcc, 320, v62")
            J(f"v_cndmask_b32 v63, v63, v62, vcc")
            J(f"v_lshlrev_b32 v63, 7, v63")
            J(f"v_mov_b32 v62, s{sXB}")
            J(f"v_mov_b32 v53, s{sXA}")
            J(f"v_cndmask_b32 v62, v62, v53, vcc")
            J(f"v_add_u32 v63, v63, v62")
            if j == 2:
                J(f"v_mov_b32 v62, 0x2000000"); J(f"v_cmp_gt_u32 vcc, 32, v{LANE}"); J(f"v_cndmask_b32 v63, v62, v63, vcc")
            J(f"buffer_load_dword v11, v63, s[{SXN}:{SXN+3}], 0 offen", tag="touch")
    mark(k, diag, 2)
    memq = xd(2) + ([lambda: tx(6), lambda: tx(7)] if TOUCH else []) + [lambda u=u: lnload(u) for u in range(5)]
    k.wait_vm("W0", expect=8)
    I("s_barrier")
    for t in kv_reads(0): I(t)
    mark(k, diag, 3)
    lnstarted = False; setupq = []
    for n in range(32):
        s, sp = n >> 2, n & 3
        if sp == 3 and s < 7:
            I("s_waitcnt lgkmcnt(0)")
            if FINE and s == 0: mark(k, diag, 14)
            k.wait_vm(f"W{s+1}", expect=8)
            if FINE and s == 0: mark(k, diag, 15)
            if s + 1 == 4: k.wait_vm("lnst", expect=5)
            if s + 1 == 7: poll_check("ln", "poll1", "Lk12_ln")
            I("s_barrier")
            if s + 1 == 7:
                if xtouch: memq.append(touch_xn)
                for s_ in range(3):
                    for T in range(2): memq.append(lambda s_=s_, T=T: xq_load(s_, T))
            if s + 1 == 4: get_nonce(); set_flag(ln_flag)
            if s + 2 < 8: memq += wd(s + 2)
            if s + 3 < 8: memq += xd(s + 3)
            if s + 1 == 6: memq += [lambda l=q_setup(): [k.I(x) for x in l]] + wq(0) + wq(1)
            if s + 1 == 7: memq += wq(2) + wq(3) + wq(4) + wq(5)
        if touch_at is not None and n == touch_at: memq.append(touch_wq)
        if n == 24: poll_issue("ln", "poll1")
        reads = kv_reads(n + 1) if n + 1 < 32 else []
        for gi, m in enumerate(kv_mfmas(n)):
            I(m)
            for _ in range(2):
                if reads and gi < 12: I(reads.pop(0))
            if memq and (gi % 2 == 0 or n < 8): memq.pop(0)()
            if n >= 5 and lnq:
                if not lnstarted:
                    k.wait_vm("lnx"); lnstarted = True
                for _ in range(3 if gi < 10 else 4):
                    if lnq: I(lnq.pop(0))
                if not lnq: memq.append(ln_stores)
        assert not reads
        if FINE:
            if n in (0, 1, 2, 3, 4, 7): mark(k, diag, {0: 4, 1: 5, 2: 6, 3: 7, 4: 12, 7: 13}[n])
        elif n in (31,): mark(k, diag, 7)
    while memq: memq.pop(0)()
    assert not lnq
    I("s_barrier")
    gapq = wq(6) + wq(7) + wq(8) + wq(9)
    def qreads(n):
        g, s = n >> 2, n & 3
        F = WR + (n % 2)*16
        base, o = tr_base(QSLOT[g]*16384 + s*4096)
        out = []
        for db in range(4):
            out.append(f"ds_read_b64_tr_b16 v[{F+4*db}:{F+4*db+1}], v{base+db} offset:{o}")
            out.append(f"ds_read_b64_tr_b16 v[{F+4*db+2}:{F+4*db+3}], v{base+db} offset:{o+1024}")
        return out
    def kv_one(blk, u):
        k.I(f"s_add_u32 m0, s{sWL}, {((blk + C0) % 8)*16384}")
        k.I(f"s_add_u32 s{sT3}, s{sWL}, {blk*16384}")
        k.I(f"buffer_load_dwordx4 v{vL16}, s[{SKV}:{SKV+3}], s{sT3} offen offset:{u*1024} lds", tag=f"kv{blk}")
    def kv_closures(blk): return [lambda u=u: kv_one(blk, u) for u in range(4)]
    conv = []
    for j in range(32):
        st = 96 + (j % 8)*4
        for q in range(4):
            t_ = (52, 62)[q & 1]
            conv.append((j, f"v_accvgpr_read_b32 v{t_}, a{8*j+2*q}"))
            conv.append((j, f"v_accvgpr_read_b32 v{t_+1}, a{8*j+2*q+1}"))
            conv.append((j, f"v_cvt_pk_bf16_f32 v{st+q}, v{t_}, v{t_+1}"))
    freed = -1
    stored = -1
    xq_next = 3
    def pop_conv(cnt):
        nonlocal freed
        for _ in range(cnt):
            if not conv: return
            j, t_ = conv[0]
            if j - 8 > stored: return
            conv.pop(0); I(t_)
            if not conv or conv[0][0] != j: freed = j
    def pop_store():
        nonlocal stored
        j = stored + 1
        if j >= 32 or j > freed: return False
        t, half = j >> 1, j & 1
        m, db, bb = t >> 3, (t >> 1) & 3, t & 1
        within = (2*db + half)*1024 if m == 0 else 8192 + (db*2 + half)*1024
        st = 96 + (j % 8)*4
        k.I(f"s_add_u32 s{sT}, s{sKVb}, {bb*16384 + within}")
        k.I(f"buffer_store_dwordx4 v[{st}:{st+3}], v{vL16}, s[{SKVO}:{SKVO+3}], s{sT} offen {kvflags}", tag="kvst")
        stored = j
        return True
    I(f"s_lshl_b32 s{sT3}, s{sH}, 20")
    I(f"s_add_u32 s{sT3}, s{sT3}, {KV_OFF}")
    I(f"s_add_u32 s{SKV}, s14, s{sT3}")
    I(f"s_addc_u32 s{SKV+1}, s15, 0")
    I(f"s_lshl_b32 s{sT3}, s{sI}, 16")
    I(f"s_sub_u32 s{SKV+2}, {64*16384}, s{sT3}")
    I(f"s_mov_b32 s{SKV+3}, 0x20000")
    srd(k, SCTX, 14, 15, CTX_SIZE, CTX_OFF)
    k.wait_vm("q0", expect=4)
    I("s_barrier")
    for t in qreads(0): I(t)
    mark(k, diag, 8)
    next_store = 2
    for n in range(40):
        g, s = n >> 2, n & 3
        if s == 2:
            if g + 1 < 10: k.wait_vm(f"q{g+1}", expect=4)
            if n == FLAG_AT:
                assert stored == 31, stored
                k.wait_vm("kvst", expect=32)
            if FLAG_AT is not None and n == FLAG_AT + 4: poll_check("kv", "poll2", "Lk12_kv")
            I("s_barrier")
            if n == FLAG_AT:
                set_flag(kv_flag); poll_issue("kv", "poll2")
            if FLAG_AT is not None and n == FLAG_AT + 4:
                for blk in range(3): gapq += kv_closures(blk)
        reads = qreads(n + 1) if n + 1 < 40 else []
        k.wait_vm(f"x{n}", expect=2)
        F = WR + (n % 2)*16
        gi = 0
        for db in range(4):
            for T in range(2):
                d = QACC + (T*4 + db)*16
                c_, r_ = xq_reg(n, T)
                c = "0" if n == 0 else f"v[{d}:{d+15}]"
                I(f"v_mfma_f32_32x32x16_bf16 v[{d}:{d+15}], v[{F+4*db}:{F+4*db+3}], {c_}[{r_}:{r_+3}], {c}")
                if reads: I(reads.pop(0))
                did = False
                if xq_next < 40 and xq_next <= n + XLA:
                    need = (xq_next - 3) % 32
                    ok = (freed >= need) if xq_next - 3 < 32 else (n > xq_next - 32)
                    if ok:
                        xq_load(xq_next, gi & 1 if False else 0); xq_load(xq_next, 1); xq_next += 1; did = True
                if not did and (8*n + gi) >= next_store and pop_store(): did = True; next_store = 8*n + gi + STORE_EVERY
                if not did and gapq: gapq.pop(0)()
                pop_conv(3)
                gi += 1
    while gapq: gapq.pop(0)()
    while stored < 31:
        pop_conv(99); pop_store()
    mark(k, diag, 9)
    k2.LATE2.clear()
    if FLAG_AT is None:
        k.wait_vm("kvst", expect=32)
        I("s_barrier")
        set_flag(kv_flag)
        poll_issue("kv", "poll2")
        def kv_start():
            poll_check("kv", "poll2", "Lk12_kv")
            k.I("s_barrier")
            for blk in range(3):
                for f in kv_closures(blk): f()
        lateq = [kv_start]
        for blk in range(3, 8): k2.LATE2.extend(kv_closures(blk))
    else:
        I("s_barrier")
        lateq = []
        for blk in range(3, 8): lateq += kv_closures(blk)
    I(f"s_load_dwordx2 s[6:7], s[0:1], {KA['wo']}")
    I(f"s_load_dwordx4 s[8:11], s[0:1], {KA['wg']}")
    I(f"s_load_dwordx2 s[12:13], s[0:1], {KA['wd']}")
    for sq, sb in ((sQA, sQblkA), (sQB, sQblkB)):
        I(f"s_lshl_b32 s{sq}, s{sb}, 5")
        I(f"s_add_u32 s{sq}, s{sq}, s{sH}")
        I(f"s_lshl_b32 s{sq}, s{sq}, 13")
    I(f"s_mov_b32 s{sFlag}, {force_slow}")
    I("s_waitcnt lgkmcnt(0)")
    k2.MARK0 = 6
    def tail3():
        from k3c import emit_k3c
        J = k.I
        J("s_waitcnt vmcnt(0)")
        J("s_barrier")
        flag_srd()
        J(f"v_mov_b32 v10, s100")
        J(f"v_mov_b32 v11, 0x100000")
        J(f"v_mov_b32 v12, 0")
        J(f"v_cmp_eq_u32 vcc, 0, v0")
        J(f"v_cndmask_b32 v11, v11, v12, vcc")
        J(f"s_lshr_b32 s45, s{sH}, 3")
        J(f"s_and_b32 s46, s{sH}, 7")
        J(f"s_lshl_b32 s46, s46, 2")
        for T in range(2):
            if T == 0: J(f"s_lshl_b32 s43, s{sI}, 2")
            else:
                J(f"s_sub_u32 s43, 15, s{sI}"); J(f"s_lshl_b32 s43, s43, 2")
            J(f"s_add_u32 s43, s43, s45"); J(f"s_add_u32 s43, s43, 160"); J(f"s_lshl_b32 s43, s43, 7"); J(f"s_add_u32 s43, s43, s46")
            J(f"buffer_store_dword v10, v11, s[92:95], s43 offen sc1")
        mark(k, diag, 9) if False else None
        emit_k3c(k, diag, fused=True, sNonceIn=100, alltail=ALLTAIL, endlabel="Lk12_fin")
        k.L("Lk12_fin")
    att_part(k, diag, store_flags, C0, lateq, sQblkA, sQblkB, 0, "Lk12_end", tail_fn=(tail3 if FUSE3 else None))
    finish_k2(k)
    return k, 256, 256, 163840
```

```python
import re
from common import *
import k2
from k2 import (LANE, vL16, vWQ, vNINF, vQ, vT, SXN, SWQ, SKV, SCTX, sW, sH, sI, sWL, sQA, sQB, sFlag, QACC, att_part, finish_k2)

SPIN_MAX = 1 << 21
import os
FINE = bool(os.environ.get('FINE'))

class Flat:
    def __init__(self, k): self.k = k; self.pend = []; self.mf = 0
    def emit(self, text, tag=None, age=3):
        k = self.k
        for line in text.split("\n"):
            line = line.strip()
            if not line: continue
            if line.endswith(":") or line.startswith(";"):
                k.I(line); continue
            it = Ins(line)
            if it.mn == "s_waitcnt":
                m = re.search(r"lgkmcnt\((\d+)\)", line)
                if m:
                    nn = int(m.group(1)); self.pend = self.pend[len(self.pend)-nn:] if 0 < nn < len(self.pend) else ([] if nn == 0 else self.pend)
            touched = set(it.src) | set(it.dst)
            if it.cls != "ds":
                need = -1
                for i, (d, _) in enumerate(self.pend):
                    if d & touched: need = i
                if need >= 0:
                    j = need
                    while j + 1 < len(self.pend) and self.mf - self.pend[j+1][1] >= age + 1: j += 1
                    nn = min(len(self.pend) - 1 - j, 15)
                    k.I(f"s_waitcnt lgkmcnt({nn})")
                    self.pend = self.pend[len(self.pend)-nn:] if nn > 0 else []
            if it.cls == "mfma": self.mf += 1
            if it.cls == "ds": self.pend.append((set(it.dst), self.mf))
            k.I(line, tag)

def gen_k12(diag=False, ROT=0, FUSE3=True, ALLTAIL=True, CODEPF=2, TOUCH=0, store_flags="sc1", wnt="nt", force_slow=0, STORE_EVERY=10, touch_at=12, qnt="", xtouch=False, FLAG_AT=None, kvflags=None, XLA=14):
    if kvflags is None: kvflags = store_flags
    k = Kern("k12_kernel")
    fl = Flat(k)
    I = fl.emit
    I("s_cmp_ge_u32 s2, 256")
    I("s_cbranch_scc1 Lk12_end")
    stamp_begin(k, diag)
    def code_pf():
        J = k.I
        J("s_getpc_b64 s[64:65]")
        k.L("Lk12_pc")
        J("s_sub_u32 s64, s64, Lk12_pc-k12_kernel")
        J("s_subb_u32 s65, s65, 0")
        J("s_mov_b32 s66, Lcode_end-k12_kernel")
        J("s_mov_b32 s67, 0x20000")
        J("s_lshr_b32 s45, s2, 3")
        J("s_mul_i32 s45, s45, " + str(24*128))
        J(f"v_lshlrev_b32 v10, 7, v0")
        J("v_mov_b32 v11, 0x2000000")
        J("v_cmp_gt_u32 vcc, 24, v0")
        J("v_cndmask_b32 v10, v11, v10, vcc")
        J("buffer_load_dword v21, v10, s[64:67], s45 offen", tag="codepf")
    if CODEPF == 2: code_pf()
    I(f"s_load_dwordx4 s[4:7], s[0:1], {KA['x']}")
    I(f"s_load_dwordx4 s[8:11], s[0:1], {KA['wuk']}")
    I(f"s_load_dwordx2 s[14:15], s[0:1], {KA['ws']}")
    I(f"s_load_dwordx2 s[56:57], s[0:1], {KA['wq']}")
    I(f"s_load_dwordx2 s[12:13], s[0:1], {KA['dbg']}")
    I("v_lshrrev_b32 v1, 6, v0")
    I(f"v_and_b32 v{LANE}, 63, v0")
    I("v_readfirstlane_b32 s40, v1")
    I("s_and_b32 s43, s2, 7")
    I("s_lshr_b32 s44, s2, 3")
    I("s_and_b32 s41, s44, 3")
    I("s_lshl_b32 s43, s43, 2")
    I("s_add_u32 s41, s41, s43")
    I("s_lshr_b32 s42, s44, 2")
    I("s_waitcnt lgkmcnt(0)")
    fl.pend = []
    mark(k, diag, 0)
    SX, SC, SWK, SWV, SKVO, SXNO, SDBG = 16, 20, 24, 28, 32, 36, 84
    srd(k, SC, 6, 7, 2048*512*2)
    srd(k, SWK, 8, 9, 512*4096*2)
    srd(k, SWV, 10, 11, 512*4096*2)
    vXA, vXB, vLX, vLO = 36, 37, 45, 46
    vXR, vXRh = 48, 40
    vQh, vQg = 32, 58
    t0, t1 = 52, 53
    vPoll, vZero, vAOff, vOne = 54, 55, 56, 57
    vPA, vPD = 47, 8+4
    sX0, sX1, sKVb, sT, sEPS = 48, 49, 52, 53, 54
    sQblkA, sQblkB, sXA, sXB, sWq = 56, 57, 58, 59, 88
    sT3, sPol = 43, 44
    sNonce0 = 47
    I(f"v_lshrrev_b32 v{t0}, 3, v{LANE}")
    I(f"v_lshlrev_b32 v{vXA}, 10, v{t0}")
    I(f"v_lshrrev_b32 v{t0}, 4, v{LANE}")
    I(f"v_and_b32 v{t1}, 7, v{LANE}")
    I(f"v_xor_b32 v{t0}, v{t0}, v{t1}")
    I(f"v_lshl_add_u32 v{vXA}, v{t0}, 4, v{vXA}")
    I(f"v_xor_b32 v{vXB}, 64, v{vXA}")
    I(f"s_lshl_b32 s{sX0}, s42, 8")
    I(f"s_lshl_b32 s{sT}, s40, 6")
    I(f"s_add_u32 s{sX0}, s{sX0}, s{sT}")
    I(f"s_lshl_b32 s{sX0}, s{sX0}, 10")
    I(f"s_lshl_b32 s{sX1}, s40, 13")
    I(f"v_lshrrev_b32 v{t0}, 4, v{LANE}")
    I(f"v_lshlrev_b32 v{vWQ}, 13, v{t0}")
    I(f"v_lshlrev_b32 v{t0}, 2, v{t0}")
    I(f"v_and_b32 v{t1}, 15, v{LANE}")
    I(f"v_xor_b32 v{t0}, v{t0}, v{t1}")
    I(f"v_lshl_add_u32 v{vWQ}, v{t0}, 4, v{vWQ}")
    I(f"s_lshl_b32 s{sWq}, s{sW}, 17")
    I(f"s_lshl_b32 s{sT}, s{sH}, 8")
    I(f"s_add_u32 s{sWq}, s{sWq}, s{sT}")
    I(f"s_lshl_b32 s{sWL}, s{sW}, 12")
    XB = lambda s: (s % 3)*32768
    WB = lambda s: 98304 + (s & 1)*32768
    sRot, sXs, sWs = 96, 97, 55
    if ROT:
        k.I(f"s_and_b32 s{sRot}, s{sH}, 3"); k.I(f"s_lshl_b32 s{sRot}, s{sRot}, 1"); k.I(f"s_add_u32 s{sRot}, s{sRot}, s{sI}")
    else:
        k.I(f"s_mov_b32 s{sRot}, 0")
    def xdma_one(s, u):
        if u == 0:
            k.I(f"s_add_u32 s{sXs}, s{sRot}, {s}"); k.I(f"s_and_b32 s{sXs}, s{sXs}, 7"); k.I(f"s_lshl_b32 s{sXs}, s{sXs}, 7")
            k.I(f"s_add_u32 s{sXs}, s{sXs}, s{sX0}")
        k.I(f"s_add_u32 m0, s{sX1}, {XB(s) + u*1024}")
        k.I(f"s_add_u32 s{sT}, s{sXs}, {u*8192}")
        k.I(f"buffer_load_dwordx4 v{vXA if u % 2 == 0 else vXB}, s[{SC}:{SC+3}], s{sT} offen lds", tag=f"X{s}")
    def wdma_one(s, m, u):
        S = SWK if m == 0 else SWV
        if m == 0 and u == 0:
            k.I(f"s_add_u32 s{sWs}, s{sRot}, {s}"); k.I(f"s_and_b32 s{sWs}, s{sWs}, 7"); k.I(f"s_lshl_b32 s{sWs}, s{sWs}, 19")
            k.I(f"s_add_u32 s{sWs}, s{sWs}, s{sWq}")
        k.I(f"s_add_u32 m0, s{sWL}, {WB(s) + m*16384 + u*1024}")
        k.I(f"s_add_u32 s{sT}, s{sWs}, {4*u*8192}")
        k.I(f"buffer_load_dwordx4 v{vWQ}, s[{S}:{S+3}], s{sT} offen {wnt if (s == 0 or not TOUCH) else str()} lds", tag=f"W{s}")
    def xd(s): return [lambda u=u: xdma_one(s, u) for u in range(8)]
    def wd(s): return [lambda m=m, u=u: wdma_one(s, m, u) for m in range(2) for u in range(4)]
    vTX, vTW = 22, 23
    sTX, sTW = 55, 89
    if TOUCH:
        J = k.I
        J(f"s_and_b32 s45, s{sH}, 3"); J(f"s_lshl_b32 s45, s45, 6"); J(f"s_lshl_b32 s46, s42, 8"); J(f"s_add_u32 s45, s45, s46")
        J(f"s_lshl_b32 s{sTX}, s45, 10")
        J(f"v_lshlrev_b32 v{vTX}, 10, v{LANE}")
        J(f"v_mov_b32 v10, 0x2000000")
        J(f"v_cmp_gt_u32 vcc, 64, v0"); J(f"v_cndmask_b32 v{vTX}, v10, v{vTX}, vcc")
        J(f"s_lshl_b32 s45, s42, 16"); J(f"s_lshl_b32 s46, s{sH}, 8"); J(f"s_add_u32 s{sTW}, s45, s46")
        J(f"v_lshrrev_b32 v{vTW}, 1, v{LANE}"); J(f"v_lshlrev_b32 v{vTW}, 13, v{vTW}")
        J(f"v_and_b32 v11, 1, v{LANE}"); J(f"v_lshl_add_u32 v{vTW}, v11, 7, v{vTW}")
        J(f"v_cmp_gt_u32 vcc, 16, v{LANE}"); J(f"v_cndmask_b32 v{vTW}, v10, v{vTW}, vcc")
        J(f"s_cmp_eq_u32 s{sW}, 2")
        J(f"s_cselect_b32 s64, s{SWV}, s{SWK}"); J(f"s_cselect_b32 s65, s{SWV+1}, s{SWK+1}")
        J(f"s_sub_u32 s45, s{sW}, 1"); J(f"s_cmp_lt_u32 s45, 2")
        J(f"s_cselect_b32 s66, {512*4096*2}, 0"); J(f"s_mov_b32 s67, 0x20000")
    def tx(S):
        k.I(f"s_add_u32 s{sT}, s{sTX}, {S*128}")
        k.I(f"buffer_load_dword v21, v{vTX}, s[{SC}:{SC+3}], s{sT} offen", tag="touch")
        k.I(f"s_add_u32 s{sT}, s{sTW}, {64*S*8192}")
        k.I(f"buffer_load_dword v21, v{vTW}, s[64:67], s{sT} offen", tag="touch")
    if TOUCH:
        tx(1); tx(2)
        for f in xd(0)[:4] + wd(0)[:4] + xd(0)[4:] + wd(0)[4:]: f()
        tx(3)
        for f in xd(1) + wd(1): f()
        tx(4); tx(5)
    else:
        for f in xd(0)[:4] + wd(0)[:4] + xd(0)[4:] + wd(0)[4:]: f()
        if CODEPF == 1:
            code_pf()
        for f in xd(1) + wd(1): f()
    mark(k, diag, 1)
    srd(k, SX, 4, 5, 2048*640*2)
    srd(k, SKVO, 14, 15, KV_SIZE, KV_OFF)
    srd(k, SXNO, 14, 15, XN_SIZE, XN_OFF)
    srd(k, SDBG, 12, 13, 256)
    I(f"v_bfe_u32 v{t0}, v{LANE}, 4, 1")
    I("s_lshl_b32 s45, s2, 3")
    I("s_lshl_b32 s46, s40, 1")
    I("s_add_u32 s45, s45, s46")
    I(f"v_add_u32 v{t0}, s45, v{t0}")
    I(f"v_and_b32 v{t1}, 15, v{LANE}")
    I(f"v_mul_u32_u24 v{vLX}, 1280, v{t0}")
    I(f"v_lshl_add_u32 v{vLX}, v{t1}, 4, v{vLX}")
    LNX, LNO = 192, 144
    I(f"v_lshrrev_b32 v{vLO}, 5, v{t0}")
    I(f"v_mul_u32_u24 v{vLO}, 40960, v{vLO}")
    I(f"v_and_b32 v{t0}, 31, v{t0}")
    I(f"v_lshl_add_u32 v{vLO}, v{t0}, 4, v{vLO}")
    I(f"v_lshrrev_b32 v{t0}, 1, v{t1}")
    I(f"v_lshl_add_u32 v{vLO}, v{t0}, 10, v{vLO}")
    I(f"v_and_b32 v{t0}, 1, v{t1}")
    I(f"v_lshl_add_u32 v{vLO}, v{t0}, 9, v{vLO}")
    I(f"v_mov_b32 v{t0}, 0x1000000")
    I(f"v_cmp_gt_u32 vcc, 32, v{LANE}")
    I(f"v_cndmask_b32 v{vLO}, v{t0}, v{vLO}, vcc")
    if not (FUSE3 and ALLTAIL):
        srd(k, 92, 14, 15, ACC_SIZE, ACC_OFF)
        I(f"s_mul_i32 s45, s2, 96")
        I(f"v_lshlrev_b32 v{t0}, 2, v0")
        I(f"v_mov_b32 v{t1}, 0x100000")
        I(f"v_cmp_gt_u32 vcc, 24, v0")
        I(f"v_cndmask_b32 v{t0}, v{t1}, v{t0}, vcc")
        I(f"v_mov_b32 v{t1}, 0")
        I(f"buffer_store_dword v{t1}, v{t0}, s[92:95], s45 offen sc1")
    I(f"v_mov_b32 v{vZero}, 0")
    I(f"v_mov_b32 v{vOne}, 1")
    I(f"v_mov_b32 v{t1}, 0x100000")
    I(f"v_cmp_eq_u32 vcc, 0, v0")
    I(f"v_cndmask_b32 v{vAOff}, v{t1}, v{vZero}, vcc")
    k.I("s_memrealtime s[46:47]")
    k.I("s_waitcnt lgkmcnt(0)")
    k.I(f"s_or_b32 s{sNonce0}, s46, 1")
    k.I(f"v_mov_b32 v{vPoll}, s{sNonce0}")
    k.I(f"buffer_atomic_cmpswap v[{vPoll}:{vPoll+1}], v{vAOff}, s[{SDBG}:{SDBG+3}], 0 offen sc0 sc1", tag="nonce")
    I(f"v_lshrrev_b32 v{t1}, 5, v{LANE}")
    I(f"v_bfe_u32 v{t0}, v{LANE}, 1, 3")
    I(f"v_xor_b32 v{t0}, v{t0}, v{t1}")
    I(f"v_lshlrev_b32 v{t0}, 4, v{t0}")
    I(f"v_and_b32 v{vXR}, 31, v{LANE}")
    I(f"v_lshl_add_u32 v{vXR}, v{vXR}, 7, v{t0}")
    for j in range(1, 4):
        I(f"v_xor_b32 v{vXR+j}, {32*j}, v{vXR}")
        I(f"v_add_u32 v{vXR+j}, s{sX1}, v{vXR+j}")
    I(f"v_add_u32 v{vXR}, s{sX1}, v{vXR}")
    for j in range(4): I(f"v_add_u32 v{vXRh+j}, 0x10000, v{vXR+j}")
    a, b = t0, t1
    I(f"v_lshrrev_b32 v{b}, 5, v{LANE}")
    I(f"v_bfe_u32 v{a}, v{LANE}, 2, 2")
    I(f"v_lshl_add_u32 v{b}, v{b}, 3, v{a}")
    I(f"v_lshlrev_b32 v{b}, 8, v{b}")
    I(f"v_bfe_u32 v62, v{LANE}, 4, 1")
    I(f"v_lshl_add_u32 v{b}, v62, 5, v{b}")
    I(f"v_and_b32 v62, 3, v{LANE}")
    I(f"v_lshl_add_u32 v{b}, v62, 3, v{b}")
    for db in range(4):
        I(f"v_xor_b32 v62, {db}, v{a}")
        I(f"v_lshl_add_u32 v{vQ+db}, v62, 6, v{b}")
        I(f"v_add_u32 v{vQh+db}, 0x10000, v{vQ+db}")
        I(f"v_add_u32 v{vQg+db}, 0x20000, v{vQ+db}")
    I(f"v_lshlrev_b32 v{vL16}, 4, v{LANE}")
    I(f"v_mov_b32 v{vNINF}, 0xff800000")
    I(f"s_lshl_b32 s{sKVb}, s41, 6")
    I(f"s_lshl_b32 s{sT}, s42, 3")
    I(f"s_add_u32 s{sKVb}, s{sKVb}, s{sT}")
    I(f"s_lshl_b32 s{sT}, s40, 1")
    I(f"s_add_u32 s{sKVb}, s{sKVb}, s{sT}")
    I(f"s_lshl_b32 s{sKVb}, s{sKVb}, 14")
    I(f"s_mov_b32 s{sEPS}, {f32bits(1e-5)}")
    def tr_base(ldsoff):
        if ldsoff < 65536: return vQ, ldsoff
        if ldsoff < 131072: return vQh, ldsoff - 65536
        return vQg, ldsoff - 131072
    WR, XF = 64, 128
    def kv_reads(n):
        s, sp = n >> 2, n & 3
        out = []
        xo = XB(s)
        xr, xo = (vXR, xo) if xo < 65536 - 8192 else (vXRh, xo - 65536)
        for bb in range(2):
            r = XF + (n & 1)*8 + bb*4
            out.append(f"ds_read_b128 v[{r}:{r+3}], v{xr+sp} offset:{xo + bb*4096}")
        for db in range(4):
            for m in range(2):
                r = WR + (n & 1)*32 + m*16 + db*4
                base, o = tr_base(WB(s) + m*16384 + sp*4096)
                out.append(f"ds_read_b64_tr_b16 v[{r}:{r+1}], v{base+db} offset:{o}")
                out.append(f"ds_read_b64_tr_b16 v[{r+2}:{r+3}], v{base+db} offset:{o+1024}")
        return out
    def kv_mfmas(n):
        out = []
        for db in range(4):
            for m in range(2):
                w = WR + (n & 1)*32 + m*16 + db*4
                for bb in range(2):
                    x = XF + (n & 1)*8 + bb*4
                    d = m*128 + (db*2 + bb)*16
                    c = "0" if n == 0 else f"a[{d}:{d+15}]"
                    if m == 0: out.append(f"v_mfma_f32_32x32x16_bf16 a[{d}:{d+15}], v[{w}:{w+3}], v[{x}:{x+3}], {c}")
                    else:      out.append(f"v_mfma_f32_32x32x16_bf16 a[{d}:{d+15}], v[{x}:{x+3}], v[{w}:{w+3}], {c}")
        return out
    rec = Rec()
    ln_rows(rec, LNX, 5, 212, LNO, sEPS, T=24)
    lnq = list(rec.l)
    def ln_stores():
        for u in range(5):
            k.I(f"s_mov_b32 s{sT}, {u*8192}")
            k.I(f"buffer_store_dwordx4 v[{LNO+4*u}:{LNO+4*u+3}], v{vLO}, s[{SXNO}:{SXNO+3}], s{sT} offen sc1", tag="lnst")
    def lnload(u): k.I(f"buffer_load_dwordx4 v[{LNX+4*u}:{LNX+4*u+3}], v{vLX}, s[{SX}:{SX+3}], 0 offen offset:{256*u}", tag="lnx")
    QSLOT = {0: 4, 1: 5, 2: 0, 3: 1, 4: 6, 5: 7, 6: 2, 7: 3, 8: 8, 9: 9}
    C0 = 4
    XQV = [12, 16, 20, 24, 28, 36]
    def xq_reg(s, T):
        if s < 3: return "v", XQV[2*s + T]
        return "a", (8*((s - 3) % 32) + 4*T)
    def q_setup():
        r = Rec(); J = r.I
        J(f"s_mov_b32 s{SWQ}, s56"); J(f"s_mov_b32 s{SWQ+1}, s57"); J(f"s_mov_b32 s{SWQ+2}, {640*4096*2}"); J(f"s_mov_b32 s{SWQ+3}, 0x20000")
        J(f"s_add_u32 s{SXN}, s14, {XN_OFF}"); J(f"s_addc_u32 s{SXN+1}, s15, 0"); J(f"s_mov_b32 s{SXN+2}, {XN_SIZE}"); J(f"s_mov_b32 s{SXN+3}, 0x20000")
        J(f"s_lshl_b32 s{sT3}, s{sI}, 2")
        J(f"s_add_u32 s{sQblkA}, s{sT3}, s{sW}")
        J(f"s_sub_u32 s{sQblkB}, 60, s{sT3}")
        J(f"s_add_u32 s{sQblkB}, s{sQblkB}, s{sW}")
        J(f"s_mul_i32 s{sXA}, s{sQblkA}, 40960")
        J(f"s_mul_i32 s{sXB}, s{sQblkB}, 40960")
        return r.l
    def xq_load(s, T):
        c, r = xq_reg(s, T)
        k.I(f"s_add_u32 s{sT3}, s{sXA if T == 0 else sXB}, {s*1024}")
        k.I(f"buffer_load_dwordx4 {c}[{r}:{r+3}], v{vL16}, s[{SXN}:{SXN+3}], s{sT3} offen", tag=f"x{s}")
    def wq_one(g, u):
        k.I(f"s_add_u32 m0, s{sWL}, {QSLOT[g]*16384 + u*1024}")
        k.I(f"s_add_u32 s{sT3}, s{sWq}, {(64*g + 4*u)*8192}")
        k.I(f"buffer_load_dwordx4 v{vWQ}, s[{SWQ}:{SWQ+3}], s{sT3} offen {qnt} lds", tag=f"q{g}")
    def wq(g): return [lambda u=u: wq_one(g, u) for u in range(4)]
    SFL = 92
    sNonce = 47
    def flag_srd():
        k.I(f"s_add_u32 s{SFL}, s14, {FLG_OFF}"); k.I(f"s_addc_u32 s{SFL+1}, s15, 0")
        k.I(f"s_mov_b32 s{SFL+2}, {FLG_SIZE}"); k.I(f"s_mov_b32 s{SFL+3}, 0x20000")
    def get_nonce():
        k.wait_vm("nonce")
        k.I(f"v_readfirstlane_b32 s{sT3}, v{vPoll}")
        k.I(f"s_cmp_eq_u32 s{sT3}, 0")
        k.I(f"s_cselect_b32 s{sNonce}, s{sNonce}, s{sT3}")
        k.I(f"v_mov_b32 v{vOne}, s{sNonce}")
        k.I(f"s_mov_b32 s100, s{sNonce}")
    def set_flag(soff_expr):
        flag_srd(); soff_expr()
        k.I(f"buffer_store_dword v{vOne}, v{vAOff}, s[{SFL}:{SFL+3}], s{sT3} offen sc1", tag="sig")
    def poll_issue(kind, tag):
        flag_srd()
        J = k.I
        if kind == "ln":
            J(f"s_lshl_b32 s{sT3}, s{sI}, 2")
            J(f"v_add_u32 v62, s{sT3}, v{LANE}")
            J(f"s_sub_u32 s{sT3}, 56, s{sT3}")
            J(f"v_add_u32 v63, s{sT3}, v{LANE}")
            J(f"v_cmp_gt_u32 vcc, 4, v{LANE}")
            J(f"v_cndmask_b32 v62, v63, v62, vcc")
            J(f"v_add_u32 v62, 32, v62")
            J(f"v_lshlrev_b32 v62, 7, v62")
        else:
            J(f"s_lshl_b32 s{sT3}, s{sH}, 7")
            J(f"v_lshlrev_b32 v62, 2, v{LANE}")
            J(f"v_add_u32 v62, s{sT3}, v62")
        J(f"v_mov_b32 v63, 0x100000")
        J(f"v_cmp_gt_u32 vcc, 8, v0")
        J(f"v_cndmask_b32 v{vPA}, v63, v62, vcc")
        ld = "buffer_load_dwordx4 v[%d:%d]" % (vPD, vPD+3) if kind == "ln" else "buffer_load_dword v%d" % vPD
        J(f"{ld}, v{vPA}, s[{SFL}:{SFL+3}], 0 offen sc1", tag=tag)
    def poll_check(kind, tag, name):
        k.wait_vm(tag)
        J = k.I
        nreg = 4 if kind == "ln" else 1
        ld = "buffer_load_dwordx4 v[%d:%d]" % (vPD, vPD+3) if kind == "ln" else "buffer_load_dword v%d" % vPD
        def test():
            J(f"v_cmp_eq_u32 vcc, v{vOne}, v{vPD}")
            for q in range(1, nreg):
                J(f"v_cmp_eq_u32 s[90:91], v{vOne}, v{vPD+q}")
                J(f"s_and_b64 vcc, vcc, s[90:91]")
            J(f"s_and_b32 s{sT3}, vcc_lo, 0xff")
            J(f"s_cmp_eq_u32 s{sT3}, 0xff")
        J(f"s_cmp_lg_u32 s{sW}, 0")
        J(f"s_cbranch_scc1 {name}_ok")
        test()
        J(f"s_cbranch_scc1 {name}_ok")
        J(f"s_mov_b32 s45, {SPIN_MAX}")
        k.L(name + "_spin")
        flag_srd()
        J(f"{ld}, v{vPA}, s[{SFL}:{SFL+3}], 0 offen sc1")
        k.vm.pop()
        J("s_waitcnt vmcnt(0)")
        J(f"s_sub_u32 s45, s45, 1")
        J(f"s_cbranch_scc1 {name}_ok")
        test()
        J(f"s_cbranch_scc0 {name}_spin")
        k.L(name + "_ok")
    def ln_flag():
        k.I(f"s_lshr_b32 s{sT3}, s2, 2"); k.I(f"s_add_u32 s{sT3}, s{sT3}, 32"); k.I(f"s_lshl_b32 s{sT3}, s{sT3}, 7")
        k.I(f"s_and_b32 s46, s2, 3"); k.I(f"s_lshl_b32 s46, s46, 2"); k.I(f"s_add_u32 s{sT3}, s{sT3}, s46")
    def kv_flag():
        k.I(f"s_lshl_b32 s{sT3}, s{sH}, 7"); k.I(f"s_lshl_b32 s46, s{sI}, 2"); k.I(f"s_add_u32 s{sT3}, s{sT3}, s46")
    def touch_wq():
        J = k.I
        J(f"s_mov_b32 s92, s56"); J(f"s_mov_b32 s93, s57"); J(f"s_mov_b32 s94, {640*4096*2}"); J(f"s_mov_b32 s95, 0x20000")
        J(f"s_mul_i32 s45, s42, 80"); J(f"s_mul_i32 s46, s40, 20"); J(f"s_add_u32 s45, s45, s46")
        J(f"s_lshl_b32 s45, s45, 13"); J(f"s_lshl_b32 s46, s41, 8"); J(f"s_add_u32 s45, s45, s46")
        J(f"v_lshrrev_b32 v62, 1, v{LANE}"); J(f"v_lshlrev_b32 v62, 13, v62"); J(f"v_and_b32 v63, 1, v{LANE}")
        J(f"v_lshl_add_u32 v62, v63, 7, v62"); J(f"v_mov_b32 v63, 0x2000000")
        J(f"v_cmp_gt_u32 vcc, 40, v{LANE}"); J(f"v_cndmask_b32 v62, v63, v62, vcc")
        J(f"buffer_load_dword v11, v62, s[92:95], s45 offen", tag="touch")
    def touch_xn():
        J = k.I
        J(f"s_and_b32 s45, s{sH}, 3"); J(f"s_mul_i32 s45, s45, 160")
        for j in range(3):
            J(f"v_add_u32 v62, s45, v{LANE}")
            if j: J(f"v_add_u32 v62, {64*j}, v62")
            J(f"v_subrev_u32 v63, 320, v62")
            J(f"v_cmp_gt_u32 vcc, 320, v62")
            J(f"v_cndmask_b32 v63, v63, v62, vcc")
            J(f"v_lshlrev_b32 v63, 7, v63")
            J(f"v_mov_b32 v62, s{sXB}")
            J(f"v_mov_b32 v53, s{sXA}")
            J(f"v_cndmask_b32 v62, v62, v53, vcc")
            J(f"v_add_u32 v63, v63, v62")
            if j == 2:
                J(f"v_mov_b32 v62, 0x2000000"); J(f"v_cmp_gt_u32 vcc, 32, v{LANE}"); J(f"v_cndmask_b32 v63, v62, v63, vcc")
            J(f"buffer_load_dword v11, v63, s[{SXN}:{SXN+3}], 0 offen", tag="touch")
    mark(k, diag, 2)
    memq = xd(2) + ([lambda: tx(6), lambda: tx(7)] if TOUCH else []) + [lambda u=u: lnload(u) for u in range(5)]
    k.wait_vm("W0", expect=8)
    I("s_barrier")
    for t in kv_reads(0): I(t)
    mark(k, diag, 3)
    lnstarted = False; setupq = []
    for n in range(32):
        s, sp = n >> 2, n & 3
        if sp == 3 and s < 7:
            I("s_waitcnt lgkmcnt(0)")
            if FINE and s == 0: mark(k, diag, 14)
            k.wait_vm(f"W{s+1}", expect=8)
            if FINE and s == 0: mark(k, diag, 15)
            if s + 1 == 4: k.wait_vm("lnst", expect=5)
            if s + 1 == 7: poll_check("ln", "poll1", "Lk12_ln")
            I("s_barrier")
            if s + 1 == 7:
                if xtouch: memq.append(touch_xn)
                for s_ in range(3):
                    for T in range(2): memq.append(lambda s_=s_, T=T: xq_load(s_, T))
            if s + 1 == 4: get_nonce(); set_flag(ln_flag)
            if s + 2 < 8: memq += wd(s + 2)
            if s + 3 < 8: memq += xd(s + 3)
            if s + 1 == 6: memq += [lambda l=q_setup(): [k.I(x) for x in l]] + wq(0) + wq(1)
            if s + 1 == 7: memq += wq(2) + wq(3) + wq(4) + wq(5)
        if touch_at is not None and n == touch_at: memq.append(touch_wq)
        if n == 24: poll_issue("ln", "poll1")
        reads = kv_reads(n + 1) if n + 1 < 32 else []
        for gi, m in enumerate(kv_mfmas(n)):
            I(m)
            for _ in range(2):
                if reads and gi < 12: I(reads.pop(0))
            if memq and (gi % 2 == 0 or n < 8): memq.pop(0)()
            if n >= 5 and lnq:
                if not lnstarted:
                    k.wait_vm("lnx"); lnstarted = True
                for _ in range(3 if gi < 10 else 4):
                    if lnq: I(lnq.pop(0))
                if not lnq: memq.append(ln_stores)
        assert not reads
        if FINE:
            if n in (0, 1, 2, 3, 4, 7): mark(k, diag, {0: 4, 1: 5, 2: 6, 3: 7, 4: 12, 7: 13}[n])
        elif n in (31,): mark(k, diag, 7)
    while memq: memq.pop(0)()
    assert not lnq
    I("s_barrier")
    gapq = wq(6) + wq(7) + wq(8) + wq(9)
    def qreads(n):
        g, s = n >> 2, n & 3
        F = WR + (n % 2)*16
        base, o = tr_base(QSLOT[g]*16384 + s*4096)
        out = []
        for db in range(4):
            out.append(f"ds_read_b64_tr_b16 v[{F+4*db}:{F+4*db+1}], v{base+db} offset:{o}")
            out.append(f"ds_read_b64_tr_b16 v[{F+4*db+2}:{F+4*db+3}], v{base+db} offset:{o+1024}")
        return out
    def kv_one(blk, u):
        k.I(f"s_add_u32 m0, s{sWL}, {((blk + C0) % 8)*16384}")
        k.I(f"s_add_u32 s{sT3}, s{sWL}, {blk*16384}")
        k.I(f"buffer_load_dwordx4 v{vL16}, s[{SKV}:{SKV+3}], s{sT3} offen offset:{u*1024} lds", tag=f"kv{blk}")
    def kv_closures(blk): return [lambda u=u: kv_one(blk, u) for u in range(4)]
    conv = []
    for j in range(32):
        st = 96 + (j % 8)*4
        for q in range(4):
            t_ = (52, 62)[q & 1]
            conv.append((j, f"v_accvgpr_read_b32 v{t_}, a{8*j+2*q}"))
            conv.append((j, f"v_accvgpr_read_b32 v{t_+1}, a{8*j+2*q+1}"))
            conv.append((j, f"v_cvt_pk_bf16_f32 v{st+q}, v{t_}, v{t_+1}"))
    freed = -1
    stored = -1
    xq_next = 3
    def pop_conv(cnt):
        nonlocal freed
        for _ in range(cnt):
            if not conv: return
            j, t_ = conv[0]
            if j - 8 > stored: return
            conv.pop(0); I(t_)
            if not conv or conv[0][0] != j: freed = j
    def pop_store():
        nonlocal stored
        j = stored + 1
        if j >= 32 or j > freed: return False
        t, half = j >> 1, j & 1
        m, db, bb = t >> 3, (t >> 1) & 3, t & 1
        within = (2*db + half)*1024 if m == 0 else 8192 + (db*2 + half)*1024
        st = 96 + (j % 8)*4
        k.I(f"s_add_u32 s{sT}, s{sKVb}, {bb*16384 + within}")
        k.I(f"buffer_store_dwordx4 v[{st}:{st+3}], v{vL16}, s[{SKVO}:{SKVO+3}], s{sT} offen {kvflags}", tag="kvst")
        stored = j
        return True
    I(f"s_lshl_b32 s{sT3}, s{sH}, 20")
    I(f"s_add_u32 s{sT3}, s{sT3}, {KV_OFF}")
    I(f"s_add_u32 s{SKV}, s14, s{sT3}")
    I(f"s_addc_u32 s{SKV+1}, s15, 0")
    I(f"s_lshl_b32 s{sT3}, s{sI}, 16")
    I(f"s_sub_u32 s{SKV+2}, {64*16384}, s{sT3}")
    I(f"s_mov_b32 s{SKV+3}, 0x20000")
    srd(k, SCTX, 14, 15, CTX_SIZE, CTX_OFF)
    k.wait_vm("q0", expect=4)
    I("s_barrier")
    for t in qreads(0): I(t)
    mark(k, diag, 8)
    next_store = 2
    for n in range(40):
        g, s = n >> 2, n & 3
        if s == 2:
            if g + 1 < 10: k.wait_vm(f"q{g+1}", expect=4)
            if n == FLAG_AT:
                assert stored == 31, stored
                k.wait_vm("kvst", expect=32)
            if FLAG_AT is not None and n == FLAG_AT + 4: poll_check("kv", "poll2", "Lk12_kv")
            I("s_barrier")
            if n == FLAG_AT:
                set_flag(kv_flag); poll_issue("kv", "poll2")
            if FLAG_AT is not None and n == FLAG_AT + 4:
                for blk in range(3): gapq += kv_closures(blk)
        reads = qreads(n + 1) if n + 1 < 40 else []
        k.wait_vm(f"x{n}", expect=2)
        F = WR + (n % 2)*16
        gi = 0
        for db in range(4):
            for T in range(2):
                d = QACC + (T*4 + db)*16
                c_, r_ = xq_reg(n, T)
                c = "0" if n == 0 else f"v[{d}:{d+15}]"
                I(f"v_mfma_f32_32x32x16_bf16 v[{d}:{d+15}], v[{F+4*db}:{F+4*db+3}], {c_}[{r_}:{r_+3}], {c}")
                if reads: I(reads.pop(0))
                did = False
                if xq_next < 40 and xq_next <= n + XLA:
                    need = (xq_next - 3) % 32
                    ok = (freed >= need) if xq_next - 3 < 32 else (n > xq_next - 32)
                    if ok:
                        xq_load(xq_next, gi & 1 if False else 0); xq_load(xq_next, 1); xq_next += 1; did = True
                if not did and (8*n + gi) >= next_store and pop_store(): did = True; next_store = 8*n + gi + STORE_EVERY
                if not did and gapq: gapq.pop(0)()
                pop_conv(3)
                gi += 1
    while gapq: gapq.pop(0)()
    while stored < 31:
        pop_conv(99); pop_store()
    mark(k, diag, 9)
    k2.LATE2.clear()
    if FLAG_AT is None:
        k.wait_vm("kvst", expect=32)
        I("s_barrier")
        set_flag(kv_flag)
        poll_issue("kv", "poll2")
        def kv_start():
            poll_check("kv", "poll2", "Lk12_kv")
            k.I("s_barrier")
            for blk in range(3):
                for f in kv_closures(blk): f()
        lateq = [kv_start]
        for blk in range(3, 8): k2.LATE2.extend(kv_closures(blk))
    else:
        I("s_barrier")
        lateq = []
        for blk in range(3, 8): lateq += kv_closures(blk)
    I(f"s_load_dwordx2 s[6:7], s[0:1], {KA['wo']}")
    I(f"s_load_dwordx4 s[8:11], s[0:1], {KA['wg']}")
    I(f"s_load_dwordx2 s[12:13], s[0:1], {KA['wd']}")
    for sq, sb in ((sQA, sQblkA), (sQB, sQblkB)):
        I(f"s_lshl_b32 s{sq}, s{sb}, 5")
        I(f"s_add_u32 s{sq}, s{sq}, s{sH}")
        I(f"s_lshl_b32 s{sq}, s{sq}, 13")
    I(f"s_mov_b32 s{sFlag}, {force_slow}")
    I("s_waitcnt lgkmcnt(0)")
    k2.MARK0 = 6
    def tail3():
        from k3c import emit_k3c
        J = k.I
        J("s_waitcnt vmcnt(0)")
        J("s_barrier")
        flag_srd()
        J(f"v_mov_b32 v10, s100")
        J(f"v_mov_b32 v11, 0x100000")
        J(f"v_mov_b32 v12, 0")
        J(f"v_cmp_eq_u32 vcc, 0, v0")
        J(f"v_cndmask_b32 v11, v11, v12, vcc")
        J(f"s_lshr_b32 s45, s{sH}, 3")
        J(f"s_and_b32 s46, s{sH}, 7")
        J(f"s_lshl_b32 s46, s46, 2")
        for T in range(2):
            if T == 0: J(f"s_lshl_b32 s43, s{sI}, 2")
            else:
                J(f"s_sub_u32 s43, 15, s{sI}"); J(f"s_lshl_b32 s43, s43, 2")
            J(f"s_add_u32 s43, s43, s45"); J(f"s_add_u32 s43, s43, 160"); J(f"s_lshl_b32 s43, s43, 7"); J(f"s_add_u32 s43, s43, s46")
            J(f"buffer_store_dword v10, v11, s[92:95], s43 offen sc1")
        mark(k, diag, 9) if False else None
        emit_k3c(k, diag, fused=True, sNonceIn=100, alltail=ALLTAIL, endlabel="Lk12_fin")
        k.L("Lk12_fin")
    att_part(k, diag, store_flags, C0, lateq, sQblkA, sQblkB, 0, "Lk12_end", tail_fn=(tail3 if FUSE3 else None))
    finish_k2(k)
    return k, 256, 256, 163840
```

```python
from common import *

OA, OB, QA, QB, F0, F1 = 0, 64, 128, 160, 192, 224
S0, S1, P0, P1, NMA, NMB = 64, 80, 96, 104, 112, 128
LANE, vL16, vWQ, vNINF = 2, 3, 4, 5
vQ = 6
vA0, vA1, vA2 = 10, 11, 12
vTH0, vTH1 = 13, 14
vTHA, vTHB = 22, 23
LA0, LA1, LB0, LB1, LC0, LC1 = 16, 17, 18, 19, 20, 21
vT = 24
SXN, SWQ, SKV, SCTX = 16, 20, 24, 28
sW, sH, sI = 40, 41, 42
sT, sT2, sB0, sDoff, sDslot, sDlim, sOOB, sCnt, sWL, sQA, sQB, sFlag, sTHR = 43, 44, 45, 46, 47, 48, 49, 50, 51, 52, 53, 54, 55
MSK = 90
KVR = [8*(r >> 2) + (r & 3) for r in range(16)]
NMDA, NMDB, NINFB = 144, 160, 176
sRel0, sRel1 = 45, 48
CSEL = True
COST = {"exp": 8}

from sched import Item, schedule, insert_lgkm_waits

def exp_group(S, regs, L, masked=False, th=None):
    out = []
    for i in range(0, len(regs), 2):
        pair = regs[i:i+2]
        for r in pair: out.append((f"v_exp_f32 v{S+r}, v{S+r}", 8))
        for j, r in enumerate(pair): out.append((f"v_add_f32 v{L[j]}, v{L[j]}, v{S+r}", 4))
    return out

def mask_group(S, th):
    out = []
    for i in range(0, 16, 4):
        for j in range(4):
            out.append((f"v_cmp_le_i32 s[{MSK+2*j}:{MSK+2*j+1}], {KVR[i+j]}, v{th}", 4))
        for j in range(4):
            out.append((f"v_cndmask_b32 v{S+i+j}, v{vNINF}, v{S+i+j}, s[{MSK+2*j}:{MSK+2*j+1}]", 4))
    return out

def cvt_group(S, P, lo, hi):
    return [(f"v_cvt_pk_bf16_f32 v{P+j}, v{S+2*j}, v{S+2*j+1}", 4) for j in range(lo, hi)]

def qk(S, F, Q, NM):
    out = []
    for c in range(8):
        C = f"v[{NM}:{NM+15}]" if c == 0 else f"v[{S}:{S+15}]"
        out.append(f"v_mfma_f32_32x32x16_bf16 v[{S}:{S+15}], a[{F+4*c}:{F+4*c+3}], a[{Q+4*c}:{Q+4*c+3}], {C}")
    return out

def pv(O, F, P):
    out = []
    for j in range(8):
        ks, db = j >> 2, j & 3
        out.append(f"v_mfma_f32_32x32x16_bf16 a[{O+16*db}:{O+16*db+15}], a[{F+4*j}:{F+4*j+3}], v[{P+4*ks}:{P+4*ks+3}], a[{O+16*db}:{O+16*db+15}]")
    return out

def rdK(F, c, vb, off=0): return f"ds_read_b128 a[{F+4*c}:{F+4*c+3}], v{vb} offset:{off + c*1024}"
def rdV(F, j, vb, off=0):
    ks, db = j >> 2, j & 3
    return f"ds_read_b128 a[{F+4*j}:{F+4*j+3}], v{vb} offset:{off + 8192 + (db*2 + ks)*1024}"

DBG = ""
SPLITK = True
RETILE = True
CODEPF2 = False
QACC = 128
PREF = True
SPF, sPFo, vDUM = 16, 89, 60
def dma_ld(u): return f"buffer_load_dwordx4 v{vL16}, s[{SKV}:{SKV+3}], s{sDoff} offen offset:{u*1024} lds"
def dma_adv():
    return ["s_add_u32 m0, m0, 16384", "s_and_b32 m0, m0, 0x1ffff", f"s_add_u32 s{sDoff}, s{sDoff}, 16384"]

def softmax_items(S, L, regs, lo, hi, masks=None):
    E = {}; items = []
    hi0 = hi
    last_add = [None, None]
    for n, r in enumerate(regs):
        hi_r = lo + (hi0 - lo) * (n + 1) // len(regs)
        hi = max(hi_r, lo)
        e = Item(f"v_exp_f32 v{S+r}, v{S+r}", 2, lo, hi, deps=[masks.get(r) if masks else None])
        E[r] = e; items.append(e)
        a = Item(f"v_add_f32 v{L[n & 1]}, v{L[n & 1]}, v{S+r}", 1, lo, hi + 2, deps=[e], after=[last_add[n & 1]])
        last_add[n & 1] = a; items.append(a)
    return E, items

def mask_items(S, th, lo, hi):
    M = {}; items = []
    prev = [None]*4
    for i in range(16):
        j = i & 3
        c = Item(f"v_cmp_le_i32 s[{MSK+2*j}:{MSK+2*j+1}], {KVR[i]}, v{th}", 1, lo, hi, deps=[prev[j]])
        m = Item(f"v_cndmask_b32 v{S+i}, v{vNINF}, v{S+i}, s[{MSK+2*j}:{MSK+2*j+1}]", 1, lo, hi, deps=[c])
        prev[j] = m; M[i] = m; items += [c, m]
    return M, items

def cvt_items(S, P, js, E, lo, hi):
    return [Item(f"v_cvt_pk_bf16_f32 v{P+j}, v{S+2*j}, v{S+2*j+1}", 1, lo, hi, deps=[E.get(2*j), E.get(2*j+1)]) for j in js]

KREADS = [set(("a", F0 + 4*c + q) for q in range(4)) for c in range(8)]
VREADS = [set(("a", F1 + 4*c + q) for q in range(4)) for c in range(8)]
NE1A = 4

def body(k, kind, masked):
    dual_pv = kind in ("DD", "DS")
    dual_qk = kind == "DD"
    L0n = (LA0, LA1) if dual_qk else (LC0, LC1)
    L1 = (LB0, LB1)
    k.C(f"---- body {kind} masked={masked}")
    if kind == "SE":
        for j in range(8): k.I(rdV(F0, j, vA0, 16384))
        for f in exp_group(S1, list(range(NE1A, 16)), L1): k.I(f[0])
        for f in cvt_group(S1, P1, 0, 8): k.I(f[0])
        k.I("s_waitcnt lgkmcnt(8)")
        for m in pv(OB, F1, P0): k.I(m)
        k.I("s_waitcnt lgkmcnt(0)")
        for m in pv(OB, F0, P1): k.I(m)
        return
    items = []; pre = {}
    if kind == "DD":   mf = qk(S0, F0, QA, NMA) + pv(OA, F1, P0) + qk(S1, F0, QB, NMB) + pv(OB, F1, P1)
    elif kind == "DS": mf = qk(S0, F0, QB, NMB) + pv(OA, F1, P0) + qk(S1, F0, QB, NMB) + pv(OB, F1, P1)
    else:              mf = qk(S0, F0, QB, NMB) + pv(OB, F1, P0) + qk(S1, F0, QB, NMB) + pv(OB, F1, P1)
    E1b, it = softmax_items(S1, L1, list(range(NE1A, 16)), 0, 12); items += it
    items += cvt_items(S1, P1, range(0, 8), E1b, 0, 15)
    M0 = M1 = None
    if masked and not CSEL:
        M0, it = mask_items(S0, vTH0, 10, 22); items += it
        if kind != "DD":
            M1, it = mask_items(S1, vTH1, 26, 31); items += it
    E0, it = softmax_items(S0, L0n, list(range(16)), 10, 28, M0); items += it
    items += cvt_items(S0, P0, range(0, 4), E0, 12, 31)
    items += cvt_items(S0, P0, range(4, 8), E0, 16, 31)
    E1a, it = softmax_items(S1, L1, list(range(0, NE1A)), 26, 30, M1); items += it
    BAR = 19
    def chain(lst, after0=None):
        prev = after0
        for x in lst:
            if prev is not None: x.after.append(prev)
            items.append(x); prev = x
        return prev
    mid = []
    if kind == "DD":
        vm = 16
    elif kind == "DS":
        mid = [Item(rdK(F0, j, vA1), 1, j, j + 4, prio=3) for j in range(8)]
        vm = 12
    else:
        mid = [Item(rdK(F0, j, vA1, 16384), 1, j, j + 4, prio=3) for j in range(8)]
        mid += [Item(rdV(F1, j, vA0, 16384), 1, 8 + j, min(8 + j + 1, 16), prio=3) for j in range(8)]
        vm = 8
    chain(mid)
    pre[BAR] = [f"s_waitcnt vmcnt({vm}) lgkmcnt(0)", "s_barrier"]
    if kind == "DD":   kb, ko, vb, vo = vA1, 0, vA2, 0
    elif kind == "DS": kb, ko, vb, vo = vA2, 0, vA0, 0
    else:              kb, ko, vb, vo = vA2, 0, vA1, 0
    tailK = [Item(rdK(F0, j, kb, ko), 1, max(BAR, 16 + j), max(BAR, 16 + j) + 2, prio=3) for j in range(8)]
    tailV = [Item(rdV(F1, j, vb, vo), 1, 24 + j, 24 + j if j > 3 else 27, prio=3) for j in range(8)]
    addr_pre = []
    if kind == "DS":
        a0 = Item(f"v_add_u32 v{vA0}, 0x4000, v{vA0}", 1, 0, 15); a1 = Item(f"v_and_b32 v{vA0}, 0x1ffff, v{vA0}", 1, 0, 17, deps=[a0])
        c1 = Item(f"v_add_u32 v{vA2}, 0x4000, v{vA1}", 1, 0, 15); c2 = Item(f"v_and_b32 v{vA2}, 0x1ffff, v{vA2}", 1, 0, 17, deps=[c1])
        items += [a0, a1, c1, c2]
        for x in tailK: x.deps.append(c2)
        for x in tailV: x.deps.append(a1)
    last = chain(tailK + tailV)
    nblk = 2 if kind == "SS" else 1
    dl = []
    g0 = BAR
    for blk in range(nblk):
        for u in range(4): dl.append(Item(dma_ld(u), 1, min(g0 + blk*6 + u, 31), min(g0 + blk*6 + u + 1, 31)))
        for t in dma_adv(): dl.append(Item(t, 1, BAR, min(g0 + blk*6 + 5, 31)))
    chain(dl)
    if kind == "DD" and not masked and PREF:
        p1 = Item(f"buffer_load_dwordx4 v[{vDUM}:{vDUM+3}], v{vL16}, s[{SPF}:{SPF+3}], s{sPFo} offen", 1, 2, 12); items.append(p1)
        items.append(Item(f"s_add_u32 s{sPFo}, s{sPFo}, 1024", 1, 3, 15, after=[p1]))
    if kind == "DD":
        post = [f"v_mov_b32 v{vA0}, v{vA2}", f"v_mov_b32 v{vA2}, v{vA1}", f"v_add_u32 v{vA1}, 0x4000, v{vA1}", f"v_and_b32 v{vA1}, 0x1ffff, v{vA1}"]
    elif kind == "DS":
        post = [f"v_mov_b32 v{vA1}, v{vA2}", f"v_add_u32 v{vA2}, 0x8000, v{vA2}", f"v_and_b32 v{vA2}, 0x1ffff, v{vA2}"]
    else:
        post = [f"v_mov_b32 v{vA0}, v{vA1}", f"v_mov_b32 v{vA1}, v{vA2}", f"v_add_u32 v{vA2}, 0x8000, v{vA2}", f"v_and_b32 v{vA2}, 0x1ffff, v{vA2}"]
    if masked and CSEL:
        if kind == "DD": post.append(f"s_add_i32 s{sRel0}, s{sRel0}, 1")
        else: post += [f"s_add_i32 s{sRel0}, s{sRel0}, 2", f"s_add_i32 s{sRel1}, s{sRel1}, 2"]
    if masked and not CSEL:
        if kind == "DD": items.append(Item(f"v_subrev_u32 v{vTH0}, 32, v{vTH0}", 1, 23, 31))
        else:
            items.append(Item(f"v_subrev_u32 v{vTH0}, 64, v{vTH0}", 1, 23, 31))
            post.append(f"v_subrev_u32 v{vTH1}, 64, v{vTH1}")
    seq, load = schedule(mf, items, cap=CAP, pre=pre)
    seq += post
    seq, outst = insert_lgkm_waits(seq, KREADS + VREADS, age=AGE, init_age=[-12 + j*5//8 for j in range(8)] + [-7 + j for j in range(8)])
    assert outst == KREADS + VREADS, [sorted(o)[0] for o in outst]
    if VERBOSE: print(kind, masked, "gap loads", load, "sum", sum(load) + len(post), "instrs", len(seq))
    first0, first1 = mf[0], mf[16]
    for t in seq:
        if masked and CSEL and (t == first0 or (t == first1 and kind != "DD")):
            st = 0 if t == first0 else 1
            tileA = (kind == "DD")
            NM, NMD, rel = (NMA, NMDA, sRel0) if tileA else (NMB, NMDB, sRel0 if st == 0 else sRel1)
            lab = f"Lsel_{kind}_{st}"
            nm_txt = f"v[{NM}:{NM+15}]"
            assert t.endswith(nm_txt), t
            k.I(f"s_cmp_lt_i32 s{rel}, 0")
            k.I(f"s_cbranch_scc1 {lab}_vis")
            k.I(f"s_cmp_eq_i32 s{rel}, 0")
            k.I(f"s_cbranch_scc1 {lab}_diag")
            k.items.append("    " + t[:-len(nm_txt)] + f"v[{NINFB}:{NINFB+15}]")
            k.items.append(f"    s_branch {lab}_next")
            k.L(lab + "_diag")
            k.items.append("    " + t[:-len(nm_txt)] + f"v[{NMD}:{NMD+15}]")
            k.items.append(f"    s_branch {lab}_next")
            k.L(lab + "_vis")
            k.I(t)
            k.L(lab + "_next")
        else: k.I(t)

AGE = 4
CAP = 6
VERBOSE = True
def loop(k, name, kind, masked):
    k.I(f"s_sub_u32 s{sCnt}, s{sCnt}, 1")
    k.I(f"s_cbranch_scc1 {name}_end")
    k.L(name)
    body(k, kind, masked)
    k.I(f"s_sub_u32 s{sCnt}, s{sCnt}, 1")
    k.I(f"s_cbranch_scc0 {name}")
    k.L(name + "_end")

def epilogue(k, O, Lregs, sQ, flagbit, store_flags):
    I = k.I
    t = vT
    I(f"v_add_f32 v{t}, v{Lregs[0]}, v{Lregs[1]}")
    for r in Lregs[2:]: I(f"v_add_f32 v{t}, v{t}, v{r}")
    I(f"v_mov_b32 v{t+1}, v{t}")
    I(f"v_permlane32_swap_b32 v{t}, v{t+1}")
    I(f"v_add_f32 v{t}, v{t}, v{t+1}")
    I(f"v_rcp_f32 v{t+2}, v{t}")
    I(f"v_mov_b32 v{t+4}, 0")
    I(f"v_mov_b32 v{t+3}, v{t+2}")
    for c in range(8):
        db, ip = c >> 1, c & 1
        b = t + 8 + (c & 1)*12
        for j in range(8): I(f"v_accvgpr_read_b32 v{b+j}, a{O+16*db+8*ip+j}")
        for j in range(4): I(f"v_pk_mul_f32 v[{b+2*j}:{b+2*j+1}], v[{b+2*j}:{b+2*j+1}], v[{t+2}:{t+3}]")
        for j in range(4): I(f"v_cvt_pk_bf16_f32 v{b+8+j}, v{b+2*j}, v{b+2*j+1}")
        I(f"s_add_u32 s{sT}, s{sQ}, {c*1024}")
        I(f"buffer_store_dwordx4 v[{b+8}:{b+11}], v{vL16}, s[{SCTX}:{SCTX+3}], s{sT} offen {store_flags}")
        for j in range(4): I(f"v_maximum3_f32 v{t+4}, |v{b+2*j}|, |v{b+2*j+1}|, v{t+4}")
    I(f"v_mov_b32 v{t+5}, 0x5d800000")
    I(f"v_cmp_nle_f32 s[{MSK}:{MSK+1}], v{t}, v{t+5}")
    I(f"v_mov_b32 v{t+5}, 0x35800000")
    I(f"v_cmp_nge_f32 s[{MSK+2}:{MSK+3}], v{t}, v{t+5}")
    I(f"v_mov_b32 v{t+5}, 0x7f7f0000")
    I(f"v_cmp_nle_f32 s[{MSK+4}:{MSK+5}], v{t+4}, v{t+5}")
    I(f"s_or_b64 s[{MSK}:{MSK+1}], s[{MSK}:{MSK+1}], s[{MSK+2}:{MSK+3}]")
    I(f"s_or_b64 s[{MSK}:{MSK+1}], s[{MSK}:{MSK+1}], s[{MSK+4}:{MSK+5}]")
    I(f"s_cmp_lg_u64 s[{MSK}:{MSK+1}], 0")
    I(f"s_cselect_b32 s{sT}, {flagbit}, 0")
    I(f"s_or_b32 s{sFlag}, s{sFlag}, s{sT}")

def slow_path(k, name, O, Q, sQ, sQblk_expr, store_flags, force=False):
    I = k.I
    m, l, mn, al, t = vT, vT+1, vT+2, vT+3, vT+4
    sQblk_expr()
    I(f"s_mov_b32 s{sDoff}, 0")
    I(f"v_mov_b32 v{m}, 0xff7fffff")
    I(f"v_mov_b32 v{l}, 0")
    for r in range(64): I(f"v_accvgpr_write_b32 a{O+r}, 0")
    I(f"v_and_b32 v{vTH0}, 31, v{LANE}")
    I(f"v_lshrrev_b32 v{t}, 5, v{LANE}")
    I(f"v_lshlrev_b32 v{t}, 2, v{t}")
    I(f"v_sub_u32 v{vTH0}, v{vTH0}, v{t}")
    I(f"s_lshl_b32 s{sT}, s{sCnt}, 5")
    I(f"v_add_u32 v{vTH0}, s{sT}, v{vTH0}")
    I(f"s_add_u32 s{sCnt}, s{sCnt}, 1")
    k.L(name)
    for c in range(8):
        I(f"s_add_u32 s{sT}, s{sDoff}, {c*1024}")
        I(f"buffer_load_dwordx4 a[{F0+4*c}:{F0+4*c+3}], v{vL16}, s[{SKV}:{SKV+3}], s{sT} offen")
    for j in range(8):
        ks, db = j >> 2, j & 3
        I(f"s_add_u32 s{sT}, s{sDoff}, {8192 + (db*2+ks)*1024}")
        I(f"buffer_load_dwordx4 a[{F1+4*j}:{F1+4*j+3}], v{vL16}, s[{SKV}:{SKV+3}], s{sT} offen")
    I("s_waitcnt vmcnt(8)")
    for c in range(8):
        C = "0" if c == 0 else f"v[{S0}:{S0+15}]"
        I(f"v_mfma_f32_32x32x16_bf16 v[{S0}:{S0+15}], a[{F0+4*c}:{F0+4*c+3}], a[{Q+4*c}:{Q+4*c+3}], {C}")
    for f in mask_group(S0, vTH0): I(f[0])
    I(f"v_max3_f32 v{mn}, v{S0}, v{S0+1}, v{m}")
    for r in range(2, 16, 2): I(f"v_max3_f32 v{mn}, v{S0+r}, v{S0+r+1}, v{mn}")
    I(f"v_mov_b32 v{t}, v{mn}")
    I(f"v_permlane32_swap_b32 v{mn}, v{t}")
    I(f"v_max_f32 v{mn}, v{mn}, v{t}")
    I(f"v_sub_f32 v{al}, v{m}, v{mn}")
    I(f"v_exp_f32 v{al}, v{al}")
    I(f"v_mov_b32 v{m}, v{mn}")
    I(f"v_mul_f32 v{l}, v{l}, v{al}")
    for r in range(16):
        I(f"v_sub_f32 v{S0+r}, v{S0+r}, v{mn}")
        I(f"v_exp_f32 v{S0+r}, v{S0+r}")
    for r in range(16): I(f"v_add_f32 v{l}, v{l}, v{S0+r}")
    for j in range(8): I(f"v_cvt_pk_bf16_f32 v{P0+j}, v{S0+2*j}, v{S0+2*j+1}")
    for r in range(64):
        I(f"v_accvgpr_read_b32 v{t}, a{O+r}")
        I(f"v_mul_f32 v{t}, v{t}, v{al}")
        I(f"v_accvgpr_write_b32 a{O+r}, v{t}")
    I("s_waitcnt vmcnt(0)")
    for mm in pv(O, F1, P0): I(mm)
    I(f"s_add_u32 s{sDoff}, s{sDoff}, 16384")
    I(f"v_subrev_u32 v{vTH0}, 32, v{vTH0}")
    I(f"s_sub_u32 s{sCnt}, s{sCnt}, 1")
    I(f"s_cmp_lg_u32 s{sCnt}, 0")
    I("s_nop 15")
    I(f"s_cbranch_scc1 {name}")
    I(f"v_mov_b32 v{LA0}, v{l}")
    I(f"v_mov_b32 v{LA1}, 0")
    epilogue(k, O, (LA0, LA1), sQ, 0, store_flags)

MARK0 = 0
LATE2 = []
KVLATE_STATE = True
MARKMAP = {3:10, 4:10, 5:11, 6:11, 7:11, 8:11, 9:11, 10:11, 11:11}
def amark(k, diag, i):
    import os
    if os.environ.get('FINE'): return
    mark(k, diag, MARKMAP[i] if MARK0 else i)

def att_part(k, diag, store_flags, C0, lateq, sQblkA, sQblkB, kidx, endlabel, reload_ptrs=False, tail_fn=None):
    I = k.I
    t0, t1 = vT, vT + 1
    I(f"s_mov_b32 s{sT}, {f32bits(QSCALE)}")
    I(f"v_mov_b32 v{vT+8}, s{sT}")
    I(f"v_mov_b32 v{vT+9}, s{sT}")
    for T, Q in ((0, QA), (1, QB)):
        for c in range(8):
            src = QACC + (T*4 + (c >> 1))*16 + 8*(c & 1)
            for j in range(4): I(f"v_pk_mul_f32 v[{src+2*j}:{src+2*j+1}], v[{src+2*j}:{src+2*j+1}], v[{vT+8}:{vT+9}]")
            for j in range(4): I(f"v_cvt_pk_bf16_f32 v{vT+j}, v{src+2*j}, v{src+2*j+1}")
            for j in range(4): I(f"v_accvgpr_write_b32 a{Q+4*c+j}, v{vT+j}")
            if len(lateq) > 1:
                I(f"s_mov_b32 s{sT2}, s{sT}")
                lateq.pop(0)(); I(f"s_mov_b32 s{sT}, s{sT2}")
    for r in range(128):
        I(f"v_accvgpr_write_b32 a{r}, 0")
        if r % 16 == 15 and lateq: lateq.pop(0)()
    while lateq: lateq.pop(0)()
    I(f"s_add_u32 m0, s{sWL}, {((8 + C0) % 8)*16384}")
    I(f"s_add_u32 s{sDoff}, s{sWL}, {8*16384}")
    for r in (LA0, LA1, LB0, LB1, LC0, LC1): I(f"v_mov_b32 v{r}, 0")
    I(f"v_and_b32 v{t0}, 31, v{LANE}")
    I(f"v_lshrrev_b32 v{t1}, 5, v{LANE}")
    I(f"v_lshlrev_b32 v{t1}, 2, v{t1}")
    I(f"v_sub_u32 v{t0}, v{t0}, v{t1}")
    I(f"s_lshl_b32 s{sT}, s{sQblkA}, 5")
    I(f"v_add_u32 v{vTH0}, s{sT}, v{t0}")
    I(f"v_mov_b32 v{vTHA}, v{vTH0}")
    I(f"s_lshl_b32 s{sT}, s{sQblkB}, 5")
    I(f"v_add_u32 v{vTH1}, s{sT}, v{t0}")
    I(f"v_mov_b32 v{vTHB}, v{vTH1}")
    amark(k, diag, 3)
    k.wait_vm("kv2", expect=4)
    I("s_barrier")
    I(f"v_add_u32 v{vA0}, {(C0 % 8)*16384}, v{vL16}")
    I(f"v_add_u32 v{vA2}, {((C0 + 1) % 8)*16384}, v{vL16}")
    I(f"v_add_u32 v{vA1}, {((C0 + 2) % 8)*16384}, v{vL16}")
    for c in range(8): I(rdK(F0, c, vA0))
    I("s_waitcnt lgkmcnt(0)")
    for S, Q in ((S0, QA), (S1, QB)):
        for c in range(8):
            C = "0" if c == 0 else f"v[{S}:{S+15}]"
            I(f"v_mfma_f32_32x32x16_bf16 v[{S}:{S+15}], a[{F0+4*c}:{F0+4*c+3}], a[{Q+4*c}:{Q+4*c+3}], {C}")
    for c in range(8): I(rdK(F0, c, vA2))
    for j in range(8): I(rdV(F1, j, vA0))
    I0 = I
    cntp = [0]
    def I(t, tag=None):
        I0(t, tag); cntp[0] += 1
        if LATE2 and cntp[0] % 10 == 0 and t.startswith("v_") and not t.startswith("v_cmp"): LATE2.pop(0)()
    for S, TH, NM in ((S0, vTH0, NMA), (S1, vTH1, NMB)):
        if S == S0 or not CSEL:
            for f in mask_group(S, TH): I(f[0])
        I(f"v_max3_f32 v{t0}, v{S}, v{S+1}, v{S+2}")
        for r in range(3, 15, 2): I(f"v_max3_f32 v{t0}, v{S+r}, v{S+r+1}, v{t0}")
        I(f"v_max_f32 v{t0}, v{t0}, v{S+15}")
        I(f"v_mov_b32 v{t1}, v{t0}")
        I(f"v_permlane32_swap_b32 v{t0}, v{t1}")
        I(f"v_max_f32 v{t0}, v{t0}, v{t1}")
        for r in range(16): I(f"v_sub_f32 v{S+r}, v{S+r}, v{t0}")
        for r in range(16): I(f"v_sub_f32 v{NM+r}, 0, v{t0}")
    if CSEL:
        I(f"v_and_b32 v{t0}, 31, v{LANE}")
        I(f"v_lshrrev_b32 v{t1}, 5, v{LANE}")
        I(f"v_lshlrev_b32 v{t1}, 2, v{t1}")
        I(f"v_sub_u32 v{t0}, v{t0}, v{t1}")
        for i4 in range(0, 16, 4):
            for j in range(4): I(f"v_cmp_le_i32 s[{MSK+2*j}:{MSK+2*j+1}], {KVR[i4+j]}, v{t0}")
            for j in range(4):
                I(f"v_cndmask_b32 v{NMDA+i4+j}, v{vNINF}, v{NMA+i4+j}, s[{MSK+2*j}:{MSK+2*j+1}]")
                I(f"v_cndmask_b32 v{NMDB+i4+j}, v{vNINF}, v{NMB+i4+j}, s[{MSK+2*j}:{MSK+2*j+1}]")
        for r in range(16): I(f"v_mov_b32 v{NINFB+r}, v{vNINF}")
    for f in exp_group(S0, list(range(16)), (LA0, LA1)): I(f[0])
    for f in cvt_group(S0, P0, 0, 8): I(f[0])
    for f in exp_group(S1, list(range(NE1A)), (LB0, LB1)): I(f[0])
    while LATE2: LATE2.pop(0)()
    I = I0
    if KVLATE_STATE:
        I(f"s_add_u32 m0, s{sWL}, {((8 + C0) % 8)*16384}")
        I(f"s_add_u32 s{sDoff}, s{sWL}, {8*16384}")
    amark(k, diag, 4)
    PFT = {7: (6, 4096*640*2, 0, 27), 4: (6, 4096*640*2, 3456, 15), 5: (8, 640*1728*2, 0, 19), 6: (10, 640*1728*2, 0, 23),
           3: (12, 640*1728*2, 0, 11), 2: (12, 640*1728*2, 1408, 7)}
    I(f"s_mov_b32 s{SPF}, s6")
    I(f"s_mov_b32 s{SPF+1}, s7")
    I(f"s_mov_b32 s{SPF+2}, 0")
    I(f"s_mov_b32 s{SPF+3}, 0x20000")
    I(f"s_mov_b32 s{sPFo}, 0")
    I(f"s_lshl_b32 s{sT2}, s{sH}, 2")
    I(f"s_add_u32 s{sT2}, s{sT2}, s{sW}")
    for ii, (lo, size, start, iters) in PFT.items():
        I(f"s_cmp_eq_u32 s{sI}, {ii}")
        I(f"s_cselect_b32 s{SPF}, s{lo}, s{SPF}")
        I(f"s_cselect_b32 s{SPF+1}, s{lo+1}, s{SPF+1}")
        I(f"s_cselect_b32 s{SPF+2}, {size}, s{SPF+2}")
        I(f"s_mul_i32 s{sT}, s{sT2}, {iters*1024}")
        I(f"s_add_u32 s{sT}, s{sT}, {start*1024}")
        I(f"s_cmp_eq_u32 s{sI}, {ii}")
        I(f"s_cselect_b32 s{sPFo}, s{sT}, s{sPFo}")
    loops = []
    I(f"s_lshl_b32 s{sCnt}, s{sI}, 2")
    I(f"s_sub_u32 s{sCnt}, s{sCnt}, 1")
    I(f"s_max_i32 s{sCnt}, s{sCnt}, 0")
    loop(k, "Lk2_dd", "DD", False)
    amark(k, diag, 5)
    I(f"s_cmp_eq_u32 s{sI}, 0")
    I(f"s_cselect_b32 s{sCnt}, 3, 4")
    I(f"s_lshl_b32 s{sT}, s{sI}, 2")
    I(f"s_max_u32 s{sT}, s{sT}, 1")
    I(f"s_sub_i32 s{sRel0}, s{sT}, s{sQblkA}")
    I(f"s_lshl_b32 s{sT}, s{sT}, 5")
    I(f"v_subrev_u32 v{vTH0}, s{sT}, v{vTHA}")
    loop(k, "Lk2_ddm", "DD", True)
    amark(k, diag, 6)
    I(f"s_lshl_b32 s{sT}, s{sI}, 7")
    I(f"s_add_u32 s{sT}, s{sT}, 128")
    I(f"s_lshr_b32 s{sRel0}, s{sT}, 5")
    I(f"s_sub_i32 s{sRel0}, s{sRel0}, s{sQblkB}")
    I(f"s_add_i32 s{sRel1}, s{sRel0}, 1")
    I(f"v_subrev_u32 v{vTH0}, s{sT}, v{vTHB}")
    I(f"v_subrev_u32 v{vTH1}, 32, v{vTH0}")
    i0 = len(k.items)
    body(k, "DS", True)
    ds_rng = (i0, len(k.items))
    amark(k, diag, 7)
    I(f"s_lshl_b32 s{sT}, s{sI}, 2")
    I(f"s_sub_u32 s{sCnt}, 27, s{sT}")
    I(f"s_max_i32 s{sCnt}, s{sCnt}, 0")
    loop(k, "Lk2_ss", "SS", False)
    amark(k, diag, 8)
    I(f"s_cmp_eq_u32 s{sI}, 7")
    I(f"s_cselect_b32 s{sCnt}, 1, 2")
    I(f"s_lshl_b32 s{sT}, s{sI}, 2")
    I(f"s_sub_u32 s{sT2}, 60, s{sT}")
    I(f"s_add_u32 s{sT}, s{sT}, 6")
    I(f"s_max_u32 s{sT}, s{sT}, s{sT2}")
    I(f"s_sub_i32 s{sRel0}, s{sT}, s{sQblkB}")
    I(f"s_add_i32 s{sRel1}, s{sRel0}, 1")
    I(f"s_lshl_b32 s{sT}, s{sT}, 5")
    I(f"v_subrev_u32 v{vTH0}, s{sT}, v{vTHB}")
    I(f"v_subrev_u32 v{vTH1}, 32, v{vTH0}")
    loop(k, "Lk2_ssm", "SS", True)
    amark(k, diag, 9)
    body(k, "SE", False)
    amark(k, diag, 10)
    if CODEPF2:
        code_touch(k, k.name, "Lk2_noslowB", "Lcode_end", 10, 64, S0, S0 + 1, S0 + 2)
    if not RETILE:
        epilogue(k, OA, (LA0, LA1), sQA, 1, store_flags)
        epilogue(k, OB, (LB0, LB1, LC0, LC1), sQB, 2, store_flags)
    else:
        SWO, SWOT = 16, 20
        vWO, vWOr, WOF = S0, S0 + 5, S1
        I("s_barrier")
        srd(k, SWO, 6, 7, 4096*640*2)
        srd(k, SWOT, 14, 15, WOT_SIZE, WOT_OFF)
        I(f"s_mov_b32 s{sCnt}, 1639")
        I(f"s_mul_i32 s{sT2}, s{sW}, 320")
        for u in range(5):
            I(f"v_add_u32 v{t0}, s{sT2}, v{LANE}")
            I(f"v_add_u32 v{t0}, {64*u}, v{t0}")
            I(f"v_mul_lo_u32 v{t1}, v{t0}, s{sCnt}")
            I(f"v_lshrrev_b32 v{t1}, 16, v{t1}")
            I(f"v_mul_u32_u24 v{vWO+u}, 40, v{t1}")
            I(f"v_sub_u32 v{t0}, v{t0}, v{vWO+u}")
            I(f"v_mul_u32_u24 v{t1}, 1280, v{t1}")
            I(f"v_lshl_add_u32 v{vWO+u}, v{t0}, 4, v{t1}")
        I(f"s_lshr_b32 s{sT}, s2, 1")
        I(f"s_mul_i32 s{sDoff}, s{sT}, {32*1280}")
        I(f"s_and_b32 s{sT}, s2, 1")
        I(f"s_mul_i32 s{sT}, s{sT}, 640")
        I(f"s_add_u32 s{sDoff}, s{sDoff}, s{sT}")
        I(f"s_mul_i32 s{sT2}, s{sW}, 5120")
        for u in range(5):
            I(f"s_add_u32 m0, s{sT2}, {u*1024}")
            I(f"buffer_load_dwordx4 v{vWO+u}, s[{SWO}:{SWO+3}], s{sDoff} offen lds", tag="wo")
        I(f"v_lshrrev_b32 v{t0}, 5, v{LANE}")
        I(f"v_lshlrev_b32 v{t0}, 4, v{t0}")
        I(f"v_bfe_u32 v{t1}, v{LANE}, 4, 1")
        I(f"v_lshl_add_u32 v{t0}, v{t1}, 2, v{t0}")
        I(f"v_bfe_u32 v{t1}, v{LANE}, 2, 2")
        I(f"v_add_u32 v{t0}, v{t0}, v{t1}")
        I(f"v_mul_u32_u24 v{vWOr}, 640, v{t0}")
        I(f"v_and_b32 v{t1}, 3, v{LANE}")
        I(f"v_lshl_add_u32 v{vWOr}, v{t1}, {4 if SPLITK else 3}, v{vWOr}")
        I(f"s_mul_i32 s{sT}, s{sW}, {64 if SPLITK else 160}")
        I(f"v_add_u32 v{vWOr}, s{sT}, v{vWOr}")
        epilogue(k, OA, (LA0, LA1), sQA, 1, store_flags)
        epilogue(k, OB, (LB0, LB1, LC0, LC1), sQB, 2, store_flags)
        k.wait_vm("wo", expect=5)
        I("s_barrier")
        if SPLITK:
            for j in range(3):
                for h2 in range(2):
                    r = WOF + (j*2 + h2)*4
                    I(f"ds_read_b64_tr_b16 v[{r}:{r+1}], v{vWOr} offset:{j*256 + h2*8}")
                    I(f"ds_read_b64_tr_b16 v[{r+2}:{r+3}], v{vWOr} offset:{j*256 + h2*8 + 8*640}")
            I("s_waitcnt lgkmcnt(0)")
            for j in range(3):
                I(f"s_add_u32 s{sT}, s{sW}, {4*j}")
                I(f"s_cmp_ge_u32 s{sT}, 5")
                I(f"s_cselect_b32 s{sT2}, 1, 0")
                I(f"s_mul_i32 s{sDoff}, s{sT2}, 5")
                I(f"s_sub_u32 s{sDoff}, s{sT}, s{sDoff}")
                I(f"s_lshl_b32 s{sDoff}, s{sDoff}, 11")
                I(f"s_and_b32 s{sCnt}, s2, 1")
                I(f"s_lshl_b32 s{sCnt}, s{sCnt}, 1")
                I(f"s_add_u32 s{sCnt}, s{sCnt}, s{sT2}")
                I(f"s_lshl_b32 s{sCnt}, s{sCnt}, 7")
                I(f"s_lshr_b32 s{sT2}, s2, 1")
                I(f"s_add_u32 s{sCnt}, s{sCnt}, s{sT2}")
                I(f"s_mul_i32 s{sCnt}, s{sCnt}, 10240")
                I(f"s_add_u32 s{sDoff}, s{sDoff}, s{sCnt}")
                I(f"s_cmp_ge_u32 s{sT}, 10")
                I(f"s_cselect_b32 s{sDoff}, {WOT_SIZE}, s{sDoff}")
                for h2 in range(2):
                    r = WOF + (j*2 + h2)*4
                    I(f"buffer_store_dwordx4 v[{r}:{r+3}], v{vL16}, s[{SWOT}:{SWOT+3}], s{sDoff} offen offset:{h2*1024} {store_flags}")
        else:
            for nt in range(5):
                I(f"ds_read_b64_tr_b16 v[{WOF+4*nt}:{WOF+4*nt+1}], v{vWOr} offset:{nt*32}")
                I(f"ds_read_b64_tr_b16 v[{WOF+4*nt+2}:{WOF+4*nt+3}], v{vWOr} offset:{nt*32 + 8*640}")
            I(f"s_and_b32 s{sDoff}, s2, 1")
            I(f"s_lshl_b32 s{sDoff}, s{sDoff}, 2")
            I(f"s_add_u32 s{sDoff}, s{sDoff}, s{sW}")
            I(f"s_lshl_b32 s{sDoff}, s{sDoff}, 7")
            I(f"s_lshr_b32 s{sT}, s2, 1")
            I(f"s_add_u32 s{sDoff}, s{sDoff}, s{sT}")
            I(f"s_mul_i32 s{sDoff}, s{sDoff}, 5120")
            I("s_waitcnt lgkmcnt(0)")
            for nt in range(5):
                I(f"s_add_u32 s{sT}, s{sDoff}, {nt*1024}")
                I(f"buffer_store_dwordx4 v[{WOF+4*nt}:{WOF+4*nt+3}], v{vL16}, s[{SWOT}:{SWOT+3}], s{sT} offen {store_flags}")
    amark(k, diag, 11)
    I(f"s_bitcmp1_b32 s{sFlag}, 0")
    I("s_cbranch_scc0 Lk2_noslowA")
    I("s_waitcnt vmcnt(0)")
    slow_path(k, "Lk2_slowA", OA, QA, sQA, lambda: I(f"s_mov_b32 s{sCnt}, s{sQblkA}"), store_flags)
    k.L("Lk2_noslowA")
    I(f"s_bitcmp1_b32 s{sFlag}, 1")
    I("s_cbranch_scc0 Lk2_noslowB")
    I("s_waitcnt vmcnt(0)")
    slow_path(k, "Lk2_slowB", OB, QB, sQB, lambda: I(f"s_mov_b32 s{sCnt}, s{sQblkB}"), store_flags)
    k.L("Lk2_noslowB")
    if tail_fn: tail_fn()
    dump_marks(k, diag, kidx, 14, 15, 24)
    stamp_end(k, diag, kidx, 14, 15, vtmp=24)
    k.L(endlabel)
    I("s_endpgm")

def finish_k2(k):
    k.fix_hazards()
    trace = []
    items = k.items
    lab = {it[:-1]: idx for idx, it in enumerate(items) if isinstance(it, str) and it.endswith(":")}
    idx = 0
    names = ["Lk2_dd", "Lk2_ddm", "Lk2_ss", "Lk2_ssm"]
    segs = []
    pos = 0
    for nm in names:
        a, b = lab[nm], lab[nm + "_end"]
        segs.append(items[pos:a]); segs.append(items[a:b]); segs.append(items[a:b]); pos = b
    segs.append(items[pos:lab["Lk2_noslowA"]])
    for s_ in segs: trace += s_
    pr = check_seq(trace, "k2") + check_waits(trace, "k2")
    trace2 = items[:lab["Lk2_dd"]] + items[lab["Lk2_dd_end"]:lab["Lk2_ss"]] + items[lab["Lk2_ss_end"]:lab["Lk2_noslowA"]]
    pr += check_seq(trace2, "k2z") + check_waits(trace2, "k2z")
    for p_ in pr[:20]: print(p_)
    print("k2 problems:", len(pr))

def gen_k2(diag=False, store_flags="sc1", force_slow=0, dbg=""):
    global DBG
    DBG = dbg
    k = Kern("k2_kernel")
    I = k.I
    I("s_cmp_ge_u32 s2, 256")
    I("s_cbranch_scc1 Lk2_end")
    stamp_begin(k, diag)
    I(f"s_load_dwordx2 s[4:5], s[0:1], {KA['wq']}")
    I(f"s_load_dwordx2 s[14:15], s[0:1], {KA['ws']}")
    I(f"s_load_dwordx2 s[6:7], s[0:1], {KA['wo']}")
    I(f"s_load_dwordx4 s[8:11], s[0:1], {KA['wg']}")
    I(f"s_load_dwordx2 s[12:13], s[0:1], {KA['wd']}")
    I("v_lshrrev_b32 v1, 6, v0")
    I(f"v_and_b32 v{LANE}, 63, v0")
    I(f"v_readfirstlane_b32 s{sW}, v1")
    I(f"s_and_b32 s{sT}, s2, 7")
    I(f"s_lshr_b32 s{sT2}, s2, 3")
    I(f"s_and_b32 s{sH}, s{sT2}, 3")
    I(f"s_lshl_b32 s{sT}, s{sT}, 2")
    I(f"s_add_u32 s{sH}, s{sH}, s{sT}")
    I(f"s_lshr_b32 s{sI}, s2, 5")
    I("s_waitcnt lgkmcnt(0)")
    srd(k, SXN, 14, 15, XN_SIZE, XN_OFF)
    srd(k, SWQ, 4, 5, 640*4096*2)
    I(f"s_lshl_b32 s{sT}, s{sH}, 20")
    I(f"s_add_u32 s{sT}, s{sT}, {KV_OFF}")
    I(f"s_add_u32 s{SKV}, s14, s{sT}")
    I(f"s_addc_u32 s{SKV+1}, s15, 0")
    I(f"s_lshl_b32 s{sT}, s{sI}, 16")
    I(f"s_sub_u32 s{SKV+2}, {64*16384}, s{sT}")
    I(f"s_mov_b32 s{SKV+3}, 0x20000")
    srd(k, SCTX, 14, 15, CTX_SIZE, CTX_OFF)
    t0, t1 = vT, vT + 1
    I(f"v_lshlrev_b32 v{vL16}, 4, v{LANE}")
    I(f"v_lshrrev_b32 v{t0}, 4, v{LANE}")
    I(f"v_lshlrev_b32 v{vWQ}, 13, v{t0}")
    I(f"v_lshlrev_b32 v{t0}, 2, v{t0}")
    I(f"v_and_b32 v{t1}, 15, v{LANE}")
    I(f"v_xor_b32 v{t0}, v{t0}, v{t1}")
    I(f"v_lshl_add_u32 v{vWQ}, v{t0}, 4, v{vWQ}")
    I(f"v_lshrrev_b32 v{t1}, 5, v{LANE}")
    I(f"v_bfe_u32 v{t0}, v{LANE}, 2, 2")
    I(f"v_lshl_add_u32 v{t1}, v{t1}, 3, v{t0}")
    I(f"v_lshlrev_b32 v{t1}, 8, v{t1}")
    I(f"v_bfe_u32 v{t0+2}, v{LANE}, 4, 1")
    I(f"v_lshl_add_u32 v{t1}, v{t0+2}, 5, v{t1}")
    I(f"v_and_b32 v{t0+2}, 3, v{LANE}")
    I(f"v_lshl_add_u32 v{t1}, v{t0+2}, 3, v{t1}")
    for db in range(4):
        I(f"v_xor_b32 v{t0+2}, {db}, v{t0}")
        I(f"v_lshl_add_u32 v{vQ+db}, v{t0+2}, 6, v{t1}")
    I(f"v_mov_b32 v{vNINF}, 0xff800000")
    I(f"s_lshl_b32 s{sWL}, s{sW}, 12")
    sQblkA, sQblkB = 56, 57
    I(f"s_lshl_b32 s{sT}, s{sI}, 2")
    I(f"s_add_u32 s{sQblkA}, s{sT}, s{sW}")
    I(f"s_sub_u32 s{sQblkB}, 60, s{sT}")
    I(f"s_add_u32 s{sQblkB}, s{sQblkB}, s{sW}")
    sXA, sXB, sWq = 58, 59, 60+32
    sXA, sXB, sWq = 58, 59, 88
    I(f"s_mul_i32 s{sXA}, s{sQblkA}, 40960")
    I(f"s_mul_i32 s{sXB}, s{sQblkB}, 40960")
    for sq, sb in ((sQA, sQblkA), (sQB, sQblkB)):
        I(f"s_lshl_b32 s{sq}, s{sb}, 5")
        I(f"s_add_u32 s{sq}, s{sq}, s{sH}")
        I(f"s_lshl_b32 s{sq}, s{sq}, 13")
    I(f"s_lshl_b32 s{sWq}, s{sW}, 17")
    I(f"s_lshl_b32 s{sT}, s{sH}, 8")
    I(f"s_add_u32 s{sWq}, s{sWq}, s{sT}")
    I(f"s_mov_b32 s{sFlag}, {force_slow}")
    XR = 0
    QACC = 128
    def xload(s):
        for T, sx in ((0, sXA), (1, sXB)):
            a = XR + ((2*s + T) % 32)*4
            I(f"s_add_u32 s{sT}, s{sx}, {s*1024}")
            I(f"buffer_load_dwordx4 a[{a}:{a+3}], v{vL16}, s[{SXN}:{SXN+3}], s{sT} offen", tag=f"x{s}")
    def wdma_one(g, u):
        I(f"s_add_u32 m0, s{sWL}, {(g % 8)*16384 + u*1024}")
        I(f"s_add_u32 s{sT}, s{sWq}, {(64*g + 4*u)*8192}")
        I(f"buffer_load_dwordx4 v{vWQ}, s[{SWQ}:{SWQ+3}], s{sT} offen lds", tag=f"w{g}")
    def kv_one(blk, u):
        I(f"s_add_u32 m0, s{sWL}, {((blk + 10) % 8)*16384}")
        I(f"s_add_u32 s{sT}, s{sWL}, {blk*16384}")
        I(f"buffer_load_dwordx4 v{vL16}, s[{SKV}:{SKV+3}], s{sT} offen offset:{u*1024} lds", tag=f"kv{blk}")
    def kv_closures(blk): return [lambda u=u: kv_one(blk, u) for u in range(4)]
    def wread(n):
        g, s = n >> 2, n & 3
        F = F0 if n % 2 == 0 else F1
        F = F0 + (n % 2)*16
        off = (g % 8)*16384 + s*4096
        hi = off >= 65536
        for db in range(4):
            vb = vQ + db
            o = off
            if hi: vb = vT + 8 + db; o = off - 65536
            I(f"ds_read_b64_tr_b16 a[{F+4*db}:{F+4*db+1}], v{vb} offset:{o}", tag=f"r{n}")
            I(f"ds_read_b64_tr_b16 a[{F+4*db+2}:{F+4*db+3}], v{vb} offset:{o+1024}", tag=f"r{n}")
    for db in range(4): I(f"v_add_u32 v{vT+8+db}, 0x10000, v{vQ+db}")
    mark(k, diag, 0)
    for u in range(4): wdma_one(0, u)
    for s in range(0, 4): xload(s)
    for u in range(4): wdma_one(1, u)
    for s in range(4, 8): xload(s)
    for g in (2, 3):
        for u in range(4): wdma_one(g, u)
    gapq = []
    for s in range(8, 16): gapq.append(lambda s=s: xload(s))
    for g in range(4, 8):
        for u in range(4): gapq.append(lambda g=g, u=u: wdma_one(g, u))
    k.wait_vm("w0", expect=4)
    I("s_barrier")
    mark(k, diag, 1)
    wread(0)
    for n in range(40):
        g, s = n >> 2, n & 3
        if s == 2:
            if g + 1 < 10: k.wait_vm(f"w{g+1}", expect=4)
            I("s_barrier")
            if g >= 1:
                q = g - 1 + 8
                if q < 10:
                    for u in range(4): gapq.append(lambda q=q, u=u: wdma_one(q, u))
                elif g >= 7:
                    gapq += kv_closures(g - 7)
        if n + 1 < 40: wread(n + 1)
        k.wait_vm(f"x{n}", expect=2)
        k.wait_lg(f"r{n}")
        F = F0 + (n % 2)*16
        for db in range(4):
            for T in range(2):
                d = QACC + (T*4 + db)*16
                a = XR + ((2*n + T) % 32)*4
                c = "0" if n == 0 else f"v[{d}:{d+15}]"
                I(f"v_mfma_f32_32x32x16_bf16 v[{d}:{d+15}], a[{F+4*db}:{F+4*db+3}], a[{a}:{a+3}], {c}")
                if gapq: gapq.pop(0)()
        if n + 16 < 40: gapq.append(lambda s=n+16: xload(s))
    while gapq: gapq.pop(0)()
    mark(k, diag, 2)
    I("s_barrier")
    lateq = []
    for blk in range(3, 8): lateq += kv_closures(blk)
    att_part(k, diag, store_flags, 10, lateq, sQblkA, sQblkB, 1, "Lk2_end")
    finish_k2(k)
    return k, 256, 256, 131072
```

```python
from common import *

OA, OB, QA, QB, F0, F1 = 0, 64, 128, 160, 192, 224
S0, S1, P0, P1, NMA, NMB = 64, 80, 96, 104, 112, 128
LANE, vL16, vWQ, vNINF = 2, 3, 4, 5
vQ = 6
vA0, vA1, vA2 = 10, 11, 12
vTH0, vTH1 = 13, 14
vTHA, vTHB = 22, 23
LA0, LA1, LB0, LB1, LC0, LC1 = 16, 17, 18, 19, 20, 21
vT = 24
SXN, SWQ, SKV, SCTX = 16, 20, 24, 28
sW, sH, sI = 40, 41, 42
sT, sT2, sB0, sDoff, sDslot, sDlim, sOOB, sCnt, sWL, sQA, sQB, sFlag, sTHR = 43, 44, 45, 46, 47, 48, 49, 50, 51, 52, 53, 54, 55
MSK = 90
KVR = [8*(r >> 2) + (r & 3) for r in range(16)]
NMDA, NMDB, NINFB = 144, 160, 176
sRel0, sRel1 = 45, 48
CSEL = True
COST = {"exp": 8}

from sched import Item, schedule, insert_lgkm_waits

def exp_group(S, regs, L, masked=False, th=None):
    out = []
    for i in range(0, len(regs), 2):
        pair = regs[i:i+2]
        for r in pair: out.append((f"v_exp_f32 v{S+r}, v{S+r}", 8))
        for j, r in enumerate(pair): out.append((f"v_add_f32 v{L[j]}, v{L[j]}, v{S+r}", 4))
    return out

def mask_group(S, th):
    out = []
    for i in range(0, 16, 4):
        for j in range(4):
            out.append((f"v_cmp_le_i32 s[{MSK+2*j}:{MSK+2*j+1}], {KVR[i+j]}, v{th}", 4))
        for j in range(4):
            out.append((f"v_cndmask_b32 v{S+i+j}, v{vNINF}, v{S+i+j}, s[{MSK+2*j}:{MSK+2*j+1}]", 4))
    return out

def cvt_group(S, P, lo, hi):
    return [(f"v_cvt_pk_bf16_f32 v{P+j}, v{S+2*j}, v{S+2*j+1}", 4) for j in range(lo, hi)]

def qk(S, F, Q, NM):
    out = []
    for c in range(8):
        C = f"v[{NM}:{NM+15}]" if c == 0 else f"v[{S}:{S+15}]"
        out.append(f"v_mfma_f32_32x32x16_bf16 v[{S}:{S+15}], a[{F+4*c}:{F+4*c+3}], a[{Q+4*c}:{Q+4*c+3}], {C}")
    return out

def pv(O, F, P):
    out = []
    for j in range(8):
        ks, db = j >> 2, j & 3
        out.append(f"v_mfma_f32_32x32x16_bf16 a[{O+16*db}:{O+16*db+15}], a[{F+4*j}:{F+4*j+3}], v[{P+4*ks}:{P+4*ks+3}], a[{O+16*db}:{O+16*db+15}]")
    return out

def rdK(F, c, vb, off=0): return f"ds_read_b128 a[{F+4*c}:{F+4*c+3}], v{vb} offset:{off + c*1024}"
def rdV(F, j, vb, off=0):
    ks, db = j >> 2, j & 3
    return f"ds_read_b128 a[{F+4*j}:{F+4*j+3}], v{vb} offset:{off + 8192 + (db*2 + ks)*1024}"

DBG = ""
SPLITK = True
RETILE = True
CODEPF2 = False
QACC = 128
PREF = True
SPF, sPFo, vDUM = 16, 89, 60
def dma_ld(u): return f"buffer_load_dwordx4 v{vL16}, s[{SKV}:{SKV+3}], s{sDoff} offen offset:{u*1024} lds"
def dma_adv():
    return ["s_add_u32 m0, m0, 16384", "s_and_b32 m0, m0, 0x1ffff", f"s_add_u32 s{sDoff}, s{sDoff}, 16384"]

def softmax_items(S, L, regs, lo, hi, masks=None):
    E = {}; items = []
    hi0 = hi
    last_add = [None, None]
    for n, r in enumerate(regs):
        hi_r = lo + (hi0 - lo) * (n + 1) // len(regs)
        hi = max(hi_r, lo)
        e = Item(f"v_exp_f32 v{S+r}, v{S+r}", 2, lo, hi, deps=[masks.get(r) if masks else None])
        E[r] = e; items.append(e)
        a = Item(f"v_add_f32 v{L[n & 1]}, v{L[n & 1]}, v{S+r}", 1, lo, hi + 2, deps=[e], after=[last_add[n & 1]])
        last_add[n & 1] = a; items.append(a)
    return E, items

def mask_items(S, th, lo, hi):
    M = {}; items = []
    prev = [None]*4
    for i in range(16):
        j = i & 3
        c = Item(f"v_cmp_le_i32 s[{MSK+2*j}:{MSK+2*j+1}], {KVR[i]}, v{th}", 1, lo, hi, deps=[prev[j]])
        m = Item(f"v_cndmask_b32 v{S+i}, v{vNINF}, v{S+i}, s[{MSK+2*j}:{MSK+2*j+1}]", 1, lo, hi, deps=[c])
        prev[j] = m; M[i] = m; items += [c, m]
    return M, items

def cvt_items(S, P, js, E, lo, hi):
    return [Item(f"v_cvt_pk_bf16_f32 v{P+j}, v{S+2*j}, v{S+2*j+1}", 1, lo, hi, deps=[E.get(2*j), E.get(2*j+1)]) for j in js]

KREADS = [set(("a", F0 + 4*c + q) for q in range(4)) for c in range(8)]
VREADS = [set(("a", F1 + 4*c + q) for q in range(4)) for c in range(8)]
NE1A = int(__import__('os').environ.get('NE1A', '4'))

def body(k, kind, masked):
    dual_pv = kind in ("DD", "DS")
    dual_qk = kind == "DD"
    L0n = (LA0, LA1) if dual_qk else (LC0, LC1)
    L1 = (LB0, LB1)
    k.C(f"---- body {kind} masked={masked}")
    if kind == "SE":
        for j in range(8): k.I(rdV(F0, j, vA0, 16384))
        for f in exp_group(S1, list(range(NE1A, 16)), L1): k.I(f[0])
        for f in cvt_group(S1, P1, 0, 8): k.I(f[0])
        k.I("s_waitcnt lgkmcnt(8)")
        for m in pv(OB, F1, P0): k.I(m)
        k.I("s_waitcnt lgkmcnt(0)")
        for m in pv(OB, F0, P1): k.I(m)
        return
    items = []; pre = {}
    if kind == "DD":   mf = qk(S0, F0, QA, NMA) + pv(OA, F1, P0) + qk(S1, F0, QB, NMB) + pv(OB, F1, P1)
    elif kind == "DS": mf = qk(S0, F0, QB, NMB) + pv(OA, F1, P0) + qk(S1, F0, QB, NMB) + pv(OB, F1, P1)
    else:              mf = qk(S0, F0, QB, NMB) + pv(OB, F1, P0) + qk(S1, F0, QB, NMB) + pv(OB, F1, P1)
    E1b, it = softmax_items(S1, L1, list(range(NE1A, 16)), 0, 12); items += it
    items += cvt_items(S1, P1, range(0, 8), E1b, 0, 15)
    M0 = M1 = None
    if masked and not CSEL:
        M0, it = mask_items(S0, vTH0, 10, 22); items += it
        if kind != "DD":
            M1, it = mask_items(S1, vTH1, 26, 31); items += it
    E0, it = softmax_items(S0, L0n, list(range(16)), 10, 28, M0); items += it
    items += cvt_items(S0, P0, range(0, 4), E0, 12, 31)
    items += cvt_items(S0, P0, range(4, 8), E0, 16, 31)
    E1a, it = softmax_items(S1, L1, list(range(0, NE1A)), 26, 30, M1); items += it
    BAR = int(__import__('os').environ.get('BARG', '19'))
    def chain(lst, after0=None):
        prev = after0
        for x in lst:
            if prev is not None: x.after.append(prev)
            items.append(x); prev = x
        return prev
    mid = []
    if kind == "DD":
        vm = 16
    elif kind == "DS":
        mid = [Item(rdK(F0, j, vA1), 1, j, j + 4, prio=3) for j in range(8)]
        vm = 12
    else:
        mid = [Item(rdK(F0, j, vA1, 16384), 1, j, j + 4, prio=3) for j in range(8)]
        mid += [Item(rdV(F1, j, vA0, 16384), 1, 8 + j, min(8 + j + 1, 16), prio=3) for j in range(8)]
        vm = 8
    chain(mid)
    pre[BAR] = [f"s_waitcnt vmcnt({vm}) lgkmcnt(0)", "s_barrier"]
    if kind == "DD":   kb, ko, vb, vo = vA1, 0, vA2, 0
    elif kind == "DS": kb, ko, vb, vo = vA2, 0, vA0, 0
    else:              kb, ko, vb, vo = vA2, 0, vA1, 0
    tailK = [Item(rdK(F0, j, kb, ko), 1, max(BAR, 16 + j), max(BAR, 16 + j) + 2, prio=3) for j in range(8)]
    tailV = [Item(rdV(F1, j, vb, vo), 1, 24 + j, 24 + j if j > 3 else 27, prio=3) for j in range(8)]
    addr_pre = []
    if kind == "DS":
        a0 = Item(f"v_add_u32 v{vA0}, 0x4000, v{vA0}", 1, 0, 15); a1 = Item(f"v_and_b32 v{vA0}, 0x1ffff, v{vA0}", 1, 0, 17, deps=[a0])
        c1 = Item(f"v_add_u32 v{vA2}, 0x4000, v{vA1}", 1, 0, 15); c2 = Item(f"v_and_b32 v{vA2}, 0x1ffff, v{vA2}", 1, 0, 17, deps=[c1])
        items += [a0, a1, c1, c2]
        for x in tailK: x.deps.append(c2)
        for x in tailV: x.deps.append(a1)
    last = chain(tailK + tailV)
    nblk = 2 if kind == "SS" else 1
    dl = []
    g0 = BAR
    for blk in range(nblk):
        for u in range(4): dl.append(Item(dma_ld(u), 1, min(g0 + blk*6 + u, 31), min(g0 + blk*6 + u + 1, 31)))
        for t in dma_adv(): dl.append(Item(t, 1, BAR, min(g0 + blk*6 + 5, 31)))
    chain(dl)
    if kind == "DD" and not masked and PREF:
        p1 = Item(f"buffer_load_dwordx4 v[{vDUM}:{vDUM+3}], v{vL16}, s[{SPF}:{SPF+3}], s{sPFo} offen", 1, 2, 12); items.append(p1)
        items.append(Item(f"s_add_u32 s{sPFo}, s{sPFo}, 1024", 1, 3, 15, after=[p1]))
    if kind == "DD":
        post = [f"v_mov_b32 v{vA0}, v{vA2}", f"v_mov_b32 v{vA2}, v{vA1}", f"v_add_u32 v{vA1}, 0x4000, v{vA1}", f"v_and_b32 v{vA1}, 0x1ffff, v{vA1}"]
    elif kind == "DS":
        post = [f"v_mov_b32 v{vA1}, v{vA2}", f"v_add_u32 v{vA2}, 0x8000, v{vA2}", f"v_and_b32 v{vA2}, 0x1ffff, v{vA2}"]
    else:
        post = [f"v_mov_b32 v{vA0}, v{vA1}", f"v_mov_b32 v{vA1}, v{vA2}", f"v_add_u32 v{vA2}, 0x8000, v{vA2}", f"v_and_b32 v{vA2}, 0x1ffff, v{vA2}"]
    if masked and CSEL:
        if kind == "DD": post.append(f"s_add_i32 s{sRel0}, s{sRel0}, 1")
        else: post += [f"s_add_i32 s{sRel0}, s{sRel0}, 2", f"s_add_i32 s{sRel1}, s{sRel1}, 2"]
    if masked and not CSEL:
        if kind == "DD": items.append(Item(f"v_subrev_u32 v{vTH0}, 32, v{vTH0}", 1, 23, 31))
        else:
            items.append(Item(f"v_subrev_u32 v{vTH0}, 64, v{vTH0}", 1, 23, 31))
            post.append(f"v_subrev_u32 v{vTH1}, 64, v{vTH1}")
    seq, load = schedule(mf, items, cap=CAP, pre=pre)
    seq += post
    seq, outst = insert_lgkm_waits(seq, KREADS + VREADS, age=AGE, init_age=[-12 + j*5//8 for j in range(8)] + [-7 + j for j in range(8)])
    assert outst == KREADS + VREADS, [sorted(o)[0] for o in outst]
    if VERBOSE: print(kind, masked, "gap loads", load, "sum", sum(load) + len(post), "instrs", len(seq))
    first0, first1 = mf[0], mf[16]
    for t in seq:
        if masked and CSEL and (t == first0 or (t == first1 and kind != "DD")):
            st = 0 if t == first0 else 1
            tileA = (kind == "DD")
            NM, NMD, rel = (NMA, NMDA, sRel0) if tileA else (NMB, NMDB, sRel0 if st == 0 else sRel1)
            lab = f"Lsel_{kind}_{st}"
            nm_txt = f"v[{NM}:{NM+15}]"
            assert t.endswith(nm_txt), t
            k.I(f"s_cmp_lt_i32 s{rel}, 0")
            k.I(f"s_cbranch_scc1 {lab}_vis")
            k.I(f"s_cmp_eq_i32 s{rel}, 0")
            k.I(f"s_cbranch_scc1 {lab}_diag")
            k.items.append("    " + t[:-len(nm_txt)] + f"v[{NINFB}:{NINFB+15}]")
            k.items.append(f"    s_branch {lab}_next")
            k.L(lab + "_diag")
            k.items.append("    " + t[:-len(nm_txt)] + f"v[{NMD}:{NMD+15}]")
            k.items.append(f"    s_branch {lab}_next")
            k.L(lab + "_vis")
            k.I(t)
            k.L(lab + "_next")
        else: k.I(t)

AGE = int(__import__('os').environ.get('AGEB', '4'))
CAP = int(__import__('os').environ.get('CAPG', '6'))
VERBOSE = True
def loop(k, name, kind, masked):
    k.I(f"s_sub_u32 s{sCnt}, s{sCnt}, 1")
    k.I(f"s_cbranch_scc1 {name}_end")
    k.L(name)
    body(k, kind, masked)
    k.I(f"s_sub_u32 s{sCnt}, s{sCnt}, 1")
    k.I(f"s_cbranch_scc0 {name}")
    k.L(name + "_end")

def epilogue(k, O, Lregs, sQ, flagbit, store_flags):
    I = k.I
    t = vT
    I(f"v_add_f32 v{t}, v{Lregs[0]}, v{Lregs[1]}")
    for r in Lregs[2:]: I(f"v_add_f32 v{t}, v{t}, v{r}")
    I(f"v_mov_b32 v{t+1}, v{t}")
    I(f"v_permlane32_swap_b32 v{t}, v{t+1}")
    I(f"v_add_f32 v{t}, v{t}, v{t+1}")
    I(f"v_rcp_f32 v{t+2}, v{t}")
    I(f"v_mov_b32 v{t+4}, 0")
    I(f"v_mov_b32 v{t+3}, v{t+2}")
    for c in range(8):
        db, ip = c >> 1, c & 1
        b = t + 8 + (c & 1)*12
        for j in range(8): I(f"v_accvgpr_read_b32 v{b+j}, a{O+16*db+8*ip+j}")
        for j in range(4): I(f"v_pk_mul_f32 v[{b+2*j}:{b+2*j+1}], v[{b+2*j}:{b+2*j+1}], v[{t+2}:{t+3}]")
        for j in range(4): I(f"v_cvt_pk_bf16_f32 v{b+8+j}, v{b+2*j}, v{b+2*j+1}")
        I(f"s_add_u32 s{sT}, s{sQ}, {c*1024}")
        I(f"buffer_store_dwordx4 v[{b+8}:{b+11}], v{vL16}, s[{SCTX}:{SCTX+3}], s{sT} offen {store_flags}")
        for j in range(4): I(f"v_maximum3_f32 v{t+4}, |v{b+2*j}|, |v{b+2*j+1}|, v{t+4}")
    I(f"v_mov_b32 v{t+5}, 0x5d800000")
    I(f"v_cmp_nle_f32 s[{MSK}:{MSK+1}], v{t}, v{t+5}")
    I(f"v_mov_b32 v{t+5}, 0x35800000")
    I(f"v_cmp_nge_f32 s[{MSK+2}:{MSK+3}], v{t}, v{t+5}")
    I(f"v_mov_b32 v{t+5}, 0x7f7f0000")
    I(f"v_cmp_nle_f32 s[{MSK+4}:{MSK+5}], v{t+4}, v{t+5}")
    I(f"s_or_b64 s[{MSK}:{MSK+1}], s[{MSK}:{MSK+1}], s[{MSK+2}:{MSK+3}]")
    I(f"s_or_b64 s[{MSK}:{MSK+1}], s[{MSK}:{MSK+1}], s[{MSK+4}:{MSK+5}]")
    I(f"s_cmp_lg_u64 s[{MSK}:{MSK+1}], 0")
    I(f"s_cselect_b32 s{sT}, {flagbit}, 0")
    I(f"s_or_b32 s{sFlag}, s{sFlag}, s{sT}")

def slow_path(k, name, O, Q, sQ, sQblk_expr, store_flags, force=False):
    I = k.I
    m, l, mn, al, t = vT, vT+1, vT+2, vT+3, vT+4
    sQblk_expr()
    I(f"s_mov_b32 s{sDoff}, 0")
    I(f"v_mov_b32 v{m}, 0xff7fffff")
    I(f"v_mov_b32 v{l}, 0")
    for r in range(64): I(f"v_accvgpr_write_b32 a{O+r}, 0")
    I(f"v_and_b32 v{vTH0}, 31, v{LANE}")
    I(f"v_lshrrev_b32 v{t}, 5, v{LANE}")
    I(f"v_lshlrev_b32 v{t}, 2, v{t}")
    I(f"v_sub_u32 v{vTH0}, v{vTH0}, v{t}")
    I(f"s_lshl_b32 s{sT}, s{sCnt}, 5")
    I(f"v_add_u32 v{vTH0}, s{sT}, v{vTH0}")
    I(f"s_add_u32 s{sCnt}, s{sCnt}, 1")
    k.L(name)
    for c in range(8):
        I(f"s_add_u32 s{sT}, s{sDoff}, {c*1024}")
        I(f"buffer_load_dwordx4 a[{F0+4*c}:{F0+4*c+3}], v{vL16}, s[{SKV}:{SKV+3}], s{sT} offen")
    for j in range(8):
        ks, db = j >> 2, j & 3
        I(f"s_add_u32 s{sT}, s{sDoff}, {8192 + (db*2+ks)*1024}")
        I(f"buffer_load_dwordx4 a[{F1+4*j}:{F1+4*j+3}], v{vL16}, s[{SKV}:{SKV+3}], s{sT} offen")
    I("s_waitcnt vmcnt(8)")
    for c in range(8):
        C = "0" if c == 0 else f"v[{S0}:{S0+15}]"
        I(f"v_mfma_f32_32x32x16_bf16 v[{S0}:{S0+15}], a[{F0+4*c}:{F0+4*c+3}], a[{Q+4*c}:{Q+4*c+3}], {C}")
    for f in mask_group(S0, vTH0): I(f[0])
    I(f"v_max3_f32 v{mn}, v{S0}, v{S0+1}, v{m}")
    for r in range(2, 16, 2): I(f"v_max3_f32 v{mn}, v{S0+r}, v{S0+r+1}, v{mn}")
    I(f"v_mov_b32 v{t}, v{mn}")
    I(f"v_permlane32_swap_b32 v{mn}, v{t}")
    I(f"v_max_f32 v{mn}, v{mn}, v{t}")
    I(f"v_sub_f32 v{al}, v{m}, v{mn}")
    I(f"v_exp_f32 v{al}, v{al}")
    I(f"v_mov_b32 v{m}, v{mn}")
    I(f"v_mul_f32 v{l}, v{l}, v{al}")
    for r in range(16):
        I(f"v_sub_f32 v{S0+r}, v{S0+r}, v{mn}")
        I(f"v_exp_f32 v{S0+r}, v{S0+r}")
    for r in range(16): I(f"v_add_f32 v{l}, v{l}, v{S0+r}")
    for j in range(8): I(f"v_cvt_pk_bf16_f32 v{P0+j}, v{S0+2*j}, v{S0+2*j+1}")
    for r in range(64):
        I(f"v_accvgpr_read_b32 v{t}, a{O+r}")
        I(f"v_mul_f32 v{t}, v{t}, v{al}")
        I(f"v_accvgpr_write_b32 a{O+r}, v{t}")
    I("s_waitcnt vmcnt(0)")
    for mm in pv(O, F1, P0): I(mm)
    I(f"s_add_u32 s{sDoff}, s{sDoff}, 16384")
    I(f"v_subrev_u32 v{vTH0}, 32, v{vTH0}")
    I(f"s_sub_u32 s{sCnt}, s{sCnt}, 1")
    I(f"s_cmp_lg_u32 s{sCnt}, 0")
    I("s_nop 15")
    I(f"s_cbranch_scc1 {name}")
    I(f"v_mov_b32 v{LA0}, v{l}")
    I(f"v_mov_b32 v{LA1}, 0")
    epilogue(k, O, (LA0, LA1), sQ, 0, store_flags)

MARK0 = 0
LATE2 = []
KVLATE_STATE = True
MARKMAP = {3:10, 4:10, 5:11, 6:11, 7:11, 8:11, 9:11, 10:11, 11:11}
def amark(k, diag, i):
    import os
    if os.environ.get('FINE'): return
    mark(k, diag, MARKMAP[i] if MARK0 else i)

def att_part(k, diag, store_flags, C0, lateq, sQblkA, sQblkB, kidx, endlabel, reload_ptrs=False, tail_fn=None):
    I = k.I
    t0, t1 = vT, vT + 1
    I(f"s_mov_b32 s{sT}, {f32bits(QSCALE)}")
    I(f"v_mov_b32 v{vT+8}, s{sT}")
    I(f"v_mov_b32 v{vT+9}, s{sT}")
    for T, Q in ((0, QA), (1, QB)):
        for c in range(8):
            src = QACC + (T*4 + (c >> 1))*16 + 8*(c & 1)
            for j in range(4): I(f"v_pk_mul_f32 v[{src+2*j}:{src+2*j+1}], v[{src+2*j}:{src+2*j+1}], v[{vT+8}:{vT+9}]")
            for j in range(4): I(f"v_cvt_pk_bf16_f32 v{vT+j}, v{src+2*j}, v{src+2*j+1}")
            for j in range(4): I(f"v_accvgpr_write_b32 a{Q+4*c+j}, v{vT+j}")
            if len(lateq) > 1:
                I(f"s_mov_b32 s{sT2}, s{sT}")
                lateq.pop(0)(); I(f"s_mov_b32 s{sT}, s{sT2}")
    for r in range(128):
        I(f"v_accvgpr_write_b32 a{r}, 0")
        if r % 16 == 15 and lateq: lateq.pop(0)()
    while lateq: lateq.pop(0)()
    I(f"s_add_u32 m0, s{sWL}, {((8 + C0) % 8)*16384}")
    I(f"s_add_u32 s{sDoff}, s{sWL}, {8*16384}")
    for r in (LA0, LA1, LB0, LB1, LC0, LC1): I(f"v_mov_b32 v{r}, 0")
    I(f"v_and_b32 v{t0}, 31, v{LANE}")
    I(f"v_lshrrev_b32 v{t1}, 5, v{LANE}")
    I(f"v_lshlrev_b32 v{t1}, 2, v{t1}")
    I(f"v_sub_u32 v{t0}, v{t0}, v{t1}")
    I(f"s_lshl_b32 s{sT}, s{sQblkA}, 5")
    I(f"v_add_u32 v{vTH0}, s{sT}, v{t0}")
    I(f"v_mov_b32 v{vTHA}, v{vTH0}")
    I(f"s_lshl_b32 s{sT}, s{sQblkB}, 5")
    I(f"v_add_u32 v{vTH1}, s{sT}, v{t0}")
    I(f"v_mov_b32 v{vTHB}, v{vTH1}")
    amark(k, diag, 3)
    k.wait_vm("kv2", expect=4)
    I("s_barrier")
    I(f"v_add_u32 v{vA0}, {(C0 % 8)*16384}, v{vL16}")
    I(f"v_add_u32 v{vA2}, {((C0 + 1) % 8)*16384}, v{vL16}")
    I(f"v_add_u32 v{vA1}, {((C0 + 2) % 8)*16384}, v{vL16}")
    for c in range(8): I(rdK(F0, c, vA0))
    I("s_waitcnt lgkmcnt(0)")
    for S, Q in ((S0, QA), (S1, QB)):
        for c in range(8):
            C = "0" if c == 0 else f"v[{S}:{S+15}]"
            I(f"v_mfma_f32_32x32x16_bf16 v[{S}:{S+15}], a[{F0+4*c}:{F0+4*c+3}], a[{Q+4*c}:{Q+4*c+3}], {C}")
    for c in range(8): I(rdK(F0, c, vA2))
    for j in range(8): I(rdV(F1, j, vA0))
    I0 = I
    cntp = [0]
    def I(t, tag=None):
        I0(t, tag); cntp[0] += 1
        if LATE2 and cntp[0] % 10 == 0 and t.startswith("v_") and not t.startswith("v_cmp"): LATE2.pop(0)()
    for S, TH, NM in ((S0, vTH0, NMA), (S1, vTH1, NMB)):
        if S == S0 or not CSEL:
            for f in mask_group(S, TH): I(f[0])
        I(f"v_max3_f32 v{t0}, v{S}, v{S+1}, v{S+2}")
        for r in range(3, 15, 2): I(f"v_max3_f32 v{t0}, v{S+r}, v{S+r+1}, v{t0}")
        I(f"v_max_f32 v{t0}, v{t0}, v{S+15}")
        I(f"v_mov_b32 v{t1}, v{t0}")
        I(f"v_permlane32_swap_b32 v{t0}, v{t1}")
        I(f"v_max_f32 v{t0}, v{t0}, v{t1}")
        for r in range(16): I(f"v_sub_f32 v{S+r}, v{S+r}, v{t0}")
        for r in range(16): I(f"v_sub_f32 v{NM+r}, 0, v{t0}")
    if CSEL:
        I(f"v_and_b32 v{t0}, 31, v{LANE}")
        I(f"v_lshrrev_b32 v{t1}, 5, v{LANE}")
        I(f"v_lshlrev_b32 v{t1}, 2, v{t1}")
        I(f"v_sub_u32 v{t0}, v{t0}, v{t1}")
        for i4 in range(0, 16, 4):
            for j in range(4): I(f"v_cmp_le_i32 s[{MSK+2*j}:{MSK+2*j+1}], {KVR[i4+j]}, v{t0}")
            for j in range(4):
                I(f"v_cndmask_b32 v{NMDA+i4+j}, v{vNINF}, v{NMA+i4+j}, s[{MSK+2*j}:{MSK+2*j+1}]")
                I(f"v_cndmask_b32 v{NMDB+i4+j}, v{vNINF}, v{NMB+i4+j}, s[{MSK+2*j}:{MSK+2*j+1}]")
        for r in range(16): I(f"v_mov_b32 v{NINFB+r}, v{vNINF}")
    for f in exp_group(S0, list(range(16)), (LA0, LA1)): I(f[0])
    for f in cvt_group(S0, P0, 0, 8): I(f[0])
    for f in exp_group(S1, list(range(NE1A)), (LB0, LB1)): I(f[0])
    while LATE2: LATE2.pop(0)()
    I = I0
    if KVLATE_STATE:
        I(f"s_add_u32 m0, s{sWL}, {((8 + C0) % 8)*16384}")
        I(f"s_add_u32 s{sDoff}, s{sWL}, {8*16384}")
    amark(k, diag, 4)
    PFT = {7: (6, 4096*640*2, 0, 27), 4: (6, 4096*640*2, 3456, 15), 5: (8, 640*1728*2, 0, 19), 6: (10, 640*1728*2, 0, 23),
           3: (12, 640*1728*2, 0, 11), 2: (12, 640*1728*2, 1408, 7)}
    I(f"s_mov_b32 s{SPF}, s6")
    I(f"s_mov_b32 s{SPF+1}, s7")
    I(f"s_mov_b32 s{SPF+2}, 0")
    I(f"s_mov_b32 s{SPF+3}, 0x20000")
    I(f"s_mov_b32 s{sPFo}, 0")
    I(f"s_lshl_b32 s{sT2}, s{sH}, 2")
    I(f"s_add_u32 s{sT2}, s{sT2}, s{sW}")
    for ii, (lo, size, start, iters) in PFT.items():
        I(f"s_cmp_eq_u32 s{sI}, {ii}")
        I(f"s_cselect_b32 s{SPF}, s{lo}, s{SPF}")
        I(f"s_cselect_b32 s{SPF+1}, s{lo+1}, s{SPF+1}")
        I(f"s_cselect_b32 s{SPF+2}, {size}, s{SPF+2}")
        I(f"s_mul_i32 s{sT}, s{sT2}, {iters*1024}")
        I(f"s_add_u32 s{sT}, s{sT}, {start*1024}")
        I(f"s_cmp_eq_u32 s{sI}, {ii}")
        I(f"s_cselect_b32 s{sPFo}, s{sT}, s{sPFo}")
    loops = []
    I(f"s_lshl_b32 s{sCnt}, s{sI}, 2")
    I(f"s_sub_u32 s{sCnt}, s{sCnt}, 1")
    I(f"s_max_i32 s{sCnt}, s{sCnt}, 0")
    loop(k, "Lk2_dd", "DD", False)
    amark(k, diag, 5)
    I(f"s_cmp_eq_u32 s{sI}, 0")
    I(f"s_cselect_b32 s{sCnt}, 3, 4")
    I(f"s_lshl_b32 s{sT}, s{sI}, 2")
    I(f"s_max_u32 s{sT}, s{sT}, 1")
    I(f"s_sub_i32 s{sRel0}, s{sT}, s{sQblkA}")
    I(f"s_lshl_b32 s{sT}, s{sT}, 5")
    I(f"v_subrev_u32 v{vTH0}, s{sT}, v{vTHA}")
    loop(k, "Lk2_ddm", "DD", True)
    amark(k, diag, 6)
    I(f"s_lshl_b32 s{sT}, s{sI}, 7")
    I(f"s_add_u32 s{sT}, s{sT}, 128")
    I(f"s_lshr_b32 s{sRel0}, s{sT}, 5")
    I(f"s_sub_i32 s{sRel0}, s{sRel0}, s{sQblkB}")
    I(f"s_add_i32 s{sRel1}, s{sRel0}, 1")
    I(f"v_subrev_u32 v{vTH0}, s{sT}, v{vTHB}")
    I(f"v_subrev_u32 v{vTH1}, 32, v{vTH0}")
    i0 = len(k.items)
    body(k, "DS", True)
    ds_rng = (i0, len(k.items))
    amark(k, diag, 7)
    I(f"s_lshl_b32 s{sT}, s{sI}, 2")
    I(f"s_sub_u32 s{sCnt}, 27, s{sT}")
    I(f"s_max_i32 s{sCnt}, s{sCnt}, 0")
    loop(k, "Lk2_ss", "SS", False)
    amark(k, diag, 8)
    I(f"s_cmp_eq_u32 s{sI}, 7")
    I(f"s_cselect_b32 s{sCnt}, 1, 2")
    I(f"s_lshl_b32 s{sT}, s{sI}, 2")
    I(f"s_sub_u32 s{sT2}, 60, s{sT}")
    I(f"s_add_u32 s{sT}, s{sT}, 6")
    I(f"s_max_u32 s{sT}, s{sT}, s{sT2}")
    I(f"s_sub_i32 s{sRel0}, s{sT}, s{sQblkB}")
    I(f"s_add_i32 s{sRel1}, s{sRel0}, 1")
    I(f"s_lshl_b32 s{sT}, s{sT}, 5")
    I(f"v_subrev_u32 v{vTH0}, s{sT}, v{vTHB}")
    I(f"v_subrev_u32 v{vTH1}, 32, v{vTH0}")
    loop(k, "Lk2_ssm", "SS", True)
    amark(k, diag, 9)
    body(k, "SE", False)
    amark(k, diag, 10)
    if CODEPF2:
        code_touch(k, k.name, "Lk2_noslowB", "Lcode_end", 10, 64, S0, S0 + 1, S0 + 2)
    if not RETILE:
        epilogue(k, OA, (LA0, LA1), sQA, 1, store_flags)
        epilogue(k, OB, (LB0, LB1, LC0, LC1), sQB, 2, store_flags)
    else:
        SWO, SWOT = 16, 20
        vWO, vWOr, WOF = S0, S0 + 5, S1
        I("s_barrier")
        srd(k, SWO, 6, 7, 4096*640*2)
        srd(k, SWOT, 14, 15, WOT_SIZE, WOT_OFF)
        I(f"s_mov_b32 s{sCnt}, 1639")
        I(f"s_mul_i32 s{sT2}, s{sW}, 320")
        for u in range(5):
            I(f"v_add_u32 v{t0}, s{sT2}, v{LANE}")
            I(f"v_add_u32 v{t0}, {64*u}, v{t0}")
            I(f"v_mul_lo_u32 v{t1}, v{t0}, s{sCnt}")
            I(f"v_lshrrev_b32 v{t1}, 16, v{t1}")
            I(f"v_mul_u32_u24 v{vWO+u}, 40, v{t1}")
            I(f"v_sub_u32 v{t0}, v{t0}, v{vWO+u}")
            I(f"v_mul_u32_u24 v{t1}, 1280, v{t1}")
            I(f"v_lshl_add_u32 v{vWO+u}, v{t0}, 4, v{t1}")
        I(f"s_lshr_b32 s{sT}, s2, 1")
        I(f"s_mul_i32 s{sDoff}, s{sT}, {32*1280}")
        I(f"s_and_b32 s{sT}, s2, 1")
        I(f"s_mul_i32 s{sT}, s{sT}, 640")
        I(f"s_add_u32 s{sDoff}, s{sDoff}, s{sT}")
        I(f"s_mul_i32 s{sT2}, s{sW}, 5120")
        for u in range(5):
            I(f"s_add_u32 m0, s{sT2}, {u*1024}")
            I(f"buffer_load_dwordx4 v{vWO+u}, s[{SWO}:{SWO+3}], s{sDoff} offen lds", tag="wo")
        I(f"v_lshrrev_b32 v{t0}, 5, v{LANE}")
        I(f"v_lshlrev_b32 v{t0}, 4, v{t0}")
        I(f"v_bfe_u32 v{t1}, v{LANE}, 4, 1")
        I(f"v_lshl_add_u32 v{t0}, v{t1}, 2, v{t0}")
        I(f"v_bfe_u32 v{t1}, v{LANE}, 2, 2")
        I(f"v_add_u32 v{t0}, v{t0}, v{t1}")
        I(f"v_mul_u32_u24 v{vWOr}, 640, v{t0}")
        I(f"v_and_b32 v{t1}, 3, v{LANE}")
        I(f"v_lshl_add_u32 v{vWOr}, v{t1}, {4 if SPLITK else 3}, v{vWOr}")
        I(f"s_mul_i32 s{sT}, s{sW}, {64 if SPLITK else 160}")
        I(f"v_add_u32 v{vWOr}, s{sT}, v{vWOr}")
        epilogue(k, OA, (LA0, LA1), sQA, 1, store_flags)
        epilogue(k, OB, (LB0, LB1, LC0, LC1), sQB, 2, store_flags)
        k.wait_vm("wo", expect=5)
        I("s_barrier")
        if SPLITK:
            for j in range(3):
                for h2 in range(2):
                    r = WOF + (j*2 + h2)*4
                    I(f"ds_read_b64_tr_b16 v[{r}:{r+1}], v{vWOr} offset:{j*256 + h2*8}")
                    I(f"ds_read_b64_tr_b16 v[{r+2}:{r+3}], v{vWOr} offset:{j*256 + h2*8 + 8*640}")
            I("s_waitcnt lgkmcnt(0)")
            for j in range(3):
                I(f"s_add_u32 s{sT}, s{sW}, {4*j}")
                I(f"s_cmp_ge_u32 s{sT}, 5")
                I(f"s_cselect_b32 s{sT2}, 1, 0")
                I(f"s_mul_i32 s{sDoff}, s{sT2}, 5")
                I(f"s_sub_u32 s{sDoff}, s{sT}, s{sDoff}")
                I(f"s_lshl_b32 s{sDoff}, s{sDoff}, 11")
                I(f"s_and_b32 s{sCnt}, s2, 1")
                I(f"s_lshl_b32 s{sCnt}, s{sCnt}, 1")
                I(f"s_add_u32 s{sCnt}, s{sCnt}, s{sT2}")
                I(f"s_lshl_b32 s{sCnt}, s{sCnt}, 7")
                I(f"s_lshr_b32 s{sT2}, s2, 1")
                I(f"s_add_u32 s{sCnt}, s{sCnt}, s{sT2}")
                I(f"s_mul_i32 s{sCnt}, s{sCnt}, 10240")
                I(f"s_add_u32 s{sDoff}, s{sDoff}, s{sCnt}")
                I(f"s_cmp_ge_u32 s{sT}, 10")
                I(f"s_cselect_b32 s{sDoff}, {WOT_SIZE}, s{sDoff}")
                for h2 in range(2):
                    r = WOF + (j*2 + h2)*4
                    I(f"buffer_store_dwordx4 v[{r}:{r+3}], v{vL16}, s[{SWOT}:{SWOT+3}], s{sDoff} offen offset:{h2*1024} {store_flags}")
        else:
            for nt in range(5):
                I(f"ds_read_b64_tr_b16 v[{WOF+4*nt}:{WOF+4*nt+1}], v{vWOr} offset:{nt*32}")
                I(f"ds_read_b64_tr_b16 v[{WOF+4*nt+2}:{WOF+4*nt+3}], v{vWOr} offset:{nt*32 + 8*640}")
            I(f"s_and_b32 s{sDoff}, s2, 1")
            I(f"s_lshl_b32 s{sDoff}, s{sDoff}, 2")
            I(f"s_add_u32 s{sDoff}, s{sDoff}, s{sW}")
            I(f"s_lshl_b32 s{sDoff}, s{sDoff}, 7")
            I(f"s_lshr_b32 s{sT}, s2, 1")
            I(f"s_add_u32 s{sDoff}, s{sDoff}, s{sT}")
            I(f"s_mul_i32 s{sDoff}, s{sDoff}, 5120")
            I("s_waitcnt lgkmcnt(0)")
            for nt in range(5):
                I(f"s_add_u32 s{sT}, s{sDoff}, {nt*1024}")
                I(f"buffer_store_dwordx4 v[{WOF+4*nt}:{WOF+4*nt+3}], v{vL16}, s[{SWOT}:{SWOT+3}], s{sT} offen {store_flags}")
    amark(k, diag, 11)
    I(f"s_bitcmp1_b32 s{sFlag}, 0")
    I("s_cbranch_scc0 Lk2_noslowA")
    I("s_waitcnt vmcnt(0)")
    slow_path(k, "Lk2_slowA", OA, QA, sQA, lambda: I(f"s_mov_b32 s{sCnt}, s{sQblkA}"), store_flags)
    k.L("Lk2_noslowA")
    I(f"s_bitcmp1_b32 s{sFlag}, 1")
    I("s_cbranch_scc0 Lk2_noslowB")
    I("s_waitcnt vmcnt(0)")
    slow_path(k, "Lk2_slowB", OB, QB, sQB, lambda: I(f"s_mov_b32 s{sCnt}, s{sQblkB}"), store_flags)
    k.L("Lk2_noslowB")
    if tail_fn: tail_fn()
    dump_marks(k, diag, kidx, 14, 15, 24)
    stamp_end(k, diag, kidx, 14, 15, vtmp=24)
    k.L(endlabel)
    I("s_endpgm")

def finish_k2(k):
    k.fix_hazards()
    trace = []
    items = k.items
    lab = {it[:-1]: idx for idx, it in enumerate(items) if isinstance(it, str) and it.endswith(":")}
    idx = 0
    names = ["Lk2_dd", "Lk2_ddm", "Lk2_ss", "Lk2_ssm"]
    segs = []
    pos = 0
    for nm in names:
        a, b = lab[nm], lab[nm + "_end"]
        segs.append(items[pos:a]); segs.append(items[a:b]); segs.append(items[a:b]); pos = b
    segs.append(items[pos:lab["Lk2_noslowA"]])
    for s_ in segs: trace += s_
    pr = check_seq(trace, "k2") + check_waits(trace, "k2")
    trace2 = items[:lab["Lk2_dd"]] + items[lab["Lk2_dd_end"]:lab["Lk2_ss"]] + items[lab["Lk2_ss_end"]:lab["Lk2_noslowA"]]
    pr += check_seq(trace2, "k2z") + check_waits(trace2, "k2z")
    for p_ in pr[:20]: print(p_)
    print("k2 problems:", len(pr))

def gen_k2(diag=False, store_flags="sc1", force_slow=0, dbg=""):
    global DBG
    DBG = dbg
    k = Kern("k2_kernel")
    I = k.I
    I("s_cmp_ge_u32 s2, 256")
    I("s_cbranch_scc1 Lk2_end")
    stamp_begin(k, diag)
    I(f"s_load_dwordx2 s[4:5], s[0:1], {KA['wq']}")
    I(f"s_load_dwordx2 s[14:15], s[0:1], {KA['ws']}")
    I(f"s_load_dwordx2 s[6:7], s[0:1], {KA['wo']}")
    I(f"s_load_dwordx4 s[8:11], s[0:1], {KA['wg']}")
    I(f"s_load_dwordx2 s[12:13], s[0:1], {KA['wd']}")
    I("v_lshrrev_b32 v1, 6, v0")
    I(f"v_and_b32 v{LANE}, 63, v0")
    I(f"v_readfirstlane_b32 s{sW}, v1")
    I(f"s_and_b32 s{sT}, s2, 7")
    I(f"s_lshr_b32 s{sT2}, s2, 3")
    I(f"s_and_b32 s{sH}, s{sT2}, 3")
    I(f"s_lshl_b32 s{sT}, s{sT}, 2")
    I(f"s_add_u32 s{sH}, s{sH}, s{sT}")
    I(f"s_lshr_b32 s{sI}, s2, 5")
    I("s_waitcnt lgkmcnt(0)")
    srd(k, SXN, 14, 15, XN_SIZE, XN_OFF)
    srd(k, SWQ, 4, 5, 640*4096*2)
    I(f"s_lshl_b32 s{sT}, s{sH}, 20")
    I(f"s_add_u32 s{sT}, s{sT}, {KV_OFF}")
    I(f"s_add_u32 s{SKV}, s14, s{sT}")
    I(f"s_addc_u32 s{SKV+1}, s15, 0")
    I(f"s_lshl_b32 s{sT}, s{sI}, 16")
    I(f"s_sub_u32 s{SKV+2}, {64*16384}, s{sT}")
    I(f"s_mov_b32 s{SKV+3}, 0x20000")
    srd(k, SCTX, 14, 15, CTX_SIZE, CTX_OFF)
    t0, t1 = vT, vT + 1
    I(f"v_lshlrev_b32 v{vL16}, 4, v{LANE}")
    I(f"v_lshrrev_b32 v{t0}, 4, v{LANE}")
    I(f"v_lshlrev_b32 v{vWQ}, 13, v{t0}")
    I(f"v_lshlrev_b32 v{t0}, 2, v{t0}")
    I(f"v_and_b32 v{t1}, 15, v{LANE}")
    I(f"v_xor_b32 v{t0}, v{t0}, v{t1}")
    I(f"v_lshl_add_u32 v{vWQ}, v{t0}, 4, v{vWQ}")
    I(f"v_lshrrev_b32 v{t1}, 5, v{LANE}")
    I(f"v_bfe_u32 v{t0}, v{LANE}, 2, 2")
    I(f"v_lshl_add_u32 v{t1}, v{t1}, 3, v{t0}")
    I(f"v_lshlrev_b32 v{t1}, 8, v{t1}")
    I(f"v_bfe_u32 v{t0+2}, v{LANE}, 4, 1")
    I(f"v_lshl_add_u32 v{t1}, v{t0+2}, 5, v{t1}")
    I(f"v_and_b32 v{t0+2}, 3, v{LANE}")
    I(f"v_lshl_add_u32 v{t1}, v{t0+2}, 3, v{t1}")
    for db in range(4):
        I(f"v_xor_b32 v{t0+2}, {db}, v{t0}")
        I(f"v_lshl_add_u32 v{vQ+db}, v{t0+2}, 6, v{t1}")
    I(f"v_mov_b32 v{vNINF}, 0xff800000")
    I(f"s_lshl_b32 s{sWL}, s{sW}, 12")
    sQblkA, sQblkB = 56, 57
    I(f"s_lshl_b32 s{sT}, s{sI}, 2")
    I(f"s_add_u32 s{sQblkA}, s{sT}, s{sW}")
    I(f"s_sub_u32 s{sQblkB}, 60, s{sT}")
    I(f"s_add_u32 s{sQblkB}, s{sQblkB}, s{sW}")
    sXA, sXB, sWq = 58, 59, 60+32
    sXA, sXB, sWq = 58, 59, 88
    I(f"s_mul_i32 s{sXA}, s{sQblkA}, 40960")
    I(f"s_mul_i32 s{sXB}, s{sQblkB}, 40960")
    for sq, sb in ((sQA, sQblkA), (sQB, sQblkB)):
        I(f"s_lshl_b32 s{sq}, s{sb}, 5")
        I(f"s_add_u32 s{sq}, s{sq}, s{sH}")
        I(f"s_lshl_b32 s{sq}, s{sq}, 13")
    I(f"s_lshl_b32 s{sWq}, s{sW}, 17")
    I(f"s_lshl_b32 s{sT}, s{sH}, 8")
    I(f"s_add_u32 s{sWq}, s{sWq}, s{sT}")
    I(f"s_mov_b32 s{sFlag}, {force_slow}")
    XR = 0
    QACC = 128
    def xload(s):
        for T, sx in ((0, sXA), (1, sXB)):
            a = XR + ((2*s + T) % 32)*4
            I(f"s_add_u32 s{sT}, s{sx}, {s*1024}")
            I(f"buffer_load_dwordx4 a[{a}:{a+3}], v{vL16}, s[{SXN}:{SXN+3}], s{sT} offen", tag=f"x{s}")
    def wdma_one(g, u):
        I(f"s_add_u32 m0, s{sWL}, {(g % 8)*16384 + u*1024}")
        I(f"s_add_u32 s{sT}, s{sWq}, {(64*g + 4*u)*8192}")
        I(f"buffer_load_dwordx4 v{vWQ}, s[{SWQ}:{SWQ+3}], s{sT} offen lds", tag=f"w{g}")
    def kv_one(blk, u):
        I(f"s_add_u32 m0, s{sWL}, {((blk + 10) % 8)*16384}")
        I(f"s_add_u32 s{sT}, s{sWL}, {blk*16384}")
        I(f"buffer_load_dwordx4 v{vL16}, s[{SKV}:{SKV+3}], s{sT} offen offset:{u*1024} lds", tag=f"kv{blk}")
    def kv_closures(blk): return [lambda u=u: kv_one(blk, u) for u in range(4)]
    def wread(n):
        g, s = n >> 2, n & 3
        F = F0 if n % 2 == 0 else F1
        F = F0 + (n % 2)*16
        off = (g % 8)*16384 + s*4096
        hi = off >= 65536
        for db in range(4):
            vb = vQ + db
            o = off
            if hi: vb = vT + 8 + db; o = off - 65536
            I(f"ds_read_b64_tr_b16 a[{F+4*db}:{F+4*db+1}], v{vb} offset:{o}", tag=f"r{n}")
            I(f"ds_read_b64_tr_b16 a[{F+4*db+2}:{F+4*db+3}], v{vb} offset:{o+1024}", tag=f"r{n}")
    for db in range(4): I(f"v_add_u32 v{vT+8+db}, 0x10000, v{vQ+db}")
    mark(k, diag, 0)
    for u in range(4): wdma_one(0, u)
    for s in range(0, 4): xload(s)
    for u in range(4): wdma_one(1, u)
    for s in range(4, 8): xload(s)
    for g in (2, 3):
        for u in range(4): wdma_one(g, u)
    gapq = []
    for s in range(8, 16): gapq.append(lambda s=s: xload(s))
    for g in range(4, 8):
        for u in range(4): gapq.append(lambda g=g, u=u: wdma_one(g, u))
    k.wait_vm("w0", expect=4)
    I("s_barrier")
    mark(k, diag, 1)
    wread(0)
    for n in range(40):
        g, s = n >> 2, n & 3
        if s == 2:
            if g + 1 < 10: k.wait_vm(f"w{g+1}", expect=4)
            I("s_barrier")
            if g >= 1:
                q = g - 1 + 8
                if q < 10:
                    for u in range(4): gapq.append(lambda q=q, u=u: wdma_one(q, u))
                elif g >= 7:
                    gapq += kv_closures(g - 7)
        if n + 1 < 40: wread(n + 1)
        k.wait_vm(f"x{n}", expect=2)
        k.wait_lg(f"r{n}")
        F = F0 + (n % 2)*16
        for db in range(4):
            for T in range(2):
                d = QACC + (T*4 + db)*16
                a = XR + ((2*n + T) % 32)*4
                c = "0" if n == 0 else f"v[{d}:{d+15}]"
                I(f"v_mfma_f32_32x32x16_bf16 v[{d}:{d+15}], a[{F+4*db}:{F+4*db+3}], a[{a}:{a+3}], {c}")
                if gapq: gapq.pop(0)()
        if n + 16 < 40: gapq.append(lambda s=n+16: xload(s))
    while gapq: gapq.pop(0)()
    mark(k, diag, 2)
    I("s_barrier")
    lateq = []
    for blk in range(3, 8): lateq += kv_closures(blk)
    att_part(k, diag, store_flags, 10, lateq, sQblkA, sQblkB, 1, "Lk2_end")
    finish_k2(k)
    return k, 256, 256, 131072
```
